```python
import torch

def _softmax(x, axis=-1):
    return torch.softmax(x, dim=axis)
def _gelu(x):
    return torch.nn.functional.gelu(x, approximate="tanh")
def _silu(x):
    return torch.nn.functional.silu(x)
def _sigmoid(x):
    return torch.sigmoid(x)
def _layernorm(x, axis=-1, eps=1e-5):
    m = x.mean(dim=axis, keepdim=True)
    v = x.var(dim=axis, keepdim=True, unbiased=False)
    return (x - m) / torch.sqrt(v + eps)
def _scatter_add(tgt, idx, src, axis=0):
    return tgt.clone().index_add_(axis, idx, src)
def _segment_sum(src, seg, n):
    out = torch.zeros((n,) + src.shape[1:], dtype=src.dtype)
    return out.index_add_(0, seg, src)
def _pad(x, pw):
    flat = tuple(v for pair in reversed(pw) for v in pair)
    return torch.nn.functional.pad(x, flat)

kernel_name = 'recurrent_scan__compressed_kv_cla__glu_gated_geglu__decode'

def setup_inputs():

    _w = (lambda a: (lambda t: t.to(torch.bfloat16) if t.is_floating_point() else t)(torch.as_tensor(a)))
    def _A_setup():
        B, H, Sq, Sk, D, M = 4, 32, 1, 4096, 128, 576
        Dc = 4 * D
        return {
            "x": _w((lambda *s: torch.randn(*s, dtype=torch.bfloat16) * 0.05)(B, Sq, M)),
            "c_kv": _w((lambda *s: torch.randn(*s, dtype=torch.bfloat16) * 1.6)(B, Sk, Dc)),
            "w_q": _w((lambda *s: torch.randn(*s, dtype=torch.bfloat16) * 1.6)(M, H, D) * (M ** -0.5)),
            "w_uk": _w((lambda *s: torch.randn(*s, dtype=torch.bfloat16) * 1.6)(Dc, H, D) * (Dc ** -0.5)),
            "w_uv": _w((lambda *s: torch.randn(*s, dtype=torch.bfloat16) * 1.6)(Dc, H, D) * (Dc ** -0.5)),
            "w_o": _w((lambda *s: torch.randn(*s, dtype=torch.bfloat16) * 1.6)(H, D, M) * ((H * D) ** -0.5)),
        }
    _A_in = _A_setup()

    def _B_setup():
        B, S, Dm, Df = 4, 1, 576, 4608
        return {
            "x": _w((lambda *s: torch.randn(*s, dtype=torch.bfloat16) * 0.05)(B, S, Dm)),
            "w_gate": _w((lambda *s: torch.randn(*s, dtype=torch.bfloat16) * 0.2)(Dm, Df) * (Dm ** -0.5)),
            "w_up": _w((lambda *s: torch.randn(*s, dtype=torch.bfloat16) * 0.2)(Dm, Df) * (Dm ** -0.5)),
            "w_down": _w((lambda *s: torch.randn(*s, dtype=torch.bfloat16) * 0.2)(Df, Dm) * (Df ** -0.5)),
        }
    _B_in = _B_setup()

    return {
        "A_x": _A_in["x"],
        "A_c_kv": _A_in["c_kv"],
        "A_w_q": _A_in["w_q"],
        "A_w_uk": _A_in["w_uk"],
        "A_w_uv": _A_in["w_uv"],
        "A_w_o": _A_in["w_o"],
        "B_x": _B_in["x"],
        "B_w_gate": _B_in["w_gate"],
        "B_w_up": _B_in["w_up"],
        "B_w_down": _B_in["w_down"],
    }

def reference(A_x, A_c_kv, A_w_q, A_w_uk, A_w_uv, A_w_o, B_x, B_w_gate, B_w_up, B_w_down):
    def _A_ref(x, c_kv, w_q, w_uk, w_uv, w_o):
        B, Sq, M = x.shape[0], x.shape[1], x.shape[2]
        Sk = c_kv.shape[1]
        H, D = w_q.shape[1], w_q.shape[2]
        q = torch.einsum("bqm,mhd->bhqd", x, w_q)
        k = torch.einsum("bkc,chd->bhkd", c_kv, w_uk)
        v = torch.einsum("bkc,chd->bhkd", c_kv, w_uv)
        scores = torch.einsum("bhqd,bhkd->bhqk", q, k) * (D ** -0.5)
        off = Sk - Sq
        qi = torch.arange(Sq)[:, None]
        kj = torch.arange(Sk)[None, :]
        cmask = kj <= (qi + off)
        scores = torch.where(cmask[None, None], scores, -1e9)
        p = _softmax(scores, axis=-1)
        ctx = torch.einsum("bhqk,bhkd->bhqd", p, v)
        return torch.einsum("bhqd,hdm->bqm", ctx, w_o)

    def _B_ref(x, w_gate, w_up, w_down):
        g = torch.einsum("bsd,df->bsf", x, w_gate)
        u = torch.einsum("bsd,df->bsf", x, w_up)
        h = _gelu(g) * u
        return torch.einsum("bsf,fd->bsd", h, w_down)

    x = A_x
    xn = _layernorm(x, axis=-1)
    s = _A_ref(xn, A_c_kv, A_w_q, A_w_uk, A_w_uv, A_w_o)
    g = _silu(_B_ref(xn, B_w_gate, B_w_up, B_w_down))
    return x + s * g
```

```python
import re
NAME = "recurrent_scan__compressed_kv_cla__glu_gated_geglu__decode"

_reg = re.compile(r'^(-|abs\()?([vsa])(\d+)\)?$')
_rng = re.compile(r'^(-)?([vsa])\[(\d+):(\d+)\]$')
def regs(tok):
    tok = tok.strip()
    m = _reg.match(tok)
    if m: return {(m.group(2), int(m.group(3)))}
    m = _rng.match(tok)
    if m: return {(m.group(2), i) for i in range(int(m.group(3)), int(m.group(4))+1)}
    if tok in ('vcc','vcc_lo','vcc_hi'): return {('s','vcc')}
    if tok in ('exec','exec_lo','exec_hi'): return {('s','exec')}
    if tok == 'm0': return {('s','m0')}
    return set()

TRANS = ('v_exp_f32','v_log_f32','v_rcp_f32','v_rsq_f32','v_sqrt_f32','v_sin_f32','v_cos_f32')
def mfma_passes(op):
    if '32x32x16' in op or '32x32x8' in op: return 8
    if '16x16x32' in op or '16x16x16' in op: return 4
    raise ValueError(op)

class Ins:
    def __init__(self, text):
        self.text = text
        body = text.split(';')[0].strip()
        sp = body.split(None, 1)
        self.op = sp[0]
        rest = sp[1] if len(sp) > 1 else ''
        toks = [t.strip() for t in re.split(r',(?![^\[]*\])', rest)] if rest else []
        mods = []
        if toks:
            parts = toks[-1].split()
            toks[-1] = parts[0] if parts else ''
            mods = parts[1:]
        self.toks, self.mods = toks, mods
        op = self.op
        self.is_mfma = op.startswith('v_mfma')
        self.is_valu = op.startswith('v_') and not self.is_mfma
        self.is_vmem = op.startswith(('buffer_','global_'))
        self.is_ds = op.startswith('ds_')
        self.is_salu = op.startswith('s_')
        self.is_dpp = any(m.startswith(('row_','quad_perm','wave_','row_bcast')) for m in mods) or op.endswith('_dpp')
        self.is_perml = op.startswith('v_permlane')
        self.is_trans = op.replace('_e32','').replace('_e64','') in TRANS
        W, R = set(), set()
        T = [regs(t) for t in toks]
        if self.is_mfma:
            W |= T[0]; self.A, self.B, self.C = T[1], T[2], T[3]; R |= T[1] | T[2] | T[3]
        elif self.is_valu:
            if op.startswith('v_cmp'):
                W |= T[0]; [R.update(t) for t in T[1:]]
                if op.startswith('v_cmpx'): W.add(('s','exec'))
            elif self.is_perml:
                W |= T[0] | T[1]; R |= T[0] | T[1]
            elif op.startswith(('v_add_co','v_sub_co','v_addc_co','v_subb_co')):
                W |= T[0] | T[1]; [R.update(t) for t in T[2:]]
            else:
                W |= T[0]; [R.update(t) for t in T[1:]]
                if op.startswith(('v_fmac','v_pk_fmac','v_dot2c')) or self.is_dpp or op.startswith('v_writelane'): R |= T[0]
        elif self.is_vmem:
            if 'lds' in mods: [R.update(t) for t in T]; R.add(('s','m0'))
            elif '_load' in op: W |= T[0]; [R.update(t) for t in T[1:]]
            elif op in ('buffer_wbl2','buffer_inv'): pass
            else:
                [R.update(t) for t in T]
            self.store_wide = ('store' in op) and op.endswith(('x3','x4'))
            if self.store_wide:
                self.sdata = T[0] if op.startswith('buffer_') else T[1]
        elif self.is_ds:
            if op.startswith(('ds_read','ds_bpermute','ds_permute','ds_swizzle')): W |= T[0]; [R.update(t) for t in T[1:]]
            else: [R.update(t) for t in T]
        elif self.is_salu:
            if op.startswith(('s_cmp','s_cbranch','s_branch','s_waitcnt','s_nop','s_barrier','s_endpgm','s_sleep','s_setprio','s_bitcmp')):
                [R.update(t) for t in T]
            else:
                if T: W |= T[0]
                [R.update(t) for t in T[1:]]
                if 'saveexec' in op: W.add(('s','exec'))
        self.W, self.R = W, R
    def states(self):
        if self.op == 's_nop': return int(self.toks[0], 0) + 1
        return 1

def need(p, c):
    n = 0
    vW = {r for r in p.W if r[0] in 'va'}
    sW = {r for r in p.W if r[0] == 's'}
    if p.is_mfma:
        ps = mfma_passes(p.op)
        full = {4: 8, 8: 12}[ps]
        if c.is_mfma:
            if vW & (c.A | c.B): n = max(n, full)
            if vW & c.C:
                if c.C == p.W and mfma_passes(c.op) == ps: pass
                else: n = max(n, {4: 6, 8: 10}[ps])
            elif vW & c.W: n = max(n, full)
        elif (c.is_valu or c.is_vmem or c.is_ds) and (vW & (c.R | c.W)): n = max(n, full)
        if c.is_valu and (p.C & c.W): n = max(n, {4: 3, 8: 7}[ps])
    if p.is_valu:
        if c.is_mfma and (vW & c.R): n = max(n, 2)
        if c.is_valu and c.is_dpp and (vW & c.R): n = max(n, 2)
        if c.is_perml and (vW & c.R): n = max(n, 2)
        if c.op.startswith(('v_readfirstlane','v_readlane')) and (vW & c.R): n = max(n, 1)
        if p.is_trans and c.is_valu and not c.is_trans and (vW & c.R): n = max(n, 1)
        if p.is_trans and c.is_mfma and (vW & c.R): n = max(n, 2)
        if sW:
            if c.is_valu and (sW & c.R): n = max(n, 4 if c.op.startswith(('v_readlane','v_writelane')) else 2)
            if c.is_valu and c.op.startswith('v_cndmask') and ('s','vcc') in sW: n = max(n, 2)
            if c.is_vmem and (sW & c.R): n = max(n, 5)
            if c.is_salu and (sW & c.R): n = max(n, 1)
            if c.op.startswith('s_cbranch_vcc') and ('s','vcc') in sW: n = max(n, 1)
            if ('s','exec') in sW and (c.is_dpp or c.is_mfma or c.is_perml or c.op.startswith('v_read')): n = max(n, 5)
        if any(m.startswith(('op_sel','dst_sel')) for m in p.mods) and c.is_valu and (vW & (c.R | c.W)): n = max(n, 1)
    if p.is_salu and ('s','m0') in p.W and c.is_vmem and ('s','m0') in c.R: n = max(n, 1)
    if p.is_vmem and getattr(p, 'store_wide', False) and (p.sdata & c.W): n = max(n, 2)
    return n

class Asm:
    def __init__(self):
        self.o = []; self.hist = []; self.nl = 0; self.nops = 0; self.count = 0
    def raw(self, s): self.o.append(s)
    def __call__(self, s):
        for line in s.strip("\n").split("\n"):
            line = line.strip()
            if not line: continue
            if line.startswith((';', '.', '//')) or line.endswith(':'):
                self.o.append(line); continue
            ins = Ins(line)
            req = 0; dist = 0
            for p in reversed(self.hist):
                req = max(req, need(p, ins) - dist)
                dist += p.states()
                if dist >= 20: break
            while req > 0:
                k = min(req, 16)
                nop = Ins(f"s_nop {k-1}")
                self.o.append("    " + nop.text); self.hist.append(nop); self.nops += 1
                req -= k
            self.o.append("    " + line); self.hist.append(ins); self.count += 1
            if ins.op in ('s_branch', 's_endpgm'): self.hist = []
            if len(self.hist) > 40: self.hist = self.hist[-40:]
    def label(self, base="L"):
        self.nl += 1; return f"{base}_{self.nl}"
    def text(self): return "\n".join(self.o) + "\n"
```

```python
import sys, math
from asmx import Asm, NAME

OPT = dict(stamps=0, local=0)
for a in sys.argv[1:]:
    k, v = a.split("="); OPT[k] = int(v)

WS_EPOCH = 0
WS_H1  = 0x040000
WS_H2  = 0x080000
WS_XT  = 0x0C0000
WS_FLG = 0x100000
WS_H3B = 0x140000
WS_H5T = 0x200000
WS_H5F = 0x280000
WS_FF  = 0x340000
WS_H3A = 0x400000
WS_ST  = 0x800000
POLL_MAX = 60000

P_X, P_CKV, P_WQ, P_WUK, P_WUV, P_WO, P_BX, P_WG, P_WU, P_WD, P_OUT, P_DBG, P_WS = [16+2*i for i in range(13)]
sE, sT, sW, sX, sK, sH = 42, 43, 44, 45, 46, 47
WS = "s[48:51]"; RA = "s[52:55]"; RB = "s[56:59]"; RC = "s[60:63]"
sQD, sA_ = 64, 65
A = Asm()

def srd(base, ptr, size):
    A(f"s_mov_b32 s{base}, s{ptr}\ns_mov_b32 s{base+1}, s{ptr+1}\ns_mov_b32 s{base+2}, {size}\ns_mov_b32 s{base+3}, 0x20000")
def ST(i):
    if OPT['stamps']: A(f"s_memrealtime s[{80+2*i}:{81+2*i}]")
def vr(a, n): return f"v[{a}:{a+n-1}]"
def dma(voff, rsrc, soff, flags="nt"):
    A(f"buffer_load_dwordx4 v{voff}, {rsrc}, s{soff} offen {flags} lds")
def finish():
    A("s_branch L_end")
def get_tag(vE):
    A(f"v_readfirstlane_b32 s{sE}, v{vE}")
    A(f"s_add_u32 s{sE}, s{sE}, 1\ns_mul_i32 s{sT}, s{sE}, 0x9E3779B1\ns_xor_b32 s{sT}, s{sT}, 0x5BD1E995")
def rb16(dst, src, tmp=None):
    A(f"v_cvt_pk_bf16_f32 v{dst}, v{src}, v{src}\nv_lshlrev_b32 v{dst}, 16, v{dst}")
DPPF = "row_mask:0xf bank_mask:0xf"
def wave_sum_to_sgpr(v, s):
    for r in (8, 4, 2, 1): A(f"v_add_f32_dpp v{v}, v{v}, v{v} row_ror:{r} {DPPF}")
    A(f"v_add_f32_dpp v{v}, v{v}, v{v} row_bcast:15 row_mask:0xa bank_mask:0xf")
    A(f"v_add_f32_dpp v{v}, v{v}, v{v} row_bcast:31 row_mask:0xc bank_mask:0xf")
    A(f"v_readlane_b32 s{s}, v{v}, 63")
def fbits(x):
    import struct; return "0x%08x" % struct.unpack("<I", struct.pack("<f", x))[0]
LOG2E = 1.4426950408889634

A.raw("; @launch grid=(256,1,1) block=(512,1,1) lds=163840")
A.raw('.amdgcn_target "amdgcn-amd-amdhsa--gfx950"')
A.raw(f".text\n.globl {NAME}_kernel\n.p2align 8\n.type {NAME}_kernel,@function\n{NAME}_kernel:")
vL = 1
A(f"""
s_cmp_ge_u32 s2, 256
s_cbranch_scc1 L_exit
s_load_dwordx16 s[16:31], s[0:1], 0
s_load_dwordx8 s[32:39], s[0:1], 64
s_load_dwordx2 s[40:41], s[0:1], 96
""")
if OPT['stamps']:
    for i in range(80, 102): A(f"s_mov_b32 s{i}, 0")
ST(0)
A(f"""
v_and_b32 v{vL}, 63, v0
v_lshrrev_b32 v2, 6, v0
v_readfirstlane_b32 s{sW}, v2
s_and_b32 s{sX}, s2, 7
s_lshr_b32 s{sK}, s2, 3
v_lshrrev_b32 v2, 3, v{vL}
v_and_b32 v3, 7, v{vL}
v_lshrrev_b32 v4, 4, v{vL}
v_bfe_u32 v5, v{vL}, 2, 2
v_and_b32 v6, 3, v{vL}
s_waitcnt lgkmcnt(0)
""")
srd(48, P_WS, 0x10000000)
A(f"s_cmp_lt_u32 s{sK}, 16\ns_cbranch_scc1 L_att")

XN, XNS = 0, 1216
QP, QPS = 5120, 272
HB, HBS = 9728, 192
BIG = 16384
A(f"""
s_sub_u32 s66, s{sK}, 16
s_lshr_b32 s{sA_}, s66, 2
s_and_b32 s{sQD}, s66, 3
s_lshl_b32 s{sH}, s{sX}, 2
s_add_u32 s{sH}, s{sH}, s{sA_}
""")
srd(52, P_X, 4608)
srd(56, P_WQ, 576*8192)
srd(60, P_WUK, 512*8192)
vE = 7
A(f"""
v_mov_b32 v8, 0
s_cmp_ge_u32 s{sW}, 4
s_cbranch_scc1 L_nq_nox
s_mul_i32 s66, s{sW}, 1152
v_lshlrev_b32 v9, 3, v{vL}
v_lshlrev_b32 v10, 1, v{vL}
buffer_load_dwordx2 v[20:21], v9, {RA}, s66 offen
buffer_load_dwordx2 v[22:23], v9, {RA}, s66 offen offset:512
buffer_load_ushort v24, v10, {RA}, s66 offen offset:1024
L_nq_nox:
buffer_load_dword v{vE}, v8, {WS}, 0 offen sc1
""")
A(f"""
s_and_b32 s67, s{sW}, 1
s_lshl_b32 s68, s67, 2
v_and_b32 v11, 2, v2
v_or_b32 v11, s68, v11
v_xor_b32 v11, v11, v3
v_lshlrev_b32 v11, 4, v11
v_lshl_add_u32 v12, v2, 13, v11
""")
A(f"""
s_bfe_u32 s69, s{sW}, 0x10001
s_lshr_b32 s70, s{sW}, 2
s_mul_i32 s71, s70, 10
s_add_u32 s71, s71, s67
s_mul_i32 s72, s{sQD}, 18
s_add_u32 s72, s72, s71
s_lshl_b32 s72, s72, 16
s_lshl_b32 s73, s{sH}, 8
s_lshl_b32 s74, s69, 7
s_add_u32 s73, s73, s74
s_add_u32 s72, s72, s73
s_lshl_b32 s71, s71, 1
s_add_u32 s71, s71, s69
s_lshl_b32 s71, s71, 10
s_add_u32 s71, s71, {BIG}
""")
for i in range(5):
    if i == 4: A(f"s_cmp_lg_u32 s70, 0\ns_cbranch_scc1 L_nq_dma4")
    A(f"s_mov_b32 m0, s71")
    if i < 4: A(f"s_add_u32 s71, s71, 4096")
    dma(12, RB, 72)
    if i < 4: A(f"s_add_u32 s72, s72, {2*65536}")
A("L_nq_dma4:")
vUK = 32
A(f"""
v_and_b32 v13, 15, v{vL}
v_lshlrev_b32 v14, 13, v13
v_lshl_add_u32 v14, v4, 4, v14
s_lshl_b32 s74, s{sQD}, 3
s_add_u32 s74, s74, s{sW}
s_lshl_b32 s74, s74, 17
s_lshl_b32 s75, s{sH}, 8
s_add_u32 s74, s74, s75
""")
for kp in range(4):
    A(f"buffer_load_dwordx4 {vr(vUK+4*kp,4)}, v14, {RC}, s74 offen offset:{64*kp} nt")
A(f"""
v_mov_b32 v16, -1
v_mov_b32 v17, -1
v_mov_b32 v18, -1
v_mov_b32 v19, -1
v_lshlrev_b32 v15, 4, v{vL}
s_cmp_lg_u32 s{sQD}, 0
s_cbranch_scc1 L_nq_noclrT
s_lshl_b32 s74, s{sH}, 14
s_lshl_b32 s75, s{sW}, 11
s_add_u32 s74, s74, s75
s_add_u32 s74, s74, {WS_H3B}
buffer_store_dwordx4 v[16:19], v15, {WS}, s74 offen sc1
s_mov_b64 exec, 0xff
buffer_store_dwordx4 v[16:19], v15, {WS}, s74 offen offset:1024 sc1
s_mov_b64 exec, -1
s_branch L_nq_clrdone
L_nq_noclrT:
s_cmp_lg_u32 s{sA_}, 3
s_cbranch_scc1 L_nq_clrdone
s_mul_i32 s74, s{sX}, 3
s_add_u32 s74, s74, s{sQD}
s_sub_u32 s74, s74, 1
s_cmp_ge_u32 s74, 18
s_cbranch_scc1 L_nq_clrdone
s_lshl_b32 s74, s74, 14
s_lshl_b32 s75, s{sW}, 11
s_add_u32 s74, s74, s75
s_add_u32 s74, s74, {WS_H5T}
buffer_store_dwordx4 v[16:19], v15, {WS}, s74 offen sc1
buffer_store_dwordx4 v[16:19], v15, {WS}, s74 offen offset:1024 sc1
L_nq_clrdone:
""")
A(f"""
s_cmp_ge_u32 s{sW}, 4
s_cbranch_scc1 L_nq_noln
s_waitcnt vmcnt(10)
""")
e = list(range(48, 57))
A(f"""
v_lshlrev_b32 v{e[0]}, 16, v20
v_and_b32 v{e[1]}, 0xffff0000, v20
v_lshlrev_b32 v{e[2]}, 16, v21
v_and_b32 v{e[3]}, 0xffff0000, v21
v_lshlrev_b32 v{e[4]}, 16, v22
v_and_b32 v{e[5]}, 0xffff0000, v22
v_lshlrev_b32 v{e[6]}, 16, v23
v_and_b32 v{e[7]}, 0xffff0000, v23
v_lshlrev_b32 v{e[8]}, 16, v24
v_add_f32 v25, v{e[0]}, v{e[1]}
v_add_f32 v26, v{e[2]}, v{e[3]}
v_add_f32 v27, v{e[4]}, v{e[5]}
v_add_f32 v28, v{e[6]}, v{e[7]}
v_add_f32 v25, v25, v26
v_add_f32 v27, v27, v28
v_add_f32 v25, v25, v{e[8]}
v_add_f32 v25, v25, v27
""")
wave_sum_to_sgpr(25, 74)
A(f"v_mov_b32 v26, {fbits(1.0/576)}\nv_mul_f32 v26, s74, v26")
A(f"v_sub_f32 v27, v{e[0]}, v26\nv_mul_f32 v25, v27, v27")
for i in range(1, 9):
    A(f"v_sub_f32 v27, v{e[i]}, v26\nv_fmac_f32 v25, v27, v27")
rb16(26, 26)
for i in range(9): A(f"v_sub_f32 v{e[i]}, v{e[i]}, v26")
wave_sum_to_sgpr(25, 74)
A(f"v_mov_b32 v27, {fbits(1.0/576)}\nv_mul_f32 v27, s74, v27")
rb16(27, 27)
A(f"v_add_f32 v27, {fbits(1e-5)}, v27")
rb16(27, 27)
A("v_sqrt_f32 v27, v27")
rb16(27, 27)
A("v_rcp_f32 v27, v27")
for i in range(0, 8, 2): A(f"v_cvt_pk_bf16_f32 v{20+i//2}, v{e[i]}, v{e[i+1]}")
A(f"v_cvt_pk_bf16_f32 v24, v{e[8]}, v{e[8]}")
for i in range(0, 8, 2):
    A(f"v_lshlrev_b32 v{e[i]}, 16, v{20+i//2}\nv_and_b32 v{e[i+1]}, 0xffff0000, v{20+i//2}")
A(f"v_lshlrev_b32 v{e[8]}, 16, v24")
for i in range(9): A(f"v_mul_f32 v{e[i]}, v{e[i]}, v27")
for i in range(0, 8, 2): A(f"v_cvt_pk_bf16_f32 v{20+i//2}, v{e[i]}, v{e[i+1]}")
A(f"v_cvt_pk_bf16_f32 v24, v{e[8]}, v{e[8]}")
A(f"""
s_mul_i32 s74, s{sW}, {XNS}
v_add_u32 v9, s74, v9
v_add_u32 v10, s74, v10
ds_write_b64 v9, v[20:21] offset:{XN}
ds_write_b64 v9, v[22:23] offset:{XN+512}
ds_write_b16 v10, v24 offset:{XN+1024}
L_nq_noln:
""")
vTR = 13
A(f"""
s_and_b32 s74, s{sW}, 3
s_lshl_b32 s74, s74, 1
v_lshrrev_b32 v{vTR}, 1, v6
v_or_b32 v{vTR}, s74, v{vTR}
v_and_b32 v14, 2, v5
v_xor_b32 v{vTR}, v{vTR}, v14
v_and_b32 v14, 1, v4
v_lshlrev_b32 v15, 2, v14
v_xor_b32 v{vTR}, v{vTR}, v15
v_lshlrev_b32 v{vTR}, 4, v{vTR}
v_lshl_add_u32 v{vTR}, v5, 7, v{vTR}
v_and_b32 v15, 1, v6
v_lshl_add_u32 v{vTR}, v15, 3, v{vTR}
s_lshr_b32 s74, s{sW}, 2
s_lshl_b32 s74, s74, 10
s_add_u32 s74, s74, {BIG}
v_add_u32 v15, s74, v{vTR}
v_lshl_add_u32 v16, v4, 11, v15
v_lshl_add_u32 v17, v14, 11, v15
""")
A(f"""
v_mul_u32_u24 v18, {XNS}, v6
v_lshl_add_u32 v18, v4, 4, v18
s_mul_i32 s74, s{sQD}, 288
v_add_u32 v19, s74, v18
""")
A("s_waitcnt vmcnt(4) lgkmcnt(0)")
ST(1)
A("s_barrier")
vA, vB, vD = 64, 96, 28
for kp in range(5):
    a = 16 if kp < 4 else 17
    A(f"ds_read_b64_tr_b16 {vr(vA+4*kp,2)}, v{a} offset:{kp*8192}")
    A(f"ds_read_b64_tr_b16 {vr(vA+4*kp+2,2)}, v{a} offset:{kp*8192+512}")
    A(f"ds_read_b128 {vr(vB+4*kp,4)}, v19 offset:{XN+kp*64}")
get_tag(vE)
A(f"v_cmp_gt_u32 vcc, 2, v4")
for kp in range(5):
    A(f"s_waitcnt lgkmcnt({3*(4-kp)})")
    if kp == 4:
        for j in range(4): A(f"v_cndmask_b32 v{vB+16+j}, 0, v{vB+16+j}, vcc")
    c = "0" if kp == 0 else vr(vD,4)
    A(f"v_mfma_f32_16x16x32_bf16 {vr(vD,4)}, {vr(vA+4*kp,4)}, {vr(vB+4*kp,4)}, {c}")
A(f"""
s_lshl_b32 s74, s{sH}, 13
s_lshl_b32 s75, s{sQD}, 11
s_add_u32 s75, s75, s74
s_lshl_b32 s76, s{sW}, 6
s_add_u32 s75, s75, s76
s_add_u32 s75, s75, {WS_H1}
s_add_u32 s74, s74, {WS_H1}
v_lshlrev_b32 v20, 9, v6
v_lshl_add_u32 v20, v4, 4, v20
v_mov_b32 v25, s{sT}
v_mov_b32 v27, s{sT}
v_cvt_pk_bf16_f32 v24, v{vD}, v{vD+1}
v_cvt_pk_bf16_f32 v26, v{vD+2}, v{vD+3}
s_mov_b32 s78, 0x000f000f
s_mov_b32 s79, 0x000f000f
s_mov_b64 exec, s[78:79]
buffer_store_dwordx4 v[24:27], v20, {WS}, s75 offen sc1
s_mov_b64 exec, -1
""")
ST(2)
A(f"""
v_lshlrev_b32 v21, 4, v0
v_lshrrev_b32 v22, 5, v0
v_mul_u32_u24 v22, {QPS}, v22
v_and_b32 v23, 31, v0
v_lshl_add_u32 v22, v23, 3, v22
s_mov_b32 s77, 0
L_h1poll:
buffer_load_dwordx4 v[48:51], v21, {WS}, s74 offen sc1
s_add_u32 s77, s77, 1
s_waitcnt vmcnt(0)
v_xor_b32 v49, s{sT}, v49
v_xor_b32 v51, s{sT}, v51
v_or_b32 v49, v49, v51
v_cmp_ne_u32 vcc, 0, v49
s_cmp_ge_u32 s77, {POLL_MAX}
s_cbranch_scc1 L_h1done
s_cbranch_vccnz L_h1poll
L_h1done:
v_mov_b32 v49, v50
ds_write_b64 v22, v[48:49] offset:{QP}
v_and_b32 v23, 15, v{vL}
v_mul_u32_u24 v23, {QPS}, v23
v_lshl_add_u32 v23, v4, 4, v23
s_waitcnt lgkmcnt(0)
""")
ST(3)
A("s_barrier")
for kp in range(4): A(f"ds_read_b128 {vr(vB+4*kp,4)}, v23 offset:{QP+kp*64}")
for kp in range(4):
    A(f"s_waitcnt lgkmcnt({3-kp})")
    c = "0" if kp == 0 else vr(vD,4)
    A(f"v_mfma_f32_16x16x32_bf16 {vr(vD,4)}, {vr(vUK+4*kp,4)}, {vr(vB+4*kp,4)}, {c}")
A(f"""
s_lshl_b32 s74, s{sH}, 11
s_lshl_b32 s75, s{sQD}, 9
s_add_u32 s75, s75, s74
s_add_u32 s75, s75, s76
s_add_u32 s75, s75, {WS_H2}
v_lshlrev_b32 v20, 16, v6
v_lshl_add_u32 v20, v4, 4, v20
s_mov_b32 s74, {fbits(LOG2E/math.sqrt(128.0))}
""")
for r in (4, 8):
    for j in range(4): A(f"v_add_f32_dpp v{vD+j}, v{vD+j}, v{vD+j} row_ror:{r} {DPPF}")
for j in range(4): A(f"v_mul_f32 v{vD+j}, s74, v{vD+j}")
A(f"""
v_cvt_pk_bf16_f32 v24, v{vD}, v{vD+1}
v_cvt_pk_bf16_f32 v26, v{vD+2}, v{vD+3}
s_mov_b64 exec, s[78:79]
buffer_store_dwordx4 v[24:27], v20, {WS}, s75 offen sc1
s_mov_b64 exec, -1
""")
ST(4)
A(f"""
s_cmp_eq_u32 s{sQD}, 0
s_cbranch_scc1 L_T
s_cmp_lt_u32 s{sA_}, 3
s_cbranch_scc1 L_F
s_branch L_FIN
""")

def wide_voffset(v):
    A(f"v_mul_u32_u24 v{v}, 1152, v2\nv_add_u32 v{v}, v{v}, v11")
def publish_tiles(vacc, sbase_fin_stride, sent):
    A(f"""
    s_lshr_b32 s74, s{sW}, 1
    s_mul_i32 s74, s74, {sbase_fin_stride}
    s_and_b32 s75, s{sW}, 1
    s_lshl_b32 s75, s75, 8
    s_add_u32 s72, s72, s74
    s_add_u32 s72, s72, s75
    v_lshlrev_b32 v20, 6, v4
    v_lshl_add_u32 v20, v6, 4, v20
    """)
def store_tile(vacc, i, stride, sent):
    if sent:
        for j in range(4): A(f"v_min_u32 v{vacc+4*i+j}, -2, v{vacc+4*i+j}")
    A(f"s_mov_b64 exec, s[78:79]")
    A(f"buffer_store_dwordx4 {vr(vacc+4*i,4)}, v20, {WS}, s72 offen sc1")
    A(f"s_mov_b64 exec, -1")
    A(f"s_add_u32 s72, s72, {4*stride}")

A("L_T:")
srd(52, P_WUV, 512*8192)
srd(56, P_WO, 4096*1152)
A(f"""
s_lshl_b32 s71, s70, 1
s_add_u32 s71, s71, s67
s_lshl_b32 s71, s71, 1
s_add_u32 s71, s71, s69
s_lshl_b32 s71, s71, 10
s_add_u32 s71, s71, {BIG}
s_lshl_b32 s72, s70, 2
s_add_u32 s72, s72, s67
s_lshl_b32 s72, s72, 16
s_add_u32 s72, s72, s73
""")
for i in range(16):
    cb = 2*((i>>1)&1) + 8*(i&1) + 16*(i>>2)
    A(f"s_mov_b32 m0, s71\ns_add_u32 s74, s72, {cb*65536}")
    dma(12, RA, 74)
    A(f"s_add_u32 s71, s71, 8192")
wide_voffset(14)
A(f"""
s_lshr_b32 s68, s{sW}, 1
s_mul_i32 s66, s{sH}, {128*1152}
s_lshl_b32 s71, s68, 2
s_add_u32 s71, s71, s67
s_mul_i32 s72, s71, {8*1152}
s_add_u32 s72, s72, s66
s_add_u32 s72, s72, 1024
s_lshl_b32 s71, s71, 10
s_add_u32 s71, s71, {BIG+131072}
s_mov_b32 m0, s71
s_add_u32 s71, s71, 2048
""")
dma(14, RB, 72)
A(f"s_add_u32 s72, s72, {16*1152}\ns_mov_b32 m0, s71")
dma(14, RB, 72)
vUV = 32
vWO = 96
A(f"v_add_u32 v17, 0x10000, v16")
A("s_waitcnt vmcnt(2)\ns_barrier")
for kp in range(16):
    a = 16 if kp < 8 else 17
    A(f"ds_read_b64_tr_b16 {vr(vUV+4*kp,2)}, v{a} offset:{(kp&7)*8192}")
    A(f"ds_read_b64_tr_b16 {vr(vUV+4*kp+2,2)}, v{a} offset:{(kp&7)*8192+512}")
    if kp % 6 == 5: A("s_waitcnt lgkmcnt(4)")
A("s_waitcnt lgkmcnt(0)\ns_barrier")
A(f"""
s_lshl_b32 s71, s67, 3
s_add_u32 s71, s71, s68
s_lshl_b32 s71, s71, 10
s_add_u32 s71, s71, {BIG}
s_mul_i32 s72, s67, {8*1152}
s_lshl_b32 s74, s68, 7
s_add_u32 s72, s72, s74
s_add_u32 s72, s72, s66
""")
def wide_dma(n, rsrc):
    for i in range(n):
        A(f"s_mov_b32 m0, s71\ns_add_u32 s74, s72, 512")
        dma(14, rsrc, 72)
        A(f"s_add_u32 s75, s71, 4096\ns_mov_b32 m0, s75\ns_add_u32 s72, s72, {16*1152}")
        dma(14, rsrc, 74)
        A(f"s_add_u32 s71, s71, 16384")
wide_dma(8, RB)
def wide_frag_addrs(base8):
    A(f"""
    v_lshl_add_u32 v16, v4, 13, v15
    v_add_u32 v17, 0x10000, v16
    v_lshl_add_u32 v18, v4, 10, v{vTR}
    v_add_u32 v18, {base8}, v18
    """)
def wide_frag_reads(vdst, nk):
    n = 0
    for i in range(4):
        for kp in range(nk):
            a = 16 if kp < 2 else 17
            off = (kp & 1)*32768 + i*2048
            d = vdst + (i*nk + kp)*4
            A(f"ds_read_b64_tr_b16 {vr(d,2)}, v{a} offset:{off}")
            A(f"ds_read_b64_tr_b16 {vr(d+2,2)}, v{a} offset:{off+512}")
            n += 2
            if n % 12 == 0: A("s_waitcnt lgkmcnt(4)")
    A("s_waitcnt lgkmcnt(4)")
    for kp in range(nk):
        d = vdst + (4*nk + kp)*4
        A(f"ds_read_b64_tr_b16 {vr(d,2)}, v18 offset:{kp*4096}")
        A(f"ds_read_b64_tr_b16 {vr(d+2,2)}, v18 offset:{kp*4096+512}")
wide_frag_addrs(BIG+131072)
A("s_waitcnt vmcnt(0)\ns_barrier")
wide_frag_reads(vWO, 4)
ST(5)
XL, CT, CTS = 0, 8192, 320
A(f"""
v_lshlrev_b32 v21, 11, v3
v_and_b32 v22, 1, v2
v_lshl_add_u32 v22, v22, 6, v21
v_lshl_add_u32 v22, v4, 4, v22
s_lshl_b32 s74, s{sH}, 14
s_add_u32 s74, s74, {WS_H3B}
s_lshl_b32 s75, s{sW}, 7
s_add_u32 s75, s75, s74
v_lshlrev_b32 v23, 4, v0
s_lshl_b32 s72, s{sH}, 9
s_add_u32 s72, s72, {WS_H5T}
s_mov_b32 s66, s74
s_mov_b32 s68, s75
""")
publish_tiles(0, 32*512, True)
A(f"""
s_mov_b32 s77, 0
L_tpoll:
buffer_load_dwordx4 v[24:27], v22, {WS}, s68 offen sc1
buffer_load_dwordx2 v[28:29], v21, {WS}, s66 offen offset:1024 sc1
s_add_u32 s77, s77, 1
s_waitcnt vmcnt(0)
v_max3_u32 v30, v24, v25, v26
v_max3_u32 v30, v30, v27, v28
v_max_u32 v30, v30, v29
v_cmp_eq_u32 vcc, -1, v30
s_cmp_ge_u32 s77, {POLL_MAX}
s_cbranch_scc1 L_tdone
s_cbranch_vccnz L_tpoll
L_tdone:
ds_write_b128 v23, v[24:27] offset:{XL}
v_lshlrev_b32 v23, 4, v{vL}
""")
QP1 = "quad_perm:[1,0,3,2] " + DPPF
A(f"""
v_max_f32_dpp v30, v28, v28 {QP1}
v_sub_f32 v30, v28, v30
v_exp_f32 v30, v30
v_mul_f32 v31, v30, v29
v_add_f32_dpp v31, v31, v31 {QP1}
v_rcp_f32 v31, v31
v_mul_f32 v30, v30, v31
s_waitcnt lgkmcnt(0)
""")
ST(6)
A("s_barrier")
vX = 176
for i in range(8): A(f"ds_read_b128 {vr(vX+4*i,4)}, v23 offset:{XL+i*1024}")
a0, a1 = 24, 208
for i in range(8):
    A(f"s_waitcnt lgkmcnt({7-i})")
    A(f"v_mfma_f32_16x16x32_bf16 {vr(a0,4)}, {vr(vUV+8*i,4)}, {vr(vX+4*i,4)}, {'0' if i==0 else vr(a0,4)}")
    A(f"v_mfma_f32_16x16x32_bf16 {vr(a1,4)}, {vr(vUV+8*i+4,4)}, {vr(vX+4*i,4)}, {'0' if i==0 else vr(a1,4)}")
A(f"""
v_lshrrev_b32 v21, 1, v3
v_mul_u32_u24 v21, {CTS}, v21
v_lshl_add_u32 v21, v4, 3, v21
s_lshl_b32 s74, s{sW}, 5
v_add_u32 v21, s74, v21
v_mul_u32_u24 v22, {CTS}, v6
v_lshl_add_u32 v22, v4, 4, v22
""")
for j in range(4): A(f"v_add_f32_dpp v{a0+j}, v{a1+j}, v{a0+j} row_ror:8 {DPPF}")
for j in range(4): A(f"v_mul_f32 v{a0+j}, v{a0+j}, v30")
for j in range(4): A(f"v_add_f32_dpp v{a0+j}, v{a0+j}, v{a0+j} {QP1}")
A(f"""
v_cvt_pk_bf16_f32 v28, v{a0}, v{a0+1}
v_cvt_pk_bf16_f32 v29, v{a0+2}, v{a0+3}
s_mov_b32 s74, 0x00550055
s_mov_b32 s75, 0x00550055
s_mov_b64 exec, s[74:75]
ds_write_b64 v21, v[28:29] offset:{CT}
s_mov_b64 exec, -1
s_waitcnt lgkmcnt(0)
s_barrier
""")
def wide_gemm(vW, nk, vBf, vacc, stride, sent, lab):
    for i in range(5):
        if i == 4: A(f"s_cmp_ge_u32 s{sW}, 4\ns_cbranch_scc1 {lab}_a")
        for kp in range(nk):
            if i == 0: A(f"s_waitcnt lgkmcnt({nk-1-kp})")
            A(f"v_mfma_f32_16x16x32_bf16 {vr(vacc+4*i,4)}, {vr(vW+(i*nk+kp)*4,4)}, {vr(vBf+4*kp,4)}, {'0' if kp==0 else vr(vacc+4*i,4)}")
        if 1 <= i <= 3: store_tile(vacc, i-1, stride, sent)
    A(f"{lab}_a:")
    A("s_nop 7")
    store_tile(vacc, 3, stride, sent)
    A(f"s_cmp_ge_u32 s{sW}, 4\ns_cbranch_scc1 {lab}_b")
    store_tile(vacc, 4, stride, sent)
    A(f"{lab}_b:")
for kp in range(4): A(f"ds_read_b128 {vr(vX+4*kp,4)}, v22 offset:{CT+kp*64}")
wide_gemm(vWO, 4, vX, 212, 32*512, True, "L_tg")
ST(7)
finish()

A("L_F:")
sU = 66
A(f"""
s_mul_i32 s{sU}, s{sX}, 9
s_mul_i32 s68, s{sA_}, 3
s_add_u32 s{sU}, s{sU}, s68
s_add_u32 s{sU}, s{sU}, s{sQD}
s_sub_u32 s{sU}, s{sU}, 1
s_cmp_eq_u32 s69, 0
s_cselect_b32 s52, s{P_WG}, s{P_WU}
s_cselect_b32 s53, s{P_WG+1}, s{P_WU+1}
s_mov_b32 s54, {576*9216}
s_mov_b32 s55, 0x20000
""")
srd(56, P_WD, 4608*1152)
A(f"""
s_lshl_b32 s68, s67, 1
s_lshl_b32 s71, s69, 2
s_or_b32 s68, s68, s71
v_bfe_u32 v14, v2, 1, 1
v_or_b32 v14, s68, v14
v_xor_b32 v14, v14, v3
v_lshlrev_b32 v14, 4, v14
v_mul_u32_u24 v12, 9216, v2
v_add_u32 v12, v12, v14
s_lshl_b32 s71, s70, 1
s_add_u32 s71, s71, s67
s_mul_i32 s72, s71, {8*9216}
s_lshl_b32 s74, s{sU}, 7
s_add_u32 s72, s72, s74
s_lshl_b32 s71, s71, 1
s_add_u32 s71, s71, s69
s_lshl_b32 s71, s71, 10
s_add_u32 s71, s71, {BIG}
""")
for i in range(18):
    A(f"s_mov_b32 m0, s71\ns_add_u32 s71, s71, 8192")
    dma(12, RA, 72)
    A(f"s_add_u32 s72, s72, {32*9216}")
vXN = 32
for kp in range(18):
    A(f"ds_read_b128 {vr(vXN+4*kp,4)}, v18 offset:{XN+kp*64}")
    if kp == 11: A("s_waitcnt lgkmcnt(4)")
A(f"""
v_lshrrev_b32 v19, 1, v6
v_lshrrev_b32 v21, 1, v5
v_and_b32 v22, 1, v4
v_lshl_or_b32 v21, v22, 1, v21
v_lshl_or_b32 v21, v19, 2, v21
v_xor_b32 v21, s{sW}, v21
v_lshlrev_b32 v21, 4, v21
v_lshl_add_u32 v21, v5, 7, v21
v_and_b32 v22, 1, v6
v_lshl_add_u32 v21, v22, 3, v21
v_lshl_add_u32 v21, v19, 10, v21
v_lshl_add_u32 v21, v4, 11, v21
v_add_u32 v21, {BIG}, v21
v_add_u32 v22, {8*8192}, v21
""")
wide_voffset(14)
vG = 104
def gu_half(h):
    for kp in range(9):
        a, off = (21, kp*8192) if kp < 8 else (22, 0)
        A(f"ds_read_b64_tr_b16 {vr(vG+4*kp,2)}, v{a} offset:{off}")
        A(f"ds_read_b64_tr_b16 {vr(vG+4*kp+2,2)}, v{a} offset:{off+512}")
        if kp == 5: A("s_waitcnt lgkmcnt(6)")
    for kp in range(9):
        A(f"s_waitcnt lgkmcnt({min(15,2*(8-kp))})")
        c = "0" if (h == 0 and kp == 0) else vr(vD,4)
        A(f"v_mfma_f32_16x16x32_bf16 {vr(vD,4)}, {vr(vG+4*kp,4)}, {vr(vXN+4*(9*h+kp),4)}, {c}")
A("s_waitcnt vmcnt(9) lgkmcnt(0)\ns_barrier")
gu_half(0)
A("s_barrier")
A(f"""
s_lshr_b32 s68, s{sW}, 1
s_mul_i32 s73, s{sU}, {64*1152}
s_lshl_b32 s71, s67, 3
s_add_u32 s71, s71, s68
s_lshl_b32 s71, s71, 10
s_add_u32 s71, s71, {BIG}
s_mul_i32 s72, s67, {8*1152}
s_lshl_b32 s74, s68, 7
s_add_u32 s72, s72, s74
s_add_u32 s72, s72, s73
""")
wide_dma(4, RB)
A(f"""
s_mul_i32 s72, s{sW}, {8*1152}
s_add_u32 s72, s72, s73
s_add_u32 s72, s72, 1024
s_lshl_b32 s71, s{sW}, 10
s_add_u32 s71, s71, {BIG+65536}
s_mov_b32 m0, s71
""")
dma(14, RB, 72)
A(f"v_add_u32 v21, {9*8192}, v21\nv_add_u32 v22, {9*8192}, v22")
A("s_waitcnt vmcnt(9)\ns_barrier")
gu_half(1)
wide_frag_addrs(BIG+65536)
A(f"""
s_lshl_b32 s72, s{sU}, 9
s_add_u32 s72, s72, {WS_H5F}
""")
publish_tiles(0, 72*512, False)
for j in range(4): A(f"v_mov_b32 v{24+j}, v{vD+j}")
for j in range(4): A(f"v_permlane32_swap_b32 v{vD+j}, v{24+j}")
C1 = -2.0*math.sqrt(2.0/math.pi)*LOG2E
A(f"s_mov_b32 s74, {fbits(0.044715)}\ns_mov_b32 s75, {fbits(C1)}")
for j in range(4):
    g, u, t = vD+j, 24+j, 104+j
    rb16(g, g); rb16(u, u)
    A(f"v_mul_f32 v{t}, v{g}, v{g}\nv_fma_f32 v{t}, v{t}, s74, 1.0\nv_mul_f32 v{t}, v{t}, v{g}\nv_mul_f32 v{t}, s75, v{t}")
    A(f"v_exp_f32 v{t}, v{t}\nv_add_f32 v{t}, 1.0, v{t}\nv_rcp_f32 v{t}, v{t}\nv_mul_f32 v{g}, v{g}, v{t}")
    rb16(g, g)
    A(f"v_mul_f32 v{g}, v{g}, v{u}")
A(f"""
v_cvt_pk_bf16_f32 v24, v{vD}, v{vD+1}
v_cvt_pk_bf16_f32 v25, v{vD+2}, v{vD+3}
v_mul_u32_u24 v22, {HBS}, v6
v_lshl_add_u32 v21, v4, 3, v22
s_lshl_b32 s74, s{sW}, 4
v_add_u32 v21, s74, v21
v_lshl_add_u32 v22, v4, 4, v22
s_mov_b64 exec, 0x000f000f
ds_write_b64 v21, v[24:25] offset:{HB}
s_mov_b64 exec, -1
s_waitcnt vmcnt(0) lgkmcnt(0)
""")
ST(5)
A("s_barrier")
wide_frag_reads(32, 2)
for kp in range(2): A(f"ds_read_b128 {vr(104+4*kp,4)}, v22 offset:{HB+kp*64}")
wide_gemm(32, 2, 104, 212, 72*512, False, "L_fg")
A(f"""
s_waitcnt vmcnt(0)
s_barrier
s_cmp_lg_u32 s{sW}, 0
s_cbranch_scc1 L_end
s_lshl_b32 s74, s{sU}, 7
s_add_u32 s74, s74, {WS_FF}
v_mov_b32 v24, s{sT}
v_lshlrev_b32 v21, 2, v{vL}
s_mov_b32 exec_hi, 0
buffer_store_dword v24, v21, {WS}, s74 offen sc1
s_mov_b64 exec, -1
""")
ST(7)
finish()

A("L_FIN:")
sF = 66
RED = 16384
A(f"""
s_mul_i32 s{sF}, s{sX}, 3
s_add_u32 s{sF}, s{sF}, s{sQD}
s_sub_u32 s{sF}, s{sF}, 1
s_cmp_ge_u32 s{sF}, 18
s_cbranch_scc1 L_end
""")
srd(56, P_OUT, 4608)
A(f"""
v_mul_u32_u24 v12, 1152, v6
v_bfe_u32 v14, v{vL}, 2, 3
v_lshl_add_u32 v12, v14, 3, v12
s_lshl_b32 s68, s{sF}, 6
buffer_load_dwordx2 v[60:61], v12, {RA}, s68 offen
v_lshlrev_b32 v21, 7, v{vL}
v_min_u32 v22, {7*128}, v21
s_mov_b32 s77, 0
s_mov_b32 s74, {WS_FF}
s_mov_b32 s75, {WS_FF+64*128}
s_cmp_lg_u32 s{sW}, 0
s_cbranch_scc1 L_ffdone
L_ffpoll:
buffer_load_dword v24, v21, {WS}, s74 offen sc1
buffer_load_dword v25, v22, {WS}, s75 offen sc1
s_add_u32 s77, s77, 1
s_waitcnt vmcnt(0)
v_xor_b32 v24, s{sT}, v24
v_xor_b32 v25, s{sT}, v25
v_or_b32 v24, v24, v25
v_cmp_ne_u32 vcc, 0, v24
s_cmp_ge_u32 s77, {POLL_MAX}
s_cbranch_scc1 L_ffdone
s_cbranch_vccz L_ffdone
s_sleep 4
s_branch L_ffpoll
L_ffdone:
s_barrier
""")
ST(5)
A(f"""
v_lshlrev_b32 v21, 4, v0
s_mul_i32 s74, s{sF}, {72*512}
s_add_u32 s74, s74, {WS_H5F}
v_mov_b32 v48, 0
v_mov_b32 v49, 0
v_mov_b32 v50, 0
v_mov_b32 v51, 0
""")
for i in range(4):
    A(f"buffer_load_dwordx4 {vr(32+4*i,4)}, v21, {WS}, s74 offen sc1\ns_add_u32 s74, s74, 8192")
A(f"""
s_cmp_ge_u32 s{sW}, 4
s_cbranch_scc1 L_fin_f4
buffer_load_dwordx4 v[48:51], v21, {WS}, s74 offen sc1
L_fin_f4:
s_waitcnt vmcnt(0)
""")
for j in range(4):
    A(f"v_add_f32 v{32+j}, v{32+j}, v{36+j}\nv_add_f32 v{40+j}, v{40+j}, v{44+j}\nv_add_f32 v{32+j}, v{32+j}, v{48+j}\nv_add_f32 v{32+j}, v{32+j}, v{40+j}")
A(f"ds_write_b128 v21, v[32:35] offset:{RED}")
A(f"""
s_lshl_b32 s74, s{sF}, 14
s_add_u32 s74, s74, {WS_H5T}
s_add_u32 s75, s74, 8192
s_mov_b32 s77, 0
v_and_b32 v23, 31, v{vL}
v_lshlrev_b32 v23, 4, v23
v_lshrrev_b32 v22, 5, v{vL}
v_lshl_add_u32 v23, v22, 13, v23
L_finpoll:
buffer_load_dwordx4 v[36:39], v21, {WS}, s74 offen sc1
buffer_load_dwordx4 v[40:43], v21, {WS}, s75 offen sc1
s_add_u32 s77, s77, 1
s_waitcnt vmcnt(0)
v_max3_u32 v30, v36, v37, v38
v_max3_u32 v30, v30, v39, v40
v_max3_u32 v30, v30, v41, v42
v_max_u32 v30, v30, v43
v_cmp_eq_u32 vcc, -1, v30
s_cmp_ge_u32 s77, {POLL_MAX}
s_cbranch_scc1 L_findone
s_cbranch_vccnz L_finpoll
L_findone:
""")
for j in range(4): A(f"v_add_f32 v{36+j}, v{36+j}, v{40+j}")
A(f"ds_write_b128 v21, v[36:39] offset:{RED+8192}\ns_waitcnt lgkmcnt(0)")
ST(6)
A(f"""
s_barrier
s_cmp_lg_u32 s{sW}, 0
s_cbranch_scc1 L_end
""")
for i in range(16):
    A(f"ds_read_b128 {vr(64+4*i,4)}, v23 offset:{RED+i*512}")
    if i == 11: A("s_waitcnt lgkmcnt(4)")
A("s_waitcnt lgkmcnt(0)")
for step in (8, 4, 2, 1):
    for i in range(step):
        for j in range(4): A(f"v_add_f32 v{64+4*i+j}, v{64+4*i+j}, v{64+4*(i+step)+j}")
for j in range(4): A(f"v_mov_b32 v{68+j}, v{64+j}")
for j in range(4): A(f"v_permlane32_swap_b32 v{64+j}, v{68+j}")
A(f"s_mov_b32 s75, {fbits(-LOG2E)}")
A("v_lshlrev_b32 v72, 16, v60\nv_and_b32 v73, 0xffff0000, v60\nv_lshlrev_b32 v74, 16, v61\nv_and_b32 v75, 0xffff0000, v61")
for j in range(4):
    y, s, t = 64+j, 68+j, 76+j
    rb16(y, y); rb16(s, s)
    A(f"v_mul_f32 v{t}, s75, v{y}\nv_exp_f32 v{t}, v{t}\nv_add_f32 v{t}, 1.0, v{t}\nv_rcp_f32 v{t}, v{t}\nv_mul_f32 v{y}, v{y}, v{t}")
    rb16(y, y)
    A(f"v_mul_f32 v{y}, v{y}, v{s}")
    rb16(y, y)
    A(f"v_add_f32 v{y}, v{y}, v{72+j}")
A(f"""
v_cvt_pk_bf16_f32 v64, v64, v65
v_cvt_pk_bf16_f32 v65, v66, v67
s_mov_b32 exec_hi, 0
buffer_store_dwordx2 v[64:65], v12, {RB}, s68 offen
s_cmp_lg_u32 s{sF}, 0
s_cbranch_scc1 L_fin_noep
s_mov_b64 exec, 1
v_mov_b32 v66, s{sE}
buffer_store_dword v66, v8, {WS}, 0 offen sc1
L_fin_noep:
s_mov_b64 exec, -1
""")
ST(7)
finish()

QA = 131072
MX, LS, PB = QA, QA+1024, QA+2048
A("L_att:")
A(f"v_mov_b32 v8, 0\nbuffer_load_dword v{vE}, v8, {WS}, 0 offen sc1")
A(f"s_cmp_ge_u32 s{sW}, 4\ns_cbranch_scc1 L_att_hi")
srd(52, P_CKV, 4*4096*1024)
A(f"""
v_and_b32 v9, 2, v2
v_lshlrev_b32 v9, 1, v9
v_lshrrev_b32 v10, 2, v2
v_or_b32 v9, v9, v10
v_xor_b32 v9, v9, v3
v_lshlrev_b32 v9, 4, v9
v_lshl_add_u32 v9, v2, 10, v9
v_xor_b32 v10, 32, v9
s_lshl_b32 s66, s{sX}, 4
s_add_u32 s66, s66, s{sK}
s_lshl_b32 s66, s66, 17
s_lshl_b32 s67, s{sW}, 15
s_add_u32 s66, s66, s67
""")
for lb in range(8):
    for rbi in range(4):
        A(f"s_add_u32 s68, s67, {(rbi*8+lb)*1024}\ns_mov_b32 m0, s68\ns_add_u32 s69, s66, {rbi*8192+lb*128}")
        dma(9 + (rbi & 1), RA, 69)
A(f"""
v_and_b32 v11, 2, v{vL}
v_lshlrev_b32 v11, 1, v11
v_or_b32 v11, v11, v5
v_lshrrev_b32 v12, 5, v{vL}
v_xor_b32 v11, v11, v12
v_lshlrev_b32 v11, 4, v11
v_lshl_add_u32 v11, v3, 7, v11
v_and_b32 v13, 3, v2
v_lshl_add_u32 v11, v13, 13, v11
v_add_u32 v16, s67, v11
v_add_u32 v20, {QA}, v11
""")
for t in range(1, 4):
    A(f"v_xor_b32 v{16+t}, {t<<5}, v16\nv_xor_b32 v{20+t}, {t<<5}, v20")
ST(1)
A("s_barrier")
ST(2)
vS = 32; vAf = 64; vBf = 96
def qk_reads(lb):
    s = lb & 1
    A(f"s_waitcnt vmcnt({28-4*lb})")
    for t in range(4):
        A(f"ds_read_b128 {vr(vAf+16*s+4*t,4)}, v{16+t} offset:{lb*1024}")
        A(f"ds_read_b128 {vr(vBf+16*s+4*t,4)}, v{20+t} offset:{lb*1024}")
qk_reads(0)
for lb in range(8):
    s = lb & 1
    if lb < 7:
        A("s_waitcnt lgkmcnt(0)")
        qk_reads(lb+1)
        for t in range(4):
            A(f"v_mfma_f32_32x32x16_bf16 {vr(vS,16)}, {vr(vAf+16*s+4*t,4)}, {vr(vBf+16*s+4*t,4)}, {'0' if (lb==0 and t==0) else vr(vS,16)}")
    else:
        for t in range(4):
            A(f"s_waitcnt lgkmcnt({6-2*t})")
            A(f"v_mfma_f32_32x32x16_bf16 {vr(vS,16)}, {vr(vAf+16*s+4*t,4)}, {vr(vBf+16*s+4*t,4)}, {vr(vS,16)}")
ST(3)
A("s_barrier")
A(f"""
v_and_b32 v13, 31, v{vL}
v_lshlrev_b32 v13, 5, v13
v_add_u32 v13, {QA}, v13
s_lshl_b32 s68, s{sW}, 3
v_lshl_add_u32 v14, v12, 2, v13
v_add_u32 v14, s68, v14
s_lshl_b32 s68, s{sW}, 11
s_add_u32 s68, s68, {PB}
v_lshlrev_b32 v15, 4, v{vL}
v_add_u32 v15, s68, v15
""")
A(f"v_max3_f32 v24, v{vS}, v{vS+1}, v{vS+2}")
for i in range(3, 15, 2): A(f"v_max3_f32 v24, v24, v{vS+i}, v{vS+i+1}")
A(f"v_max_f32 v24, v24, v{vS+15}")
A(f"ds_write_b32 v14, v24\ns_waitcnt lgkmcnt(0)\ns_barrier")
A(f"""
ds_read_b128 v[24:27], v13
ds_read_b128 v[28:31], v13 offset:16
s_waitcnt lgkmcnt(0)
v_max3_f32 v24, v24, v25, v26
v_max3_f32 v28, v28, v29, v30
v_max3_f32 v24, v24, v27, v31
v_max_f32 v24, v24, v28
""")
for i in range(16): A(f"v_sub_f32 v{vS+i}, v{vS+i}, v24")
for i in range(16): A(f"v_exp_f32 v{vS+i}, v{vS+i}")
for i in range(8): A(f"v_cvt_pk_bf16_f32 v{48+i}, v{vS+2*i}, v{vS+2*i+1}")
A(f"ds_write_b128 v15, v[48:51]\nds_write_b128 v15, v[52:55] offset:1024")
for step in (8, 4, 2, 1):
    for i in range(step): A(f"v_add_f32 v{vS+i}, v{vS+i}, v{vS+i+step}")
A(f"ds_write_b32 v14, v{vS} offset:1024\ns_waitcnt lgkmcnt(0)")
ST(4)
A("s_barrier")
get_tag(vE)
A("s_branch L_red")

A("L_att_hi:")
A(f"""
s_sub_u32 s66, s{sW}, 4
s_lshr_b32 s67, s{sX}, 1
s_lshl_b32 s67, s67, 16
s_lshl_b32 s68, s66, 14
s_add_u32 s67, s67, s68
s_add_u32 s67, s67, {WS_H2}
v_lshlrev_b32 v9, 4, v{vL}
""")
A(f"""
v_bfe_u32 v10, v{vL}, 1, 3
s_and_b32 s68, s66, 1
s_lshl_b32 s68, s68, 1
v_xor_b32 v10, s68, v10
v_lshlrev_b32 v10, 4, v10
v_and_b32 v11, 1, v{vL}
v_lshl_add_u32 v10, v11, 3, v10
v_lshl_add_u32 v10, v4, 10, v10
s_lshl_b32 s68, s66, 13
s_add_u32 s68, s68, {QA}
v_add_u32 v16, s68, v10
v_xor_b32 v17, 64, v16
v_xor_b32 v18, 16, v16
v_xor_b32 v19, 80, v16
""")
A(f"""
v_lshrrev_b32 v12, 5, v{vL}
v_and_b32 v13, 1, v4
v_lshrrev_b32 v14, 1, v6
v_lshl_or_b32 v13, v13, 1, v14
v_and_b32 v14, 2, v5
v_lshl_or_b32 v14, v14, 1, v12
v_xor_b32 v13, v13, v14
v_lshlrev_b32 v13, 4, v13
v_lshl_add_u32 v13, v5, 7, v13
v_lshl_add_u32 v13, v12, 9, v13
v_and_b32 v14, 1, v6
v_lshl_add_u32 v13, v14, 3, v13
s_lshl_b32 s68, s66, 11
v_add_u32 v20, s68, v13
v_xor_b32 v21, 32, v20
v_xor_b32 v22, 64, v20
v_xor_b32 v23, 96, v20
""")
for j in range(4): A(f"v_add_u32 v{24+j}, 0x10000, v{20+j}")
A("s_waitcnt vmcnt(0)")
get_tag(vE)
vQ = 32
A("s_mov_b32 s77, 0\nL_h2poll:")
for i in range(16):
    if i % 4 == 0: A(f"s_add_u32 s69, s67, {i*1024}")
    A(f"buffer_load_dwordx4 {vr(vQ+4*i,4)}, v9, {WS}, s69 offen offset:{(i%4)*1024} sc1")
A("s_add_u32 s77, s77, 1\nv_mov_b32 v28, 0")
for i in range(16):
    A(f"s_waitcnt vmcnt({15-i})")
    A(f"v_xor_b32 v{vQ+4*i+1}, s{sT}, v{vQ+4*i+1}\nv_xor_b32 v{vQ+4*i+3}, s{sT}, v{vQ+4*i+3}\nv_or3_b32 v28, v28, v{vQ+4*i+1}, v{vQ+4*i+3}")
    hh = i >> 1
    var = ((hh >> 1) & 1) + 2*((hh >> 2) & 1)
    A(f"v_mov_b32 v{vQ+4*i+1}, v{vQ+4*i+2}")
    A(f"ds_write_b64 v{16+var}, {vr(vQ+4*i,2)} offset:{(i&1)*4096 + hh*128}")
A(f"""
v_cmp_ne_u32 vcc, 0, v28
s_waitcnt lgkmcnt(0)
s_cmp_ge_u32 s77, {POLL_MAX}
s_cbranch_scc1 L_h2done
s_cbranch_vccz L_h2done
s_sleep 8
s_branch L_h2poll
L_h2done:
""")
ST(1)
A("s_barrier")
A("s_barrier")
ST(2)
vV = 96
vP = 224
vO = 32
def pv_reads(f):
    for tau in range(4):
        for jj in range(2):
            a = (20 if f < 4 else 24) + jj + 2*(tau & 1)
            off = (f & 3)*16384 + jj*8192 + (tau >> 1)*1024
            A(f"ds_read_b64_tr_b16 {vr(vV+(f*4+tau)*4+2*jj,2)}, v{a} offset:{off}")
pv_reads(0)
A("s_barrier")
for f in range(1, 8):
    A("s_waitcnt lgkmcnt(6)")
    pv_reads(f)
A(f"""
v_add_u32 v10, {PB}, v9
v_and_b32 v13, 31, v{vL}
v_lshlrev_b32 v14, 5, v13
v_add_u32 v14, {QA}, v14
v_lshlrev_b32 v13, 4, v13
v_lshl_add_u32 v11, v12, 16, v13
s_lshl_b32 s68, s{sX}, 19
s_lshl_b32 s69, s{sK}, 11
s_add_u32 s68, s68, s69
s_lshl_b32 s70, s66, 9
s_add_u32 s68, s68, s70
s_add_u32 s68, s68, {WS_H3A}
s_lshl_b32 s71, s{sX}, 15
s_add_u32 s71, s71, s69
s_add_u32 s71, s71, s70
s_add_u32 s71, s71, {WS_FLG}
s_waitcnt lgkmcnt(0)
s_barrier
""")
ST(3)
for f in range(8): A(f"ds_read_b128 {vr(vP+4*f,4)}, v10 offset:{f*1024}")
A(f"ds_read_b128 v[16:19], v14\nds_read_b128 v[20:23], v14 offset:16\nds_read_b128 v[24:27], v14 offset:1024\nds_read_b128 v[28:31], v14 offset:1040")
for f in range(8):
    A(f"s_waitcnt lgkmcnt({11-f})")
    for tau in range(4):
        A(f"v_mfma_f32_32x32x16_bf16 {vr(vO+16*tau,16)}, {vr(vP+4*f,4)}, {vr(vV+(f*4+tau)*4,4)}, {'0' if f==0 else vr(vO+16*tau,16)}")
A(f"""
s_waitcnt lgkmcnt(0)
v_max3_f32 v16, v16, v17, v18
v_max3_f32 v20, v20, v21, v22
v_max3_f32 v16, v16, v19, v23
v_max_f32 v16, v16, v20
v_add_f32 v24, v24, v25
v_add_f32 v26, v26, v27
v_add_f32 v28, v28, v29
v_add_f32 v30, v30, v31
v_add_f32 v24, v24, v26
v_add_f32 v28, v28, v30
v_add_f32 v18, v24, v28
v_mov_b32 v17, s{sT}
v_mov_b32 v19, s{sT}
""")
ST(4)
STF = "sc1"
for n, i in enumerate(range(0, 16, 2)):
    d = vV + 4*n
    A(f"v_cvt_pk_bf16_f32 v{d}, v{vO+i}, v{vO+16+i}\nv_cvt_pk_bf16_f32 v{d+1}, v{vO+32+i}, v{vO+48+i}")
    A(f"v_cvt_pk_bf16_f32 v{d+2}, v{vO+i+1}, v{vO+16+i+1}\nv_cvt_pk_bf16_f32 v{d+3}, v{vO+32+i+1}, v{vO+48+i+1}")
    A(f"s_add_u32 s69, s68, {((i&3)//2 + 4*(i>>2))*32768}")
    A(f"buffer_store_dwordx4 {vr(d,4)}, v11, {WS}, s69 offen {STF}")
A(f"""
s_waitcnt vmcnt(0)
s_mov_b32 exec_hi, 0
buffer_store_dwordx4 v[16:19], v13, {WS}, s71 offen {STF}
s_mov_b64 exec, -1
""")
ST(5)

A("L_red:")
A(f"""
s_lshr_b32 s66, s{sW}, 1
s_lshl_b32 s67, s{sX}, 15
s_lshl_b32 s68, s66, 9
s_add_u32 s67, s67, s68
s_lshl_b32 s69, s{sK}, 5
s_add_u32 s67, s67, s69
s_add_u32 s67, s67, {WS_FLG}
v_and_b32 v9, 15, v{vL}
v_and_b32 v10, 1, v4
v_lshlrev_b32 v11, 11, v9
v_lshl_add_u32 v11, v10, 4, v11
s_lshl_b32 s69, s{sX}, 4
s_add_u32 s69, s69, s{sK}
s_lshl_b32 s69, s69, 15
s_lshl_b32 s70, s{sW}, 8
s_add_u32 s69, s69, s70
s_add_u32 s69, s69, {WS_H3A}
v_lshlrev_b32 v12, 11, v4
v_lshl_add_u32 v12, v9, 4, v12
""")
A(f"""
v_and_b32 v13, 1, v3
v_lshlrev_b32 v13, 4, v13
v_mov_b32 v14, 0xffff
v_lshlrev_b32 v14, v13, v14
v_lshrrev_b32 v13, 1, v3
""")
for d in range(4):
    A(f"v_cmp_eq_u32 vcc, {d}, v13\nv_cndmask_b32 v{24+d}, 0, v14, vcc")
A(f"""
v_lshrrev_b32 v13, 2, v3
v_lshl_add_u32 v15, v13, 4, v4
v_lshlrev_b32 v15, 2, v15
""")
A(f"""
v_lshlrev_b32 v28, 14, v13
v_lshl_add_u32 v28, v6, 5, v28
v_lshl_add_u32 v28, v4, 3, v28
s_lshl_b32 s70, s{sK}, 15
s_lshl_b32 s71, s{sX}, 11
s_add_u32 s70, s70, s71
s_add_u32 s70, s70, {WS_H3B}
s_lshl_b32 s71, s{sW}, 7
s_add_u32 s71, s71, s70
v_lshlrev_b32 v29, 14, v10
v_lshl_add_u32 v29, v9, 3, v29
s_mov_b32 s77, 0
L_rpoll:
buffer_load_dwordx4 v[32:35], v11, {WS}, s67 offen sc1
s_add_u32 s77, s77, 1
s_waitcnt vmcnt(0)
v_xor_b32 v33, s{sT}, v33
v_xor_b32 v35, s{sT}, v35
v_or_b32 v33, v33, v35
v_cmp_ne_u32 vcc, 0, v33
s_cmp_ge_u32 s77, {POLL_MAX}
s_cbranch_scc1 L_rdone
s_cbranch_vccnz L_rpoll
L_rdone:
""")
ST(6)
for i in range(4):
    A(f"buffer_load_dwordx4 {vr(48+4*i,4)}, v12, {WS}, s69 offen sc1")
    if i < 3: A("s_add_u32 s69, s69, 8192")
A("v_mov_b32 v36, v32")
for r in (8, 4, 2, 1): A(f"v_max_f32_dpp v36, v36, v36 row_ror:{r} {DPPF}")
A("v_sub_f32 v33, v32, v36\nv_exp_f32 v33, v33\nv_mul_f32 v37, v33, v34")
for i in range(4): A(f"ds_bpermute_b32 v{40+i}, v15, v33 offset:{16*i}")
for r in (8, 4, 2, 1): A(f"v_add_f32_dpp v37, v37, v37 row_ror:{r} {DPPF}")
A(f"v_min_u32 v36, -2, v36\nv_min_u32 v37, -2, v37")
A(f"v_cmp_gt_u32 vcc, 8, v9\ns_waitcnt lgkmcnt(0)")
for i in range(4):
    w, hi, lo = 40+i, 44, 45
    A(f"v_cvt_pk_bf16_f32 v{hi}, v{w}, v{w}\nv_and_b32 v{lo}, 0xffff0000, v{hi}\nv_sub_f32 v{lo}, v{w}, v{lo}\nv_cvt_pk_bf16_f32 v{lo}, v{lo}, v{lo}")
    A(f"v_cndmask_b32 v{hi}, v{lo}, v{hi}, vcc")
    for d in range(4): A(f"v_and_b32 v{64+4*i+d}, v{hi}, v{24+d}")
A(f"""
s_cmp_lg_u32 s{sW}, 0
s_cbranch_scc1 L_rnostat
s_mov_b32 exec_hi, 0
buffer_store_dwordx2 v[36:37], v29, {WS}, s70 offen offset:1024 sc1
s_mov_b64 exec, -1
s_waitcnt vmcnt(1)
s_branch L_rgo
L_rnostat:
s_waitcnt vmcnt(0)
L_rgo:
""")
for i in range(4):
    A(f"v_mfma_f32_16x16x32_bf16 v[40:43], {vr(48+4*i,4)}, {vr(64+4*i,4)}, {'0' if i==0 else 'v[40:43]'}")
for j in range(4): A(f"v_add_f32_dpp v{40+j}, v{40+j}, v{40+j} row_ror:8 {DPPF}")
A(f"""
v_cvt_pk_bf16_f32 v44, v40, v41
v_cvt_pk_bf16_f32 v45, v42, v43
v_min_u32 v44, -2, v44
v_min_u32 v45, -2, v45
s_mov_b32 s74, 0x00ff00ff
s_mov_b32 s75, 0x00ff00ff
s_mov_b64 exec, s[74:75]
buffer_store_dwordx2 v[44:45], v28, {WS}, s71 offen sc1
s_mov_b64 exec, -1
""")
ST(7)

A("L_end:")
if OPT['stamps']:
    A("s_waitcnt vmcnt(0)")
    ST(8)
    A(f"""
    s_waitcnt lgkmcnt(0)
    s_lshl_b32 s66, s2, 3
    s_add_u32 s66, s66, s{sW}
    s_lshl_b32 s66, s66, 6
    s_add_u32 s66, s66, {WS_ST}
    s_getreg_b32 s67, hwreg(HW_REG_XCC_ID)
    s_mov_b64 exec, 1
    v_mov_b32 v8, 0
    """)
    for i in range(3):
        A("\n".join(f"v_mov_b32 v{12+j}, s{80+2*(3*i+j)}" for j in range(3)))
        A(f"v_mov_b32 v15, {'s67' if i==0 else 's77'}")
        A(f"buffer_store_dwordx4 v[12:15], v8, {WS}, s66 offen offset:{16*i}")
A("L_exit:\ns_endpgm")
A.raw(f""".section .rodata,"a"
.p2align 6
.amdhsa_kernel {NAME}_kernel
  .amdhsa_next_free_vgpr 256
  .amdhsa_next_free_sgpr 102
  .amdhsa_accum_offset 256
  .amdhsa_group_segment_fixed_size 0
  .amdhsa_kernarg_size 104
  .amdhsa_user_sgpr_count 2
  .amdhsa_user_sgpr_kernarg_segment_ptr 1
  .amdhsa_system_sgpr_workgroup_id_x 1
  .amdhsa_float_denorm_mode_32 3
.end_amdhsa_kernel""")
sys.stdout.write(A.text())
sys.stderr.write(f"instructions {A.count} nops {A.nops}\n")
```

```python
import sys, math
from asmx import Asm, NAME

OPT = dict(stamps=0, local=0, dbg=0)
for a in sys.argv[1:]:
    k, v = a.split("="); OPT[k] = int(v)

WS_EPOCH = 0
WS_H1  = 0x040000
WS_H2  = 0x080000
WS_XT  = 0x0C0000
WS_FLG = 0x100000
WS_H3B = 0x140000
WS_H5T = 0x200000
WS_H5F = 0x280000
WS_FF  = 0x340000
WS_H3A = 0x400000
WS_ST  = 0x800000
POLL_MAX = 60000

P_X, P_CKV, P_WQ, P_WUK, P_WUV, P_WO, P_BX, P_WG, P_WU, P_WD, P_OUT, P_DBG, P_WS = [16+2*i for i in range(13)]
sE, sT, sW, sX, sK, sH = 42, 43, 44, 45, 46, 47
WS = "s[48:51]"; RA = "s[52:55]"; RB = "s[56:59]"; RC = "s[60:63]"
sQD, sA_ = 64, 65
A = Asm()

def srd(base, ptr, size):
    A(f"s_mov_b32 s{base}, s{ptr}\ns_mov_b32 s{base+1}, s{ptr+1}\ns_mov_b32 s{base+2}, {size}\ns_mov_b32 s{base+3}, 0x20000")
def ST(i):
    if OPT['stamps']: A(f"s_memrealtime s[{80+2*i}:{81+2*i}]")
def vr(a, n): return f"v[{a}:{a+n-1}]"
def dma(voff, rsrc, soff, flags="nt"):
    A(f"buffer_load_dwordx4 v{voff}, {rsrc}, s{soff} offen {flags} lds")
def finish():
    A("s_branch L_end")
def get_tag(vE):
    A(f"v_readfirstlane_b32 s{sE}, v{vE}")
    A(f"s_add_u32 s{sE}, s{sE}, 1\ns_mul_i32 s{sT}, s{sE}, 0x9E3779B1\ns_xor_b32 s{sT}, s{sT}, 0x5BD1E995")
def rb16(dst, src, tmp=None):
    A(f"v_cvt_pk_bf16_f32 v{dst}, v{src}, v{src}\nv_lshlrev_b32 v{dst}, 16, v{dst}")
DPPF = "row_mask:0xf bank_mask:0xf"
def wave_sum_to_sgpr(v, s):
    for r in (8, 4, 2, 1): A(f"v_add_f32_dpp v{v}, v{v}, v{v} row_ror:{r} {DPPF}")
    A(f"v_add_f32_dpp v{v}, v{v}, v{v} row_bcast:15 row_mask:0xa bank_mask:0xf")
    A(f"v_add_f32_dpp v{v}, v{v}, v{v} row_bcast:31 row_mask:0xc bank_mask:0xf")
    A(f"v_readlane_b32 s{s}, v{v}, 63")
def fbits(x):
    import struct; return "0x%08x" % struct.unpack("<I", struct.pack("<f", x))[0]
LOG2E = 1.4426950408889634

A.raw("; @launch grid=(256,1,1) block=(512,1,1) lds=163840")
A.raw('.amdgcn_target "amdgcn-amd-amdhsa--gfx950"')
A.raw(f".text\n.globl {NAME}_kernel\n.p2align 8\n.type {NAME}_kernel,@function\n{NAME}_kernel:")
vL = 1
A(f"""
s_cmp_ge_u32 s2, 256
s_cbranch_scc1 L_exit
s_load_dwordx16 s[16:31], s[0:1], 0
s_load_dwordx8 s[32:39], s[0:1], 64
s_load_dwordx2 s[40:41], s[0:1], 96
""")
if OPT['stamps']:
    for i in range(80, 102): A(f"s_mov_b32 s{i}, 0")
ST(0)
A(f"""
v_and_b32 v{vL}, 63, v0
v_lshrrev_b32 v2, 6, v0
v_readfirstlane_b32 s{sW}, v2
s_and_b32 s{sX}, s2, 7
s_lshr_b32 s{sK}, s2, 3
v_lshrrev_b32 v2, 3, v{vL}
v_and_b32 v3, 7, v{vL}
v_lshrrev_b32 v4, 4, v{vL}
v_bfe_u32 v5, v{vL}, 2, 2
v_and_b32 v6, 3, v{vL}
s_waitcnt lgkmcnt(0)
""")
srd(48, P_WS, 0x10000000)
A(f"s_cmp_lt_u32 s{sK}, 16\ns_cbranch_scc1 L_att")

XN, XNS = 0, 1216
QP, QPS = 5120, 272
HB, HBS = 9728, 192
BIG = 16384
A(f"""
s_sub_u32 s66, s{sK}, 16
s_lshr_b32 s{sA_}, s66, 2
s_and_b32 s{sQD}, s66, 3
s_lshl_b32 s{sH}, s{sX}, 2
s_add_u32 s{sH}, s{sH}, s{sA_}
""")
srd(52, P_X, 4608)
srd(56, P_WQ, 576*8192)
srd(60, P_WUK, 512*8192)
vE = 7
A(f"""
v_mov_b32 v8, 0
s_cmp_ge_u32 s{sW}, 4
s_cbranch_scc1 L_nq_nox
s_mul_i32 s66, s{sW}, 1152
v_lshlrev_b32 v9, 3, v{vL}
v_lshlrev_b32 v10, 1, v{vL}
buffer_load_dwordx2 v[20:21], v9, {RA}, s66 offen
buffer_load_dwordx2 v[22:23], v9, {RA}, s66 offen offset:512
buffer_load_ushort v24, v10, {RA}, s66 offen offset:1024
L_nq_nox:
buffer_load_dword v{vE}, v8, {WS}, 0 offen sc1
""")
A(f"""
s_and_b32 s67, s{sW}, 1
s_lshl_b32 s68, s67, 2
v_and_b32 v11, 2, v2
v_or_b32 v11, s68, v11
v_xor_b32 v11, v11, v3
v_lshlrev_b32 v11, 4, v11
v_lshl_add_u32 v12, v2, 13, v11
""")
A(f"""
s_bfe_u32 s69, s{sW}, 0x10001
s_lshr_b32 s70, s{sW}, 2
s_mul_i32 s71, s70, 10
s_add_u32 s71, s71, s67
s_mul_i32 s72, s{sQD}, 18
s_add_u32 s72, s72, s71
s_lshl_b32 s72, s72, 16
s_lshl_b32 s73, s{sH}, 8
s_lshl_b32 s74, s69, 7
s_add_u32 s73, s73, s74
s_add_u32 s72, s72, s73
s_lshl_b32 s71, s71, 1
s_add_u32 s71, s71, s69
s_lshl_b32 s71, s71, 10
s_add_u32 s71, s71, {BIG}
""")
for i in range(5):
    if i == 4: A(f"s_cmp_lg_u32 s70, 0\ns_cbranch_scc1 L_nq_dma4")
    A(f"s_mov_b32 m0, s71")
    if i < 4: A(f"s_add_u32 s71, s71, 4096")
    dma(12, RB, 72)
    if i < 4: A(f"s_add_u32 s72, s72, {2*65536}")
A("L_nq_dma4:")
vUK = 32
A(f"""
v_and_b32 v13, 15, v{vL}
v_lshlrev_b32 v14, 13, v13
v_lshl_add_u32 v14, v4, 4, v14
s_lshl_b32 s74, s{sQD}, 3
s_add_u32 s74, s74, s{sW}
s_lshl_b32 s74, s74, 17
s_lshl_b32 s75, s{sH}, 8
s_add_u32 s74, s74, s75
""")
for kp in range(4):
    A(f"buffer_load_dwordx4 {vr(vUK+4*kp,4)}, v14, {RC}, s74 offen offset:{64*kp} nt")
A(f"""
v_mov_b32 v16, -1
v_mov_b32 v17, -1
v_mov_b32 v18, -1
v_mov_b32 v19, -1
v_lshlrev_b32 v15, 4, v{vL}
s_cmp_lg_u32 s{sQD}, 0
s_cbranch_scc1 L_nq_noclrT
s_lshl_b32 s74, s{sH}, 14
s_lshl_b32 s75, s{sW}, 11
s_add_u32 s74, s74, s75
s_add_u32 s74, s74, {WS_H3B}
buffer_store_dwordx4 v[16:19], v15, {WS}, s74 offen sc1
s_mov_b64 exec, 0xff
buffer_store_dwordx4 v[16:19], v15, {WS}, s74 offen offset:1024 sc1
s_mov_b64 exec, -1
s_branch L_nq_clrdone
L_nq_noclrT:
s_cmp_lg_u32 s{sA_}, 3
s_cbranch_scc1 L_nq_clrdone
s_mul_i32 s74, s{sX}, 3
s_add_u32 s74, s74, s{sQD}
s_sub_u32 s74, s74, 1
s_cmp_ge_u32 s74, 18
s_cbranch_scc1 L_nq_clrdone
s_lshl_b32 s74, s74, 14
s_lshl_b32 s75, s{sW}, 11
s_add_u32 s74, s74, s75
s_add_u32 s74, s74, {WS_H5T}
buffer_store_dwordx4 v[16:19], v15, {WS}, s74 offen sc1
buffer_store_dwordx4 v[16:19], v15, {WS}, s74 offen offset:1024 sc1
L_nq_clrdone:
""")
A(f"""
s_cmp_ge_u32 s{sW}, 4
s_cbranch_scc1 L_nq_noln
s_waitcnt vmcnt(10)
""")
e = list(range(48, 57))
A(f"""
v_lshlrev_b32 v{e[0]}, 16, v20
v_and_b32 v{e[1]}, 0xffff0000, v20
v_lshlrev_b32 v{e[2]}, 16, v21
v_and_b32 v{e[3]}, 0xffff0000, v21
v_lshlrev_b32 v{e[4]}, 16, v22
v_and_b32 v{e[5]}, 0xffff0000, v22
v_lshlrev_b32 v{e[6]}, 16, v23
v_and_b32 v{e[7]}, 0xffff0000, v23
v_lshlrev_b32 v{e[8]}, 16, v24
v_add_f32 v25, v{e[0]}, v{e[1]}
v_add_f32 v26, v{e[2]}, v{e[3]}
v_add_f32 v27, v{e[4]}, v{e[5]}
v_add_f32 v28, v{e[6]}, v{e[7]}
v_add_f32 v25, v25, v26
v_add_f32 v27, v27, v28
v_add_f32 v25, v25, v{e[8]}
v_add_f32 v25, v25, v27
""")
wave_sum_to_sgpr(25, 74)
A(f"v_mov_b32 v26, {fbits(1.0/576)}\nv_mul_f32 v26, s74, v26")
A(f"v_sub_f32 v27, v{e[0]}, v26\nv_mul_f32 v25, v27, v27")
for i in range(1, 9):
    A(f"v_sub_f32 v27, v{e[i]}, v26\nv_fmac_f32 v25, v27, v27")
rb16(26, 26)
for i in range(9): A(f"v_sub_f32 v{e[i]}, v{e[i]}, v26")
wave_sum_to_sgpr(25, 74)
A(f"v_mov_b32 v27, {fbits(1.0/576)}\nv_mul_f32 v27, s74, v27")
rb16(27, 27)
A(f"v_add_f32 v27, {fbits(1e-5)}, v27")
rb16(27, 27)
A("v_sqrt_f32 v27, v27")
rb16(27, 27)
A("v_rcp_f32 v27, v27")
for i in range(0, 8, 2): A(f"v_cvt_pk_bf16_f32 v{20+i//2}, v{e[i]}, v{e[i+1]}")
A(f"v_cvt_pk_bf16_f32 v24, v{e[8]}, v{e[8]}")
for i in range(0, 8, 2):
    A(f"v_lshlrev_b32 v{e[i]}, 16, v{20+i//2}\nv_and_b32 v{e[i+1]}, 0xffff0000, v{20+i//2}")
A(f"v_lshlrev_b32 v{e[8]}, 16, v24")
for i in range(9): A(f"v_mul_f32 v{e[i]}, v{e[i]}, v27")
for i in range(0, 8, 2): A(f"v_cvt_pk_bf16_f32 v{20+i//2}, v{e[i]}, v{e[i+1]}")
A(f"v_cvt_pk_bf16_f32 v24, v{e[8]}, v{e[8]}")
A(f"""
s_mul_i32 s74, s{sW}, {XNS}
v_add_u32 v9, s74, v9
v_add_u32 v10, s74, v10
ds_write_b64 v9, v[20:21] offset:{XN}
ds_write_b64 v9, v[22:23] offset:{XN+512}
ds_write_b16 v10, v24 offset:{XN+1024}
L_nq_noln:
""")
vTR = 13
A(f"""
s_and_b32 s74, s{sW}, 3
s_lshl_b32 s74, s74, 1
v_lshrrev_b32 v{vTR}, 1, v6
v_or_b32 v{vTR}, s74, v{vTR}
v_and_b32 v14, 2, v5
v_xor_b32 v{vTR}, v{vTR}, v14
v_and_b32 v14, 1, v4
v_lshlrev_b32 v15, 2, v14
v_xor_b32 v{vTR}, v{vTR}, v15
v_lshlrev_b32 v{vTR}, 4, v{vTR}
v_lshl_add_u32 v{vTR}, v5, 7, v{vTR}
v_and_b32 v15, 1, v6
v_lshl_add_u32 v{vTR}, v15, 3, v{vTR}
s_lshr_b32 s74, s{sW}, 2
s_lshl_b32 s74, s74, 10
s_add_u32 s74, s74, {BIG}
v_add_u32 v15, s74, v{vTR}
v_lshl_add_u32 v16, v4, 11, v15
v_lshl_add_u32 v17, v14, 11, v15
""")
A(f"""
v_mul_u32_u24 v18, {XNS}, v6
v_lshl_add_u32 v18, v4, 4, v18
s_mul_i32 s74, s{sQD}, 288
v_add_u32 v19, s74, v18
""")
A("s_waitcnt vmcnt(4) lgkmcnt(0)")
ST(1)
A("s_barrier")
vA, vB, vD = 64, 96, 28
for kp in range(5):
    a = 16 if kp < 4 else 17
    A(f"ds_read_b64_tr_b16 {vr(vA+4*kp,2)}, v{a} offset:{kp*8192}")
    A(f"ds_read_b64_tr_b16 {vr(vA+4*kp+2,2)}, v{a} offset:{kp*8192+512}")
    A(f"ds_read_b128 {vr(vB+4*kp,4)}, v19 offset:{XN+kp*64}")
get_tag(vE)
A(f"v_cmp_gt_u32 vcc, 2, v4")
for kp in range(5):
    A(f"s_waitcnt lgkmcnt({3*(4-kp)})")
    if kp == 4:
        for j in range(4): A(f"v_cndmask_b32 v{vB+16+j}, 0, v{vB+16+j}, vcc")
    c = "0" if kp == 0 else vr(vD,4)
    A(f"v_mfma_f32_16x16x32_bf16 {vr(vD,4)}, {vr(vA+4*kp,4)}, {vr(vB+4*kp,4)}, {c}")
A(f"""
s_lshl_b32 s74, s{sH}, 13
s_lshl_b32 s75, s{sQD}, 11
s_add_u32 s75, s75, s74
s_lshl_b32 s76, s{sW}, 6
s_add_u32 s75, s75, s76
s_add_u32 s75, s75, {WS_H1}
s_add_u32 s74, s74, {WS_H1}
v_lshlrev_b32 v20, 9, v6
v_lshl_add_u32 v20, v4, 4, v20
v_mov_b32 v25, s{sT}
v_mov_b32 v27, s{sT}
v_cvt_pk_bf16_f32 v24, v{vD}, v{vD+1}
v_cvt_pk_bf16_f32 v26, v{vD+2}, v{vD+3}
s_mov_b32 s78, 0x000f000f
s_mov_b32 s79, 0x000f000f
s_mov_b64 exec, s[78:79]
buffer_store_dwordx4 v[24:27], v20, {WS}, s75 offen sc1
s_mov_b64 exec, -1
""")
ST(2)
A(f"""
v_lshlrev_b32 v21, 4, v0
v_lshrrev_b32 v22, 5, v0
v_mul_u32_u24 v22, {QPS}, v22
v_and_b32 v23, 31, v0
v_lshl_add_u32 v22, v23, 3, v22
s_mov_b32 s77, 0
L_h1poll:
buffer_load_dwordx4 v[48:51], v21, {WS}, s74 offen sc1
s_add_u32 s77, s77, 1
s_waitcnt vmcnt(0)
v_xor_b32 v49, s{sT}, v49
v_xor_b32 v51, s{sT}, v51
v_or_b32 v49, v49, v51
v_cmp_ne_u32 vcc, 0, v49
s_cmp_ge_u32 s77, {POLL_MAX}
s_cbranch_scc1 L_h1done
s_cbranch_vccnz L_h1poll
L_h1done:
v_mov_b32 v49, v50
ds_write_b64 v22, v[48:49] offset:{QP}
v_and_b32 v23, 15, v{vL}
v_mul_u32_u24 v23, {QPS}, v23
v_lshl_add_u32 v23, v4, 4, v23
s_waitcnt lgkmcnt(0)
""")
ST(3)
A("s_barrier")
for kp in range(4): A(f"ds_read_b128 {vr(vB+4*kp,4)}, v23 offset:{QP+kp*64}")
for kp in range(4):
    A(f"s_waitcnt lgkmcnt({3-kp})")
    c = "0" if kp == 0 else vr(vD,4)
    A(f"v_mfma_f32_16x16x32_bf16 {vr(vD,4)}, {vr(vUK+4*kp,4)}, {vr(vB+4*kp,4)}, {c}")
A(f"""
s_lshl_b32 s74, s{sH}, 11
s_lshl_b32 s75, s{sQD}, 9
s_add_u32 s75, s75, s74
s_add_u32 s75, s75, s76
s_add_u32 s75, s75, {WS_H2}
v_lshlrev_b32 v20, 16, v6
v_lshl_add_u32 v20, v4, 4, v20
s_mov_b32 s74, {fbits(LOG2E/math.sqrt(128.0))}
""")
for r in (4, 8):
    for j in range(4): A(f"v_add_f32_dpp v{vD+j}, v{vD+j}, v{vD+j} row_ror:{r} {DPPF}")
for j in range(4): A(f"v_mul_f32 v{vD+j}, s74, v{vD+j}")
A(f"""
v_cvt_pk_bf16_f32 v24, v{vD}, v{vD+1}
v_cvt_pk_bf16_f32 v26, v{vD+2}, v{vD+3}
s_mov_b64 exec, s[78:79]
buffer_store_dwordx4 v[24:27], v20, {WS}, s75 offen sc1
s_mov_b64 exec, -1
""")
ST(4)
A(f"""
s_cmp_eq_u32 s{sQD}, 0
s_cbranch_scc1 L_T
s_cmp_lt_u32 s{sA_}, 3
s_cbranch_scc1 L_F
s_branch L_FIN
""")

def wide_voffset(v):
    A(f"v_mul_u32_u24 v{v}, 1152, v2\nv_add_u32 v{v}, v{v}, v11")
def publish_tiles(vacc, sbase_fin_stride, sent):
    A(f"""
    s_lshr_b32 s74, s{sW}, 1
    s_mul_i32 s74, s74, {sbase_fin_stride}
    s_and_b32 s75, s{sW}, 1
    s_lshl_b32 s75, s75, 8
    s_add_u32 s72, s72, s74
    s_add_u32 s72, s72, s75
    v_lshlrev_b32 v20, 6, v4
    v_lshl_add_u32 v20, v6, 4, v20
    """)
def store_tile(vacc, i, stride, sent):
    if sent:
        for j in range(4): A(f"v_min_u32 v{vacc+4*i+j}, -2, v{vacc+4*i+j}")
    A(f"s_mov_b64 exec, s[78:79]")
    A(f"buffer_store_dwordx4 {vr(vacc+4*i,4)}, v20, {WS}, s72 offen sc1")
    A(f"s_mov_b64 exec, -1")
    A(f"s_add_u32 s72, s72, {4*stride}")

A("L_T:")
srd(52, P_WUV, 512*8192)
srd(56, P_WO, 4096*1152)
A(f"""
s_lshl_b32 s71, s70, 1
s_add_u32 s71, s71, s67
s_lshl_b32 s71, s71, 1
s_add_u32 s71, s71, s69
s_lshl_b32 s71, s71, 10
s_add_u32 s71, s71, {BIG}
s_lshl_b32 s72, s70, 2
s_add_u32 s72, s72, s67
s_lshl_b32 s72, s72, 16
s_add_u32 s72, s72, s73
""")
for i in range(16):
    cb = 2*((i>>1)&1) + 8*(i&1) + 16*(i>>2)
    A(f"s_mov_b32 m0, s71\ns_add_u32 s74, s72, {cb*65536}")
    dma(12, RA, 74)
    A(f"s_add_u32 s71, s71, 8192")
wide_voffset(14)
A(f"""
s_lshr_b32 s68, s{sW}, 1
s_mul_i32 s66, s{sH}, {128*1152}
s_lshl_b32 s71, s68, 2
s_add_u32 s71, s71, s67
s_mul_i32 s72, s71, {8*1152}
s_add_u32 s72, s72, s66
s_add_u32 s72, s72, 1024
s_lshl_b32 s71, s71, 10
s_add_u32 s71, s71, {BIG+131072}
s_mov_b32 m0, s71
s_add_u32 s71, s71, 2048
""")
dma(14, RB, 72)
A(f"s_add_u32 s72, s72, {16*1152}\ns_mov_b32 m0, s71")
dma(14, RB, 72)
vUV = 32
vWO = 96
A(f"v_add_u32 v17, 0x10000, v16")
A("s_waitcnt vmcnt(2)\ns_barrier")
for kp in range(16):
    a = 16 if kp < 8 else 17
    A(f"ds_read_b64_tr_b16 {vr(vUV+4*kp,2)}, v{a} offset:{(kp&7)*8192}")
    A(f"ds_read_b64_tr_b16 {vr(vUV+4*kp+2,2)}, v{a} offset:{(kp&7)*8192+512}")
    if kp % 6 == 5: A("s_waitcnt lgkmcnt(4)")
A("s_waitcnt lgkmcnt(0)\ns_barrier")
A(f"""
s_lshl_b32 s71, s67, 3
s_add_u32 s71, s71, s68
s_lshl_b32 s71, s71, 10
s_add_u32 s71, s71, {BIG}
s_mul_i32 s72, s67, {8*1152}
s_lshl_b32 s74, s68, 7
s_add_u32 s72, s72, s74
s_add_u32 s72, s72, s66
""")
def wide_dma(n, rsrc):
    for i in range(n):
        A(f"s_mov_b32 m0, s71\ns_add_u32 s74, s72, 512")
        dma(14, rsrc, 72)
        A(f"s_add_u32 s75, s71, 4096\ns_mov_b32 m0, s75\ns_add_u32 s72, s72, {16*1152}")
        dma(14, rsrc, 74)
        A(f"s_add_u32 s71, s71, 16384")
wide_dma(8, RB)
def wide_frag_addrs(base8):
    A(f"""
    v_lshl_add_u32 v16, v4, 13, v15
    v_add_u32 v17, 0x10000, v16
    v_lshl_add_u32 v18, v4, 10, v{vTR}
    v_add_u32 v18, {base8}, v18
    """)
def wide_frag_reads(vdst, nk):
    n = 0
    for i in range(4):
        for kp in range(nk):
            a = 16 if kp < 2 else 17
            off = (kp & 1)*32768 + i*2048
            d = vdst + (i*nk + kp)*4
            A(f"ds_read_b64_tr_b16 {vr(d,2)}, v{a} offset:{off}")
            A(f"ds_read_b64_tr_b16 {vr(d+2,2)}, v{a} offset:{off+512}")
            n += 2
            if n % 12 == 0: A("s_waitcnt lgkmcnt(4)")
    A("s_waitcnt lgkmcnt(4)")
    for kp in range(nk):
        d = vdst + (4*nk + kp)*4
        A(f"ds_read_b64_tr_b16 {vr(d,2)}, v18 offset:{kp*4096}")
        A(f"ds_read_b64_tr_b16 {vr(d+2,2)}, v18 offset:{kp*4096+512}")
wide_frag_addrs(BIG+131072)
A("s_waitcnt vmcnt(0)\ns_barrier")
wide_frag_reads(vWO, 4)
ST(5)
XL, CT, CTS = 0, 8192, 320
A(f"""
v_lshlrev_b32 v21, 11, v3
v_and_b32 v22, 1, v2
v_lshl_add_u32 v22, v22, 6, v21
v_lshl_add_u32 v22, v4, 4, v22
s_lshl_b32 s74, s{sH}, 14
s_add_u32 s74, s74, {WS_H3B}
s_lshl_b32 s75, s{sW}, 7
s_add_u32 s75, s75, s74
v_lshlrev_b32 v23, 4, v0
s_lshl_b32 s72, s{sH}, 9
s_add_u32 s72, s72, {WS_H5T}
s_mov_b32 s66, s74
s_mov_b32 s68, s75
""")
publish_tiles(0, 32*512, True)
A(f"""
s_mov_b32 s77, 0
L_tpoll:
buffer_load_dwordx4 v[24:27], v22, {WS}, s68 offen sc1
buffer_load_dwordx2 v[28:29], v21, {WS}, s66 offen offset:1024 sc1
s_add_u32 s77, s77, 1
s_waitcnt vmcnt(0)
v_max3_u32 v30, v24, v25, v26
v_max3_u32 v30, v30, v27, v28
v_max_u32 v30, v30, v29
v_cmp_eq_u32 vcc, -1, v30
s_cmp_ge_u32 s77, {POLL_MAX}
s_cbranch_scc1 L_tdone
s_cbranch_vccnz L_tpoll
L_tdone:
ds_write_b128 v23, v[24:27] offset:{XL}
v_lshlrev_b32 v23, 4, v{vL}
""")
QP1 = "quad_perm:[1,0,3,2] " + DPPF
A(f"""
v_max_f32_dpp v30, v28, v28 {QP1}
v_sub_f32 v30, v28, v30
v_exp_f32 v30, v30
v_mul_f32 v31, v30, v29
v_add_f32_dpp v31, v31, v31 {QP1}
v_rcp_f32 v31, v31
v_mul_f32 v30, v30, v31
s_waitcnt lgkmcnt(0)
""")
ST(6)
A("s_barrier")
vX = 176
for i in range(8): A(f"ds_read_b128 {vr(vX+4*i,4)}, v23 offset:{XL+i*1024}")
a0, a1 = 24, 208
for i in range(8):
    A(f"s_waitcnt lgkmcnt({7-i})")
    A(f"v_mfma_f32_16x16x32_bf16 {vr(a0,4)}, {vr(vUV+8*i,4)}, {vr(vX+4*i,4)}, {'0' if i==0 else vr(a0,4)}")
    A(f"v_mfma_f32_16x16x32_bf16 {vr(a1,4)}, {vr(vUV+8*i+4,4)}, {vr(vX+4*i,4)}, {'0' if i==0 else vr(a1,4)}")
A(f"""
v_lshrrev_b32 v21, 1, v3
v_mul_u32_u24 v21, {CTS}, v21
v_lshl_add_u32 v21, v4, 3, v21
s_lshl_b32 s74, s{sW}, 5
v_add_u32 v21, s74, v21
v_mul_u32_u24 v22, {CTS}, v6
v_lshl_add_u32 v22, v4, 4, v22
""")
for j in range(4): A(f"v_add_f32_dpp v{a0+j}, v{a1+j}, v{a0+j} row_ror:8 {DPPF}")
for j in range(4): A(f"v_mul_f32 v{a0+j}, v{a0+j}, v30")
for j in range(4): A(f"v_add_f32_dpp v{a0+j}, v{a0+j}, v{a0+j} {QP1}")
A(f"""
v_cvt_pk_bf16_f32 v28, v{a0}, v{a0+1}
v_cvt_pk_bf16_f32 v29, v{a0+2}, v{a0+3}
s_mov_b32 s74, 0x00550055
s_mov_b32 s75, 0x00550055
s_mov_b64 exec, s[74:75]
ds_write_b64 v21, v[28:29] offset:{CT}
s_mov_b64 exec, -1
s_waitcnt lgkmcnt(0)
s_barrier
""")
def wide_gemm(vW, nk, vBf, vacc, stride, sent, lab):
    for i in range(5):
        if i == 4: A(f"s_cmp_ge_u32 s{sW}, 4\ns_cbranch_scc1 {lab}_a")
        for kp in range(nk):
            if i == 0: A(f"s_waitcnt lgkmcnt({nk-1-kp})")
            A(f"v_mfma_f32_16x16x32_bf16 {vr(vacc+4*i,4)}, {vr(vW+(i*nk+kp)*4,4)}, {vr(vBf+4*kp,4)}, {'0' if kp==0 else vr(vacc+4*i,4)}")
        if 1 <= i <= 3: store_tile(vacc, i-1, stride, sent)
    A(f"{lab}_a:")
    A("s_nop 7")
    store_tile(vacc, 3, stride, sent)
    A(f"s_cmp_ge_u32 s{sW}, 4\ns_cbranch_scc1 {lab}_b")
    store_tile(vacc, 4, stride, sent)
    A(f"{lab}_b:")
for kp in range(4): A(f"ds_read_b128 {vr(vX+4*kp,4)}, v22 offset:{CT+kp*64}")
wide_gemm(vWO, 4, vX, 212, 32*512, True, "L_tg")
ST(7)
finish()

A("L_F:")
sU = 66
A(f"""
s_mul_i32 s{sU}, s{sX}, 9
s_mul_i32 s68, s{sA_}, 3
s_add_u32 s{sU}, s{sU}, s68
s_add_u32 s{sU}, s{sU}, s{sQD}
s_sub_u32 s{sU}, s{sU}, 1
s_cmp_eq_u32 s69, 0
s_cselect_b32 s52, s{P_WG}, s{P_WU}
s_cselect_b32 s53, s{P_WG+1}, s{P_WU+1}
s_mov_b32 s54, {576*9216}
s_mov_b32 s55, 0x20000
""")
srd(56, P_WD, 4608*1152)
A(f"""
s_lshl_b32 s68, s67, 1
s_lshl_b32 s71, s69, 2
s_or_b32 s68, s68, s71
v_bfe_u32 v14, v2, 1, 1
v_or_b32 v14, s68, v14
v_xor_b32 v14, v14, v3
v_lshlrev_b32 v14, 4, v14
v_mul_u32_u24 v12, 9216, v2
v_add_u32 v12, v12, v14
s_lshl_b32 s71, s70, 1
s_add_u32 s71, s71, s67
s_mul_i32 s72, s71, {8*9216}
s_lshl_b32 s74, s{sU}, 7
s_add_u32 s72, s72, s74
s_lshl_b32 s71, s71, 1
s_add_u32 s71, s71, s69
s_lshl_b32 s71, s71, 10
s_add_u32 s71, s71, {BIG}
""")
for i in range(18):
    A(f"s_mov_b32 m0, s71\ns_add_u32 s71, s71, 8192")
    dma(12, RA, 72)
    A(f"s_add_u32 s72, s72, {32*9216}")
vXN = 32
for kp in range(18):
    A(f"ds_read_b128 {vr(vXN+4*kp,4)}, v18 offset:{XN+kp*64}")
    if kp == 11: A("s_waitcnt lgkmcnt(4)")
A(f"""
v_lshrrev_b32 v19, 1, v6
v_lshrrev_b32 v21, 1, v5
v_and_b32 v22, 1, v4
v_lshl_or_b32 v21, v22, 1, v21
v_lshl_or_b32 v21, v19, 2, v21
v_xor_b32 v21, s{sW}, v21
v_lshlrev_b32 v21, 4, v21
v_lshl_add_u32 v21, v5, 7, v21
v_and_b32 v22, 1, v6
v_lshl_add_u32 v21, v22, 3, v21
v_lshl_add_u32 v21, v19, 10, v21
v_lshl_add_u32 v21, v4, 11, v21
v_add_u32 v21, {BIG}, v21
v_add_u32 v22, {8*8192}, v21
""")
wide_voffset(14)
vG = 104
def gu_half(h):
    for kp in range(9):
        a, off = (21, kp*8192) if kp < 8 else (22, 0)
        A(f"ds_read_b64_tr_b16 {vr(vG+4*kp,2)}, v{a} offset:{off}")
        A(f"ds_read_b64_tr_b16 {vr(vG+4*kp+2,2)}, v{a} offset:{off+512}")
        if kp == 5: A("s_waitcnt lgkmcnt(6)")
    for kp in range(9):
        A(f"s_waitcnt lgkmcnt({min(15,2*(8-kp))})")
        c = "0" if (h == 0 and kp == 0) else vr(vD,4)
        A(f"v_mfma_f32_16x16x32_bf16 {vr(vD,4)}, {vr(vG+4*kp,4)}, {vr(vXN+4*(9*h+kp),4)}, {c}")
A("s_waitcnt vmcnt(9) lgkmcnt(0)\ns_barrier")
gu_half(0)
A("s_barrier")
A(f"""
s_lshr_b32 s68, s{sW}, 1
s_mul_i32 s73, s{sU}, {64*1152}
s_lshl_b32 s71, s67, 3
s_add_u32 s71, s71, s68
s_lshl_b32 s71, s71, 10
s_add_u32 s71, s71, {BIG}
s_mul_i32 s72, s67, {8*1152}
s_lshl_b32 s74, s68, 7
s_add_u32 s72, s72, s74
s_add_u32 s72, s72, s73
""")
wide_dma(4, RB)
A(f"""
s_mul_i32 s72, s{sW}, {8*1152}
s_add_u32 s72, s72, s73
s_add_u32 s72, s72, 1024
s_lshl_b32 s71, s{sW}, 10
s_add_u32 s71, s71, {BIG+65536}
s_mov_b32 m0, s71
""")
dma(14, RB, 72)
A(f"v_add_u32 v21, {9*8192}, v21\nv_add_u32 v22, {9*8192}, v22")
A("s_waitcnt vmcnt(9)\ns_barrier")
gu_half(1)
wide_frag_addrs(BIG+65536)
A(f"""
s_lshl_b32 s72, s{sU}, 9
s_add_u32 s72, s72, {WS_H5F}
""")
publish_tiles(0, 72*512, False)
for j in range(4): A(f"v_mov_b32 v{24+j}, v{vD+j}")
for j in range(4): A(f"v_permlane32_swap_b32 v{vD+j}, v{24+j}")
C1 = -2.0*math.sqrt(2.0/math.pi)*LOG2E
A(f"s_mov_b32 s74, {fbits(0.044715)}\ns_mov_b32 s75, {fbits(C1)}")
for j in range(4):
    g, u, t = vD+j, 24+j, 104+j
    rb16(g, g); rb16(u, u)
    A(f"v_mul_f32 v{t}, v{g}, v{g}\nv_fma_f32 v{t}, v{t}, s74, 1.0\nv_mul_f32 v{t}, v{t}, v{g}\nv_mul_f32 v{t}, s75, v{t}")
    A(f"v_exp_f32 v{t}, v{t}\nv_add_f32 v{t}, 1.0, v{t}\nv_rcp_f32 v{t}, v{t}\nv_mul_f32 v{g}, v{g}, v{t}")
    rb16(g, g)
    A(f"v_mul_f32 v{g}, v{g}, v{u}")
A(f"""
v_cvt_pk_bf16_f32 v24, v{vD}, v{vD+1}
v_cvt_pk_bf16_f32 v25, v{vD+2}, v{vD+3}
v_mul_u32_u24 v22, {HBS}, v6
v_lshl_add_u32 v21, v4, 3, v22
s_lshl_b32 s74, s{sW}, 4
v_add_u32 v21, s74, v21
v_lshl_add_u32 v22, v4, 4, v22
s_mov_b64 exec, 0x000f000f
ds_write_b64 v21, v[24:25] offset:{HB}
s_mov_b64 exec, -1
s_waitcnt vmcnt(0) lgkmcnt(0)
""")
ST(5)
A("s_barrier")
wide_frag_reads(32, 2)
for kp in range(2): A(f"ds_read_b128 {vr(104+4*kp,4)}, v22 offset:{HB+kp*64}")
wide_gemm(32, 2, 104, 212, 72*512, False, "L_fg")
A(f"""
s_waitcnt vmcnt(0)
s_barrier
s_cmp_lg_u32 s{sW}, 0
s_cbranch_scc1 L_end
s_lshl_b32 s74, s{sU}, 7
s_add_u32 s74, s74, {WS_FF}
v_mov_b32 v24, s{sT}
v_lshlrev_b32 v21, 2, v{vL}
s_mov_b32 exec_hi, 0
buffer_store_dword v24, v21, {WS}, s74 offen sc1
s_mov_b64 exec, -1
""")
ST(7)
finish()

A("L_FIN:")
sF = 66
RED = 16384
A(f"""
s_mul_i32 s{sF}, s{sX}, 3
s_add_u32 s{sF}, s{sF}, s{sQD}
s_sub_u32 s{sF}, s{sF}, 1
s_cmp_ge_u32 s{sF}, 18
s_cbranch_scc1 L_end
""")
srd(56, P_OUT, 4608)
A(f"""
v_mul_u32_u24 v12, 1152, v6
v_bfe_u32 v14, v{vL}, 2, 3
v_lshl_add_u32 v12, v14, 3, v12
s_lshl_b32 s68, s{sF}, 6
buffer_load_dwordx2 v[60:61], v12, {RA}, s68 offen
v_lshlrev_b32 v21, 7, v{vL}
v_min_u32 v22, {7*128}, v21
s_mov_b32 s77, 0
s_mov_b32 s74, {WS_FF}
s_mov_b32 s75, {WS_FF+64*128}
s_cmp_lg_u32 s{sW}, 0
s_cbranch_scc1 L_ffdone
L_ffpoll:
buffer_load_dword v24, v21, {WS}, s74 offen sc1
buffer_load_dword v25, v22, {WS}, s75 offen sc1
s_add_u32 s77, s77, 1
s_waitcnt vmcnt(0)
v_xor_b32 v24, s{sT}, v24
v_xor_b32 v25, s{sT}, v25
v_or_b32 v24, v24, v25
v_cmp_ne_u32 vcc, 0, v24
s_cmp_ge_u32 s77, {POLL_MAX}
s_cbranch_scc1 L_ffdone
s_cbranch_vccz L_ffdone
s_sleep 4
s_branch L_ffpoll
L_ffdone:
s_barrier
""")
ST(5)
A(f"""
v_lshlrev_b32 v21, 4, v0
s_mul_i32 s74, s{sF}, {72*512}
s_add_u32 s74, s74, {WS_H5F}
v_mov_b32 v48, 0
v_mov_b32 v49, 0
v_mov_b32 v50, 0
v_mov_b32 v51, 0
""")
for i in range(4):
    A(f"buffer_load_dwordx4 {vr(32+4*i,4)}, v21, {WS}, s74 offen sc1\ns_add_u32 s74, s74, 8192")
A(f"""
s_cmp_ge_u32 s{sW}, 4
s_cbranch_scc1 L_fin_f4
buffer_load_dwordx4 v[48:51], v21, {WS}, s74 offen sc1
L_fin_f4:
s_waitcnt vmcnt(0)
""")
for j in range(4):
    A(f"v_add_f32 v{32+j}, v{32+j}, v{36+j}\nv_add_f32 v{40+j}, v{40+j}, v{44+j}\nv_add_f32 v{32+j}, v{32+j}, v{48+j}\nv_add_f32 v{32+j}, v{32+j}, v{40+j}")
A(f"ds_write_b128 v21, v[32:35] offset:{RED}")
A(f"""
s_lshl_b32 s74, s{sF}, 14
s_add_u32 s74, s74, {WS_H5T}
s_add_u32 s75, s74, 8192
s_mov_b32 s77, 0
v_and_b32 v23, 31, v{vL}
v_lshlrev_b32 v23, 4, v23
v_lshrrev_b32 v22, 5, v{vL}
v_lshl_add_u32 v23, v22, 13, v23
L_finpoll:
buffer_load_dwordx4 v[36:39], v21, {WS}, s74 offen sc1
buffer_load_dwordx4 v[40:43], v21, {WS}, s75 offen sc1
s_add_u32 s77, s77, 1
s_waitcnt vmcnt(0)
v_max3_u32 v30, v36, v37, v38
v_max3_u32 v30, v30, v39, v40
v_max3_u32 v30, v30, v41, v42
v_max_u32 v30, v30, v43
v_cmp_eq_u32 vcc, -1, v30
s_cmp_ge_u32 s77, {POLL_MAX}
s_cbranch_scc1 L_findone
s_cbranch_vccnz L_finpoll
L_findone:
""")
for j in range(4): A(f"v_add_f32 v{36+j}, v{36+j}, v{40+j}")
A(f"ds_write_b128 v21, v[36:39] offset:{RED+8192}\ns_waitcnt lgkmcnt(0)")
ST(6)
A(f"""
s_barrier
s_cmp_lg_u32 s{sW}, 0
s_cbranch_scc1 L_end
""")
for i in range(16):
    A(f"ds_read_b128 {vr(64+4*i,4)}, v23 offset:{RED+i*512}")
    if i == 11: A("s_waitcnt lgkmcnt(4)")
A("s_waitcnt lgkmcnt(0)")
for step in (8, 4, 2, 1):
    for i in range(step):
        for j in range(4): A(f"v_add_f32 v{64+4*i+j}, v{64+4*i+j}, v{64+4*(i+step)+j}")
for j in range(4): A(f"v_mov_b32 v{68+j}, v{64+j}")
for j in range(4): A(f"v_permlane32_swap_b32 v{64+j}, v{68+j}")
A(f"s_mov_b32 s75, {fbits(-LOG2E)}")
A("v_lshlrev_b32 v72, 16, v60\nv_and_b32 v73, 0xffff0000, v60\nv_lshlrev_b32 v74, 16, v61\nv_and_b32 v75, 0xffff0000, v61")
for j in range(4):
    y, s, t = 64+j, 68+j, 76+j
    rb16(y, y); rb16(s, s)
    A(f"v_mul_f32 v{t}, s75, v{y}\nv_exp_f32 v{t}, v{t}\nv_add_f32 v{t}, 1.0, v{t}\nv_rcp_f32 v{t}, v{t}\nv_mul_f32 v{y}, v{y}, v{t}")
    rb16(y, y)
    A(f"v_mul_f32 v{y}, v{y}, v{s}")
    rb16(y, y)
    A(f"v_add_f32 v{y}, v{y}, v{72+j}")
A(f"""
v_cvt_pk_bf16_f32 v64, v64, v65
v_cvt_pk_bf16_f32 v65, v66, v67
s_mov_b32 exec_hi, 0
buffer_store_dwordx2 v[64:65], v12, {RB}, s68 offen
s_cmp_lg_u32 s{sF}, 0
s_cbranch_scc1 L_fin_noep
s_mov_b64 exec, 1
v_mov_b32 v66, s{sE}
buffer_store_dword v66, v8, {WS}, 0 offen sc1
L_fin_noep:
s_mov_b64 exec, -1
""")
ST(7)
finish()

QA = 131072
MX, LS, PB = QA, QA+1024, QA+2048
A("L_att:")
A(f"v_mov_b32 v8, 0\nbuffer_load_dword v{vE}, v8, {WS}, 0 offen sc1")
A(f"s_cmp_ge_u32 s{sW}, 4\ns_cbranch_scc1 L_att_hi")
srd(52, P_CKV, 4*4096*1024)
A(f"""
v_and_b32 v9, 2, v2
v_lshlrev_b32 v9, 1, v9
v_lshrrev_b32 v10, 2, v2
v_or_b32 v9, v9, v10
v_xor_b32 v9, v9, v3
v_lshlrev_b32 v9, 4, v9
v_lshl_add_u32 v9, v2, 10, v9
v_xor_b32 v10, 32, v9
s_lshl_b32 s66, s{sX}, 4
s_add_u32 s66, s66, s{sK}
s_lshl_b32 s66, s66, 17
s_lshl_b32 s67, s{sW}, 15
s_add_u32 s66, s66, s67
""")
for lb in range(8):
    for rbi in range(4):
        A(f"s_add_u32 s68, s67, {(rbi*8+lb)*1024}\ns_mov_b32 m0, s68\ns_add_u32 s69, s66, {rbi*8192+lb*128}")
        dma(9 + (rbi & 1), RA, 69)
A(f"""
v_and_b32 v11, 2, v{vL}
v_lshlrev_b32 v11, 1, v11
v_or_b32 v11, v11, v5
v_lshrrev_b32 v12, 5, v{vL}
v_xor_b32 v11, v11, v12
v_lshlrev_b32 v11, 4, v11
v_lshl_add_u32 v11, v3, 7, v11
v_and_b32 v13, 3, v2
v_lshl_add_u32 v11, v13, 13, v11
v_add_u32 v16, s67, v11
v_add_u32 v20, {QA}, v11
""")
for t in range(1, 4):
    A(f"v_xor_b32 v{16+t}, {t<<5}, v16\nv_xor_b32 v{20+t}, {t<<5}, v20")
ST(1)
A("s_barrier")
ST(2)
vS = 32; vAf = 64; vBf = 96
def qk_reads(lb):
    s = lb & 1
    A(f"s_waitcnt vmcnt({28-4*lb})")
    for t in range(4):
        A(f"ds_read_b128 {vr(vAf+16*s+4*t,4)}, v{16+t} offset:{lb*1024}")
        A(f"ds_read_b128 {vr(vBf+16*s+4*t,4)}, v{20+t} offset:{lb*1024}")
qk_reads(0)
for lb in range(8):
    s = lb & 1
    if lb < 7:
        A("s_waitcnt lgkmcnt(0)")
        qk_reads(lb+1)
        for t in range(4):
            A(f"v_mfma_f32_32x32x16_bf16 {vr(vS,16)}, {vr(vAf+16*s+4*t,4)}, {vr(vBf+16*s+4*t,4)}, {'0' if (lb==0 and t==0) else vr(vS,16)}")
    else:
        for t in range(4):
            A(f"s_waitcnt lgkmcnt({6-2*t})")
            A(f"v_mfma_f32_32x32x16_bf16 {vr(vS,16)}, {vr(vAf+16*s+4*t,4)}, {vr(vBf+16*s+4*t,4)}, {vr(vS,16)}")
ST(3)
A("s_barrier")
A(f"""
v_and_b32 v13, 31, v{vL}
v_lshlrev_b32 v13, 5, v13
v_add_u32 v13, {QA}, v13
s_lshl_b32 s68, s{sW}, 3
v_lshl_add_u32 v14, v12, 2, v13
v_add_u32 v14, s68, v14
s_lshl_b32 s68, s{sW}, 11
s_add_u32 s68, s68, {PB}
v_lshlrev_b32 v15, 4, v{vL}
v_add_u32 v15, s68, v15
""")
A(f"v_max3_f32 v24, v{vS}, v{vS+1}, v{vS+2}")
for i in range(3, 15, 2): A(f"v_max3_f32 v24, v24, v{vS+i}, v{vS+i+1}")
A(f"v_max_f32 v24, v24, v{vS+15}")
A(f"ds_write_b32 v14, v24\ns_waitcnt lgkmcnt(0)\ns_barrier")
A(f"""
ds_read_b128 v[24:27], v13
ds_read_b128 v[28:31], v13 offset:16
s_waitcnt lgkmcnt(0)
v_max3_f32 v24, v24, v25, v26
v_max3_f32 v28, v28, v29, v30
v_max3_f32 v24, v24, v27, v31
v_max_f32 v24, v24, v28
""")
for i in range(16): A(f"v_sub_f32 v{vS+i}, v{vS+i}, v24")
for i in range(16): A(f"v_exp_f32 v{vS+i}, v{vS+i}")
for i in range(8): A(f"v_cvt_pk_bf16_f32 v{48+i}, v{vS+2*i}, v{vS+2*i+1}")
A(f"ds_write_b128 v15, v[48:51]\nds_write_b128 v15, v[52:55] offset:1024")
for step in (8, 4, 2, 1):
    for i in range(step): A(f"v_add_f32 v{vS+i}, v{vS+i}, v{vS+i+step}")
A(f"ds_write_b32 v14, v{vS} offset:1024\ns_waitcnt lgkmcnt(0)")
ST(4)
A("s_barrier")
get_tag(vE)
A("s_branch L_red")

A("L_att_hi:")
A(f"""
s_sub_u32 s66, s{sW}, 4
s_lshr_b32 s67, s{sX}, 1
s_lshl_b32 s67, s67, 16
s_lshl_b32 s68, s66, 14
s_add_u32 s67, s67, s68
s_add_u32 s67, s67, {WS_H2}
v_lshlrev_b32 v9, 4, v{vL}
""")
A(f"""
v_bfe_u32 v10, v{vL}, 1, 3
s_and_b32 s68, s66, 1
s_lshl_b32 s68, s68, 1
v_xor_b32 v10, s68, v10
v_lshlrev_b32 v10, 4, v10
v_and_b32 v11, 1, v{vL}
v_lshl_add_u32 v10, v11, 3, v10
v_lshl_add_u32 v10, v4, 10, v10
s_lshl_b32 s68, s66, 13
s_add_u32 s68, s68, {QA}
v_add_u32 v16, s68, v10
v_xor_b32 v17, 64, v16
v_xor_b32 v18, 16, v16
v_xor_b32 v19, 80, v16
""")
A(f"""
v_lshrrev_b32 v12, 5, v{vL}
v_and_b32 v13, 1, v4
v_lshrrev_b32 v14, 1, v6
v_lshl_or_b32 v13, v13, 1, v14
v_and_b32 v14, 2, v5
v_lshl_or_b32 v14, v14, 1, v12
v_xor_b32 v13, v13, v14
v_lshlrev_b32 v13, 4, v13
v_lshl_add_u32 v13, v5, 7, v13
v_lshl_add_u32 v13, v12, 9, v13
v_and_b32 v14, 1, v6
v_lshl_add_u32 v13, v14, 3, v13
s_lshl_b32 s68, s66, 11
v_add_u32 v20, s68, v13
v_xor_b32 v21, 32, v20
v_xor_b32 v22, 64, v20
v_xor_b32 v23, 96, v20
""")
for j in range(4): A(f"v_add_u32 v{24+j}, 0x10000, v{20+j}")
A("s_waitcnt vmcnt(0)")
get_tag(vE)
vQ = 32
A("s_mov_b32 s77, 0\nL_h2poll:")
for i in range(16):
    if i % 4 == 0: A(f"s_add_u32 s69, s67, {i*1024}")
    A(f"buffer_load_dwordx4 {vr(vQ+4*i,4)}, v9, {WS}, s69 offen offset:{(i%4)*1024} sc1")
A("s_add_u32 s77, s77, 1\nv_mov_b32 v28, 0")
for i in range(16):
    A(f"s_waitcnt vmcnt({15-i})")
    A(f"v_xor_b32 v{vQ+4*i+1}, s{sT}, v{vQ+4*i+1}\nv_xor_b32 v{vQ+4*i+3}, s{sT}, v{vQ+4*i+3}\nv_or3_b32 v28, v28, v{vQ+4*i+1}, v{vQ+4*i+3}")
    hh = i >> 1
    var = ((hh >> 1) & 1) + 2*((hh >> 2) & 1)
    A(f"v_mov_b32 v{vQ+4*i+1}, v{vQ+4*i+2}")
    A(f"ds_write_b64 v{16+var}, {vr(vQ+4*i,2)} offset:{(i&1)*4096 + hh*128}")
A(f"""
v_cmp_ne_u32 vcc, 0, v28
s_waitcnt lgkmcnt(0)
s_cmp_ge_u32 s77, {POLL_MAX}
s_cbranch_scc1 L_h2done
s_cbranch_vccz L_h2done
s_sleep 8
s_branch L_h2poll
L_h2done:
""")
ST(1)
A("s_barrier")
A("s_barrier")
ST(2)
vV = 96
vP = 224
vO = 32
def pv_reads(f):
    for tau in range(4):
        for jj in range(2):
            a = (20 if f < 4 else 24) + jj + 2*(tau & 1)
            off = (f & 3)*16384 + jj*8192 + (tau >> 1)*1024
            A(f"ds_read_b64_tr_b16 {vr(vV+(f*4+tau)*4+2*jj,2)}, v{a} offset:{off}")
pv_reads(0)
A("s_barrier")
for f in range(1, 8):
    A("s_waitcnt lgkmcnt(6)")
    pv_reads(f)
A(f"""
v_add_u32 v10, {PB}, v9
v_and_b32 v13, 31, v{vL}
v_lshlrev_b32 v14, 5, v13
v_add_u32 v14, {QA}, v14
v_lshlrev_b32 v13, 4, v13
v_lshl_add_u32 v11, v12, 16, v13
s_lshl_b32 s68, s{sX}, 19
s_lshl_b32 s69, s{sK}, 11
s_add_u32 s68, s68, s69
s_lshl_b32 s70, s66, 9
s_add_u32 s68, s68, s70
s_add_u32 s68, s68, {WS_H3A}
s_lshl_b32 s71, s{sX}, 15
s_add_u32 s71, s71, s69
s_add_u32 s71, s71, s70
s_add_u32 s71, s71, {WS_FLG}
s_waitcnt lgkmcnt(0)
s_barrier
""")
ST(3)
for f in range(8): A(f"ds_read_b128 {vr(vP+4*f,4)}, v10 offset:{f*1024}")
A(f"ds_read_b128 v[16:19], v14\nds_read_b128 v[20:23], v14 offset:16\nds_read_b128 v[24:27], v14 offset:1024\nds_read_b128 v[28:31], v14 offset:1040")
for f in range(8):
    A(f"s_waitcnt lgkmcnt({11-f})")
    for tau in range(4):
        A(f"v_mfma_f32_32x32x16_bf16 {vr(vO+16*tau,16)}, {vr(vP+4*f,4)}, {vr(vV+(f*4+tau)*4,4)}, {'0' if f==0 else vr(vO+16*tau,16)}")
A(f"""
s_waitcnt lgkmcnt(0)
v_max3_f32 v16, v16, v17, v18
v_max3_f32 v20, v20, v21, v22
v_max3_f32 v16, v16, v19, v23
v_max_f32 v16, v16, v20
v_add_f32 v24, v24, v25
v_add_f32 v26, v26, v27
v_add_f32 v28, v28, v29
v_add_f32 v30, v30, v31
v_add_f32 v24, v24, v26
v_add_f32 v28, v28, v30
v_add_f32 v18, v24, v28
v_mov_b32 v17, s{sT}
v_mov_b32 v19, s{sT}
""")
ST(4)
STF = "sc1"
for n, i in enumerate(range(0, 16, 2)):
    d = vV + 4*n
    A(f"v_cvt_pk_bf16_f32 v{d}, v{vO+i}, v{vO+16+i}\nv_cvt_pk_bf16_f32 v{d+1}, v{vO+32+i}, v{vO+48+i}")
    A(f"v_cvt_pk_bf16_f32 v{d+2}, v{vO+i+1}, v{vO+16+i+1}\nv_cvt_pk_bf16_f32 v{d+3}, v{vO+32+i+1}, v{vO+48+i+1}")
    A(f"s_add_u32 s69, s68, {((i&3)//2 + 4*(i>>2))*32768}")
    A(f"buffer_store_dwordx4 {vr(d,4)}, v11, {WS}, s69 offen {STF}")
A(f"""
s_waitcnt vmcnt(0)
s_mov_b32 exec_hi, 0
buffer_store_dwordx4 v[16:19], v13, {WS}, s71 offen {STF}
s_mov_b64 exec, -1
""")
ST(5)

A("L_red:")
A(f"""
s_lshr_b32 s66, s{sW}, 1
s_lshl_b32 s67, s{sX}, 15
s_lshl_b32 s68, s66, 9
s_add_u32 s67, s67, s68
s_lshl_b32 s69, s{sK}, 5
s_add_u32 s67, s67, s69
s_add_u32 s67, s67, {WS_FLG}
v_and_b32 v9, 15, v{vL}
v_and_b32 v10, 1, v4
v_lshlrev_b32 v11, 11, v9
v_lshl_add_u32 v11, v10, 4, v11
s_lshl_b32 s69, s{sX}, 4
s_add_u32 s69, s69, s{sK}
s_lshl_b32 s69, s69, 15
s_lshl_b32 s70, s{sW}, 8
s_add_u32 s69, s69, s70
s_add_u32 s69, s69, {WS_H3A}
v_lshlrev_b32 v12, 11, v4
v_lshl_add_u32 v12, v9, 4, v12
""")
A(f"""
v_and_b32 v13, 1, v3
v_lshlrev_b32 v13, 4, v13
v_mov_b32 v14, 0xffff
v_lshlrev_b32 v14, v13, v14
v_lshrrev_b32 v13, 1, v3
""")
for d in range(4):
    A(f"v_cmp_eq_u32 vcc, {d}, v13\nv_cndmask_b32 v{24+d}, 0, v14, vcc")
A(f"""
v_lshrrev_b32 v13, 2, v3
v_lshl_add_u32 v15, v13, 4, v4
v_lshlrev_b32 v15, 2, v15
""")
A(f"""
v_lshlrev_b32 v28, 14, v13
v_lshl_add_u32 v28, v6, 5, v28
v_lshl_add_u32 v28, v4, 3, v28
s_lshl_b32 s70, s{sK}, 15
s_lshl_b32 s71, s{sX}, 11
s_add_u32 s70, s70, s71
s_add_u32 s70, s70, {WS_H3B}
s_lshl_b32 s71, s{sW}, 7
s_add_u32 s71, s71, s70
v_lshlrev_b32 v29, 14, v10
v_lshl_add_u32 v29, v9, 3, v29
s_mov_b32 s77, 0
L_rpoll:
buffer_load_dwordx4 v[32:35], v11, {WS}, s67 offen sc1
s_add_u32 s77, s77, 1
s_waitcnt vmcnt(0)
v_xor_b32 v33, s{sT}, v33
v_xor_b32 v35, s{sT}, v35
v_or_b32 v33, v33, v35
v_cmp_ne_u32 vcc, 0, v33
s_cmp_ge_u32 s77, {POLL_MAX}
s_cbranch_scc1 L_rdone
s_cbranch_vccnz L_rpoll
L_rdone:
""")
ST(6)
for i in range(4):
    A(f"buffer_load_dwordx4 {vr(48+4*i,4)}, v12, {WS}, s69 offen sc1")
    if i < 3: A("s_add_u32 s69, s69, 8192")
A("v_mov_b32 v36, v32")
for r in (8, 4, 2, 1): A(f"v_max_f32_dpp v36, v36, v36 row_ror:{r} {DPPF}")
A("v_sub_f32 v33, v32, v36\nv_exp_f32 v33, v33\nv_mul_f32 v37, v33, v34")
for i in range(4): A(f"ds_bpermute_b32 v{40+i}, v15, v33 offset:{16*i}")
for r in (8, 4, 2, 1): A(f"v_add_f32_dpp v37, v37, v37 row_ror:{r} {DPPF}")
A(f"v_min_u32 v36, -2, v36\nv_min_u32 v37, -2, v37")
A(f"v_cmp_gt_u32 vcc, 8, v9\ns_waitcnt lgkmcnt(0)")
for i in range(4):
    w, hi, lo = 40+i, 44, 45
    A(f"v_cvt_pk_bf16_f32 v{hi}, v{w}, v{w}\nv_and_b32 v{lo}, 0xffff0000, v{hi}\nv_sub_f32 v{lo}, v{w}, v{lo}\nv_cvt_pk_bf16_f32 v{lo}, v{lo}, v{lo}")
    A(f"v_cndmask_b32 v{hi}, v{lo}, v{hi}, vcc")
    for d in range(4): A(f"v_and_b32 v{64+4*i+d}, v{hi}, v{24+d}")
A(f"""
s_cmp_lg_u32 s{sW}, 0
s_cbranch_scc1 L_rnostat
s_mov_b32 exec_hi, 0
buffer_store_dwordx2 v[36:37], v29, {WS}, s70 offen offset:1024 sc1
s_mov_b64 exec, -1
s_waitcnt vmcnt(1)
s_branch L_rgo
L_rnostat:
s_waitcnt vmcnt(0)
L_rgo:
""")
for i in range(4):
    A(f"v_mfma_f32_16x16x32_bf16 v[40:43], {vr(48+4*i,4)}, {vr(64+4*i,4)}, {'0' if i==0 else 'v[40:43]'}")
for j in range(4): A(f"v_add_f32_dpp v{40+j}, v{40+j}, v{40+j} row_ror:8 {DPPF}")
A(f"""
v_cvt_pk_bf16_f32 v44, v40, v41
v_cvt_pk_bf16_f32 v45, v42, v43
v_min_u32 v44, -2, v44
v_min_u32 v45, -2, v45
s_mov_b32 s74, 0x00ff00ff
s_mov_b32 s75, 0x00ff00ff
s_mov_b64 exec, s[74:75]
buffer_store_dwordx2 v[44:45], v28, {WS}, s71 offen sc1
s_mov_b64 exec, -1
""")
ST(7)

A("L_end:")
if OPT['stamps']:
    A("s_waitcnt vmcnt(0)")
    ST(8)
    A(f"""
    s_waitcnt lgkmcnt(0)
    s_lshl_b32 s66, s2, 3
    s_add_u32 s66, s66, s{sW}
    s_lshl_b32 s66, s66, 6
    s_add_u32 s66, s66, {WS_ST}
    s_getreg_b32 s67, hwreg(HW_REG_XCC_ID)
    s_mov_b64 exec, 1
    v_mov_b32 v8, 0
    """)
    for i in range(3):
        A("\n".join(f"v_mov_b32 v{12+j}, s{80+2*(3*i+j)}" for j in range(3)))
        A(f"v_mov_b32 v15, {'s67' if i==0 else 's77'}")
        A(f"buffer_store_dwordx4 v[12:15], v8, {WS}, s66 offen offset:{16*i}")
if OPT['dbg']:
    sel = [(0,4,(0,1,5,8)), (16*8,0,(1,4,5,6)), (29*8,0,(0,4,5,8)), (17*8,0,(1,5,7,8))]
    srd(52, P_DBG, 256)
    for n,(wg,wv,st) in enumerate(sel):
        lab = A.label("L_dbg")
        A(f"s_cmp_lg_u32 s2, {wg}\ns_cbranch_scc1 {lab}\ns_cmp_lg_u32 s{sW}, {wv}\ns_cbranch_scc1 {lab}")
        A("\n".join(f"v_mov_b32 v{12+j}, s{80+2*st[j]}" for j in range(4)))
        A(f"buffer_store_dwordx4 v[12:15], v8, {RA}, 0 offen offset:{16*n}")
        A(f"{lab}:")
A("L_exit:\ns_endpgm")
A.raw(f""".section .rodata,"a"
.p2align 6
.amdhsa_kernel {NAME}_kernel
  .amdhsa_next_free_vgpr 256
  .amdhsa_next_free_sgpr 102
  .amdhsa_accum_offset 256
  .amdhsa_group_segment_fixed_size 0
  .amdhsa_kernarg_size 104
  .amdhsa_user_sgpr_count 2
  .amdhsa_user_sgpr_kernarg_segment_ptr 1
  .amdhsa_system_sgpr_workgroup_id_x 1
  .amdhsa_float_denorm_mode_32 3
.end_amdhsa_kernel""")
sys.stdout.write(A.text())
sys.stderr.write(f"instructions {A.count} nops {A.nops}\n")
```

```python
import sys, math
from asmx import Asm, NAME

OPT = dict(stamps=0, local=0, dbg=0, hold=0, holdwg=-1)
for a in sys.argv[1:]:
    k, v = a.split("="); OPT[k] = int(v)

WS_EPOCH = 0
WS_H1  = 0x040000
WS_H2  = 0x080000
WS_XT  = 0x0C0000
WS_FLG = 0x100000
WS_H3B = 0x140000
WS_H5T = 0x200000
WS_H5F = 0x280000
WS_FF  = 0x340000
WS_H3A = 0x400000
WS_ST  = 0x800000
POLL_MAX = 60000

P_X, P_CKV, P_WQ, P_WUK, P_WUV, P_WO, P_BX, P_WG, P_WU, P_WD, P_OUT, P_DBG, P_WS = [16+2*i for i in range(13)]
sE, sT, sW, sX, sK, sH = 42, 43, 44, 45, 46, 47
WS = "s[48:51]"; RA = "s[52:55]"; RB = "s[56:59]"; RC = "s[60:63]"
sQD, sA_ = 64, 65
A = Asm()

def srd(base, ptr, size):
    A(f"s_mov_b32 s{base}, s{ptr}\ns_mov_b32 s{base+1}, s{ptr+1}\ns_mov_b32 s{base+2}, {size}\ns_mov_b32 s{base+3}, 0x20000")
def ST(i):
    if OPT['stamps']: A(f"s_memrealtime s[{80+2*i}:{81+2*i}]")
def vr(a, n): return f"v[{a}:{a+n-1}]"
def dma(voff, rsrc, soff, flags="nt"):
    A(f"buffer_load_dwordx4 v{voff}, {rsrc}, s{soff} offen {flags} lds")
def finish():
    A("s_branch L_end")
def get_tag(vE):
    A(f"v_readfirstlane_b32 s{sE}, v{vE}")
    A(f"s_add_u32 s{sE}, s{sE}, 1\ns_mul_i32 s{sT}, s{sE}, 0x9E3779B1\ns_xor_b32 s{sT}, s{sT}, 0x5BD1E995")
def rb16(dst, src, tmp=None):
    A(f"v_cvt_pk_bf16_f32 v{dst}, v{src}, v{src}\nv_lshlrev_b32 v{dst}, 16, v{dst}")
DPPF = "row_mask:0xf bank_mask:0xf"
def wave_sum_to_sgpr(v, s):
    for r in (8, 4, 2, 1): A(f"v_add_f32_dpp v{v}, v{v}, v{v} row_ror:{r} {DPPF}")
    A(f"v_add_f32_dpp v{v}, v{v}, v{v} row_bcast:15 row_mask:0xa bank_mask:0xf")
    A(f"v_add_f32_dpp v{v}, v{v}, v{v} row_bcast:31 row_mask:0xc bank_mask:0xf")
    A(f"v_readlane_b32 s{s}, v{v}, 63")
def fbits(x):
    import struct; return "0x%08x" % struct.unpack("<I", struct.pack("<f", x))[0]
LOG2E = 1.4426950408889634

A.raw("; @launch grid=(256,1,1) block=(512,1,1) lds=163840")
A.raw('.amdgcn_target "amdgcn-amd-amdhsa--gfx950"')
A.raw(f".text\n.globl {NAME}_kernel\n.p2align 8\n.type {NAME}_kernel,@function\n{NAME}_kernel:")
vL = 1
A(f"""
s_cmp_ge_u32 s2, 256
s_cbranch_scc1 L_exit
s_load_dwordx16 s[16:31], s[0:1], 0
s_load_dwordx8 s[32:39], s[0:1], 64
s_load_dwordx2 s[40:41], s[0:1], 96
""")
if OPT['stamps']:
    for i in range(80, 102): A(f"s_mov_b32 s{i}, 0")
ST(0)
A(f"""
v_and_b32 v{vL}, 63, v0
v_lshrrev_b32 v2, 6, v0
v_readfirstlane_b32 s{sW}, v2
s_and_b32 s{sX}, s2, 7
s_lshr_b32 s{sK}, s2, 3
v_lshrrev_b32 v2, 3, v{vL}
v_and_b32 v3, 7, v{vL}
v_lshrrev_b32 v4, 4, v{vL}
v_bfe_u32 v5, v{vL}, 2, 2
v_and_b32 v6, 3, v{vL}
s_waitcnt lgkmcnt(0)
""")
srd(48, P_WS, 0x10000000)
A(f"s_cmp_lt_u32 s{sK}, 16\ns_cbranch_scc1 L_att")

XN, XNS = 0, 1216
QP, QPS = 5120, 272
HB, HBS = 9728, 192
BIG = 16384
A(f"""
s_sub_u32 s66, s{sK}, 16
s_lshr_b32 s{sA_}, s66, 2
s_and_b32 s{sQD}, s66, 3
s_lshl_b32 s{sH}, s{sX}, 2
s_add_u32 s{sH}, s{sH}, s{sA_}
""")
srd(52, P_X, 4608)
srd(56, P_WQ, 576*8192)
srd(60, P_WUK, 512*8192)
vE = 7
A(f"""
v_mov_b32 v8, 0
s_cmp_ge_u32 s{sW}, 4
s_cbranch_scc1 L_nq_nox
s_mul_i32 s66, s{sW}, 1152
v_lshlrev_b32 v9, 3, v{vL}
v_lshlrev_b32 v10, 1, v{vL}
buffer_load_dwordx2 v[20:21], v9, {RA}, s66 offen
buffer_load_dwordx2 v[22:23], v9, {RA}, s66 offen offset:512
buffer_load_ushort v24, v10, {RA}, s66 offen offset:1024
L_nq_nox:
buffer_load_dword v{vE}, v8, {WS}, 0 offen sc1
""")
A(f"""
s_and_b32 s67, s{sW}, 1
s_lshl_b32 s68, s67, 2
v_and_b32 v11, 2, v2
v_or_b32 v11, s68, v11
v_xor_b32 v11, v11, v3
v_lshlrev_b32 v11, 4, v11
v_lshl_add_u32 v12, v2, 13, v11
""")
A(f"""
s_bfe_u32 s69, s{sW}, 0x10001
s_lshr_b32 s70, s{sW}, 2
s_mul_i32 s71, s70, 10
s_add_u32 s71, s71, s67
s_mul_i32 s72, s{sQD}, 18
s_add_u32 s72, s72, s71
s_lshl_b32 s72, s72, 16
s_lshl_b32 s73, s{sH}, 8
s_lshl_b32 s74, s69, 7
s_add_u32 s73, s73, s74
s_add_u32 s72, s72, s73
s_lshl_b32 s71, s71, 1
s_add_u32 s71, s71, s69
s_lshl_b32 s71, s71, 10
s_add_u32 s71, s71, {BIG}
""")
for i in range(5):
    if i == 4: A(f"s_cmp_lg_u32 s70, 0\ns_cbranch_scc1 L_nq_dma4")
    A(f"s_mov_b32 m0, s71")
    if i < 4: A(f"s_add_u32 s71, s71, 4096")
    dma(12, RB, 72)
    if i < 4: A(f"s_add_u32 s72, s72, {2*65536}")
A("L_nq_dma4:")
vUK = 32
A(f"""
v_and_b32 v13, 15, v{vL}
v_lshlrev_b32 v14, 13, v13
v_lshl_add_u32 v14, v4, 4, v14
s_lshl_b32 s74, s{sQD}, 3
s_add_u32 s74, s74, s{sW}
s_lshl_b32 s74, s74, 17
s_lshl_b32 s75, s{sH}, 8
s_add_u32 s74, s74, s75
""")
for kp in range(4):
    A(f"buffer_load_dwordx4 {vr(vUK+4*kp,4)}, v14, {RC}, s74 offen offset:{64*kp} nt")
A(f"""
v_mov_b32 v16, -1
v_mov_b32 v17, -1
v_mov_b32 v18, -1
v_mov_b32 v19, -1
v_lshlrev_b32 v15, 4, v{vL}
s_cmp_lg_u32 s{sQD}, 0
s_cbranch_scc1 L_nq_noclrT
s_lshl_b32 s74, s{sH}, 14
s_lshl_b32 s75, s{sW}, 11
s_add_u32 s74, s74, s75
s_add_u32 s74, s74, {WS_H3B}
buffer_store_dwordx4 v[16:19], v15, {WS}, s74 offen sc1
s_mov_b64 exec, 0xff
buffer_store_dwordx4 v[16:19], v15, {WS}, s74 offen offset:1024 sc1
s_mov_b64 exec, -1
s_branch L_nq_clrdone
L_nq_noclrT:
s_cmp_lg_u32 s{sA_}, 3
s_cbranch_scc1 L_nq_clrdone
s_mul_i32 s74, s{sX}, 3
s_add_u32 s74, s74, s{sQD}
s_sub_u32 s74, s74, 1
s_cmp_ge_u32 s74, 18
s_cbranch_scc1 L_nq_clrdone
s_lshl_b32 s74, s74, 14
s_lshl_b32 s75, s{sW}, 11
s_add_u32 s74, s74, s75
s_add_u32 s74, s74, {WS_H5T}
buffer_store_dwordx4 v[16:19], v15, {WS}, s74 offen sc1
buffer_store_dwordx4 v[16:19], v15, {WS}, s74 offen offset:1024 sc1
L_nq_clrdone:
""")
A(f"""
s_cmp_ge_u32 s{sW}, 4
s_cbranch_scc1 L_nq_noln
s_waitcnt vmcnt(10)
""")
e = list(range(48, 57))
A(f"""
v_lshlrev_b32 v{e[0]}, 16, v20
v_and_b32 v{e[1]}, 0xffff0000, v20
v_lshlrev_b32 v{e[2]}, 16, v21
v_and_b32 v{e[3]}, 0xffff0000, v21
v_lshlrev_b32 v{e[4]}, 16, v22
v_and_b32 v{e[5]}, 0xffff0000, v22
v_lshlrev_b32 v{e[6]}, 16, v23
v_and_b32 v{e[7]}, 0xffff0000, v23
v_lshlrev_b32 v{e[8]}, 16, v24
v_add_f32 v25, v{e[0]}, v{e[1]}
v_add_f32 v26, v{e[2]}, v{e[3]}
v_add_f32 v27, v{e[4]}, v{e[5]}
v_add_f32 v28, v{e[6]}, v{e[7]}
v_add_f32 v25, v25, v26
v_add_f32 v27, v27, v28
v_add_f32 v25, v25, v{e[8]}
v_add_f32 v25, v25, v27
""")
wave_sum_to_sgpr(25, 74)
A(f"v_mov_b32 v26, {fbits(1.0/576)}\nv_mul_f32 v26, s74, v26")
A(f"v_sub_f32 v27, v{e[0]}, v26\nv_mul_f32 v25, v27, v27")
for i in range(1, 9):
    A(f"v_sub_f32 v27, v{e[i]}, v26\nv_fmac_f32 v25, v27, v27")
rb16(26, 26)
for i in range(9): A(f"v_sub_f32 v{e[i]}, v{e[i]}, v26")
wave_sum_to_sgpr(25, 74)
A(f"v_mov_b32 v27, {fbits(1.0/576)}\nv_mul_f32 v27, s74, v27")
rb16(27, 27)
A(f"v_add_f32 v27, {fbits(1e-5)}, v27")
rb16(27, 27)
A("v_sqrt_f32 v27, v27")
rb16(27, 27)
A("v_rcp_f32 v27, v27")
for i in range(0, 8, 2): A(f"v_cvt_pk_bf16_f32 v{20+i//2}, v{e[i]}, v{e[i+1]}")
A(f"v_cvt_pk_bf16_f32 v24, v{e[8]}, v{e[8]}")
for i in range(0, 8, 2):
    A(f"v_lshlrev_b32 v{e[i]}, 16, v{20+i//2}\nv_and_b32 v{e[i+1]}, 0xffff0000, v{20+i//2}")
A(f"v_lshlrev_b32 v{e[8]}, 16, v24")
for i in range(9): A(f"v_mul_f32 v{e[i]}, v{e[i]}, v27")
for i in range(0, 8, 2): A(f"v_cvt_pk_bf16_f32 v{20+i//2}, v{e[i]}, v{e[i+1]}")
A(f"v_cvt_pk_bf16_f32 v24, v{e[8]}, v{e[8]}")
A(f"""
s_mul_i32 s74, s{sW}, {XNS}
v_add_u32 v9, s74, v9
v_add_u32 v10, s74, v10
ds_write_b64 v9, v[20:21] offset:{XN}
ds_write_b64 v9, v[22:23] offset:{XN+512}
ds_write_b16 v10, v24 offset:{XN+1024}
L_nq_noln:
""")
vTR = 13
A(f"""
s_and_b32 s74, s{sW}, 3
s_lshl_b32 s74, s74, 1
v_lshrrev_b32 v{vTR}, 1, v6
v_or_b32 v{vTR}, s74, v{vTR}
v_and_b32 v14, 2, v5
v_xor_b32 v{vTR}, v{vTR}, v14
v_and_b32 v14, 1, v4
v_lshlrev_b32 v15, 2, v14
v_xor_b32 v{vTR}, v{vTR}, v15
v_lshlrev_b32 v{vTR}, 4, v{vTR}
v_lshl_add_u32 v{vTR}, v5, 7, v{vTR}
v_and_b32 v15, 1, v6
v_lshl_add_u32 v{vTR}, v15, 3, v{vTR}
s_lshr_b32 s74, s{sW}, 2
s_lshl_b32 s74, s74, 10
s_add_u32 s74, s74, {BIG}
v_add_u32 v15, s74, v{vTR}
v_lshl_add_u32 v16, v4, 11, v15
v_lshl_add_u32 v17, v14, 11, v15
""")
A(f"""
v_mul_u32_u24 v18, {XNS}, v6
v_lshl_add_u32 v18, v4, 4, v18
s_mul_i32 s74, s{sQD}, 288
v_add_u32 v19, s74, v18
""")
A("s_waitcnt vmcnt(4) lgkmcnt(0)")
ST(1)
A("s_barrier")
vA, vB, vD = 64, 96, 28
for kp in range(5):
    a = 16 if kp < 4 else 17
    A(f"ds_read_b64_tr_b16 {vr(vA+4*kp,2)}, v{a} offset:{kp*8192}")
    A(f"ds_read_b64_tr_b16 {vr(vA+4*kp+2,2)}, v{a} offset:{kp*8192+512}")
    A(f"ds_read_b128 {vr(vB+4*kp,4)}, v19 offset:{XN+kp*64}")
get_tag(vE)
A(f"v_cmp_gt_u32 vcc, 2, v4")
for kp in range(5):
    A(f"s_waitcnt lgkmcnt({3*(4-kp)})")
    if kp == 4:
        for j in range(4): A(f"v_cndmask_b32 v{vB+16+j}, 0, v{vB+16+j}, vcc")
    c = "0" if kp == 0 else vr(vD,4)
    A(f"v_mfma_f32_16x16x32_bf16 {vr(vD,4)}, {vr(vA+4*kp,4)}, {vr(vB+4*kp,4)}, {c}")
A(f"""
s_lshl_b32 s74, s{sH}, 13
s_lshl_b32 s75, s{sQD}, 11
s_add_u32 s75, s75, s74
s_lshl_b32 s76, s{sW}, 6
s_add_u32 s75, s75, s76
s_add_u32 s75, s75, {WS_H1}
s_add_u32 s74, s74, {WS_H1}
v_lshlrev_b32 v20, 9, v6
v_lshl_add_u32 v20, v4, 4, v20
v_mov_b32 v25, s{sT}
v_mov_b32 v27, s{sT}
v_cvt_pk_bf16_f32 v24, v{vD}, v{vD+1}
v_cvt_pk_bf16_f32 v26, v{vD+2}, v{vD+3}
s_mov_b32 s78, 0x000f000f
s_mov_b32 s79, 0x000f000f
s_mov_b64 exec, s[78:79]
buffer_store_dwordx4 v[24:27], v20, {WS}, s75 offen sc1
s_mov_b64 exec, -1
""")
ST(2)
A(f"""
v_lshlrev_b32 v21, 4, v0
v_lshrrev_b32 v22, 5, v0
v_mul_u32_u24 v22, {QPS}, v22
v_and_b32 v23, 31, v0
v_lshl_add_u32 v22, v23, 3, v22
s_mov_b32 s77, 0
L_h1poll:
buffer_load_dwordx4 v[48:51], v21, {WS}, s74 offen sc1
s_add_u32 s77, s77, 1
s_waitcnt vmcnt(0)
v_xor_b32 v49, s{sT}, v49
v_xor_b32 v51, s{sT}, v51
v_or_b32 v49, v49, v51
v_cmp_ne_u32 vcc, 0, v49
s_cmp_ge_u32 s77, {POLL_MAX}
s_cbranch_scc1 L_h1done
s_cbranch_vccnz L_h1poll
L_h1done:
v_mov_b32 v49, v50
ds_write_b64 v22, v[48:49] offset:{QP}
v_and_b32 v23, 15, v{vL}
v_mul_u32_u24 v23, {QPS}, v23
v_lshl_add_u32 v23, v4, 4, v23
s_waitcnt lgkmcnt(0)
""")
ST(3)
A("s_barrier")
for kp in range(4): A(f"ds_read_b128 {vr(vB+4*kp,4)}, v23 offset:{QP+kp*64}")
for kp in range(4):
    A(f"s_waitcnt lgkmcnt({3-kp})")
    c = "0" if kp == 0 else vr(vD,4)
    A(f"v_mfma_f32_16x16x32_bf16 {vr(vD,4)}, {vr(vUK+4*kp,4)}, {vr(vB+4*kp,4)}, {c}")
A(f"""
s_lshl_b32 s74, s{sH}, 11
s_lshl_b32 s75, s{sQD}, 9
s_add_u32 s75, s75, s74
s_add_u32 s75, s75, s76
s_add_u32 s75, s75, {WS_H2}
v_lshlrev_b32 v20, 16, v6
v_lshl_add_u32 v20, v4, 4, v20
s_mov_b32 s74, {fbits(LOG2E/math.sqrt(128.0))}
""")
for r in (4, 8):
    for j in range(4): A(f"v_add_f32_dpp v{vD+j}, v{vD+j}, v{vD+j} row_ror:{r} {DPPF}")
for j in range(4): A(f"v_mul_f32 v{vD+j}, s74, v{vD+j}")
A(f"""
v_cvt_pk_bf16_f32 v24, v{vD}, v{vD+1}
v_cvt_pk_bf16_f32 v26, v{vD+2}, v{vD+3}
s_mov_b64 exec, s[78:79]
buffer_store_dwordx4 v[24:27], v20, {WS}, s75 offen sc1
s_mov_b64 exec, -1
""")
ST(4)
A(f"""
s_cmp_eq_u32 s{sQD}, 0
s_cbranch_scc1 L_T
s_cmp_lt_u32 s{sA_}, 3
s_cbranch_scc1 L_F
s_branch L_FIN
""")

def wide_voffset(v):
    A(f"v_mul_u32_u24 v{v}, 1152, v2\nv_add_u32 v{v}, v{v}, v11")
def publish_tiles(vacc, sbase_fin_stride, sent):
    A(f"""
    s_lshr_b32 s74, s{sW}, 1
    s_mul_i32 s74, s74, {sbase_fin_stride}
    s_and_b32 s75, s{sW}, 1
    s_lshl_b32 s75, s75, 8
    s_add_u32 s72, s72, s74
    s_add_u32 s72, s72, s75
    v_lshlrev_b32 v20, 6, v4
    v_lshl_add_u32 v20, v6, 4, v20
    """)
def store_tile(vacc, i, stride, sent):
    if sent:
        for j in range(4): A(f"v_min_u32 v{vacc+4*i+j}, -2, v{vacc+4*i+j}")
    A(f"s_mov_b64 exec, s[78:79]")
    A(f"buffer_store_dwordx4 {vr(vacc+4*i,4)}, v20, {WS}, s72 offen sc1")
    A(f"s_mov_b64 exec, -1")
    A(f"s_add_u32 s72, s72, {4*stride}")

A("L_T:")
srd(52, P_WUV, 512*8192)
srd(56, P_WO, 4096*1152)
A(f"""
s_lshl_b32 s71, s70, 1
s_add_u32 s71, s71, s67
s_lshl_b32 s71, s71, 1
s_add_u32 s71, s71, s69
s_lshl_b32 s71, s71, 10
s_add_u32 s71, s71, {BIG}
s_lshl_b32 s72, s70, 2
s_add_u32 s72, s72, s67
s_lshl_b32 s72, s72, 16
s_add_u32 s72, s72, s73
""")
for i in range(16):
    cb = 2*((i>>1)&1) + 8*(i&1) + 16*(i>>2)
    A(f"s_mov_b32 m0, s71\ns_add_u32 s74, s72, {cb*65536}")
    dma(12, RA, 74)
    A(f"s_add_u32 s71, s71, 8192")
wide_voffset(14)
A(f"""
s_lshr_b32 s68, s{sW}, 1
s_mul_i32 s66, s{sH}, {128*1152}
s_lshl_b32 s71, s68, 2
s_add_u32 s71, s71, s67
s_mul_i32 s72, s71, {8*1152}
s_add_u32 s72, s72, s66
s_add_u32 s72, s72, 1024
s_lshl_b32 s71, s71, 10
s_add_u32 s71, s71, {BIG+131072}
s_mov_b32 m0, s71
s_add_u32 s71, s71, 2048
""")
dma(14, RB, 72)
A(f"s_add_u32 s72, s72, {16*1152}\ns_mov_b32 m0, s71")
dma(14, RB, 72)
vUV = 32
vWO = 96
A(f"v_add_u32 v17, 0x10000, v16")
A("s_waitcnt vmcnt(2)\ns_barrier")
for kp in range(16):
    a = 16 if kp < 8 else 17
    A(f"ds_read_b64_tr_b16 {vr(vUV+4*kp,2)}, v{a} offset:{(kp&7)*8192}")
    A(f"ds_read_b64_tr_b16 {vr(vUV+4*kp+2,2)}, v{a} offset:{(kp&7)*8192+512}")
    if kp % 6 == 5: A("s_waitcnt lgkmcnt(4)")
A("s_waitcnt lgkmcnt(0)\ns_barrier")
A(f"""
s_lshl_b32 s71, s67, 3
s_add_u32 s71, s71, s68
s_lshl_b32 s71, s71, 10
s_add_u32 s71, s71, {BIG}
s_mul_i32 s72, s67, {8*1152}
s_lshl_b32 s74, s68, 7
s_add_u32 s72, s72, s74
s_add_u32 s72, s72, s66
""")
def wide_dma(n, rsrc):
    for i in range(n):
        A(f"s_mov_b32 m0, s71\ns_add_u32 s74, s72, 512")
        dma(14, rsrc, 72)
        A(f"s_add_u32 s75, s71, 4096\ns_mov_b32 m0, s75\ns_add_u32 s72, s72, {16*1152}")
        dma(14, rsrc, 74)
        A(f"s_add_u32 s71, s71, 16384")
wide_dma(8, RB)
def wide_frag_addrs(base8):
    A(f"""
    v_lshl_add_u32 v16, v4, 13, v15
    v_add_u32 v17, 0x10000, v16
    v_lshl_add_u32 v18, v4, 10, v{vTR}
    v_add_u32 v18, {base8}, v18
    """)
def wide_frag_reads(vdst, nk):
    n = 0
    for i in range(4):
        for kp in range(nk):
            a = 16 if kp < 2 else 17
            off = (kp & 1)*32768 + i*2048
            d = vdst + (i*nk + kp)*4
            A(f"ds_read_b64_tr_b16 {vr(d,2)}, v{a} offset:{off}")
            A(f"ds_read_b64_tr_b16 {vr(d+2,2)}, v{a} offset:{off+512}")
            n += 2
            if n % 12 == 0: A("s_waitcnt lgkmcnt(4)")
    A("s_waitcnt lgkmcnt(4)")
    for kp in range(nk):
        d = vdst + (4*nk + kp)*4
        A(f"ds_read_b64_tr_b16 {vr(d,2)}, v18 offset:{kp*4096}")
        A(f"ds_read_b64_tr_b16 {vr(d+2,2)}, v18 offset:{kp*4096+512}")
wide_frag_addrs(BIG+131072)
A("s_waitcnt vmcnt(0)\ns_barrier")
wide_frag_reads(vWO, 4)
ST(5)
XL, CT, CTS = 0, 8192, 320
A(f"""
v_lshlrev_b32 v21, 11, v3
v_and_b32 v22, 1, v2
v_lshl_add_u32 v22, v22, 6, v21
v_lshl_add_u32 v22, v4, 4, v22
s_lshl_b32 s74, s{sH}, 14
s_add_u32 s74, s74, {WS_H3B}
s_lshl_b32 s75, s{sW}, 7
s_add_u32 s75, s75, s74
v_lshlrev_b32 v23, 4, v0
s_lshl_b32 s72, s{sH}, 9
s_add_u32 s72, s72, {WS_H5T}
s_mov_b32 s66, s74
s_mov_b32 s68, s75
""")
publish_tiles(0, 32*512, True)
A(f"""
s_mov_b32 s77, 0
L_tpoll:
buffer_load_dwordx4 v[24:27], v22, {WS}, s68 offen sc1
buffer_load_dwordx2 v[28:29], v21, {WS}, s66 offen offset:1024 sc1
s_add_u32 s77, s77, 1
s_waitcnt vmcnt(0)
v_max3_u32 v30, v24, v25, v26
v_max3_u32 v30, v30, v27, v28
v_max_u32 v30, v30, v29
v_cmp_eq_u32 vcc, -1, v30
s_cmp_ge_u32 s77, {POLL_MAX}
s_cbranch_scc1 L_tdone
s_cbranch_vccnz L_tpoll
L_tdone:
ds_write_b128 v23, v[24:27] offset:{XL}
v_lshlrev_b32 v23, 4, v{vL}
""")
QP1 = "quad_perm:[1,0,3,2] " + DPPF
A(f"""
v_max_f32_dpp v30, v28, v28 {QP1}
v_sub_f32 v30, v28, v30
v_exp_f32 v30, v30
v_mul_f32 v31, v30, v29
v_add_f32_dpp v31, v31, v31 {QP1}
v_rcp_f32 v31, v31
v_mul_f32 v30, v30, v31
s_waitcnt lgkmcnt(0)
""")
ST(6)
A("s_barrier")
vX = 176
for i in range(8): A(f"ds_read_b128 {vr(vX+4*i,4)}, v23 offset:{XL+i*1024}")
a0, a1 = 24, 208
for i in range(8):
    A(f"s_waitcnt lgkmcnt({7-i})")
    A(f"v_mfma_f32_16x16x32_bf16 {vr(a0,4)}, {vr(vUV+8*i,4)}, {vr(vX+4*i,4)}, {'0' if i==0 else vr(a0,4)}")
    A(f"v_mfma_f32_16x16x32_bf16 {vr(a1,4)}, {vr(vUV+8*i+4,4)}, {vr(vX+4*i,4)}, {'0' if i==0 else vr(a1,4)}")
A(f"""
v_lshrrev_b32 v21, 1, v3
v_mul_u32_u24 v21, {CTS}, v21
v_lshl_add_u32 v21, v4, 3, v21
s_lshl_b32 s74, s{sW}, 5
v_add_u32 v21, s74, v21
v_mul_u32_u24 v22, {CTS}, v6
v_lshl_add_u32 v22, v4, 4, v22
""")
for j in range(4): A(f"v_add_f32_dpp v{a0+j}, v{a1+j}, v{a0+j} row_ror:8 {DPPF}")
for j in range(4): A(f"v_mul_f32 v{a0+j}, v{a0+j}, v30")
for j in range(4): A(f"v_add_f32_dpp v{a0+j}, v{a0+j}, v{a0+j} {QP1}")
A(f"""
v_cvt_pk_bf16_f32 v28, v{a0}, v{a0+1}
v_cvt_pk_bf16_f32 v29, v{a0+2}, v{a0+3}
s_mov_b32 s74, 0x00550055
s_mov_b32 s75, 0x00550055
s_mov_b64 exec, s[74:75]
ds_write_b64 v21, v[28:29] offset:{CT}
s_mov_b64 exec, -1
s_waitcnt lgkmcnt(0)
s_barrier
""")
def wide_gemm(vW, nk, vBf, vacc, stride, sent, lab):
    for i in range(5):
        if i == 4: A(f"s_cmp_ge_u32 s{sW}, 4\ns_cbranch_scc1 {lab}_a")
        for kp in range(nk):
            if i == 0: A(f"s_waitcnt lgkmcnt({nk-1-kp})")
            A(f"v_mfma_f32_16x16x32_bf16 {vr(vacc+4*i,4)}, {vr(vW+(i*nk+kp)*4,4)}, {vr(vBf+4*kp,4)}, {'0' if kp==0 else vr(vacc+4*i,4)}")
        if 1 <= i <= 3: store_tile(vacc, i-1, stride, sent)
    A(f"{lab}_a:")
    A("s_nop 7")
    store_tile(vacc, 3, stride, sent)
    A(f"s_cmp_ge_u32 s{sW}, 4\ns_cbranch_scc1 {lab}_b")
    store_tile(vacc, 4, stride, sent)
    A(f"{lab}_b:")
for kp in range(4): A(f"ds_read_b128 {vr(vX+4*kp,4)}, v22 offset:{CT+kp*64}")
wide_gemm(vWO, 4, vX, 212, 32*512, True, "L_tg")
ST(7)
finish()

A("L_F:")
sU = 66
A(f"""
s_mul_i32 s{sU}, s{sX}, 9
s_mul_i32 s68, s{sA_}, 3
s_add_u32 s{sU}, s{sU}, s68
s_add_u32 s{sU}, s{sU}, s{sQD}
s_sub_u32 s{sU}, s{sU}, 1
s_cmp_eq_u32 s69, 0
s_cselect_b32 s52, s{P_WG}, s{P_WU}
s_cselect_b32 s53, s{P_WG+1}, s{P_WU+1}
s_mov_b32 s54, {576*9216}
s_mov_b32 s55, 0x20000
""")
srd(56, P_WD, 4608*1152)
A(f"""
s_lshl_b32 s68, s67, 1
s_lshl_b32 s71, s69, 2
s_or_b32 s68, s68, s71
v_bfe_u32 v14, v2, 1, 1
v_or_b32 v14, s68, v14
v_xor_b32 v14, v14, v3
v_lshlrev_b32 v14, 4, v14
v_mul_u32_u24 v12, 9216, v2
v_add_u32 v12, v12, v14
s_lshl_b32 s71, s70, 1
s_add_u32 s71, s71, s67
s_mul_i32 s72, s71, {8*9216}
s_lshl_b32 s74, s{sU}, 7
s_add_u32 s72, s72, s74
s_lshl_b32 s71, s71, 1
s_add_u32 s71, s71, s69
s_lshl_b32 s71, s71, 10
s_add_u32 s71, s71, {BIG}
""")
for i in range(18):
    A(f"s_mov_b32 m0, s71\ns_add_u32 s71, s71, 8192")
    dma(12, RA, 72)
    A(f"s_add_u32 s72, s72, {32*9216}")
vXN = 32
for kp in range(18):
    A(f"ds_read_b128 {vr(vXN+4*kp,4)}, v18 offset:{XN+kp*64}")
    if kp == 11: A("s_waitcnt lgkmcnt(4)")
A(f"""
v_lshrrev_b32 v19, 1, v6
v_lshrrev_b32 v21, 1, v5
v_and_b32 v22, 1, v4
v_lshl_or_b32 v21, v22, 1, v21
v_lshl_or_b32 v21, v19, 2, v21
v_xor_b32 v21, s{sW}, v21
v_lshlrev_b32 v21, 4, v21
v_lshl_add_u32 v21, v5, 7, v21
v_and_b32 v22, 1, v6
v_lshl_add_u32 v21, v22, 3, v21
v_lshl_add_u32 v21, v19, 10, v21
v_lshl_add_u32 v21, v4, 11, v21
v_add_u32 v21, {BIG}, v21
v_add_u32 v22, {8*8192}, v21
""")
wide_voffset(14)
vG = 104
def gu_half(h):
    for kp in range(9):
        a, off = (21, kp*8192) if kp < 8 else (22, 0)
        A(f"ds_read_b64_tr_b16 {vr(vG+4*kp,2)}, v{a} offset:{off}")
        A(f"ds_read_b64_tr_b16 {vr(vG+4*kp+2,2)}, v{a} offset:{off+512}")
        if kp == 5: A("s_waitcnt lgkmcnt(6)")
    for kp in range(9):
        A(f"s_waitcnt lgkmcnt({min(15,2*(8-kp))})")
        c = "0" if (h == 0 and kp == 0) else vr(vD,4)
        A(f"v_mfma_f32_16x16x32_bf16 {vr(vD,4)}, {vr(vG+4*kp,4)}, {vr(vXN+4*(9*h+kp),4)}, {c}")
A("s_waitcnt vmcnt(9) lgkmcnt(0)\ns_barrier")
gu_half(0)
A("s_barrier")
A(f"""
s_lshr_b32 s68, s{sW}, 1
s_mul_i32 s73, s{sU}, {64*1152}
s_lshl_b32 s71, s67, 3
s_add_u32 s71, s71, s68
s_lshl_b32 s71, s71, 10
s_add_u32 s71, s71, {BIG}
s_mul_i32 s72, s67, {8*1152}
s_lshl_b32 s74, s68, 7
s_add_u32 s72, s72, s74
s_add_u32 s72, s72, s73
""")
wide_dma(4, RB)
A(f"""
s_mul_i32 s72, s{sW}, {8*1152}
s_add_u32 s72, s72, s73
s_add_u32 s72, s72, 1024
s_lshl_b32 s71, s{sW}, 10
s_add_u32 s71, s71, {BIG+65536}
s_mov_b32 m0, s71
""")
dma(14, RB, 72)
A(f"v_add_u32 v21, {9*8192}, v21\nv_add_u32 v22, {9*8192}, v22")
A("s_waitcnt vmcnt(9)\ns_barrier")
gu_half(1)
wide_frag_addrs(BIG+65536)
A(f"""
s_lshl_b32 s72, s{sU}, 9
s_add_u32 s72, s72, {WS_H5F}
""")
publish_tiles(0, 72*512, False)
for j in range(4): A(f"v_mov_b32 v{24+j}, v{vD+j}")
for j in range(4): A(f"v_permlane32_swap_b32 v{vD+j}, v{24+j}")
C1 = -2.0*math.sqrt(2.0/math.pi)*LOG2E
A(f"s_mov_b32 s74, {fbits(0.044715)}\ns_mov_b32 s75, {fbits(C1)}")
for j in range(4):
    g, u, t = vD+j, 24+j, 104+j
    rb16(g, g); rb16(u, u)
    A(f"v_mul_f32 v{t}, v{g}, v{g}\nv_fma_f32 v{t}, v{t}, s74, 1.0\nv_mul_f32 v{t}, v{t}, v{g}\nv_mul_f32 v{t}, s75, v{t}")
    A(f"v_exp_f32 v{t}, v{t}\nv_add_f32 v{t}, 1.0, v{t}\nv_rcp_f32 v{t}, v{t}\nv_mul_f32 v{g}, v{g}, v{t}")
    rb16(g, g)
    A(f"v_mul_f32 v{g}, v{g}, v{u}")
A(f"""
v_cvt_pk_bf16_f32 v24, v{vD}, v{vD+1}
v_cvt_pk_bf16_f32 v25, v{vD+2}, v{vD+3}
v_mul_u32_u24 v22, {HBS}, v6
v_lshl_add_u32 v21, v4, 3, v22
s_lshl_b32 s74, s{sW}, 4
v_add_u32 v21, s74, v21
v_lshl_add_u32 v22, v4, 4, v22
s_mov_b64 exec, 0x000f000f
ds_write_b64 v21, v[24:25] offset:{HB}
s_mov_b64 exec, -1
s_waitcnt vmcnt(0) lgkmcnt(0)
""")
ST(5)
A("s_barrier")
wide_frag_reads(32, 2)
for kp in range(2): A(f"ds_read_b128 {vr(104+4*kp,4)}, v22 offset:{HB+kp*64}")
wide_gemm(32, 2, 104, 212, 72*512, False, "L_fg")
A(f"""
s_waitcnt vmcnt(0)
s_barrier
s_cmp_lg_u32 s{sW}, 0
s_cbranch_scc1 L_end
s_lshl_b32 s74, s{sU}, 7
s_add_u32 s74, s74, {WS_FF}
v_mov_b32 v24, s{sT}
v_lshlrev_b32 v21, 2, v{vL}
s_mov_b32 exec_hi, 0
buffer_store_dword v24, v21, {WS}, s74 offen sc1
s_mov_b64 exec, -1
""")
ST(7)
finish()

A("L_FIN:")
sF = 66
RED = 16384
A(f"""
s_mul_i32 s{sF}, s{sX}, 3
s_add_u32 s{sF}, s{sF}, s{sQD}
s_sub_u32 s{sF}, s{sF}, 1
s_cmp_ge_u32 s{sF}, 18
s_cbranch_scc1 L_end
""")
srd(56, P_OUT, 4608)
A(f"""
v_mul_u32_u24 v12, 1152, v6
v_bfe_u32 v14, v{vL}, 2, 3
v_lshl_add_u32 v12, v14, 3, v12
s_lshl_b32 s68, s{sF}, 6
buffer_load_dwordx2 v[60:61], v12, {RA}, s68 offen
v_lshlrev_b32 v21, 7, v{vL}
v_min_u32 v22, {7*128}, v21
s_mov_b32 s77, 0
s_mov_b32 s74, {WS_FF}
s_mov_b32 s75, {WS_FF+64*128}
s_cmp_lg_u32 s{sW}, 0
s_cbranch_scc1 L_ffdone
L_ffpoll:
buffer_load_dword v24, v21, {WS}, s74 offen sc1
buffer_load_dword v25, v22, {WS}, s75 offen sc1
s_add_u32 s77, s77, 1
s_waitcnt vmcnt(0)
v_xor_b32 v24, s{sT}, v24
v_xor_b32 v25, s{sT}, v25
v_or_b32 v24, v24, v25
v_cmp_ne_u32 vcc, 0, v24
s_cmp_ge_u32 s77, {POLL_MAX}
s_cbranch_scc1 L_ffdone
s_cbranch_vccz L_ffdone
s_sleep 4
s_branch L_ffpoll
L_ffdone:
s_barrier
""")
ST(5)
A(f"""
v_lshlrev_b32 v21, 4, v0
s_mul_i32 s74, s{sF}, {72*512}
s_add_u32 s74, s74, {WS_H5F}
v_mov_b32 v48, 0
v_mov_b32 v49, 0
v_mov_b32 v50, 0
v_mov_b32 v51, 0
""")
for i in range(4):
    A(f"buffer_load_dwordx4 {vr(32+4*i,4)}, v21, {WS}, s74 offen sc1\ns_add_u32 s74, s74, 8192")
A(f"""
s_cmp_ge_u32 s{sW}, 4
s_cbranch_scc1 L_fin_f4
buffer_load_dwordx4 v[48:51], v21, {WS}, s74 offen sc1
L_fin_f4:
s_waitcnt vmcnt(0)
""")
for j in range(4):
    A(f"v_add_f32 v{32+j}, v{32+j}, v{36+j}\nv_add_f32 v{40+j}, v{40+j}, v{44+j}\nv_add_f32 v{32+j}, v{32+j}, v{48+j}\nv_add_f32 v{32+j}, v{32+j}, v{40+j}")
A(f"ds_write_b128 v21, v[32:35] offset:{RED}")
A(f"""
s_lshl_b32 s74, s{sF}, 14
s_add_u32 s74, s74, {WS_H5T}
s_add_u32 s75, s74, 8192
s_mov_b32 s77, 0
v_and_b32 v23, 31, v{vL}
v_lshlrev_b32 v23, 4, v23
v_lshrrev_b32 v22, 5, v{vL}
v_lshl_add_u32 v23, v22, 13, v23
L_finpoll:
buffer_load_dwordx4 v[36:39], v21, {WS}, s74 offen sc1
buffer_load_dwordx4 v[40:43], v21, {WS}, s75 offen sc1
s_add_u32 s77, s77, 1
s_waitcnt vmcnt(0)
v_max3_u32 v30, v36, v37, v38
v_max3_u32 v30, v30, v39, v40
v_max3_u32 v30, v30, v41, v42
v_max_u32 v30, v30, v43
v_cmp_eq_u32 vcc, -1, v30
s_cmp_ge_u32 s77, {POLL_MAX}
s_cbranch_scc1 L_findone
s_cbranch_vccnz L_finpoll
L_findone:
""")
for j in range(4): A(f"v_add_f32 v{36+j}, v{36+j}, v{40+j}")
A(f"ds_write_b128 v21, v[36:39] offset:{RED+8192}\ns_waitcnt lgkmcnt(0)")
ST(6)
A(f"""
s_barrier
s_cmp_lg_u32 s{sW}, 0
s_cbranch_scc1 L_end
""")
for i in range(16):
    A(f"ds_read_b128 {vr(64+4*i,4)}, v23 offset:{RED+i*512}")
    if i == 11: A("s_waitcnt lgkmcnt(4)")
A("s_waitcnt lgkmcnt(0)")
for step in (8, 4, 2, 1):
    for i in range(step):
        for j in range(4): A(f"v_add_f32 v{64+4*i+j}, v{64+4*i+j}, v{64+4*(i+step)+j}")
for j in range(4): A(f"v_mov_b32 v{68+j}, v{64+j}")
for j in range(4): A(f"v_permlane32_swap_b32 v{64+j}, v{68+j}")
A(f"s_mov_b32 s75, {fbits(-LOG2E)}")
A("v_lshlrev_b32 v72, 16, v60\nv_and_b32 v73, 0xffff0000, v60\nv_lshlrev_b32 v74, 16, v61\nv_and_b32 v75, 0xffff0000, v61")
for j in range(4):
    y, s, t = 64+j, 68+j, 76+j
    rb16(y, y); rb16(s, s)
    A(f"v_mul_f32 v{t}, s75, v{y}\nv_exp_f32 v{t}, v{t}\nv_add_f32 v{t}, 1.0, v{t}\nv_rcp_f32 v{t}, v{t}\nv_mul_f32 v{y}, v{y}, v{t}")
    rb16(y, y)
    A(f"v_mul_f32 v{y}, v{y}, v{s}")
    rb16(y, y)
    A(f"v_add_f32 v{y}, v{y}, v{72+j}")
A(f"""
v_cvt_pk_bf16_f32 v64, v64, v65
v_cvt_pk_bf16_f32 v65, v66, v67
s_mov_b32 exec_hi, 0
buffer_store_dwordx2 v[64:65], v12, {RB}, s68 offen
s_cmp_lg_u32 s{sF}, 0
s_cbranch_scc1 L_fin_noep
s_mov_b64 exec, 1
v_mov_b32 v66, s{sE}
buffer_store_dword v66, v8, {WS}, 0 offen sc1
L_fin_noep:
s_mov_b64 exec, -1
""")
ST(7)
finish()

QA = 131072
MX, LS, PB = QA, QA+1024, QA+2048
A("L_att:")
A(f"v_mov_b32 v8, 0\nbuffer_load_dword v{vE}, v8, {WS}, 0 offen sc1")
A(f"s_cmp_ge_u32 s{sW}, 4\ns_cbranch_scc1 L_att_hi")
srd(52, P_CKV, 4*4096*1024)
A(f"""
v_and_b32 v9, 2, v2
v_lshlrev_b32 v9, 1, v9
v_lshrrev_b32 v10, 2, v2
v_or_b32 v9, v9, v10
v_xor_b32 v9, v9, v3
v_lshlrev_b32 v9, 4, v9
v_lshl_add_u32 v9, v2, 10, v9
v_xor_b32 v10, 32, v9
s_lshl_b32 s66, s{sX}, 4
s_add_u32 s66, s66, s{sK}
s_lshl_b32 s66, s66, 17
s_lshl_b32 s67, s{sW}, 15
s_add_u32 s66, s66, s67
""")
for lb in range(8):
    for rbi in range(4):
        A(f"s_add_u32 s68, s67, {(rbi*8+lb)*1024}\ns_mov_b32 m0, s68\ns_add_u32 s69, s66, {rbi*8192+lb*128}")
        dma(9 + (rbi & 1), RA, 69)
A(f"""
v_and_b32 v11, 2, v{vL}
v_lshlrev_b32 v11, 1, v11
v_or_b32 v11, v11, v5
v_lshrrev_b32 v12, 5, v{vL}
v_xor_b32 v11, v11, v12
v_lshlrev_b32 v11, 4, v11
v_lshl_add_u32 v11, v3, 7, v11
v_and_b32 v13, 3, v2
v_lshl_add_u32 v11, v13, 13, v11
v_add_u32 v16, s67, v11
v_add_u32 v20, {QA}, v11
""")
for t in range(1, 4):
    A(f"v_xor_b32 v{16+t}, {t<<5}, v16\nv_xor_b32 v{20+t}, {t<<5}, v20")
ST(1)
A("s_barrier")
ST(2)
vS = 32; vAf = 64; vBf = 96
def qk_reads(lb):
    s = lb & 1
    A(f"s_waitcnt vmcnt({28-4*lb})")
    for t in range(4):
        A(f"ds_read_b128 {vr(vAf+16*s+4*t,4)}, v{16+t} offset:{lb*1024}")
        A(f"ds_read_b128 {vr(vBf+16*s+4*t,4)}, v{20+t} offset:{lb*1024}")
qk_reads(0)
for lb in range(8):
    s = lb & 1
    if lb < 7:
        A("s_waitcnt lgkmcnt(0)")
        qk_reads(lb+1)
        for t in range(4):
            A(f"v_mfma_f32_32x32x16_bf16 {vr(vS,16)}, {vr(vAf+16*s+4*t,4)}, {vr(vBf+16*s+4*t,4)}, {'0' if (lb==0 and t==0) else vr(vS,16)}")
    else:
        for t in range(4):
            A(f"s_waitcnt lgkmcnt({6-2*t})")
            A(f"v_mfma_f32_32x32x16_bf16 {vr(vS,16)}, {vr(vAf+16*s+4*t,4)}, {vr(vBf+16*s+4*t,4)}, {vr(vS,16)}")
ST(3)
A("s_barrier")
A(f"""
v_and_b32 v13, 31, v{vL}
v_lshlrev_b32 v13, 5, v13
v_add_u32 v13, {QA}, v13
s_lshl_b32 s68, s{sW}, 3
v_lshl_add_u32 v14, v12, 2, v13
v_add_u32 v14, s68, v14
s_lshl_b32 s68, s{sW}, 11
s_add_u32 s68, s68, {PB}
v_lshlrev_b32 v15, 4, v{vL}
v_add_u32 v15, s68, v15
""")
A(f"v_max3_f32 v24, v{vS}, v{vS+1}, v{vS+2}")
for i in range(3, 15, 2): A(f"v_max3_f32 v24, v24, v{vS+i}, v{vS+i+1}")
A(f"v_max_f32 v24, v24, v{vS+15}")
A(f"ds_write_b32 v14, v24\ns_waitcnt lgkmcnt(0)\ns_barrier")
A(f"""
ds_read_b128 v[24:27], v13
ds_read_b128 v[28:31], v13 offset:16
s_waitcnt lgkmcnt(0)
v_max3_f32 v24, v24, v25, v26
v_max3_f32 v28, v28, v29, v30
v_max3_f32 v24, v24, v27, v31
v_max_f32 v24, v24, v28
""")
for i in range(16): A(f"v_sub_f32 v{vS+i}, v{vS+i}, v24")
for i in range(16): A(f"v_exp_f32 v{vS+i}, v{vS+i}")
for i in range(8): A(f"v_cvt_pk_bf16_f32 v{48+i}, v{vS+2*i}, v{vS+2*i+1}")
A(f"ds_write_b128 v15, v[48:51]\nds_write_b128 v15, v[52:55] offset:1024")
for step in (8, 4, 2, 1):
    for i in range(step): A(f"v_add_f32 v{vS+i}, v{vS+i}, v{vS+i+step}")
A(f"ds_write_b32 v14, v{vS} offset:1024\ns_waitcnt lgkmcnt(0)")
ST(4)
A("s_barrier")
get_tag(vE)
A("s_branch L_red")

A("L_att_hi:")
A(f"""
s_sub_u32 s66, s{sW}, 4
s_lshr_b32 s67, s{sX}, 1
s_lshl_b32 s67, s67, 16
s_lshl_b32 s68, s66, 14
s_add_u32 s67, s67, s68
s_add_u32 s67, s67, {WS_H2}
v_lshlrev_b32 v9, 4, v{vL}
""")
A(f"""
v_bfe_u32 v10, v{vL}, 1, 3
s_and_b32 s68, s66, 1
s_lshl_b32 s68, s68, 1
v_xor_b32 v10, s68, v10
v_lshlrev_b32 v10, 4, v10
v_and_b32 v11, 1, v{vL}
v_lshl_add_u32 v10, v11, 3, v10
v_lshl_add_u32 v10, v4, 10, v10
s_lshl_b32 s68, s66, 13
s_add_u32 s68, s68, {QA}
v_add_u32 v16, s68, v10
v_xor_b32 v17, 64, v16
v_xor_b32 v18, 16, v16
v_xor_b32 v19, 80, v16
""")
A(f"""
v_lshrrev_b32 v12, 5, v{vL}
v_and_b32 v13, 1, v4
v_lshrrev_b32 v14, 1, v6
v_lshl_or_b32 v13, v13, 1, v14
v_and_b32 v14, 2, v5
v_lshl_or_b32 v14, v14, 1, v12
v_xor_b32 v13, v13, v14
v_lshlrev_b32 v13, 4, v13
v_lshl_add_u32 v13, v5, 7, v13
v_lshl_add_u32 v13, v12, 9, v13
v_and_b32 v14, 1, v6
v_lshl_add_u32 v13, v14, 3, v13
s_lshl_b32 s68, s66, 11
v_add_u32 v20, s68, v13
v_xor_b32 v21, 32, v20
v_xor_b32 v22, 64, v20
v_xor_b32 v23, 96, v20
""")
for j in range(4): A(f"v_add_u32 v{24+j}, 0x10000, v{20+j}")
A("s_waitcnt vmcnt(0)")
get_tag(vE)
vQ = 32
A("s_mov_b32 s77, 0\nL_h2poll:")
for i in range(16):
    if i % 4 == 0: A(f"s_add_u32 s69, s67, {i*1024}")
    A(f"buffer_load_dwordx4 {vr(vQ+4*i,4)}, v9, {WS}, s69 offen offset:{(i%4)*1024} sc1")
A("s_add_u32 s77, s77, 1\nv_mov_b32 v28, 0")
for i in range(16):
    A(f"s_waitcnt vmcnt({15-i})")
    A(f"v_xor_b32 v{vQ+4*i+1}, s{sT}, v{vQ+4*i+1}\nv_xor_b32 v{vQ+4*i+3}, s{sT}, v{vQ+4*i+3}\nv_or3_b32 v28, v28, v{vQ+4*i+1}, v{vQ+4*i+3}")
    hh = i >> 1
    var = ((hh >> 1) & 1) + 2*((hh >> 2) & 1)
    A(f"v_mov_b32 v{vQ+4*i+1}, v{vQ+4*i+2}")
    A(f"ds_write_b64 v{16+var}, {vr(vQ+4*i,2)} offset:{(i&1)*4096 + hh*128}")
A(f"""
v_cmp_ne_u32 vcc, 0, v28
s_waitcnt lgkmcnt(0)
s_cmp_ge_u32 s77, {POLL_MAX}
s_cbranch_scc1 L_h2done
s_cbranch_vccz L_h2done
s_sleep 8
s_branch L_h2poll
L_h2done:
""")
ST(1)
A("s_barrier")
A("s_barrier")
ST(2)
vV = 96
vP = 224
vO = 32
def pv_reads(f):
    for tau in range(4):
        for jj in range(2):
            a = (20 if f < 4 else 24) + jj + 2*(tau & 1)
            off = (f & 3)*16384 + jj*8192 + (tau >> 1)*1024
            A(f"ds_read_b64_tr_b16 {vr(vV+(f*4+tau)*4+2*jj,2)}, v{a} offset:{off}")
pv_reads(0)
A("s_barrier")
for f in range(1, 8):
    A("s_waitcnt lgkmcnt(6)")
    pv_reads(f)
A(f"""
v_add_u32 v10, {PB}, v9
v_and_b32 v13, 31, v{vL}
v_lshlrev_b32 v14, 5, v13
v_add_u32 v14, {QA}, v14
v_lshlrev_b32 v13, 4, v13
v_lshl_add_u32 v11, v12, 16, v13
s_lshl_b32 s68, s{sX}, 19
s_lshl_b32 s69, s{sK}, 11
s_add_u32 s68, s68, s69
s_lshl_b32 s70, s66, 9
s_add_u32 s68, s68, s70
s_add_u32 s68, s68, {WS_H3A}
s_lshl_b32 s71, s{sX}, 15
s_add_u32 s71, s71, s69
s_add_u32 s71, s71, s70
s_add_u32 s71, s71, {WS_FLG}
s_waitcnt lgkmcnt(0)
s_barrier
""")
ST(3)
for f in range(8): A(f"ds_read_b128 {vr(vP+4*f,4)}, v10 offset:{f*1024}")
A(f"ds_read_b128 v[16:19], v14\nds_read_b128 v[20:23], v14 offset:16\nds_read_b128 v[24:27], v14 offset:1024\nds_read_b128 v[28:31], v14 offset:1040")
for f in range(8):
    A(f"s_waitcnt lgkmcnt({11-f})")
    for tau in range(4):
        A(f"v_mfma_f32_32x32x16_bf16 {vr(vO+16*tau,16)}, {vr(vP+4*f,4)}, {vr(vV+(f*4+tau)*4,4)}, {'0' if f==0 else vr(vO+16*tau,16)}")
A(f"""
s_waitcnt lgkmcnt(0)
v_max3_f32 v16, v16, v17, v18
v_max3_f32 v20, v20, v21, v22
v_max3_f32 v16, v16, v19, v23
v_max_f32 v16, v16, v20
v_add_f32 v24, v24, v25
v_add_f32 v26, v26, v27
v_add_f32 v28, v28, v29
v_add_f32 v30, v30, v31
v_add_f32 v24, v24, v26
v_add_f32 v28, v28, v30
v_add_f32 v18, v24, v28
v_mov_b32 v17, s{sT}
v_mov_b32 v19, s{sT}
""")
ST(4)
STF = "sc1"
for n, i in enumerate(range(0, 16, 2)):
    d = vV + 4*n
    A(f"v_cvt_pk_bf16_f32 v{d}, v{vO+i}, v{vO+16+i}\nv_cvt_pk_bf16_f32 v{d+1}, v{vO+32+i}, v{vO+48+i}")
    A(f"v_cvt_pk_bf16_f32 v{d+2}, v{vO+i+1}, v{vO+16+i+1}\nv_cvt_pk_bf16_f32 v{d+3}, v{vO+32+i+1}, v{vO+48+i+1}")
    A(f"s_add_u32 s69, s68, {((i&3)//2 + 4*(i>>2))*32768}")
    A(f"buffer_store_dwordx4 {vr(d,4)}, v11, {WS}, s69 offen {STF}")
A(f"""
s_waitcnt vmcnt(0)
s_mov_b32 exec_hi, 0
buffer_store_dwordx4 v[16:19], v13, {WS}, s71 offen {STF}
s_mov_b64 exec, -1
""")
ST(5)

A("L_red:")
A(f"""
s_lshr_b32 s66, s{sW}, 1
s_lshl_b32 s67, s{sX}, 15
s_lshl_b32 s68, s66, 9
s_add_u32 s67, s67, s68
s_lshl_b32 s69, s{sK}, 5
s_add_u32 s67, s67, s69
s_add_u32 s67, s67, {WS_FLG}
v_and_b32 v9, 15, v{vL}
v_and_b32 v10, 1, v4
v_lshlrev_b32 v11, 11, v9
v_lshl_add_u32 v11, v10, 4, v11
s_lshl_b32 s69, s{sX}, 4
s_add_u32 s69, s69, s{sK}
s_lshl_b32 s69, s69, 15
s_lshl_b32 s70, s{sW}, 8
s_add_u32 s69, s69, s70
s_add_u32 s69, s69, {WS_H3A}
v_lshlrev_b32 v12, 11, v4
v_lshl_add_u32 v12, v9, 4, v12
""")
A(f"""
v_and_b32 v13, 1, v3
v_lshlrev_b32 v13, 4, v13
v_mov_b32 v14, 0xffff
v_lshlrev_b32 v14, v13, v14
v_lshrrev_b32 v13, 1, v3
""")
for d in range(4):
    A(f"v_cmp_eq_u32 vcc, {d}, v13\nv_cndmask_b32 v{24+d}, 0, v14, vcc")
A(f"""
v_lshrrev_b32 v13, 2, v3
v_lshl_add_u32 v15, v13, 4, v4
v_lshlrev_b32 v15, 2, v15
""")
A(f"""
v_lshlrev_b32 v28, 14, v13
v_lshl_add_u32 v28, v6, 5, v28
v_lshl_add_u32 v28, v4, 3, v28
s_lshl_b32 s70, s{sK}, 15
s_lshl_b32 s71, s{sX}, 11
s_add_u32 s70, s70, s71
s_add_u32 s70, s70, {WS_H3B}
s_lshl_b32 s71, s{sW}, 7
s_add_u32 s71, s71, s70
v_lshlrev_b32 v29, 14, v10
v_lshl_add_u32 v29, v9, 3, v29
s_mov_b32 s77, 0
L_rpoll:
buffer_load_dwordx4 v[32:35], v11, {WS}, s67 offen sc1
s_add_u32 s77, s77, 1
s_waitcnt vmcnt(0)
v_xor_b32 v33, s{sT}, v33
v_xor_b32 v35, s{sT}, v35
v_or_b32 v33, v33, v35
v_cmp_ne_u32 vcc, 0, v33
s_cmp_ge_u32 s77, {POLL_MAX}
s_cbranch_scc1 L_rdone
s_cbranch_vccnz L_rpoll
L_rdone:
""")
ST(6)
for i in range(4):
    A(f"buffer_load_dwordx4 {vr(48+4*i,4)}, v12, {WS}, s69 offen sc1")
    if i < 3: A("s_add_u32 s69, s69, 8192")
A("v_mov_b32 v36, v32")
for r in (8, 4, 2, 1): A(f"v_max_f32_dpp v36, v36, v36 row_ror:{r} {DPPF}")
A("v_sub_f32 v33, v32, v36\nv_exp_f32 v33, v33\nv_mul_f32 v37, v33, v34")
for i in range(4): A(f"ds_bpermute_b32 v{40+i}, v15, v33 offset:{16*i}")
for r in (8, 4, 2, 1): A(f"v_add_f32_dpp v37, v37, v37 row_ror:{r} {DPPF}")
A(f"v_min_u32 v36, -2, v36\nv_min_u32 v37, -2, v37")
A(f"v_cmp_gt_u32 vcc, 8, v9\ns_waitcnt lgkmcnt(0)")
for i in range(4):
    w, hi, lo = 40+i, 44, 45
    A(f"v_cvt_pk_bf16_f32 v{hi}, v{w}, v{w}\nv_and_b32 v{lo}, 0xffff0000, v{hi}\nv_sub_f32 v{lo}, v{w}, v{lo}\nv_cvt_pk_bf16_f32 v{lo}, v{lo}, v{lo}")
    A(f"v_cndmask_b32 v{hi}, v{lo}, v{hi}, vcc")
    for d in range(4): A(f"v_and_b32 v{64+4*i+d}, v{hi}, v{24+d}")
A(f"""
s_cmp_lg_u32 s{sW}, 0
s_cbranch_scc1 L_rnostat
s_mov_b32 exec_hi, 0
buffer_store_dwordx2 v[36:37], v29, {WS}, s70 offen offset:1024 sc1
s_mov_b64 exec, -1
s_waitcnt vmcnt(1)
s_branch L_rgo
L_rnostat:
s_waitcnt vmcnt(0)
L_rgo:
""")
for i in range(4):
    A(f"v_mfma_f32_16x16x32_bf16 v[40:43], {vr(48+4*i,4)}, {vr(64+4*i,4)}, {'0' if i==0 else 'v[40:43]'}")
for j in range(4): A(f"v_add_f32_dpp v{40+j}, v{40+j}, v{40+j} row_ror:8 {DPPF}")
A(f"""
v_cvt_pk_bf16_f32 v44, v40, v41
v_cvt_pk_bf16_f32 v45, v42, v43
v_min_u32 v44, -2, v44
v_min_u32 v45, -2, v45
s_mov_b32 s74, 0x00ff00ff
s_mov_b32 s75, 0x00ff00ff
s_mov_b64 exec, s[74:75]
buffer_store_dwordx2 v[44:45], v28, {WS}, s71 offen sc1
s_mov_b64 exec, -1
""")
ST(7)

A("L_end:")
if OPT['stamps']:
    A("s_waitcnt vmcnt(0)")
    ST(8)
    A(f"""
    s_waitcnt lgkmcnt(0)
    s_lshl_b32 s66, s2, 3
    s_add_u32 s66, s66, s{sW}
    s_lshl_b32 s66, s66, 6
    s_add_u32 s66, s66, {WS_ST}
    s_getreg_b32 s67, hwreg(HW_REG_XCC_ID)
    s_mov_b64 exec, 1
    v_mov_b32 v8, 0
    """)
    for i in range(3):
        A("\n".join(f"v_mov_b32 v{12+j}, s{80+2*(3*i+j)}" for j in range(3)))
        A(f"v_mov_b32 v15, {'s67' if i==0 else 's77'}")
        A(f"buffer_store_dwordx4 v[12:15], v8, {WS}, s66 offen offset:{16*i}")
if OPT['hold']:
    if OPT['holdwg'] >= 0: A(f"s_cmp_lg_u32 s2, {OPT['holdwg']}\ns_cbranch_scc1 L_exit")
    A(f"""
    L_hold:
    s_memrealtime s[66:67]
    s_waitcnt lgkmcnt(0)
    s_sub_u32 s68, s66, s80
    s_cmp_lt_u32 s68, {OPT['hold']}
    s_cbranch_scc1 L_hold
    """)
if OPT['dbg']:
    sel = [(0,4,(0,1,5,8)), (16*8,0,(1,4,5,6)), (29*8,0,(0,4,5,8)), (17*8,0,(1,5,7,8))]
    srd(52, P_DBG, 256)
    for n,(wg,wv,st) in enumerate(sel):
        lab = A.label("L_dbg")
        A(f"s_cmp_lg_u32 s2, {wg}\ns_cbranch_scc1 {lab}\ns_cmp_lg_u32 s{sW}, {wv}\ns_cbranch_scc1 {lab}")
        A("\n".join(f"v_mov_b32 v{12+j}, s{80+2*st[j]}" for j in range(4)))
        A(f"buffer_store_dwordx4 v[12:15], v8, {RA}, 0 offen offset:{16*n}")
        A(f"{lab}:")
A("L_exit:\ns_endpgm")
A.raw(f""".section .rodata,"a"
.p2align 6
.amdhsa_kernel {NAME}_kernel
  .amdhsa_next_free_vgpr 256
  .amdhsa_next_free_sgpr 102
  .amdhsa_accum_offset 256
  .amdhsa_group_segment_fixed_size 0
  .amdhsa_kernarg_size 104
  .amdhsa_user_sgpr_count 2
  .amdhsa_user_sgpr_kernarg_segment_ptr 1
  .amdhsa_system_sgpr_workgroup_id_x 1
  .amdhsa_float_denorm_mode_32 3
.end_amdhsa_kernel""")
sys.stdout.write(A.text())
sys.stderr.write(f"instructions {A.count} nops {A.nops}\n")
```

```python
import sys, math, struct
from asmx import Asm, NAME

OPT = dict(stamps=0, local=1, hold=0, pf=1, exp=0, gbar=8, rsleep=2, c3=1, fslow=0, tslow=0, wb=0, gap=4, prio=1, adel=1, ukw=8, psl=8, pearly=0, promo=1)
for a in sys.argv[1:]:
    k, v = a.split("="); assert k in OPT, k; OPT[k] = int(v)

WS_PF  = 0x010000
WS_FF  = 0x020000
WS_XT  = 0x030000
WS_H1  = 0x040000
WS_H1L = 0x0C0000
WS_H2  = 0x080000
WS_FLG = 0x100000
WS_H3B = 0x140000
WS_H5T = 0x200000
WS_H5F = 0x290000
WS_H3A = 0x400000
WS_ST  = 0x800000
POLL_MAX = 60000 if not OPT['exp'] else 40

P_X, P_CKV, P_WQ, P_WUK, P_WUV, P_WO, P_BX, P_WG, P_WU, P_WD, P_OUT, P_DBG = [16+2*i for i in range(12)]
sSL, sF = 40, 41
sE, sT, sW, sX, sK, sH = 42, 43, 44, 45, 46, 47
WS = "s[48:51]"; RA = "s[52:55]"; RB = "s[56:59]"; RC = "s[60:63]"
sQD, sA_ = 64, 65
A = Asm()
NQPART = [True]

def srd(base, ptr, size):
    A(f"s_mov_b32 s{base}, s{ptr}\ns_mov_b32 s{base+1}, s{ptr+1}\ns_mov_b32 s{base+2}, {size}\ns_mov_b32 s{base+3}, 0x20000")
def ST(i, mode=1):
    if OPT['stamps'] == mode or (OPT['stamps'] and i in (0, 8)): A(f"s_memrealtime s[{80+2*i}:{81+2*i}]")
def vr(a, n): return f"v[{a}:{a+n-1}]"
def dma(voff, rsrc, soff, flags="nt"):
    A(f"buffer_load_dwordx4 v{voff}, {rsrc}, s{soff} offen {flags} lds")
def finish(): A("s_branch L_end")
def get_tag():
    A(f"s_add_u32 s{sE}, s{sE}, 1\ns_mul_i32 s{sT}, s{sE}, 0x9E3779B1\ns_xor_b32 s{sT}, s{sT}, 0x5BD1E995")
def rb16(dst, src):
    A(f"v_cvt_pk_bf16_f32 v{dst}, v{src}, v{src}\nv_lshlrev_b32 v{dst}, 16, v{dst}")
DPPF = "row_mask:0xf bank_mask:0xf"
QP1 = "quad_perm:[1,0,3,2] " + DPPF
def wave_sum_to_sgpr(v, s):
    for r in (8, 4, 2, 1): A(f"v_add_f32_dpp v{v}, v{v}, v{v} row_ror:{r} {DPPF}")
    A(f"v_add_f32_dpp v{v}, v{v}, v{v} row_bcast:15 row_mask:0xa bank_mask:0xf")
    A(f"v_add_f32_dpp v{v}, v{v}, v{v} row_bcast:31 row_mask:0xc bank_mask:0xf")
    A(f"v_readlane_b32 s{s}, v{v}, 63")
def fbits(x): return "0x%08x" % struct.unpack("<I", struct.pack("<f", x))[0]
def mf16(d, a, b, first): A(f"v_mfma_f32_16x16x32_bf16 {vr(d,4)}, {vr(a,4)}, {vr(b,4)}, {'0' if first else vr(d,4)}")
def mf32(d, a, b, first): A(f"v_mfma_f32_32x32x16_bf16 {vr(d,16)}, {vr(a,4)}, {vr(b,4)}, {'0' if first else vr(d,16)}")
def ones(v): A("\n".join(f"v_mov_b32 v{v+j}, -1" for j in range(4)))
LOG2E = 1.4426950408889634

A.raw("; @launch grid=(256,1,1) block=(512,1,1) lds=163840")
A.raw('.amdgcn_target "amdgcn-amd-amdhsa--gfx950"')
A.raw(f".text\n.globl {NAME}_kernel\n.p2align 8\n.type {NAME}_kernel,@function\n{NAME}_kernel:")
vL = 1
ST(0)
A(f"""
s_load_dwordx2 s[48:49], s[0:1], 96
s_load_dwordx2 s[52:53], s[0:1], 0
s_load_dwordx2 s[56:57], s[0:1], 16
s_load_dwordx2 s[60:61], s[0:1], 24
s_load_dwordx16 s[16:31], s[0:1], 0
s_load_dwordx8 s[32:39], s[0:1], 64
s_cmp_ge_u32 s2, 256
s_cbranch_scc1 L_exit
v_lshrrev_b32 v2, 6, v0
v_and_b32 v{vL}, 63, v0
v_readfirstlane_b32 s{sW}, v2
s_and_b32 s{sX}, s2, 7
s_lshr_b32 s{sK}, s2, 3
v_lshlrev_b32 v9, 4, v{vL}
s_mov_b32 s50, 0x10000000
s_mov_b32 s51, 0x20000
s_mov_b32 s55, 0x20000
s_mov_b32 s58, {576*8192}
s_mov_b32 s59, 0x20000
s_mov_b32 s62, {512*8192}
s_mov_b32 s63, 0x20000
s_cmp_lt_u32 s2, 128
s_cbranch_scc1 L_att
""")
def lane_consts():
    A(f"v_lshrrev_b32 v2, 3, v{vL}\nv_and_b32 v3, 7, v{vL}\nv_lshrrev_b32 v4, 4, v{vL}\nv_bfe_u32 v5, v{vL}, 2, 2\nv_and_b32 v6, 3, v{vL}\nv_lshlrev_b32 v7, 4, v0\nv_mov_b32 v8, 0")
    if OPT['stamps']:
        for i in range(82, 102): A(f"s_mov_b32 s{i}, 0")

XN, XNS = 0, 1216
QL, QLS = 5120, 320
HB, HBS = 9728, 192
BIG = 16384
vTR = 13
vD = 28
def common_setup():
    lane_consts()
    A(f"""
    s_and_b32 s67, s{sW}, 1
    s_lshl_b32 s68, s67, 2
    v_and_b32 v11, 2, v2
    v_or_b32 v11, s68, v11
    v_xor_b32 v11, v11, v3
    v_lshlrev_b32 v11, 4, v11
    v_lshl_add_u32 v12, v2, 13, v11
    s_lshr_b32 s68, s{sW}, 1
    s_bfe_u32 s69, s{sW}, 0x10001
    s_lshr_b32 s70, s{sW}, 2
    """)
def common_setup2():
    A(f"""
    s_and_b32 s74, s{sW}, 3
    s_lshl_b32 s74, s74, 1
    v_lshrrev_b32 v{vTR}, 1, v6
    v_or_b32 v{vTR}, s74, v{vTR}
    v_and_b32 v14, 2, v5
    v_xor_b32 v{vTR}, v{vTR}, v14
    v_and_b32 v14, 1, v4
    v_lshlrev_b32 v15, 2, v14
    v_xor_b32 v{vTR}, v{vTR}, v15
    v_lshlrev_b32 v{vTR}, 4, v{vTR}
    v_lshl_add_u32 v{vTR}, v5, 7, v{vTR}
    v_and_b32 v15, 1, v6
    v_lshl_add_u32 v{vTR}, v15, 3, v{vTR}
    s_lshl_b32 s74, s70, 10
    s_add_u32 s74, s74, {BIG}
    v_add_u32 v15, s74, v{vTR}
    v_lshl_add_u32 v16, v4, 11, v15
    v_mul_u32_u24 v18, {XNS}, v6
    v_lshl_add_u32 v18, v4, 4, v18
    s_mov_b32 s78, 0x000f000f
    s_mov_b32 s79, 0x000f000f
    """)
def x_loads():
    A(f"""
    s_mul_i32 s66, s{sW}, 1152
    v_lshlrev_b32 v10, 3, v{vL}
    v_lshlrev_b32 v19, 1, v{vL}
    buffer_load_dwordx2 v[20:21], v10, {RA}, s66 offen
    buffer_load_dwordx2 v[22:23], v10, {RA}, s66 offen offset:512
    buffer_load_ushort v24, v19, {RA}, s66 offen offset:1024
    """)
def layernorm():
    e = list(range(56, 65))
    for i in range(4): A(f"v_lshlrev_b32 v{e[2*i]}, 16, v{20+i}\nv_and_b32 v{e[2*i+1]}, 0xffff0000, v{20+i}")
    A(f"""
    v_lshlrev_b32 v{e[8]}, 16, v24
    v_add_f32 v25, v{e[0]}, v{e[1]}
    v_add_f32 v26, v{e[2]}, v{e[3]}
    v_add_f32 v27, v{e[4]}, v{e[5]}
    v_add_f32 v28, v{e[6]}, v{e[7]}
    v_add_f32 v25, v25, v26
    v_add_f32 v27, v27, v28
    v_add_f32 v25, v25, v{e[8]}
    v_add_f32 v25, v25, v27
    """)
    wave_sum_to_sgpr(25, 74)
    A(f"v_mov_b32 v26, {fbits(1.0/576)}\nv_mul_f32 v26, s74, v26")
    A(f"v_sub_f32 v27, v{e[0]}, v26\nv_mul_f32 v25, v27, v27")
    for i in range(1, 9): A(f"v_sub_f32 v27, v{e[i]}, v26\nv_fmac_f32 v25, v27, v27")
    rb16(26, 26)
    for i in range(9): A(f"v_sub_f32 v{e[i]}, v{e[i]}, v26")
    wave_sum_to_sgpr(25, 74)
    A(f"v_mov_b32 v27, {fbits(1.0/576)}\nv_mul_f32 v27, s74, v27")
    rb16(27, 27)
    A(f"v_add_f32 v27, {fbits(1e-5)}, v27")
    rb16(27, 27)
    A("v_sqrt_f32 v27, v27")
    rb16(27, 27)
    A("v_rcp_f32 v27, v27")
    for i in range(0, 8, 2): A(f"v_cvt_pk_bf16_f32 v{20+i//2}, v{e[i]}, v{e[i+1]}")
    A(f"v_cvt_pk_bf16_f32 v24, v{e[8]}, v{e[8]}")
    for i in range(0, 8, 2): A(f"v_lshlrev_b32 v{e[i]}, 16, v{20+i//2}\nv_and_b32 v{e[i+1]}, 0xffff0000, v{20+i//2}")
    A(f"v_lshlrev_b32 v{e[8]}, 16, v24")
    for i in range(9): A(f"v_mul_f32 v{e[i]}, v{e[i]}, v27")
    for i in range(0, 8, 2): A(f"v_cvt_pk_bf16_f32 v{20+i//2}, v{e[i]}, v{e[i+1]}")
    A(f"v_cvt_pk_bf16_f32 v24, v{e[8]}, v{e[8]}")
    A(f"""
    s_mul_i32 s74, s{sW}, {XNS}
    v_add_u32 v10, s74, v10
    v_add_u32 v19, s74, v19
    ds_write_b64 v10, v[20:21] offset:{XN}
    ds_write_b64 v10, v[22:23] offset:{XN+512}
    ds_write_b16 v19, v24 offset:{XN+1024}
    """)
def clear_tail_inbox(vones):
    A(f"s_lshl_b32 s74, s{sH}, 14\ns_add_u32 s74, s74, {WS_H3B}")
    for i in range(4):
        A(f"buffer_store_dwordx4 {vr(vones,4)}, v9, {WS}, s74 offen sc1\nbuffer_store_dwordx4 {vr(vones,4)}, v9, {WS}, s74 offen offset:2048 sc1")
        if i < 3: A("s_add_u32 s74, s74, 4096")
    A(f"s_sub_u32 s74, s74, {3*4096}\nv_lshlrev_b32 v14, 11, v2\nv_lshl_add_u32 v14, v3, 4, v14")
    A(f"buffer_store_dwordx4 {vr(vones,4)}, v14, {WS}, s74 offen offset:1024 sc1")
def proof(sidx):
    A(f"""
    s_lshl_b32 s74, s{sidx}, 7
    s_add_u32 s74, s74, {WS_PF}
    v_mov_b32 v14, s{sT}
    v_lshlrev_b32 v17, 2, v{vL}
    s_mov_b32 exec_hi, 0
    buffer_store_dword v14, v17, {WS}, s74 offen sc1
    s_mov_b64 exec, -1
    """)
vXN, vG = 32, 104
def xn_frags():
    for kp in range(18):
        A(f"ds_read_b128 {vr(vXN+4*kp,4)}, v18 offset:{XN+kp*64}")
        if kp == 11: A("s_waitcnt lgkmcnt(4)")
def k_half(h, va, vb):
    for kp in range(9):
        a, off = (va, kp*8192) if kp < 8 else (vb, 0)
        A(f"ds_read_b64_tr_b16 {vr(vG+4*kp,2)}, v{a} offset:{off}")
        A(f"ds_read_b64_tr_b16 {vr(vG+4*kp+2,2)}, v{a} offset:{off+512}")
        if kp == 5: A("s_waitcnt lgkmcnt(6)")
    for kp in range(9):
        A(f"s_waitcnt lgkmcnt({min(15,2*(8-kp))})")
        mf16(vD, vG+4*kp, vXN+4*(9*h+kp), h == 0 and kp == 0)

QP, QPS = 5120, 272
WQB = BIG + 108*1024
UKB = BIG
sU = 76
def f_setup():
    A(f"""
    s_lshl_b32 s71, s{sA_}, 1
    s_add_u32 s71, s71, s{sQD}
    s_cmp_eq_u32 s{sA_}, 3
    s_cselect_b32 s72, 1, 2
    s_sub_u32 s71, s71, s72
    s_mul_i32 s{sU}, s{sX}, 9
    s_add_u32 s{sU}, s{sU}, s71
    s_lshr_b32 s{sF}, s{sU}, 1
    s_bitcmp1_b32 s{sU}, 0
    s_cselect_b32 s{sF}, 99, s{sF}
    s_cmp_eq_u32 s69, 0
    s_cselect_b32 s60, s{P_WG}, s{P_WU}
    s_cselect_b32 s61, s{P_WG+1}, s{P_WU+1}
    s_mov_b32 s62, {576*9216}
    s_lshl_b32 s72, s67, 1
    s_lshl_b32 s71, s69, 2
    s_or_b32 s72, s72, s71
    v_bfe_u32 v14, v2, 1, 1
    v_or_b32 v14, s72, v14
    v_xor_b32 v14, v14, v3
    v_lshlrev_b32 v14, 4, v14
    v_mul_u32_u24 v12, 9216, v2
    v_add_u32 v12, v12, v14
    s_lshl_b32 s71, s70, 1
    s_add_u32 s71, s71, s67
    s_mul_i32 s72, s71, {8*9216}
    s_lshl_b32 s74, s{sU}, 7
    s_add_u32 s72, s72, s74
    s_lshl_b32 s71, s71, 1
    s_add_u32 s71, s71, s69
    s_lshl_b32 s71, s71, 10
    s_add_u32 s71, s71, {BIG}
    """)
def gu_dma(i):
    A(f"s_mov_b32 m0, s71\ns_add_u32 s71, s71, 8192")
    dma(12, RC, 72)
    A(f"s_add_u32 s72, s72, {32*9216}")
A(f"""
L_nq:
s_bfe_u32 s{sA_}, s2, 0x20005
s_bfe_u32 s{sQD}, s2, 0x20003
s_lshl_b32 s{sH}, s{sX}, 2
s_add_u32 s{sH}, s{sH}, s{sA_}
s_mov_b32 s54, 4608
v_lshrrev_b32 v2, 3, v{vL}
v_and_b32 v3, 7, v{vL}
s_and_b32 s67, s{sW}, 1
s_lshl_b32 s68, s67, 2
v_and_b32 v11, 2, v2
v_or_b32 v11, s68, v11
v_xor_b32 v11, v11, v3
v_lshlrev_b32 v11, 4, v11
v_lshl_add_u32 v12, v2, 13, v11
s_bfe_u32 s69, s{sW}, 0x10001
s_lshr_b32 s70, s{sW}, 2
s_mul_i32 s71, s70, 10
s_add_u32 s71, s71, s67
s_mul_i32 s72, s{sQD}, 18
s_add_u32 s72, s72, s71
s_lshl_b32 s72, s72, 16
s_lshl_b32 s73, s{sH}, 8
s_lshl_b32 s74, s69, 7
s_add_u32 s73, s73, s74
s_add_u32 s72, s72, s73
s_lshl_b32 s71, s71, 1
s_add_u32 s71, s71, s69
s_lshl_b32 s71, s71, 10
s_add_u32 s71, s71, {WQB}
s_mov_b32 m0, s71
s_cmp_lg_u32 s70, 0
s_waitcnt lgkmcnt(0)
s_cbranch_scc1 L_nq_nox
""")
x_loads()
dma(12, RB, 72)
A(f"s_add_u32 s71, s71, 4096\ns_add_u32 s72, s72, {2*65536}\ns_mov_b32 m0, s71\nL_nq_nox:")
for i in range(4):
    A(f"s_add_u32 s71, s71, 4096")
    dma(12, RB, 72)
    if i < 3: A(f"s_add_u32 s72, s72, {2*65536}\ns_mov_b32 m0, s71")
A(f"s_load_dword s{sE}, s[48:49], 0")
lane_consts()
ST(1, 2)
A(f"s_lshr_b32 s68, s{sW}, 1\ns_cmp_ge_u32 s{sQD}, 2\ns_cbranch_scc1 L_nq_fs")
A(f"""
s_lshl_b32 s71, s70, 3
s_add_u32 s71, s71, s67
s_lshl_b32 s72, s{sQD}, 5
s_add_u32 s72, s72, s71
s_lshl_b32 s72, s72, 16
s_add_u32 s72, s72, s73
s_lshl_b32 s71, s71, 1
s_add_u32 s71, s71, s69
s_lshl_b32 s71, s71, 10
s_add_u32 s71, s71, {UKB}
s_cmp_eq_u32 s70, 0
s_cbranch_scc1 L_nq_ln
""")
ones(24)
A(f"""
s_lshl_b32 s75, s{sW}, 12
s_lshl_b32 s74, s{sH}, 14
s_add_u32 s74, s74, s75
s_add_u32 s74, s74, {WS_H3B-16384}
buffer_store_dwordx4 v[24:27], v9, {WS}, s74 offen sc1
buffer_store_dwordx4 v[24:27], v9, {WS}, s74 offen offset:2048 sc1
s_mov_b64 exec, 0xff
buffer_store_dwordx4 v[24:27], v9, {WS}, s74 offen offset:1024 sc1
buffer_store_dwordx4 v[24:27], v9, {WS}, s74 offen offset:3072 sc1
s_lshl_b32 s75, s{sW}, 15
s_lshl_b32 s74, s{sH}, 10
s_add_u32 s74, s74, s75
s_lshl_b32 s75, s{sQD}, 9
s_add_u32 s74, s74, s75
s_add_u32 s74, s74, {WS_H2-4*32768}
s_mov_b32 exec_lo, -1
buffer_store_dwordx4 v[24:27], v9, {WS}, s74 offen sc1
s_mov_b64 exec, -1
s_branch L_nq_noln
L_nq_fs:
""")
f_setup()
A(f"s_cmp_lg_u32 s70, 0\ns_cbranch_scc1 L_nq_noln\nL_nq_ln:\ns_waitcnt vmcnt(5)")
ST(2, 2)
layernorm()
A("L_nq_noln:")
ST(3, 2)
common_setup2()
A(f"""
v_add_u32 v21, {WQB-BIG}, v16
v_and_b32 v14, 1, v4
v_lshl_add_u32 v17, v14, 11, v15
v_add_u32 v17, {WQB-BIG}, v17
s_mul_i32 s74, s{sQD}, 288
v_add_u32 v19, s74, v18
s_lshl_b32 s66, s{sH}, 13
s_add_u32 s66, s66, {WS_H1L}
s_lshl_b32 s75, s{sQD}, 11
s_add_u32 s75, s75, s66
s_lshl_b32 s77, s{sW}, 8
s_add_u32 s75, s75, s77
v_lshlrev_b32 v20, 6, v6
v_lshl_add_u32 v20, v4, 4, v20
v_cmp_gt_u32 vcc, 2, v4
s_cmp_lt_u32 s{sQD}, 2
s_waitcnt vmcnt(0)
s_cbranch_scc1 L_nq_uk
""")
for i in range(OPT['gap']): gu_dma(i)
A("s_branch L_nq_a\nL_nq_uk:")
for i in range(4):
    A(f"s_mov_b32 m0, s71\ns_add_u32 s71, s71, 4096")
    dma(12, RC, 72)
    A(f"s_add_u32 s72, s72, {2*65536}")
A("L_nq_a:\ns_waitcnt lgkmcnt(0)")
ST(1); ST(5, 2)
A("s_barrier")
vA, vB = 64, 96
for kp in range(5):
    a = 21 if kp < 4 else 17
    A(f"ds_read_b64_tr_b16 {vr(vA+4*kp,2)}, v{a} offset:{kp*8192}")
    A(f"ds_read_b64_tr_b16 {vr(vA+4*kp+2,2)}, v{a} offset:{kp*8192+512}")
    A(f"ds_read_b128 {vr(vB+4*kp,4)}, v19 offset:{XN+kp*64}")
get_tag()
A(f"v_mov_b32 v25, s{sT}\nv_mov_b32 v27, s{sT}")
for kp in range(5):
    A(f"s_waitcnt lgkmcnt({3*(4-kp)})")
    if kp == 4:
        for j in range(4): A(f"v_cndmask_b32 v{vB+16+j}, 0, v{vB+16+j}, vcc")
    mf16(vD, vA+4*kp, vB+4*kp, kp == 0)
H1D = WS_H1L - WS_H1
A(f"""
v_and_b32 v52, 1, v2
v_and_b32 v53, 2, v3
v_lshl_or_b32 v53, v52, 2, v53
v_xor_b32 v53, v53, v4
v_lshlrev_b32 v53, 4, v53
v_lshl_add_u32 v53, v3, 7, v53
v_lshl_add_u32 v52, v52, 11, v53
v_cvt_pk_bf16_f32 v24, v{vD}, v{vD+1}
v_cvt_pk_bf16_f32 v26, v{vD+2}, v{vD+3}
s_mov_b64 exec, s[78:79]
buffer_store_dwordx4 v[24:27], v20, {WS}, s75 offen
s_sub_u32 s75, s75, {H1D}
s_cmp_lt_u32 s{sQD}, 2
s_cbranch_scc1 L_nq_b
buffer_store_dwordx4 v[24:27], v20, {WS}, s75 offen sc1
s_mov_b64 exec, -1
""")
ST(2); ST(6, 2)
A(f"s_barrier\ns_branch L_F\nL_nq_b:\ns_mov_b64 exec, -1")
ST(2); ST(6, 2)
if OPT['pearly']:
    A(f"s_lshl_b32 s77, s{sQD}, 1\ns_cmp_lg_u32 s{sW}, s77\ns_cbranch_scc1 L_pe\ns_lshl_b32 s77, s{sH}, 1\ns_add_u32 s77, s77, s{sQD}")
    proof(77)
    A("L_pe:")
A(f"s_barrier\ns_add_u32 s71, s71, 16384\ns_add_u32 s72, s72, {8*65536}")
for i in range(4):
    A(f"s_mov_b32 m0, s71\ns_add_u32 s71, s71, 4096")
    dma(12, RC, 72)
    if i < 3: A(f"s_add_u32 s72, s72, {2*65536}")
A(f"""
s_mul_i32 s74, s68, {4*QPS}
s_lshl_b32 s77, s67, 7
s_add_u32 s74, s74, s77
v_mul_u32_u24 v22, {QPS}, v5
v_lshl_add_u32 v22, v4, 5, v22
v_lshl_add_u32 v22, v6, 3, v22
v_add_u32 v22, s74, v22
s_lshl_b32 s77, s{sW}, 13
s_add_u32 s77, s77, {UKB}
v_add_u32 v52, s77, v52
v_xor_b32 v53, 64, v52
v_and_b32 v23, 15, v{vL}
v_mul_u32_u24 v23, {QPS}, v23
v_lshl_add_u32 v23, v4, 4, v23
s_lshl_b32 s72, s{sH}, 10
s_lshl_b32 s74, s{sQD}, 9
s_add_u32 s72, s72, s74
s_lshl_b32 s74, s{sW}, 6
s_add_u32 s72, s72, s74
s_add_u32 s72, s72, {WS_H2}
v_and_b32 v21, 1, v5
v_lshlrev_b32 v54, 15, v6
v_lshl_add_u32 v54, v21, 5, v54
v_lshl_add_u32 v54, v4, 3, v54
s_sub_u32 s71, s66, {H1D}
s_mov_b32 s77, 0
L_h1poll:
s_cmp_lg_u32 s77, 6
s_cbranch_scc1 L_h1ng
s_mov_b64 exec, s[78:79]
buffer_store_dwordx4 v[24:27], v20, {WS}, s75 offen sc1
s_mov_b64 exec, -1
L_h1ng:
s_and_b32 s74, s77, 9
s_cmp_eq_u32 s74, 9
s_cselect_b32 s74, s71, s66
buffer_load_dwordx4 v[48:51], v7, {WS}, s74 offen sc1
s_add_u32 s77, s77, 1
s_waitcnt vmcnt(0)
v_xor_b32 v49, s{sT}, v49
v_xor_b32 v51, s{sT}, v51
v_or_b32 v49, v49, v51
v_cmp_ne_u32 vcc, 0, v49
s_cmp_ge_u32 s77, {POLL_MAX}
s_cbranch_scc1 L_h1done
s_cbranch_vccnz L_h1poll
L_h1done:
v_mov_b32 v49, v50
ds_write_b64 v22, v[48:49] offset:{QP}
s_cmp_gt_u32 s77, 6
s_cbranch_scc1 L_h1sent
s_mov_b64 exec, s[78:79]
buffer_store_dwordx4 v[24:27], v20, {WS}, s75 offen sc1
s_mov_b64 exec, -1
L_h1sent:
s_cmp_lg_u32 s{sW}, 0
s_cbranch_scc1 L_h1np
s_lshl_b32 s75, s{sH}, 1
s_add_u32 s75, s75, s{sQD}
""")
if not OPT['pearly']: proof(75)
A(f"L_h1np:\nv_cmp_ne_u32 vcc, 0, v21\ns_waitcnt lgkmcnt(0)")
ST(3); ST(7, 2)
A("s_barrier")
vUK, vD1 = 64, 56
for kp in range(4):
    A(f"ds_read_b128 {vr(vB+4*kp,4)}, v23 offset:{QP+kp*64}")
    for tl in range(2):
        A(f"ds_read_b128 {vr(vUK+16*tl+4*kp,4)}, v{52+(kp&1)} offset:{tl*4096+(kp>>1)*1024}")
A(f"s_mov_b32 s74, {fbits(LOG2E/math.sqrt(128.0))}")
for kp in range(4):
    A(f"s_waitcnt lgkmcnt({9-3*kp+1})")
    mf16(vD, vUK+4*kp, vB+4*kp, kp == 0)
    A(f"s_waitcnt lgkmcnt({9-3*kp})")
    mf16(vD1, vUK+16+4*kp, vB+4*kp, kp == 0)
for j in range(4): A(f"v_cndmask_b32 v{60+j}, v{vD1+j}, v{vD+j}, vcc")
for j in range(4): A(f"v_cndmask_b32 v{vD+j}, v{vD+j}, v{vD1+j}, vcc")
for j in range(4): A(f"v_add_f32_dpp v{vD+j}, v{60+j}, v{vD+j} row_ror:4 {DPPF}")
for j in range(4): A(f"v_add_f32_dpp v{vD+j}, v{vD+j}, v{vD+j} row_ror:8 {DPPF}")
for j in range(4): A(f"v_mul_f32 v{vD+j}, s74, v{vD+j}")
A(f"""
v_cvt_pk_bf16_f32 v48, v{vD}, v{vD+1}
v_cvt_pk_bf16_f32 v49, v{vD+2}, v{vD+3}
v_min_u32 v48, -2, v48
v_min_u32 v49, -2, v49
s_mov_b32 exec_lo, 0x00ff00ff
s_mov_b32 exec_hi, 0x00ff00ff
buffer_store_dwordx2 v[48:49], v54, {WS}, s72 offen sc1
s_mov_b64 exec, -1
""")
ST(4); ST(9, 2)
A(f"""
s_barrier
s_cmp_lt_u32 s{sA_}, 3
s_cbranch_scc1 L_TH
s_cmp_eq_u32 s{sQD}, 0
s_cbranch_scc1 L_T
""")
f_setup()
for i in range(OPT['gap']): gu_dma(i)
A("s_branch L_F")

def wide_voffset(v):
    A(f"v_mul_u32_u24 v{v}, 1152, v2\nv_add_u32 v{v}, v{v}, v11")
def publish_setup(stride):
    A(f"""
    s_mul_i32 s74, s{sW}, {stride}
    s_add_u32 s72, s72, s74
    v_lshlrev_b32 v20, 6, v4
    v_lshl_add_u32 v20, v6, 4, v20
    """)
def store_tile(vacc, i, stride, sent):
    if sent:
        for j in range(4): A(f"v_min_u32 v{vacc+4*i+j}, -2, v{vacc+4*i+j}")
    A(f"s_mov_b64 exec, s[78:79]")
    A(f"buffer_store_dwordx4 {vr(vacc+4*i,4)}, v20, {WS}, s72 offen sc1")
    A(f"s_mov_b64 exec, -1")
    A(f"s_add_u32 s72, s72, {8*stride}")
def wide_dma(n, rsrc):
    for i in range(n):
        A(f"s_mov_b32 m0, s71\ns_add_u32 s74, s72, 512")
        dma(14, rsrc, 72)
        A(f"s_add_u32 s75, s71, 4096\ns_mov_b32 m0, s75\ns_add_u32 s72, s72, {16*1152}")
        dma(14, rsrc, 74)
        A(f"s_add_u32 s71, s71, 16384")
def wide_frag_addrs(base8, shift):
    A(f"v_lshl_add_u32 v16, v4, 13, v15")
    if shift: A(f"v_add_u32 v16, {shift}, v16")
    A(f"""
    v_add_u32 v17, 0x10000, v16
    v_lshl_add_u32 v18, v4, 10, v{vTR}
    v_add_u32 v18, {base8}, v18
    """)
def wide_frag_reads(vdst, nk):
    n = 0
    for i in range(4):
        for kp in range(nk):
            a = 16 if kp < 2 else 17
            off = (kp & 1)*32768 + i*2048
            d = vdst + (i*nk + kp)*4
            A(f"ds_read_b64_tr_b16 {vr(d,2)}, v{a} offset:{off}")
            A(f"ds_read_b64_tr_b16 {vr(d+2,2)}, v{a} offset:{off+512}")
            n += 2
            if n % 12 == 0: A("s_waitcnt lgkmcnt(4)")
    A("s_waitcnt lgkmcnt(4)")
    for kp in range(nk):
        d = vdst + (4*nk + kp)*4
        A(f"ds_read_b64_tr_b16 {vr(d,2)}, v18 offset:{kp*4096}")
        A(f"ds_read_b64_tr_b16 {vr(d+2,2)}, v18 offset:{kp*4096+512}")
def wide_gemm(vW, nk, vBf, vacc, stride, sent, lab):
    for i in range(5):
        if i == 4: A(f"s_cmp_lg_u32 s70, 0\ns_cbranch_scc1 {lab}_a")
        for kp in range(nk):
            if i == 0: A(f"s_waitcnt lgkmcnt({nk-1-kp})")
            mf16(vacc+4*i, vW+(i*nk+kp)*4, vBf+4*kp, kp == 0)
        if 2 <= i <= 3: store_tile(vacc, i-2, stride, sent)
    A(f"{lab}_a:")
    store_tile(vacc, 2, stride, sent)
    A("s_nop 2")
    store_tile(vacc, 3, stride, sent)
    A(f"s_cmp_lg_u32 s70, 0\ns_cbranch_scc1 {lab}_b")
    store_tile(vacc, 4, stride, sent)
    A(f"{lab}_b:")
def tail_prologue(lab, slot_code):
    common_setup2()
    A(f"s_mul_i32 s{sSL}, s{sX}, 7\n{slot_code}\ns_waitcnt lgkmcnt(0)")
    get_tag()
    A(f"s_cmp_lg_u32 s{sW}, 7\ns_cbranch_scc1 {lab}")
    ones(24)
    clear_tail_inbox(24)
    A("s_waitcnt vmcnt(0)")
    proof(sSL)
    A(f"{lab}:")

XL, CT, CTS = 0, 8192, 320
TS = 64*256
vUV, vWO = 32, 96
def t_setup():
    A(f"""
    v_lshlrev_b32 v21, 11, v3
    v_and_b32 v22, 1, v2
    v_lshl_add_u32 v22, v22, 6, v21
    v_lshl_add_u32 v22, v4, 4, v22
    s_lshl_b32 s66, s{sH}, 14
    s_add_u32 s66, s66, {WS_H3B}
    s_lshl_b32 s73, s{sW}, 7
    s_add_u32 s73, s73, s66
    s_lshl_b32 s72, s{sSL}, 8
    s_add_u32 s72, s72, {WS_H5T}
    v_lshrrev_b32 v23, 1, v3
    v_mul_u32_u24 v23, {CTS}, v23
    v_lshl_add_u32 v23, v4, 3, v23
    s_lshl_b32 s74, s{sW}, 5
    v_add_u32 v23, s74, v23
    v_mul_u32_u24 v10, {CTS}, v6
    v_lshl_add_u32 v10, v4, 4, v10
    """)
    publish_setup(TS)
def t_tail(nk, lab):
    A(f"""
    s_cmp_lg_u32 s{sW}, 0
    s_cbranch_scc1 {lab}pd
    v_min_u32 v24, 35, v{vL}
    v_lshlrev_b32 v24, 7, v24
    s_mov_b32 s74, {WS_PF+64*128}
    s_mov_b32 s77, 0
    {lab}pp:
    buffer_load_dword v25, v24, {WS}, s74 offen sc1
    s_add_u32 s77, s77, 1
    s_waitcnt vmcnt(0)
    v_cmp_ne_u32 vcc, s{sT}, v25
    s_cmp_ge_u32 s77, {POLL_MAX}
    s_cbranch_scc1 {lab}pd
    s_cbranch_vccnz {lab}pp
    {lab}pd:
    """)
    ST(5); ST(7, 3)
    A(f"""
    s_mov_b32 s77, 0
    {lab}poll:
    buffer_load_dwordx4 v[24:27], v22, {WS}, s73 offen sc1
    buffer_load_dwordx2 v[28:29], v21, {WS}, s66 offen offset:1024 sc1
    s_add_u32 s77, s77, 1
    s_waitcnt vmcnt(0)
    v_max3_u32 v30, v24, v25, v26
    v_max3_u32 v30, v30, v27, v28
    v_max_u32 v30, v30, v29
    v_cmp_eq_u32 vcc, -1, v30
    s_cmp_ge_u32 s77, {POLL_MAX}
    s_cbranch_scc1 {lab}done
    s_cbranch_vccnz {lab}poll
    {lab}done:
    ds_write_b128 v7, v[24:27] offset:{XL}
    s_waitcnt lgkmcnt(0)
    """)
    ST(6)
    A("s_barrier")
    if nk == 2: A(f"s_cmp_lg_u32 s70, 0\ns_cbranch_scc1 {lab}nouv")
    vX = 176
    for i in range(8): A(f"ds_read_b128 {vr(vX+4*i,4)}, v9 offset:{XL+i*1024}")
    A(f"""
    v_max_f32_dpp v30, v28, v28 {QP1}
    v_sub_f32 v30, v28, v30
    v_exp_f32 v30, v30
    v_mul_f32 v31, v30, v29
    v_add_f32_dpp v31, v31, v31 {QP1}
    v_rcp_f32 v31, v31
    v_mul_f32 v30, v30, v31
    """)
    a0, a1 = 24, 208
    for i in range(8):
        A(f"s_waitcnt lgkmcnt({7-i})")
        mf16(a0, vUV+8*i, vX+4*i, i == 0)
        mf16(a1, vUV+8*i+4, vX+4*i, i == 0)
    for j in range(4): A(f"v_add_f32_dpp v{a0+j}, v{a1+j}, v{a0+j} row_ror:8 {DPPF}")
    for j in range(4): A(f"v_mul_f32 v{a0+j}, v{a0+j}, v30")
    for j in range(4): A(f"v_add_f32_dpp v{a0+j}, v{a0+j}, v{a0+j} {QP1}")
    A(f"""
    v_cvt_pk_bf16_f32 v28, v{a0}, v{a0+1}
    v_cvt_pk_bf16_f32 v29, v{a0+2}, v{a0+3}
    s_mov_b32 exec_lo, 0x00550055
    s_mov_b32 exec_hi, 0x00550055
    ds_write_b64 v23, v[28:29] offset:{CT}
    s_mov_b64 exec, -1
    s_waitcnt lgkmcnt(0)
    {lab}nouv:
    s_barrier
    """)
    for kp in range(nk): A(f"ds_read_b128 {vr(vX+4*kp,4)}, v10 offset:{CT+kp*64}")
    wide_gemm(vWO, nk, vX, 212, TS, True, lab+"g")
    ST(7)
    finish()

A("L_TH:")
SLOT = f"s_lshl_b32 s74, s{sA_}, 1\ns_add_u32 s{sSL}, s{sSL}, s74\ns_add_u32 s{sSL}, s{sSL}, s{sQD}"
if OPT['c3']:
    A(f"""
    s_cmp_eq_u32 s{sA_}, 1
    s_cbranch_scc1 L_noc3
    s_cmp_eq_u32 s{sQD}, 0
    s_cselect_b32 s52, s{P_WG}, s{P_WU}
    s_cselect_b32 s53, s{P_WG+1}, s{P_WU+1}
    s_mov_b32 s54, {576*9216}
    s_lshl_b32 s71, s{sA_}, 3
    s_add_u32 s71, s71, s{sW}
    s_add_u32 s71, s71, 40
    s_mul_i32 s71, s71, {8*9216}
    s_sub_u32 s72, 3, s{sX}
    s_and_b32 s72, s72, 7
    s_mul_i32 s73, s{sX}, 9
    s_add_u32 s73, s73, s72
    s_lshl_b32 s73, s73, 7
    s_add_u32 s71, s71, s73
    v_mul_u32_u24 v14, 9216, v2
    v_lshl_add_u32 v14, v3, 4, v14
    L_c3again:
    """)
    for fl in ("nt", "sc1"):
        for i in range(2):
            if fl == "sc1": A("s_waitcnt vmcnt(1)")
            A(f"s_add_u32 s73, s71, {i*64*9216}\nbuffer_load_dwordx4 v[248:251], v14, {RA}, s73 offen {fl}")
    A(f"s_add_u32 s71, s71, 1024\ns_add_u32 s72, s72, 1\ns_cmp_eq_u32 s72, 1\ns_cbranch_scc1 L_c3again\nL_noc3:")
A(f"s_mul_i32 s{sSL}, s{sX}, 7\n{SLOT}")
ST(1, 3)
srd(52, P_WUV, 512*8192)
srd(56, P_WO, 4096*1152)
A(f"""
s_lshl_b32 s71, s{sW}, 10
s_add_u32 s71, s71, {BIG}
s_lshl_b32 s72, s68, 2
s_add_u32 s72, s72, s67
s_lshl_b32 s72, s72, 16
s_lshl_b32 s73, s{sH}, 1
s_add_u32 s73, s73, s{sQD}
s_lshl_b32 s74, s73, 7
s_add_u32 s72, s72, s74
""")
for i in range(8):
    cb = 2*(i&1) + 16*(i>>1)
    A(f"s_mov_b32 m0, s71\ns_add_u32 s74, s72, {cb*65536}")
    dma(12, RA, 74)
    A(f"s_add_u32 s71, s71, 8192")
    if i < OPT['tslow']: A("s_waitcnt vmcnt(0)")
wide_voffset(14)
A(f"""
s_mul_i32 s73, s73, {64*1152}
s_lshl_b32 s71, s67, 3
s_add_u32 s71, s71, s68
s_lshl_b32 s71, s71, 10
s_add_u32 s71, s71, {BIG+65536}
s_mul_i32 s72, s67, {8*1152}
s_lshl_b32 s74, s68, 7
s_add_u32 s72, s72, s74
s_add_u32 s72, s72, s73
""")
wide_dma(4, RB)
A(f"""
s_mul_i32 s72, s{sW}, {8*1152}
s_add_u32 s72, s72, s73
s_add_u32 s72, s72, 1024
s_lshl_b32 s71, s{sW}, 10
s_add_u32 s71, s71, {BIG+131072}
s_mov_b32 m0, s71
""")
dma(14, RB, 72)
wide_frag_addrs(BIG+131072, 65536)
A(f"v_lshl_add_u32 v19, v4, 10, v{vTR}\nv_add_u32 v19, {BIG}, v19")
t_setup()
ST(5, 3)
A("s_waitcnt vmcnt(0)")
ST(6, 3)
A("s_barrier")
for kp in range(16):
    A(f"ds_read_b64_tr_b16 {vr(vUV+4*kp,2)}, v19 offset:{kp*4096}")
    A(f"ds_read_b64_tr_b16 {vr(vUV+4*kp+2,2)}, v19 offset:{kp*4096+512}")
    if kp % 6 == 5: A("s_waitcnt lgkmcnt(4)")
A("s_waitcnt lgkmcnt(2)")
wide_frag_reads(vWO, 2)
t_tail(2, "L_u")

A("L_T:")
A(f"s_mul_i32 s{sSL}, s{sX}, 7\ns_add_u32 s{sSL}, s{sSL}, 6")
ST(1, 3)
srd(52, P_WUV, 512*8192)
srd(56, P_WO, 4096*1152)
A(f"""
s_lshl_b32 s71, s70, 1
s_add_u32 s71, s71, s67
s_lshl_b32 s71, s71, 1
s_add_u32 s71, s71, s69
s_lshl_b32 s71, s71, 10
s_add_u32 s71, s71, {BIG}
s_lshl_b32 s72, s70, 2
s_add_u32 s72, s72, s67
s_lshl_b32 s72, s72, 16
s_lshl_b32 s73, s{sH}, 8
s_lshl_b32 s74, s69, 7
s_add_u32 s73, s73, s74
s_add_u32 s72, s72, s73
""")
for i in range(16):
    cb = 2*((i>>1)&1) + 8*(i&1) + 16*(i>>2)
    A(f"s_mov_b32 m0, s71\ns_add_u32 s74, s72, {cb*65536}")
    dma(12, RA, 74)
    A(f"s_add_u32 s71, s71, 8192")
wide_voffset(14)
A(f"""
s_mul_i32 s66, s{sH}, {128*1152}
s_lshl_b32 s71, s68, 2
s_add_u32 s71, s71, s67
s_mul_i32 s72, s71, {8*1152}
s_add_u32 s72, s72, s66
s_add_u32 s72, s72, 1024
s_lshl_b32 s71, s71, 10
s_add_u32 s71, s71, {BIG+131072}
s_mov_b32 m0, s71
s_add_u32 s71, s71, 2048
""")
dma(14, RB, 72)
A(f"s_add_u32 s72, s72, {16*1152}\ns_mov_b32 m0, s71")
dma(14, RB, 72)
vST = 176
A(f"""
s_mul_i32 s72, s67, {8*1152}
s_lshl_b32 s74, s68, 7
s_add_u32 s72, s72, s74
s_add_u32 s72, s72, s66
s_barrier
""")
for i in range(4):
    A(f"buffer_load_dwordx4 {vr(vST+8*i,4)}, v14, {RB}, s72 offen nt")
    A(f"buffer_load_dwordx4 {vr(vST+8*i+4,4)}, v14, {RB}, s72 offen offset:512 nt")
    A(f"s_add_u32 s72, s72, {16*1152}")
A(f"v_add_u32 v17, 0x10000, v16")
ST(2, 3)
A("s_waitcnt vmcnt(10)")
ST(3, 3)
A("s_barrier")
for kp in range(16):
    a = 16 if kp < 8 else 17
    A(f"ds_read_b64_tr_b16 {vr(vUV+4*kp,2)}, v{a} offset:{(kp&7)*8192}")
    A(f"ds_read_b64_tr_b16 {vr(vUV+4*kp+2,2)}, v{a} offset:{(kp&7)*8192+512}")
    if kp % 6 == 5: A("s_waitcnt lgkmcnt(4)")
A(f"""
s_lshl_b32 s71, s67, 3
s_add_u32 s71, s71, s68
s_lshl_b32 s71, s71, 10
s_add_u32 s71, s71, {BIG}
v_add_u32 v19, s71, v9
s_add_u32 s71, s71, 65536
s_waitcnt lgkmcnt(0)
s_barrier
""")
ST(4, 3)
wide_dma(4, RB)
for i in range(8):
    A(f"s_waitcnt vmcnt({15-i})")
    A(f"ds_write_b128 v19, {vr(vST+4*i,4)} offset:{(i>>1)*16384+(i&1)*4096}")
wide_frag_addrs(BIG+131072, 0)
t_setup()
ST(5, 3)
A("s_waitcnt vmcnt(0) lgkmcnt(0)")
ST(6, 3)
A("s_barrier")
wide_frag_reads(vWO, 4)
t_tail(4, "L_t")

A("L_F:")
ST(1, 3)
A(f"s_cmp_lg_u32 s{sW}, 0\ns_cbranch_scc1 L_f_go\ns_cmp_ge_u32 s{sF}, 36\ns_cbranch_scc1 L_f_go")
ones(24)
A(f"s_lshl_b32 s74, s{sF}, 14\ns_add_u32 s74, s74, {WS_H5T}")
for i in range(14):
    A(f"buffer_store_dwordx4 v[24:27], v9, {WS}, s74 offen offset:{(i&3)*1024} sc1")
    if i & 3 == 3: A("s_add_u32 s74, s74, 4096")
A(f"s_add_u32 s75, s{sF}, 64\ns_waitcnt vmcnt(0)")
proof(75)
A("L_f_go:")
for i in range(OPT['gap'], 18):
    if i < OPT['gap'] + OPT['fslow']: A("s_waitcnt vmcnt(0)")
    gu_dma(i)
srd(56, P_WD, 4608*1152)
wide_voffset(14)
vWD = 144
A(f"""
s_mul_i32 s73, s{sU}, {64*1152}
s_mul_i32 s72, s67, {8*1152}
s_lshl_b32 s74, s68, 7
s_add_u32 s72, s72, s74
s_add_u32 s72, s72, s73
s_barrier
""")
for i in range(4):
    A(f"buffer_load_dwordx4 {vr(vWD+8*i,4)}, v14, {RB}, s72 offen nt")
    A(f"buffer_load_dwordx4 {vr(vWD+8*i+4,4)}, v14, {RB}, s72 offen offset:512 nt")
    A(f"s_add_u32 s72, s72, {16*1152}")
A(f"""
s_mul_i32 s72, s{sW}, {8*1152}
s_add_u32 s72, s72, s73
buffer_load_dwordx4 {vr(vWD+32,4)}, v14, {RB}, s72 offen offset:1024 nt
""")
xn_frags()
A(f"""
v_lshrrev_b32 v19, 1, v6
v_lshrrev_b32 v21, 1, v5
v_and_b32 v22, 1, v4
v_lshl_or_b32 v21, v22, 1, v21
v_lshl_or_b32 v21, v19, 2, v21
v_xor_b32 v21, s{sW}, v21
v_lshlrev_b32 v21, 4, v21
v_lshl_add_u32 v21, v5, 7, v21
v_and_b32 v22, 1, v6
v_lshl_add_u32 v21, v22, 3, v21
v_lshl_add_u32 v21, v19, 10, v21
v_lshl_add_u32 v21, v4, 11, v21
v_add_u32 v21, {BIG}, v21
v_add_u32 v22, {8*8192}, v21
s_lshl_b32 s71, s67, 3
s_add_u32 s71, s71, s68
s_lshl_b32 s71, s71, 10
s_add_u32 s71, s71, {BIG}
v_add_u32 v23, s71, v9
v_add_u32 v19, {BIG+65536}, v7
""")
ST(2, 3)
A("s_waitcnt vmcnt(9) lgkmcnt(0)")
ST(3, 3)
A("s_barrier")
k_half(0, 21, 22)
A(f"v_add_u32 v21, {9*8192}, v21\nv_add_u32 v22, {9*8192}, v22")
k_half(1, 21, 22)
A("s_barrier")
ST(4, 3)
wide_frag_addrs(BIG+65536, 0)
A(f"s_lshl_b32 s72, s{sU}, 8\ns_add_u32 s72, s72, {WS_H5F}")
publish_setup(72*256)
for j in range(4): A(f"v_mov_b32 v{24+j}, v{vD+j}")
for j in range(4): A(f"v_permlane32_swap_b32 v{vD+j}, v{24+j}")
C1 = -2.0*math.sqrt(2.0/math.pi)*LOG2E
A(f"s_mov_b32 s74, {fbits(0.044715)}\ns_mov_b32 s75, {fbits(C1)}")
for j in range(4): rb16(vD+j, vD+j); rb16(24+j, 24+j)
for j in range(4): A(f"v_mul_f32 v{104+j}, v{vD+j}, v{vD+j}")
for j in range(4): A(f"v_fma_f32 v{104+j}, v{104+j}, s74, 1.0")
for j in range(4): A(f"v_mul_f32 v{104+j}, v{104+j}, v{vD+j}")
for j in range(4): A(f"v_mul_f32 v{104+j}, s75, v{104+j}")
for j in range(4): A(f"v_exp_f32 v{104+j}, v{104+j}")
for j in range(4): A(f"v_add_f32 v{104+j}, 1.0, v{104+j}")
for j in range(4): A(f"v_rcp_f32 v{104+j}, v{104+j}")
for j in range(4): A(f"v_mul_f32 v{vD+j}, v{vD+j}, v{104+j}")
for j in range(4): rb16(vD+j, vD+j)
for j in range(4): A(f"v_mul_f32 v{vD+j}, v{vD+j}, v{24+j}")
A(f"""
v_cvt_pk_bf16_f32 v24, v{vD}, v{vD+1}
v_cvt_pk_bf16_f32 v25, v{vD+2}, v{vD+3}
v_mul_u32_u24 v22, {HBS}, v6
v_lshl_add_u32 v21, v4, 3, v22
s_lshl_b32 s74, s{sW}, 4
v_add_u32 v21, s74, v21
v_lshl_add_u32 v22, v4, 4, v22
s_mov_b64 exec, 0x000f000f
ds_write_b64 v21, v[24:25] offset:{HB}
s_mov_b64 exec, -1
""")
for i in range(8):
    A(f"s_waitcnt vmcnt({8-i})")
    A(f"ds_write_b128 v23, {vr(vWD+4*i,4)} offset:{(i>>1)*16384+(i&1)*4096}")
A(f"s_waitcnt vmcnt(0)\nds_write_b128 v19, {vr(vWD+32,4)}\ns_waitcnt lgkmcnt(0)")
ST(1); ST(7, 3)
A("s_barrier")
wide_frag_reads(32, 2)
for kp in range(2): A(f"ds_read_b128 {vr(104+4*kp,4)}, v22 offset:{HB+kp*64}")
wide_gemm(32, 2, 104, 212, 72*256, False, "L_fg")
A(f"""
s_waitcnt vmcnt(0)
s_barrier
s_cmp_lg_u32 s{sW}, 0
s_cbranch_scc1 L_f_nofl
s_lshl_b32 s74, s{sU}, 7
s_add_u32 s74, s74, {WS_FF}
v_mov_b32 v24, s{sT}
v_lshlrev_b32 v21, 2, v{vL}
s_mov_b32 exec_hi, 0
buffer_store_dword v24, v21, {WS}, s74 offen sc1
s_mov_b64 exec, -1
L_f_nofl:
""")
ST(2)
RED = 0
A(f"s_cmp_ge_u32 s{sF}, 36\ns_cbranch_scc1 L_end")
srd(56, P_OUT, 4608)
A(f"""
v_mul_u32_u24 v12, 1152, v6
v_lshl_add_u32 v12, v5, 3, v12
s_lshl_b32 s68, s{sF}, 5
buffer_load_dwordx2 v[60:61], v12, {RA}, s68 offen
v_lshlrev_b32 v21, 7, v{vL}
v_min_u32 v22, {7*128}, v21
v_and_b32 v23, 15, v{vL}
v_lshlrev_b32 v23, 4, v23
v_lshl_add_u32 v23, v4, 11, v23
s_mov_b32 s77, 0
s_mov_b32 s74, {WS_FF}
s_mov_b32 s75, {WS_FF+64*128}
s_cmp_lg_u32 s{sW}, 1
s_cbranch_scc1 L_ffdone
L_ffpoll:
buffer_load_dword v24, v21, {WS}, s74 offen sc1
buffer_load_dword v25, v22, {WS}, s75 offen sc1
s_add_u32 s77, s77, 1
s_waitcnt vmcnt(0)
v_xor_b32 v24, s{sT}, v24
v_xor_b32 v25, s{sT}, v25
v_or_b32 v24, v24, v25
v_cmp_ne_u32 vcc, 0, v24
s_cmp_ge_u32 s77, {POLL_MAX}
s_cbranch_scc1 L_ffdone
s_cbranch_vccnz L_ffpoll
L_ffdone:
s_barrier
""")
ST(5)
A(f"""
s_mul_i32 s74, s{sF}, {72*256}
s_add_u32 s74, s74, {WS_H5F}
s_add_u32 s75, s74, 8192
s_add_u32 s76, s74, 16384
v_mov_b32 v40, 0
v_mov_b32 v41, 0
v_mov_b32 v42, 0
v_mov_b32 v43, 0
v_mov_b32 v56, 0
v_mov_b32 v57, 0
v_mov_b32 v58, 0
v_mov_b32 v59, 0
buffer_load_dwordx4 v[32:35], v7, {WS}, s74 offen sc1
buffer_load_dwordx4 v[36:39], v7, {WS}, s75 offen sc1
s_cmp_ge_u32 s{sW}, 2
s_cbranch_scc1 L_fin_f2
buffer_load_dwordx4 v[40:43], v7, {WS}, s76 offen sc1
L_fin_f2:
s_lshl_b32 s74, s{sF}, 14
s_add_u32 s74, s74, {WS_H5T}
s_add_u32 s75, s74, 8192
s_waitcnt vmcnt(0)
""")
for j in range(4): A(f"v_add_f32 v{32+j}, v{32+j}, v{36+j}")
for j in range(4): A(f"v_add_f32 v{32+j}, v{32+j}, v{40+j}")
def fin_reduce(off):
    for i in range(8): A(f"ds_read_b128 {vr(64+4*i,4)}, v23 offset:{off+i*256}")
    for i in range(0, 8, 2):
        A(f"s_waitcnt lgkmcnt({6-i})")
        for j in range(4): A(f"v_add_f32 v{64+4*i+j}, v{64+4*i+j}, v{68+4*i+j}")
        if i == 2:
            for j in range(4): A(f"v_add_f32 v{64+j}, v{64+j}, v{72+j}")
    for j in range(4): A(f"v_add_f32 v{80+j}, v{80+j}, v{88+j}")
    for j in range(4): A(f"v_add_f32 v{64+j}, v{64+j}, v{80+j}")
    for sw in ("v_permlane32_swap_b32", "v_permlane16_swap_b32"):
        for j in range(4): A(f"v_mov_b32 v{68+j}, v{64+j}")
        for j in range(4): A(f"{sw} v{64+j}, v{68+j}")
        for j in range(4): A(f"v_add_f32 v{64+j}, v{64+j}, v{68+j}")
A(f"""
ds_write_b128 v7, v[32:35] offset:{RED}
s_waitcnt lgkmcnt(0)
s_barrier
s_cmp_lg_u32 s{sW}, 7
s_cbranch_scc1 L_fin_nog
""")
fin_reduce(RED)
A(f"s_mov_b32 s76, {fbits(-LOG2E)}")
A("v_lshlrev_b32 v32, 16, v60\nv_and_b32 v33, 0xffff0000, v60\nv_lshlrev_b32 v34, 16, v61\nv_and_b32 v35, 0xffff0000, v61")
for j in range(4): rb16(64+j, 64+j)
for j in range(4): A(f"v_mul_f32 v{76+j}, s76, v{64+j}")
for j in range(4): A(f"v_exp_f32 v{76+j}, v{76+j}")
for j in range(4): A(f"v_add_f32 v{76+j}, 1.0, v{76+j}")
for j in range(4): A(f"v_rcp_f32 v{76+j}, v{76+j}")
for j in range(4): A(f"v_mul_f32 v{36+j}, v{64+j}, v{76+j}")
for j in range(4): rb16(36+j, 36+j)
A(f"""
L_fin_nog:
s_mov_b32 s77, 0
L_finpoll:
buffer_load_dwordx4 v[52:55], v7, {WS}, s74 offen sc1
s_cmp_ge_u32 s{sW}, 6
s_cbranch_scc1 L_fin_t1
buffer_load_dwordx4 v[56:59], v7, {WS}, s75 offen sc1
L_fin_t1:
s_add_u32 s77, s77, 1
s_waitcnt vmcnt(0)
v_max3_u32 v30, v52, v53, v54
v_max3_u32 v30, v30, v55, v56
v_max3_u32 v30, v30, v57, v58
v_max_u32 v30, v30, v59
v_cmp_eq_u32 vcc, -1, v30
s_cmp_ge_u32 s77, {POLL_MAX}
s_cbranch_scc1 L_findone
s_cbranch_vccnz L_finpoll
L_findone:
""")
for j in range(4): A(f"v_add_f32 v{52+j}, v{52+j}, v{56+j}")
A(f"ds_write_b128 v7, v[52:55] offset:{RED+8192}\ns_waitcnt lgkmcnt(0)")
ST(6)
A(f"s_barrier\ns_cmp_lg_u32 s{sW}, 7\ns_cbranch_scc1 L_end")
fin_reduce(RED+8192)
for j in range(4): rb16(64+j, 64+j)
for j in range(4): A(f"v_mul_f32 v{64+j}, v{64+j}, v{36+j}")
for j in range(4): rb16(64+j, 64+j)
for j in range(4): A(f"v_add_f32 v{64+j}, v{64+j}, v{32+j}")
A(f"""
v_cvt_pk_bf16_f32 v64, v64, v65
v_cvt_pk_bf16_f32 v65, v66, v67
s_mov_b64 exec, 0xffff
buffer_store_dwordx2 v[64:65], v12, {RB}, s68 offen
s_cmp_lg_u32 s{sF}, 0
s_cbranch_scc1 L_fin_noep
s_mov_b64 exec, 1
v_mov_b32 v66, s{sE}
buffer_store_dword v66, v8, {WS}, 0 offen sc1
L_fin_noep:
s_mov_b64 exec, -1
""")
ST(7)
finish()

QA = 131072
PB = QA+2048
sLOC = 64
A("L_att:")
lane_consts()
if OPT['exp'] == 1: A("s_waitcnt lgkmcnt(0)\ns_branch L_end")
A(f"s_cmp_ge_u32 s{sW}, 4\ns_cbranch_scc1 L_att_hi")
A(f"""
s_lshl_b32 s68, s{sK}, 18
s_lshl_b32 s69, s{sX}, 10
s_add_u32 s68, s68, s69
s_lshl_b32 s69, s{sW}, 16
s_add_u32 s68, s68, s69
s_waitcnt lgkmcnt(0)
s_load_dword s{sE}, s[48:49], 0
""")
if OPT['adel']: A("s_waitcnt lgkmcnt(0)")
for i in range(8):
    A(f"buffer_load_dwordx4 v[248:251], v9, {RC}, s68 offen nt")
    if i < 7: A("s_add_u32 s68, s68, 8192")
A(f"""
v_and_b32 v11, 2, v2
v_lshlrev_b32 v11, 1, v11
v_lshrrev_b32 v10, 2, v2
v_or_b32 v11, v11, v10
v_xor_b32 v11, v11, v3
v_lshlrev_b32 v11, 4, v11
v_lshl_add_u32 v10, v2, 10, v11
v_xor_b32 v11, 32, v10
s_lshl_b32 s70, s{sX}, 4
s_add_u32 s70, s70, s{sK}
s_lshl_b32 s66, s70, 17
s_lshl_b32 s67, s{sW}, 15
s_add_u32 s66, s66, s67
""")
srd(52, P_CKV, 4*4096*1024)
if OPT['ukw'] < 8: A(f"s_waitcnt vmcnt({OPT['ukw']})")
ST(2, 2)
for lb in range(8):
    if lb in (1, 2, 4, 6): ST({1:3,2:4,4:5,6:6}[lb], 2)
    if lb == OPT['gbar']: A("s_barrier")
    for rbi in range(4):
        A(f"s_add_u32 s68, s67, {(rbi*8+lb)*1024}\ns_mov_b32 m0, s68\ns_add_u32 s69, s66, {rbi*8192+lb*128}")
        dma(10 + (rbi & 1), RA, 69)
if OPT['gbar'] >= 8: A("s_barrier")
ST(7, 2)
if OPT['stamps'] in (2, 3):
    A("s_waitcnt vmcnt(0)")
    ST(9, 2); ST(7, 3)
if OPT['exp'] == 2: A("s_branch L_end")
A(f"""
v_and_b32 v11, 2, v{vL}
v_lshlrev_b32 v11, 1, v11
v_or_b32 v11, v11, v5
v_lshrrev_b32 v12, 5, v{vL}
v_xor_b32 v11, v11, v12
v_lshlrev_b32 v11, 4, v11
v_lshl_add_u32 v11, v3, 7, v11
v_and_b32 v13, 3, v2
v_lshl_add_u32 v11, v13, 13, v11
v_add_u32 v16, s67, v11
v_add_u32 v20, {QA}, v11
""")
for t in range(1, 4): A(f"v_xor_b32 v{16+t}, {t<<5}, v16\nv_xor_b32 v{20+t}, {t<<5}, v20")
A(f"""
v_and_b32 v13, 31, v{vL}
v_lshlrev_b32 v13, 5, v13
v_add_u32 v13, {QA}, v13
s_lshl_b32 s68, s{sW}, 3
v_lshl_add_u32 v14, v12, 2, v13
v_add_u32 v14, s68, v14
s_lshl_b32 s68, s{sW}, 11
s_add_u32 s68, s68, {PB}
v_add_u32 v15, s68, v9
s_lshl_b32 s76, s70, 15
s_lshl_b32 s71, s{sW}, 13
s_add_u32 s76, s76, s71
s_add_u32 s76, s76, {WS_H3A}
s_add_u32 s78, s76, 4096
s_lshl_b32 s75, s70, 11
s_lshl_b32 s71, s{sW}, 9
s_add_u32 s75, s75, s71
s_add_u32 s75, s75, {WS_FLG}
s_waitcnt lgkmcnt(0)
""")
get_tag()
def pretouch(fl):
    A(f"s_mov_b32 exec_hi, 0\nbuffer_load_dwordx4 v[248:251], v9, {WS}, s75 offen {fl}\ns_mov_b64 exec, -1")
    for i in range(8):
        A(f"buffer_load_dwordx4 v[248:251], v9, {WS}, s{76 if i < 4 else 78} offen offset:{(i&3)*1024} {fl}")
ST(1)
A("s_barrier")
ST(2)
vS = 32; vAf = 64; vBf = 96; DEP = 6
npt = [0]
def qk_read(t):
    lb = t >> 2
    if t & 3 == 0: A(f"s_waitcnt vmcnt({28-4*lb+npt[0]})")
    s = t % DEP
    A(f"ds_read_b128 {vr(vAf+4*s,4)}, v{16+(t&3)} offset:{lb*1024}")
    A(f"ds_read_b128 {vr(vBf+4*s,4)}, v{20+(t&3)} offset:{lb*1024}")
for t in range(DEP): qk_read(t)
for t in range(32):
    s = t % DEP
    A(f"s_waitcnt lgkmcnt({2*min(DEP-1, 31-t)})")
    mf32(vS, vAf+4*s, vBf+4*s, t == 0)
    if OPT['local'] and t < 9:
        if t == 0: A(f"s_mov_b32 exec_hi, 0\nbuffer_load_dwordx4 v[248:251], v9, {WS}, s75 offen nt\ns_mov_b64 exec, -1")
        else: A(f"buffer_load_dwordx4 v[248:251], v9, {WS}, s{76 if t < 5 else 78} offen offset:{((t-1)&3)*1024} nt")
        npt[0] += 1
    if t + DEP < 32: qk_read(t + DEP)
ST(3)
A("s_barrier")
A(f"v_max3_f32 v24, v{vS}, v{vS+1}, v{vS+2}\nv_max3_f32 v25, v{vS+3}, v{vS+4}, v{vS+5}\nv_max3_f32 v26, v{vS+6}, v{vS+7}, v{vS+8}")
A(f"v_max3_f32 v27, v{vS+9}, v{vS+10}, v{vS+11}\nv_max3_f32 v28, v{vS+12}, v{vS+13}, v{vS+14}")
A(f"v_max3_f32 v24, v24, v25, v26\nv_max3_f32 v27, v27, v28, v{vS+15}\nv_max_f32 v24, v24, v27")
A(f"ds_write_b32 v14, v24\ns_waitcnt lgkmcnt(0)\ns_barrier")
A(f"""
ds_read_b128 v[24:27], v13
ds_read_b128 v[28:31], v13 offset:16
s_waitcnt lgkmcnt(0)
v_max3_f32 v24, v24, v25, v26
v_max3_f32 v28, v28, v29, v30
v_max3_f32 v24, v24, v27, v31
v_max_f32 v24, v24, v28
""")
for hlf in range(2):
    for i in range(8): A(f"v_sub_f32 v{vS+8*hlf+i}, v{vS+8*hlf+i}, v24")
    for i in range(8): A(f"v_exp_f32 v{vS+8*hlf+i}, v{vS+8*hlf+i}")
    for i in range(4): A(f"v_cvt_pk_bf16_f32 v{48+4*hlf+i}, v{vS+8*hlf+2*i}, v{vS+8*hlf+2*i+1}")
    A(f"ds_write_b128 v15, {vr(48+4*hlf,4)} offset:{1024*hlf}")
for step in (8, 4, 2, 1):
    for i in range(step): A(f"v_add_f32 v{vS+i}, v{vS+i}, v{vS+i+step}")
A(f"ds_write_b32 v14, v{vS} offset:1024\ns_waitcnt lgkmcnt(0)")
ST(4)
A("s_barrier")
if OPT['local']:
    A("s_waitcnt vmcnt(0)")
    ST(5)
    if OPT['promo']: pretouch("sc1")
A("s_branch L_red")

A("L_att_hi:")
if OPT['prio']: A("s_setprio 2")
if OPT['pf']:
    A(f"""
    s_getpc_b64 s[66:67]
    L_pc:
    s_sub_u32 s66, s66, L_pc-{NAME}_kernel
    s_subb_u32 s67, s67, 0
    v_subrev_u32 v10, 256, v0
    v_lshlrev_b32 v10, 7, v10
    v_cmp_gt_u32 vcc, L_exit-{NAME}_kernel, v10
    s_and_saveexec_b64 s[68:69], vcc
    s_cbranch_execz L_nopf
    global_load_dword v255, v10, s[66:67]
    L_nopf:
    s_mov_b64 exec, -1
    """)
A(f"""
s_sub_u32 s66, s{sW}, 4
s_and_b32 s68, s{sK}, 7
s_lshl_b32 s68, s68, 2
s_add_u32 s68, s68, s66
s_lshl_b32 s68, s68, 10
s_lshl_b32 s69, s{sX}, 15
s_add_u32 s68, s68, s69
s_add_u32 s68, s68, {WS_H1L}
s_cmp_ge_u32 s{sK}, 8
s_waitcnt lgkmcnt(0)
s_load_dword s{sE}, s[48:49], 0
s_cbranch_scc1 L_nowarm
buffer_load_dwordx4 v[248:251], v9, {WS}, s68 offen nt
L_nowarm:
s_lshr_b32 s67, s{sX}, 1
s_lshl_b32 s67, s67, 15
s_lshl_b32 s68, s66, 13
s_add_u32 s67, s67, s68
s_add_u32 s67, s67, {WS_H2}
s_and_b32 s69, s66, 1
s_lshl_b32 s69, s69, 1
v_xor_b32 v10, s69, v3
v_lshlrev_b32 v10, 4, v10
v_lshl_add_u32 v10, v2, 10, v10
s_add_u32 s68, s68, {QA}
v_add_u32 v16, s68, v10
v_xor_b32 v17, 64, v16
v_xor_b32 v18, 16, v16
v_xor_b32 v19, 80, v16
v_lshrrev_b32 v12, 5, v{vL}
v_and_b32 v13, 1, v4
v_lshrrev_b32 v14, 1, v6
v_lshl_or_b32 v13, v13, 1, v14
v_and_b32 v14, 2, v5
v_lshl_or_b32 v14, v14, 1, v12
v_xor_b32 v13, v13, v14
v_lshlrev_b32 v13, 4, v13
v_lshl_add_u32 v13, v5, 7, v13
v_lshl_add_u32 v13, v12, 9, v13
v_and_b32 v14, 1, v6
v_lshl_add_u32 v13, v14, 3, v13
s_lshl_b32 s68, s66, 11
v_add_u32 v20, s68, v13
v_xor_b32 v21, 32, v20
v_xor_b32 v22, 64, v20
v_xor_b32 v23, 96, v20
""")
for j in range(4): A(f"v_add_u32 v{24+j}, 0x10000, v{20+j}")
A(f"s_getreg_b32 s65, hwreg(HW_REG_XCC_ID, 0, 4)\ns_lshl_b32 s72, s{sX}, 11\ns_add_u32 s72, s72, {WS_XT}\ns_waitcnt lgkmcnt(0)")
get_tag()
if OPT['local']:
    A(f"""
    s_cmp_lg_u32 s66, 1
    s_cbranch_scc1 L_noxt
    s_lshl_b32 s68, s{sK}, 7
    s_add_u32 s68, s68, s72
    v_mov_b32 v28, s65
    v_mov_b32 v29, s{sT}
    v_lshlrev_b32 v30, 3, v{vL}
    s_mov_b64 exec, 0xffff
    buffer_store_dwordx2 v[28:29], v30, {WS}, s68 offen sc1
    s_mov_b64 exec, -1
    L_noxt:
    """)
A(f"""
s_cmp_lg_u32 s66, 0
s_cbranch_scc1 L_prd
v_lshlrev_b32 v28, 7, v{vL}
s_mov_b32 s74, {WS_PF}
s_mov_b32 s77, 0
L_prp:
s_sleep {OPT['psl']}
buffer_load_dword v29, v28, {WS}, s74 offen sc1
s_add_u32 s77, s77, 1
s_waitcnt vmcnt(0)
v_cmp_ne_u32 vcc, s{sT}, v29
s_cmp_ge_u32 s77, {POLL_MAX}
s_cbranch_scc1 L_prd
s_cbranch_vccnz L_prp
L_prd:
""")
ST(6, 2)
A("s_barrier")
if OPT['exp'] == 2: A("s_branch L_end")
ST(9)
vQ = 32
A(f"s_mov_b32 s76, 0xff\ns_mov_b32 s77, 0\ns_add_u32 s69, s67, 4096\nL_h2poll:")
for i in range(8):
    A(f"s_bitcmp1_b32 s76, {i}\ns_cbranch_scc0 L_h2i{i}")
    A(f"buffer_load_dwordx4 {vr(vQ+4*i,4)}, v9, {WS}, s{67 if i < 4 else 69} offen offset:{(i&3)*1024} sc1")
    A(f"L_h2i{i}:")
A(f"s_add_u32 s77, s77, 1\ns_cmp_eq_u32 s77, 1\ns_cbranch_scc1 L_h2first\ns_waitcnt vmcnt(0)\nL_h2first:")
for i in range(8):
    var = ((i >> 1) & 1) + 2*((i >> 2) & 1)
    q = vQ+4*i
    A(f"s_bitcmp1_b32 s76, {i}\ns_cbranch_scc0 L_h2c{i}")
    A(f"s_waitcnt vmcnt({7-i})")
    A(f"v_max3_u32 v28, v{q}, v{q+1}, v{q+2}\nv_max_u32 v28, v28, v{q+3}\nds_write_b128 v{16+var}, {vr(q,4)} offset:{i*128}\nv_cmp_eq_u32 vcc, -1, v28")
    A(f"s_cbranch_vccnz L_h2c{i}\ns_bitset0_b32 s76, {i}\nL_h2c{i}:")
A(f"""
s_waitcnt lgkmcnt(0)
s_cmp_ge_u32 s77, {POLL_MAX}
s_cbranch_scc1 L_h2done
s_cmp_eq_u32 s76, 0
s_cbranch_scc1 L_h2done
s_sleep {OPT['rsleep']}
s_branch L_h2poll
L_h2done:
""")
ST(1)
if OPT['prio']: A("s_setprio 0")
A("s_barrier")
if OPT['local']:
    A(f"v_and_b32 v28, 15, v{vL}\nv_lshlrev_b32 v29, 7, v28\nbuffer_load_dwordx2 v[252:253], v29, {WS}, s72 offen sc1")
A("s_barrier")
ST(2)
vV = 96; vO = 32
def vfrag(f, tau): return vV + 4*(f*4 + tau)
PR = [224+4*f for f in range(7)] + [16]
def pv_reads(f):
    for tau in range(4):
        for jj in range(2):
            a = (20 if f < 4 else 24) + jj + 2*(tau & 1)
            off = (f & 3)*16384 + jj*8192 + (tau >> 1)*1024
            A(f"ds_read_b64_tr_b16 {vr(vfrag(f,tau)+2*jj,2)}, v{a} offset:{off}")
pv_reads(0)
A("s_barrier")
for f in range(1, 8):
    A("s_waitcnt lgkmcnt(6)")
    pv_reads(f)
A(f"""
v_add_u32 v10, {PB}, v9
v_and_b32 v13, 31, v{vL}
v_lshlrev_b32 v14, 5, v13
v_add_u32 v14, {QA}, v14
v_lshlrev_b32 v13, 4, v13
v_lshl_add_u32 v11, v12, 16, v13
s_lshl_b32 s68, s{sX}, 19
s_lshl_b32 s69, s{sK}, 11
s_add_u32 s68, s68, s69
s_lshl_b32 s70, s66, 9
s_add_u32 s68, s68, s70
s_add_u32 s68, s68, {WS_H3A}
s_lshl_b32 s71, s{sX}, 15
s_add_u32 s71, s71, s69
s_add_u32 s71, s71, s70
s_add_u32 s71, s71, {WS_FLG}
s_waitcnt lgkmcnt(0)
s_barrier
""")
ST(3)
for f in range(8): A(f"ds_read_b128 {vr(PR[f],4)}, v10 offset:{f*1024}")
A(f"ds_read_b128 v[20:23], v14\nds_read_b128 v[24:27], v14 offset:16")
for f in range(8):
    A(f"s_waitcnt lgkmcnt({9-f if f < 6 else 11-f})")
    for tau in range(4): mf32(vO+16*tau, PR[f], vfrag(f,tau), f == 0)
    if f == 5:
        A(f"""
        s_waitcnt lgkmcnt(0)
        v_max3_f32 v20, v20, v21, v22
        v_max3_f32 v24, v24, v25, v26
        v_max3_f32 v20, v20, v23, v27
        v_max_f32 v20, v20, v24
        ds_read_b128 v[24:27], v14 offset:1024
        ds_read_b128 v[28:31], v14 offset:1040
        """)
A(f"""
s_waitcnt lgkmcnt(0)
v_add_f32 v24, v24, v25
v_add_f32 v26, v26, v27
v_add_f32 v28, v28, v29
v_add_f32 v30, v30, v31
v_add_f32 v24, v24, v26
v_add_f32 v28, v28, v30
v_add_f32 v22, v24, v28
v_mov_b32 v21, s{sT}
v_mov_b32 v23, s{sT}
""")
if OPT['local']:
    A(f"""
    s_waitcnt vmcnt(0)
    v_cmp_ne_u32 vcc, s65, v252
    v_cmp_ne_u32 s[74:75], s{sT}, v253
    s_or_b64 vcc, vcc, s[74:75]
    """)
ST(4)
def pv_store(flag):
    for n, i in enumerate(range(0, 16, 2)):
        d = vV + 4*n
        A(f"v_cvt_pk_bf16_f32 v{d}, v{vO+i}, v{vO+16+i}\nv_cvt_pk_bf16_f32 v{d+1}, v{vO+32+i}, v{vO+48+i}")
        A(f"v_cvt_pk_bf16_f32 v{d+2}, v{vO+i+1}, v{vO+16+i+1}\nv_cvt_pk_bf16_f32 v{d+3}, v{vO+32+i+1}, v{vO+48+i+1}")
        A(f"s_add_u32 s69, s68, {((i&3)//2 + 4*(i>>2))*32768}")
        A(f"buffer_store_dwordx4 {vr(d,4)}, v11, {WS}, s69 offen {flag}")
    A(f"""
    s_waitcnt vmcnt(0)
    s_mov_b32 exec_hi, 0
    buffer_store_dwordx4 v[20:23], v13, {WS}, s71 offen {flag}
    s_mov_b64 exec, -1
    """)
if OPT['local']:
    A(f"s_cbranch_scc1 L_pvfar")
    pv_store("")
    A("L_pvback:")
else:
    pv_store("sc1")
ST(5)

A("L_red:")
A(f"""
s_lshr_b32 s66, s{sW}, 1
s_lshl_b32 s67, s{sX}, 15
s_lshl_b32 s68, s66, 9
s_add_u32 s67, s67, s68
s_lshl_b32 s69, s{sK}, 5
s_add_u32 s67, s67, s69
s_add_u32 s67, s67, {WS_FLG}
v_and_b32 v9, 15, v{vL}
v_and_b32 v10, 1, v4
v_lshlrev_b32 v11, 11, v9
v_lshl_add_u32 v11, v10, 4, v11
s_lshl_b32 s69, s{sX}, 4
s_add_u32 s69, s69, s{sK}
s_lshl_b32 s69, s69, 15
s_lshl_b32 s70, s{sW}, 8
s_add_u32 s69, s69, s70
s_add_u32 s69, s69, {WS_H3A}
v_lshlrev_b32 v12, 11, v4
v_lshl_add_u32 v12, v9, 4, v12
v_and_b32 v13, 1, v3
v_lshlrev_b32 v13, 4, v13
v_mov_b32 v14, 0xffff
v_lshlrev_b32 v14, v13, v14
v_lshrrev_b32 v13, 1, v3
""")
for d in range(4): A(f"v_cmp_eq_u32 vcc, {d}, v13\nv_cndmask_b32 v{16+d}, 0, v14, vcc")
A(f"""
v_lshrrev_b32 v13, 2, v3
v_lshl_add_u32 v15, v13, 4, v4
v_lshlrev_b32 v15, 2, v15
v_lshlrev_b32 v28, 14, v13
v_lshl_add_u32 v28, v6, 5, v28
v_lshl_add_u32 v28, v4, 3, v28
s_lshl_b32 s70, s{sK}, 15
s_lshl_b32 s71, s{sX}, 11
s_add_u32 s70, s70, s71
s_add_u32 s70, s70, {WS_H3B}
s_lshl_b32 s71, s{sW}, 7
s_add_u32 s71, s71, s70
v_lshlrev_b32 v29, 14, v10
v_lshl_add_u32 v29, v9, 3, v29
s_mov_b32 s77, 0
s_mov_b32 exec_hi, 0
L_rpoll:
buffer_load_dwordx4 v[32:35], v11, {WS}, s67 offen sc1
s_add_u32 s77, s77, 1
s_waitcnt vmcnt(0)
v_xor_b32 v33, s{sT}, v33
v_xor_b32 v35, s{sT}, v35
v_or_b32 v33, v33, v35
v_cmp_ne_u32 vcc, 0, v33
s_cmp_ge_u32 s77, {POLL_MAX}
s_cbranch_scc1 L_rdone
s_cbranch_vccnz L_rpoll
L_rdone:
s_mov_b64 exec, -1
""")
ST(6)
for i in range(4):
    A(f"buffer_load_dwordx4 {vr(48+4*i,4)}, v12, {WS}, s69 offen sc1")
    if i < 3: A("s_add_u32 s69, s69, 8192")
A("v_mov_b32 v36, v32")
for r in (8, 4, 2, 1): A(f"v_max_f32_dpp v36, v36, v36 row_ror:{r} {DPPF}")
A("v_sub_f32 v33, v32, v36\nv_exp_f32 v33, v33\nv_mul_f32 v37, v33, v34")
for i in range(4): A(f"ds_bpermute_b32 v{40+i}, v15, v33 offset:{16*i}")
for r in (8, 4, 2, 1): A(f"v_add_f32_dpp v37, v37, v37 row_ror:{r} {DPPF}")
A(f"v_min_u32 v36, -2, v36\nv_min_u32 v37, -2, v37")
A(f"""
s_cmp_lg_u32 s{sW}, 0
s_cbranch_scc1 L_rnostat
s_mov_b32 exec_hi, 0
buffer_store_dwordx2 v[36:37], v29, {WS}, s70 offen offset:1024 sc1
s_mov_b64 exec, -1
L_rnostat:
v_cmp_gt_u32 vcc, 8, v9
s_waitcnt lgkmcnt(0)
""")
for i in range(4): A(f"v_cvt_pk_bf16_f32 v{44+i}, v{40+i}, v{40+i}")
for i in range(4): A(f"v_and_b32 v{80+i}, 0xffff0000, v{44+i}")
for i in range(4): A(f"v_sub_f32 v{80+i}, v{40+i}, v{80+i}")
for i in range(4): A(f"v_cvt_pk_bf16_f32 v{80+i}, v{80+i}, v{80+i}")
for i in range(4): A(f"v_cndmask_b32 v{44+i}, v{80+i}, v{44+i}, vcc")
for i in range(4):
    for d in range(4): A(f"v_and_b32 v{64+4*i+d}, v{44+i}, v{16+d}")
A(f"""
s_cmp_lg_u32 s{sW}, 0
s_cbranch_scc1 L_rw0
s_waitcnt vmcnt(1)
s_branch L_rgo
L_rw0:
s_waitcnt vmcnt(0)
L_rgo:
""")
for i in range(4): mf16(40, 48+4*i, 64+4*i, i == 0)
for j in range(4): A(f"v_add_f32_dpp v{40+j}, v{40+j}, v{40+j} row_ror:8 {DPPF}")
A(f"""
v_cvt_pk_bf16_f32 v44, v40, v41
v_cvt_pk_bf16_f32 v45, v42, v43
v_min_u32 v44, -2, v44
v_min_u32 v45, -2, v45
s_mov_b32 exec_lo, 0x00ff00ff
s_mov_b32 exec_hi, 0x00ff00ff
buffer_store_dwordx2 v[44:45], v28, {WS}, s71 offen sc1
s_mov_b64 exec, -1
""")
ST(7)
if OPT['local'] and OPT['wb']:
    A(f"""
    s_cmp_lg_u32 s{sK}, 0
    s_cbranch_scc1 L_end
    s_waitcnt vmcnt(0)
    s_barrier
    s_cmp_lg_u32 s{sW}, 0
    s_cbranch_scc1 L_end
    buffer_wbl2 sc1
    """)
if OPT['local']:
    finish()
    A("L_pvfar:")
    A("s_nop 7")
    pv_store("sc1")
    A("s_branch L_pvback")

A("L_end:")
if OPT['stamps']:
    A("s_waitcnt vmcnt(0)")
    ST(8)
    A(f"""
    s_waitcnt lgkmcnt(0)
    s_lshl_b32 s66, s2, 3
    s_add_u32 s66, s66, s{sW}
    s_lshl_b32 s66, s66, 6
    s_add_u32 s66, s66, {WS_ST}
    s_getreg_b32 s67, hwreg(HW_REG_XCC_ID)
    s_mov_b64 exec, 1
    v_mov_b32 v8, 0
    """)
    for i in range(3):
        A("\n".join(f"v_mov_b32 v{12+j}, s{80+2*(3*i+j)}" for j in range(3)))
        A(f"v_mov_b32 v15, {['s67','s77','s98'][i]}")
        A(f"buffer_store_dwordx4 v[12:15], v8, {WS}, s66 offen offset:{16*i}")
if OPT['hold']:
    A(f"L_hold:\ns_memrealtime s[66:67]\ns_waitcnt lgkmcnt(0)\ns_sub_u32 s68, s66, s80\ns_cmp_lt_u32 s68, {OPT['hold']}\ns_cbranch_scc1 L_hold")
A("L_exit:\ns_endpgm")
A.raw(f""".section .rodata,"a"
.p2align 6
.amdhsa_kernel {NAME}_kernel
  .amdhsa_next_free_vgpr 256
  .amdhsa_next_free_sgpr 102
  .amdhsa_accum_offset 256
  .amdhsa_group_segment_fixed_size 0
  .amdhsa_kernarg_size 104
  .amdhsa_user_sgpr_count 2
  .amdhsa_user_sgpr_kernarg_segment_ptr 1
  .amdhsa_system_sgpr_workgroup_id_x 1
  .amdhsa_float_denorm_mode_32 3
.end_amdhsa_kernel""")
sys.stdout.write(A.text())
sys.stderr.write(f"instructions {A.count} nops {A.nops}\n")
```

```python
import sys, math, struct
from asmx import Asm, NAME

OPT = dict(stamps=0, local=1, hold=0, pf=1, exp=0, gbar=8, rsleep=2, help=1, fslow=0, tslow=0, wb=0, gap=0, prio=1, ukw=0, wqh=1, adel=1, psl=6)
for a in sys.argv[1:]:
    k, v = a.split("="); assert k in OPT, k; OPT[k] = int(v)

WS_PF  = 0x010000
WS_FF  = 0x020000
WS_XT  = 0x030000
WS_H1  = 0x040000
WS_H1L = 0x0C0000
WS_H2  = 0x080000
WS_PQ  = 0x0A0000
WS_FLG = 0x100000
WS_H3B = 0x140000
WS_H5  = 0x200000
WS_H3A = 0x400000
WS_ST  = 0x800000
POLL_MAX = 60000 if not OPT['exp'] else 40

P_X, P_CKV, P_WQ, P_WUK, P_WUV, P_WO, P_BX, P_WG, P_WU, P_WD, P_OUT, P_DBG = [16+2*i for i in range(12)]
sSL, sF = 40, 41
sE, sT, sW, sX, sK, sH = 42, 43, 44, 45, 46, 47
WS = "s[48:51]"; RA = "s[52:55]"; RB = "s[56:59]"; RC = "s[60:63]"
sQD, sA_ = 64, 65
A = Asm()
NQPART = [True]

def srd(base, ptr, size):
    A(f"s_mov_b32 s{base}, s{ptr}\ns_mov_b32 s{base+1}, s{ptr+1}\ns_mov_b32 s{base+2}, {size}\ns_mov_b32 s{base+3}, 0x20000")
def ST(i, mode=1):
    if OPT['stamps'] == mode or (OPT['stamps'] and i in (0, 8)): A(f"s_memrealtime s[{80+2*i}:{81+2*i}]")
def vr(a, n): return f"v[{a}:{a+n-1}]"
def dma(voff, rsrc, soff, flags="nt"):
    A(f"buffer_load_dwordx4 v{voff}, {rsrc}, s{soff} offen {flags} lds")
def finish(): A("s_branch L_end")
def get_tag():
    A(f"s_add_u32 s{sE}, s{sE}, 1\ns_mul_i32 s{sT}, s{sE}, 0x9E3779B1\ns_xor_b32 s{sT}, s{sT}, 0x5BD1E995")
def rb16(dst, src):
    A(f"v_cvt_pk_bf16_f32 v{dst}, v{src}, v{src}\nv_lshlrev_b32 v{dst}, 16, v{dst}")
DPPF = "row_mask:0xf bank_mask:0xf"
QP1 = "quad_perm:[1,0,3,2] " + DPPF
def wave_sum_to_sgpr(v, s):
    for r in (8, 4, 2, 1): A(f"v_add_f32_dpp v{v}, v{v}, v{v} row_ror:{r} {DPPF}")
    A(f"v_add_f32_dpp v{v}, v{v}, v{v} row_bcast:15 row_mask:0xa bank_mask:0xf")
    A(f"v_add_f32_dpp v{v}, v{v}, v{v} row_bcast:31 row_mask:0xc bank_mask:0xf")
    A(f"v_readlane_b32 s{s}, v{v}, 63")
def fbits(x): return "0x%08x" % struct.unpack("<I", struct.pack("<f", x))[0]
def mf16(d, a, b, first): A(f"v_mfma_f32_16x16x32_bf16 {vr(d,4)}, {vr(a,4)}, {vr(b,4)}, {'0' if first else vr(d,4)}")
def mf32(d, a, b, first): A(f"v_mfma_f32_32x32x16_bf16 {vr(d,16)}, {vr(a,4)}, {vr(b,4)}, {'0' if first else vr(d,16)}")
def ones(v): A("\n".join(f"v_mov_b32 v{v+j}, -1" for j in range(4)))
LOG2E = 1.4426950408889634

A.raw("; @launch grid=(256,1,1) block=(512,1,1) lds=163840")
A.raw('.amdgcn_target "amdgcn-amd-amdhsa--gfx950"')
A.raw(f".text\n.globl {NAME}_kernel\n.p2align 8\n.type {NAME}_kernel,@function\n{NAME}_kernel:")
vL = 1
ST(0)
A(f"""
s_load_dwordx2 s[48:49], s[0:1], 96
s_load_dwordx2 s[52:53], s[0:1], 0
s_load_dwordx2 s[56:57], s[0:1], 16
s_load_dwordx2 s[60:61], s[0:1], 24
s_load_dwordx16 s[16:31], s[0:1], 0
s_load_dwordx8 s[32:39], s[0:1], 64
s_cmp_ge_u32 s2, 256
s_cbranch_scc1 L_exit
v_lshrrev_b32 v2, 6, v0
v_and_b32 v{vL}, 63, v0
v_readfirstlane_b32 s{sW}, v2
s_and_b32 s{sX}, s2, 7
s_lshr_b32 s{sK}, s2, 3
v_lshlrev_b32 v9, 4, v{vL}
s_mov_b32 s50, 0x10000000
s_mov_b32 s51, 0x20000
s_mov_b32 s55, 0x20000
s_mov_b32 s58, {576*8192}
s_mov_b32 s59, 0x20000
s_mov_b32 s62, {512*8192}
s_mov_b32 s63, 0x20000
s_cmp_lt_u32 s2, 128
s_cbranch_scc1 L_att
""")
def lane_consts():
    A(f"v_lshrrev_b32 v2, 3, v{vL}\nv_and_b32 v3, 7, v{vL}\nv_lshrrev_b32 v4, 4, v{vL}\nv_bfe_u32 v5, v{vL}, 2, 2\nv_and_b32 v6, 3, v{vL}\nv_lshlrev_b32 v7, 4, v0\nv_mov_b32 v8, 0")
    if OPT['stamps']:
        for i in range(82, 102): A(f"s_mov_b32 s{i}, 0")

XN, XNS = 0, 1216
QL, QLS = 5120, 320
HB, HBS = 9728, 192
BIG = 16384
vTR = 13
vD = 28
def common_setup():
    lane_consts()
    A(f"""
    s_and_b32 s67, s{sW}, 1
    s_lshl_b32 s68, s67, 2
    v_and_b32 v11, 2, v2
    v_or_b32 v11, s68, v11
    v_xor_b32 v11, v11, v3
    v_lshlrev_b32 v11, 4, v11
    v_lshl_add_u32 v12, v2, 13, v11
    s_lshr_b32 s68, s{sW}, 1
    s_bfe_u32 s69, s{sW}, 0x10001
    s_lshr_b32 s70, s{sW}, 2
    """)
def common_setup2():
    A(f"""
    s_and_b32 s74, s{sW}, 3
    s_lshl_b32 s74, s74, 1
    v_lshrrev_b32 v{vTR}, 1, v6
    v_or_b32 v{vTR}, s74, v{vTR}
    v_and_b32 v14, 2, v5
    v_xor_b32 v{vTR}, v{vTR}, v14
    v_and_b32 v14, 1, v4
    v_lshlrev_b32 v15, 2, v14
    v_xor_b32 v{vTR}, v{vTR}, v15
    v_lshlrev_b32 v{vTR}, 4, v{vTR}
    v_lshl_add_u32 v{vTR}, v5, 7, v{vTR}
    v_and_b32 v15, 1, v6
    v_lshl_add_u32 v{vTR}, v15, 3, v{vTR}
    s_lshl_b32 s74, s70, 10
    s_add_u32 s74, s74, {BIG}
    v_add_u32 v15, s74, v{vTR}
    v_lshl_add_u32 v16, v4, 11, v15
    v_mul_u32_u24 v18, {XNS}, v6
    v_lshl_add_u32 v18, v4, 4, v18
    s_mov_b32 s78, 0x000f000f
    s_mov_b32 s79, 0x000f000f
    """)
def x_loads():
    A(f"""
    s_mul_i32 s66, s{sW}, 1152
    v_lshlrev_b32 v10, 3, v{vL}
    v_lshlrev_b32 v19, 1, v{vL}
    buffer_load_dwordx2 v[20:21], v10, {RA}, s66 offen
    buffer_load_dwordx2 v[22:23], v10, {RA}, s66 offen offset:512
    buffer_load_ushort v24, v19, {RA}, s66 offen offset:1024
    """)
def layernorm():
    e = list(range(56, 65))
    for i in range(4): A(f"v_lshlrev_b32 v{e[2*i]}, 16, v{20+i}\nv_and_b32 v{e[2*i+1]}, 0xffff0000, v{20+i}")
    A(f"""
    v_lshlrev_b32 v{e[8]}, 16, v24
    v_add_f32 v25, v{e[0]}, v{e[1]}
    v_add_f32 v26, v{e[2]}, v{e[3]}
    v_add_f32 v27, v{e[4]}, v{e[5]}
    v_add_f32 v28, v{e[6]}, v{e[7]}
    v_add_f32 v25, v25, v26
    v_add_f32 v27, v27, v28
    v_add_f32 v25, v25, v{e[8]}
    v_add_f32 v25, v25, v27
    """)
    wave_sum_to_sgpr(25, 74)
    A(f"v_mov_b32 v26, {fbits(1.0/576)}\nv_mul_f32 v26, s74, v26")
    A(f"v_sub_f32 v27, v{e[0]}, v26\nv_mul_f32 v25, v27, v27")
    for i in range(1, 9): A(f"v_sub_f32 v27, v{e[i]}, v26\nv_fmac_f32 v25, v27, v27")
    rb16(26, 26)
    for i in range(9): A(f"v_sub_f32 v{e[i]}, v{e[i]}, v26")
    wave_sum_to_sgpr(25, 74)
    A(f"v_mov_b32 v27, {fbits(1.0/576)}\nv_mul_f32 v27, s74, v27")
    rb16(27, 27)
    A(f"v_add_f32 v27, {fbits(1e-5)}, v27")
    rb16(27, 27)
    A("v_sqrt_f32 v27, v27")
    rb16(27, 27)
    A("v_rcp_f32 v27, v27")
    for i in range(0, 8, 2): A(f"v_cvt_pk_bf16_f32 v{20+i//2}, v{e[i]}, v{e[i+1]}")
    A(f"v_cvt_pk_bf16_f32 v24, v{e[8]}, v{e[8]}")
    for i in range(0, 8, 2): A(f"v_lshlrev_b32 v{e[i]}, 16, v{20+i//2}\nv_and_b32 v{e[i+1]}, 0xffff0000, v{20+i//2}")
    A(f"v_lshlrev_b32 v{e[8]}, 16, v24")
    for i in range(9): A(f"v_mul_f32 v{e[i]}, v{e[i]}, v27")
    for i in range(0, 8, 2): A(f"v_cvt_pk_bf16_f32 v{20+i//2}, v{e[i]}, v{e[i+1]}")
    A(f"v_cvt_pk_bf16_f32 v24, v{e[8]}, v{e[8]}")
    A(f"""
    s_mul_i32 s74, s{sW}, {XNS}
    v_add_u32 v10, s74, v10
    v_add_u32 v19, s74, v19
    ds_write_b64 v10, v[20:21] offset:{XN}
    ds_write_b64 v10, v[22:23] offset:{XN+512}
    ds_write_b16 v19, v24 offset:{XN+1024}
    """)
def clear_tail_inbox(vones):
    A(f"s_lshl_b32 s74, s{sH}, 14\ns_add_u32 s74, s74, {WS_H3B}")
    for i in range(4):
        A(f"buffer_store_dwordx4 {vr(vones,4)}, v9, {WS}, s74 offen sc1\nbuffer_store_dwordx4 {vr(vones,4)}, v9, {WS}, s74 offen offset:2048 sc1")
        if i < 3: A("s_add_u32 s74, s74, 4096")
    A(f"s_sub_u32 s74, s74, {3*4096}\nv_lshlrev_b32 v14, 11, v2\nv_lshl_add_u32 v14, v3, 4, v14")
    A(f"buffer_store_dwordx4 {vr(vones,4)}, v14, {WS}, s74 offen offset:1024 sc1")
def proof(sidx):
    A(f"""
    s_lshl_b32 s74, s{sidx}, 7
    s_add_u32 s74, s74, {WS_PF}
    v_mov_b32 v14, s{sT}
    v_lshlrev_b32 v17, 2, v{vL}
    s_mov_b32 exec_hi, 0
    buffer_store_dword v14, v17, {WS}, s74 offen sc1
    s_mov_b64 exec, -1
    """)
vXN, vG = 32, 104
def xn_frags():
    for kp in range(18):
        A(f"ds_read_b128 {vr(vXN+4*kp,4)}, v18 offset:{XN+kp*64}")
        if kp == 11: A("s_waitcnt lgkmcnt(4)")
def k_half(h, va, vb):
    for kp in range(9):
        a, off = (va, kp*8192) if kp < 8 else (vb, 0)
        A(f"ds_read_b64_tr_b16 {vr(vG+4*kp,2)}, v{a} offset:{off}")
        A(f"ds_read_b64_tr_b16 {vr(vG+4*kp+2,2)}, v{a} offset:{off+512}")
        if kp == 5: A("s_waitcnt lgkmcnt(6)")
    for kp in range(9):
        A(f"s_waitcnt lgkmcnt({min(15,2*(8-kp))})")
        mf16(vD, vG+4*kp, vXN+4*(9*h+kp), h == 0 and kp == 0)

QP, QPS = 5120, 272
WQB = BIG + 108*1024
UKB = BIG
sU = 76
def f_setup():
    A(f"""
    s_lshl_b32 s71, s{sA_}, 1
    s_add_u32 s71, s71, s{sQD}
    s_cmp_eq_u32 s{sA_}, 3
    s_cselect_b32 s72, 1, 2
    s_sub_u32 s71, s71, s72
    s_mul_i32 s{sU}, s{sX}, 9
    s_add_u32 s{sU}, s{sU}, s71
    s_lshr_b32 s{sF}, s{sU}, 1
    s_bitcmp1_b32 s{sU}, 0
    s_cselect_b32 s{sF}, 99, s{sF}
    s_cmp_eq_u32 s69, 0
    s_cselect_b32 s60, s{P_WG}, s{P_WU}
    s_cselect_b32 s61, s{P_WG+1}, s{P_WU+1}
    s_mov_b32 s62, {576*9216}
    s_lshl_b32 s72, s67, 1
    s_lshl_b32 s71, s69, 2
    s_or_b32 s72, s72, s71
    v_bfe_u32 v14, v2, 1, 1
    v_or_b32 v14, s72, v14
    v_xor_b32 v14, v14, v3
    v_lshlrev_b32 v14, 4, v14
    v_mul_u32_u24 v12, 9216, v2
    v_add_u32 v12, v12, v14
    s_lshl_b32 s71, s70, 1
    s_add_u32 s71, s71, s67
    s_mul_i32 s72, s71, {8*9216}
    s_lshl_b32 s74, s{sU}, 7
    s_add_u32 s72, s72, s74
    s_lshl_b32 s71, s71, 1
    s_add_u32 s71, s71, s69
    s_lshl_b32 s71, s71, 10
    s_add_u32 s71, s71, {BIG}
    """)
def gu_dma(i):
    A(f"s_mov_b32 m0, s71\ns_add_u32 s71, s71, 8192")
    dma(12, RC, 72)
    A(f"s_add_u32 s72, s72, {32*9216}")
A(f"""
L_nq:
s_bfe_u32 s{sA_}, s2, 0x20005
s_bfe_u32 s{sQD}, s2, 0x20003
s_lshl_b32 s{sH}, s{sX}, 2
s_add_u32 s{sH}, s{sH}, s{sA_}
s_mov_b32 s54, 4608
v_lshrrev_b32 v2, 3, v{vL}
v_and_b32 v3, 7, v{vL}
s_and_b32 s67, s{sW}, 1
s_lshl_b32 s68, s67, 2
v_and_b32 v11, 2, v2
v_or_b32 v11, s68, v11
v_xor_b32 v11, v11, v3
v_lshlrev_b32 v11, 4, v11
v_lshl_add_u32 v12, v2, 13, v11
s_bfe_u32 s69, s{sW}, 0x10001
s_lshr_b32 s70, s{sW}, 2
s_mul_i32 s71, s70, 10
s_add_u32 s71, s71, s67
s_mul_i32 s72, s{sQD}, 18
s_add_u32 s72, s72, s71
s_lshl_b32 s72, s72, 16
s_lshl_b32 s73, s{sH}, 8
s_lshl_b32 s74, s69, 7
s_add_u32 s73, s73, s74
s_add_u32 s72, s72, s73
s_lshl_b32 s71, s71, 1
s_add_u32 s71, s71, s69
s_lshl_b32 s71, s71, 10
s_add_u32 s71, s71, {WQB}
s_mov_b32 m0, s71
s_cmp_lg_u32 s70, 0
s_waitcnt lgkmcnt(0)
s_cbranch_scc1 L_nq_nox
""")
x_loads()
dma(12, RB, 72)
A(f"s_add_u32 s71, s71, 4096\ns_add_u32 s72, s72, {2*65536}\ns_mov_b32 m0, s71\nL_nq_nox:")
for i in range(4):
    A(f"s_add_u32 s71, s71, 4096")
    dma(12, RB, 72)
    if i < 3: A(f"s_add_u32 s72, s72, {2*65536}\ns_mov_b32 m0, s71")
A(f"s_load_dword s{sE}, s[48:49], 0")
lane_consts()
ST(1, 2)
A(f"s_lshr_b32 s68, s{sW}, 1\ns_cmp_ge_u32 s{sQD}, 2\ns_cbranch_scc1 L_nq_fs")
A(f"""
s_lshl_b32 s71, s70, 3
s_add_u32 s71, s71, s67
s_lshl_b32 s72, s{sQD}, 5
s_add_u32 s72, s72, s71
s_lshl_b32 s72, s72, 16
s_add_u32 s72, s72, s73
s_lshl_b32 s71, s71, 1
s_add_u32 s71, s71, s69
s_lshl_b32 s71, s71, 10
s_add_u32 s71, s71, {UKB}
s_cmp_eq_u32 s70, 0
s_cbranch_scc1 L_nq_ln
""")
ones(24)
A(f"""
s_lshl_b32 s75, s{sW}, 12
s_lshl_b32 s74, s{sH}, 14
s_add_u32 s74, s74, s75
s_add_u32 s74, s74, {WS_H3B-16384}
buffer_store_dwordx4 v[24:27], v9, {WS}, s74 offen sc1
buffer_store_dwordx4 v[24:27], v9, {WS}, s74 offen offset:2048 sc1
s_mov_b64 exec, 0xff
buffer_store_dwordx4 v[24:27], v9, {WS}, s74 offen offset:1024 sc1
buffer_store_dwordx4 v[24:27], v9, {WS}, s74 offen offset:3072 sc1
s_lshl_b32 s75, s{sW}, 15
s_lshl_b32 s74, s{sH}, 10
s_add_u32 s74, s74, s75
s_lshl_b32 s75, s{sQD}, 9
s_add_u32 s74, s74, s75
s_add_u32 s74, s74, {WS_H2-4*32768}
s_mov_b32 exec_lo, -1
buffer_store_dwordx4 v[24:27], v9, {WS}, s74 offen sc1
s_mov_b64 exec, -1
s_branch L_nq_noln
L_nq_fs:
""")
f_setup()
A(f"s_cmp_lg_u32 s70, 0\ns_cbranch_scc1 L_nq_noln\nL_nq_ln:\ns_waitcnt vmcnt(5)")
ST(2, 2)
layernorm()
A("L_nq_noln:")
ST(3, 2)
common_setup2()
A(f"""
v_add_u32 v21, {WQB-BIG}, v16
v_and_b32 v14, 1, v4
v_lshl_add_u32 v17, v14, 11, v15
v_add_u32 v17, {WQB-BIG}, v17
s_mul_i32 s74, s{sQD}, 288
v_add_u32 v19, s74, v18
s_lshl_b32 s66, s{sH}, 13
s_add_u32 s66, s66, {WS_H1L}
s_lshl_b32 s75, s{sQD}, 11
s_add_u32 s75, s75, s66
s_lshl_b32 s77, s{sW}, 8
s_add_u32 s75, s75, s77
v_lshlrev_b32 v20, 6, v6
v_lshl_add_u32 v20, v4, 4, v20
v_cmp_gt_u32 vcc, 2, v4
s_cmp_lt_u32 s{sQD}, 2
s_cbranch_scc1 L_nq_uk
s_waitcnt vmcnt(0)
""")
for i in range(OPT['gap']): gu_dma(i)
A(f"""
s_branch L_nq_a
L_nq_uk:
s_waitcnt vmcnt(5)
s_cmp_lg_u32 s70, 0
s_cbranch_scc1 L_nq_uk2
s_waitcnt vmcnt(0)
L_nq_uk2:
""")
for i in range(4):
    A(f"s_mov_b32 m0, s71\ns_add_u32 s71, s71, 4096")
    dma(12, RC, 72)
    A(f"s_add_u32 s72, s72, {2*65536}")
A("L_nq_a:\ns_waitcnt lgkmcnt(0)")
ST(1); ST(5, 2)
A("s_barrier")
vA, vB = 64, 96
for kp in range(5):
    a = 21 if kp < 4 else 17
    A(f"ds_read_b64_tr_b16 {vr(vA+4*kp,2)}, v{a} offset:{kp*8192}")
    A(f"ds_read_b64_tr_b16 {vr(vA+4*kp+2,2)}, v{a} offset:{kp*8192+512}")
    A(f"ds_read_b128 {vr(vB+4*kp,4)}, v19 offset:{XN+kp*64}")
get_tag()
A(f"v_mov_b32 v25, s{sT}\nv_mov_b32 v27, s{sT}")
for kp in range(5):
    A(f"s_waitcnt lgkmcnt({3*(4-kp)})")
    if kp == 4:
        for j in range(4): A(f"v_cndmask_b32 v{vB+16+j}, 0, v{vB+16+j}, vcc")
    mf16(vD, vA+4*kp, vB+4*kp, kp == 0)
H1D = WS_H1L - WS_H1
A(f"""
v_and_b32 v52, 1, v2
v_and_b32 v53, 2, v3
v_lshl_or_b32 v53, v52, 2, v53
v_xor_b32 v53, v53, v4
v_lshlrev_b32 v53, 4, v53
v_lshl_add_u32 v53, v3, 7, v53
v_lshl_add_u32 v52, v52, 11, v53
v_cvt_pk_bf16_f32 v24, v{vD}, v{vD+1}
v_cvt_pk_bf16_f32 v26, v{vD+2}, v{vD+3}
s_mov_b64 exec, s[78:79]
buffer_store_dwordx4 v[24:27], v20, {WS}, s75 offen
s_sub_u32 s75, s75, {H1D}
s_cmp_lt_u32 s{sQD}, 2
s_cbranch_scc1 L_nq_b
buffer_store_dwordx4 v[24:27], v20, {WS}, s75 offen sc1
s_mov_b64 exec, -1
""")
ST(2); ST(6, 2)
A(f"s_barrier\ns_branch L_F\nL_nq_b:\ns_mov_b64 exec, -1")
ST(2); ST(6, 2)
A(f"s_barrier\ns_add_u32 s71, s71, 16384\ns_add_u32 s72, s72, {8*65536}")
for i in range(4):
    A(f"s_mov_b32 m0, s71\ns_add_u32 s71, s71, 4096")
    dma(12, RC, 72)
    if i < 3: A(f"s_add_u32 s72, s72, {2*65536}")
A(f"""
s_mul_i32 s74, s68, {4*QPS}
s_lshl_b32 s77, s67, 7
s_add_u32 s74, s74, s77
v_mul_u32_u24 v22, {QPS}, v5
v_lshl_add_u32 v22, v4, 5, v22
v_lshl_add_u32 v22, v6, 3, v22
v_add_u32 v22, s74, v22
s_lshl_b32 s77, s{sW}, 13
s_add_u32 s77, s77, {UKB}
v_add_u32 v52, s77, v52
v_xor_b32 v53, 64, v52
v_and_b32 v23, 15, v{vL}
v_mul_u32_u24 v23, {QPS}, v23
v_lshl_add_u32 v23, v4, 4, v23
s_lshl_b32 s72, s{sH}, 10
s_lshl_b32 s74, s{sQD}, 9
s_add_u32 s72, s72, s74
s_lshl_b32 s74, s{sW}, 6
s_add_u32 s72, s72, s74
s_add_u32 s72, s72, {WS_H2}
v_and_b32 v21, 1, v5
v_lshlrev_b32 v54, 15, v6
v_lshlrev_b32 v55, 13, v2
v_lshl_add_u32 v55, v3, 4, v55
s_lshl_b32 s76, s{sH}, 8
s_lshl_b32 s74, s{sQD}, 7
s_add_u32 s76, s76, s74
s_add_u32 s76, s76, {WS_PQ}
v_mov_b32 v44, s{sT}
v_mov_b32 v45, s{sT}
v_mov_b32 v46, s{sT}
v_mov_b32 v47, s{sT}
v_lshl_add_u32 v54, v21, 5, v54
v_lshl_add_u32 v54, v4, 3, v54
s_sub_u32 s71, s66, {H1D}
s_mov_b32 s77, 0
L_h1poll:
s_cmp_lg_u32 s77, 6
s_cbranch_scc1 L_h1ng
s_mov_b64 exec, s[78:79]
buffer_store_dwordx4 v[24:27], v20, {WS}, s75 offen sc1
s_mov_b64 exec, -1
L_h1ng:
s_and_b32 s74, s77, 9
s_cmp_eq_u32 s74, 9
s_cselect_b32 s74, s71, s66
buffer_load_dwordx4 v[48:51], v7, {WS}, s74 offen sc1
s_add_u32 s77, s77, 1
s_waitcnt vmcnt(0)
v_xor_b32 v49, s{sT}, v49
v_xor_b32 v51, s{sT}, v51
v_or_b32 v49, v49, v51
v_cmp_ne_u32 vcc, 0, v49
s_cmp_ge_u32 s77, {POLL_MAX}
s_cbranch_scc1 L_h1done
s_cbranch_vccnz L_h1poll
L_h1done:
v_mov_b32 v49, v50
ds_write_b64 v22, v[48:49] offset:{QP}
s_cmp_gt_u32 s77, 6
s_cbranch_scc1 L_h1sent
s_mov_b64 exec, s[78:79]
buffer_store_dwordx4 v[24:27], v20, {WS}, s75 offen sc1
s_mov_b64 exec, -1
L_h1sent:
""")
A(f"L_h1np:\nv_cmp_ne_u32 vcc, 0, v21\ns_waitcnt lgkmcnt(0)")
ST(3); ST(7, 2)
A(f"s_barrier\ns_cmp_lg_u32 s{sW}, 0\ns_cbranch_scc1 L_nopq\nbuffer_store_dwordx4 v[44:47], v55, {WS}, s76 offen sc1\nL_nopq:")
vUK, vD1 = 64, 56
for kp in range(4):
    A(f"ds_read_b128 {vr(vB+4*kp,4)}, v23 offset:{QP+kp*64}")
    for tl in range(2):
        A(f"ds_read_b128 {vr(vUK+16*tl+4*kp,4)}, v{52+(kp&1)} offset:{tl*4096+(kp>>1)*1024}")
A(f"s_mov_b32 s74, {fbits(LOG2E/math.sqrt(128.0))}")
for kp in range(4):
    A(f"s_waitcnt lgkmcnt({9-3*kp+1})")
    mf16(vD, vUK+4*kp, vB+4*kp, kp == 0)
    A(f"s_waitcnt lgkmcnt({9-3*kp})")
    mf16(vD1, vUK+16+4*kp, vB+4*kp, kp == 0)
for j in range(4): A(f"v_cndmask_b32 v{60+j}, v{vD1+j}, v{vD+j}, vcc")
for j in range(4): A(f"v_cndmask_b32 v{vD+j}, v{vD+j}, v{vD1+j}, vcc")
for j in range(4): A(f"v_add_f32_dpp v{vD+j}, v{60+j}, v{vD+j} row_ror:4 {DPPF}")
for j in range(4): A(f"v_add_f32_dpp v{vD+j}, v{vD+j}, v{vD+j} row_ror:8 {DPPF}")
for j in range(4): A(f"v_mul_f32 v{vD+j}, s74, v{vD+j}")
A(f"""
v_cvt_pk_bf16_f32 v48, v{vD}, v{vD+1}
v_cvt_pk_bf16_f32 v49, v{vD+2}, v{vD+3}
v_min_u32 v48, -2, v48
v_min_u32 v49, -2, v49
s_mov_b32 exec_lo, 0x00ff00ff
s_mov_b32 exec_hi, 0x00ff00ff
buffer_store_dwordx2 v[48:49], v54, {WS}, s72 offen sc1
s_mov_b64 exec, -1
""")
ST(4); ST(9, 2)
A(f"""
s_barrier
s_cmp_lt_u32 s{sA_}, 3
s_cbranch_scc1 L_TH
s_cmp_eq_u32 s{sQD}, 0
s_cbranch_scc1 L_T
""")
f_setup()
for i in range(OPT['gap']): gu_dma(i)
A("s_branch L_F")

def wide_voffset(v):
    A(f"v_mul_u32_u24 v{v}, 1152, v2\nv_add_u32 v{v}, v{v}, v11")
def publish_setup(stride):
    A(f"""
    s_mul_i32 s74, s{sW}, {stride}
    s_add_u32 s72, s72, s74
    v_lshlrev_b32 v20, 6, v4
    v_lshl_add_u32 v20, v6, 4, v20
    """)
def store_tile(vacc, i, stride, sent):
    if sent:
        for j in range(4): A(f"v_min_u32 v{vacc+4*i+j}, -2, v{vacc+4*i+j}")
    A(f"s_mov_b64 exec, s[78:79]")
    A(f"buffer_store_dwordx4 {vr(vacc+4*i,4)}, v20, {WS}, s72 offen sc1")
    A(f"s_mov_b64 exec, -1")
    A(f"s_add_u32 s72, s72, {8*stride}")
def wide_dma(n, rsrc):
    for i in range(n):
        A(f"s_mov_b32 m0, s71\ns_add_u32 s74, s72, 512")
        dma(14, rsrc, 72)
        A(f"s_add_u32 s75, s71, 4096\ns_mov_b32 m0, s75\ns_add_u32 s72, s72, {16*1152}")
        dma(14, rsrc, 74)
        A(f"s_add_u32 s71, s71, 16384")
def wide_frag_addrs(base8, shift):
    A(f"v_lshl_add_u32 v16, v4, 13, v15")
    if shift: A(f"v_add_u32 v16, {shift}, v16")
    A(f"""
    v_add_u32 v17, 0x10000, v16
    v_lshl_add_u32 v18, v4, 10, v{vTR}
    v_add_u32 v18, {base8}, v18
    """)
def wide_frag_reads(vdst, nk):
    n = 0
    for i in range(4):
        for kp in range(nk):
            a = 16 if kp < 2 else 17
            off = (kp & 1)*32768 + i*2048
            d = vdst + (i*nk + kp)*4
            A(f"ds_read_b64_tr_b16 {vr(d,2)}, v{a} offset:{off}")
            A(f"ds_read_b64_tr_b16 {vr(d+2,2)}, v{a} offset:{off+512}")
            n += 2
            if n % 12 == 0: A("s_waitcnt lgkmcnt(4)")
    A("s_waitcnt lgkmcnt(4)")
    for kp in range(nk):
        d = vdst + (4*nk + kp)*4
        A(f"ds_read_b64_tr_b16 {vr(d,2)}, v18 offset:{kp*4096}")
        A(f"ds_read_b64_tr_b16 {vr(d+2,2)}, v18 offset:{kp*4096+512}")
def wide_gemm(vW, nk, vBf, vacc, stride, sent, lab):
    for i in range(5):
        if i == 4: A(f"s_cmp_lg_u32 s70, 0\ns_cbranch_scc1 {lab}_a")
        for kp in range(nk):
            if i == 0: A(f"s_waitcnt lgkmcnt({nk-1-kp})")
            mf16(vacc+4*i, vW+(i*nk+kp)*4, vBf+4*kp, kp == 0)
        if 2 <= i <= 3: store_tile(vacc, i-2, stride, sent)
    A(f"{lab}_a:")
    store_tile(vacc, 2, stride, sent)
    A("s_nop 2")
    store_tile(vacc, 3, stride, sent)
    A(f"s_cmp_lg_u32 s70, 0\ns_cbranch_scc1 {lab}_b")
    store_tile(vacc, 4, stride, sent)
    A(f"{lab}_b:")
def tail_prologue(lab, slot_code):
    common_setup2()
    A(f"s_mul_i32 s{sSL}, s{sX}, 7\n{slot_code}\ns_waitcnt lgkmcnt(0)")
    get_tag()
    A(f"s_cmp_lg_u32 s{sW}, 7\ns_cbranch_scc1 {lab}")
    ones(24)
    clear_tail_inbox(24)
    A("s_waitcnt vmcnt(0)")
    proof(sSL)
    A(f"{lab}:")

XL, CT, CTS = 0, 8192, 320
TS = 128*256
vUV, vWO = 32, 96
def t_setup():
    A(f"""
    v_lshlrev_b32 v21, 11, v3
    v_xor_b32 v22, v3, v4
    v_lshlrev_b32 v22, 4, v22
    v_lshl_add_u32 v22, v2, 11, v22
    v_and_b32 v12, 1, v2
    v_lshl_or_b32 v12, v12, 2, v4
    v_lshrrev_b32 v14, 1, v3
    v_xor_b32 v12, v12, v14
    v_lshlrev_b32 v12, 4, v12
    v_lshl_add_u32 v12, v3, 7, v12
    v_lshlrev_b32 v14, 3, v3
    s_lshl_b32 s66, s{sH}, 14
    s_add_u32 s66, s66, {WS_H3B}
    s_lshl_b32 s73, s{sW}, 7
    s_add_u32 s73, s73, s66
    s_lshl_b32 s72, s{sSL}, 8
    s_add_u32 s72, s72, {WS_H5}
    v_lshrrev_b32 v23, 1, v3
    v_mul_u32_u24 v23, {CTS}, v23
    v_lshl_add_u32 v23, v4, 3, v23
    s_lshl_b32 s74, s{sW}, 5
    v_add_u32 v23, s74, v23
    v_mul_u32_u24 v10, {CTS}, v6
    v_lshl_add_u32 v10, v4, 4, v10
    """)
    publish_setup(TS)
def t_tail(nk, lab):
    A(f"""
    s_cmp_lg_u32 s{sW}, 0
    s_cbranch_scc1 {lab}pd
    v_min_u32 v24, 35, v{vL}
    v_lshlrev_b32 v24, 7, v24
    s_mov_b32 s74, {WS_PF}
    s_mov_b32 s77, 0
    {lab}pp:
    buffer_load_dword v25, v24, {WS}, s74 offen sc1
    s_add_u32 s77, s77, 1
    s_waitcnt vmcnt(0)
    v_cmp_ne_u32 vcc, s{sT}, v25
    s_cmp_ge_u32 s77, {POLL_MAX}
    s_cbranch_scc1 {lab}pd
    s_cbranch_vccnz {lab}pp
    {lab}pd:
    """)
    ST(5); ST(7, 3)
    A(f"""
    s_mov_b32 s77, 0
    v_mov_b32 v28, 0
    v_mov_b32 v29, 0
    {lab}poll:
    buffer_load_dwordx4 v[24:27], v22, {WS}, s73 offen sc1
    s_cmp_lg_u32 s{sW}, 7
    s_cbranch_scc1 {lab}ns
    s_mov_b64 exec, 0xff
    buffer_load_dwordx2 v[28:29], v21, {WS}, s66 offen offset:1024 sc1
    s_mov_b64 exec, -1
    {lab}ns:
    s_add_u32 s77, s77, 1
    s_waitcnt vmcnt(0)
    v_max3_u32 v30, v24, v25, v26
    v_max3_u32 v30, v30, v27, v28
    v_max_u32 v30, v30, v29
    v_cmp_eq_u32 vcc, -1, v30
    s_cmp_ge_u32 s77, {POLL_MAX}
    s_cbranch_scc1 {lab}done
    s_cbranch_vccnz {lab}poll
    {lab}done:
    ds_write_b128 v7, v[24:27] offset:{XL}
    s_cmp_lg_u32 s{sW}, 7
    s_cbranch_scc1 {lab}nw
    s_mov_b64 exec, 0xff
    ds_write_b64 v14, v[28:29] offset:{CT+2048}
    s_mov_b64 exec, -1
    {lab}nw:
    s_waitcnt lgkmcnt(0)
    """)
    ST(6)
    A("s_barrier")
    if nk == 2: A(f"s_cmp_lg_u32 s70, 0\ns_cbranch_scc1 {lab}nouv")
    vX = 176
    A(f"ds_read_b64 v[28:29], v14 offset:{CT+2048}")
    for i in range(8): A(f"ds_read_b128 {vr(vX+4*i,4)}, v12 offset:{XL+i*1024}")
    a0, a1 = 24, 208
    for i in range(8):
        A(f"s_waitcnt lgkmcnt({7-i})")
        mf16(a0, vUV+8*i, vX+4*i, i == 0)
        mf16(a1, vUV+8*i+4, vX+4*i, i == 0)
    A(f"""
    v_max_f32_dpp v30, v28, v28 {QP1}
    v_sub_f32 v30, v28, v30
    v_exp_f32 v30, v30
    v_mul_f32 v31, v30, v29
    v_add_f32_dpp v31, v31, v31 {QP1}
    v_rcp_f32 v31, v31
    v_mul_f32 v30, v30, v31
    """)
    for j in range(4): A(f"v_add_f32_dpp v{a0+j}, v{a1+j}, v{a0+j} row_ror:8 {DPPF}")
    for j in range(4): A(f"v_mul_f32 v{a0+j}, v{a0+j}, v30")
    for j in range(4): A(f"v_add_f32_dpp v{a0+j}, v{a0+j}, v{a0+j} {QP1}")
    A(f"""
    v_cvt_pk_bf16_f32 v28, v{a0}, v{a0+1}
    v_cvt_pk_bf16_f32 v29, v{a0+2}, v{a0+3}
    s_mov_b32 exec_lo, 0x00550055
    s_mov_b32 exec_hi, 0x00550055
    ds_write_b64 v23, v[28:29] offset:{CT}
    s_mov_b64 exec, -1
    s_waitcnt lgkmcnt(0)
    {lab}nouv:
    s_barrier
    """)
    for kp in range(nk): A(f"ds_read_b128 {vr(vX+4*kp,4)}, v10 offset:{CT+kp*64}")
    wide_gemm(vWO, nk, vX, 212, TS, True, lab+"g")
    ST(7)
    finish()

A("L_TH:")
SLOT = f"s_lshl_b32 s74, s{sA_}, 1\ns_add_u32 s{sSL}, s{sSL}, s74\ns_add_u32 s{sSL}, s{sSL}, s{sQD}"
if OPT['help']:
    A(f"""
    s_lshl_b32 s66, s{sA_}, 1
    s_add_u32 s66, s66, s{sQD}
    s_lshl_b32 s66, s66, 3
    s_add_u32 s66, s66, s{sW}
    s_cmp_eq_u32 s67, 0
    s_cselect_b32 s52, s{P_WG}, s{P_WU}
    s_cselect_b32 s53, s{P_WG+1}, s{P_WU+1}
    s_mov_b32 s54, {576*9216}
    s_lshr_b32 s71, s66, 1
    s_add_u32 s71, s71, 40
    s_mul_i32 s71, s71, {8*9216}
    s_sub_u32 s72, 3, s{sX}
    s_and_b32 s72, s72, 7
    s_mul_i32 s73, s{sX}, 9
    s_add_u32 s74, s73, s72
    s_lshl_b32 s74, s74, 7
    s_add_u32 s71, s71, s74
    v_mul_u32_u24 v14, 9216, v2
    v_lshl_add_u32 v14, v3, 4, v14
    s_add_u32 s74, s71, {24*8*9216}
    buffer_load_dwordx4 v[248:251], v14, {RA}, s71 offen
    buffer_load_dwordx4 v[248:251], v14, {RA}, s74 offen
    s_cmp_lg_u32 s72, 0
    s_cbranch_scc1 L_noc3b
    buffer_load_dwordx4 v[248:251], v14, {RA}, s71 offen offset:1024
    buffer_load_dwordx4 v[248:251], v14, {RA}, s74 offen offset:1024
    L_noc3b:
    s_lshl_b32 s66, s66, 10
    s_mov_b32 s52, s{P_WD}
    s_mov_b32 s53, s{P_WD+1}
    s_add_u32 s73, s73, 6
    s_mul_i32 s73, s73, {64*1152}
    s_add_u32 s54, s73, {64*1152}
    s_add_u32 s73, s73, s66
    s_add_u32 s74, s73, {48*1024}
    buffer_load_dwordx4 v[248:251], v9, {RA}, s73 offen
    buffer_load_dwordx4 v[248:251], v9, {RA}, s74 offen
    s_mov_b32 s52, s{P_WO}
    s_mov_b32 s53, s{P_WO+1}
    s_lshl_b32 s73, s{sX}, 3
    s_add_u32 s73, s73, 7
    s_mul_i32 s73, s73, {64*1152}
    s_add_u32 s54, s73, {64*1152}
    s_add_u32 s73, s73, s66
    s_add_u32 s74, s73, {48*1024}
    buffer_load_dwordx4 v[248:251], v9, {RA}, s73 offen
    buffer_load_dwordx4 v[248:251], v9, {RA}, s74 offen
    """)
A(f"s_mul_i32 s{sSL}, s{sX}, 7\n{SLOT}")
ST(1, 3)
srd(52, P_WUV, 512*8192)
srd(56, P_WO, 4096*1152)
A(f"""
s_lshl_b32 s71, s{sW}, 10
s_add_u32 s71, s71, {BIG}
s_lshl_b32 s72, s68, 2
s_add_u32 s72, s72, s67
s_lshl_b32 s72, s72, 16
s_lshl_b32 s73, s{sH}, 1
s_add_u32 s73, s73, s{sQD}
s_lshl_b32 s74, s73, 7
s_add_u32 s72, s72, s74
""")
for i in range(8):
    cb = 2*(i&1) + 16*(i>>1)
    A(f"s_mov_b32 m0, s71\ns_add_u32 s74, s72, {cb*65536}")
    dma(12, RA, 74)
    A(f"s_add_u32 s71, s71, 8192")
    if i < OPT['tslow']: A("s_waitcnt vmcnt(0)")
wide_voffset(14)
A(f"""
s_mul_i32 s73, s73, {64*1152}
s_lshl_b32 s71, s67, 3
s_add_u32 s71, s71, s68
s_lshl_b32 s71, s71, 10
s_add_u32 s71, s71, {BIG+65536}
s_mul_i32 s72, s67, {8*1152}
s_lshl_b32 s74, s68, 7
s_add_u32 s72, s72, s74
s_add_u32 s72, s72, s73
""")
wide_dma(4, RB)
A(f"""
s_mul_i32 s72, s{sW}, {8*1152}
s_add_u32 s72, s72, s73
s_add_u32 s72, s72, 1024
s_lshl_b32 s71, s{sW}, 10
s_add_u32 s71, s71, {BIG+131072}
s_mov_b32 m0, s71
""")
dma(14, RB, 72)
wide_frag_addrs(BIG+131072, 65536)
A(f"v_lshl_add_u32 v19, v4, 10, v{vTR}\nv_add_u32 v19, {BIG}, v19")
t_setup()
ST(5, 3)
A("s_waitcnt vmcnt(0)")
ST(6, 3)
A("s_barrier")
for kp in range(16):
    A(f"ds_read_b64_tr_b16 {vr(vUV+4*kp,2)}, v19 offset:{kp*4096}")
    A(f"ds_read_b64_tr_b16 {vr(vUV+4*kp+2,2)}, v19 offset:{kp*4096+512}")
    if kp % 6 == 5: A("s_waitcnt lgkmcnt(4)")
A("s_waitcnt lgkmcnt(2)")
wide_frag_reads(vWO, 2)
t_tail(2, "L_u")

A("L_T:")
A(f"s_mul_i32 s{sSL}, s{sX}, 7\ns_add_u32 s{sSL}, s{sSL}, 6")
ST(1, 3)
srd(52, P_WUV, 512*8192)
srd(56, P_WO, 4096*1152)
A(f"""
s_lshl_b32 s71, s70, 1
s_add_u32 s71, s71, s67
s_lshl_b32 s71, s71, 1
s_add_u32 s71, s71, s69
s_lshl_b32 s71, s71, 10
s_add_u32 s71, s71, {BIG}
s_lshl_b32 s72, s70, 2
s_add_u32 s72, s72, s67
s_lshl_b32 s72, s72, 16
s_lshl_b32 s73, s{sH}, 8
s_lshl_b32 s74, s69, 7
s_add_u32 s73, s73, s74
s_add_u32 s72, s72, s73
""")
for i in range(16):
    cb = 2*((i>>1)&1) + 8*(i&1) + 16*(i>>2)
    A(f"s_mov_b32 m0, s71\ns_add_u32 s74, s72, {cb*65536}")
    dma(12, RA, 74)
    A(f"s_add_u32 s71, s71, 8192")
wide_voffset(14)
A(f"""
s_mul_i32 s66, s{sH}, {128*1152}
s_lshl_b32 s71, s68, 2
s_add_u32 s71, s71, s67
s_mul_i32 s72, s71, {8*1152}
s_add_u32 s72, s72, s66
s_add_u32 s72, s72, 1024
s_lshl_b32 s71, s71, 10
s_add_u32 s71, s71, {BIG+131072}
s_mov_b32 m0, s71
s_add_u32 s71, s71, 2048
""")
dma(14, RB, 72)
A(f"s_add_u32 s72, s72, {16*1152}\ns_mov_b32 m0, s71")
dma(14, RB, 72)
vST = 176
A(f"""
s_mul_i32 s72, s67, {8*1152}
s_lshl_b32 s74, s68, 7
s_add_u32 s72, s72, s74
s_add_u32 s72, s72, s66
s_barrier
""")
for i in range(4):
    A(f"buffer_load_dwordx4 {vr(vST+8*i,4)}, v14, {RB}, s72 offen nt")
    A(f"buffer_load_dwordx4 {vr(vST+8*i+4,4)}, v14, {RB}, s72 offen offset:512 nt")
    A(f"s_add_u32 s72, s72, {16*1152}")
A(f"v_add_u32 v17, 0x10000, v16")
ST(2, 3)
A("s_waitcnt vmcnt(10)")
ST(3, 3)
A("s_barrier")
for kp in range(16):
    a = 16 if kp < 8 else 17
    A(f"ds_read_b64_tr_b16 {vr(vUV+4*kp,2)}, v{a} offset:{(kp&7)*8192}")
    A(f"ds_read_b64_tr_b16 {vr(vUV+4*kp+2,2)}, v{a} offset:{(kp&7)*8192+512}")
    if kp % 6 == 5: A("s_waitcnt lgkmcnt(4)")
A(f"""
s_lshl_b32 s71, s67, 3
s_add_u32 s71, s71, s68
s_lshl_b32 s71, s71, 10
s_add_u32 s71, s71, {BIG}
v_add_u32 v19, s71, v9
s_add_u32 s71, s71, 65536
s_waitcnt lgkmcnt(0)
s_barrier
""")
ST(4, 3)
wide_dma(4, RB)
for i in range(8):
    A(f"s_waitcnt vmcnt({15-i})")
    A(f"ds_write_b128 v19, {vr(vST+4*i,4)} offset:{(i>>1)*16384+(i&1)*4096}")
wide_frag_addrs(BIG+131072, 0)
t_setup()
ST(5, 3)
A("s_waitcnt vmcnt(0) lgkmcnt(0)")
ST(6, 3)
A("s_barrier")
wide_frag_reads(vWO, 4)
t_tail(4, "L_t")

A("L_F:")
ST(1, 3)
A(f"s_cmp_ge_u32 s{sF}, 36\ns_cbranch_scc1 L_f_go")
ones(24)
A(f"s_lshl_b32 s74, s{sF}, 15\ns_lshl_b32 s75, s{sW}, 12\ns_add_u32 s74, s74, s75\ns_add_u32 s74, s74, {WS_H5}")
for i in range(4): A(f"buffer_store_dwordx4 v[24:27], v9, {WS}, s74 offen offset:{i*1024} sc1")
A(f"s_waitcnt vmcnt(0)\ns_barrier\ns_cmp_lg_u32 s{sW}, 0\ns_cbranch_scc1 L_f_go")
proof(sF)
A("L_f_go:")
for i in range(OPT['gap'], 18):
    if i < OPT['gap'] + OPT['fslow']: A("s_waitcnt vmcnt(0)")
    gu_dma(i)
srd(56, P_WD, 4608*1152)
wide_voffset(14)
vWD = 144
A(f"""
s_mul_i32 s73, s{sU}, {64*1152}
s_mul_i32 s72, s67, {8*1152}
s_lshl_b32 s74, s68, 7
s_add_u32 s72, s72, s74
s_add_u32 s72, s72, s73
v_min_u32 v140, 35, v{vL}
v_lshlrev_b32 v140, 7, v140
s_mov_b32 s66, {WS_PF}
s_cmp_lg_u32 s{sW}, 7
s_cbranch_scc1 L_f_np
buffer_load_dword v141, v140, {WS}, s66 offen sc1
L_f_np:
s_barrier
""")
for i in range(4):
    A(f"buffer_load_dwordx4 {vr(vWD+8*i,4)}, v14, {RB}, s72 offen nt")
    A(f"buffer_load_dwordx4 {vr(vWD+8*i+4,4)}, v14, {RB}, s72 offen offset:512 nt")
    A(f"s_add_u32 s72, s72, {16*1152}")
A(f"""
s_mul_i32 s72, s{sW}, {8*1152}
s_add_u32 s72, s72, s73
buffer_load_dwordx4 {vr(vWD+32,4)}, v14, {RB}, s72 offen offset:1024 nt
""")
xn_frags()
A(f"""
v_lshrrev_b32 v19, 1, v6
v_lshrrev_b32 v21, 1, v5
v_and_b32 v22, 1, v4
v_lshl_or_b32 v21, v22, 1, v21
v_lshl_or_b32 v21, v19, 2, v21
v_xor_b32 v21, s{sW}, v21
v_lshlrev_b32 v21, 4, v21
v_lshl_add_u32 v21, v5, 7, v21
v_and_b32 v22, 1, v6
v_lshl_add_u32 v21, v22, 3, v21
v_lshl_add_u32 v21, v19, 10, v21
v_lshl_add_u32 v21, v4, 11, v21
v_add_u32 v21, {BIG}, v21
v_add_u32 v22, {8*8192}, v21
s_lshl_b32 s71, s67, 3
s_add_u32 s71, s71, s68
s_lshl_b32 s71, s71, 10
s_add_u32 s71, s71, {BIG}
v_add_u32 v23, s71, v9
v_add_u32 v19, {BIG+65536}, v7
""")
ST(2, 3)
A("s_waitcnt vmcnt(9) lgkmcnt(0)")
ST(3, 3)
A("s_barrier")
k_half(0, 21, 22)
A(f"v_add_u32 v21, {9*8192}, v21\nv_add_u32 v22, {9*8192}, v22")
k_half(1, 21, 22)
A("s_barrier")
ST(4, 3)
wide_frag_addrs(BIG+65536, 0)
A(f"s_lshl_b32 s72, s{sU}, 8\ns_add_u32 s72, s72, {WS_H5+56*256}")
publish_setup(TS)
for j in range(4): A(f"v_mov_b32 v{24+j}, v{vD+j}")
for j in range(4): A(f"v_permlane32_swap_b32 v{vD+j}, v{24+j}")
C1 = -2.0*math.sqrt(2.0/math.pi)*LOG2E
A(f"s_mov_b32 s74, {fbits(0.044715)}\ns_mov_b32 s75, {fbits(C1)}")
for j in range(4): rb16(vD+j, vD+j); rb16(24+j, 24+j)
for j in range(4): A(f"v_mul_f32 v{104+j}, v{vD+j}, v{vD+j}")
for j in range(4): A(f"v_fma_f32 v{104+j}, v{104+j}, s74, 1.0")
for j in range(4): A(f"v_mul_f32 v{104+j}, v{104+j}, v{vD+j}")
for j in range(4): A(f"v_mul_f32 v{104+j}, s75, v{104+j}")
for j in range(4): A(f"v_exp_f32 v{104+j}, v{104+j}")
for j in range(4): A(f"v_add_f32 v{104+j}, 1.0, v{104+j}")
for j in range(4): A(f"v_rcp_f32 v{104+j}, v{104+j}")
for j in range(4): A(f"v_mul_f32 v{vD+j}, v{vD+j}, v{104+j}")
for j in range(4): rb16(vD+j, vD+j)
for j in range(4): A(f"v_mul_f32 v{vD+j}, v{vD+j}, v{24+j}")
A(f"""
v_cvt_pk_bf16_f32 v24, v{vD}, v{vD+1}
v_cvt_pk_bf16_f32 v25, v{vD+2}, v{vD+3}
v_mul_u32_u24 v22, {HBS}, v6
v_lshl_add_u32 v21, v4, 3, v22
s_lshl_b32 s74, s{sW}, 4
v_add_u32 v21, s74, v21
v_lshl_add_u32 v22, v4, 4, v22
s_mov_b64 exec, 0x000f000f
ds_write_b64 v21, v[24:25] offset:{HB}
s_mov_b64 exec, -1
""")
for i in range(8):
    A(f"s_waitcnt vmcnt({8-i})")
    A(f"ds_write_b128 v23, {vr(vWD+4*i,4)} offset:{(i>>1)*16384+(i&1)*4096}")
A(f"s_waitcnt vmcnt(0)\nds_write_b128 v19, {vr(vWD+32,4)}")
A(f"""
s_cmp_lg_u32 s{sW}, 7
s_cbranch_scc1 L_f_pd
s_mov_b32 s77, 0
L_f_pp:
v_cmp_ne_u32 vcc, s{sT}, v141
s_add_u32 s77, s77, 1
s_cbranch_vccz L_f_pd
s_cmp_ge_u32 s77, {POLL_MAX}
s_cbranch_scc1 L_f_pd
buffer_load_dword v141, v140, {WS}, s66 offen sc1
s_waitcnt vmcnt(0)
s_branch L_f_pp
L_f_pd:
s_waitcnt lgkmcnt(0)
""")
ST(1); ST(7, 3)
A("s_barrier")
wide_frag_reads(32, 2)
for kp in range(2): A(f"ds_read_b128 {vr(104+4*kp,4)}, v22 offset:{HB+kp*64}")
wide_gemm(32, 2, 104, 212, TS, True, "L_fg")
ST(2)
RED = 0
A(f"s_cmp_ge_u32 s{sF}, 36\ns_cbranch_scc1 L_end")
srd(56, P_OUT, 4608)
A(f"""
v_mul_u32_u24 v12, 1152, v6
v_lshl_add_u32 v12, v5, 3, v12
s_lshl_b32 s68, s{sF}, 5
buffer_load_dwordx2 v[60:61], v12, {RA}, s68 offen
v_and_b32 v23, 15, v{vL}
v_lshlrev_b32 v23, 4, v23
v_lshl_add_u32 v23, v4, 12, v23
s_lshl_b32 s72, s{sF}, 15
s_add_u32 s72, s72, {WS_H5}
s_add_u32 s73, s72, 8192
s_add_u32 s74, s72, 16384
s_add_u32 s75, s72, 24576
s_mov_b32 s76, 15
s_mov_b32 s77, 0
s_barrier
L_finpoll:
""")
for i in (2, 3, 1, 0):
    A(f"s_bitcmp1_b32 s76, {i}\ns_cbranch_scc0 L_fi{i}\nbuffer_load_dwordx4 {vr(32+4*i,4)}, v7, {WS}, s{72+i} offen sc1\nL_fi{i}:")
A("s_add_u32 s77, s77, 1\ns_waitcnt vmcnt(0)")
for i in range(4):
    q = 32+4*i
    A(f"v_max3_u32 v30, v{q}, v{q+1}, v{q+2}\nv_max_u32 v30, v30, v{q+3}\nv_cmp_eq_u32 vcc, -1, v30\ns_cbranch_vccnz L_fc{i}\ns_bitset0_b32 s76, {i}\nL_fc{i}:")
A(f"""
s_cmp_ge_u32 s77, {POLL_MAX}
s_cbranch_scc1 L_findone
s_cmp_lg_u32 s76, 0
s_cbranch_scc1 L_finpoll
L_findone:
""")
for j in range(4): A(f"v_add_f32 v{40+j}, v{40+j}, v{44+j}")
A(f"s_cmp_ge_u32 s{sW}, 6\ns_cbranch_scc1 L_fin_g")
for j in range(4): A(f"v_add_f32 v{32+j}, v{32+j}, v{36+j}")
A("s_branch L_fin_w\nL_fin_g:")
for j in range(4): A(f"v_add_f32 v{40+j}, v{40+j}, v{36+j}")
A(f"""
L_fin_w:
ds_write_b128 v7, v[40:43] offset:{RED}
ds_write_b128 v7, v[32:35] offset:{RED+8192}
s_waitcnt lgkmcnt(0)
""")
ST(6)
A(f"s_barrier\ns_cmp_lg_u32 s{sW}, 0\ns_cbranch_scc1 L_end")
for i in range(16):
    A(f"ds_read_b128 {vr(64+4*i,4)}, v23 offset:{RED+i*256}")
    if i == 13: A("s_waitcnt lgkmcnt(10)")
A(f"s_mov_b32 s76, {fbits(-LOG2E)}")
A("v_lshlrev_b32 v32, 16, v60\nv_and_b32 v33, 0xffff0000, v60\nv_lshlrev_b32 v34, 16, v61\nv_and_b32 v35, 0xffff0000, v61")
for i in range(0, 16, 2):
    A(f"s_waitcnt lgkmcnt({min(12, 14-i)})")
    for j in range(4): A(f"v_add_f32 v{64+4*i+j}, v{64+4*i+j}, v{68+4*i+j}")
    if i % 4 == 2:
        for j in range(4): A(f"v_add_f32 v{56+4*i+j}, v{56+4*i+j}, v{64+4*i+j}")
    if i % 8 == 6:
        for j in range(4): A(f"v_add_f32 v{40+4*i+j}, v{40+4*i+j}, v{56+4*i+j}")
for j in range(4): A(f"v_add_f32 v{64+j}, v{64+j}, v{96+j}")
for j in range(4): A(f"v_mov_b32 v{68+j}, v{64+j}")
for j in range(4): A(f"v_permlane16_swap_b32 v{64+j}, v{68+j}")
for j in range(4): A(f"v_add_f32 v{64+j}, v{64+j}, v{68+j}")
for j in range(4): rb16(64+j, 64+j)
for j in range(4): A(f"v_mov_b32 v{68+j}, v{64+j}")
for j in range(4): A(f"v_mul_f32 v{76+j}, s76, v{64+j}")
for j in range(4): A(f"v_permlane32_swap_b32 v{64+j}, v{68+j}")
for j in range(4): A(f"v_exp_f32 v{76+j}, v{76+j}")
for j in range(4): A(f"v_add_f32 v{76+j}, 1.0, v{76+j}")
for j in range(4): A(f"v_rcp_f32 v{76+j}, v{76+j}")
for j in range(4): A(f"v_mul_f32 v{64+j}, v{64+j}, v{76+j}")
for j in range(4): rb16(64+j, 64+j)
for j in range(4): A(f"v_mul_f32 v{64+j}, v{64+j}, v{68+j}")
for j in range(4): rb16(64+j, 64+j)
for j in range(4): A(f"v_add_f32 v{64+j}, v{64+j}, v{32+j}")
A(f"""
v_cvt_pk_bf16_f32 v64, v64, v65
v_cvt_pk_bf16_f32 v65, v66, v67
s_mov_b64 exec, 0xffff
buffer_store_dwordx2 v[64:65], v12, {RB}, s68 offen
s_cmp_lg_u32 s{sF}, 0
s_cbranch_scc1 L_fin_noep
s_mov_b64 exec, 1
v_mov_b32 v66, s{sE}
buffer_store_dword v66, v8, {WS}, 0 offen sc1
L_fin_noep:
s_mov_b64 exec, -1
""")
ST(7)
finish()

QA = 131072
PB = QA+2048
sLOC = 64
A("L_att:")
lane_consts()
if OPT['exp'] == 1: A("s_waitcnt lgkmcnt(0)\ns_branch L_end")
A(f"s_cmp_ge_u32 s{sW}, 4\ns_cbranch_scc1 L_att_hi")
A(f"""
s_lshl_b32 s68, s{sK}, 18
s_lshl_b32 s69, s{sX}, 10
s_add_u32 s68, s68, s69
s_lshl_b32 s69, s{sW}, 16
s_add_u32 s68, s68, s69
s_waitcnt lgkmcnt(0)
s_load_dword s{sE}, s[48:49], 0
""")
if OPT['adel']: A("s_waitcnt lgkmcnt(0)")
for i in range(8):
    A(f"buffer_load_dwordx4 v[248:251], v9, {RC}, s68 offen")
    if i < 7: A("s_add_u32 s68, s68, 8192")
A(f"""
v_and_b32 v11, 2, v2
v_lshlrev_b32 v11, 1, v11
v_lshrrev_b32 v10, 2, v2
v_or_b32 v11, v11, v10
v_xor_b32 v11, v11, v3
v_lshlrev_b32 v11, 4, v11
v_lshl_add_u32 v10, v2, 10, v11
v_xor_b32 v11, 32, v10
s_lshl_b32 s70, s{sX}, 4
s_add_u32 s70, s70, s{sK}
s_lshl_b32 s66, s70, 17
s_lshl_b32 s67, s{sW}, 15
s_add_u32 s66, s66, s67
""")
srd(52, P_CKV, 4*4096*1024)
if OPT['ukw'] < 8: A(f"s_waitcnt vmcnt({OPT['ukw']})")
ST(2, 2)
for lb in range(8):
    if lb in (1, 2, 4, 6): ST({1:3,2:4,4:5,6:6}[lb], 2)
    if lb == OPT['gbar']: A("s_barrier")
    for rbi in range(4):
        A(f"s_add_u32 s68, s67, {(rbi*8+lb)*1024}\ns_mov_b32 m0, s68\ns_add_u32 s69, s66, {rbi*8192+lb*128}")
        dma(10 + (rbi & 1), RA, 69)
if OPT['gbar'] == 8: A("s_barrier")
ST(7, 2)
if OPT['stamps'] in (2, 3):
    A("s_waitcnt vmcnt(0)")
    ST(9, 2); ST(7, 3)
if OPT['exp'] == 2: A("s_branch L_end")
A(f"""
v_and_b32 v11, 2, v{vL}
v_lshlrev_b32 v11, 1, v11
v_or_b32 v11, v11, v5
v_lshrrev_b32 v12, 5, v{vL}
v_xor_b32 v11, v11, v12
v_lshlrev_b32 v11, 4, v11
v_lshl_add_u32 v11, v3, 7, v11
v_and_b32 v13, 3, v2
v_lshl_add_u32 v11, v13, 13, v11
v_add_u32 v16, s67, v11
v_add_u32 v20, {QA}, v11
""")
for t in range(1, 4): A(f"v_xor_b32 v{16+t}, {t<<5}, v16\nv_xor_b32 v{20+t}, {t<<5}, v20")
A(f"""
v_and_b32 v13, 31, v{vL}
v_lshlrev_b32 v13, 5, v13
v_add_u32 v13, {QA}, v13
s_lshl_b32 s68, s{sW}, 3
v_lshl_add_u32 v14, v12, 2, v13
v_add_u32 v14, s68, v14
s_lshl_b32 s68, s{sW}, 11
s_add_u32 s68, s68, {PB}
v_add_u32 v15, s68, v9
s_lshl_b32 s76, s70, 15
s_lshl_b32 s71, s{sW}, 13
s_add_u32 s76, s76, s71
s_add_u32 s76, s76, {WS_H3A}
s_add_u32 s78, s76, 4096
s_lshl_b32 s75, s70, 11
s_lshl_b32 s71, s{sW}, 9
s_add_u32 s75, s75, s71
s_add_u32 s75, s75, {WS_FLG}
s_waitcnt lgkmcnt(0)
""")
get_tag()
def pretouch(fl):
    A(f"s_mov_b32 exec_hi, 0\nbuffer_load_dwordx4 v[248:251], v9, {WS}, s75 offen {fl}\ns_mov_b64 exec, -1")
    for i in range(8):
        A(f"buffer_load_dwordx4 v[248:251], v9, {WS}, s{76 if i < 4 else 78} offen offset:{(i&3)*1024} {fl}")
ST(1)
A("s_barrier")
ST(2)
vS = 32; vAf = 64; vBf = 96; DEP = 6
npt = [0]
def qk_read(t):
    lb = t >> 2
    if t & 3 == 0: A(f"s_waitcnt vmcnt({28-4*lb+npt[0]})")
    s = t % DEP
    A(f"ds_read_b128 {vr(vAf+4*s,4)}, v{16+(t&3)} offset:{lb*1024}")
    A(f"ds_read_b128 {vr(vBf+4*s,4)}, v{20+(t&3)} offset:{lb*1024}")
for t in range(DEP): qk_read(t)
for t in range(32):
    s = t % DEP
    A(f"s_waitcnt lgkmcnt({2*min(DEP-1, 31-t)})")
    mf32(vS, vAf+4*s, vBf+4*s, t == 0)
    if OPT['local'] and t < 9:
        if t == 0: A(f"s_mov_b32 exec_hi, 0\nbuffer_load_dwordx4 v[248:251], v9, {WS}, s75 offen\ns_mov_b64 exec, -1")
        else: A(f"buffer_load_dwordx4 v[248:251], v9, {WS}, s{76 if t < 5 else 78} offen offset:{((t-1)&3)*1024}")
        npt[0] += 1
    if t + DEP < 32: qk_read(t + DEP)
ST(3)
A("s_barrier")
A(f"v_max3_f32 v24, v{vS}, v{vS+1}, v{vS+2}\nv_max3_f32 v25, v{vS+3}, v{vS+4}, v{vS+5}\nv_max3_f32 v26, v{vS+6}, v{vS+7}, v{vS+8}")
A(f"v_max3_f32 v27, v{vS+9}, v{vS+10}, v{vS+11}\nv_max3_f32 v28, v{vS+12}, v{vS+13}, v{vS+14}")
A(f"v_max3_f32 v24, v24, v25, v26\nv_max3_f32 v27, v27, v28, v{vS+15}\nv_max_f32 v24, v24, v27")
A(f"ds_write_b32 v14, v24\ns_waitcnt lgkmcnt(0)\ns_barrier")
A(f"""
ds_read_b128 v[24:27], v13
ds_read_b128 v[28:31], v13 offset:16
s_waitcnt lgkmcnt(0)
v_max3_f32 v24, v24, v25, v26
v_max3_f32 v28, v28, v29, v30
v_max3_f32 v24, v24, v27, v31
v_max_f32 v24, v24, v28
""")
for hlf in range(2):
    for i in range(8): A(f"v_sub_f32 v{vS+8*hlf+i}, v{vS+8*hlf+i}, v24")
    for i in range(8): A(f"v_exp_f32 v{vS+8*hlf+i}, v{vS+8*hlf+i}")
    for i in range(4): A(f"v_cvt_pk_bf16_f32 v{48+4*hlf+i}, v{vS+8*hlf+2*i}, v{vS+8*hlf+2*i+1}")
    A(f"ds_write_b128 v15, {vr(48+4*hlf,4)} offset:{1024*hlf}")
for step in (8, 4, 2, 1):
    for i in range(step): A(f"v_add_f32 v{vS+i}, v{vS+i}, v{vS+i+step}")
A(f"ds_write_b32 v14, v{vS} offset:1024\ns_waitcnt lgkmcnt(0)")
ST(4)
A("s_barrier")
A("s_branch L_red")

A("L_att_hi:")
if OPT['prio']: A("s_setprio 2")
if OPT['pf']:
    A(f"""
    s_getpc_b64 s[66:67]
    L_pc:
    s_sub_u32 s66, s66, L_pc-{NAME}_kernel
    s_subb_u32 s67, s67, 0
    v_subrev_u32 v10, 256, v0
    v_lshlrev_b32 v10, 7, v10
    v_cmp_gt_u32 vcc, L_exit-{NAME}_kernel, v10
    s_and_saveexec_b64 s[68:69], vcc
    s_cbranch_execz L_nopf
    global_load_dword v255, v10, s[66:67]
    L_nopf:
    s_mov_b64 exec, -1
    """)
A(f"""
s_sub_u32 s66, s{sW}, 4
s_lshl_b32 s67, s{sX}, 15
s_lshl_b32 s68, s{sK}, 11
s_add_u32 s68, s68, s67
s_add_u32 s69, s68, {WS_H1L}
s_waitcnt lgkmcnt(0)
s_load_dword s{sE}, s[48:49], 0
s_cmp_lg_u32 s66, 1
s_cbranch_scc1 L_h_b
buffer_load_dwordx4 v[248:251], v9, {WS}, s69 offen
buffer_load_dwordx4 v[248:251], v9, {WS}, s69 offen offset:1024
L_h_b:
""")
if OPT['wqh']:
    A(f"""
    s_cmp_lt_u32 s66, 2
    s_cbranch_scc1 L_h_c
    s_lshr_b32 s68, s{sK}, 2
    s_mul_i32 s68, s68, 144
    s_and_b32 s69, s{sK}, 3
    s_lshl_b32 s69, s69, 2
    s_add_u32 s68, s68, s69
    s_lshl_b32 s69, s66, 1
    s_add_u32 s68, s68, s69
    s_add_u32 s68, s68, 124
    s_lshl_b32 s68, s68, 13
    s_lshl_b32 s69, s{sX}, 10
    s_add_u32 s68, s68, s69
    s_add_u32 s69, s68, 8192
    buffer_load_dwordx4 v[248:251], v9, {RB}, s68 offen
    buffer_load_dwordx4 v[248:251], v9, {RB}, s69 offen
    L_h_c:
    """)
A(f"""
s_lshr_b32 s67, s{sX}, 1
s_lshl_b32 s67, s67, 15
s_lshl_b32 s68, s66, 13
s_add_u32 s67, s67, s68
s_add_u32 s67, s67, {WS_H2}
s_and_b32 s69, s66, 1
s_lshl_b32 s69, s69, 1
v_xor_b32 v10, s69, v3
v_lshlrev_b32 v10, 4, v10
v_lshl_add_u32 v10, v2, 10, v10
s_add_u32 s68, s68, {QA}
v_add_u32 v16, s68, v10
v_xor_b32 v17, 64, v16
v_xor_b32 v18, 16, v16
v_xor_b32 v19, 80, v16
v_lshrrev_b32 v12, 5, v{vL}
v_and_b32 v13, 1, v4
v_lshrrev_b32 v14, 1, v6
v_lshl_or_b32 v13, v13, 1, v14
v_and_b32 v14, 2, v5
v_lshl_or_b32 v14, v14, 1, v12
v_xor_b32 v13, v13, v14
v_lshlrev_b32 v13, 4, v13
v_lshl_add_u32 v13, v5, 7, v13
v_lshl_add_u32 v13, v12, 9, v13
v_and_b32 v14, 1, v6
v_lshl_add_u32 v13, v14, 3, v13
s_lshl_b32 s68, s66, 11
v_add_u32 v20, s68, v13
v_xor_b32 v21, 32, v20
v_xor_b32 v22, 64, v20
v_xor_b32 v23, 96, v20
""")
for j in range(4): A(f"v_add_u32 v{24+j}, 0x10000, v{20+j}")
A(f"s_getreg_b32 s65, hwreg(HW_REG_XCC_ID, 0, 4)\ns_lshl_b32 s72, s{sX}, 11\ns_add_u32 s72, s72, {WS_XT}\ns_waitcnt lgkmcnt(0)")
get_tag()
A(f"""
s_cmp_lg_u32 s66, 0
s_cbranch_scc1 L_noxt
s_lshl_b32 s68, s{sK}, 7
s_add_u32 s68, s68, s72
v_mov_b32 v28, s65
v_mov_b32 v29, s{sT}
v_lshlrev_b32 v30, 3, v{vL}
s_mov_b64 exec, 0xffff
buffer_store_dwordx2 v[28:29], v30, {WS}, s68 offen sc1
s_mov_b64 exec, -1
L_noxt:
""")
A(f"""
s_add_u32 s72, s48, s72
s_addc_u32 s73, s49, 0
s_lshl_b32 s74, s{sX}, 13
s_lshl_b32 s75, s66, 11
s_add_u32 s74, s74, s75
s_add_u32 s74, s74, {WS_PQ}
s_add_u32 s74, s48, s74
s_addc_u32 s75, s49, 0
s_mov_b32 s77, 0
s_sleep 32
L_xp:
s_sleep {OPT['psl']}
s_mov_b32 s76, 0
""")
for i in range(15): A(f"s_load_dword s{16+i}, s[74:75], {i*128} glc")
A(f"s_load_dword s31, s[74:75], {15*128} glc\ns_waitcnt lgkmcnt(0)")
for i in range(16): A(f"s_xor_b32 s{16+i}, s{16+i}, s{sT}\ns_or_b32 s76, s76, s{16+i}")
A(f"""
s_add_u32 s77, s77, 1
s_cmp_ge_u32 s77, {POLL_MAX}
s_cbranch_scc1 L_xd
s_cmp_lg_u32 s76, 0
s_cbranch_scc1 L_xp
L_xd:
""")
ST(6, 2)
if OPT['gbar'] <= 8: A("s_barrier")
if OPT['exp'] == 2: A("s_branch L_end")
ST(9)
vQ = 32
A(f"s_mov_b32 s76, 0xff\ns_mov_b32 s77, 0\ns_add_u32 s69, s67, 4096\nL_h2poll:")
for i in range(8):
    A(f"s_bitcmp1_b32 s76, {i}\ns_cbranch_scc0 L_h2i{i}")
    A(f"buffer_load_dwordx4 {vr(vQ+4*i,4)}, v9, {WS}, s{67 if i < 4 else 69} offen offset:{(i&3)*1024} sc1")
    A(f"L_h2i{i}:")
A(f"s_add_u32 s77, s77, 1\ns_cmp_eq_u32 s77, 1\ns_cbranch_scc1 L_h2first\ns_waitcnt vmcnt(0)\nL_h2first:")
for i in range(8):
    var = ((i >> 1) & 1) + 2*((i >> 2) & 1)
    q = vQ+4*i
    A(f"s_bitcmp1_b32 s76, {i}\ns_cbranch_scc0 L_h2c{i}")
    A(f"s_waitcnt vmcnt({7-i})")
    A(f"v_max3_u32 v28, v{q}, v{q+1}, v{q+2}\nv_max_u32 v28, v28, v{q+3}\nds_write_b128 v{16+var}, {vr(q,4)} offset:{i*128}\nv_cmp_eq_u32 vcc, -1, v28")
    A(f"s_cbranch_vccnz L_h2c{i}\ns_bitset0_b32 s76, {i}\nL_h2c{i}:")
A(f"""
s_waitcnt lgkmcnt(0)
s_cmp_ge_u32 s77, {POLL_MAX}
s_cbranch_scc1 L_h2done
s_cmp_eq_u32 s76, 0
s_cbranch_scc1 L_h2done
s_sleep {OPT['rsleep']}
s_branch L_h2poll
L_h2done:
""")
ST(1)
if OPT['prio']: A("s_setprio 0")
A("s_barrier")
if OPT['local']:
    A(f"s_mov_b32 s{sLOC}, 0\ns_cmp_lg_u32 s66, 0\ns_cbranch_scc1 L_nx")
    for hlf in range(2):
        for i in range(8): A(f"s_load_dwordx2 s[{16+16*hlf+2*i if hlf == 0 or i < 4 else 52+2*(i-4)}:{17+16*hlf+2*i if hlf == 0 or i < 4 else 53+2*(i-4)}], s[72:73], {(8*hlf+i)*128} glc")
    A("s_waitcnt lgkmcnt(0)")
    for r in list(range(16, 40, 2)) + list(range(52, 60, 2)):
        A(f"s_xor_b32 s{r}, s{r}, s65\ns_or_b32 s{sLOC}, s{sLOC}, s{r}\ns_xor_b32 s{r+1}, s{r+1}, s{sT}\ns_or_b32 s{sLOC}, s{sLOC}, s{r+1}")
    A("L_nx:")
A("s_barrier")
ST(2)
vV = 96; vO = 32
def vfrag(f, tau): return vV + 4*(f*4 + tau)
PR = [224+4*f for f in range(7)] + [16]
def pv_reads(f):
    for tau in range(4):
        for jj in range(2):
            a = (20 if f < 4 else 24) + jj + 2*(tau & 1)
            off = (f & 3)*16384 + jj*8192 + (tau >> 1)*1024
            A(f"ds_read_b64_tr_b16 {vr(vfrag(f,tau)+2*jj,2)}, v{a} offset:{off}")
A(f"""
v_mov_b32 v15, {QA+12288}
s_cmp_lg_u32 s66, 0
s_cbranch_scc1 L_nl
v_mov_b32 v28, s{sLOC}
ds_write_b32 v15, v28
L_nl:
""")
pv_reads(0)
A("s_barrier")
for f in range(1, 8):
    A("s_waitcnt lgkmcnt(6)")
    pv_reads(f)
A(f"""
v_add_u32 v10, {PB}, v9
v_and_b32 v13, 31, v{vL}
v_lshlrev_b32 v14, 5, v13
v_add_u32 v14, {QA}, v14
v_lshlrev_b32 v13, 4, v13
v_lshl_add_u32 v11, v12, 16, v13
s_lshl_b32 s68, s{sX}, 19
s_lshl_b32 s69, s{sK}, 11
s_add_u32 s68, s68, s69
s_lshl_b32 s70, s66, 9
s_add_u32 s68, s68, s70
s_add_u32 s68, s68, {WS_H3A}
s_lshl_b32 s71, s{sX}, 15
s_add_u32 s71, s71, s69
s_add_u32 s71, s71, s70
s_add_u32 s71, s71, {WS_FLG}
s_waitcnt lgkmcnt(0)
s_barrier
""")
ST(3)
for f in range(8): A(f"ds_read_b128 {vr(PR[f],4)}, v10 offset:{f*1024}")
A(f"ds_read_b128 v[20:23], v14\nds_read_b128 v[24:27], v14 offset:16")
for f in range(8):
    A(f"s_waitcnt lgkmcnt({9-f if f < 6 else 11-f})")
    for tau in range(4): mf32(vO+16*tau, PR[f], vfrag(f,tau), f == 0)
    if f == 5:
        A(f"""
        s_waitcnt lgkmcnt(0)
        v_max3_f32 v20, v20, v21, v22
        v_max3_f32 v24, v24, v25, v26
        v_max3_f32 v20, v20, v23, v27
        v_max_f32 v20, v20, v24
        ds_read_b128 v[24:27], v14 offset:1024
        ds_read_b128 v[28:31], v14 offset:1040
        ds_read_b32 v15, v15
        """)
A(f"""
s_waitcnt lgkmcnt(0)
v_add_f32 v24, v24, v25
v_add_f32 v26, v26, v27
v_add_f32 v28, v28, v29
v_add_f32 v30, v30, v31
v_add_f32 v24, v24, v26
v_add_f32 v28, v28, v30
v_add_f32 v22, v24, v28
v_mov_b32 v21, s{sT}
v_mov_b32 v23, s{sT}
""")
if OPT['local']:
    A(f"""
    v_readfirstlane_b32 s{sLOC}, v15
    s_cmp_lg_u32 s{sLOC}, 0
    """)
ST(4)
def pv_store(flag):
    for n, i in enumerate(range(0, 16, 2)):
        d = vV + 4*n
        A(f"v_cvt_pk_bf16_f32 v{d}, v{vO+i}, v{vO+16+i}\nv_cvt_pk_bf16_f32 v{d+1}, v{vO+32+i}, v{vO+48+i}")
        A(f"v_cvt_pk_bf16_f32 v{d+2}, v{vO+i+1}, v{vO+16+i+1}\nv_cvt_pk_bf16_f32 v{d+3}, v{vO+32+i+1}, v{vO+48+i+1}")
        A(f"s_add_u32 s69, s68, {((i&3)//2 + 4*(i>>2))*32768}")
        A(f"buffer_store_dwordx4 {vr(d,4)}, v11, {WS}, s69 offen {flag}")
    A(f"""
    s_waitcnt vmcnt(0)
    s_mov_b32 exec_hi, 0
    buffer_store_dwordx4 v[20:23], v13, {WS}, s71 offen {flag}
    s_mov_b64 exec, -1
    """)
if OPT['local']:
    A(f"s_cbranch_scc1 L_pvfar")
    pv_store("")
    A("L_pvback:")
else:
    pv_store("sc1")
ST(5)

A("L_red:")
A(f"""
s_lshr_b32 s66, s{sW}, 1
s_lshl_b32 s67, s{sX}, 15
s_lshl_b32 s68, s66, 9
s_add_u32 s67, s67, s68
s_lshl_b32 s69, s{sK}, 5
s_add_u32 s67, s67, s69
s_add_u32 s67, s67, {WS_FLG}
v_and_b32 v9, 15, v{vL}
v_and_b32 v10, 1, v4
v_lshlrev_b32 v11, 11, v9
v_lshl_add_u32 v11, v10, 4, v11
s_lshl_b32 s69, s{sX}, 4
s_add_u32 s69, s69, s{sK}
s_lshl_b32 s69, s69, 15
s_lshl_b32 s70, s{sW}, 8
s_add_u32 s69, s69, s70
s_add_u32 s69, s69, {WS_H3A}
v_lshlrev_b32 v12, 11, v4
v_lshl_add_u32 v12, v9, 4, v12
v_and_b32 v13, 1, v3
v_lshlrev_b32 v13, 4, v13
v_mov_b32 v14, 0xffff
v_lshlrev_b32 v14, v13, v14
v_lshrrev_b32 v13, 1, v3
""")
for d in range(4): A(f"v_cmp_eq_u32 vcc, {d}, v13\nv_cndmask_b32 v{16+d}, 0, v14, vcc")
A(f"""
v_lshrrev_b32 v13, 2, v3
v_lshl_add_u32 v15, v13, 4, v4
v_lshlrev_b32 v15, 2, v15
v_lshlrev_b32 v28, 14, v13
v_lshl_add_u32 v28, v6, 5, v28
v_lshl_add_u32 v28, v4, 3, v28
s_lshl_b32 s70, s{sK}, 15
s_lshl_b32 s71, s{sX}, 11
s_add_u32 s70, s70, s71
s_add_u32 s70, s70, {WS_H3B}
s_lshl_b32 s71, s{sW}, 7
s_add_u32 s71, s71, s70
v_lshlrev_b32 v29, 14, v10
v_lshl_add_u32 v29, v9, 3, v29
s_mov_b32 s77, 0
s_mov_b32 exec_hi, 0
L_rpoll:
buffer_load_dwordx4 v[32:35], v11, {WS}, s67 offen sc1
s_add_u32 s77, s77, 1
s_waitcnt vmcnt(0)
v_xor_b32 v33, s{sT}, v33
v_xor_b32 v35, s{sT}, v35
v_or_b32 v33, v33, v35
v_cmp_ne_u32 vcc, 0, v33
s_cmp_ge_u32 s77, {POLL_MAX}
s_cbranch_scc1 L_rdone
s_cbranch_vccnz L_rpoll
L_rdone:
s_mov_b64 exec, -1
""")
ST(6)
for i in range(4):
    A(f"buffer_load_dwordx4 {vr(48+4*i,4)}, v12, {WS}, s69 offen sc1")
    if i < 3: A("s_add_u32 s69, s69, 8192")
A("v_mov_b32 v36, v32")
for r in (8, 4, 2, 1): A(f"v_max_f32_dpp v36, v36, v36 row_ror:{r} {DPPF}")
A("v_sub_f32 v33, v32, v36\nv_exp_f32 v33, v33\nv_mul_f32 v37, v33, v34")
for i in range(4): A(f"ds_bpermute_b32 v{40+i}, v15, v33 offset:{16*i}")
for r in (8, 4, 2, 1): A(f"v_add_f32_dpp v37, v37, v37 row_ror:{r} {DPPF}")
A(f"v_min_u32 v36, -2, v36\nv_min_u32 v37, -2, v37")
A(f"""
s_cmp_lg_u32 s{sW}, 0
s_cbranch_scc1 L_rnostat
s_mov_b32 exec_hi, 0
buffer_store_dwordx2 v[36:37], v29, {WS}, s70 offen offset:1024 sc1
s_mov_b64 exec, -1
L_rnostat:
v_cmp_gt_u32 vcc, 8, v9
s_waitcnt lgkmcnt(0)
""")
for i in range(4): A(f"v_cvt_pk_bf16_f32 v{44+i}, v{40+i}, v{40+i}")
for i in range(4): A(f"v_and_b32 v{80+i}, 0xffff0000, v{44+i}")
for i in range(4): A(f"v_sub_f32 v{80+i}, v{40+i}, v{80+i}")
for i in range(4): A(f"v_cvt_pk_bf16_f32 v{80+i}, v{80+i}, v{80+i}")
for i in range(4): A(f"v_cndmask_b32 v{44+i}, v{80+i}, v{44+i}, vcc")
for i in range(4):
    for d in range(4): A(f"v_and_b32 v{64+4*i+d}, v{44+i}, v{16+d}")
A(f"""
s_cmp_lg_u32 s{sW}, 0
s_cbranch_scc1 L_rw0
s_waitcnt vmcnt(1)
s_branch L_rgo
L_rw0:
s_waitcnt vmcnt(0)
L_rgo:
""")
for i in range(4): mf16(40, 48+4*i, 64+4*i, i == 0)
for j in range(4): A(f"v_add_f32_dpp v{40+j}, v{40+j}, v{40+j} row_ror:8 {DPPF}")
A(f"""
v_cvt_pk_bf16_f32 v44, v40, v41
v_cvt_pk_bf16_f32 v45, v42, v43
v_min_u32 v44, -2, v44
v_min_u32 v45, -2, v45
s_mov_b32 exec_lo, 0x00ff00ff
s_mov_b32 exec_hi, 0x00ff00ff
buffer_store_dwordx2 v[44:45], v28, {WS}, s71 offen sc1
s_mov_b64 exec, -1
""")
ST(7)
if OPT['local'] and OPT['wb']:
    A(f"""
    s_cmp_lg_u32 s{sK}, 0
    s_cbranch_scc1 L_end
    s_waitcnt vmcnt(0)
    s_barrier
    s_cmp_lg_u32 s{sW}, 0
    s_cbranch_scc1 L_end
    buffer_wbl2 sc1
    """)
if OPT['local']:
    finish()
    A("L_pvfar:")
    A("s_nop 7")
    pv_store("sc1")
    A("s_branch L_pvback")

A("L_end:")
if OPT['stamps']:
    A("s_waitcnt vmcnt(0)")
    ST(8)
    A(f"""
    s_waitcnt lgkmcnt(0)
    s_lshl_b32 s66, s2, 3
    s_add_u32 s66, s66, s{sW}
    s_lshl_b32 s66, s66, 6
    s_add_u32 s66, s66, {WS_ST}
    s_getreg_b32 s67, hwreg(HW_REG_XCC_ID)
    s_mov_b64 exec, 1
    v_mov_b32 v8, 0
    """)
    for i in range(3):
        A("\n".join(f"v_mov_b32 v{12+j}, s{80+2*(3*i+j)}" for j in range(3)))
        A(f"v_mov_b32 v15, {['s67','s77','s98'][i]}")
        A(f"buffer_store_dwordx4 v[12:15], v8, {WS}, s66 offen offset:{16*i}")
if OPT['hold']:
    A(f"L_hold:\ns_memrealtime s[66:67]\ns_waitcnt lgkmcnt(0)\ns_sub_u32 s68, s66, s80\ns_cmp_lt_u32 s68, {OPT['hold']}\ns_cbranch_scc1 L_hold")
A("L_exit:\ns_endpgm")
A.raw(f""".section .rodata,"a"
.p2align 6
.amdhsa_kernel {NAME}_kernel
  .amdhsa_next_free_vgpr 256
  .amdhsa_next_free_sgpr 102
  .amdhsa_accum_offset 256
  .amdhsa_group_segment_fixed_size 0
  .amdhsa_kernarg_size 104
  .amdhsa_user_sgpr_count 2
  .amdhsa_user_sgpr_kernarg_segment_ptr 1
  .amdhsa_system_sgpr_workgroup_id_x 1
  .amdhsa_float_denorm_mode_32 3
.end_amdhsa_kernel""")
sys.stdout.write(A.text())
sys.stderr.write(f"instructions {A.count} nops {A.nops}\n")
```

```python
import sys, math, struct
from asmx import Asm, NAME

OPT = dict(stamps=0, local=1, hold=0, pf=1, exp=0, gbar=8, rsleep=2, help=1, fslow=0, tslow=0, wb=0, gap=0, prio=1, ukw=0, wqh=1, adel=1, psl=6, hs=-1, hr=0)
for a in sys.argv[1:]:
    k, v = a.split("="); assert k in OPT, k; OPT[k] = int(v)

WS_PF  = 0x010000
WS_FF  = 0x020000
WS_XT  = 0x030000
WS_H1  = 0x040000
WS_H1L = 0x0C0000
WS_H2  = 0x080000
WS_PQ  = 0x0A0000
WS_FLG = 0x100000
WS_H3B = 0x140000
WS_H5  = 0x200000
WS_H3A = 0x400000
WS_ST  = 0x800000
POLL_MAX = 60000 if not OPT['exp'] else 40

P_X, P_CKV, P_WQ, P_WUK, P_WUV, P_WO, P_BX, P_WG, P_WU, P_WD, P_OUT, P_DBG = [16+2*i for i in range(12)]
sSL, sF = 40, 41
sE, sT, sW, sX, sK, sH = 42, 43, 44, 45, 46, 47
WS = "s[48:51]"; RA = "s[52:55]"; RB = "s[56:59]"; RC = "s[60:63]"
sQD, sA_ = 64, 65
A = Asm()
NQPART = [True]

def srd(base, ptr, size):
    A(f"s_mov_b32 s{base}, s{ptr}\ns_mov_b32 s{base+1}, s{ptr+1}\ns_mov_b32 s{base+2}, {size}\ns_mov_b32 s{base+3}, 0x20000")
def ST(i, mode=1):
    if OPT['stamps'] == mode or (OPT['stamps'] and i in (0, 8)): A(f"s_memrealtime s[{80+2*i}:{81+2*i}]")
def vr(a, n): return f"v[{a}:{a+n-1}]"
def dma(voff, rsrc, soff, flags="nt"):
    A(f"buffer_load_dwordx4 v{voff}, {rsrc}, s{soff} offen {flags} lds")
def finish(): A("s_branch L_end")
def get_tag():
    A(f"s_add_u32 s{sE}, s{sE}, 1\ns_mul_i32 s{sT}, s{sE}, 0x9E3779B1\ns_xor_b32 s{sT}, s{sT}, 0x5BD1E995")
def rb16(dst, src):
    A(f"v_cvt_pk_bf16_f32 v{dst}, v{src}, v{src}\nv_lshlrev_b32 v{dst}, 16, v{dst}")
DPPF = "row_mask:0xf bank_mask:0xf"
QP1 = "quad_perm:[1,0,3,2] " + DPPF
def wave_sum_to_sgpr(v, s):
    for r in (8, 4, 2, 1): A(f"v_add_f32_dpp v{v}, v{v}, v{v} row_ror:{r} {DPPF}")
    A(f"v_add_f32_dpp v{v}, v{v}, v{v} row_bcast:15 row_mask:0xa bank_mask:0xf")
    A(f"v_add_f32_dpp v{v}, v{v}, v{v} row_bcast:31 row_mask:0xc bank_mask:0xf")
    A(f"v_readlane_b32 s{s}, v{v}, 63")
def fbits(x): return "0x%08x" % struct.unpack("<I", struct.pack("<f", x))[0]
def mf16(d, a, b, first): A(f"v_mfma_f32_16x16x32_bf16 {vr(d,4)}, {vr(a,4)}, {vr(b,4)}, {'0' if first else vr(d,4)}")
def mf32(d, a, b, first): A(f"v_mfma_f32_32x32x16_bf16 {vr(d,16)}, {vr(a,4)}, {vr(b,4)}, {'0' if first else vr(d,16)}")
def ones(v): A("\n".join(f"v_mov_b32 v{v+j}, -1" for j in range(4)))
LOG2E = 1.4426950408889634

A.raw("; @launch grid=(256,1,1) block=(512,1,1) lds=163840")
A.raw('.amdgcn_target "amdgcn-amd-amdhsa--gfx950"')
A.raw(f".text\n.globl {NAME}_kernel\n.p2align 8\n.type {NAME}_kernel,@function\n{NAME}_kernel:")
vL = 1
ST(0)
A(f"""
s_load_dwordx2 s[48:49], s[0:1], 96
s_load_dwordx2 s[52:53], s[0:1], 0
s_load_dwordx2 s[56:57], s[0:1], 16
s_load_dwordx2 s[60:61], s[0:1], 24
s_load_dwordx16 s[16:31], s[0:1], 0
s_load_dwordx8 s[32:39], s[0:1], 64
s_cmp_ge_u32 s2, 256
s_cbranch_scc1 L_exit
v_lshrrev_b32 v2, 6, v0
v_and_b32 v{vL}, 63, v0
v_readfirstlane_b32 s{sW}, v2
s_and_b32 s{sX}, s2, 7
s_lshr_b32 s{sK}, s2, 3
v_lshlrev_b32 v9, 4, v{vL}
s_mov_b32 s50, 0x10000000
s_mov_b32 s51, 0x20000
s_mov_b32 s55, 0x20000
s_mov_b32 s58, {576*8192}
s_mov_b32 s59, 0x20000
s_mov_b32 s62, {512*8192}
s_mov_b32 s63, 0x20000
s_cmp_lt_u32 s2, 128
s_cbranch_scc1 L_att
""")
def lane_consts():
    A(f"v_lshrrev_b32 v2, 3, v{vL}\nv_and_b32 v3, 7, v{vL}\nv_lshrrev_b32 v4, 4, v{vL}\nv_bfe_u32 v5, v{vL}, 2, 2\nv_and_b32 v6, 3, v{vL}\nv_lshlrev_b32 v7, 4, v0\nv_mov_b32 v8, 0")
    if OPT['stamps']:
        for i in range(82, 102): A(f"s_mov_b32 s{i}, 0")

XN, XNS = 0, 1216
QL, QLS = 5120, 320
HB, HBS = 9728, 192
BIG = 16384
vTR = 13
vD = 28
def common_setup():
    lane_consts()
    A(f"""
    s_and_b32 s67, s{sW}, 1
    s_lshl_b32 s68, s67, 2
    v_and_b32 v11, 2, v2
    v_or_b32 v11, s68, v11
    v_xor_b32 v11, v11, v3
    v_lshlrev_b32 v11, 4, v11
    v_lshl_add_u32 v12, v2, 13, v11
    s_lshr_b32 s68, s{sW}, 1
    s_bfe_u32 s69, s{sW}, 0x10001
    s_lshr_b32 s70, s{sW}, 2
    """)
def common_setup2():
    A(f"""
    s_and_b32 s74, s{sW}, 3
    s_lshl_b32 s74, s74, 1
    v_lshrrev_b32 v{vTR}, 1, v6
    v_or_b32 v{vTR}, s74, v{vTR}
    v_and_b32 v14, 2, v5
    v_xor_b32 v{vTR}, v{vTR}, v14
    v_and_b32 v14, 1, v4
    v_lshlrev_b32 v15, 2, v14
    v_xor_b32 v{vTR}, v{vTR}, v15
    v_lshlrev_b32 v{vTR}, 4, v{vTR}
    v_lshl_add_u32 v{vTR}, v5, 7, v{vTR}
    v_and_b32 v15, 1, v6
    v_lshl_add_u32 v{vTR}, v15, 3, v{vTR}
    s_lshl_b32 s74, s70, 10
    s_add_u32 s74, s74, {BIG}
    v_add_u32 v15, s74, v{vTR}
    v_lshl_add_u32 v16, v4, 11, v15
    v_mul_u32_u24 v18, {XNS}, v6
    v_lshl_add_u32 v18, v4, 4, v18
    s_mov_b32 s78, 0x000f000f
    s_mov_b32 s79, 0x000f000f
    """)
def x_loads():
    A(f"""
    s_mul_i32 s66, s{sW}, 1152
    v_lshlrev_b32 v10, 3, v{vL}
    v_lshlrev_b32 v19, 1, v{vL}
    buffer_load_dwordx2 v[20:21], v10, {RA}, s66 offen
    buffer_load_dwordx2 v[22:23], v10, {RA}, s66 offen offset:512
    buffer_load_ushort v24, v19, {RA}, s66 offen offset:1024
    """)
def layernorm():
    e = list(range(56, 65))
    for i in range(4): A(f"v_lshlrev_b32 v{e[2*i]}, 16, v{20+i}\nv_and_b32 v{e[2*i+1]}, 0xffff0000, v{20+i}")
    A(f"""
    v_lshlrev_b32 v{e[8]}, 16, v24
    v_add_f32 v25, v{e[0]}, v{e[1]}
    v_add_f32 v26, v{e[2]}, v{e[3]}
    v_add_f32 v27, v{e[4]}, v{e[5]}
    v_add_f32 v28, v{e[6]}, v{e[7]}
    v_add_f32 v25, v25, v26
    v_add_f32 v27, v27, v28
    v_add_f32 v25, v25, v{e[8]}
    v_add_f32 v25, v25, v27
    """)
    wave_sum_to_sgpr(25, 74)
    A(f"v_mov_b32 v26, {fbits(1.0/576)}\nv_mul_f32 v26, s74, v26")
    A(f"v_sub_f32 v27, v{e[0]}, v26\nv_mul_f32 v25, v27, v27")
    for i in range(1, 9): A(f"v_sub_f32 v27, v{e[i]}, v26\nv_fmac_f32 v25, v27, v27")
    rb16(26, 26)
    for i in range(9): A(f"v_sub_f32 v{e[i]}, v{e[i]}, v26")
    wave_sum_to_sgpr(25, 74)
    A(f"v_mov_b32 v27, {fbits(1.0/576)}\nv_mul_f32 v27, s74, v27")
    rb16(27, 27)
    A(f"v_add_f32 v27, {fbits(1e-5)}, v27")
    rb16(27, 27)
    A("v_sqrt_f32 v27, v27")
    rb16(27, 27)
    A("v_rcp_f32 v27, v27")
    for i in range(0, 8, 2): A(f"v_cvt_pk_bf16_f32 v{20+i//2}, v{e[i]}, v{e[i+1]}")
    A(f"v_cvt_pk_bf16_f32 v24, v{e[8]}, v{e[8]}")
    for i in range(0, 8, 2): A(f"v_lshlrev_b32 v{e[i]}, 16, v{20+i//2}\nv_and_b32 v{e[i+1]}, 0xffff0000, v{20+i//2}")
    A(f"v_lshlrev_b32 v{e[8]}, 16, v24")
    for i in range(9): A(f"v_mul_f32 v{e[i]}, v{e[i]}, v27")
    for i in range(0, 8, 2): A(f"v_cvt_pk_bf16_f32 v{20+i//2}, v{e[i]}, v{e[i+1]}")
    A(f"v_cvt_pk_bf16_f32 v24, v{e[8]}, v{e[8]}")
    A(f"""
    s_mul_i32 s74, s{sW}, {XNS}
    v_add_u32 v10, s74, v10
    v_add_u32 v19, s74, v19
    ds_write_b64 v10, v[20:21] offset:{XN}
    ds_write_b64 v10, v[22:23] offset:{XN+512}
    ds_write_b16 v19, v24 offset:{XN+1024}
    """)
def clear_tail_inbox(vones):
    A(f"s_lshl_b32 s74, s{sH}, 14\ns_add_u32 s74, s74, {WS_H3B}")
    for i in range(4):
        A(f"buffer_store_dwordx4 {vr(vones,4)}, v9, {WS}, s74 offen sc1\nbuffer_store_dwordx4 {vr(vones,4)}, v9, {WS}, s74 offen offset:2048 sc1")
        if i < 3: A("s_add_u32 s74, s74, 4096")
    A(f"s_sub_u32 s74, s74, {3*4096}\nv_lshlrev_b32 v14, 11, v2\nv_lshl_add_u32 v14, v3, 4, v14")
    A(f"buffer_store_dwordx4 {vr(vones,4)}, v14, {WS}, s74 offen offset:1024 sc1")
def proof(sidx):
    A(f"""
    s_lshl_b32 s74, s{sidx}, 7
    s_add_u32 s74, s74, {WS_PF}
    v_mov_b32 v14, s{sT}
    v_lshlrev_b32 v17, 2, v{vL}
    s_mov_b32 exec_hi, 0
    buffer_store_dword v14, v17, {WS}, s74 offen sc1
    s_mov_b64 exec, -1
    """)
vXN, vG = 32, 104
def xn_frags():
    for kp in range(18):
        A(f"ds_read_b128 {vr(vXN+4*kp,4)}, v18 offset:{XN+kp*64}")
        if kp == 11: A("s_waitcnt lgkmcnt(4)")
def k_half(h, va, vb):
    for kp in range(9):
        a, off = (va, kp*8192) if kp < 8 else (vb, 0)
        A(f"ds_read_b64_tr_b16 {vr(vG+4*kp,2)}, v{a} offset:{off}")
        A(f"ds_read_b64_tr_b16 {vr(vG+4*kp+2,2)}, v{a} offset:{off+512}")
        if kp == 5: A("s_waitcnt lgkmcnt(6)")
    for kp in range(9):
        A(f"s_waitcnt lgkmcnt({min(15,2*(8-kp))})")
        mf16(vD, vG+4*kp, vXN+4*(9*h+kp), h == 0 and kp == 0)

QP, QPS = 5120, 272
WQB = BIG + 108*1024
UKB = BIG
sU = 76
def f_setup():
    A(f"""
    s_lshl_b32 s71, s{sA_}, 1
    s_add_u32 s71, s71, s{sQD}
    s_cmp_eq_u32 s{sA_}, 3
    s_cselect_b32 s72, 1, 2
    s_sub_u32 s71, s71, s72
    s_mul_i32 s{sU}, s{sX}, 9
    s_add_u32 s{sU}, s{sU}, s71
    s_lshr_b32 s{sF}, s{sU}, 1
    s_bitcmp1_b32 s{sU}, 0
    s_cselect_b32 s{sF}, 99, s{sF}
    s_cmp_eq_u32 s69, 0
    s_cselect_b32 s60, s{P_WG}, s{P_WU}
    s_cselect_b32 s61, s{P_WG+1}, s{P_WU+1}
    s_mov_b32 s62, {576*9216}
    s_lshl_b32 s72, s67, 1
    s_lshl_b32 s71, s69, 2
    s_or_b32 s72, s72, s71
    v_bfe_u32 v14, v2, 1, 1
    v_or_b32 v14, s72, v14
    v_xor_b32 v14, v14, v3
    v_lshlrev_b32 v14, 4, v14
    v_mul_u32_u24 v12, 9216, v2
    v_add_u32 v12, v12, v14
    s_lshl_b32 s71, s70, 1
    s_add_u32 s71, s71, s67
    s_mul_i32 s72, s71, {8*9216}
    s_lshl_b32 s74, s{sU}, 7
    s_add_u32 s72, s72, s74
    s_lshl_b32 s71, s71, 1
    s_add_u32 s71, s71, s69
    s_lshl_b32 s71, s71, 10
    s_add_u32 s71, s71, {BIG}
    """)
def gu_dma(i):
    A(f"s_mov_b32 m0, s71\ns_add_u32 s71, s71, 8192")
    dma(12, RC, 72)
    A(f"s_add_u32 s72, s72, {32*9216}")
A(f"""
L_nq:
s_bfe_u32 s{sA_}, s2, 0x20005
s_bfe_u32 s{sQD}, s2, 0x20003
s_lshl_b32 s{sH}, s{sX}, 2
s_add_u32 s{sH}, s{sH}, s{sA_}
s_mov_b32 s54, 4608
v_lshrrev_b32 v2, 3, v{vL}
v_and_b32 v3, 7, v{vL}
s_and_b32 s67, s{sW}, 1
s_lshl_b32 s68, s67, 2
v_and_b32 v11, 2, v2
v_or_b32 v11, s68, v11
v_xor_b32 v11, v11, v3
v_lshlrev_b32 v11, 4, v11
v_lshl_add_u32 v12, v2, 13, v11
s_bfe_u32 s69, s{sW}, 0x10001
s_lshr_b32 s70, s{sW}, 2
s_mul_i32 s71, s70, 10
s_add_u32 s71, s71, s67
s_mul_i32 s72, s{sQD}, 18
s_add_u32 s72, s72, s71
s_lshl_b32 s72, s72, 16
s_lshl_b32 s73, s{sH}, 8
s_lshl_b32 s74, s69, 7
s_add_u32 s73, s73, s74
s_add_u32 s72, s72, s73
s_lshl_b32 s71, s71, 1
s_add_u32 s71, s71, s69
s_lshl_b32 s71, s71, 10
s_add_u32 s71, s71, {WQB}
s_mov_b32 m0, s71
s_cmp_lg_u32 s70, 0
s_waitcnt lgkmcnt(0)
s_cbranch_scc1 L_nq_nox
""")
x_loads()
dma(12, RB, 72)
A(f"s_add_u32 s71, s71, 4096\ns_add_u32 s72, s72, {2*65536}\ns_mov_b32 m0, s71\nL_nq_nox:")
for i in range(4):
    A(f"s_add_u32 s71, s71, 4096")
    dma(12, RB, 72)
    if i < 3: A(f"s_add_u32 s72, s72, {2*65536}\ns_mov_b32 m0, s71")
A(f"s_load_dword s{sE}, s[48:49], 0")
lane_consts()
ST(1, 2)
A(f"s_lshr_b32 s68, s{sW}, 1\ns_cmp_ge_u32 s{sQD}, 2\ns_cbranch_scc1 L_nq_fs")
A(f"""
s_lshl_b32 s71, s70, 3
s_add_u32 s71, s71, s67
s_lshl_b32 s72, s{sQD}, 5
s_add_u32 s72, s72, s71
s_lshl_b32 s72, s72, 16
s_add_u32 s72, s72, s73
s_lshl_b32 s71, s71, 1
s_add_u32 s71, s71, s69
s_lshl_b32 s71, s71, 10
s_add_u32 s71, s71, {UKB}
s_cmp_eq_u32 s70, 0
s_cbranch_scc1 L_nq_ln
""")
ones(24)
A(f"""
s_lshl_b32 s75, s{sW}, 12
s_lshl_b32 s74, s{sH}, 14
s_add_u32 s74, s74, s75
s_add_u32 s74, s74, {WS_H3B-16384}
buffer_store_dwordx4 v[24:27], v9, {WS}, s74 offen sc1
buffer_store_dwordx4 v[24:27], v9, {WS}, s74 offen offset:2048 sc1
s_mov_b64 exec, 0xff
buffer_store_dwordx4 v[24:27], v9, {WS}, s74 offen offset:1024 sc1
buffer_store_dwordx4 v[24:27], v9, {WS}, s74 offen offset:3072 sc1
s_lshl_b32 s75, s{sW}, 15
s_lshl_b32 s74, s{sH}, 10
s_add_u32 s74, s74, s75
s_lshl_b32 s75, s{sQD}, 9
s_add_u32 s74, s74, s75
s_add_u32 s74, s74, {WS_H2-4*32768}
s_mov_b32 exec_lo, -1
buffer_store_dwordx4 v[24:27], v9, {WS}, s74 offen sc1
s_mov_b64 exec, -1
s_branch L_nq_noln
L_nq_fs:
""")
f_setup()
A(f"s_cmp_lg_u32 s70, 0\ns_cbranch_scc1 L_nq_noln\nL_nq_ln:\ns_waitcnt vmcnt(5)")
ST(2, 2)
layernorm()
A("L_nq_noln:")
ST(3, 2)
common_setup2()
A(f"""
v_add_u32 v21, {WQB-BIG}, v16
v_and_b32 v14, 1, v4
v_lshl_add_u32 v17, v14, 11, v15
v_add_u32 v17, {WQB-BIG}, v17
s_mul_i32 s74, s{sQD}, 288
v_add_u32 v19, s74, v18
s_lshl_b32 s66, s{sH}, 13
s_add_u32 s66, s66, {WS_H1L}
s_lshl_b32 s75, s{sQD}, 11
s_add_u32 s75, s75, s66
s_lshl_b32 s77, s{sW}, 8
s_add_u32 s75, s75, s77
v_lshlrev_b32 v20, 6, v6
v_lshl_add_u32 v20, v4, 4, v20
v_cmp_gt_u32 vcc, 2, v4
s_cmp_lt_u32 s{sQD}, 2
s_cbranch_scc1 L_nq_uk
s_waitcnt vmcnt(0)
""")
for i in range(OPT['gap']): gu_dma(i)
A(f"""
s_branch L_nq_a
L_nq_uk:
s_waitcnt vmcnt(5)
s_cmp_lg_u32 s70, 0
s_cbranch_scc1 L_nq_uk2
s_waitcnt vmcnt(0)
L_nq_uk2:
""")
for i in range(4):
    A(f"s_mov_b32 m0, s71\ns_add_u32 s71, s71, 4096")
    dma(12, RC, 72)
    A(f"s_add_u32 s72, s72, {2*65536}")
A("L_nq_a:\ns_waitcnt lgkmcnt(0)")
ST(1); ST(5, 2)
A("s_barrier")
vA, vB = 64, 96
for kp in range(5):
    a = 21 if kp < 4 else 17
    A(f"ds_read_b64_tr_b16 {vr(vA+4*kp,2)}, v{a} offset:{kp*8192}")
    A(f"ds_read_b64_tr_b16 {vr(vA+4*kp+2,2)}, v{a} offset:{kp*8192+512}")
    A(f"ds_read_b128 {vr(vB+4*kp,4)}, v19 offset:{XN+kp*64}")
get_tag()
A(f"v_mov_b32 v25, s{sT}\nv_mov_b32 v27, s{sT}")
for kp in range(5):
    A(f"s_waitcnt lgkmcnt({3*(4-kp)})")
    if kp == 4:
        for j in range(4): A(f"v_cndmask_b32 v{vB+16+j}, 0, v{vB+16+j}, vcc")
    mf16(vD, vA+4*kp, vB+4*kp, kp == 0)
H1D = WS_H1L - WS_H1
A(f"""
v_and_b32 v52, 1, v2
v_and_b32 v53, 2, v3
v_lshl_or_b32 v53, v52, 2, v53
v_xor_b32 v53, v53, v4
v_lshlrev_b32 v53, 4, v53
v_lshl_add_u32 v53, v3, 7, v53
v_lshl_add_u32 v52, v52, 11, v53
v_cvt_pk_bf16_f32 v24, v{vD}, v{vD+1}
v_cvt_pk_bf16_f32 v26, v{vD+2}, v{vD+3}
s_mov_b64 exec, s[78:79]
buffer_store_dwordx4 v[24:27], v20, {WS}, s75 offen
s_sub_u32 s75, s75, {H1D}
s_cmp_lt_u32 s{sQD}, 2
s_cbranch_scc1 L_nq_b
buffer_store_dwordx4 v[24:27], v20, {WS}, s75 offen sc1
s_mov_b64 exec, -1
""")
ST(2); ST(6, 2)
A(f"s_barrier\ns_branch L_F\nL_nq_b:\ns_mov_b64 exec, -1")
ST(2); ST(6, 2)
A(f"s_barrier\ns_add_u32 s71, s71, 16384\ns_add_u32 s72, s72, {8*65536}")
for i in range(4):
    A(f"s_mov_b32 m0, s71\ns_add_u32 s71, s71, 4096")
    dma(12, RC, 72)
    if i < 3: A(f"s_add_u32 s72, s72, {2*65536}")
A(f"""
s_mul_i32 s74, s68, {4*QPS}
s_lshl_b32 s77, s67, 7
s_add_u32 s74, s74, s77
v_mul_u32_u24 v22, {QPS}, v5
v_lshl_add_u32 v22, v4, 5, v22
v_lshl_add_u32 v22, v6, 3, v22
v_add_u32 v22, s74, v22
s_lshl_b32 s77, s{sW}, 13
s_add_u32 s77, s77, {UKB}
v_add_u32 v52, s77, v52
v_xor_b32 v53, 64, v52
v_and_b32 v23, 15, v{vL}
v_mul_u32_u24 v23, {QPS}, v23
v_lshl_add_u32 v23, v4, 4, v23
s_lshl_b32 s72, s{sH}, 10
s_lshl_b32 s74, s{sQD}, 9
s_add_u32 s72, s72, s74
s_lshl_b32 s74, s{sW}, 6
s_add_u32 s72, s72, s74
s_add_u32 s72, s72, {WS_H2}
v_and_b32 v21, 1, v5
v_lshlrev_b32 v54, 15, v6
v_lshlrev_b32 v55, 13, v2
v_lshl_add_u32 v55, v3, 4, v55
s_lshl_b32 s76, s{sH}, 8
s_lshl_b32 s74, s{sQD}, 7
s_add_u32 s76, s76, s74
s_add_u32 s76, s76, {WS_PQ}
v_mov_b32 v44, s{sT}
v_mov_b32 v45, s{sT}
v_mov_b32 v46, s{sT}
v_mov_b32 v47, s{sT}
v_lshl_add_u32 v54, v21, 5, v54
v_lshl_add_u32 v54, v4, 3, v54
s_sub_u32 s71, s66, {H1D}
s_mov_b32 s77, 0
L_h1poll:
s_cmp_lg_u32 s77, 6
s_cbranch_scc1 L_h1ng
s_mov_b64 exec, s[78:79]
buffer_store_dwordx4 v[24:27], v20, {WS}, s75 offen sc1
s_mov_b64 exec, -1
L_h1ng:
s_and_b32 s74, s77, 9
s_cmp_eq_u32 s74, 9
s_cselect_b32 s74, s71, s66
buffer_load_dwordx4 v[48:51], v7, {WS}, s74 offen sc1
s_add_u32 s77, s77, 1
s_waitcnt vmcnt(0)
v_xor_b32 v49, s{sT}, v49
v_xor_b32 v51, s{sT}, v51
v_or_b32 v49, v49, v51
v_cmp_ne_u32 vcc, 0, v49
s_cmp_ge_u32 s77, {POLL_MAX}
s_cbranch_scc1 L_h1done
s_cbranch_vccnz L_h1poll
L_h1done:
v_mov_b32 v49, v50
ds_write_b64 v22, v[48:49] offset:{QP}
s_cmp_gt_u32 s77, 6
s_cbranch_scc1 L_h1sent
s_mov_b64 exec, s[78:79]
buffer_store_dwordx4 v[24:27], v20, {WS}, s75 offen sc1
s_mov_b64 exec, -1
L_h1sent:
""")
A(f"L_h1np:\nv_cmp_ne_u32 vcc, 0, v21\ns_waitcnt lgkmcnt(0)")
ST(3); ST(7, 2)
A(f"s_barrier\ns_cmp_lg_u32 s{sW}, 0\ns_cbranch_scc1 L_nopq\nbuffer_store_dwordx4 v[44:47], v55, {WS}, s76 offen sc1\nL_nopq:")
vUK, vD1 = 64, 56
for kp in range(4):
    A(f"ds_read_b128 {vr(vB+4*kp,4)}, v23 offset:{QP+kp*64}")
    for tl in range(2):
        A(f"ds_read_b128 {vr(vUK+16*tl+4*kp,4)}, v{52+(kp&1)} offset:{tl*4096+(kp>>1)*1024}")
A(f"s_mov_b32 s74, {fbits(LOG2E/math.sqrt(128.0))}")
for kp in range(4):
    A(f"s_waitcnt lgkmcnt({9-3*kp+1})")
    mf16(vD, vUK+4*kp, vB+4*kp, kp == 0)
    A(f"s_waitcnt lgkmcnt({9-3*kp})")
    mf16(vD1, vUK+16+4*kp, vB+4*kp, kp == 0)
for j in range(4): A(f"v_cndmask_b32 v{60+j}, v{vD1+j}, v{vD+j}, vcc")
for j in range(4): A(f"v_cndmask_b32 v{vD+j}, v{vD+j}, v{vD1+j}, vcc")
for j in range(4): A(f"v_add_f32_dpp v{vD+j}, v{60+j}, v{vD+j} row_ror:4 {DPPF}")
for j in range(4): A(f"v_add_f32_dpp v{vD+j}, v{vD+j}, v{vD+j} row_ror:8 {DPPF}")
for j in range(4): A(f"v_mul_f32 v{vD+j}, s74, v{vD+j}")
A(f"""
v_cvt_pk_bf16_f32 v48, v{vD}, v{vD+1}
v_cvt_pk_bf16_f32 v49, v{vD+2}, v{vD+3}
v_min_u32 v48, -2, v48
v_min_u32 v49, -2, v49
s_mov_b32 exec_lo, 0x00ff00ff
s_mov_b32 exec_hi, 0x00ff00ff
buffer_store_dwordx2 v[48:49], v54, {WS}, s72 offen sc1
s_mov_b64 exec, -1
""")
ST(4); ST(9, 2)
A(f"""
s_barrier
s_cmp_lt_u32 s{sA_}, 3
s_cbranch_scc1 L_TH
s_cmp_eq_u32 s{sQD}, 0
s_cbranch_scc1 L_T
""")
f_setup()
for i in range(OPT['gap']): gu_dma(i)
A("s_branch L_F")

def wide_voffset(v):
    A(f"v_mul_u32_u24 v{v}, 1152, v2\nv_add_u32 v{v}, v{v}, v11")
def publish_setup(stride):
    A(f"""
    s_mul_i32 s74, s{sW}, {stride}
    s_add_u32 s72, s72, s74
    v_lshlrev_b32 v20, 6, v4
    v_lshl_add_u32 v20, v6, 4, v20
    """)
def store_tile(vacc, i, stride, sent):
    if sent:
        for j in range(4): A(f"v_min_u32 v{vacc+4*i+j}, -2, v{vacc+4*i+j}")
    A(f"s_mov_b64 exec, s[78:79]")
    A(f"buffer_store_dwordx4 {vr(vacc+4*i,4)}, v20, {WS}, s72 offen sc1")
    A(f"s_mov_b64 exec, -1")
    A(f"s_add_u32 s72, s72, {8*stride}")
def wide_dma(n, rsrc):
    for i in range(n):
        A(f"s_mov_b32 m0, s71\ns_add_u32 s74, s72, 512")
        dma(14, rsrc, 72)
        A(f"s_add_u32 s75, s71, 4096\ns_mov_b32 m0, s75\ns_add_u32 s72, s72, {16*1152}")
        dma(14, rsrc, 74)
        A(f"s_add_u32 s71, s71, 16384")
def wide_frag_addrs(base8, shift):
    A(f"v_lshl_add_u32 v16, v4, 13, v15")
    if shift: A(f"v_add_u32 v16, {shift}, v16")
    A(f"""
    v_add_u32 v17, 0x10000, v16
    v_lshl_add_u32 v18, v4, 10, v{vTR}
    v_add_u32 v18, {base8}, v18
    """)
def wide_frag_reads(vdst, nk):
    n = 0
    for i in range(4):
        for kp in range(nk):
            a = 16 if kp < 2 else 17
            off = (kp & 1)*32768 + i*2048
            d = vdst + (i*nk + kp)*4
            A(f"ds_read_b64_tr_b16 {vr(d,2)}, v{a} offset:{off}")
            A(f"ds_read_b64_tr_b16 {vr(d+2,2)}, v{a} offset:{off+512}")
            n += 2
            if n % 12 == 0: A("s_waitcnt lgkmcnt(4)")
    A("s_waitcnt lgkmcnt(4)")
    for kp in range(nk):
        d = vdst + (4*nk + kp)*4
        A(f"ds_read_b64_tr_b16 {vr(d,2)}, v18 offset:{kp*4096}")
        A(f"ds_read_b64_tr_b16 {vr(d+2,2)}, v18 offset:{kp*4096+512}")
def wide_gemm(vW, nk, vBf, vacc, stride, sent, lab):
    for i in range(5):
        if i == 4: A(f"s_cmp_lg_u32 s70, 0\ns_cbranch_scc1 {lab}_a")
        for kp in range(nk):
            if i == 0: A(f"s_waitcnt lgkmcnt({nk-1-kp})")
            mf16(vacc+4*i, vW+(i*nk+kp)*4, vBf+4*kp, kp == 0)
        if 2 <= i <= 3: store_tile(vacc, i-2, stride, sent)
    A(f"{lab}_a:")
    store_tile(vacc, 2, stride, sent)
    A("s_nop 2")
    store_tile(vacc, 3, stride, sent)
    A(f"s_cmp_lg_u32 s70, 0\ns_cbranch_scc1 {lab}_b")
    store_tile(vacc, 4, stride, sent)
    A(f"{lab}_b:")
def tail_prologue(lab, slot_code):
    common_setup2()
    A(f"s_mul_i32 s{sSL}, s{sX}, 7\n{slot_code}\ns_waitcnt lgkmcnt(0)")
    get_tag()
    A(f"s_cmp_lg_u32 s{sW}, 7\ns_cbranch_scc1 {lab}")
    ones(24)
    clear_tail_inbox(24)
    A("s_waitcnt vmcnt(0)")
    proof(sSL)
    A(f"{lab}:")

XL, CT, CTS = 0, 8192, 320
TS = 128*256
vUV, vWO = 32, 96
def t_setup():
    A(f"""
    v_lshlrev_b32 v21, 11, v3
    v_xor_b32 v22, v3, v4
    v_lshlrev_b32 v22, 4, v22
    v_lshl_add_u32 v22, v2, 11, v22
    v_and_b32 v12, 1, v2
    v_lshl_or_b32 v12, v12, 2, v4
    v_lshrrev_b32 v14, 1, v3
    v_xor_b32 v12, v12, v14
    v_lshlrev_b32 v12, 4, v12
    v_lshl_add_u32 v12, v3, 7, v12
    v_lshlrev_b32 v14, 3, v3
    s_lshl_b32 s66, s{sH}, 14
    s_add_u32 s66, s66, {WS_H3B}
    s_lshl_b32 s73, s{sW}, 7
    s_add_u32 s73, s73, s66
    s_lshl_b32 s72, s{sSL}, 8
    s_add_u32 s72, s72, {WS_H5}
    v_lshrrev_b32 v23, 1, v3
    v_mul_u32_u24 v23, {CTS}, v23
    v_lshl_add_u32 v23, v4, 3, v23
    s_lshl_b32 s74, s{sW}, 5
    v_add_u32 v23, s74, v23
    v_mul_u32_u24 v10, {CTS}, v6
    v_lshl_add_u32 v10, v4, 4, v10
    """)
    publish_setup(TS)
def t_tail(nk, lab):
    A(f"""
    s_cmp_lg_u32 s{sW}, 0
    s_cbranch_scc1 {lab}pd
    v_min_u32 v24, 35, v{vL}
    v_lshlrev_b32 v24, 7, v24
    s_mov_b32 s74, {WS_PF}
    s_mov_b32 s77, 0
    {lab}pp:
    buffer_load_dword v25, v24, {WS}, s74 offen sc1
    s_add_u32 s77, s77, 1
    s_waitcnt vmcnt(0)
    v_cmp_ne_u32 vcc, s{sT}, v25
    s_cmp_ge_u32 s77, {POLL_MAX}
    s_cbranch_scc1 {lab}pd
    s_cbranch_vccnz {lab}pp
    {lab}pd:
    """)
    ST(5); ST(7, 3)
    A(f"""
    s_mov_b32 s77, 0
    v_mov_b32 v28, 0
    v_mov_b32 v29, 0
    {lab}poll:
    buffer_load_dwordx4 v[24:27], v22, {WS}, s73 offen sc1
    s_cmp_lg_u32 s{sW}, 7
    s_cbranch_scc1 {lab}ns
    s_mov_b64 exec, 0xff
    buffer_load_dwordx2 v[28:29], v21, {WS}, s66 offen offset:1024 sc1
    s_mov_b64 exec, -1
    {lab}ns:
    s_add_u32 s77, s77, 1
    s_waitcnt vmcnt(0)
    v_max3_u32 v30, v24, v25, v26
    v_max3_u32 v30, v30, v27, v28
    v_max_u32 v30, v30, v29
    v_cmp_eq_u32 vcc, -1, v30
    s_cmp_ge_u32 s77, {POLL_MAX}
    s_cbranch_scc1 {lab}done
    s_cbranch_vccnz {lab}poll
    {lab}done:
    ds_write_b128 v7, v[24:27] offset:{XL}
    s_cmp_lg_u32 s{sW}, 7
    s_cbranch_scc1 {lab}nw
    s_mov_b64 exec, 0xff
    ds_write_b64 v14, v[28:29] offset:{CT+2048}
    s_mov_b64 exec, -1
    {lab}nw:
    s_waitcnt lgkmcnt(0)
    """)
    ST(6)
    A("s_barrier")
    if nk == 2: A(f"s_cmp_lg_u32 s70, 0\ns_cbranch_scc1 {lab}nouv")
    vX = 176
    A(f"ds_read_b64 v[28:29], v14 offset:{CT+2048}")
    for i in range(8): A(f"ds_read_b128 {vr(vX+4*i,4)}, v12 offset:{XL+i*1024}")
    a0, a1 = 24, 208
    for i in range(8):
        A(f"s_waitcnt lgkmcnt({7-i})")
        mf16(a0, vUV+8*i, vX+4*i, i == 0)
        mf16(a1, vUV+8*i+4, vX+4*i, i == 0)
    A(f"""
    v_max_f32_dpp v30, v28, v28 {QP1}
    v_sub_f32 v30, v28, v30
    v_exp_f32 v30, v30
    v_mul_f32 v31, v30, v29
    v_add_f32_dpp v31, v31, v31 {QP1}
    v_rcp_f32 v31, v31
    v_mul_f32 v30, v30, v31
    """)
    for j in range(4): A(f"v_add_f32_dpp v{a0+j}, v{a1+j}, v{a0+j} row_ror:8 {DPPF}")
    for j in range(4): A(f"v_mul_f32 v{a0+j}, v{a0+j}, v30")
    for j in range(4): A(f"v_add_f32_dpp v{a0+j}, v{a0+j}, v{a0+j} {QP1}")
    A(f"""
    v_cvt_pk_bf16_f32 v28, v{a0}, v{a0+1}
    v_cvt_pk_bf16_f32 v29, v{a0+2}, v{a0+3}
    s_mov_b32 exec_lo, 0x00550055
    s_mov_b32 exec_hi, 0x00550055
    ds_write_b64 v23, v[28:29] offset:{CT}
    s_mov_b64 exec, -1
    s_waitcnt lgkmcnt(0)
    {lab}nouv:
    s_barrier
    """)
    for kp in range(nk): A(f"ds_read_b128 {vr(vX+4*kp,4)}, v10 offset:{CT+kp*64}")
    wide_gemm(vWO, nk, vX, 212, TS, True, lab+"g")
    ST(7)
    finish()

A("L_TH:")
SLOT = f"s_lshl_b32 s74, s{sA_}, 1\ns_add_u32 s{sSL}, s{sSL}, s74\ns_add_u32 s{sSL}, s{sSL}, s{sQD}"
if OPT['help']:
    A(f"""
    s_lshl_b32 s66, s{sA_}, 1
    s_add_u32 s66, s66, s{sQD}
    s_lshl_b32 s66, s66, 3
    s_add_u32 s66, s66, s{sW}
    s_cmp_eq_u32 s67, 0
    s_cselect_b32 s52, s{P_WG}, s{P_WU}
    s_cselect_b32 s53, s{P_WG+1}, s{P_WU+1}
    s_mov_b32 s54, {576*9216}
    s_lshr_b32 s71, s66, 1
    s_add_u32 s71, s71, 40
    s_mul_i32 s71, s71, {8*9216}
    s_sub_u32 s72, 3, s{sX}
    s_and_b32 s72, s72, 7
    s_mul_i32 s73, s{sX}, 9
    s_add_u32 s74, s73, s72
    s_lshl_b32 s74, s74, 7
    s_add_u32 s71, s71, s74
    v_mul_u32_u24 v14, 9216, v2
    v_lshl_add_u32 v14, v3, 4, v14
    s_add_u32 s74, s71, {24*8*9216}
    buffer_load_dwordx4 v[248:251], v14, {RA}, s71 offen
    buffer_load_dwordx4 v[248:251], v14, {RA}, s74 offen
    s_cmp_lg_u32 s72, 0
    s_cbranch_scc1 L_noc3b
    buffer_load_dwordx4 v[248:251], v14, {RA}, s71 offen offset:1024
    buffer_load_dwordx4 v[248:251], v14, {RA}, s74 offen offset:1024
    L_noc3b:
    s_lshl_b32 s66, s66, 10
    s_mov_b32 s52, s{P_WD}
    s_mov_b32 s53, s{P_WD+1}
    s_add_u32 s73, s73, 6
    s_mul_i32 s73, s73, {64*1152}
    s_add_u32 s54, s73, {64*1152}
    s_add_u32 s73, s73, s66
    s_add_u32 s74, s73, {48*1024}
    buffer_load_dwordx4 v[248:251], v9, {RA}, s73 offen
    buffer_load_dwordx4 v[248:251], v9, {RA}, s74 offen
    s_mov_b32 s52, s{P_WO}
    s_mov_b32 s53, s{P_WO+1}
    s_lshl_b32 s73, s{sX}, 3
    s_add_u32 s73, s73, 7
    s_mul_i32 s73, s73, {64*1152}
    s_add_u32 s54, s73, {64*1152}
    s_add_u32 s73, s73, s66
    s_add_u32 s74, s73, {48*1024}
    buffer_load_dwordx4 v[248:251], v9, {RA}, s73 offen
    buffer_load_dwordx4 v[248:251], v9, {RA}, s74 offen
    """)
A(f"s_mul_i32 s{sSL}, s{sX}, 7\n{SLOT}")
ST(1, 3)
srd(52, P_WUV, 512*8192)
srd(56, P_WO, 4096*1152)
A(f"""
s_lshl_b32 s71, s{sW}, 10
s_add_u32 s71, s71, {BIG}
s_lshl_b32 s72, s68, 2
s_add_u32 s72, s72, s67
s_lshl_b32 s72, s72, 16
s_lshl_b32 s73, s{sH}, 1
s_add_u32 s73, s73, s{sQD}
s_lshl_b32 s74, s73, 7
s_add_u32 s72, s72, s74
""")
for i in range(8):
    cb = 2*(i&1) + 16*(i>>1)
    A(f"s_mov_b32 m0, s71\ns_add_u32 s74, s72, {cb*65536}")
    dma(12, RA, 74)
    A(f"s_add_u32 s71, s71, 8192")
    if i < OPT['tslow']: A("s_waitcnt vmcnt(0)")
wide_voffset(14)
A(f"""
s_mul_i32 s73, s73, {64*1152}
s_lshl_b32 s71, s67, 3
s_add_u32 s71, s71, s68
s_lshl_b32 s71, s71, 10
s_add_u32 s71, s71, {BIG+65536}
s_mul_i32 s72, s67, {8*1152}
s_lshl_b32 s74, s68, 7
s_add_u32 s72, s72, s74
s_add_u32 s72, s72, s73
""")
wide_dma(4, RB)
A(f"""
s_mul_i32 s72, s{sW}, {8*1152}
s_add_u32 s72, s72, s73
s_add_u32 s72, s72, 1024
s_lshl_b32 s71, s{sW}, 10
s_add_u32 s71, s71, {BIG+131072}
s_mov_b32 m0, s71
""")
dma(14, RB, 72)
wide_frag_addrs(BIG+131072, 65536)
A(f"v_lshl_add_u32 v19, v4, 10, v{vTR}\nv_add_u32 v19, {BIG}, v19")
t_setup()
ST(5, 3)
A("s_waitcnt vmcnt(0)")
ST(6, 3)
A("s_barrier")
for kp in range(16):
    A(f"ds_read_b64_tr_b16 {vr(vUV+4*kp,2)}, v19 offset:{kp*4096}")
    A(f"ds_read_b64_tr_b16 {vr(vUV+4*kp+2,2)}, v19 offset:{kp*4096+512}")
    if kp % 6 == 5: A("s_waitcnt lgkmcnt(4)")
A("s_waitcnt lgkmcnt(2)")
wide_frag_reads(vWO, 2)
t_tail(2, "L_u")

A("L_T:")
A(f"s_mul_i32 s{sSL}, s{sX}, 7\ns_add_u32 s{sSL}, s{sSL}, 6")
ST(1, 3)
srd(52, P_WUV, 512*8192)
srd(56, P_WO, 4096*1152)
A(f"""
s_lshl_b32 s71, s70, 1
s_add_u32 s71, s71, s67
s_lshl_b32 s71, s71, 1
s_add_u32 s71, s71, s69
s_lshl_b32 s71, s71, 10
s_add_u32 s71, s71, {BIG}
s_lshl_b32 s72, s70, 2
s_add_u32 s72, s72, s67
s_lshl_b32 s72, s72, 16
s_lshl_b32 s73, s{sH}, 8
s_lshl_b32 s74, s69, 7
s_add_u32 s73, s73, s74
s_add_u32 s72, s72, s73
""")
for i in range(16):
    cb = 2*((i>>1)&1) + 8*(i&1) + 16*(i>>2)
    A(f"s_mov_b32 m0, s71\ns_add_u32 s74, s72, {cb*65536}")
    dma(12, RA, 74)
    A(f"s_add_u32 s71, s71, 8192")
wide_voffset(14)
A(f"""
s_mul_i32 s66, s{sH}, {128*1152}
s_lshl_b32 s71, s68, 2
s_add_u32 s71, s71, s67
s_mul_i32 s72, s71, {8*1152}
s_add_u32 s72, s72, s66
s_add_u32 s72, s72, 1024
s_lshl_b32 s71, s71, 10
s_add_u32 s71, s71, {BIG+131072}
s_mov_b32 m0, s71
s_add_u32 s71, s71, 2048
""")
dma(14, RB, 72)
A(f"s_add_u32 s72, s72, {16*1152}\ns_mov_b32 m0, s71")
dma(14, RB, 72)
vST = 176
A(f"""
s_mul_i32 s72, s67, {8*1152}
s_lshl_b32 s74, s68, 7
s_add_u32 s72, s72, s74
s_add_u32 s72, s72, s66
s_barrier
""")
for i in range(4):
    A(f"buffer_load_dwordx4 {vr(vST+8*i,4)}, v14, {RB}, s72 offen nt")
    A(f"buffer_load_dwordx4 {vr(vST+8*i+4,4)}, v14, {RB}, s72 offen offset:512 nt")
    A(f"s_add_u32 s72, s72, {16*1152}")
A(f"v_add_u32 v17, 0x10000, v16")
ST(2, 3)
A("s_waitcnt vmcnt(10)")
ST(3, 3)
A("s_barrier")
for kp in range(16):
    a = 16 if kp < 8 else 17
    A(f"ds_read_b64_tr_b16 {vr(vUV+4*kp,2)}, v{a} offset:{(kp&7)*8192}")
    A(f"ds_read_b64_tr_b16 {vr(vUV+4*kp+2,2)}, v{a} offset:{(kp&7)*8192+512}")
    if kp % 6 == 5: A("s_waitcnt lgkmcnt(4)")
A(f"""
s_lshl_b32 s71, s67, 3
s_add_u32 s71, s71, s68
s_lshl_b32 s71, s71, 10
s_add_u32 s71, s71, {BIG}
v_add_u32 v19, s71, v9
s_add_u32 s71, s71, 65536
s_waitcnt lgkmcnt(0)
s_barrier
""")
ST(4, 3)
wide_dma(4, RB)
for i in range(8):
    A(f"s_waitcnt vmcnt({15-i})")
    A(f"ds_write_b128 v19, {vr(vST+4*i,4)} offset:{(i>>1)*16384+(i&1)*4096}")
wide_frag_addrs(BIG+131072, 0)
t_setup()
ST(5, 3)
A("s_waitcnt vmcnt(0) lgkmcnt(0)")
ST(6, 3)
A("s_barrier")
wide_frag_reads(vWO, 4)
t_tail(4, "L_t")

A("L_F:")
ST(1, 3)
A(f"s_cmp_ge_u32 s{sF}, 36\ns_cbranch_scc1 L_f_go")
ones(24)
A(f"s_lshl_b32 s74, s{sF}, 15\ns_lshl_b32 s75, s{sW}, 12\ns_add_u32 s74, s74, s75\ns_add_u32 s74, s74, {WS_H5}")
for i in range(4): A(f"buffer_store_dwordx4 v[24:27], v9, {WS}, s74 offen offset:{i*1024} sc1")
A(f"s_waitcnt vmcnt(0)\ns_barrier\ns_cmp_lg_u32 s{sW}, 0\ns_cbranch_scc1 L_f_go")
proof(sF)
A("L_f_go:")
for i in range(OPT['gap'], 18):
    if i < OPT['gap'] + OPT['fslow']: A("s_waitcnt vmcnt(0)")
    gu_dma(i)
srd(56, P_WD, 4608*1152)
wide_voffset(14)
vWD = 144
A(f"""
s_mul_i32 s73, s{sU}, {64*1152}
s_mul_i32 s72, s67, {8*1152}
s_lshl_b32 s74, s68, 7
s_add_u32 s72, s72, s74
s_add_u32 s72, s72, s73
v_min_u32 v140, 35, v{vL}
v_lshlrev_b32 v140, 7, v140
s_mov_b32 s66, {WS_PF}
s_cmp_lg_u32 s{sW}, 7
s_cbranch_scc1 L_f_np
buffer_load_dword v141, v140, {WS}, s66 offen sc1
L_f_np:
s_barrier
""")
for i in range(4):
    A(f"buffer_load_dwordx4 {vr(vWD+8*i,4)}, v14, {RB}, s72 offen nt")
    A(f"buffer_load_dwordx4 {vr(vWD+8*i+4,4)}, v14, {RB}, s72 offen offset:512 nt")
    A(f"s_add_u32 s72, s72, {16*1152}")
A(f"""
s_mul_i32 s72, s{sW}, {8*1152}
s_add_u32 s72, s72, s73
buffer_load_dwordx4 {vr(vWD+32,4)}, v14, {RB}, s72 offen offset:1024 nt
""")
xn_frags()
A(f"""
v_lshrrev_b32 v19, 1, v6
v_lshrrev_b32 v21, 1, v5
v_and_b32 v22, 1, v4
v_lshl_or_b32 v21, v22, 1, v21
v_lshl_or_b32 v21, v19, 2, v21
v_xor_b32 v21, s{sW}, v21
v_lshlrev_b32 v21, 4, v21
v_lshl_add_u32 v21, v5, 7, v21
v_and_b32 v22, 1, v6
v_lshl_add_u32 v21, v22, 3, v21
v_lshl_add_u32 v21, v19, 10, v21
v_lshl_add_u32 v21, v4, 11, v21
v_add_u32 v21, {BIG}, v21
v_add_u32 v22, {8*8192}, v21
s_lshl_b32 s71, s67, 3
s_add_u32 s71, s71, s68
s_lshl_b32 s71, s71, 10
s_add_u32 s71, s71, {BIG}
v_add_u32 v23, s71, v9
v_add_u32 v19, {BIG+65536}, v7
""")
ST(2, 3)
A("s_waitcnt vmcnt(9) lgkmcnt(0)")
ST(3, 3)
A("s_barrier")
k_half(0, 21, 22)
A(f"v_add_u32 v21, {9*8192}, v21\nv_add_u32 v22, {9*8192}, v22")
k_half(1, 21, 22)
A("s_barrier")
ST(4, 3)
wide_frag_addrs(BIG+65536, 0)
A(f"s_lshl_b32 s72, s{sU}, 8\ns_add_u32 s72, s72, {WS_H5+56*256}")
publish_setup(TS)
for j in range(4): A(f"v_mov_b32 v{24+j}, v{vD+j}")
for j in range(4): A(f"v_permlane32_swap_b32 v{vD+j}, v{24+j}")
C1 = -2.0*math.sqrt(2.0/math.pi)*LOG2E
A(f"s_mov_b32 s74, {fbits(0.044715)}\ns_mov_b32 s75, {fbits(C1)}")
for j in range(4): rb16(vD+j, vD+j); rb16(24+j, 24+j)
for j in range(4): A(f"v_mul_f32 v{104+j}, v{vD+j}, v{vD+j}")
for j in range(4): A(f"v_fma_f32 v{104+j}, v{104+j}, s74, 1.0")
for j in range(4): A(f"v_mul_f32 v{104+j}, v{104+j}, v{vD+j}")
for j in range(4): A(f"v_mul_f32 v{104+j}, s75, v{104+j}")
for j in range(4): A(f"v_exp_f32 v{104+j}, v{104+j}")
for j in range(4): A(f"v_add_f32 v{104+j}, 1.0, v{104+j}")
for j in range(4): A(f"v_rcp_f32 v{104+j}, v{104+j}")
for j in range(4): A(f"v_mul_f32 v{vD+j}, v{vD+j}, v{104+j}")
for j in range(4): rb16(vD+j, vD+j)
for j in range(4): A(f"v_mul_f32 v{vD+j}, v{vD+j}, v{24+j}")
A(f"""
v_cvt_pk_bf16_f32 v24, v{vD}, v{vD+1}
v_cvt_pk_bf16_f32 v25, v{vD+2}, v{vD+3}
v_mul_u32_u24 v22, {HBS}, v6
v_lshl_add_u32 v21, v4, 3, v22
s_lshl_b32 s74, s{sW}, 4
v_add_u32 v21, s74, v21
v_lshl_add_u32 v22, v4, 4, v22
s_mov_b64 exec, 0x000f000f
ds_write_b64 v21, v[24:25] offset:{HB}
s_mov_b64 exec, -1
""")
for i in range(8):
    A(f"s_waitcnt vmcnt({8-i})")
    A(f"ds_write_b128 v23, {vr(vWD+4*i,4)} offset:{(i>>1)*16384+(i&1)*4096}")
A(f"s_waitcnt vmcnt(0)\nds_write_b128 v19, {vr(vWD+32,4)}")
A(f"""
s_cmp_lg_u32 s{sW}, 7
s_cbranch_scc1 L_f_pd
s_mov_b32 s77, 0
L_f_pp:
v_cmp_ne_u32 vcc, s{sT}, v141
s_add_u32 s77, s77, 1
s_cbranch_vccz L_f_pd
s_cmp_ge_u32 s77, {POLL_MAX}
s_cbranch_scc1 L_f_pd
buffer_load_dword v141, v140, {WS}, s66 offen sc1
s_waitcnt vmcnt(0)
s_branch L_f_pp
L_f_pd:
s_waitcnt lgkmcnt(0)
""")
ST(1); ST(7, 3)
A("s_barrier")
wide_frag_reads(32, 2)
for kp in range(2): A(f"ds_read_b128 {vr(104+4*kp,4)}, v22 offset:{HB+kp*64}")
wide_gemm(32, 2, 104, 212, TS, True, "L_fg")
ST(2)
RED = 0
A(f"s_cmp_ge_u32 s{sF}, 36\ns_cbranch_scc1 L_end")
srd(56, P_OUT, 4608)
A(f"""
v_mul_u32_u24 v12, 1152, v6
v_lshl_add_u32 v12, v5, 3, v12
s_lshl_b32 s68, s{sF}, 5
buffer_load_dwordx2 v[60:61], v12, {RA}, s68 offen
v_and_b32 v23, 15, v{vL}
v_lshlrev_b32 v23, 4, v23
v_lshl_add_u32 v23, v4, 12, v23
s_lshl_b32 s72, s{sF}, 15
s_add_u32 s72, s72, {WS_H5}
s_add_u32 s73, s72, 8192
s_add_u32 s74, s72, 16384
s_add_u32 s75, s72, 24576
s_mov_b32 s76, 15
s_mov_b32 s77, 0
s_barrier
L_finpoll:
""")
for i in (2, 3, 1, 0):
    A(f"s_bitcmp1_b32 s76, {i}\ns_cbranch_scc0 L_fi{i}\nbuffer_load_dwordx4 {vr(32+4*i,4)}, v7, {WS}, s{72+i} offen sc1\nL_fi{i}:")
A("s_add_u32 s77, s77, 1\ns_waitcnt vmcnt(0)")
for i in range(4):
    q = 32+4*i
    A(f"v_max3_u32 v30, v{q}, v{q+1}, v{q+2}\nv_max_u32 v30, v30, v{q+3}\nv_cmp_eq_u32 vcc, -1, v30\ns_cbranch_vccnz L_fc{i}\ns_bitset0_b32 s76, {i}\nL_fc{i}:")
A(f"""
s_cmp_ge_u32 s77, {POLL_MAX}
s_cbranch_scc1 L_findone
s_cmp_lg_u32 s76, 0
s_cbranch_scc1 L_finpoll
L_findone:
""")
for j in range(4): A(f"v_add_f32 v{40+j}, v{40+j}, v{44+j}")
A(f"s_cmp_ge_u32 s{sW}, 6\ns_cbranch_scc1 L_fin_g")
for j in range(4): A(f"v_add_f32 v{32+j}, v{32+j}, v{36+j}")
A("s_branch L_fin_w\nL_fin_g:")
for j in range(4): A(f"v_add_f32 v{40+j}, v{40+j}, v{36+j}")
A(f"""
L_fin_w:
ds_write_b128 v7, v[40:43] offset:{RED}
ds_write_b128 v7, v[32:35] offset:{RED+8192}
s_waitcnt lgkmcnt(0)
""")
ST(6)
A(f"s_barrier\ns_cmp_lg_u32 s{sW}, 0\ns_cbranch_scc1 L_end")
for i in range(16):
    A(f"ds_read_b128 {vr(64+4*i,4)}, v23 offset:{RED+i*256}")
    if i == 13: A("s_waitcnt lgkmcnt(10)")
A(f"s_mov_b32 s76, {fbits(-LOG2E)}")
A("v_lshlrev_b32 v32, 16, v60\nv_and_b32 v33, 0xffff0000, v60\nv_lshlrev_b32 v34, 16, v61\nv_and_b32 v35, 0xffff0000, v61")
for i in range(0, 16, 2):
    A(f"s_waitcnt lgkmcnt({min(12, 14-i)})")
    for j in range(4): A(f"v_add_f32 v{64+4*i+j}, v{64+4*i+j}, v{68+4*i+j}")
    if i % 4 == 2:
        for j in range(4): A(f"v_add_f32 v{56+4*i+j}, v{56+4*i+j}, v{64+4*i+j}")
    if i % 8 == 6:
        for j in range(4): A(f"v_add_f32 v{40+4*i+j}, v{40+4*i+j}, v{56+4*i+j}")
for j in range(4): A(f"v_add_f32 v{64+j}, v{64+j}, v{96+j}")
for j in range(4): A(f"v_mov_b32 v{68+j}, v{64+j}")
for j in range(4): A(f"v_permlane16_swap_b32 v{64+j}, v{68+j}")
for j in range(4): A(f"v_add_f32 v{64+j}, v{64+j}, v{68+j}")
for j in range(4): rb16(64+j, 64+j)
for j in range(4): A(f"v_mov_b32 v{68+j}, v{64+j}")
for j in range(4): A(f"v_mul_f32 v{76+j}, s76, v{64+j}")
for j in range(4): A(f"v_permlane32_swap_b32 v{64+j}, v{68+j}")
for j in range(4): A(f"v_exp_f32 v{76+j}, v{76+j}")
for j in range(4): A(f"v_add_f32 v{76+j}, 1.0, v{76+j}")
for j in range(4): A(f"v_rcp_f32 v{76+j}, v{76+j}")
for j in range(4): A(f"v_mul_f32 v{64+j}, v{64+j}, v{76+j}")
for j in range(4): rb16(64+j, 64+j)
for j in range(4): A(f"v_mul_f32 v{64+j}, v{64+j}, v{68+j}")
for j in range(4): rb16(64+j, 64+j)
for j in range(4): A(f"v_add_f32 v{64+j}, v{64+j}, v{32+j}")
A(f"""
v_cvt_pk_bf16_f32 v64, v64, v65
v_cvt_pk_bf16_f32 v65, v66, v67
s_mov_b64 exec, 0xffff
buffer_store_dwordx2 v[64:65], v12, {RB}, s68 offen
s_cmp_lg_u32 s{sF}, 0
s_cbranch_scc1 L_fin_noep
s_mov_b64 exec, 1
v_mov_b32 v66, s{sE}
buffer_store_dword v66, v8, {WS}, 0 offen sc1
L_fin_noep:
s_mov_b64 exec, -1
""")
ST(7)
finish()

QA = 131072
PB = QA+2048
sLOC = 64
A("L_att:")
lane_consts()
if OPT['exp'] == 1: A("s_waitcnt lgkmcnt(0)\ns_branch L_end")
A(f"s_cmp_ge_u32 s{sW}, 4\ns_cbranch_scc1 L_att_hi")
A(f"""
s_lshl_b32 s68, s{sK}, 18
s_lshl_b32 s69, s{sX}, 10
s_add_u32 s68, s68, s69
s_lshl_b32 s69, s{sW}, 16
s_add_u32 s68, s68, s69
s_waitcnt lgkmcnt(0)
s_load_dword s{sE}, s[48:49], 0
""")
if OPT['adel']: A("s_waitcnt lgkmcnt(0)")
for i in range(8):
    A(f"buffer_load_dwordx4 v[248:251], v9, {RC}, s68 offen")
    if i < 7: A("s_add_u32 s68, s68, 8192")
A(f"""
v_and_b32 v11, 2, v2
v_lshlrev_b32 v11, 1, v11
v_lshrrev_b32 v10, 2, v2
v_or_b32 v11, v11, v10
v_xor_b32 v11, v11, v3
v_lshlrev_b32 v11, 4, v11
v_lshl_add_u32 v10, v2, 10, v11
v_xor_b32 v11, 32, v10
s_lshl_b32 s70, s{sX}, 4
s_add_u32 s70, s70, s{sK}
s_lshl_b32 s66, s70, 17
s_lshl_b32 s67, s{sW}, 15
s_add_u32 s66, s66, s67
""")
srd(52, P_CKV, 4*4096*1024)
if OPT['ukw'] < 8: A(f"s_waitcnt vmcnt({OPT['ukw']})")
ST(2, 2)
for lb in range(8):
    if lb in (1, 2, 4, 6): ST({1:3,2:4,4:5,6:6}[lb], 2)
    if lb == OPT['gbar']: A("s_barrier")
    for rbi in range(4):
        A(f"s_add_u32 s68, s67, {(rbi*8+lb)*1024}\ns_mov_b32 m0, s68\ns_add_u32 s69, s66, {rbi*8192+lb*128}")
        dma(10 + (rbi & 1), RA, 69)
if OPT['gbar'] == 8: A("s_barrier")
ST(7, 2)
if OPT['stamps'] in (2, 3):
    A("s_waitcnt vmcnt(0)")
    ST(9, 2); ST(7, 3)
if OPT['exp'] == 2: A("s_branch L_end")
A(f"""
v_and_b32 v11, 2, v{vL}
v_lshlrev_b32 v11, 1, v11
v_or_b32 v11, v11, v5
v_lshrrev_b32 v12, 5, v{vL}
v_xor_b32 v11, v11, v12
v_lshlrev_b32 v11, 4, v11
v_lshl_add_u32 v11, v3, 7, v11
v_and_b32 v13, 3, v2
v_lshl_add_u32 v11, v13, 13, v11
v_add_u32 v16, s67, v11
v_add_u32 v20, {QA}, v11
""")
for t in range(1, 4): A(f"v_xor_b32 v{16+t}, {t<<5}, v16\nv_xor_b32 v{20+t}, {t<<5}, v20")
A(f"""
v_and_b32 v13, 31, v{vL}
v_lshlrev_b32 v13, 5, v13
v_add_u32 v13, {QA}, v13
s_lshl_b32 s68, s{sW}, 3
v_lshl_add_u32 v14, v12, 2, v13
v_add_u32 v14, s68, v14
s_lshl_b32 s68, s{sW}, 11
s_add_u32 s68, s68, {PB}
v_add_u32 v15, s68, v9
s_lshl_b32 s76, s70, 15
s_lshl_b32 s71, s{sW}, 13
s_add_u32 s76, s76, s71
s_add_u32 s76, s76, {WS_H3A}
s_add_u32 s78, s76, 4096
s_lshl_b32 s75, s70, 11
s_lshl_b32 s71, s{sW}, 9
s_add_u32 s75, s75, s71
s_add_u32 s75, s75, {WS_FLG}
s_waitcnt lgkmcnt(0)
""")
get_tag()
def pretouch(fl):
    A(f"s_mov_b32 exec_hi, 0\nbuffer_load_dwordx4 v[248:251], v9, {WS}, s75 offen {fl}\ns_mov_b64 exec, -1")
    for i in range(8):
        A(f"buffer_load_dwordx4 v[248:251], v9, {WS}, s{76 if i < 4 else 78} offen offset:{(i&3)*1024} {fl}")
ST(1)
A("s_barrier")
ST(2)
vS = 32; vAf = 64; vBf = 96; DEP = 6
npt = [0]
def qk_read(t):
    lb = t >> 2
    if t & 3 == 0: A(f"s_waitcnt vmcnt({28-4*lb+npt[0]})")
    s = t % DEP
    A(f"ds_read_b128 {vr(vAf+4*s,4)}, v{16+(t&3)} offset:{lb*1024}")
    A(f"ds_read_b128 {vr(vBf+4*s,4)}, v{20+(t&3)} offset:{lb*1024}")
for t in range(DEP): qk_read(t)
for t in range(32):
    s = t % DEP
    A(f"s_waitcnt lgkmcnt({2*min(DEP-1, 31-t)})")
    mf32(vS, vAf+4*s, vBf+4*s, t == 0)
    if OPT['local'] and t < 9:
        if t == 0: A(f"s_mov_b32 exec_hi, 0\nbuffer_load_dwordx4 v[248:251], v9, {WS}, s75 offen\ns_mov_b64 exec, -1")
        else: A(f"buffer_load_dwordx4 v[248:251], v9, {WS}, s{76 if t < 5 else 78} offen offset:{((t-1)&3)*1024}")
        npt[0] += 1
    if t + DEP < 32: qk_read(t + DEP)
ST(3)
A("s_barrier")
A(f"v_max3_f32 v24, v{vS}, v{vS+1}, v{vS+2}\nv_max3_f32 v25, v{vS+3}, v{vS+4}, v{vS+5}\nv_max3_f32 v26, v{vS+6}, v{vS+7}, v{vS+8}")
A(f"v_max3_f32 v27, v{vS+9}, v{vS+10}, v{vS+11}\nv_max3_f32 v28, v{vS+12}, v{vS+13}, v{vS+14}")
A(f"v_max3_f32 v24, v24, v25, v26\nv_max3_f32 v27, v27, v28, v{vS+15}\nv_max_f32 v24, v24, v27")
A(f"ds_write_b32 v14, v24\ns_waitcnt lgkmcnt(0)\ns_barrier")
A(f"""
ds_read_b128 v[24:27], v13
ds_read_b128 v[28:31], v13 offset:16
s_waitcnt lgkmcnt(0)
v_max3_f32 v24, v24, v25, v26
v_max3_f32 v28, v28, v29, v30
v_max3_f32 v24, v24, v27, v31
v_max_f32 v24, v24, v28
""")
for hlf in range(2):
    for i in range(8): A(f"v_sub_f32 v{vS+8*hlf+i}, v{vS+8*hlf+i}, v24")
    for i in range(8): A(f"v_exp_f32 v{vS+8*hlf+i}, v{vS+8*hlf+i}")
    for i in range(4): A(f"v_cvt_pk_bf16_f32 v{48+4*hlf+i}, v{vS+8*hlf+2*i}, v{vS+8*hlf+2*i+1}")
    A(f"ds_write_b128 v15, {vr(48+4*hlf,4)} offset:{1024*hlf}")
for step in (8, 4, 2, 1):
    for i in range(step): A(f"v_add_f32 v{vS+i}, v{vS+i}, v{vS+i+step}")
A(f"ds_write_b32 v14, v{vS} offset:1024\ns_waitcnt lgkmcnt(0)")
ST(4)
A("s_barrier")
A("s_branch L_red")

A("L_att_hi:")
if OPT['prio']: A("s_setprio 2")
if OPT['pf']:
    A(f"""
    s_getpc_b64 s[66:67]
    L_pc:
    s_sub_u32 s66, s66, L_pc-{NAME}_kernel
    s_subb_u32 s67, s67, 0
    v_subrev_u32 v10, 256, v0
    v_lshlrev_b32 v10, 7, v10
    v_cmp_gt_u32 vcc, L_exit-{NAME}_kernel, v10
    s_and_saveexec_b64 s[68:69], vcc
    s_cbranch_execz L_nopf
    global_load_dword v255, v10, s[66:67]
    L_nopf:
    s_mov_b64 exec, -1
    """)
A(f"""
s_sub_u32 s66, s{sW}, 4
s_lshl_b32 s67, s{sX}, 15
s_lshl_b32 s68, s{sK}, 11
s_add_u32 s68, s68, s67
s_add_u32 s69, s68, {WS_H1L}
s_waitcnt lgkmcnt(0)
s_load_dword s{sE}, s[48:49], 0
s_cmp_lg_u32 s66, 1
s_cbranch_scc1 L_h_b
buffer_load_dwordx4 v[248:251], v9, {WS}, s69 offen
buffer_load_dwordx4 v[248:251], v9, {WS}, s69 offen offset:1024
L_h_b:
""")
if OPT['wqh']:
    A(f"""
    s_cmp_lt_u32 s66, 2
    s_cbranch_scc1 L_h_c
    s_lshr_b32 s68, s{sK}, 2
    s_mul_i32 s68, s68, 144
    s_and_b32 s69, s{sK}, 3
    s_lshl_b32 s69, s69, 2
    s_add_u32 s68, s68, s69
    s_lshl_b32 s69, s66, 1
    s_add_u32 s68, s68, s69
    s_add_u32 s68, s68, 124
    s_lshl_b32 s68, s68, 13
    s_lshl_b32 s69, s{sX}, 10
    s_add_u32 s68, s68, s69
    s_add_u32 s69, s68, 8192
    buffer_load_dwordx4 v[248:251], v9, {RB}, s68 offen
    buffer_load_dwordx4 v[248:251], v9, {RB}, s69 offen
    L_h_c:
    """)
A(f"""
s_lshr_b32 s67, s{sX}, 1
s_lshl_b32 s67, s67, 15
s_lshl_b32 s68, s66, 13
s_add_u32 s67, s67, s68
s_add_u32 s67, s67, {WS_H2}
s_and_b32 s69, s66, 1
s_lshl_b32 s69, s69, 1
v_xor_b32 v10, s69, v3
v_lshlrev_b32 v10, 4, v10
v_lshl_add_u32 v10, v2, 10, v10
s_add_u32 s68, s68, {QA}
v_add_u32 v16, s68, v10
v_xor_b32 v17, 64, v16
v_xor_b32 v18, 16, v16
v_xor_b32 v19, 80, v16
v_lshrrev_b32 v12, 5, v{vL}
v_and_b32 v13, 1, v4
v_lshrrev_b32 v14, 1, v6
v_lshl_or_b32 v13, v13, 1, v14
v_and_b32 v14, 2, v5
v_lshl_or_b32 v14, v14, 1, v12
v_xor_b32 v13, v13, v14
v_lshlrev_b32 v13, 4, v13
v_lshl_add_u32 v13, v5, 7, v13
v_lshl_add_u32 v13, v12, 9, v13
v_and_b32 v14, 1, v6
v_lshl_add_u32 v13, v14, 3, v13
s_lshl_b32 s68, s66, 11
v_add_u32 v20, s68, v13
v_xor_b32 v21, 32, v20
v_xor_b32 v22, 64, v20
v_xor_b32 v23, 96, v20
""")
for j in range(4): A(f"v_add_u32 v{24+j}, 0x10000, v{20+j}")
A(f"s_getreg_b32 s65, hwreg(HW_REG_XCC_ID, 0, 4)\ns_lshl_b32 s72, s{sX}, 11\ns_add_u32 s72, s72, {WS_XT}\ns_waitcnt lgkmcnt(0)")
get_tag()
A(f"""
s_cmp_lg_u32 s66, 0
s_cbranch_scc1 L_noxt
s_lshl_b32 s68, s{sK}, 7
s_add_u32 s68, s68, s72
v_mov_b32 v28, s65
v_mov_b32 v29, s{sT}
v_lshlrev_b32 v30, 3, v{vL}
s_mov_b64 exec, 0xffff
buffer_store_dwordx2 v[28:29], v30, {WS}, s68 offen sc1
s_mov_b64 exec, -1
L_noxt:
""")
A(f"""
s_add_u32 s72, s48, s72
s_addc_u32 s73, s49, 0
s_lshl_b32 s74, s{sX}, 13
s_lshl_b32 s75, s66, 11
s_add_u32 s74, s74, s75
s_add_u32 s74, s74, {WS_PQ}
s_add_u32 s74, s48, s74
s_addc_u32 s75, s49, 0
s_mov_b32 s77, 0
s_sleep 32
L_xp:
s_sleep {OPT['psl']}
s_mov_b32 s76, 0
""")
for i in range(15): A(f"s_load_dword s{16+i}, s[74:75], {i*128} glc")
A(f"s_load_dword s31, s[74:75], {15*128} glc\ns_waitcnt lgkmcnt(0)")
for i in range(16): A(f"s_xor_b32 s{16+i}, s{16+i}, s{sT}\ns_or_b32 s76, s76, s{16+i}")
A(f"""
s_add_u32 s77, s77, 1
s_cmp_ge_u32 s77, {POLL_MAX}
s_cbranch_scc1 L_xd
s_cmp_lg_u32 s76, 0
s_cbranch_scc1 L_xp
L_xd:
""")
ST(6, 2)
if OPT['gbar'] <= 8: A("s_barrier")
if OPT['exp'] == 2: A("s_branch L_end")
ST(9)
vQ = 32
A(f"s_mov_b32 s76, 0xff\ns_mov_b32 s77, 0\ns_add_u32 s69, s67, 4096\nL_h2poll:")
for i in range(8):
    A(f"s_bitcmp1_b32 s76, {i}\ns_cbranch_scc0 L_h2i{i}")
    A(f"buffer_load_dwordx4 {vr(vQ+4*i,4)}, v9, {WS}, s{67 if i < 4 else 69} offen offset:{(i&3)*1024} sc1")
    A(f"L_h2i{i}:")
A(f"s_add_u32 s77, s77, 1\ns_cmp_eq_u32 s77, 1\ns_cbranch_scc1 L_h2first\ns_waitcnt vmcnt(0)\nL_h2first:")
for i in range(8):
    var = ((i >> 1) & 1) + 2*((i >> 2) & 1)
    q = vQ+4*i
    A(f"s_bitcmp1_b32 s76, {i}\ns_cbranch_scc0 L_h2c{i}")
    A(f"s_waitcnt vmcnt({7-i})")
    A(f"v_max3_u32 v28, v{q}, v{q+1}, v{q+2}\nv_max_u32 v28, v28, v{q+3}\nds_write_b128 v{16+var}, {vr(q,4)} offset:{i*128}\nv_cmp_eq_u32 vcc, -1, v28")
    A(f"s_cbranch_vccnz L_h2c{i}\ns_bitset0_b32 s76, {i}\nL_h2c{i}:")
A(f"""
s_waitcnt lgkmcnt(0)
s_cmp_ge_u32 s77, {POLL_MAX}
s_cbranch_scc1 L_h2done
s_cmp_eq_u32 s76, 0
s_cbranch_scc1 L_h2done
s_sleep {OPT['rsleep']}
s_branch L_h2poll
L_h2done:
""")
ST(1)
if OPT['prio']: A("s_setprio 0")
A("s_barrier")
if OPT['local']:
    A(f"s_mov_b32 s{sLOC}, 0\ns_cmp_lg_u32 s66, 0\ns_cbranch_scc1 L_nx")
    for hlf in range(2):
        for i in range(8): A(f"s_load_dwordx2 s[{16+16*hlf+2*i if hlf == 0 or i < 4 else 52+2*(i-4)}:{17+16*hlf+2*i if hlf == 0 or i < 4 else 53+2*(i-4)}], s[72:73], {(8*hlf+i)*128} glc")
    A("s_waitcnt lgkmcnt(0)")
    for r in list(range(16, 40, 2)) + list(range(52, 60, 2)):
        A(f"s_xor_b32 s{r}, s{r}, s65\ns_or_b32 s{sLOC}, s{sLOC}, s{r}\ns_xor_b32 s{r+1}, s{r+1}, s{sT}\ns_or_b32 s{sLOC}, s{sLOC}, s{r+1}")
    A("L_nx:")
A("s_barrier")
ST(2)
vV = 96; vO = 32
def vfrag(f, tau): return vV + 4*(f*4 + tau)
PR = [224+4*f for f in range(7)] + [16]
def pv_reads(f):
    for tau in range(4):
        for jj in range(2):
            a = (20 if f < 4 else 24) + jj + 2*(tau & 1)
            off = (f & 3)*16384 + jj*8192 + (tau >> 1)*1024
            A(f"ds_read_b64_tr_b16 {vr(vfrag(f,tau)+2*jj,2)}, v{a} offset:{off}")
A(f"""
v_mov_b32 v15, {QA+12288}
s_cmp_lg_u32 s66, 0
s_cbranch_scc1 L_nl
v_mov_b32 v28, s{sLOC}
ds_write_b32 v15, v28
L_nl:
""")
pv_reads(0)
A("s_barrier")
for f in range(1, 8):
    A("s_waitcnt lgkmcnt(6)")
    pv_reads(f)
A(f"""
v_add_u32 v10, {PB}, v9
v_and_b32 v13, 31, v{vL}
v_lshlrev_b32 v14, 5, v13
v_add_u32 v14, {QA}, v14
v_lshlrev_b32 v13, 4, v13
v_lshl_add_u32 v11, v12, 16, v13
s_lshl_b32 s68, s{sX}, 19
s_lshl_b32 s69, s{sK}, 11
s_add_u32 s68, s68, s69
s_lshl_b32 s70, s66, 9
s_add_u32 s68, s68, s70
s_add_u32 s68, s68, {WS_H3A}
s_lshl_b32 s71, s{sX}, 15
s_add_u32 s71, s71, s69
s_add_u32 s71, s71, s70
s_add_u32 s71, s71, {WS_FLG}
s_waitcnt lgkmcnt(0)
s_barrier
""")
ST(3)
for f in range(8): A(f"ds_read_b128 {vr(PR[f],4)}, v10 offset:{f*1024}")
A(f"ds_read_b128 v[20:23], v14\nds_read_b128 v[24:27], v14 offset:16")
for f in range(8):
    A(f"s_waitcnt lgkmcnt({9-f if f < 6 else 11-f})")
    for tau in range(4): mf32(vO+16*tau, PR[f], vfrag(f,tau), f == 0)
    if f == 5:
        A(f"""
        s_waitcnt lgkmcnt(0)
        v_max3_f32 v20, v20, v21, v22
        v_max3_f32 v24, v24, v25, v26
        v_max3_f32 v20, v20, v23, v27
        v_max_f32 v20, v20, v24
        ds_read_b128 v[24:27], v14 offset:1024
        ds_read_b128 v[28:31], v14 offset:1040
        ds_read_b32 v15, v15
        """)
A(f"""
s_waitcnt lgkmcnt(0)
v_add_f32 v24, v24, v25
v_add_f32 v26, v26, v27
v_add_f32 v28, v28, v29
v_add_f32 v30, v30, v31
v_add_f32 v24, v24, v26
v_add_f32 v28, v28, v30
v_add_f32 v22, v24, v28
v_mov_b32 v21, s{sT}
v_mov_b32 v23, s{sT}
""")
if OPT['local']:
    A(f"""
    v_readfirstlane_b32 s{sLOC}, v15
    s_cmp_lg_u32 s{sLOC}, 0
    """)
ST(4)
def pv_store(flag):
    for n, i in enumerate(range(0, 16, 2)):
        d = vV + 4*n
        A(f"v_cvt_pk_bf16_f32 v{d}, v{vO+i}, v{vO+16+i}\nv_cvt_pk_bf16_f32 v{d+1}, v{vO+32+i}, v{vO+48+i}")
        A(f"v_cvt_pk_bf16_f32 v{d+2}, v{vO+i+1}, v{vO+16+i+1}\nv_cvt_pk_bf16_f32 v{d+3}, v{vO+32+i+1}, v{vO+48+i+1}")
        A(f"s_add_u32 s69, s68, {((i&3)//2 + 4*(i>>2))*32768}")
        A(f"buffer_store_dwordx4 {vr(d,4)}, v11, {WS}, s69 offen {flag}")
    A(f"""
    s_waitcnt vmcnt(0)
    s_mov_b32 exec_hi, 0
    buffer_store_dwordx4 v[20:23], v13, {WS}, s71 offen {flag}
    s_mov_b64 exec, -1
    """)
if OPT['local']:
    A(f"s_cbranch_scc1 L_pvfar")
    pv_store("")
    A("L_pvback:")
else:
    pv_store("sc1")
ST(5)

A("L_red:")
A(f"""
s_lshr_b32 s66, s{sW}, 1
s_lshl_b32 s67, s{sX}, 15
s_lshl_b32 s68, s66, 9
s_add_u32 s67, s67, s68
s_lshl_b32 s69, s{sK}, 5
s_add_u32 s67, s67, s69
s_add_u32 s67, s67, {WS_FLG}
v_and_b32 v9, 15, v{vL}
v_and_b32 v10, 1, v4
v_lshlrev_b32 v11, 11, v9
v_lshl_add_u32 v11, v10, 4, v11
s_lshl_b32 s69, s{sX}, 4
s_add_u32 s69, s69, s{sK}
s_lshl_b32 s69, s69, 15
s_lshl_b32 s70, s{sW}, 8
s_add_u32 s69, s69, s70
s_add_u32 s69, s69, {WS_H3A}
v_lshlrev_b32 v12, 11, v4
v_lshl_add_u32 v12, v9, 4, v12
v_and_b32 v13, 1, v3
v_lshlrev_b32 v13, 4, v13
v_mov_b32 v14, 0xffff
v_lshlrev_b32 v14, v13, v14
v_lshrrev_b32 v13, 1, v3
""")
for d in range(4): A(f"v_cmp_eq_u32 vcc, {d}, v13\nv_cndmask_b32 v{16+d}, 0, v14, vcc")
A(f"""
v_lshrrev_b32 v13, 2, v3
v_lshl_add_u32 v15, v13, 4, v4
v_lshlrev_b32 v15, 2, v15
v_lshlrev_b32 v28, 14, v13
v_lshl_add_u32 v28, v6, 5, v28
v_lshl_add_u32 v28, v4, 3, v28
s_lshl_b32 s70, s{sK}, 15
s_lshl_b32 s71, s{sX}, 11
s_add_u32 s70, s70, s71
s_add_u32 s70, s70, {WS_H3B}
s_lshl_b32 s71, s{sW}, 7
s_add_u32 s71, s71, s70
v_lshlrev_b32 v29, 14, v10
v_lshl_add_u32 v29, v9, 3, v29
s_mov_b32 s77, 0
s_mov_b32 exec_hi, 0
L_rpoll:
buffer_load_dwordx4 v[32:35], v11, {WS}, s67 offen sc1
s_add_u32 s77, s77, 1
s_waitcnt vmcnt(0)
v_xor_b32 v33, s{sT}, v33
v_xor_b32 v35, s{sT}, v35
v_or_b32 v33, v33, v35
v_cmp_ne_u32 vcc, 0, v33
s_cmp_ge_u32 s77, {POLL_MAX}
s_cbranch_scc1 L_rdone
s_cbranch_vccnz L_rpoll
L_rdone:
s_mov_b64 exec, -1
""")
ST(6)
for i in range(4):
    A(f"buffer_load_dwordx4 {vr(48+4*i,4)}, v12, {WS}, s69 offen sc1")
    if i < 3: A("s_add_u32 s69, s69, 8192")
A("v_mov_b32 v36, v32")
for r in (8, 4, 2, 1): A(f"v_max_f32_dpp v36, v36, v36 row_ror:{r} {DPPF}")
A("v_sub_f32 v33, v32, v36\nv_exp_f32 v33, v33\nv_mul_f32 v37, v33, v34")
for i in range(4): A(f"ds_bpermute_b32 v{40+i}, v15, v33 offset:{16*i}")
for r in (8, 4, 2, 1): A(f"v_add_f32_dpp v37, v37, v37 row_ror:{r} {DPPF}")
A(f"v_min_u32 v36, -2, v36\nv_min_u32 v37, -2, v37")
A(f"""
s_cmp_lg_u32 s{sW}, 0
s_cbranch_scc1 L_rnostat
s_mov_b32 exec_hi, 0
buffer_store_dwordx2 v[36:37], v29, {WS}, s70 offen offset:1024 sc1
s_mov_b64 exec, -1
L_rnostat:
v_cmp_gt_u32 vcc, 8, v9
s_waitcnt lgkmcnt(0)
""")
for i in range(4): A(f"v_cvt_pk_bf16_f32 v{44+i}, v{40+i}, v{40+i}")
for i in range(4): A(f"v_and_b32 v{80+i}, 0xffff0000, v{44+i}")
for i in range(4): A(f"v_sub_f32 v{80+i}, v{40+i}, v{80+i}")
for i in range(4): A(f"v_cvt_pk_bf16_f32 v{80+i}, v{80+i}, v{80+i}")
for i in range(4): A(f"v_cndmask_b32 v{44+i}, v{80+i}, v{44+i}, vcc")
for i in range(4):
    for d in range(4): A(f"v_and_b32 v{64+4*i+d}, v{44+i}, v{16+d}")
A(f"""
s_cmp_lg_u32 s{sW}, 0
s_cbranch_scc1 L_rw0
s_waitcnt vmcnt(1)
s_branch L_rgo
L_rw0:
s_waitcnt vmcnt(0)
L_rgo:
""")
for i in range(4): mf16(40, 48+4*i, 64+4*i, i == 0)
for j in range(4): A(f"v_add_f32_dpp v{40+j}, v{40+j}, v{40+j} row_ror:8 {DPPF}")
A(f"""
v_cvt_pk_bf16_f32 v44, v40, v41
v_cvt_pk_bf16_f32 v45, v42, v43
v_min_u32 v44, -2, v44
v_min_u32 v45, -2, v45
s_mov_b32 exec_lo, 0x00ff00ff
s_mov_b32 exec_hi, 0x00ff00ff
buffer_store_dwordx2 v[44:45], v28, {WS}, s71 offen sc1
s_mov_b64 exec, -1
""")
ST(7)
if OPT['local'] and OPT['wb']:
    A(f"""
    s_cmp_lg_u32 s{sK}, 0
    s_cbranch_scc1 L_end
    s_waitcnt vmcnt(0)
    s_barrier
    s_cmp_lg_u32 s{sW}, 0
    s_cbranch_scc1 L_end
    buffer_wbl2 sc1
    """)
if OPT['local']:
    finish()
    A("L_pvfar:")
    A("s_nop 7")
    pv_store("sc1")
    A("s_branch L_pvback")

A("L_end:")
if OPT['stamps']:
    A("s_waitcnt vmcnt(0)")
    ST(8)
    A(f"""
    s_waitcnt lgkmcnt(0)
    s_lshl_b32 s66, s2, 3
    s_add_u32 s66, s66, s{sW}
    s_lshl_b32 s66, s66, 6
    s_add_u32 s66, s66, {WS_ST}
    s_getreg_b32 s67, hwreg(HW_REG_XCC_ID)
    s_mov_b64 exec, 1
    v_mov_b32 v8, 0
    """)
    for i in range(3):
        A("\n".join(f"v_mov_b32 v{12+j}, s{80+2*(3*i+j)}" for j in range(3)))
        A(f"v_mov_b32 v15, {['s67','s77','s98'][i]}")
        A(f"buffer_store_dwordx4 v[12:15], v8, {WS}, s66 offen offset:{16*i}")
if OPT['hs'] >= 0:
    if OPT['hr'] == 1: A("s_cmp_ge_u32 s2, 128\ns_cbranch_scc1 L_exit")
    if OPT['hr'] == 2: A("s_cmp_lt_u32 s2, 128\ns_cbranch_scc1 L_exit")
    A(f"s_cmp_eq_u32 s{80+2*OPT['hs']}, 0\ns_cbranch_scc1 L_exit")
    A(f"L_hold2:\ns_memrealtime s[66:67]\ns_waitcnt lgkmcnt(0)\ns_sub_u32 s68, s66, s{80+2*OPT['hs']}\ns_cmp_lt_u32 s68, 4000\ns_cbranch_scc1 L_hold2")
if OPT['hold']:
    A(f"L_hold:\ns_memrealtime s[66:67]\ns_waitcnt lgkmcnt(0)\ns_sub_u32 s68, s66, s80\ns_cmp_lt_u32 s68, {OPT['hold']}\ns_cbranch_scc1 L_hold")
A("L_exit:\ns_endpgm")
A.raw(f""".section .rodata,"a"
.p2align 6
.amdhsa_kernel {NAME}_kernel
  .amdhsa_next_free_vgpr 256
  .amdhsa_next_free_sgpr 102
  .amdhsa_accum_offset 256
  .amdhsa_group_segment_fixed_size 0
  .amdhsa_kernarg_size 104
  .amdhsa_user_sgpr_count 2
  .amdhsa_user_sgpr_kernarg_segment_ptr 1
  .amdhsa_system_sgpr_workgroup_id_x 1
  .amdhsa_float_denorm_mode_32 3
.end_amdhsa_kernel""")
sys.stdout.write(A.text())
sys.stderr.write(f"instructions {A.count} nops {A.nops}\n")
```

```python
import sys, math, struct
from asmx import Asm, NAME

OPT = dict(stamps=0, local=1, hold=0, pf=1, exp=0, gbar=8, rsleep=2, help=1, fslow=0, tslow=0, wb=0, gap=0, prio=1, ukw=0, wqh=1, adel=1, psl=6, hs=-1, hr=0)
for a in sys.argv[1:]:
    k, v = a.split("="); assert k in OPT, k; OPT[k] = int(v)

WS_PF  = 0x010000
WS_FF  = 0x020000
WS_XT  = 0x030000
WS_H1  = 0x040000
WS_H1L = 0x0C0000
WS_H2  = 0x080000
WS_PQ  = 0x0A0000
WS_FLG = 0x100000
WS_H3B = 0x140000
WS_H5  = 0x200000
WS_H3A = 0x400000
WS_ST  = 0x800000
POLL_MAX = 60000 if not OPT['exp'] else 40

P_X, P_CKV, P_WQ, P_WUK, P_WUV, P_WO, P_BX, P_WG, P_WU, P_WD, P_OUT, P_DBG = [16+2*i for i in range(12)]
sSL, sF = 40, 41
sE, sT, sW, sX, sK, sH = 42, 43, 44, 45, 46, 47
WS = "s[48:51]"; RA = "s[52:55]"; RB = "s[56:59]"; RC = "s[60:63]"
sQD, sA_ = 64, 65
A = Asm()
NQPART = [True]

def srd(base, ptr, size):
    A(f"s_mov_b32 s{base}, s{ptr}\ns_mov_b32 s{base+1}, s{ptr+1}\ns_mov_b32 s{base+2}, {size}\ns_mov_b32 s{base+3}, 0x20000")
def ST(i, mode=1):
    if OPT['stamps'] == mode or (OPT['stamps'] and i in (0, 8)): A(f"s_memrealtime s[{80+2*i}:{81+2*i}]")
def vr(a, n): return f"v[{a}:{a+n-1}]"
def dma(voff, rsrc, soff, flags="nt"):
    A(f"buffer_load_dwordx4 v{voff}, {rsrc}, s{soff} offen {flags} lds")
def finish(): A("s_branch L_end")
def get_tag():
    A(f"s_add_u32 s{sE}, s{sE}, 1\ns_mul_i32 s{sT}, s{sE}, 0x9E3779B1\ns_xor_b32 s{sT}, s{sT}, 0x5BD1E995")
def rb16(dst, src):
    A(f"v_cvt_pk_bf16_f32 v{dst}, v{src}, v{src}\nv_lshlrev_b32 v{dst}, 16, v{dst}")
DPPF = "row_mask:0xf bank_mask:0xf"
QP1 = "quad_perm:[1,0,3,2] " + DPPF
def wave_sum_to_sgpr(v, s):
    for r in (8, 4, 2, 1): A(f"v_add_f32_dpp v{v}, v{v}, v{v} row_ror:{r} {DPPF}")
    A(f"v_add_f32_dpp v{v}, v{v}, v{v} row_bcast:15 row_mask:0xa bank_mask:0xf")
    A(f"v_add_f32_dpp v{v}, v{v}, v{v} row_bcast:31 row_mask:0xc bank_mask:0xf")
    A(f"v_readlane_b32 s{s}, v{v}, 63")
def fbits(x): return "0x%08x" % struct.unpack("<I", struct.pack("<f", x))[0]
def mf16(d, a, b, first): A(f"v_mfma_f32_16x16x32_bf16 {vr(d,4)}, {vr(a,4)}, {vr(b,4)}, {'0' if first else vr(d,4)}")
def mf32(d, a, b, first): A(f"v_mfma_f32_32x32x16_bf16 {vr(d,16)}, {vr(a,4)}, {vr(b,4)}, {'0' if first else vr(d,16)}")
def ones(v): A("\n".join(f"v_mov_b32 v{v+j}, -1" for j in range(4)))
LOG2E = 1.4426950408889634

A.raw("; @launch grid=(256,1,1) block=(512,1,1) lds=163840")
A.raw('.amdgcn_target "amdgcn-amd-amdhsa--gfx950"')
A.raw(f".text\n.globl {NAME}_kernel\n.p2align 8\n.type {NAME}_kernel,@function\n{NAME}_kernel:")
vL = 1
ST(0)
A(f"""
s_load_dwordx2 s[48:49], s[0:1], 96
s_load_dwordx2 s[52:53], s[0:1], 0
s_load_dwordx2 s[56:57], s[0:1], 16
s_load_dwordx2 s[60:61], s[0:1], 24
s_load_dwordx16 s[16:31], s[0:1], 0
s_load_dwordx8 s[32:39], s[0:1], 64
s_cmp_ge_u32 s2, 256
s_cbranch_scc1 L_exit
v_lshrrev_b32 v2, 6, v0
v_and_b32 v{vL}, 63, v0
v_readfirstlane_b32 s{sW}, v2
s_and_b32 s{sX}, s2, 7
s_lshr_b32 s{sK}, s2, 3
v_lshlrev_b32 v9, 4, v{vL}
s_mov_b32 s50, 0x10000000
s_mov_b32 s51, 0x20000
s_mov_b32 s55, 0x20000
s_mov_b32 s58, {576*8192}
s_mov_b32 s59, 0x20000
s_mov_b32 s62, {512*8192}
s_mov_b32 s63, 0x20000
s_cmp_lt_u32 s2, 128
s_cbranch_scc1 L_att
""")
def lane_consts():
    A(f"v_lshrrev_b32 v2, 3, v{vL}\nv_and_b32 v3, 7, v{vL}\nv_lshrrev_b32 v4, 4, v{vL}\nv_bfe_u32 v5, v{vL}, 2, 2\nv_and_b32 v6, 3, v{vL}\nv_lshlrev_b32 v7, 4, v0\nv_mov_b32 v8, 0")
    if OPT['stamps']:
        for i in range(82, 102): A(f"s_mov_b32 s{i}, 0")

XN, XNS = 0, 1216
QL, QLS = 5120, 320
HB, HBS = 9728, 192
BIG = 16384
vTR = 13
vD = 28
def common_setup():
    lane_consts()
    A(f"""
    s_and_b32 s67, s{sW}, 1
    s_lshl_b32 s68, s67, 2
    v_and_b32 v11, 2, v2
    v_or_b32 v11, s68, v11
    v_xor_b32 v11, v11, v3
    v_lshlrev_b32 v11, 4, v11
    v_lshl_add_u32 v12, v2, 13, v11
    s_lshr_b32 s68, s{sW}, 1
    s_bfe_u32 s69, s{sW}, 0x10001
    s_lshr_b32 s70, s{sW}, 2
    """)
def common_setup2():
    A(f"""
    s_and_b32 s74, s{sW}, 3
    s_lshl_b32 s74, s74, 1
    v_lshrrev_b32 v{vTR}, 1, v6
    v_or_b32 v{vTR}, s74, v{vTR}
    v_and_b32 v14, 2, v5
    v_xor_b32 v{vTR}, v{vTR}, v14
    v_and_b32 v14, 1, v4
    v_lshlrev_b32 v15, 2, v14
    v_xor_b32 v{vTR}, v{vTR}, v15
    v_lshlrev_b32 v{vTR}, 4, v{vTR}
    v_lshl_add_u32 v{vTR}, v5, 7, v{vTR}
    v_and_b32 v15, 1, v6
    v_lshl_add_u32 v{vTR}, v15, 3, v{vTR}
    s_lshl_b32 s74, s70, 10
    s_add_u32 s74, s74, {BIG}
    v_add_u32 v15, s74, v{vTR}
    v_lshl_add_u32 v16, v4, 11, v15
    v_mul_u32_u24 v18, {XNS}, v6
    v_lshl_add_u32 v18, v4, 4, v18
    s_mov_b32 s78, 0x000f000f
    s_mov_b32 s79, 0x000f000f
    """)
def x_loads():
    A(f"""
    s_mul_i32 s66, s{sW}, 1152
    v_lshlrev_b32 v10, 3, v{vL}
    v_lshlrev_b32 v19, 1, v{vL}
    buffer_load_dwordx2 v[20:21], v10, {RA}, s66 offen
    buffer_load_dwordx2 v[22:23], v10, {RA}, s66 offen offset:512
    buffer_load_ushort v24, v19, {RA}, s66 offen offset:1024
    """)
def layernorm():
    e = list(range(56, 65))
    for i in range(4): A(f"v_lshlrev_b32 v{e[2*i]}, 16, v{20+i}\nv_and_b32 v{e[2*i+1]}, 0xffff0000, v{20+i}")
    A(f"""
    v_lshlrev_b32 v{e[8]}, 16, v24
    v_add_f32 v25, v{e[0]}, v{e[1]}
    v_add_f32 v26, v{e[2]}, v{e[3]}
    v_add_f32 v27, v{e[4]}, v{e[5]}
    v_add_f32 v28, v{e[6]}, v{e[7]}
    v_add_f32 v25, v25, v26
    v_add_f32 v27, v27, v28
    v_add_f32 v25, v25, v{e[8]}
    v_add_f32 v25, v25, v27
    """)
    wave_sum_to_sgpr(25, 74)
    A(f"v_mov_b32 v26, {fbits(1.0/576)}\nv_mul_f32 v26, s74, v26")
    A(f"v_sub_f32 v27, v{e[0]}, v26\nv_mul_f32 v25, v27, v27")
    for i in range(1, 9): A(f"v_sub_f32 v27, v{e[i]}, v26\nv_fmac_f32 v25, v27, v27")
    rb16(26, 26)
    for i in range(9): A(f"v_sub_f32 v{e[i]}, v{e[i]}, v26")
    wave_sum_to_sgpr(25, 74)
    A(f"v_mov_b32 v27, {fbits(1.0/576)}\nv_mul_f32 v27, s74, v27")
    rb16(27, 27)
    A(f"v_add_f32 v27, {fbits(1e-5)}, v27")
    rb16(27, 27)
    A("v_sqrt_f32 v27, v27")
    rb16(27, 27)
    A("v_rcp_f32 v27, v27")
    for i in range(0, 8, 2): A(f"v_cvt_pk_bf16_f32 v{20+i//2}, v{e[i]}, v{e[i+1]}")
    A(f"v_cvt_pk_bf16_f32 v24, v{e[8]}, v{e[8]}")
    for i in range(0, 8, 2): A(f"v_lshlrev_b32 v{e[i]}, 16, v{20+i//2}\nv_and_b32 v{e[i+1]}, 0xffff0000, v{20+i//2}")
    A(f"v_lshlrev_b32 v{e[8]}, 16, v24")
    for i in range(9): A(f"v_mul_f32 v{e[i]}, v{e[i]}, v27")
    for i in range(0, 8, 2): A(f"v_cvt_pk_bf16_f32 v{20+i//2}, v{e[i]}, v{e[i+1]}")
    A(f"v_cvt_pk_bf16_f32 v24, v{e[8]}, v{e[8]}")
    A(f"""
    s_mul_i32 s74, s{sW}, {XNS}
    v_add_u32 v10, s74, v10
    v_add_u32 v19, s74, v19
    ds_write_b64 v10, v[20:21] offset:{XN}
    ds_write_b64 v10, v[22:23] offset:{XN+512}
    ds_write_b16 v19, v24 offset:{XN+1024}
    """)
def clear_tail_inbox(vones):
    A(f"s_lshl_b32 s74, s{sH}, 14\ns_add_u32 s74, s74, {WS_H3B}")
    for i in range(4):
        A(f"buffer_store_dwordx4 {vr(vones,4)}, v9, {WS}, s74 offen sc1\nbuffer_store_dwordx4 {vr(vones,4)}, v9, {WS}, s74 offen offset:2048 sc1")
        if i < 3: A("s_add_u32 s74, s74, 4096")
    A(f"s_sub_u32 s74, s74, {3*4096}\nv_lshlrev_b32 v14, 11, v2\nv_lshl_add_u32 v14, v3, 4, v14")
    A(f"buffer_store_dwordx4 {vr(vones,4)}, v14, {WS}, s74 offen offset:1024 sc1")
def proof(sidx):
    A(f"""
    s_lshl_b32 s74, s{sidx}, 7
    s_add_u32 s74, s74, {WS_PF}
    v_mov_b32 v14, s{sT}
    v_lshlrev_b32 v17, 2, v{vL}
    s_mov_b32 exec_hi, 0
    buffer_store_dword v14, v17, {WS}, s74 offen sc1
    s_mov_b64 exec, -1
    """)
vXN, vG = 32, 104
def xn_frags():
    for kp in range(18):
        A(f"ds_read_b128 {vr(vXN+4*kp,4)}, v18 offset:{XN+kp*64}")
        if kp == 11: A("s_waitcnt lgkmcnt(4)")
def k_half(h, va, vb):
    for kp in range(9):
        a, off = (va, kp*8192) if kp < 8 else (vb, 0)
        A(f"ds_read_b64_tr_b16 {vr(vG+4*kp,2)}, v{a} offset:{off}")
        A(f"ds_read_b64_tr_b16 {vr(vG+4*kp+2,2)}, v{a} offset:{off+512}")
        if kp == 5: A("s_waitcnt lgkmcnt(6)")
    for kp in range(9):
        A(f"s_waitcnt lgkmcnt({min(15,2*(8-kp))})")
        mf16(vD, vG+4*kp, vXN+4*(9*h+kp), h == 0 and kp == 0)

QP, QPS = 5120, 272
WQB = BIG + 108*1024
UKB = BIG
sU = 76
def f_setup():
    A(f"""
    s_lshl_b32 s71, s{sA_}, 1
    s_add_u32 s71, s71, s{sQD}
    s_cmp_eq_u32 s{sA_}, 3
    s_cselect_b32 s72, 1, 2
    s_sub_u32 s71, s71, s72
    s_mul_i32 s{sU}, s{sX}, 9
    s_add_u32 s{sU}, s{sU}, s71
    s_lshr_b32 s{sF}, s{sU}, 1
    s_bitcmp1_b32 s{sU}, 0
    s_cselect_b32 s{sF}, 99, s{sF}
    s_cmp_eq_u32 s69, 0
    s_cselect_b32 s60, s{P_WG}, s{P_WU}
    s_cselect_b32 s61, s{P_WG+1}, s{P_WU+1}
    s_mov_b32 s62, {576*9216}
    s_lshl_b32 s72, s67, 1
    s_lshl_b32 s71, s69, 2
    s_or_b32 s72, s72, s71
    v_bfe_u32 v14, v2, 1, 1
    v_or_b32 v14, s72, v14
    v_xor_b32 v14, v14, v3
    v_lshlrev_b32 v14, 4, v14
    v_mul_u32_u24 v12, 9216, v2
    v_add_u32 v12, v12, v14
    s_lshl_b32 s71, s70, 1
    s_add_u32 s71, s71, s67
    s_mul_i32 s72, s71, {8*9216}
    s_lshl_b32 s74, s{sU}, 7
    s_add_u32 s72, s72, s74
    s_lshl_b32 s71, s71, 1
    s_add_u32 s71, s71, s69
    s_lshl_b32 s71, s71, 10
    s_add_u32 s71, s71, {BIG}
    """)
def gu_dma(i):
    A(f"s_mov_b32 m0, s71\ns_add_u32 s71, s71, 8192")
    dma(12, RC, 72)
    A(f"s_add_u32 s72, s72, {32*9216}")
A(f"""
L_nq:
s_bfe_u32 s{sA_}, s2, 0x20005
s_bfe_u32 s{sQD}, s2, 0x20003
s_lshl_b32 s{sH}, s{sX}, 2
s_add_u32 s{sH}, s{sH}, s{sA_}
s_mov_b32 s54, 4608
v_lshrrev_b32 v2, 3, v{vL}
v_and_b32 v3, 7, v{vL}
s_and_b32 s67, s{sW}, 1
s_lshl_b32 s68, s67, 2
v_and_b32 v11, 2, v2
v_or_b32 v11, s68, v11
v_xor_b32 v11, v11, v3
v_lshlrev_b32 v11, 4, v11
v_lshl_add_u32 v12, v2, 13, v11
s_bfe_u32 s69, s{sW}, 0x10001
s_lshr_b32 s70, s{sW}, 2
s_mul_i32 s71, s70, 10
s_add_u32 s71, s71, s67
s_mul_i32 s72, s{sQD}, 18
s_add_u32 s72, s72, s71
s_lshl_b32 s72, s72, 16
s_lshl_b32 s73, s{sH}, 8
s_lshl_b32 s74, s69, 7
s_add_u32 s73, s73, s74
s_add_u32 s72, s72, s73
s_lshl_b32 s71, s71, 1
s_add_u32 s71, s71, s69
s_lshl_b32 s71, s71, 10
s_add_u32 s71, s71, {WQB}
s_mov_b32 m0, s71
s_cmp_lg_u32 s70, 0
s_waitcnt lgkmcnt(0)
s_cbranch_scc1 L_nq_nox
""")
x_loads()
dma(12, RB, 72)
A(f"s_add_u32 s71, s71, 4096\ns_add_u32 s72, s72, {2*65536}\ns_mov_b32 m0, s71\nL_nq_nox:")
for i in range(4):
    A(f"s_add_u32 s71, s71, 4096")
    dma(12, RB, 72)
    if i < 3: A(f"s_add_u32 s72, s72, {2*65536}\ns_mov_b32 m0, s71")
A(f"s_load_dword s{sE}, s[48:49], 0")
lane_consts()
ST(1, 2)
A(f"s_lshr_b32 s68, s{sW}, 1\ns_cmp_ge_u32 s{sQD}, 2\ns_cbranch_scc1 L_nq_fs")
A(f"""
s_lshl_b32 s71, s70, 3
s_add_u32 s71, s71, s67
s_lshl_b32 s72, s{sQD}, 5
s_add_u32 s72, s72, s71
s_lshl_b32 s72, s72, 16
s_add_u32 s72, s72, s73
s_lshl_b32 s71, s71, 1
s_add_u32 s71, s71, s69
s_lshl_b32 s71, s71, 10
s_add_u32 s71, s71, {UKB}
s_cmp_eq_u32 s70, 0
s_cbranch_scc1 L_nq_ln
""")
ones(24)
A(f"""
s_lshl_b32 s75, s{sW}, 12
s_lshl_b32 s74, s{sH}, 14
s_add_u32 s74, s74, s75
s_add_u32 s74, s74, {WS_H3B-16384}
buffer_store_dwordx4 v[24:27], v9, {WS}, s74 offen sc1
buffer_store_dwordx4 v[24:27], v9, {WS}, s74 offen offset:2048 sc1
s_mov_b64 exec, 0xff
buffer_store_dwordx4 v[24:27], v9, {WS}, s74 offen offset:1024 sc1
buffer_store_dwordx4 v[24:27], v9, {WS}, s74 offen offset:3072 sc1
s_lshl_b32 s75, s{sW}, 15
s_lshl_b32 s74, s{sH}, 10
s_add_u32 s74, s74, s75
s_lshl_b32 s75, s{sQD}, 9
s_add_u32 s74, s74, s75
s_add_u32 s74, s74, {WS_H2-4*32768}
s_mov_b32 exec_lo, -1
buffer_store_dwordx4 v[24:27], v9, {WS}, s74 offen sc1
s_mov_b64 exec, -1
s_branch L_nq_noln
L_nq_fs:
""")
f_setup()
A(f"s_cmp_lg_u32 s70, 0\ns_cbranch_scc1 L_nq_noln\nL_nq_ln:\ns_waitcnt vmcnt(5)")
ST(2, 2)
layernorm()
A("L_nq_noln:")
ST(3, 2)
common_setup2()
A(f"""
v_add_u32 v21, {WQB-BIG}, v16
v_and_b32 v14, 1, v4
v_lshl_add_u32 v17, v14, 11, v15
v_add_u32 v17, {WQB-BIG}, v17
s_mul_i32 s74, s{sQD}, 288
v_add_u32 v19, s74, v18
s_lshl_b32 s66, s{sH}, 13
s_add_u32 s66, s66, {WS_H1L}
s_lshl_b32 s75, s{sQD}, 11
s_add_u32 s75, s75, s66
s_lshl_b32 s77, s{sW}, 8
s_add_u32 s75, s75, s77
v_lshlrev_b32 v20, 6, v6
v_lshl_add_u32 v20, v4, 4, v20
v_cmp_gt_u32 vcc, 2, v4
s_cmp_lt_u32 s{sQD}, 2
s_cbranch_scc1 L_nq_uk
s_waitcnt vmcnt(0)
""")
for i in range(OPT['gap']): gu_dma(i)
A(f"""
s_branch L_nq_a
L_nq_uk:
s_waitcnt vmcnt(5)
s_cmp_lg_u32 s70, 0
s_cbranch_scc1 L_nq_uk2
s_waitcnt vmcnt(0)
L_nq_uk2:
""")
for i in range(4):
    A(f"s_mov_b32 m0, s71\ns_add_u32 s71, s71, 4096")
    dma(12, RC, 72)
    A(f"s_add_u32 s72, s72, {2*65536}")
A("L_nq_a:\ns_waitcnt lgkmcnt(0)")
ST(1); ST(5, 2)
A("s_barrier")
vA, vB = 64, 96
for kp in range(5):
    a = 21 if kp < 4 else 17
    A(f"ds_read_b64_tr_b16 {vr(vA+4*kp,2)}, v{a} offset:{kp*8192}")
    A(f"ds_read_b64_tr_b16 {vr(vA+4*kp+2,2)}, v{a} offset:{kp*8192+512}")
    A(f"ds_read_b128 {vr(vB+4*kp,4)}, v19 offset:{XN+kp*64}")
get_tag()
A(f"v_mov_b32 v25, s{sT}\nv_mov_b32 v27, s{sT}")
for kp in range(5):
    A(f"s_waitcnt lgkmcnt({3*(4-kp)})")
    if kp == 4:
        for j in range(4): A(f"v_cndmask_b32 v{vB+16+j}, 0, v{vB+16+j}, vcc")
    mf16(vD, vA+4*kp, vB+4*kp, kp == 0)
H1D = WS_H1L - WS_H1
A(f"""
v_and_b32 v52, 1, v2
v_and_b32 v53, 2, v3
v_lshl_or_b32 v53, v52, 2, v53
v_xor_b32 v53, v53, v4
v_lshlrev_b32 v53, 4, v53
v_lshl_add_u32 v53, v3, 7, v53
v_lshl_add_u32 v52, v52, 11, v53
v_cvt_pk_bf16_f32 v24, v{vD}, v{vD+1}
v_cvt_pk_bf16_f32 v26, v{vD+2}, v{vD+3}
s_mov_b64 exec, s[78:79]
buffer_store_dwordx4 v[24:27], v20, {WS}, s75 offen
s_sub_u32 s75, s75, {H1D}
s_cmp_lt_u32 s{sQD}, 2
s_cbranch_scc1 L_nq_b
buffer_store_dwordx4 v[24:27], v20, {WS}, s75 offen sc1
s_mov_b64 exec, -1
""")
ST(2); ST(6, 2)
A(f"s_barrier\ns_branch L_F\nL_nq_b:\ns_mov_b64 exec, -1")
ST(2); ST(6, 2)
A(f"s_barrier\ns_add_u32 s71, s71, 16384\ns_add_u32 s72, s72, {8*65536}")
for i in range(4):
    A(f"s_mov_b32 m0, s71\ns_add_u32 s71, s71, 4096")
    dma(12, RC, 72)
    if i < 3: A(f"s_add_u32 s72, s72, {2*65536}")
A(f"""
s_mul_i32 s74, s68, {4*QPS}
s_lshl_b32 s77, s67, 7
s_add_u32 s74, s74, s77
v_mul_u32_u24 v22, {QPS}, v5
v_lshl_add_u32 v22, v4, 5, v22
v_lshl_add_u32 v22, v6, 3, v22
v_add_u32 v22, s74, v22
s_lshl_b32 s77, s{sW}, 13
s_add_u32 s77, s77, {UKB}
v_add_u32 v52, s77, v52
v_xor_b32 v53, 64, v52
v_and_b32 v23, 15, v{vL}
v_mul_u32_u24 v23, {QPS}, v23
v_lshl_add_u32 v23, v4, 4, v23
s_lshl_b32 s72, s{sH}, 10
s_lshl_b32 s74, s{sQD}, 9
s_add_u32 s72, s72, s74
s_lshl_b32 s74, s{sW}, 6
s_add_u32 s72, s72, s74
s_add_u32 s72, s72, {WS_H2}
v_and_b32 v21, 1, v5
v_lshlrev_b32 v54, 15, v6
v_lshlrev_b32 v55, 13, v2
v_lshl_add_u32 v55, v3, 4, v55
s_lshl_b32 s76, s{sH}, 8
s_lshl_b32 s74, s{sQD}, 7
s_add_u32 s76, s76, s74
s_add_u32 s76, s76, {WS_PQ}
v_mov_b32 v44, s{sT}
v_mov_b32 v45, s{sT}
v_mov_b32 v46, s{sT}
v_mov_b32 v47, s{sT}
v_lshl_add_u32 v54, v21, 5, v54
v_lshl_add_u32 v54, v4, 3, v54
s_sub_u32 s71, s66, {H1D}
s_mov_b32 s77, 0
L_h1poll:
s_cmp_lg_u32 s77, 6
s_cbranch_scc1 L_h1ng
s_mov_b64 exec, s[78:79]
buffer_store_dwordx4 v[24:27], v20, {WS}, s75 offen sc1
s_mov_b64 exec, -1
L_h1ng:
s_and_b32 s74, s77, 9
s_cmp_eq_u32 s74, 9
s_cselect_b32 s74, s71, s66
buffer_load_dwordx4 v[48:51], v7, {WS}, s74 offen sc1
s_add_u32 s77, s77, 1
s_waitcnt vmcnt(0)
v_xor_b32 v49, s{sT}, v49
v_xor_b32 v51, s{sT}, v51
v_or_b32 v49, v49, v51
v_cmp_ne_u32 vcc, 0, v49
s_cmp_ge_u32 s77, {POLL_MAX}
s_cbranch_scc1 L_h1done
s_cbranch_vccnz L_h1poll
L_h1done:
v_mov_b32 v49, v50
ds_write_b64 v22, v[48:49] offset:{QP}
s_cmp_gt_u32 s77, 6
s_cbranch_scc1 L_h1sent
s_mov_b64 exec, s[78:79]
buffer_store_dwordx4 v[24:27], v20, {WS}, s75 offen sc1
s_mov_b64 exec, -1
L_h1sent:
""")
A(f"L_h1np:\nv_cmp_ne_u32 vcc, 0, v21\ns_waitcnt lgkmcnt(0)")
ST(3); ST(7, 2)
A(f"s_barrier\ns_cmp_lg_u32 s{sW}, 0\ns_cbranch_scc1 L_nopq\nbuffer_store_dwordx4 v[44:47], v55, {WS}, s76 offen sc1\nL_nopq:")
vUK, vD1 = 64, 56
for kp in range(4):
    A(f"ds_read_b128 {vr(vB+4*kp,4)}, v23 offset:{QP+kp*64}")
    for tl in range(2):
        A(f"ds_read_b128 {vr(vUK+16*tl+4*kp,4)}, v{52+(kp&1)} offset:{tl*4096+(kp>>1)*1024}")
A(f"s_mov_b32 s74, {fbits(LOG2E/math.sqrt(128.0))}")
for kp in range(4):
    A(f"s_waitcnt lgkmcnt({9-3*kp+1})")
    mf16(vD, vUK+4*kp, vB+4*kp, kp == 0)
    A(f"s_waitcnt lgkmcnt({9-3*kp})")
    mf16(vD1, vUK+16+4*kp, vB+4*kp, kp == 0)
for j in range(4): A(f"v_cndmask_b32 v{60+j}, v{vD1+j}, v{vD+j}, vcc")
for j in range(4): A(f"v_cndmask_b32 v{vD+j}, v{vD+j}, v{vD1+j}, vcc")
for j in range(4): A(f"v_add_f32_dpp v{vD+j}, v{60+j}, v{vD+j} row_ror:4 {DPPF}")
for j in range(4): A(f"v_add_f32_dpp v{vD+j}, v{vD+j}, v{vD+j} row_ror:8 {DPPF}")
for j in range(4): A(f"v_mul_f32 v{vD+j}, s74, v{vD+j}")
A(f"""
v_cvt_pk_bf16_f32 v48, v{vD}, v{vD+1}
v_cvt_pk_bf16_f32 v49, v{vD+2}, v{vD+3}
v_min_u32 v48, -2, v48
v_min_u32 v49, -2, v49
s_mov_b32 exec_lo, 0x00ff00ff
s_mov_b32 exec_hi, 0x00ff00ff
buffer_store_dwordx2 v[48:49], v54, {WS}, s72 offen sc1
s_mov_b64 exec, -1
""")
ST(4); ST(9, 2)
A(f"""
s_barrier
s_cmp_lt_u32 s{sA_}, 3
s_cbranch_scc1 L_TH
s_cmp_eq_u32 s{sQD}, 0
s_cbranch_scc1 L_T
""")
f_setup()
for i in range(OPT['gap']): gu_dma(i)
A("s_branch L_F")

def wide_voffset(v):
    A(f"v_mul_u32_u24 v{v}, 1152, v2\nv_add_u32 v{v}, v{v}, v11")
def publish_setup(stride):
    A(f"""
    s_mul_i32 s74, s{sW}, {stride}
    s_add_u32 s72, s72, s74
    v_lshlrev_b32 v20, 6, v4
    v_lshl_add_u32 v20, v6, 4, v20
    """)
def store_tile(vacc, i, stride, sent):
    if sent:
        for j in range(4): A(f"v_min_u32 v{vacc+4*i+j}, -2, v{vacc+4*i+j}")
    A(f"s_mov_b64 exec, s[78:79]")
    A(f"buffer_store_dwordx4 {vr(vacc+4*i,4)}, v20, {WS}, s72 offen sc1")
    A(f"s_mov_b64 exec, -1")
    A(f"s_add_u32 s72, s72, {8*stride}")
def wide_dma(n, rsrc):
    for i in range(n):
        A(f"s_mov_b32 m0, s71\ns_add_u32 s74, s72, 512")
        dma(14, rsrc, 72)
        A(f"s_add_u32 s75, s71, 4096\ns_mov_b32 m0, s75\ns_add_u32 s72, s72, {16*1152}")
        dma(14, rsrc, 74)
        A(f"s_add_u32 s71, s71, 16384")
def wide_frag_addrs(base8, shift):
    A(f"v_lshl_add_u32 v16, v4, 13, v15")
    if shift: A(f"v_add_u32 v16, {shift}, v16")
    A(f"""
    v_add_u32 v17, 0x10000, v16
    v_lshl_add_u32 v18, v4, 10, v{vTR}
    v_add_u32 v18, {base8}, v18
    """)
def wide_frag_reads(vdst, nk):
    n = 0
    for i in range(4):
        for kp in range(nk):
            a = 16 if kp < 2 else 17
            off = (kp & 1)*32768 + i*2048
            d = vdst + (i*nk + kp)*4
            A(f"ds_read_b64_tr_b16 {vr(d,2)}, v{a} offset:{off}")
            A(f"ds_read_b64_tr_b16 {vr(d+2,2)}, v{a} offset:{off+512}")
            n += 2
            if n % 12 == 0: A("s_waitcnt lgkmcnt(4)")
    A("s_waitcnt lgkmcnt(4)")
    for kp in range(nk):
        d = vdst + (4*nk + kp)*4
        A(f"ds_read_b64_tr_b16 {vr(d,2)}, v18 offset:{kp*4096}")
        A(f"ds_read_b64_tr_b16 {vr(d+2,2)}, v18 offset:{kp*4096+512}")
def wide_gemm(vW, nk, vBf, vacc, stride, sent, lab):
    for i in range(5):
        if i == 4: A(f"s_cmp_lg_u32 s70, 0\ns_cbranch_scc1 {lab}_a")
        for kp in range(nk):
            if i == 0: A(f"s_waitcnt lgkmcnt({nk-1-kp})")
            mf16(vacc+4*i, vW+(i*nk+kp)*4, vBf+4*kp, kp == 0)
        if 2 <= i <= 3: store_tile(vacc, i-2, stride, sent)
    A(f"{lab}_a:")
    store_tile(vacc, 2, stride, sent)
    A("s_nop 2")
    store_tile(vacc, 3, stride, sent)
    A(f"s_cmp_lg_u32 s70, 0\ns_cbranch_scc1 {lab}_b")
    store_tile(vacc, 4, stride, sent)
    A(f"{lab}_b:")
def tail_prologue(lab, slot_code):
    common_setup2()
    A(f"s_mul_i32 s{sSL}, s{sX}, 7\n{slot_code}\ns_waitcnt lgkmcnt(0)")
    get_tag()
    A(f"s_cmp_lg_u32 s{sW}, 7\ns_cbranch_scc1 {lab}")
    ones(24)
    clear_tail_inbox(24)
    A("s_waitcnt vmcnt(0)")
    proof(sSL)
    A(f"{lab}:")

XL, CT, CTS = 0, 8192, 320
TS = 128*256
vUV, vWO = 32, 96
def t_setup():
    A(f"""
    v_lshlrev_b32 v21, 11, v3
    v_xor_b32 v22, v3, v4
    v_lshlrev_b32 v22, 4, v22
    v_lshl_add_u32 v22, v2, 11, v22
    v_and_b32 v12, 1, v2
    v_lshl_or_b32 v12, v12, 2, v4
    v_lshrrev_b32 v14, 1, v3
    v_xor_b32 v12, v12, v14
    v_lshlrev_b32 v12, 4, v12
    v_lshl_add_u32 v12, v3, 7, v12
    v_lshlrev_b32 v14, 3, v3
    s_lshl_b32 s66, s{sH}, 14
    s_add_u32 s66, s66, {WS_H3B}
    s_lshl_b32 s73, s{sW}, 7
    s_add_u32 s73, s73, s66
    s_lshl_b32 s72, s{sSL}, 8
    s_add_u32 s72, s72, {WS_H5}
    v_lshrrev_b32 v23, 1, v3
    v_mul_u32_u24 v23, {CTS}, v23
    v_lshl_add_u32 v23, v4, 3, v23
    s_lshl_b32 s74, s{sW}, 5
    v_add_u32 v23, s74, v23
    v_mul_u32_u24 v10, {CTS}, v6
    v_lshl_add_u32 v10, v4, 4, v10
    """)
    publish_setup(TS)
def t_tail(nk, lab):
    A(f"""
    s_cmp_lg_u32 s{sW}, 0
    s_cbranch_scc1 {lab}pd
    v_min_u32 v24, 35, v{vL}
    v_lshlrev_b32 v24, 7, v24
    s_mov_b32 s74, {WS_PF}
    s_mov_b32 s77, 0
    {lab}pp:
    buffer_load_dword v25, v24, {WS}, s74 offen sc1
    s_add_u32 s77, s77, 1
    s_waitcnt vmcnt(0)
    v_cmp_ne_u32 vcc, s{sT}, v25
    s_cmp_ge_u32 s77, {POLL_MAX}
    s_cbranch_scc1 {lab}pd
    s_cbranch_vccnz {lab}pp
    {lab}pd:
    """)
    ST(5); ST(7, 3)
    A(f"""
    s_mov_b32 s77, 0
    v_mov_b32 v28, 0
    v_mov_b32 v29, 0
    {lab}poll:
    buffer_load_dwordx4 v[24:27], v22, {WS}, s73 offen sc1
    s_cmp_lg_u32 s{sW}, 7
    s_cbranch_scc1 {lab}ns
    s_mov_b64 exec, 0xff
    buffer_load_dwordx2 v[28:29], v21, {WS}, s66 offen offset:1024 sc1
    s_mov_b64 exec, -1
    {lab}ns:
    s_add_u32 s77, s77, 1
    s_waitcnt vmcnt(0)
    v_max3_u32 v30, v24, v25, v26
    v_max3_u32 v30, v30, v27, v28
    v_max_u32 v30, v30, v29
    v_cmp_eq_u32 vcc, -1, v30
    s_cmp_ge_u32 s77, {POLL_MAX}
    s_cbranch_scc1 {lab}done
    s_cbranch_vccnz {lab}poll
    {lab}done:
    ds_write_b128 v7, v[24:27] offset:{XL}
    s_cmp_lg_u32 s{sW}, 7
    s_cbranch_scc1 {lab}nw
    s_mov_b64 exec, 0xff
    ds_write_b64 v14, v[28:29] offset:{CT+2048}
    s_mov_b64 exec, -1
    {lab}nw:
    s_waitcnt lgkmcnt(0)
    """)
    ST(6)
    A("s_barrier")
    if nk == 2: A(f"s_cmp_lg_u32 s70, 0\ns_cbranch_scc1 {lab}nouv")
    vX = 176
    A(f"ds_read_b64 v[28:29], v14 offset:{CT+2048}")
    for i in range(8): A(f"ds_read_b128 {vr(vX+4*i,4)}, v12 offset:{XL+i*1024}")
    a0, a1 = 24, 208
    for i in range(8):
        A(f"s_waitcnt lgkmcnt({7-i})")
        mf16(a0, vUV+8*i, vX+4*i, i == 0)
        mf16(a1, vUV+8*i+4, vX+4*i, i == 0)
    A(f"""
    v_max_f32_dpp v30, v28, v28 {QP1}
    v_sub_f32 v30, v28, v30
    v_exp_f32 v30, v30
    v_mul_f32 v31, v30, v29
    v_add_f32_dpp v31, v31, v31 {QP1}
    v_rcp_f32 v31, v31
    v_mul_f32 v30, v30, v31
    """)
    for j in range(4): A(f"v_add_f32_dpp v{a0+j}, v{a1+j}, v{a0+j} row_ror:8 {DPPF}")
    for j in range(4): A(f"v_mul_f32 v{a0+j}, v{a0+j}, v30")
    for j in range(4): A(f"v_add_f32_dpp v{a0+j}, v{a0+j}, v{a0+j} {QP1}")
    A(f"""
    v_cvt_pk_bf16_f32 v28, v{a0}, v{a0+1}
    v_cvt_pk_bf16_f32 v29, v{a0+2}, v{a0+3}
    s_mov_b32 exec_lo, 0x00550055
    s_mov_b32 exec_hi, 0x00550055
    ds_write_b64 v23, v[28:29] offset:{CT}
    s_mov_b64 exec, -1
    s_waitcnt lgkmcnt(0)
    {lab}nouv:
    s_barrier
    """)
    for kp in range(nk): A(f"ds_read_b128 {vr(vX+4*kp,4)}, v10 offset:{CT+kp*64}")
    wide_gemm(vWO, nk, vX, 212, TS, True, lab+"g")
    ST(7)
    finish()

A("L_TH:")
SLOT = f"s_lshl_b32 s74, s{sA_}, 1\ns_add_u32 s{sSL}, s{sSL}, s74\ns_add_u32 s{sSL}, s{sSL}, s{sQD}"
if OPT['help']:
    A(f"""
    s_lshl_b32 s66, s{sA_}, 1
    s_add_u32 s66, s66, s{sQD}
    s_lshl_b32 s66, s66, 3
    s_add_u32 s66, s66, s{sW}
    s_cmp_eq_u32 s67, 0
    s_cselect_b32 s52, s{P_WG}, s{P_WU}
    s_cselect_b32 s53, s{P_WG+1}, s{P_WU+1}
    s_mov_b32 s54, {576*9216}
    s_lshr_b32 s71, s66, 1
    s_add_u32 s71, s71, 40
    s_mul_i32 s71, s71, {8*9216}
    s_sub_u32 s72, 3, s{sX}
    s_and_b32 s72, s72, 7
    s_mul_i32 s73, s{sX}, 9
    s_add_u32 s74, s73, s72
    s_lshl_b32 s74, s74, 7
    s_add_u32 s71, s71, s74
    v_mul_u32_u24 v14, 9216, v2
    v_lshl_add_u32 v14, v3, 4, v14
    s_add_u32 s74, s71, {24*8*9216}
    buffer_load_dwordx4 v[248:251], v14, {RA}, s71 offen
    buffer_load_dwordx4 v[248:251], v14, {RA}, s74 offen
    s_cmp_lg_u32 s72, 0
    s_cbranch_scc1 L_noc3b
    buffer_load_dwordx4 v[248:251], v14, {RA}, s71 offen offset:1024
    buffer_load_dwordx4 v[248:251], v14, {RA}, s74 offen offset:1024
    L_noc3b:
    s_lshl_b32 s66, s66, 10
    s_mov_b32 s52, s{P_WD}
    s_mov_b32 s53, s{P_WD+1}
    s_add_u32 s73, s73, 6
    s_mul_i32 s73, s73, {64*1152}
    s_add_u32 s54, s73, {64*1152}
    s_add_u32 s73, s73, s66
    s_add_u32 s74, s73, {48*1024}
    buffer_load_dwordx4 v[248:251], v9, {RA}, s73 offen
    buffer_load_dwordx4 v[248:251], v9, {RA}, s74 offen
    s_mov_b32 s52, s{P_WO}
    s_mov_b32 s53, s{P_WO+1}
    s_lshl_b32 s73, s{sX}, 3
    s_add_u32 s73, s73, 7
    s_mul_i32 s73, s73, {64*1152}
    s_add_u32 s54, s73, {64*1152}
    s_add_u32 s73, s73, s66
    s_add_u32 s74, s73, {48*1024}
    buffer_load_dwordx4 v[248:251], v9, {RA}, s73 offen
    buffer_load_dwordx4 v[248:251], v9, {RA}, s74 offen
    """)
A(f"s_mul_i32 s{sSL}, s{sX}, 7\n{SLOT}")
ST(1, 3)
srd(52, P_WUV, 512*8192)
srd(56, P_WO, 4096*1152)
A(f"""
s_lshl_b32 s71, s{sW}, 10
s_add_u32 s71, s71, {BIG}
s_lshl_b32 s72, s68, 2
s_add_u32 s72, s72, s67
s_lshl_b32 s72, s72, 16
s_lshl_b32 s73, s{sH}, 1
s_add_u32 s73, s73, s{sQD}
s_lshl_b32 s74, s73, 7
s_add_u32 s72, s72, s74
""")
for i in range(8):
    cb = 2*(i&1) + 16*(i>>1)
    A(f"s_mov_b32 m0, s71\ns_add_u32 s74, s72, {cb*65536}")
    dma(12, RA, 74)
    A(f"s_add_u32 s71, s71, 8192")
    if i < OPT['tslow']: A("s_waitcnt vmcnt(0)")
wide_voffset(14)
A(f"""
s_mul_i32 s73, s73, {64*1152}
s_lshl_b32 s71, s67, 3
s_add_u32 s71, s71, s68
s_lshl_b32 s71, s71, 10
s_add_u32 s71, s71, {BIG+65536}
s_mul_i32 s72, s67, {8*1152}
s_lshl_b32 s74, s68, 7
s_add_u32 s72, s72, s74
s_add_u32 s72, s72, s73
""")
wide_dma(4, RB)
A(f"""
s_mul_i32 s72, s{sW}, {8*1152}
s_add_u32 s72, s72, s73
s_add_u32 s72, s72, 1024
s_lshl_b32 s71, s{sW}, 10
s_add_u32 s71, s71, {BIG+131072}
s_mov_b32 m0, s71
""")
dma(14, RB, 72)
wide_frag_addrs(BIG+131072, 65536)
A(f"v_lshl_add_u32 v19, v4, 10, v{vTR}\nv_add_u32 v19, {BIG}, v19")
t_setup()
ST(5, 3)
A("s_waitcnt vmcnt(0)")
ST(6, 3)
A("s_barrier")
for kp in range(16):
    A(f"ds_read_b64_tr_b16 {vr(vUV+4*kp,2)}, v19 offset:{kp*4096}")
    A(f"ds_read_b64_tr_b16 {vr(vUV+4*kp+2,2)}, v19 offset:{kp*4096+512}")
    if kp % 6 == 5: A("s_waitcnt lgkmcnt(4)")
A("s_waitcnt lgkmcnt(2)")
wide_frag_reads(vWO, 2)
t_tail(2, "L_u")

A("L_T:")
A(f"s_mul_i32 s{sSL}, s{sX}, 7\ns_add_u32 s{sSL}, s{sSL}, 6")
ST(1, 3)
srd(52, P_WUV, 512*8192)
srd(56, P_WO, 4096*1152)
A(f"""
s_lshl_b32 s71, s70, 1
s_add_u32 s71, s71, s67
s_lshl_b32 s71, s71, 1
s_add_u32 s71, s71, s69
s_lshl_b32 s71, s71, 10
s_add_u32 s71, s71, {BIG}
s_lshl_b32 s72, s70, 2
s_add_u32 s72, s72, s67
s_lshl_b32 s72, s72, 16
s_lshl_b32 s73, s{sH}, 8
s_lshl_b32 s74, s69, 7
s_add_u32 s73, s73, s74
s_add_u32 s72, s72, s73
""")
for i in range(16):
    cb = 2*((i>>1)&1) + 8*(i&1) + 16*(i>>2)
    A(f"s_mov_b32 m0, s71\ns_add_u32 s74, s72, {cb*65536}")
    dma(12, RA, 74)
    A(f"s_add_u32 s71, s71, 8192")
wide_voffset(14)
A(f"""
s_mul_i32 s66, s{sH}, {128*1152}
s_lshl_b32 s71, s68, 2
s_add_u32 s71, s71, s67
s_mul_i32 s72, s71, {8*1152}
s_add_u32 s72, s72, s66
s_add_u32 s72, s72, 1024
s_lshl_b32 s71, s71, 10
s_add_u32 s71, s71, {BIG+131072}
s_mov_b32 m0, s71
s_add_u32 s71, s71, 2048
""")
dma(14, RB, 72)
A(f"s_add_u32 s72, s72, {16*1152}\ns_mov_b32 m0, s71")
dma(14, RB, 72)
vST = 176
A(f"""
s_mul_i32 s72, s67, {8*1152}
s_lshl_b32 s74, s68, 7
s_add_u32 s72, s72, s74
s_add_u32 s72, s72, s66
s_barrier
""")
for i in range(4):
    A(f"buffer_load_dwordx4 {vr(vST+8*i,4)}, v14, {RB}, s72 offen nt")
    A(f"buffer_load_dwordx4 {vr(vST+8*i+4,4)}, v14, {RB}, s72 offen offset:512 nt")
    A(f"s_add_u32 s72, s72, {16*1152}")
A(f"v_add_u32 v17, 0x10000, v16")
ST(2, 3)
A("s_waitcnt vmcnt(10)")
ST(3, 3)
A("s_barrier")
for kp in range(16):
    a = 16 if kp < 8 else 17
    A(f"ds_read_b64_tr_b16 {vr(vUV+4*kp,2)}, v{a} offset:{(kp&7)*8192}")
    A(f"ds_read_b64_tr_b16 {vr(vUV+4*kp+2,2)}, v{a} offset:{(kp&7)*8192+512}")
    if kp % 6 == 5: A("s_waitcnt lgkmcnt(4)")
A(f"""
s_lshl_b32 s71, s67, 3
s_add_u32 s71, s71, s68
s_lshl_b32 s71, s71, 10
s_add_u32 s71, s71, {BIG}
v_add_u32 v19, s71, v9
s_add_u32 s71, s71, 65536
s_waitcnt lgkmcnt(0)
s_barrier
""")
ST(4, 3)
wide_dma(4, RB)
for i in range(8):
    A(f"s_waitcnt vmcnt({15-i})")
    A(f"ds_write_b128 v19, {vr(vST+4*i,4)} offset:{(i>>1)*16384+(i&1)*4096}")
wide_frag_addrs(BIG+131072, 0)
t_setup()
ST(5, 3)
A("s_waitcnt vmcnt(0) lgkmcnt(0)")
ST(6, 3)
A("s_barrier")
wide_frag_reads(vWO, 4)
t_tail(4, "L_t")

A("L_F:")
ST(1, 3)
A(f"s_cmp_ge_u32 s{sF}, 36\ns_cbranch_scc1 L_f_go")
ones(24)
A(f"s_lshl_b32 s74, s{sF}, 15\ns_lshl_b32 s75, s{sW}, 12\ns_add_u32 s74, s74, s75\ns_add_u32 s74, s74, {WS_H5}")
for i in range(4): A(f"buffer_store_dwordx4 v[24:27], v9, {WS}, s74 offen offset:{i*1024} sc1")
A(f"s_waitcnt vmcnt(0)\ns_barrier\ns_cmp_lg_u32 s{sW}, 0\ns_cbranch_scc1 L_f_go")
proof(sF)
A("L_f_go:")
for i in range(OPT['gap'], 18):
    if i < OPT['gap'] + OPT['fslow']: A("s_waitcnt vmcnt(0)")
    gu_dma(i)
srd(56, P_WD, 4608*1152)
wide_voffset(14)
vWD = 144
A(f"""
s_mul_i32 s73, s{sU}, {64*1152}
s_mul_i32 s72, s67, {8*1152}
s_lshl_b32 s74, s68, 7
s_add_u32 s72, s72, s74
s_add_u32 s72, s72, s73
v_min_u32 v140, 35, v{vL}
v_lshlrev_b32 v140, 7, v140
s_mov_b32 s66, {WS_PF}
s_cmp_lg_u32 s{sW}, 7
s_cbranch_scc1 L_f_np
buffer_load_dword v141, v140, {WS}, s66 offen sc1
L_f_np:
s_barrier
""")
for i in range(4):
    A(f"buffer_load_dwordx4 {vr(vWD+8*i,4)}, v14, {RB}, s72 offen nt")
    A(f"buffer_load_dwordx4 {vr(vWD+8*i+4,4)}, v14, {RB}, s72 offen offset:512 nt")
    A(f"s_add_u32 s72, s72, {16*1152}")
A(f"""
s_mul_i32 s72, s{sW}, {8*1152}
s_add_u32 s72, s72, s73
buffer_load_dwordx4 {vr(vWD+32,4)}, v14, {RB}, s72 offen offset:1024 nt
""")
xn_frags()
A(f"""
v_lshrrev_b32 v19, 1, v6
v_lshrrev_b32 v21, 1, v5
v_and_b32 v22, 1, v4
v_lshl_or_b32 v21, v22, 1, v21
v_lshl_or_b32 v21, v19, 2, v21
v_xor_b32 v21, s{sW}, v21
v_lshlrev_b32 v21, 4, v21
v_lshl_add_u32 v21, v5, 7, v21
v_and_b32 v22, 1, v6
v_lshl_add_u32 v21, v22, 3, v21
v_lshl_add_u32 v21, v19, 10, v21
v_lshl_add_u32 v21, v4, 11, v21
v_add_u32 v21, {BIG}, v21
v_add_u32 v22, {8*8192}, v21
s_lshl_b32 s71, s67, 3
s_add_u32 s71, s71, s68
s_lshl_b32 s71, s71, 10
s_add_u32 s71, s71, {BIG}
v_add_u32 v23, s71, v9
v_add_u32 v19, {BIG+65536}, v7
""")
ST(2, 3)
A("s_waitcnt vmcnt(9) lgkmcnt(0)")
ST(3, 3)
A("s_barrier")
k_half(0, 21, 22)
A(f"v_add_u32 v21, {9*8192}, v21\nv_add_u32 v22, {9*8192}, v22")
k_half(1, 21, 22)
A("s_barrier")
ST(4, 3)
wide_frag_addrs(BIG+65536, 0)
A(f"s_lshl_b32 s72, s{sU}, 8\ns_add_u32 s72, s72, {WS_H5+56*256}")
publish_setup(TS)
for j in range(4): A(f"v_mov_b32 v{24+j}, v{vD+j}")
for j in range(4): A(f"v_permlane32_swap_b32 v{vD+j}, v{24+j}")
C1 = -2.0*math.sqrt(2.0/math.pi)*LOG2E
A(f"s_mov_b32 s74, {fbits(0.044715)}\ns_mov_b32 s75, {fbits(C1)}")
for j in range(4): rb16(vD+j, vD+j); rb16(24+j, 24+j)
for j in range(4): A(f"v_mul_f32 v{104+j}, v{vD+j}, v{vD+j}")
for j in range(4): A(f"v_fma_f32 v{104+j}, v{104+j}, s74, 1.0")
for j in range(4): A(f"v_mul_f32 v{104+j}, v{104+j}, v{vD+j}")
for j in range(4): A(f"v_mul_f32 v{104+j}, s75, v{104+j}")
for j in range(4): A(f"v_exp_f32 v{104+j}, v{104+j}")
for j in range(4): A(f"v_add_f32 v{104+j}, 1.0, v{104+j}")
for j in range(4): A(f"v_rcp_f32 v{104+j}, v{104+j}")
for j in range(4): A(f"v_mul_f32 v{vD+j}, v{vD+j}, v{104+j}")
for j in range(4): rb16(vD+j, vD+j)
for j in range(4): A(f"v_mul_f32 v{vD+j}, v{vD+j}, v{24+j}")
A(f"""
v_cvt_pk_bf16_f32 v24, v{vD}, v{vD+1}
v_cvt_pk_bf16_f32 v25, v{vD+2}, v{vD+3}
v_mul_u32_u24 v22, {HBS}, v6
v_lshl_add_u32 v21, v4, 3, v22
s_lshl_b32 s74, s{sW}, 4
v_add_u32 v21, s74, v21
v_lshl_add_u32 v22, v4, 4, v22
s_mov_b64 exec, 0x000f000f
ds_write_b64 v21, v[24:25] offset:{HB}
s_mov_b64 exec, -1
""")
for i in range(8):
    A(f"s_waitcnt vmcnt({8-i})")
    A(f"ds_write_b128 v23, {vr(vWD+4*i,4)} offset:{(i>>1)*16384+(i&1)*4096}")
A(f"s_waitcnt vmcnt(0)\nds_write_b128 v19, {vr(vWD+32,4)}")
A(f"""
s_cmp_lg_u32 s{sW}, 7
s_cbranch_scc1 L_f_pd
s_mov_b32 s77, 0
L_f_pp:
v_cmp_ne_u32 vcc, s{sT}, v141
s_add_u32 s77, s77, 1
s_cbranch_vccz L_f_pd
s_cmp_ge_u32 s77, {POLL_MAX}
s_cbranch_scc1 L_f_pd
buffer_load_dword v141, v140, {WS}, s66 offen sc1
s_waitcnt vmcnt(0)
s_branch L_f_pp
L_f_pd:
s_waitcnt lgkmcnt(0)
""")
ST(1); ST(7, 3)
A("s_barrier")
wide_frag_reads(32, 2)
for kp in range(2): A(f"ds_read_b128 {vr(104+4*kp,4)}, v22 offset:{HB+kp*64}")
wide_gemm(32, 2, 104, 212, TS, True, "L_fg")
ST(2)
RED = 0
A(f"s_cmp_ge_u32 s{sF}, 36\ns_cbranch_scc1 L_end")
srd(56, P_OUT, 4608)
A(f"""
v_mul_u32_u24 v12, 1152, v6
v_lshl_add_u32 v12, v5, 3, v12
s_lshl_b32 s68, s{sF}, 5
buffer_load_dwordx2 v[60:61], v12, {RA}, s68 offen
v_and_b32 v23, 15, v{vL}
v_lshlrev_b32 v23, 4, v23
v_lshl_add_u32 v23, v4, 12, v23
s_lshl_b32 s72, s{sF}, 15
s_add_u32 s72, s72, {WS_H5}
s_add_u32 s73, s72, 8192
s_add_u32 s74, s72, 16384
s_add_u32 s75, s72, 24576
s_mov_b32 s76, 15
s_mov_b32 s77, 0
s_barrier
L_finpoll:
""")
for i in (2, 3, 1, 0):
    A(f"s_bitcmp1_b32 s76, {i}\ns_cbranch_scc0 L_fi{i}\nbuffer_load_dwordx4 {vr(32+4*i,4)}, v7, {WS}, s{72+i} offen sc1\nL_fi{i}:")
A("s_add_u32 s77, s77, 1\ns_waitcnt vmcnt(0)")
for i in range(4):
    q = 32+4*i
    A(f"v_max3_u32 v30, v{q}, v{q+1}, v{q+2}\nv_max_u32 v30, v30, v{q+3}\nv_cmp_eq_u32 vcc, -1, v30\ns_cbranch_vccnz L_fc{i}\ns_bitset0_b32 s76, {i}\nL_fc{i}:")
A(f"""
s_cmp_ge_u32 s77, {POLL_MAX}
s_cbranch_scc1 L_findone
s_cmp_lg_u32 s76, 0
s_cbranch_scc1 L_finpoll
L_findone:
""")
for j in range(4): A(f"v_add_f32 v{40+j}, v{40+j}, v{44+j}")
A(f"s_cmp_ge_u32 s{sW}, 6\ns_cbranch_scc1 L_fin_g")
for j in range(4): A(f"v_add_f32 v{32+j}, v{32+j}, v{36+j}")
A("s_branch L_fin_w\nL_fin_g:")
for j in range(4): A(f"v_add_f32 v{40+j}, v{40+j}, v{36+j}")
A(f"""
L_fin_w:
ds_write_b128 v7, v[40:43] offset:{RED}
ds_write_b128 v7, v[32:35] offset:{RED+8192}
s_waitcnt lgkmcnt(0)
""")
ST(6)
A(f"s_barrier\ns_cmp_lg_u32 s{sW}, 0\ns_cbranch_scc1 L_end")
for i in range(16):
    A(f"ds_read_b128 {vr(64+4*i,4)}, v23 offset:{RED+i*256}")
    if i == 13: A("s_waitcnt lgkmcnt(10)")
A(f"s_mov_b32 s76, {fbits(-LOG2E)}")
A("v_lshlrev_b32 v32, 16, v60\nv_and_b32 v33, 0xffff0000, v60\nv_lshlrev_b32 v34, 16, v61\nv_and_b32 v35, 0xffff0000, v61")
for i in range(0, 16, 2):
    A(f"s_waitcnt lgkmcnt({min(12, 14-i)})")
    for j in range(4): A(f"v_add_f32 v{64+4*i+j}, v{64+4*i+j}, v{68+4*i+j}")
    if i % 4 == 2:
        for j in range(4): A(f"v_add_f32 v{56+4*i+j}, v{56+4*i+j}, v{64+4*i+j}")
    if i % 8 == 6:
        for j in range(4): A(f"v_add_f32 v{40+4*i+j}, v{40+4*i+j}, v{56+4*i+j}")
for j in range(4): A(f"v_add_f32 v{64+j}, v{64+j}, v{96+j}")
for j in range(4): A(f"v_mov_b32 v{68+j}, v{64+j}")
for j in range(4): A(f"v_permlane16_swap_b32 v{64+j}, v{68+j}")
for j in range(4): A(f"v_add_f32 v{64+j}, v{64+j}, v{68+j}")
for j in range(4): rb16(64+j, 64+j)
for j in range(4): A(f"v_mov_b32 v{68+j}, v{64+j}")
for j in range(4): A(f"v_mul_f32 v{76+j}, s76, v{64+j}")
for j in range(4): A(f"v_permlane32_swap_b32 v{64+j}, v{68+j}")
for j in range(4): A(f"v_exp_f32 v{76+j}, v{76+j}")
for j in range(4): A(f"v_add_f32 v{76+j}, 1.0, v{76+j}")
for j in range(4): A(f"v_rcp_f32 v{76+j}, v{76+j}")
for j in range(4): A(f"v_mul_f32 v{64+j}, v{64+j}, v{76+j}")
for j in range(4): rb16(64+j, 64+j)
for j in range(4): A(f"v_mul_f32 v{64+j}, v{64+j}, v{68+j}")
for j in range(4): rb16(64+j, 64+j)
for j in range(4): A(f"v_add_f32 v{64+j}, v{64+j}, v{32+j}")
A(f"""
v_cvt_pk_bf16_f32 v64, v64, v65
v_cvt_pk_bf16_f32 v65, v66, v67
s_mov_b64 exec, 0xffff
buffer_store_dwordx2 v[64:65], v12, {RB}, s68 offen
s_cmp_lg_u32 s{sF}, 0
s_cbranch_scc1 L_fin_noep
s_mov_b64 exec, 1
v_mov_b32 v66, s{sE}
buffer_store_dword v66, v8, {WS}, 0 offen sc1
L_fin_noep:
s_mov_b64 exec, -1
""")
ST(7)
finish()

QA = 131072
PB = QA+2048
sLOC = 64
A("L_att:")
lane_consts()
if OPT['exp'] == 1: A("s_waitcnt lgkmcnt(0)\ns_branch L_end")
A(f"s_cmp_ge_u32 s{sW}, 4\ns_cbranch_scc1 L_att_hi")
A(f"""
s_lshl_b32 s68, s{sK}, 18
s_lshl_b32 s69, s{sX}, 10
s_add_u32 s68, s68, s69
s_lshl_b32 s69, s{sW}, 16
s_add_u32 s68, s68, s69
s_waitcnt lgkmcnt(0)
s_load_dword s{sE}, s[48:49], 0
""")
if OPT['adel']: A("s_waitcnt lgkmcnt(0)")
for i in range(8):
    A(f"buffer_load_dwordx4 v[248:251], v9, {RC}, s68 offen")
    if i < 7: A("s_add_u32 s68, s68, 8192")
A(f"""
v_and_b32 v11, 2, v2
v_lshlrev_b32 v11, 1, v11
v_lshrrev_b32 v10, 2, v2
v_or_b32 v11, v11, v10
v_xor_b32 v11, v11, v3
v_lshlrev_b32 v11, 4, v11
v_lshl_add_u32 v10, v2, 10, v11
v_xor_b32 v11, 32, v10
s_lshl_b32 s70, s{sX}, 4
s_add_u32 s70, s70, s{sK}
s_lshl_b32 s66, s70, 17
s_lshl_b32 s67, s{sW}, 15
s_add_u32 s66, s66, s67
""")
srd(52, P_CKV, 4*4096*1024)
if OPT['ukw'] < 8: A(f"s_waitcnt vmcnt({OPT['ukw']})")
ST(2, 2)
for lb in range(8):
    if lb in (1, 2, 4, 6): ST({1:3,2:4,4:5,6:6}[lb], 2)
    if lb == OPT['gbar']: A("s_barrier")
    for rbi in range(4):
        A(f"s_add_u32 s68, s67, {(rbi*8+lb)*1024}\ns_mov_b32 m0, s68\ns_add_u32 s69, s66, {rbi*8192+lb*128}")
        dma(10 + (rbi & 1), RA, 69)
if OPT['gbar'] == 8: A("s_barrier")
ST(7, 2)
if OPT['stamps'] in (2, 3):
    A("s_waitcnt vmcnt(0)")
    ST(9, 2); ST(7, 3)
if OPT['exp'] == 2: A("s_branch L_end")
A(f"""
v_and_b32 v11, 2, v{vL}
v_lshlrev_b32 v11, 1, v11
v_or_b32 v11, v11, v5
v_lshrrev_b32 v12, 5, v{vL}
v_xor_b32 v11, v11, v12
v_lshlrev_b32 v11, 4, v11
v_lshl_add_u32 v11, v3, 7, v11
v_and_b32 v13, 3, v2
v_lshl_add_u32 v11, v13, 13, v11
v_add_u32 v16, s67, v11
v_add_u32 v20, {QA}, v11
""")
for t in range(1, 4): A(f"v_xor_b32 v{16+t}, {t<<5}, v16\nv_xor_b32 v{20+t}, {t<<5}, v20")
A(f"""
v_and_b32 v13, 31, v{vL}
v_lshlrev_b32 v13, 5, v13
v_add_u32 v13, {QA}, v13
s_lshl_b32 s68, s{sW}, 3
v_lshl_add_u32 v14, v12, 2, v13
v_add_u32 v14, s68, v14
s_lshl_b32 s68, s{sW}, 11
s_add_u32 s68, s68, {PB}
v_add_u32 v15, s68, v9
s_lshl_b32 s76, s70, 15
s_lshl_b32 s71, s{sW}, 13
s_add_u32 s76, s76, s71
s_add_u32 s76, s76, {WS_H3A}
s_add_u32 s78, s76, 4096
s_lshl_b32 s75, s70, 11
s_lshl_b32 s71, s{sW}, 9
s_add_u32 s75, s75, s71
s_add_u32 s75, s75, {WS_FLG}
s_waitcnt lgkmcnt(0)
""")
get_tag()
def pretouch(fl):
    A(f"s_mov_b32 exec_hi, 0\nbuffer_load_dwordx4 v[248:251], v9, {WS}, s75 offen {fl}\ns_mov_b64 exec, -1")
    for i in range(8):
        A(f"buffer_load_dwordx4 v[248:251], v9, {WS}, s{76 if i < 4 else 78} offen offset:{(i&3)*1024} {fl}")
ST(1)
A("s_barrier")
ST(2)
vS = 32; vAf = 64; vBf = 96; DEP = 6
npt = [0]
def qk_read(t):
    lb = t >> 2
    if t & 3 == 0: A(f"s_waitcnt vmcnt({28-4*lb+npt[0]})")
    s = t % DEP
    A(f"ds_read_b128 {vr(vAf+4*s,4)}, v{16+(t&3)} offset:{lb*1024}")
    A(f"ds_read_b128 {vr(vBf+4*s,4)}, v{20+(t&3)} offset:{lb*1024}")
for t in range(DEP): qk_read(t)
for t in range(32):
    s = t % DEP
    A(f"s_waitcnt lgkmcnt({2*min(DEP-1, 31-t)})")
    mf32(vS, vAf+4*s, vBf+4*s, t == 0)
    if OPT['local'] and t < 9:
        if t == 0: A(f"s_mov_b32 exec_hi, 0\nbuffer_load_dwordx4 v[248:251], v9, {WS}, s75 offen\ns_mov_b64 exec, -1")
        else: A(f"buffer_load_dwordx4 v[248:251], v9, {WS}, s{76 if t < 5 else 78} offen offset:{((t-1)&3)*1024}")
        npt[0] += 1
    if t + DEP < 32: qk_read(t + DEP)
ST(3)
A("s_barrier")
A(f"v_max3_f32 v24, v{vS}, v{vS+1}, v{vS+2}\nv_max3_f32 v25, v{vS+3}, v{vS+4}, v{vS+5}\nv_max3_f32 v26, v{vS+6}, v{vS+7}, v{vS+8}")
A(f"v_max3_f32 v27, v{vS+9}, v{vS+10}, v{vS+11}\nv_max3_f32 v28, v{vS+12}, v{vS+13}, v{vS+14}")
A(f"v_max3_f32 v24, v24, v25, v26\nv_max3_f32 v27, v27, v28, v{vS+15}\nv_max_f32 v24, v24, v27")
A(f"ds_write_b32 v14, v24\ns_waitcnt lgkmcnt(0)\ns_barrier")
A(f"""
ds_read_b128 v[24:27], v13
ds_read_b128 v[28:31], v13 offset:16
s_waitcnt lgkmcnt(0)
v_max3_f32 v24, v24, v25, v26
v_max3_f32 v28, v28, v29, v30
v_max3_f32 v24, v24, v27, v31
v_max_f32 v24, v24, v28
""")
for hlf in range(2):
    for i in range(8): A(f"v_sub_f32 v{vS+8*hlf+i}, v{vS+8*hlf+i}, v24")
    for i in range(8): A(f"v_exp_f32 v{vS+8*hlf+i}, v{vS+8*hlf+i}")
    for i in range(4): A(f"v_cvt_pk_bf16_f32 v{48+4*hlf+i}, v{vS+8*hlf+2*i}, v{vS+8*hlf+2*i+1}")
    A(f"ds_write_b128 v15, {vr(48+4*hlf,4)} offset:{1024*hlf}")
for step in (8, 4, 2, 1):
    for i in range(step): A(f"v_add_f32 v{vS+i}, v{vS+i}, v{vS+i+step}")
A(f"ds_write_b32 v14, v{vS} offset:1024\ns_waitcnt lgkmcnt(0)")
ST(4)
A("s_barrier")
A("s_branch L_red")

A("L_att_hi:")
if OPT['prio']: A("s_setprio 2")
if OPT['pf']:
    A(f"""
    s_getpc_b64 s[66:67]
    L_pc:
    s_sub_u32 s66, s66, L_pc-{NAME}_kernel
    s_subb_u32 s67, s67, 0
    v_subrev_u32 v10, 256, v0
    v_lshlrev_b32 v10, 7, v10
    v_cmp_gt_u32 vcc, L_exit-{NAME}_kernel, v10
    s_and_saveexec_b64 s[68:69], vcc
    s_cbranch_execz L_nopf
    global_load_dword v255, v10, s[66:67]
    L_nopf:
    s_mov_b64 exec, -1
    """)
A(f"""
s_sub_u32 s66, s{sW}, 4
s_lshl_b32 s67, s{sX}, 15
s_lshl_b32 s68, s{sK}, 11
s_add_u32 s68, s68, s67
s_add_u32 s69, s68, {WS_H1L}
s_waitcnt lgkmcnt(0)
s_load_dword s{sE}, s[48:49], 0
s_cmp_lg_u32 s66, 1
s_cbranch_scc1 L_h_b
buffer_load_dwordx4 v[248:251], v9, {WS}, s69 offen
buffer_load_dwordx4 v[248:251], v9, {WS}, s69 offen offset:1024
L_h_b:
""")
if OPT['wqh']:
    A(f"""
    s_cmp_lt_u32 s66, 2
    s_cbranch_scc1 L_h_c
    s_lshr_b32 s68, s{sK}, 2
    s_mul_i32 s68, s68, 144
    s_and_b32 s69, s{sK}, 3
    s_lshl_b32 s69, s69, 2
    s_add_u32 s68, s68, s69
    s_lshl_b32 s69, s66, 1
    s_add_u32 s68, s68, s69
    s_add_u32 s68, s68, 124
    s_lshl_b32 s68, s68, 13
    s_lshl_b32 s69, s{sX}, 10
    s_add_u32 s68, s68, s69
    s_add_u32 s69, s68, 8192
    buffer_load_dwordx4 v[248:251], v9, {RB}, s68 offen
    buffer_load_dwordx4 v[248:251], v9, {RB}, s69 offen
    L_h_c:
    """)
A(f"""
s_lshr_b32 s67, s{sX}, 1
s_lshl_b32 s67, s67, 15
s_lshl_b32 s68, s66, 13
s_add_u32 s67, s67, s68
s_add_u32 s67, s67, {WS_H2}
s_and_b32 s69, s66, 1
s_lshl_b32 s69, s69, 1
v_xor_b32 v10, s69, v3
v_lshlrev_b32 v10, 4, v10
v_lshl_add_u32 v10, v2, 10, v10
s_add_u32 s68, s68, {QA}
v_add_u32 v16, s68, v10
v_xor_b32 v17, 64, v16
v_xor_b32 v18, 16, v16
v_xor_b32 v19, 80, v16
v_lshrrev_b32 v12, 5, v{vL}
v_and_b32 v13, 1, v4
v_lshrrev_b32 v14, 1, v6
v_lshl_or_b32 v13, v13, 1, v14
v_and_b32 v14, 2, v5
v_lshl_or_b32 v14, v14, 1, v12
v_xor_b32 v13, v13, v14
v_lshlrev_b32 v13, 4, v13
v_lshl_add_u32 v13, v5, 7, v13
v_lshl_add_u32 v13, v12, 9, v13
v_and_b32 v14, 1, v6
v_lshl_add_u32 v13, v14, 3, v13
s_lshl_b32 s68, s66, 11
v_add_u32 v20, s68, v13
v_xor_b32 v21, 32, v20
v_xor_b32 v22, 64, v20
v_xor_b32 v23, 96, v20
""")
for j in range(4): A(f"v_add_u32 v{24+j}, 0x10000, v{20+j}")
A(f"s_getreg_b32 s65, hwreg(HW_REG_XCC_ID, 0, 4)\ns_lshl_b32 s72, s{sX}, 11\ns_add_u32 s72, s72, {WS_XT}\ns_waitcnt lgkmcnt(0)")
get_tag()
A(f"""
s_cmp_lg_u32 s66, 0
s_cbranch_scc1 L_noxt
s_lshl_b32 s68, s{sK}, 7
s_add_u32 s68, s68, s72
v_mov_b32 v28, s65
v_mov_b32 v29, s{sT}
v_lshlrev_b32 v30, 3, v{vL}
s_mov_b64 exec, 0xffff
buffer_store_dwordx2 v[28:29], v30, {WS}, s68 offen sc1
s_mov_b64 exec, -1
L_noxt:
""")
A(f"""
s_add_u32 s72, s48, s72
s_addc_u32 s73, s49, 0
s_lshl_b32 s74, s{sX}, 13
s_lshl_b32 s75, s66, 11
s_add_u32 s74, s74, s75
s_add_u32 s74, s74, {WS_PQ}
s_add_u32 s74, s48, s74
s_addc_u32 s75, s49, 0
s_mov_b32 s77, 0
s_sleep 32
""")
if OPT['local']:
    A(f"s_cmp_lg_u32 s66, 0\ns_cbranch_scc1 L_nx\nL_nxp:\ns_mov_b32 s{sLOC}, 0\ns_mov_b32 s76, 0")
    for hlf in range(2):
        for i in range(8): A(f"s_load_dwordx2 s[{16+16*hlf+2*i if hlf == 0 or i < 4 else 52+2*(i-4)}:{17+16*hlf+2*i if hlf == 0 or i < 4 else 53+2*(i-4)}], s[72:73], {(8*hlf+i)*128} glc")
    A("s_waitcnt lgkmcnt(0)")
    for r in list(range(16, 40, 2)) + list(range(52, 60, 2)):
        A(f"s_xor_b32 s{r}, s{r}, s65\ns_or_b32 s{sLOC}, s{sLOC}, s{r}\ns_xor_b32 s{r+1}, s{r+1}, s{sT}\ns_or_b32 s76, s76, s{r+1}")
    A(f"s_or_b32 s{sLOC}, s{sLOC}, s76\ns_add_u32 s77, s77, 1\ns_cmp_ge_u32 s77, 8\ns_cbranch_scc1 L_nx\ns_cmp_lg_u32 s76, 0\ns_cbranch_scc1 L_nxp\nL_nx:")
A(f"""
L_xp:
s_sleep {OPT['psl']}
s_mov_b32 s76, 0
""")
for i in range(15): A(f"s_load_dword s{16+i}, s[74:75], {i*128} glc")
A(f"s_load_dword s31, s[74:75], {15*128} glc\ns_waitcnt lgkmcnt(0)")
for i in range(16): A(f"s_xor_b32 s{16+i}, s{16+i}, s{sT}\ns_or_b32 s76, s76, s{16+i}")
A(f"""
s_add_u32 s77, s77, 1
s_cmp_ge_u32 s77, {POLL_MAX}
s_cbranch_scc1 L_xd
s_cmp_lg_u32 s76, 0
s_cbranch_scc1 L_xp
L_xd:
""")
ST(6, 2)
if OPT['gbar'] <= 8: A("s_barrier")
if OPT['exp'] == 2: A("s_branch L_end")
ST(9)
vQ = 32
A(f"s_mov_b32 s76, 0xff\ns_mov_b32 s77, 0\ns_add_u32 s69, s67, 4096\nL_h2poll:")
for i in range(8):
    A(f"s_bitcmp1_b32 s76, {i}\ns_cbranch_scc0 L_h2i{i}")
    A(f"buffer_load_dwordx4 {vr(vQ+4*i,4)}, v9, {WS}, s{67 if i < 4 else 69} offen offset:{(i&3)*1024} sc1")
    A(f"L_h2i{i}:")
A(f"s_add_u32 s77, s77, 1\ns_cmp_eq_u32 s77, 1\ns_cbranch_scc1 L_h2first\ns_waitcnt vmcnt(0)\nL_h2first:")
for i in range(8):
    var = ((i >> 1) & 1) + 2*((i >> 2) & 1)
    q = vQ+4*i
    A(f"s_bitcmp1_b32 s76, {i}\ns_cbranch_scc0 L_h2c{i}")
    A(f"s_waitcnt vmcnt({7-i})")
    A(f"v_max3_u32 v28, v{q}, v{q+1}, v{q+2}\nv_max_u32 v28, v28, v{q+3}\nds_write_b128 v{16+var}, {vr(q,4)} offset:{i*128}\nv_cmp_eq_u32 vcc, -1, v28")
    A(f"s_cbranch_vccnz L_h2c{i}\ns_bitset0_b32 s76, {i}\nL_h2c{i}:")
A(f"""
s_waitcnt lgkmcnt(0)
s_cmp_ge_u32 s77, {POLL_MAX}
s_cbranch_scc1 L_h2done
s_cmp_eq_u32 s76, 0
s_cbranch_scc1 L_h2done
s_sleep {OPT['rsleep']}
s_branch L_h2poll
L_h2done:
""")
ST(1)
if OPT['prio']: A("s_setprio 0")
A("s_barrier")
A("s_barrier")
ST(2)
vV = 96; vO = 32
def vfrag(f, tau): return vV + 4*(f*4 + tau)
PR = [224+4*f for f in range(7)] + [16]
def pv_reads(f):
    for tau in range(4):
        for jj in range(2):
            a = (20 if f < 4 else 24) + jj + 2*(tau & 1)
            off = (f & 3)*16384 + jj*8192 + (tau >> 1)*1024
            A(f"ds_read_b64_tr_b16 {vr(vfrag(f,tau)+2*jj,2)}, v{a} offset:{off}")
A(f"""
v_mov_b32 v15, {QA+12288}
s_cmp_lg_u32 s66, 0
s_cbranch_scc1 L_nl
v_mov_b32 v28, s{sLOC}
ds_write_b32 v15, v28
L_nl:
""")
pv_reads(0)
A("s_barrier")
for f in range(1, 8):
    A("s_waitcnt lgkmcnt(6)")
    pv_reads(f)
A(f"""
v_add_u32 v10, {PB}, v9
v_and_b32 v13, 31, v{vL}
v_lshlrev_b32 v14, 5, v13
v_add_u32 v14, {QA}, v14
v_lshlrev_b32 v13, 4, v13
v_lshl_add_u32 v11, v12, 16, v13
s_lshl_b32 s68, s{sX}, 19
s_lshl_b32 s69, s{sK}, 11
s_add_u32 s68, s68, s69
s_lshl_b32 s70, s66, 9
s_add_u32 s68, s68, s70
s_add_u32 s68, s68, {WS_H3A}
s_lshl_b32 s71, s{sX}, 15
s_add_u32 s71, s71, s69
s_add_u32 s71, s71, s70
s_add_u32 s71, s71, {WS_FLG}
s_waitcnt lgkmcnt(0)
s_barrier
""")
ST(3)
for f in range(8): A(f"ds_read_b128 {vr(PR[f],4)}, v10 offset:{f*1024}")
A(f"ds_read_b128 v[20:23], v14\nds_read_b128 v[24:27], v14 offset:16")
for f in range(8):
    A(f"s_waitcnt lgkmcnt({9-f if f < 6 else 11-f})")
    for tau in range(4): mf32(vO+16*tau, PR[f], vfrag(f,tau), f == 0)
    if f == 5:
        A(f"""
        s_waitcnt lgkmcnt(0)
        v_max3_f32 v20, v20, v21, v22
        v_max3_f32 v24, v24, v25, v26
        v_max3_f32 v20, v20, v23, v27
        v_max_f32 v20, v20, v24
        ds_read_b128 v[24:27], v14 offset:1024
        ds_read_b128 v[28:31], v14 offset:1040
        ds_read_b32 v15, v15
        """)
A(f"""
s_waitcnt lgkmcnt(0)
v_add_f32 v24, v24, v25
v_add_f32 v26, v26, v27
v_add_f32 v28, v28, v29
v_add_f32 v30, v30, v31
v_add_f32 v24, v24, v26
v_add_f32 v28, v28, v30
v_add_f32 v22, v24, v28
v_mov_b32 v21, s{sT}
v_mov_b32 v23, s{sT}
""")
if OPT['local']:
    A(f"""
    v_readfirstlane_b32 s{sLOC}, v15
    s_cmp_lg_u32 s{sLOC}, 0
    """)
ST(4)
def pv_store(flag):
    for n, i in enumerate(range(0, 16, 2)):
        d = vV + 4*n
        A(f"v_cvt_pk_bf16_f32 v{d}, v{vO+i}, v{vO+16+i}\nv_cvt_pk_bf16_f32 v{d+1}, v{vO+32+i}, v{vO+48+i}")
        A(f"v_cvt_pk_bf16_f32 v{d+2}, v{vO+i+1}, v{vO+16+i+1}\nv_cvt_pk_bf16_f32 v{d+3}, v{vO+32+i+1}, v{vO+48+i+1}")
        A(f"s_add_u32 s69, s68, {((i&3)//2 + 4*(i>>2))*32768}")
        A(f"buffer_store_dwordx4 {vr(d,4)}, v11, {WS}, s69 offen {flag}")
    A(f"""
    s_waitcnt vmcnt(0)
    s_mov_b32 exec_hi, 0
    buffer_store_dwordx4 v[20:23], v13, {WS}, s71 offen {flag}
    s_mov_b64 exec, -1
    """)
if OPT['local']:
    A(f"s_cbranch_scc1 L_pvfar")
    pv_store("")
    A("L_pvback:")
else:
    pv_store("sc1")
ST(5)

A("L_red:")
A(f"""
s_lshr_b32 s66, s{sW}, 1
s_lshl_b32 s67, s{sX}, 15
s_lshl_b32 s68, s66, 9
s_add_u32 s67, s67, s68
s_lshl_b32 s69, s{sK}, 5
s_add_u32 s67, s67, s69
s_add_u32 s67, s67, {WS_FLG}
v_and_b32 v9, 15, v{vL}
v_and_b32 v10, 1, v4
v_lshlrev_b32 v11, 11, v9
v_lshl_add_u32 v11, v10, 4, v11
s_lshl_b32 s69, s{sX}, 4
s_add_u32 s69, s69, s{sK}
s_lshl_b32 s69, s69, 15
s_lshl_b32 s70, s{sW}, 8
s_add_u32 s69, s69, s70
s_add_u32 s69, s69, {WS_H3A}
v_lshlrev_b32 v12, 11, v4
v_lshl_add_u32 v12, v9, 4, v12
v_and_b32 v13, 1, v3
v_lshlrev_b32 v13, 4, v13
v_mov_b32 v14, 0xffff
v_lshlrev_b32 v14, v13, v14
v_lshrrev_b32 v13, 1, v3
""")
for d in range(4): A(f"v_cmp_eq_u32 vcc, {d}, v13\nv_cndmask_b32 v{16+d}, 0, v14, vcc")
A(f"""
v_lshrrev_b32 v13, 2, v3
v_lshl_add_u32 v15, v13, 4, v4
v_lshlrev_b32 v15, 2, v15
v_lshlrev_b32 v28, 14, v13
v_lshl_add_u32 v28, v6, 5, v28
v_lshl_add_u32 v28, v4, 3, v28
s_lshl_b32 s70, s{sK}, 15
s_lshl_b32 s71, s{sX}, 11
s_add_u32 s70, s70, s71
s_add_u32 s70, s70, {WS_H3B}
s_lshl_b32 s71, s{sW}, 7
s_add_u32 s71, s71, s70
v_lshlrev_b32 v29, 14, v10
v_lshl_add_u32 v29, v9, 3, v29
s_mov_b32 s77, 0
s_mov_b32 exec_hi, 0
L_rpoll:
buffer_load_dwordx4 v[32:35], v11, {WS}, s67 offen sc1
s_add_u32 s77, s77, 1
s_waitcnt vmcnt(0)
v_xor_b32 v33, s{sT}, v33
v_xor_b32 v35, s{sT}, v35
v_or_b32 v33, v33, v35
v_cmp_ne_u32 vcc, 0, v33
s_cmp_ge_u32 s77, {POLL_MAX}
s_cbranch_scc1 L_rdone
s_cbranch_vccnz L_rpoll
L_rdone:
s_mov_b64 exec, -1
""")
ST(6)
for i in range(4):
    A(f"buffer_load_dwordx4 {vr(48+4*i,4)}, v12, {WS}, s69 offen sc1")
    if i < 3: A("s_add_u32 s69, s69, 8192")
A("v_mov_b32 v36, v32")
for r in (8, 4, 2, 1): A(f"v_max_f32_dpp v36, v36, v36 row_ror:{r} {DPPF}")
A("v_sub_f32 v33, v32, v36\nv_exp_f32 v33, v33\nv_mul_f32 v37, v33, v34")
for i in range(4): A(f"ds_bpermute_b32 v{40+i}, v15, v33 offset:{16*i}")
for r in (8, 4, 2, 1): A(f"v_add_f32_dpp v37, v37, v37 row_ror:{r} {DPPF}")
A(f"v_min_u32 v36, -2, v36\nv_min_u32 v37, -2, v37")
A(f"""
s_cmp_lg_u32 s{sW}, 0
s_cbranch_scc1 L_rnostat
s_mov_b32 exec_hi, 0
buffer_store_dwordx2 v[36:37], v29, {WS}, s70 offen offset:1024 sc1
s_mov_b64 exec, -1
L_rnostat:
v_cmp_gt_u32 vcc, 8, v9
s_waitcnt lgkmcnt(0)
""")
for i in range(4): A(f"v_cvt_pk_bf16_f32 v{44+i}, v{40+i}, v{40+i}")
for i in range(4): A(f"v_and_b32 v{80+i}, 0xffff0000, v{44+i}")
for i in range(4): A(f"v_sub_f32 v{80+i}, v{40+i}, v{80+i}")
for i in range(4): A(f"v_cvt_pk_bf16_f32 v{80+i}, v{80+i}, v{80+i}")
for i in range(4): A(f"v_cndmask_b32 v{44+i}, v{80+i}, v{44+i}, vcc")
for i in range(4):
    for d in range(4): A(f"v_and_b32 v{64+4*i+d}, v{44+i}, v{16+d}")
A(f"""
s_cmp_lg_u32 s{sW}, 0
s_cbranch_scc1 L_rw0
s_waitcnt vmcnt(1)
s_branch L_rgo
L_rw0:
s_waitcnt vmcnt(0)
L_rgo:
""")
for i in range(4): mf16(40, 48+4*i, 64+4*i, i == 0)
for j in range(4): A(f"v_add_f32_dpp v{40+j}, v{40+j}, v{40+j} row_ror:8 {DPPF}")
A(f"""
v_cvt_pk_bf16_f32 v44, v40, v41
v_cvt_pk_bf16_f32 v45, v42, v43
v_min_u32 v44, -2, v44
v_min_u32 v45, -2, v45
s_mov_b32 exec_lo, 0x00ff00ff
s_mov_b32 exec_hi, 0x00ff00ff
buffer_store_dwordx2 v[44:45], v28, {WS}, s71 offen sc1
s_mov_b64 exec, -1
""")
ST(7)
if OPT['local'] and OPT['wb']:
    A(f"""
    s_cmp_lg_u32 s{sK}, 0
    s_cbranch_scc1 L_end
    s_waitcnt vmcnt(0)
    s_barrier
    s_cmp_lg_u32 s{sW}, 0
    s_cbranch_scc1 L_end
    buffer_wbl2 sc1
    """)
if OPT['local']:
    finish()
    A("L_pvfar:")
    A("s_nop 7")
    pv_store("sc1")
    A("s_branch L_pvback")

A("L_end:")
if OPT['stamps']:
    A("s_waitcnt vmcnt(0)")
    ST(8)
    A(f"""
    s_waitcnt lgkmcnt(0)
    s_lshl_b32 s66, s2, 3
    s_add_u32 s66, s66, s{sW}
    s_lshl_b32 s66, s66, 6
    s_add_u32 s66, s66, {WS_ST}
    s_getreg_b32 s67, hwreg(HW_REG_XCC_ID)
    s_mov_b64 exec, 1
    v_mov_b32 v8, 0
    """)
    for i in range(3):
        A("\n".join(f"v_mov_b32 v{12+j}, s{80+2*(3*i+j)}" for j in range(3)))
        A(f"v_mov_b32 v15, {['s67','s77','s98'][i]}")
        A(f"buffer_store_dwordx4 v[12:15], v8, {WS}, s66 offen offset:{16*i}")
if OPT['hs'] >= 0:
    if OPT['hr'] == 1: A("s_cmp_ge_u32 s2, 128\ns_cbranch_scc1 L_exit")
    if OPT['hr'] == 3: A(f"s_cmp_ge_u32 s2, 128\ns_cbranch_scc1 L_exit\ns_cmp_ge_u32 s{sW}, 4\ns_cbranch_scc1 L_exit")
    if OPT['hr'] == 4: A(f"s_cmp_ge_u32 s2, 128\ns_cbranch_scc1 L_exit\ns_cmp_lt_u32 s{sW}, 4\ns_cbranch_scc1 L_exit")
    if OPT['hr'] == 2: A("s_cmp_lt_u32 s2, 128\ns_cbranch_scc1 L_exit")
    A(f"s_cmp_eq_u32 s{80+2*OPT['hs']}, 0\ns_cbranch_scc1 L_exit")
    A(f"L_hold2:\ns_memrealtime s[66:67]\ns_waitcnt lgkmcnt(0)\ns_sub_u32 s68, s66, s{80+2*OPT['hs']}\ns_cmp_lt_u32 s68, 4000\ns_cbranch_scc1 L_hold2")
if OPT['hold']:
    A(f"L_hold:\ns_memrealtime s[66:67]\ns_waitcnt lgkmcnt(0)\ns_sub_u32 s68, s66, s80\ns_cmp_lt_u32 s68, {OPT['hold']}\ns_cbranch_scc1 L_hold")
A("L_exit:\ns_endpgm")
A.raw(f""".section .rodata,"a"
.p2align 6
.amdhsa_kernel {NAME}_kernel
  .amdhsa_next_free_vgpr 256
  .amdhsa_next_free_sgpr 102
  .amdhsa_accum_offset 256
  .amdhsa_group_segment_fixed_size 0
  .amdhsa_kernarg_size 104
  .amdhsa_user_sgpr_count 2
  .amdhsa_user_sgpr_kernarg_segment_ptr 1
  .amdhsa_system_sgpr_workgroup_id_x 1
  .amdhsa_float_denorm_mode_32 3
.end_amdhsa_kernel""")
sys.stdout.write(A.text())
sys.stderr.write(f"instructions {A.count} nops {A.nops}\n")
```

```python
import sys, math, struct
from asmx import Asm, NAME

OPT = dict(stamps=0, local=1, hold=0, pf=1, exp=0, gbar=8, rsleep=2, help=7, fslow=3, tslow=0, wb=0, gap=0, prio=1, ukw=0, wqh=1, adel=0, psl=4, cpq=1, hb=1, noclr=0, nopt=0, hslow=1, gslow=0, Tslow=0, areg=1, pvp=1, hs=-1, hr=0)
for a in sys.argv[1:]:
    k, v = a.split("="); assert k in OPT, k; OPT[k] = int(v)

WS_PF  = 0x010000
WS_FF  = 0x020000
WS_XT  = 0x030000
WS_H1  = 0x040000
WS_H1L = 0x0C0000
WS_H2  = 0x080000
WS_PQ  = 0x0A0000
WS_FLG = 0x100000
WS_H3B = 0x140000
WS_H5  = 0x200000
WS_H3A = 0x400000
WS_ST  = 0x800000
POLL_MAX = 60000 if not OPT['exp'] else 40

P_X, P_CKV, P_WQ, P_WUK, P_WUV, P_WO, P_BX, P_WG, P_WU, P_WD, P_OUT, P_DBG = [16+2*i for i in range(12)]
sSL, sF = 40, 41
sE, sT, sW, sX, sK, sH = 42, 43, 44, 45, 46, 47
WS = "s[48:51]"; RA = "s[52:55]"; RB = "s[56:59]"; RC = "s[60:63]"
sQD, sA_ = 64, 65
A = Asm()
HW = '\ns_waitcnt vmcnt(0)' if OPT['hslow'] else ''
NQPART = [True]

def srd(base, ptr, size):
    A(f"s_mov_b32 s{base}, s{ptr}\ns_mov_b32 s{base+1}, s{ptr+1}\ns_mov_b32 s{base+2}, {size}\ns_mov_b32 s{base+3}, 0x20000")
def ST(i, mode=1):
    if OPT['stamps'] == mode or (OPT['stamps'] and i in (0, 8)): A(f"s_memrealtime s[{80+2*i}:{81+2*i}]")
def vr(a, n): return f"v[{a}:{a+n-1}]"
def dma(voff, rsrc, soff, flags="nt"):
    A(f"buffer_load_dwordx4 v{voff}, {rsrc}, s{soff} offen {flags} lds")
def finish(): A("s_branch L_end")
def get_tag():
    A(f"s_add_u32 s{sE}, s{sE}, 1\ns_mul_i32 s{sT}, s{sE}, 0x9E3779B1\ns_xor_b32 s{sT}, s{sT}, 0x5BD1E995")
def rb16(dst, src):
    A(f"v_cvt_pk_bf16_f32 v{dst}, v{src}, v{src}\nv_lshlrev_b32 v{dst}, 16, v{dst}")
DPPF = "row_mask:0xf bank_mask:0xf"
QP1 = "quad_perm:[1,0,3,2] " + DPPF
def wave_sum_to_sgpr(v, s):
    for r in (8, 4, 2, 1): A(f"v_add_f32_dpp v{v}, v{v}, v{v} row_ror:{r} {DPPF}")
    A(f"v_add_f32_dpp v{v}, v{v}, v{v} row_bcast:15 row_mask:0xa bank_mask:0xf")
    A(f"v_add_f32_dpp v{v}, v{v}, v{v} row_bcast:31 row_mask:0xc bank_mask:0xf")
    A(f"v_readlane_b32 s{s}, v{v}, 63")
def fbits(x): return "0x%08x" % struct.unpack("<I", struct.pack("<f", x))[0]
def mf16(d, a, b, first): A(f"v_mfma_f32_16x16x32_bf16 {vr(d,4)}, {vr(a,4)}, {vr(b,4)}, {'0' if first else vr(d,4)}")
def mf32(d, a, b, first): A(f"v_mfma_f32_32x32x16_bf16 {vr(d,16)}, {vr(a,4)}, {vr(b,4)}, {'0' if first else vr(d,16)}")
def ones(v): A("\n".join(f"v_mov_b32 v{v+j}, -1" for j in range(4)))
LOG2E = 1.4426950408889634

A.raw("; @launch grid=(256,1,1) block=(512,1,1) lds=163840")
A.raw('.amdgcn_target "amdgcn-amd-amdhsa--gfx950"')
A.raw(f".text\n.globl {NAME}_kernel\n.p2align 8\n.type {NAME}_kernel,@function\n{NAME}_kernel:")
vL = 1
ST(0)
A(f"""
s_load_dwordx2 s[48:49], s[0:1], 96
s_load_dwordx2 s[52:53], s[0:1], 0
s_load_dwordx2 s[56:57], s[0:1], 16
s_load_dwordx2 s[60:61], s[0:1], 24
s_load_dwordx16 s[16:31], s[0:1], 0
s_load_dwordx8 s[32:39], s[0:1], 64
s_cmp_ge_u32 s2, 256
s_cbranch_scc1 L_exit
v_lshrrev_b32 v2, 6, v0
v_and_b32 v{vL}, 63, v0
v_readfirstlane_b32 s{sW}, v2
s_and_b32 s{sX}, s2, 7
s_lshr_b32 s{sK}, s2, 3
v_lshlrev_b32 v9, 4, v{vL}
s_mov_b32 s50, 0x10000000
s_mov_b32 s51, 0x20000
s_mov_b32 s55, 0x20000
s_mov_b32 s58, {576*8192}
s_mov_b32 s59, 0x20000
s_mov_b32 s62, {512*8192}
s_mov_b32 s63, 0x20000
s_cmp_lt_u32 s2, 128
s_cbranch_scc1 L_att
""")
def lane_consts():
    A(f"v_lshrrev_b32 v2, 3, v{vL}\nv_and_b32 v3, 7, v{vL}\nv_lshrrev_b32 v4, 4, v{vL}\nv_bfe_u32 v5, v{vL}, 2, 2\nv_and_b32 v6, 3, v{vL}\nv_lshlrev_b32 v7, 4, v0\nv_mov_b32 v8, 0")
    if OPT['stamps']:
        for i in range(82, 102): A(f"s_mov_b32 s{i}, 0")

XN, XNS = 0, 1216
QL, QLS = 5120, 320
HB, HBS = 9728, 192
BIG = 16384
vTR = 13
vD = 28
def common_setup():
    lane_consts()
    A(f"""
    s_and_b32 s67, s{sW}, 1
    s_lshl_b32 s68, s67, 2
    v_and_b32 v11, 2, v2
    v_or_b32 v11, s68, v11
    v_xor_b32 v11, v11, v3
    v_lshlrev_b32 v11, 4, v11
    v_lshl_add_u32 v12, v2, 13, v11
    s_lshr_b32 s68, s{sW}, 1
    s_bfe_u32 s69, s{sW}, 0x10001
    s_lshr_b32 s70, s{sW}, 2
    """)
def common_setup2():
    A(f"""
    s_and_b32 s74, s{sW}, 3
    s_lshl_b32 s74, s74, 1
    v_lshrrev_b32 v{vTR}, 1, v6
    v_or_b32 v{vTR}, s74, v{vTR}
    v_and_b32 v14, 2, v5
    v_xor_b32 v{vTR}, v{vTR}, v14
    v_and_b32 v14, 1, v4
    v_lshlrev_b32 v15, 2, v14
    v_xor_b32 v{vTR}, v{vTR}, v15
    v_lshlrev_b32 v{vTR}, 4, v{vTR}
    v_lshl_add_u32 v{vTR}, v5, 7, v{vTR}
    v_and_b32 v15, 1, v6
    v_lshl_add_u32 v{vTR}, v15, 3, v{vTR}
    s_lshl_b32 s74, s70, 10
    s_add_u32 s74, s74, {BIG}
    v_add_u32 v15, s74, v{vTR}
    v_lshl_add_u32 v16, v4, 11, v15
    v_mul_u32_u24 v18, {XNS}, v6
    v_lshl_add_u32 v18, v4, 4, v18
    s_mov_b32 s78, 0x000f000f
    s_mov_b32 s79, 0x000f000f
    """)
def x_loads():
    A(f"""
    s_mul_i32 s66, s{sW}, 1152
    v_lshlrev_b32 v10, 3, v{vL}
    v_lshlrev_b32 v19, 1, v{vL}
    buffer_load_dwordx2 v[20:21], v10, {RA}, s66 offen
    buffer_load_dwordx2 v[22:23], v10, {RA}, s66 offen offset:512
    buffer_load_ushort v24, v19, {RA}, s66 offen offset:1024
    """)
def layernorm():
    e = list(range(56, 65))
    for i in range(4): A(f"v_lshlrev_b32 v{e[2*i]}, 16, v{20+i}\nv_and_b32 v{e[2*i+1]}, 0xffff0000, v{20+i}")
    A(f"""
    v_lshlrev_b32 v{e[8]}, 16, v24
    v_add_f32 v25, v{e[0]}, v{e[1]}
    v_add_f32 v26, v{e[2]}, v{e[3]}
    v_add_f32 v27, v{e[4]}, v{e[5]}
    v_add_f32 v28, v{e[6]}, v{e[7]}
    v_add_f32 v25, v25, v26
    v_add_f32 v27, v27, v28
    v_add_f32 v25, v25, v{e[8]}
    v_add_f32 v25, v25, v27
    """)
    wave_sum_to_sgpr(25, 74)
    A(f"v_mov_b32 v26, {fbits(1.0/576)}\nv_mul_f32 v26, s74, v26")
    A(f"v_sub_f32 v27, v{e[0]}, v26\nv_mul_f32 v25, v27, v27")
    for i in range(1, 9): A(f"v_sub_f32 v27, v{e[i]}, v26\nv_fmac_f32 v25, v27, v27")
    rb16(26, 26)
    for i in range(9): A(f"v_sub_f32 v{e[i]}, v{e[i]}, v26")
    wave_sum_to_sgpr(25, 74)
    A(f"v_mov_b32 v27, {fbits(1.0/576)}\nv_mul_f32 v27, s74, v27")
    rb16(27, 27)
    A(f"v_add_f32 v27, {fbits(1e-5)}, v27")
    rb16(27, 27)
    A("v_sqrt_f32 v27, v27")
    rb16(27, 27)
    A("v_rcp_f32 v27, v27")
    for i in range(0, 8, 2): A(f"v_cvt_pk_bf16_f32 v{20+i//2}, v{e[i]}, v{e[i+1]}")
    A(f"v_cvt_pk_bf16_f32 v24, v{e[8]}, v{e[8]}")
    for i in range(0, 8, 2): A(f"v_lshlrev_b32 v{e[i]}, 16, v{20+i//2}\nv_and_b32 v{e[i+1]}, 0xffff0000, v{20+i//2}")
    A(f"v_lshlrev_b32 v{e[8]}, 16, v24")
    for i in range(9): A(f"v_mul_f32 v{e[i]}, v{e[i]}, v27")
    for i in range(0, 8, 2): A(f"v_cvt_pk_bf16_f32 v{20+i//2}, v{e[i]}, v{e[i+1]}")
    A(f"v_cvt_pk_bf16_f32 v24, v{e[8]}, v{e[8]}")
    A(f"""
    s_mul_i32 s74, s{sW}, {XNS}
    v_add_u32 v10, s74, v10
    v_add_u32 v19, s74, v19
    ds_write_b64 v10, v[20:21] offset:{XN}
    ds_write_b64 v10, v[22:23] offset:{XN+512}
    ds_write_b16 v19, v24 offset:{XN+1024}
    """)
def clear_tail_inbox(vones):
    A(f"s_lshl_b32 s74, s{sH}, 14\ns_add_u32 s74, s74, {WS_H3B}")
    for i in range(4):
        A(f"buffer_store_dwordx4 {vr(vones,4)}, v9, {WS}, s74 offen sc1\nbuffer_store_dwordx4 {vr(vones,4)}, v9, {WS}, s74 offen offset:2048 sc1")
        if i < 3: A("s_add_u32 s74, s74, 4096")
    A(f"s_sub_u32 s74, s74, {3*4096}\nv_lshlrev_b32 v14, 11, v2\nv_lshl_add_u32 v14, v3, 4, v14")
    A(f"buffer_store_dwordx4 {vr(vones,4)}, v14, {WS}, s74 offen offset:1024 sc1")
def proof(sidx):
    A(f"""
    s_lshl_b32 s74, s{sidx}, 7
    s_add_u32 s74, s74, {WS_PF}
    v_mov_b32 v14, s{sT}
    v_lshlrev_b32 v17, 2, v{vL}
    s_mov_b32 exec_hi, 0
    buffer_store_dword v14, v17, {WS}, s74 offen sc1
    s_mov_b64 exec, -1
    """)
vXN, vG = 32, 104
def xn_frags():
    for kp in range(18):
        A(f"ds_read_b128 {vr(vXN+4*kp,4)}, v18 offset:{XN+kp*64}")
        if kp == 11: A("s_waitcnt lgkmcnt(4)")
def k_half(h, va, vb):
    for kp in range(9):
        a, off = (va, kp*8192) if kp < 8 else (vb, 0)
        A(f"ds_read_b64_tr_b16 {vr(vG+4*kp,2)}, v{a} offset:{off}")
        A(f"ds_read_b64_tr_b16 {vr(vG+4*kp+2,2)}, v{a} offset:{off+512}")
        if kp == 5: A("s_waitcnt lgkmcnt(6)")
    for kp in range(9):
        A(f"s_waitcnt lgkmcnt({min(15,2*(8-kp))})")
        mf16(vD, vG+4*kp, vXN+4*(9*h+kp), h == 0 and kp == 0)

QP, QPS = 5120, 272
WQB = BIG + 108*1024
UKB = BIG
sU = 76
def f_setup():
    A(f"""
    s_lshl_b32 s71, s{sA_}, 1
    s_add_u32 s71, s71, s{sQD}
    s_cmp_eq_u32 s{sA_}, 3
    s_cselect_b32 s72, 1, 2
    s_sub_u32 s71, s71, s72
    s_mul_i32 s{sU}, s{sX}, 9
    s_add_u32 s{sU}, s{sU}, s71
    s_cmp_eq_u32 s69, 0
    s_cselect_b32 s60, s{P_WG}, s{P_WU}
    s_cselect_b32 s61, s{P_WG+1}, s{P_WU+1}
    s_mov_b32 s62, {576*9216}
    s_lshl_b32 s72, s67, 1
    s_lshl_b32 s71, s69, 2
    s_or_b32 s72, s72, s71
    v_bfe_u32 v14, v2, 1, 1
    v_or_b32 v14, s72, v14
    v_xor_b32 v14, v14, v3
    v_lshlrev_b32 v14, 4, v14
    v_mul_u32_u24 v12, 9216, v2
    v_add_u32 v12, v12, v14
    s_lshl_b32 s71, s70, 1
    s_add_u32 s71, s71, s67
    s_mul_i32 s72, s71, {8*9216}
    s_lshl_b32 s74, s{sU}, 7
    s_add_u32 s72, s72, s74
    s_lshl_b32 s71, s71, 1
    s_add_u32 s71, s71, s69
    s_lshl_b32 s71, s71, 10
    s_add_u32 s71, s71, {BIG}
    """)
def gu_dma(i):
    A(f"s_mov_b32 m0, s71\ns_add_u32 s71, s71, 8192")
    dma(12, RC, 72)
    A(f"s_add_u32 s72, s72, {32*9216}")
A(f"""
L_nq:
s_bfe_u32 s{sA_}, s2, 0x20005
s_bfe_u32 s{sQD}, s2, 0x20003
s_lshl_b32 s{sH}, s{sX}, 2
s_add_u32 s{sH}, s{sH}, s{sA_}
s_mov_b32 s54, 4608
v_lshrrev_b32 v2, 3, v{vL}
v_and_b32 v3, 7, v{vL}
s_and_b32 s67, s{sW}, 1
s_lshl_b32 s68, s67, 2
v_and_b32 v11, 2, v2
v_or_b32 v11, s68, v11
v_xor_b32 v11, v11, v3
v_lshlrev_b32 v11, 4, v11
v_lshl_add_u32 v12, v2, 13, v11
s_bfe_u32 s69, s{sW}, 0x10001
s_lshr_b32 s70, s{sW}, 2
s_mul_i32 s71, s70, 10
s_add_u32 s71, s71, s67
s_mul_i32 s72, s{sQD}, 18
s_add_u32 s72, s72, s71
s_lshl_b32 s72, s72, 16
s_lshl_b32 s73, s{sH}, 8
s_lshl_b32 s74, s69, 7
s_add_u32 s73, s73, s74
s_add_u32 s72, s72, s73
s_lshl_b32 s71, s71, 1
s_add_u32 s71, s71, s69
s_lshl_b32 s71, s71, 10
s_add_u32 s71, s71, {WQB}
s_mov_b32 m0, s71
s_cmp_lg_u32 s70, 0
s_waitcnt lgkmcnt(0)
s_cbranch_scc1 L_nq_nox
""")
x_loads()
dma(12, RB, 72)
A(f"s_add_u32 s71, s71, 4096\ns_add_u32 s72, s72, {2*65536}\ns_mov_b32 m0, s71\nL_nq_nox:")
for i in range(4):
    A(f"s_add_u32 s71, s71, 4096")
    dma(12, RB, 72)
    if i < 3: A(f"s_add_u32 s72, s72, {2*65536}\ns_mov_b32 m0, s71")
A(f"s_load_dword s{sE}, s[48:49], 0")
lane_consts()
ST(1, 2)
A(f"s_lshr_b32 s68, s{sW}, 1\ns_cmp_ge_u32 s{sQD}, 2\ns_cbranch_scc1 L_nq_fs")
A(f"""
s_lshl_b32 s71, s70, 3
s_add_u32 s71, s71, s67
s_lshl_b32 s72, s{sQD}, 5
s_add_u32 s72, s72, s71
s_lshl_b32 s72, s72, 16
s_add_u32 s72, s72, s73
s_lshl_b32 s71, s71, 1
s_add_u32 s71, s71, s69
s_lshl_b32 s71, s71, 10
s_add_u32 s71, s71, {UKB}
s_cmp_eq_u32 s70, 0
s_cbranch_scc1 L_nq_ln
""")
ones(24)
A(f"""
s_lshl_b32 s75, s{sW}, 12
s_lshl_b32 s74, s{sH}, 14
s_add_u32 s74, s74, s75
s_add_u32 s74, s74, {WS_H3B-16384}
buffer_store_dwordx4 v[24:27], v9, {WS}, s74 offen sc1
buffer_store_dwordx4 v[24:27], v9, {WS}, s74 offen offset:2048 sc1
s_mov_b64 exec, 0xff
buffer_store_dwordx4 v[24:27], v9, {WS}, s74 offen offset:1024 sc1
buffer_store_dwordx4 v[24:27], v9, {WS}, s74 offen offset:3072 sc1
s_lshl_b32 s75, s{sW}, 15
s_lshl_b32 s74, s{sH}, 10
s_add_u32 s74, s74, s75
s_lshl_b32 s75, s{sQD}, 9
s_add_u32 s74, s74, s75
s_add_u32 s74, s74, {WS_H2-4*32768}
s_mov_b32 exec_lo, -1
buffer_store_dwordx4 v[24:27], v9, {WS}, s74 offen sc1
s_mov_b64 exec, -1
s_branch L_nq_noln
L_nq_fs:
""")
f_setup()
A(f"s_cmp_lg_u32 s70, 0\ns_cbranch_scc1 L_nq_noln\nL_nq_ln:\ns_waitcnt vmcnt(5)")
ST(2, 2)
layernorm()
A("L_nq_noln:")
ST(3, 2)
common_setup2()
A(f"""
v_add_u32 v21, {WQB-BIG}, v16
v_and_b32 v14, 1, v4
v_lshl_add_u32 v17, v14, 11, v15
v_add_u32 v17, {WQB-BIG}, v17
s_mul_i32 s74, s{sQD}, 288
v_add_u32 v19, s74, v18
s_lshl_b32 s66, s{sH}, 13
s_add_u32 s66, s66, {WS_H1L}
s_lshl_b32 s75, s{sQD}, 11
s_add_u32 s75, s75, s66
s_lshl_b32 s77, s{sW}, 8
s_add_u32 s75, s75, s77
v_lshlrev_b32 v20, 6, v6
v_lshl_add_u32 v20, v4, 4, v20
v_cmp_gt_u32 vcc, 2, v4
s_cmp_lt_u32 s{sQD}, 2
s_cbranch_scc1 L_nq_uk
s_waitcnt vmcnt(0)
""")
for i in range(OPT['gap']): gu_dma(i)
A(f"""
s_branch L_nq_a
L_nq_uk:
s_waitcnt vmcnt(5)
s_cmp_lg_u32 s70, 0
s_cbranch_scc1 L_nq_uk2
s_waitcnt vmcnt(0)
L_nq_uk2:
""")
for i in range(4):
    A(f"s_mov_b32 m0, s71\ns_add_u32 s71, s71, 4096")
    dma(12, RC, 72)
    A(f"s_add_u32 s72, s72, {2*65536}")
A("L_nq_a:\ns_waitcnt lgkmcnt(0)")
ST(1); ST(5, 2)
A("s_barrier")
vA, vB = 64, 96
for kp in range(5):
    a = 21 if kp < 4 else 17
    A(f"ds_read_b64_tr_b16 {vr(vA+4*kp,2)}, v{a} offset:{kp*8192}")
    A(f"ds_read_b64_tr_b16 {vr(vA+4*kp+2,2)}, v{a} offset:{kp*8192+512}")
    A(f"ds_read_b128 {vr(vB+4*kp,4)}, v19 offset:{XN+kp*64}")
get_tag()
A(f"v_mov_b32 v25, s{sT}\nv_mov_b32 v27, s{sT}")
for kp in range(5):
    A(f"s_waitcnt lgkmcnt({3*(4-kp)})")
    if kp == 4:
        for j in range(4): A(f"v_cndmask_b32 v{vB+16+j}, 0, v{vB+16+j}, vcc")
    mf16(vD, vA+4*kp, vB+4*kp, kp == 0)
H1D = WS_H1L - WS_H1
def pq_addr():
    if OPT['cpq']:
        return f"""v_lshlrev_b32 v55, 13, v{vL}
        s_lshl_b32 s76, s{sX}, 7
        s_lshl_b32 s74, s{sA_}, 3
        s_add_u32 s76, s76, s74
        s_lshl_b32 s74, s{sQD}, 2
        s_add_u32 s76, s76, s74
        s_add_u32 s76, s76, {WS_PQ}"""
    return f"""v_lshlrev_b32 v55, 13, v2
    v_lshl_add_u32 v55, v3, 4, v55
    s_lshl_b32 s76, s{sH}, 8
    s_lshl_b32 s74, s{sQD}, 7
    s_add_u32 s76, s76, s74
    s_add_u32 s76, s76, {WS_PQ}"""
PQST = f"s_mov_b64 exec, 0xff\nbuffer_store_dword v44, v55, {WS}, s76 offen sc1\ns_mov_b64 exec, -1" if OPT['cpq'] else f"buffer_store_dwordx4 v[44:47], v55, {WS}, s76 offen sc1"
A(f"""
v_and_b32 v52, 1, v2
v_and_b32 v53, 2, v3
v_lshl_or_b32 v53, v52, 2, v53
v_xor_b32 v53, v53, v4
v_lshlrev_b32 v53, 4, v53
v_lshl_add_u32 v53, v3, 7, v53
v_lshl_add_u32 v52, v52, 11, v53
v_cvt_pk_bf16_f32 v24, v{vD}, v{vD+1}
v_cvt_pk_bf16_f32 v26, v{vD+2}, v{vD+3}
s_mov_b64 exec, s[78:79]
buffer_store_dwordx4 v[24:27], v20, {WS}, s75 offen
s_sub_u32 s75, s75, {H1D}
s_cmp_lt_u32 s{sQD}, 2
s_cbranch_scc1 L_nq_b
buffer_store_dwordx4 v[24:27], v20, {WS}, s75 offen sc1
s_mov_b64 exec, -1
""")
ST(2); ST(6, 2)
A(f"s_barrier\ns_branch L_F\nL_nq_b:\ns_mov_b64 exec, -1")
ST(2); ST(6, 2)
A(f"s_barrier\ns_add_u32 s71, s71, 16384\ns_add_u32 s72, s72, {8*65536}")
for i in range(4):
    A(f"s_mov_b32 m0, s71\ns_add_u32 s71, s71, 4096")
    dma(12, RC, 72)
    if i < 3: A(f"s_add_u32 s72, s72, {2*65536}")
A(f"""
s_mul_i32 s74, s68, {4*QPS}
s_lshl_b32 s77, s67, 7
s_add_u32 s74, s74, s77
v_mul_u32_u24 v22, {QPS}, v5
v_lshl_add_u32 v22, v4, 5, v22
v_lshl_add_u32 v22, v6, 3, v22
v_add_u32 v22, s74, v22
s_lshl_b32 s77, s{sW}, 13
s_add_u32 s77, s77, {UKB}
v_add_u32 v52, s77, v52
v_xor_b32 v53, 64, v52
v_and_b32 v23, 15, v{vL}
v_mul_u32_u24 v23, {QPS}, v23
v_lshl_add_u32 v23, v4, 4, v23
s_lshl_b32 s72, s{sH}, 10
s_lshl_b32 s74, s{sQD}, 9
s_add_u32 s72, s72, s74
s_lshl_b32 s74, s{sW}, 6
s_add_u32 s72, s72, s74
s_add_u32 s72, s72, {WS_H2}
v_and_b32 v21, 1, v5
v_lshlrev_b32 v54, 15, v6
{pq_addr()}
v_mov_b32 v44, s{sT}
v_mov_b32 v45, s{sT}
v_mov_b32 v46, s{sT}
v_mov_b32 v47, s{sT}
v_lshl_add_u32 v54, v21, 5, v54
v_lshl_add_u32 v54, v4, 3, v54
s_sub_u32 s71, s66, {H1D}
s_mov_b32 s77, 0
L_h1poll:
s_cmp_lg_u32 s77, 6
s_cbranch_scc1 L_h1ng
s_mov_b64 exec, s[78:79]
buffer_store_dwordx4 v[24:27], v20, {WS}, s75 offen sc1
s_mov_b64 exec, -1
L_h1ng:
s_and_b32 s74, s77, 9
s_cmp_eq_u32 s74, 9
s_cselect_b32 s74, s71, s66
buffer_load_dwordx4 v[48:51], v7, {WS}, s74 offen sc1
s_add_u32 s77, s77, 1
s_waitcnt vmcnt(0)
v_xor_b32 v49, s{sT}, v49
v_xor_b32 v51, s{sT}, v51
v_or_b32 v49, v49, v51
v_cmp_ne_u32 vcc, 0, v49
s_cmp_ge_u32 s77, {POLL_MAX}
s_cbranch_scc1 L_h1done
s_cbranch_vccnz L_h1poll
L_h1done:
v_mov_b32 v49, v50
ds_write_b64 v22, v[48:49] offset:{QP}
s_cmp_gt_u32 s77, 6
s_cbranch_scc1 L_h1sent
s_mov_b64 exec, s[78:79]
buffer_store_dwordx4 v[24:27], v20, {WS}, s75 offen sc1
s_mov_b64 exec, -1
L_h1sent:
""")
A(f"L_h1np:\nv_cmp_ne_u32 vcc, 0, v21\ns_waitcnt lgkmcnt(0)")
ST(3); ST(7, 2)
A(f"s_barrier\ns_cmp_lg_u32 s{sW}, 0\ns_cbranch_scc1 L_nopq\n{PQST}\nL_nopq:")
vUK, vD1 = 64, 56
for kp in range(4):
    A(f"ds_read_b128 {vr(vB+4*kp,4)}, v23 offset:{QP+kp*64}")
    for tl in range(2):
        A(f"ds_read_b128 {vr(vUK+16*tl+4*kp,4)}, v{52+(kp&1)} offset:{tl*4096+(kp>>1)*1024}")
A(f"s_mov_b32 s74, {fbits(LOG2E/math.sqrt(128.0))}")
for kp in range(4):
    A(f"s_waitcnt lgkmcnt({9-3*kp+1})")
    mf16(vD, vUK+4*kp, vB+4*kp, kp == 0)
    A(f"s_waitcnt lgkmcnt({9-3*kp})")
    mf16(vD1, vUK+16+4*kp, vB+4*kp, kp == 0)
for j in range(4): A(f"v_cndmask_b32 v{60+j}, v{vD1+j}, v{vD+j}, vcc")
for j in range(4): A(f"v_cndmask_b32 v{vD+j}, v{vD+j}, v{vD1+j}, vcc")
for j in range(4): A(f"v_add_f32_dpp v{vD+j}, v{60+j}, v{vD+j} row_ror:4 {DPPF}")
for j in range(4): A(f"v_add_f32_dpp v{vD+j}, v{vD+j}, v{vD+j} row_ror:8 {DPPF}")
for j in range(4): A(f"v_mul_f32 v{vD+j}, s74, v{vD+j}")
A(f"""
v_cvt_pk_bf16_f32 v48, v{vD}, v{vD+1}
v_cvt_pk_bf16_f32 v49, v{vD+2}, v{vD+3}
v_min_u32 v48, -2, v48
v_min_u32 v49, -2, v49
s_mov_b32 exec_lo, 0x00ff00ff
s_mov_b32 exec_hi, 0x00ff00ff
buffer_store_dwordx2 v[48:49], v54, {WS}, s72 offen sc1
s_mov_b64 exec, -1
""")
ST(4); ST(9, 2)
A(f"""
s_barrier
s_cmp_lt_u32 s{sA_}, 3
s_cbranch_scc1 L_TH
s_cmp_eq_u32 s{sQD}, 0
s_cbranch_scc1 L_T
""")
f_setup()
for i in range(OPT['gap']): gu_dma(i)
A("s_branch L_F")

def wide_voffset(v):
    A(f"v_mul_u32_u24 v{v}, 1152, v2\nv_add_u32 v{v}, v{v}, v11")
ZR = 15360
def publish_setup(stride):
    A(f"""
    s_mul_i32 s74, s{sW}, {stride}
    s_add_u32 s72, s72, s74
    v_mul_u32_u24 v20, {8*stride}, v5
    v_lshl_add_u32 v20, v4, 5, v20
    v_lshl_add_u32 v20, v6, 3, v20
    v_lshlrev_b32 v232, 2, v{vL}
    ds_write_b32 v232, v8 offset:{ZR}
    """)
def masked_addrs(vreal, base):
    A(f"v_mov_b32 v236, {ZR-base}")
    for i in range(4): A(f"v_cmp_eq_u32 vcc, {i}, v5\nv_cndmask_b32 v{232+i}, v236, v{vreal}, vcc")
def wide_dma(n, rsrc, slow=0):
    for i in range(n):
        A(f"s_mov_b32 m0, s71\ns_add_u32 s74, s72, 512")
        dma(14, rsrc, 72)
        if 2*i < slow: A("s_waitcnt vmcnt(0)")
        A(f"s_add_u32 s75, s71, 4096\ns_mov_b32 m0, s75\ns_add_u32 s72, s72, {16*1152}")
        dma(14, rsrc, 74)
        if 2*i+1 < slow: A("s_waitcnt vmcnt(0)")
        A(f"s_add_u32 s71, s71, 16384")
def wide_frag_addrs(base8, shift):
    A(f"v_lshl_add_u32 v16, v4, 13, v15")
    if shift: A(f"v_add_u32 v16, {shift}, v16")
    A(f"""
    v_add_u32 v17, 0x10000, v16
    v_lshl_add_u32 v18, v4, 10, v{vTR}
    v_add_u32 v18, {base8}, v18
    """)
def wide_frag_reads(vdst, nk):
    n = 0
    for i in range(4):
        for kp in range(nk):
            a = 16 if kp < 2 else 17
            off = (kp & 1)*32768 + i*2048
            d = vdst + (i*nk + kp)*4
            A(f"ds_read_b64_tr_b16 {vr(d,2)}, v{a} offset:{off}")
            A(f"ds_read_b64_tr_b16 {vr(d+2,2)}, v{a} offset:{off+512}")
            n += 2
            if n % 12 == 0: A("s_waitcnt lgkmcnt(4)")
    A("s_waitcnt lgkmcnt(4)")
    for kp in range(nk):
        d = vdst + (4*nk + kp)*4
        A(f"ds_read_b64_tr_b16 {vr(d,2)}, v18 offset:{kp*4096}")
        A(f"ds_read_b64_tr_b16 {vr(d+2,2)}, v18 offset:{kp*4096+512}")
def wide_gemm(vW, nk, vBf, base, stride, lab):
    acc, acc5 = 240, 244
    nb = 8
    order = [(i, kp) for i in range(4) for kp in range(nk)]
    def rd(n):
        i, kp = order[n]
        A(f"ds_read_b128 {vr(vBf+4*(n % nb),4)}, v{232+i} offset:{base+kp*64}")
    for n in range(min(nb, len(order))): rd(n)
    for n, (i, kp) in enumerate(order):
        A(f"s_waitcnt lgkmcnt({min(nb-1, len(order)-1-n)})")
        mf16(acc, vW+(i*nk+kp)*4, vBf+4*(n % nb), n == 0)
        if i == 0: mf16(acc5, vW+(4*nk+kp)*4, vBf+4*(n % nb), kp == 0)
        if n + nb < len(order): rd(n + nb)
    A(f"""
    s_cmp_lg_u32 s70, 0
    s_cbranch_scc1 {lab}_a
    s_add_u32 s74, s72, {32*stride}
    v_cvt_pk_bf16_f32 v{acc5}, v{acc5}, v{acc5+1}
    v_cvt_pk_bf16_f32 v{acc5+1}, v{acc5+2}, v{acc5+3}
    s_mov_b64 exec, s[78:79]
    buffer_store_dwordx2 {vr(acc5,2)}, v20, {WS}, s74 offen sc1
    s_mov_b64 exec, -1
    {lab}_a:
    s_nop 5
    v_cvt_pk_bf16_f32 v{acc}, v{acc}, v{acc+1}
    v_cvt_pk_bf16_f32 v{acc+1}, v{acc+2}, v{acc+3}
    buffer_store_dwordx2 {vr(acc,2)}, v20, {WS}, s72 offen sc1
    """)
def tail_prologue(lab, slot_code):
    common_setup2()
    A(f"s_mul_i32 s{sSL}, s{sX}, 7\n{slot_code}\ns_waitcnt lgkmcnt(0)")
    get_tag()
    A(f"s_cmp_lg_u32 s{sW}, 7\ns_cbranch_scc1 {lab}")
    ones(24)
    clear_tail_inbox(24)
    A("s_waitcnt vmcnt(0)")
    proof(sSL)
    A(f"{lab}:")

XL, CT, CTS = 0, 8192, 320
TS = 128*128
vUV, vWO = 32, 96
def t_setup():
    A(f"""
    v_lshlrev_b32 v21, 11, v3
    v_xor_b32 v22, v3, v4
    v_lshlrev_b32 v22, 4, v22
    v_lshl_add_u32 v22, v2, 11, v22
    v_and_b32 v12, 1, v2
    v_lshl_or_b32 v12, v12, 2, v4
    v_lshrrev_b32 v14, 1, v3
    v_xor_b32 v12, v12, v14
    v_lshlrev_b32 v12, 4, v12
    v_lshl_add_u32 v12, v3, 7, v12
    v_lshlrev_b32 v14, 3, v3
    s_lshl_b32 s66, s{sH}, 14
    s_add_u32 s66, s66, {WS_H3B}
    s_lshl_b32 s73, s{sW}, 7
    s_add_u32 s73, s73, s66
    s_lshl_b32 s72, s{sSL}, 7
    s_add_u32 s72, s72, {WS_H5}
    v_lshrrev_b32 v23, 1, v3
    v_mul_u32_u24 v23, {CTS}, v23
    v_lshl_add_u32 v23, v4, 3, v23
    s_lshl_b32 s74, s{sW}, 5
    v_add_u32 v23, s74, v23
    v_mul_u32_u24 v10, {CTS}, v6
    v_lshl_add_u32 v10, v4, 4, v10
    """)
    publish_setup(TS)
    masked_addrs(10, CT)
def t_tail(nk, lab):
    A(f"""
    s_cmp_lg_u32 s{sW}, 0
    s_cbranch_scc1 {lab}pd
    v_min_u32 v24, 35, v{vL}
    v_lshlrev_b32 v24, 7, v24
    s_mov_b32 s74, {WS_PF}
    s_mov_b32 s77, 0
    {lab}pp:
    buffer_load_dword v25, v24, {WS}, s74 offen sc1
    s_add_u32 s77, s77, 1
    s_waitcnt vmcnt(0)
    v_cmp_ne_u32 vcc, s{sT}, v25
    s_cmp_ge_u32 s77, {POLL_MAX}
    s_cbranch_scc1 {lab}pd
    s_cbranch_vccnz {lab}pp
    {lab}pd:
    """)
    ST(5); ST(7, 3)
    A(f"""
    s_mov_b32 s77, 0
    v_mov_b32 v28, 0
    v_mov_b32 v29, 0
    {lab}poll:
    buffer_load_dwordx4 v[24:27], v22, {WS}, s73 offen sc1
    s_cmp_lg_u32 s{sW}, 7
    s_cbranch_scc1 {lab}ns
    s_mov_b64 exec, 0xff
    buffer_load_dwordx2 v[28:29], v21, {WS}, s66 offen offset:1024 sc1
    s_mov_b64 exec, -1
    {lab}ns:
    s_add_u32 s77, s77, 1
    s_waitcnt vmcnt(0)
    v_max3_u32 v30, v24, v25, v26
    v_max3_u32 v30, v30, v27, v28
    v_max_u32 v30, v30, v29
    v_cmp_eq_u32 vcc, -1, v30
    s_cmp_ge_u32 s77, {POLL_MAX}
    s_cbranch_scc1 {lab}done
    s_cbranch_vccnz {lab}poll
    {lab}done:
    ds_write_b128 v7, v[24:27] offset:{XL}
    s_cmp_lg_u32 s{sW}, 7
    s_cbranch_scc1 {lab}nw
    s_mov_b64 exec, 0xff
    ds_write_b64 v14, v[28:29] offset:{CT+2048}
    s_mov_b64 exec, -1
    {lab}nw:
    s_waitcnt lgkmcnt(0)
    """)
    ST(6)
    A("s_barrier")
    if nk == 2: A(f"s_cmp_lg_u32 s70, 0\ns_cbranch_scc1 {lab}nouv")
    vX = 176
    A(f"ds_read_b64 v[28:29], v14 offset:{CT+2048}")
    for i in range(8): A(f"ds_read_b128 {vr(vX+4*i,4)}, v12 offset:{XL+i*1024}")
    a0, a1 = 24, 208
    for i in range(8):
        A(f"s_waitcnt lgkmcnt({7-i})")
        mf16(a0, vUV+8*i, vX+4*i, i == 0)
        mf16(a1, vUV+8*i+4, vX+4*i, i == 0)
    A(f"""
    v_max_f32_dpp v30, v28, v28 {QP1}
    v_sub_f32 v30, v28, v30
    v_exp_f32 v30, v30
    v_mul_f32 v31, v30, v29
    v_add_f32_dpp v31, v31, v31 {QP1}
    v_rcp_f32 v31, v31
    v_mul_f32 v30, v30, v31
    """)
    for j in range(4): A(f"v_add_f32_dpp v{a0+j}, v{a1+j}, v{a0+j} row_ror:8 {DPPF}")
    for j in range(4): A(f"v_mul_f32 v{a0+j}, v{a0+j}, v30")
    for j in range(4): A(f"v_add_f32_dpp v{a0+j}, v{a0+j}, v{a0+j} {QP1}")
    A(f"""
    v_cvt_pk_bf16_f32 v28, v{a0}, v{a0+1}
    v_cvt_pk_bf16_f32 v29, v{a0+2}, v{a0+3}
    s_mov_b32 exec_lo, 0x00550055
    s_mov_b32 exec_hi, 0x00550055
    ds_write_b64 v23, v[28:29] offset:{CT}
    s_mov_b64 exec, -1
    s_waitcnt lgkmcnt(0)
    {lab}nouv:
    s_barrier
    """)
    wide_gemm(vWO, nk, vX, CT, TS, lab+"g")
    ST(7)
    if nk == 2: fin_role()
    else: finish()

RED = BIG
def fin_setup():
    srd(52, P_X, 4608)
    srd(56, P_OUT, 4608)
    A(f"""
    v_and_b32 v212, 1, v4
    v_lshl_add_u32 v212, v3, 1, v212
    v_and_b32 v213, 3, v212
    v_mul_u32_u24 v213, 1152, v213
    v_lshrrev_b32 v212, 2, v212
    v_lshl_add_u32 v213, v212, 3, v213
    s_min_u32 s75, s{sF}, 35
    s_lshl_b32 s75, s75, 5
    v_add_u32 v213, s75, v213
    buffer_load_dwordx2 v[214:215], v213, {RA}, 0 offen
    v_and_b32 v212, 1, v3
    v_lshlrev_b32 v212, 4, v212
    v_mov_b32 v216, 0x3f80
    v_lshlrev_b32 v216, v212, v216
    v_bfe_u32 v212, v{vL}, 1, 3
    """)
    for d in range(8): A(f"v_cmp_eq_u32 vcc, {d}, v212\nv_cndmask_b32 v{220+d}, 0, v216, vcc")
def fin_role():
    A(f"""
    s_cmp_ge_u32 s{sF}, 36
    s_cbranch_scc1 L_end
    s_cmp_eq_u32 s70, 0
    s_cbranch_scc1 L_fin_b
    s_lshl_b32 s72, s{sF}, 14
    s_lshl_b32 s73, s{sW}, 12
    s_add_u32 s72, s72, s73
    s_add_u32 s72, s72, {WS_H5-16384}
    s_mov_b32 s76, 15
    s_mov_b32 s77, 0
    L_finpoll:
    """)
    for i in range(4):
        A(f"s_bitcmp1_b32 s76, {i}\ns_cbranch_scc0 L_fi{i}\nbuffer_load_dwordx4 {vr(32+4*i,4)}, v9, {WS}, s72 offen offset:{1024*i} sc1\nL_fi{i}:")
    A("s_add_u32 s77, s77, 1\ns_waitcnt vmcnt(0)")
    for i in range(4): A(f"v_max3_u32 v{48+i}, v{32+4*i}, v{33+4*i}, v{34+4*i}")
    for i in range(4): A(f"v_max_u32 v{48+i}, v{48+i}, v{35+4*i}")
    for i in range(4): A(f"v_cmp_eq_u32 vcc, -1, v{48+i}\ns_cbranch_vccnz L_fc{i}\ns_bitset0_b32 s76, {i}\nL_fc{i}:")
    A(f"""
    s_cmp_ge_u32 s77, {POLL_MAX}
    s_cbranch_scc1 L_findone
    s_cmp_lg_u32 s76, 0
    s_cbranch_scc1 L_finpoll
    L_findone:
    s_cmp_ge_u32 s{sW}, 6
    s_cbranch_scc1 L_fin_g
    """)
    for i in range(3): mf16(52, 220, 32+4*i, i == 0)
    A(f"s_cmp_eq_u32 s{sW}, 5\ns_cbranch_scc1 L_fin_g3")
    mf16(52, 220, 44, False)
    A("s_branch L_fin_w\nL_fin_g:")
    for i in range(3): mf16(52, 224, 32+4*i, i == 0)
    A("L_fin_g3:")
    mf16(52, 224, 44, False)
    A(f"L_fin_w:\ns_nop 7\nds_write_b128 v7, v[52:55] offset:{RED-4096}\ns_waitcnt lgkmcnt(0)")
    ST(9)
    A(f"L_fin_b:\ns_barrier\ns_cmp_lg_u32 s{sW}, 0\ns_cbranch_scc1 L_end")
    for i in range(4): A(f"ds_read_b128 {vr(64+4*i,4)}, v9 offset:{RED+i*1024}")
    A(f"s_mov_b32 s76, {fbits(-LOG2E)}")
    A("v_lshlrev_b32 v32, 16, v214\nv_and_b32 v33, 0xffff0000, v214\nv_lshlrev_b32 v34, 16, v215\nv_and_b32 v35, 0xffff0000, v215")
    A("s_waitcnt lgkmcnt(2)")
    for j in range(4): A(f"v_add_f32 v{64+j}, v{64+j}, v{68+j}")
    A("s_waitcnt lgkmcnt(0)")
    for j in range(4): A(f"v_add_f32 v{72+j}, v{72+j}, v{76+j}")
    for j in range(4): A(f"v_add_f32 v{64+j}, v{64+j}, v{72+j}")
    for j in range(4): A(f"v_add_f32_dpp v{64+j}, v{64+j}, v{64+j} row_ror:8 {DPPF}")
    for j in range(4): rb16(64+j, 64+j)
    for j in range(4): A(f"v_mul_f32 v{76+j}, s76, v{64+j}")
    for j in range(4): A(f"v_exp_f32 v{76+j}, v{76+j}")
    for j in range(4): A(f"v_add_f32 v{76+j}, 1.0, v{76+j}")
    for j in range(4): A(f"v_rcp_f32 v{76+j}, v{76+j}")
    for j in range(4): A(f"v_mul_f32 v{76+j}, v{64+j}, v{76+j}")
    A("v_cvt_pk_bf16_f32 v76, v76, v77\nv_cvt_pk_bf16_f32 v77, v78, v79")
    A("v_permlane32_swap_b32 v76, v68\nv_permlane32_swap_b32 v77, v69")
    A("v_lshlrev_b32 v72, 16, v68\nv_and_b32 v73, 0xffff0000, v68\nv_lshlrev_b32 v74, 16, v69\nv_and_b32 v75, 0xffff0000, v69")
    for j in range(4): A(f"v_mul_f32 v{64+j}, v{64+j}, v{72+j}")
    A("v_cvt_pk_bf16_f32 v68, v64, v65\nv_cvt_pk_bf16_f32 v69, v66, v67")
    A("v_lshlrev_b32 v64, 16, v68\nv_and_b32 v65, 0xffff0000, v68\nv_lshlrev_b32 v66, 16, v69\nv_and_b32 v67, 0xffff0000, v69")
    for j in range(4): A(f"v_add_f32 v{64+j}, v{64+j}, v{32+j}")
    A(f"""
    v_cvt_pk_bf16_f32 v64, v64, v65
    v_cvt_pk_bf16_f32 v65, v66, v67
    s_mov_b64 exec, 0x00ff00ff
    buffer_store_dwordx2 v[64:65], v213, {RB}, 0 offen
    s_cmp_lg_u32 s{sF}, 0
    s_cbranch_scc1 L_fin_noep
    s_mov_b64 exec, 1
    v_mov_b32 v66, s{sE}
    buffer_store_dword v66, v8, {WS}, 0 offen sc1
    L_fin_noep:
    s_mov_b64 exec, -1
    """)
    finish()

def hb_code():
    if not OPT['hb']: return ""
    return f"""s_lshr_b32 s71, s66, 1
    s_add_u32 s71, s71, 48
    s_mul_i32 s71, s71, {8*9216}
    s_add_u32 s74, s73, 6
    s_lshl_b32 s74, s74, 7
    s_add_u32 s71, s71, s74
    buffer_load_dwordx4 v[248:251], v14, {RA}, s71 offen"""
A("L_TH:")
SLOT = f"s_lshl_b32 s74, s{sA_}, 1\ns_add_u32 s{sSL}, s{sSL}, s74\ns_add_u32 s{sSL}, s{sSL}, s{sQD}"
A(f"""
s_lshl_b32 s66, s{sA_}, 1
s_add_u32 s66, s66, s{sQD}
s_mov_b32 s{sF}, 99
s_cmp_eq_u32 s66, 3
s_cbranch_scc1 L_f_go
s_cmp_gt_u32 s66, 3
s_subb_u32 s66, s66, 0
s_lshl_b32 s66, s66, 3
s_add_u32 s{sF}, s66, s{sX}
s_add_u32 s66, s66, s{sW}
s_cmp_ge_u32 s{sF}, {36 if not OPT['noclr'] else 0}
s_cbranch_scc1 L_noclr
""")
ones(24)
A(f"s_lshl_b32 s74, s{sF}, 14\ns_lshl_b32 s75, s{sW}, 11\ns_add_u32 s74, s74, s75\ns_add_u32 s74, s74, {WS_H5}")
for i in range(2): A(f"buffer_store_dwordx4 v[24:27], v9, {WS}, s74 offen offset:{i*1024} sc1")
A(f"s_waitcnt vmcnt(0)\ns_barrier\ns_cmp_lg_u32 s{sW}, 0\ns_cbranch_scc1 L_noclr")
proof(sF)
A("L_noclr:")
if OPT['help']:
    A(f"""
    s_cmp_eq_u32 s67, 0
    s_cselect_b32 s52, s{P_WG}, s{P_WU}
    s_cselect_b32 s53, s{P_WG+1}, s{P_WU+1}
    s_mov_b32 s54, {576*9216}
    s_lshr_b32 s71, s66, 1
    s_add_u32 s71, s71, 32
    s_mul_i32 s71, s71, {8*9216}
    s_sub_u32 s72, 3, s{sX}
    s_and_b32 s72, s72, 7
    s_mul_i32 s73, s{sX}, 9
    s_lshl_b32 s73, s73, 7
    s_add_u32 s71, s71, s73
    s_lshl_b32 s74, s72, 7
    s_add_u32 s73, s71, s74
    v_mul_u32_u24 v14, 9216, v2
    v_lshl_add_u32 v14, v3, 4, v14
    s_add_u32 s74, s73, {20*8*9216}
    s_add_u32 s71, s71, {20*8*9216}
    """)
    if OPT['help'] & 1:
        A(f"""
        buffer_load_dwordx4 v[248:251], v14, {RA}, s73 offen{HW}
        buffer_load_dwordx4 v[248:251], v14, {RA}, s74 offen{HW}
        s_cmp_lg_u32 s72, 0
        s_cbranch_scc1 L_noc3b
        buffer_load_dwordx4 v[248:251], v14, {RA}, s73 offen offset:1024{HW}
        buffer_load_dwordx4 v[248:251], v14, {RA}, s74 offen offset:1024{HW}
        L_noc3b:
        """)
    if OPT['help'] & 2: A(f"buffer_load_dwordx4 v[248:251], v14, {RA}, s71 offen offset:768{HW}")
    if OPT['help'] & 4:
        A(f"""
        s_lshl_b32 s66, s66, 10
        s_mov_b32 s52, s{P_WO}
        s_mov_b32 s53, s{P_WO+1}
        s_lshl_b32 s73, s{sX}, 3
        s_add_u32 s73, s73, 7
        s_mul_i32 s73, s73, {64*1152}
        s_add_u32 s54, s73, {64*1152}
        s_add_u32 s73, s73, s66
        s_add_u32 s74, s73, {40*1024}
        buffer_load_dwordx4 v[248:251], v9, {RA}, s73 offen{HW}
        buffer_load_dwordx4 v[248:251], v9, {RA}, s74 offen{HW}
        """)
A("L_f_go:")
A(f"s_mul_i32 s{sSL}, s{sX}, 7\n{SLOT}")
ST(1, 3)
srd(52, P_WUV, 512*8192)
srd(56, P_WO, 4096*1152)
A(f"""
s_lshl_b32 s71, s{sW}, 10
s_add_u32 s71, s71, {BIG}
s_lshl_b32 s72, s68, 2
s_add_u32 s72, s72, s67
s_lshl_b32 s72, s72, 16
s_lshl_b32 s73, s{sH}, 1
s_add_u32 s73, s73, s{sQD}
s_lshl_b32 s74, s73, 7
s_add_u32 s72, s72, s74
""")
for i in range(8):
    cb = 2*(i&1) + 16*(i>>1)
    A(f"s_mov_b32 m0, s71\ns_add_u32 s74, s72, {cb*65536}")
    dma(12, RA, 74)
    A(f"s_add_u32 s71, s71, 8192")
    if i < OPT['tslow']: A("s_waitcnt vmcnt(0)")
wide_voffset(14)
A(f"""
s_mul_i32 s73, s73, {64*1152}
s_lshl_b32 s71, s67, 3
s_add_u32 s71, s71, s68
s_lshl_b32 s71, s71, 10
s_add_u32 s71, s71, {BIG+65536}
s_mul_i32 s72, s67, {8*1152}
s_lshl_b32 s74, s68, 7
s_add_u32 s72, s72, s74
s_add_u32 s72, s72, s73
""")
wide_dma(4, RB)
A(f"""
s_mul_i32 s72, s{sW}, {8*1152}
s_add_u32 s72, s72, s73
s_add_u32 s72, s72, 1024
s_lshl_b32 s71, s{sW}, 10
s_add_u32 s71, s71, {BIG+131072}
s_mov_b32 m0, s71
""")
dma(14, RB, 72)
wide_frag_addrs(BIG+131072, 65536)
A(f"v_lshl_add_u32 v19, v4, 10, v{vTR}\nv_add_u32 v19, {BIG}, v19")
t_setup()
ST(5, 3)
A("s_waitcnt vmcnt(9)\ns_barrier")
for kp in range(16):
    A(f"ds_read_b64_tr_b16 {vr(vUV+4*kp,2)}, v19 offset:{kp*4096}")
    A(f"ds_read_b64_tr_b16 {vr(vUV+4*kp+2,2)}, v19 offset:{kp*4096+512}")
    if kp % 6 == 5: A("s_waitcnt lgkmcnt(4)")
A("s_waitcnt vmcnt(0) lgkmcnt(2)")
ST(6, 3)
A("s_barrier")
wide_frag_reads(vWO, 2)
fin_setup()
t_tail(2, "L_u")

A("L_T:")
A(f"s_mul_i32 s{sSL}, s{sX}, 7\ns_add_u32 s{sSL}, s{sSL}, 6")
ST(1, 3)
srd(52, P_WUV, 512*8192)
srd(56, P_WO, 4096*1152)
A(f"""
s_lshl_b32 s71, s70, 1
s_add_u32 s71, s71, s67
s_lshl_b32 s71, s71, 1
s_add_u32 s71, s71, s69
s_lshl_b32 s71, s71, 10
s_add_u32 s71, s71, {BIG}
s_lshl_b32 s72, s70, 2
s_add_u32 s72, s72, s67
s_lshl_b32 s72, s72, 16
s_lshl_b32 s73, s{sH}, 8
s_lshl_b32 s74, s69, 7
s_add_u32 s73, s73, s74
s_add_u32 s72, s72, s73
""")
for i in range(16):
    cb = 2*((i>>1)&1) + 8*(i&1) + 16*(i>>2)
    A(f"s_mov_b32 m0, s71\ns_add_u32 s74, s72, {cb*65536}")
    dma(12, RA, 74)
    A(f"s_add_u32 s71, s71, 8192")
    if i < OPT['Tslow']: A("s_waitcnt vmcnt(0)")
wide_voffset(14)
A(f"""
s_mul_i32 s66, s{sH}, {128*1152}
s_lshl_b32 s71, s68, 2
s_add_u32 s71, s71, s67
s_mul_i32 s72, s71, {8*1152}
s_add_u32 s72, s72, s66
s_add_u32 s72, s72, 1024
s_lshl_b32 s71, s71, 10
s_add_u32 s71, s71, {BIG+131072}
s_mov_b32 m0, s71
s_add_u32 s71, s71, 2048
""")
dma(14, RB, 72)
A(f"s_add_u32 s72, s72, {16*1152}\ns_mov_b32 m0, s71")
dma(14, RB, 72)
vST = 176
A(f"""
s_mul_i32 s72, s67, {8*1152}
s_lshl_b32 s74, s68, 7
s_add_u32 s72, s72, s74
s_add_u32 s72, s72, s66
s_barrier
""")
for i in range(4):
    A(f"buffer_load_dwordx4 {vr(vST+8*i,4)}, v14, {RB}, s72 offen nt")
    A(f"buffer_load_dwordx4 {vr(vST+8*i+4,4)}, v14, {RB}, s72 offen offset:512 nt")
    A(f"s_add_u32 s72, s72, {16*1152}")
A(f"v_add_u32 v17, 0x10000, v16")
ST(2, 3)
A("s_waitcnt vmcnt(10)")
ST(3, 3)
A("s_barrier")
for kp in range(16):
    a = 16 if kp < 8 else 17
    A(f"ds_read_b64_tr_b16 {vr(vUV+4*kp,2)}, v{a} offset:{(kp&7)*8192}")
    A(f"ds_read_b64_tr_b16 {vr(vUV+4*kp+2,2)}, v{a} offset:{(kp&7)*8192+512}")
    if kp % 6 == 5: A("s_waitcnt lgkmcnt(4)")
A(f"""
s_lshl_b32 s71, s67, 3
s_add_u32 s71, s71, s68
s_lshl_b32 s71, s71, 10
s_add_u32 s71, s71, {BIG}
v_add_u32 v19, s71, v9
s_add_u32 s71, s71, 65536
s_waitcnt lgkmcnt(0)
s_barrier
""")
ST(4, 3)
wide_dma(4, RB)
for i in range(8):
    A(f"s_waitcnt vmcnt({15-i})")
    A(f"ds_write_b128 v19, {vr(vST+4*i,4)} offset:{(i>>1)*16384+(i&1)*4096}")
wide_frag_addrs(BIG+131072, 0)
t_setup()
ST(5, 3)
A("s_waitcnt vmcnt(0) lgkmcnt(0)")
ST(6, 3)
A("s_barrier")
wide_frag_reads(vWO, 4)
t_tail(4, "L_t")

A("L_F:")
ST(1, 3)
DNB = BIG + 72*1024
srd(56, P_WD, 4608*1152)
wide_voffset(14)
A(f"""
s_mov_b32 s40, s71
s_mov_b32 s41, s72
s_mul_i32 s73, s{sU}, {64*1152}
s_lshl_b32 s71, s67, 3
s_add_u32 s71, s71, s68
s_lshl_b32 s71, s71, 10
s_add_u32 s71, s71, {DNB}
s_mul_i32 s72, s67, {8*1152}
s_lshl_b32 s74, s68, 7
s_add_u32 s72, s72, s74
s_add_u32 s72, s72, s73
""")
wide_dma(4, RB, OPT['fslow'])
A(f"""
s_mul_i32 s72, s{sW}, {8*1152}
s_add_u32 s72, s72, s73
s_add_u32 s72, s72, 1024
s_lshl_b32 s71, s{sW}, 10
s_add_u32 s71, s71, {DNB+65536}
s_mov_b32 m0, s71
""")
dma(14, RB, 72)
xn_frags()
A("s_mov_b32 s71, s40\ns_mov_b32 s72, s41\ns_barrier")
for i in range(9):
    gu_dma(i)
    if i < OPT['gslow']: A('s_waitcnt vmcnt(0)')
wide_frag_addrs(DNB+65536, DNB-BIG)
A("s_waitcnt vmcnt(9)\ns_barrier")
vWD = 144
wide_frag_reads(vWD, 2)
A("s_waitcnt lgkmcnt(0)\ns_barrier")
for i in range(9, 15): gu_dma(i)
A(f"""
v_min_u32 v140, 35, v{vL}
v_lshlrev_b32 v140, 7, v140
s_mov_b32 s66, {WS_PF}
s_cmp_lg_u32 s{sW}, 7
s_cbranch_scc1 L_f_np
buffer_load_dword v141, v140, {WS}, s66 offen sc1
L_f_np:
s_barrier
""")
for i in range(15, 18): gu_dma(i)
A(f"""
v_lshrrev_b32 v19, 1, v6
v_lshrrev_b32 v21, 1, v5
v_and_b32 v22, 1, v4
v_lshl_or_b32 v21, v22, 1, v21
v_lshl_or_b32 v21, v19, 2, v21
v_xor_b32 v21, s{sW}, v21
v_lshlrev_b32 v21, 4, v21
v_lshl_add_u32 v21, v5, 7, v21
v_and_b32 v22, 1, v6
v_lshl_add_u32 v21, v22, 3, v21
v_lshl_add_u32 v21, v19, 10, v21
v_lshl_add_u32 v21, v4, 11, v21
v_add_u32 v21, {BIG}, v21
v_add_u32 v22, {8*8192}, v21
v_add_u32 v23, {16*8192}, v21
s_lshl_b32 s72, s{sU}, 7
s_add_u32 s72, s72, {WS_H5+56*128}
""")
publish_setup(TS)
def k_steps(k0, k1):
    D = 6
    def rd(k):
        d = vG + 4*(k % 8)
        A(f"ds_read_b64_tr_b16 {vr(d,2)}, v{21+(k>>3)} offset:{(k&7)*8192}")
        A(f"ds_read_b64_tr_b16 {vr(d+2,2)}, v{21+(k>>3)} offset:{(k&7)*8192+512}")
    for k in range(k0, min(k1, k0+D)): rd(k)
    for k in range(k0, k1):
        A(f"s_waitcnt lgkmcnt({2*min(D-1, k1-1-k)})")
        mf16(vD, vG+4*(k % 8), vXN+4*k, k == 0)
        if k + D < k1: rd(k + D)
ST(2, 3)
A("s_waitcnt vmcnt(3)")
ST(3, 3)
A("s_barrier")
k_steps(0, 15)
A(f"""
s_cmp_lg_u32 s{sW}, 7
s_cbranch_scc1 L_f_pd
s_mov_b32 s77, 0
L_f_pp:
v_cmp_ne_u32 vcc, s{sT}, v141
s_add_u32 s77, s77, 1
s_cbranch_vccz L_f_pd
s_cmp_ge_u32 s77, {POLL_MAX}
s_cbranch_scc1 L_f_pd
buffer_load_dword v141, v140, {WS}, s66 offen sc1
s_waitcnt vmcnt(0)
s_branch L_f_pp
L_f_pd:
v_mul_u32_u24 v17, {HBS}, v6
v_lshl_add_u32 v16, v4, 3, v17
s_lshl_b32 s74, s{sW}, 4
v_add_u32 v16, s74, v16
v_lshl_add_u32 v17, v4, 4, v17
""")
masked_addrs(17, HB)
A("s_waitcnt vmcnt(0)")
ST(1); ST(7, 3)
A("s_barrier")
k_steps(15, 18)
for j in range(4): A(f"v_mov_b32 v{24+j}, v{vD+j}")
for j in range(4): A(f"v_permlane32_swap_b32 v{vD+j}, v{24+j}")
C1 = -2.0*math.sqrt(2.0/math.pi)*LOG2E
A(f"s_mov_b32 s74, {fbits(0.044715)}\ns_mov_b32 s75, {fbits(C1)}")
for j in range(4): rb16(vD+j, vD+j); rb16(24+j, 24+j)
for j in range(4): A(f"v_mul_f32 v{104+j}, v{vD+j}, v{vD+j}")
for j in range(4): A(f"v_fma_f32 v{104+j}, v{104+j}, s74, 1.0")
for j in range(4): A(f"v_mul_f32 v{104+j}, v{104+j}, v{vD+j}")
for j in range(4): A(f"v_mul_f32 v{104+j}, s75, v{104+j}")
for j in range(4): A(f"v_exp_f32 v{104+j}, v{104+j}")
for j in range(4): A(f"v_add_f32 v{104+j}, 1.0, v{104+j}")
for j in range(4): A(f"v_rcp_f32 v{104+j}, v{104+j}")
for j in range(4): A(f"v_mul_f32 v{vD+j}, v{vD+j}, v{104+j}")
for j in range(4): rb16(vD+j, vD+j)
for j in range(4): A(f"v_mul_f32 v{vD+j}, v{vD+j}, v{24+j}")
A(f"""
v_cvt_pk_bf16_f32 v24, v{vD}, v{vD+1}
v_cvt_pk_bf16_f32 v25, v{vD+2}, v{vD+3}
s_mov_b64 exec, 0x000f000f
ds_write_b64 v16, v[24:25] offset:{HB}
s_mov_b64 exec, -1
s_waitcnt lgkmcnt(0)
s_barrier
""")
wide_gemm(vWD, 2, 104, HB, TS, "L_fg")
ST(2)
finish()

QA = 131072
PB = QA+2048
sLOC = 64
A("L_att:")
lane_consts()
if OPT['exp'] == 1: A("s_waitcnt lgkmcnt(0)\ns_branch L_end")
A(f"s_cmp_ge_u32 s{sW}, 4\ns_cbranch_scc1 L_att_hi")
A(f"""
s_lshl_b32 s68, s{sK}, 18
s_lshl_b32 s69, s{sX}, 10
s_add_u32 s68, s68, s69
s_lshl_b32 s69, s{sW}, 16
s_add_u32 s68, s68, s69
s_waitcnt lgkmcnt(0)
s_load_dword s{sE}, s[48:49], 0
""")
if OPT['adel']: A("s_waitcnt lgkmcnt(0)")
for i in range(8):
    A(f"buffer_load_dwordx4 v[248:251], v9, {RC}, s68 offen")
    if i < 7: A("s_add_u32 s68, s68, 8192")
A(f"""
v_and_b32 v11, 2, v2
v_lshlrev_b32 v11, 1, v11
v_lshrrev_b32 v10, 2, v2
v_or_b32 v11, v11, v10
v_xor_b32 v11, v11, v3
v_lshlrev_b32 v11, 4, v11
v_lshl_add_u32 v10, v2, 10, v11
v_xor_b32 v11, 32, v10
s_lshl_b32 s70, s{sX}, 4
s_add_u32 s70, s70, s{sK}
s_lshl_b32 s66, s70, 17
s_lshl_b32 s67, s{sW}, 15
s_add_u32 s66, s66, s67
""")
srd(52, P_CKV, 4*4096*1024)
if OPT['ukw'] < 8: A(f"s_waitcnt vmcnt({OPT['ukw']})")
ST(2, 2)
for lb in range(8):
    if lb in (1, 2, 4, 6): ST({1:3,2:4,4:5,6:6}[lb], 2)
    if lb == OPT['gbar']: A("s_barrier")
    for rbi in range(4):
        A(f"s_add_u32 s68, s67, {(rbi*8+lb)*1024}\ns_mov_b32 m0, s68\ns_add_u32 s69, s66, {rbi*8192+lb*128}")
        dma(10 + (rbi & 1), RA, 69)
if OPT['gbar'] == 8: A("s_barrier")
ST(7, 2)
if OPT['stamps'] in (2, 3):
    A("s_waitcnt vmcnt(0)")
    ST(9, 2); ST(7, 3)
if OPT['exp'] == 2: A("s_branch L_end")
A(f"""
v_and_b32 v11, 2, v{vL}
v_lshlrev_b32 v11, 1, v11
v_or_b32 v11, v11, v5
v_lshrrev_b32 v12, 5, v{vL}
v_xor_b32 v11, v11, v12
v_lshlrev_b32 v11, 4, v11
v_lshl_add_u32 v11, v3, 7, v11
v_and_b32 v13, 3, v2
v_lshl_add_u32 v11, v13, 13, v11
v_add_u32 v16, s67, v11
v_add_u32 v20, {QA}, v11
""")
for t in range(1, 4): A(f"v_xor_b32 v{16+t}, {t<<5}, v16\nv_xor_b32 v{20+t}, {t<<5}, v20")
A(f"""
v_and_b32 v13, 31, v{vL}
v_lshlrev_b32 v13, 5, v13
v_add_u32 v13, {QA}, v13
s_lshl_b32 s68, s{sW}, 3
v_lshl_add_u32 v14, v12, 2, v13
v_add_u32 v14, s68, v14
s_lshl_b32 s68, s{sW}, 11
s_add_u32 s68, s68, {PB}
v_add_u32 v15, s68, v9
s_waitcnt lgkmcnt(0)
""")
get_tag()
def pretouch(fl):
    A(f"s_mov_b32 exec_hi, 0\nbuffer_load_dwordx4 v[248:251], v9, {WS}, s75 offen {fl}\ns_mov_b64 exec, -1")
    for i in range(8):
        A(f"buffer_load_dwordx4 v[248:251], v9, {WS}, s{76 if i < 4 else 78} offen offset:{(i&3)*1024} {fl}")
vS = 32; vAf = 128; vBf = 64; DEP = 8
for t in range(32):
    if t & 3 == 0: A(f"s_waitcnt vmcnt({28-t}) lgkmcnt(8)")
    A(f"ds_read_b128 {vr(vAf+4*t,4)}, v{16+(t&3)} offset:{(t>>2)*1024}")
A("s_waitcnt lgkmcnt(0)\ns_setprio 2")
ST(1)
A("s_barrier")
ST(2)
def qk_read(t): A(f"ds_read_b128 {vr(vBf+4*(t % DEP),4)}, v{20+(t&3)} offset:{(t>>2)*1024}")
for t in range(DEP): qk_read(t)
for t in range(32):
    A(f"s_waitcnt lgkmcnt({min(DEP-1, 31-t)})")
    mf32(vS, vAf+4*t, vBf+4*(t % DEP), t == 0)
    if t + DEP < 32: qk_read(t + DEP)
ST(3)
A("s_barrier")
A(f"v_max3_f32 v24, v{vS}, v{vS+1}, v{vS+2}\nv_max3_f32 v25, v{vS+3}, v{vS+4}, v{vS+5}\nv_max3_f32 v26, v{vS+6}, v{vS+7}, v{vS+8}")
A(f"v_max3_f32 v27, v{vS+9}, v{vS+10}, v{vS+11}\nv_max3_f32 v28, v{vS+12}, v{vS+13}, v{vS+14}")
A(f"v_max3_f32 v24, v24, v25, v26\nv_max3_f32 v27, v27, v28, v{vS+15}\nv_max_f32 v24, v24, v27")
A(f"ds_write_b32 v14, v24\ns_waitcnt lgkmcnt(0)\ns_barrier")
A(f"""
ds_read_b128 v[24:27], v13
ds_read_b128 v[28:31], v13 offset:16
s_waitcnt lgkmcnt(0)
v_max3_f32 v24, v24, v25, v26
v_max3_f32 v28, v28, v29, v30
v_max3_f32 v24, v24, v27, v31
v_max_f32 v24, v24, v28
""")
for hlf in range(2):
    for i in range(8): A(f"v_sub_f32 v{vS+8*hlf+i}, v{vS+8*hlf+i}, v24")
    for i in range(8): A(f"v_exp_f32 v{vS+8*hlf+i}, v{vS+8*hlf+i}")
    for i in range(4): A(f"v_cvt_pk_bf16_f32 v{48+4*hlf+i}, v{vS+8*hlf+2*i}, v{vS+8*hlf+2*i+1}")
    A(f"ds_write_b128 v15, {vr(48+4*hlf,4)} offset:{1024*hlf}")
for step in (8, 4, 2, 1):
    for i in range(step): A(f"v_add_f32 v{vS+i}, v{vS+i}, v{vS+i+step}")
A(f"ds_write_b32 v14, v{vS} offset:1024\ns_waitcnt lgkmcnt(0)")
ST(4)
A("s_setprio 0\ns_barrier")
A("s_branch L_red")

A("L_att_hi:")
if OPT['prio']: A("s_setprio 2")
if OPT['pf']:
    A(f"""
    s_getpc_b64 s[66:67]
    L_pc:
    s_sub_u32 s66, s66, L_pc-{NAME}_kernel
    s_subb_u32 s67, s67, 0
    v_subrev_u32 v10, 256, v0
    v_lshlrev_b32 v10, 7, v10
    v_cmp_gt_u32 vcc, L_exit-{NAME}_kernel, v10
    s_and_saveexec_b64 s[68:69], vcc
    s_cbranch_execz L_nopf
    global_load_dword v255, v10, s[66:67]
    L_nopf:
    s_mov_b64 exec, -1
    """)
A(f"""
s_sub_u32 s66, s{sW}, 4
s_lshl_b32 s67, s{sX}, 15
s_lshl_b32 s68, s{sK}, 11
s_add_u32 s68, s68, s67
s_add_u32 s69, s68, {WS_H1L}
s_waitcnt lgkmcnt(0)
s_load_dword s{sE}, s[48:49], 0
s_cmp_lg_u32 s66, 1
s_cbranch_scc1 L_h_b
buffer_load_dwordx4 v[248:251], v9, {WS}, s69 offen
buffer_load_dwordx4 v[248:251], v9, {WS}, s69 offen offset:1024
L_h_b:
""")
if OPT['wqh']:
    A(f"""
    s_cmp_lt_u32 s66, 2
    s_cbranch_scc1 L_h_c
    s_lshr_b32 s68, s{sK}, 2
    s_mul_i32 s68, s68, 144
    s_and_b32 s69, s{sK}, 3
    s_lshl_b32 s69, s69, 2
    s_add_u32 s68, s68, s69
    s_lshl_b32 s69, s66, 1
    s_add_u32 s68, s68, s69
    s_add_u32 s68, s68, 124
    s_lshl_b32 s68, s68, 13
    s_lshl_b32 s69, s{sX}, 10
    s_add_u32 s68, s68, s69
    s_add_u32 s69, s68, 8192
    buffer_load_dwordx4 v[248:251], v9, {RB}, s68 offen
    buffer_load_dwordx4 v[248:251], v9, {RB}, s69 offen
    L_h_c:
    """)
A(f"""
s_lshr_b32 s67, s{sX}, 1
s_lshl_b32 s67, s67, 15
s_lshl_b32 s68, s66, 13
s_add_u32 s67, s67, s68
s_add_u32 s67, s67, {WS_H2}
s_and_b32 s69, s66, 1
s_lshl_b32 s69, s69, 1
v_xor_b32 v10, s69, v3
v_lshlrev_b32 v10, 4, v10
v_lshl_add_u32 v10, v2, 10, v10
s_add_u32 s68, s68, {QA}
v_add_u32 v16, s68, v10
v_xor_b32 v17, 64, v16
v_xor_b32 v18, 16, v16
v_xor_b32 v19, 80, v16
v_lshrrev_b32 v12, 5, v{vL}
v_and_b32 v13, 1, v4
v_lshrrev_b32 v14, 1, v6
v_lshl_or_b32 v13, v13, 1, v14
v_and_b32 v14, 2, v5
v_lshl_or_b32 v14, v14, 1, v12
v_xor_b32 v13, v13, v14
v_lshlrev_b32 v13, 4, v13
v_lshl_add_u32 v13, v5, 7, v13
v_lshl_add_u32 v13, v12, 9, v13
v_and_b32 v14, 1, v6
v_lshl_add_u32 v13, v14, 3, v13
s_lshl_b32 s68, s66, 11
v_add_u32 v20, s68, v13
v_xor_b32 v21, 32, v20
v_xor_b32 v22, 64, v20
v_xor_b32 v23, 96, v20
""")
for j in range(4): A(f"v_add_u32 v{24+j}, 0x10000, v{20+j}")
A(f"s_getreg_b32 s65, hwreg(HW_REG_XCC_ID, 0, 4)\ns_lshl_b32 s72, s{sX}, 11\ns_add_u32 s72, s72, {WS_XT}\ns_waitcnt lgkmcnt(0)")
get_tag()
A(f"""
s_cmp_lg_u32 s66, 0
s_cbranch_scc1 L_noxt
s_lshl_b32 s68, s{sK}, 7
s_add_u32 s68, s68, s72
v_mov_b32 v28, s65
v_mov_b32 v29, s{sT}
v_lshlrev_b32 v30, 3, v{vL}
s_mov_b64 exec, 0xffff
buffer_store_dwordx2 v[28:29], v30, {WS}, s68 offen sc1
s_mov_b64 exec, -1
L_noxt:
""")
A(f"""
s_add_u32 s72, s48, s72
s_addc_u32 s73, s49, 0
s_lshl_b32 s74, s{sX}, 13
s_lshl_b32 s75, s66, {8 if OPT['cpq'] else 11}
s_add_u32 s74, s74, s75
s_add_u32 s74, s74, {WS_PQ}
s_add_u32 s74, s48, s74
s_addc_u32 s75, s49, 0
s_mov_b32 s77, 0
s_sleep 32
""")
if OPT['local']:
    A(f"s_cmp_lg_u32 s66, 0\ns_cbranch_scc1 L_nx\nL_nxp:\ns_mov_b32 s{sLOC}, 0\ns_mov_b32 s76, 0")
    for hlf in range(2):
        for i in range(8): A(f"s_load_dwordx2 s[{16+16*hlf+2*i if hlf == 0 or i < 4 else 52+2*(i-4)}:{17+16*hlf+2*i if hlf == 0 or i < 4 else 53+2*(i-4)}], s[72:73], {(8*hlf+i)*128} glc")
    A("s_waitcnt lgkmcnt(0)")
    for r in list(range(16, 40, 2)) + list(range(52, 60, 2)):
        A(f"s_xor_b32 s{r}, s{r}, s65\ns_or_b32 s{sLOC}, s{sLOC}, s{r}\ns_xor_b32 s{r+1}, s{r+1}, s{sT}\ns_or_b32 s76, s76, s{r+1}")
    A(f"s_or_b32 s{sLOC}, s{sLOC}, s76\ns_add_u32 s77, s77, 1\ns_cmp_ge_u32 s77, 8\ns_cbranch_scc1 L_nx\ns_cmp_lg_u32 s76, 0\ns_cbranch_scc1 L_nxp\nL_nx:")
A(f"""
L_xp:
s_sleep {OPT['psl']}
s_mov_b32 s76, 0
""")
if OPT['cpq']:
    A("s_load_dwordx8 s[16:23], s[74:75], 0 glc\ns_load_dwordx8 s[24:31], s[74:75], 128 glc\ns_waitcnt lgkmcnt(0)")
else:
    for i in range(16): A(f"s_load_dword s{16+i}, s[74:75], {i*128} glc")
    A("s_waitcnt lgkmcnt(0)")
for i in range(16): A(f"s_xor_b32 s{16+i}, s{16+i}, s{sT}\ns_or_b32 s76, s76, s{16+i}")
A(f"""
s_add_u32 s77, s77, 1
s_cmp_ge_u32 s77, {POLL_MAX}
s_cbranch_scc1 L_xd
s_cmp_lg_u32 s76, 0
s_cbranch_scc1 L_xp
L_xd:
""")
ST(6, 2)
if OPT['gbar'] <= 8: A("s_barrier")
if OPT['exp'] == 2: A("s_branch L_end")
ST(9)
vQ = 32
A(f"s_mov_b32 s76, 0xff\ns_mov_b32 s77, 0\ns_add_u32 s69, s67, 4096\nL_h2poll:")
for i in range(8):
    A(f"s_bitcmp1_b32 s76, {i}\ns_cbranch_scc0 L_h2i{i}")
    A(f"buffer_load_dwordx4 {vr(vQ+4*i,4)}, v9, {WS}, s{67 if i < 4 else 69} offen offset:{(i&3)*1024} sc1")
    A(f"L_h2i{i}:")
A(f"s_add_u32 s77, s77, 1\ns_cmp_eq_u32 s77, 1\ns_cbranch_scc1 L_h2first\ns_waitcnt vmcnt(0)\nL_h2first:")
for i in range(8):
    var = ((i >> 1) & 1) + 2*((i >> 2) & 1)
    q = vQ+4*i
    A(f"s_bitcmp1_b32 s76, {i}\ns_cbranch_scc0 L_h2c{i}")
    A(f"s_waitcnt vmcnt({7-i})")
    A(f"v_max3_u32 v28, v{q}, v{q+1}, v{q+2}\nv_max_u32 v28, v28, v{q+3}\nds_write_b128 v{16+var}, {vr(q,4)} offset:{i*128}\nv_cmp_eq_u32 vcc, -1, v28")
    A(f"s_cbranch_vccnz L_h2c{i}\ns_bitset0_b32 s76, {i}\nL_h2c{i}:")
A(f"""
s_waitcnt lgkmcnt(0)
s_cmp_ge_u32 s77, {POLL_MAX}
s_cbranch_scc1 L_h2done
s_cmp_eq_u32 s76, 0
s_cbranch_scc1 L_h2done
s_sleep {OPT['rsleep']}
s_branch L_h2poll
L_h2done:
""")
ST(1)
if OPT['prio']: A("s_setprio 0")
A(f"""
s_lshl_b32 s70, s{sX}, 4
s_add_u32 s70, s70, s{sK}
s_lshl_b32 s76, s70, 15
s_lshl_b32 s71, s66, 13
s_add_u32 s76, s76, s71
s_add_u32 s76, s76, {WS_H3A}
s_add_u32 s78, s76, 4096
s_lshl_b32 s75, s70, 11
s_lshl_b32 s71, s66, 9
s_add_u32 s75, s75, s71
s_add_u32 s75, s75, {WS_FLG}
s_barrier
""")
vV = 96; vO = 32
def vfrag(f, tau): return vV + 4*(f*4 + tau)
PR = [224+4*f for f in range(6)] + [16, 252]
def pv_reads(f):
    for tau in range(4):
        for jj in range(2):
            a = (20 if f < 4 else 24) + jj + 2*(tau & 1)
            off = (f & 3)*16384 + jj*8192 + (tau >> 1)*1024
            A(f"ds_read_b64_tr_b16 {vr(vfrag(f,tau)+2*jj,2)}, v{a} offset:{off}")
if OPT['local'] and not OPT['nopt']: pretouch("")
for f in range(8):
    if f: A("s_waitcnt lgkmcnt(6)")
    pv_reads(f)
A("s_barrier")
ST(2)
A(f"""
v_mov_b32 v15, {QA+12288}
s_cmp_lg_u32 s66, 0
s_cbranch_scc1 L_nl
v_mov_b32 v28, s{sLOC}
ds_write_b32 v15, v28
L_nl:
s_barrier
""")
A(f"""
v_add_u32 v10, {PB}, v9
v_and_b32 v13, 31, v{vL}
v_lshlrev_b32 v14, 5, v13
v_add_u32 v14, {QA}, v14
v_lshlrev_b32 v13, 4, v13
v_lshl_add_u32 v11, v12, 16, v13
s_lshl_b32 s68, s{sX}, 19
s_lshl_b32 s69, s{sK}, 11
s_add_u32 s68, s68, s69
s_lshl_b32 s70, s66, 9
s_add_u32 s68, s68, s70
s_add_u32 s68, s68, {WS_H3A}
s_lshl_b32 s71, s{sX}, 15
s_add_u32 s71, s71, s69
s_add_u32 s71, s71, s70
s_add_u32 s71, s71, {WS_FLG}
s_waitcnt lgkmcnt(0)
s_setprio {2 if OPT['pvp'] else 0}
s_barrier
""")
ST(3)
for f in range(8): A(f"ds_read_b128 {vr(PR[f],4)}, v10 offset:{f*1024}")
A(f"ds_read_b128 v[20:23], v14\nds_read_b128 v[24:27], v14 offset:16")
for f in range(8):
    A(f"s_waitcnt lgkmcnt({9-f if f < 6 else 11-f})")
    for tau in range(4): mf32(vO+16*tau, PR[f], vfrag(f,tau), f == 0)
    if f == 5:
        A(f"""
        s_waitcnt lgkmcnt(0)
        v_max3_f32 v20, v20, v21, v22
        v_max3_f32 v24, v24, v25, v26
        v_max3_f32 v20, v20, v23, v27
        v_max_f32 v20, v20, v24
        ds_read_b128 v[24:27], v14 offset:1024
        ds_read_b128 v[28:31], v14 offset:1040
        ds_read_b32 v15, v15
        """)
A(f"""
s_waitcnt lgkmcnt(0)
v_add_f32 v24, v24, v25
v_add_f32 v26, v26, v27
v_add_f32 v28, v28, v29
v_add_f32 v30, v30, v31
v_add_f32 v24, v24, v26
v_add_f32 v28, v28, v30
v_add_f32 v22, v24, v28
v_mov_b32 v21, s{sT}
v_mov_b32 v23, s{sT}
""")
if OPT['local']:
    A(f"""
    v_readfirstlane_b32 s{sLOC}, v15
    s_cmp_lg_u32 s{sLOC}, 0
    """)
ST(4)
def pv_store(flag):
    for n, i in enumerate(range(0, 16, 2)):
        d = vV + 4*n
        A(f"v_cvt_pk_bf16_f32 v{d}, v{vO+i}, v{vO+16+i}\nv_cvt_pk_bf16_f32 v{d+1}, v{vO+32+i}, v{vO+48+i}")
        A(f"v_cvt_pk_bf16_f32 v{d+2}, v{vO+i+1}, v{vO+16+i+1}\nv_cvt_pk_bf16_f32 v{d+3}, v{vO+32+i+1}, v{vO+48+i+1}")
        A(f"s_add_u32 s69, s68, {((i&3)//2 + 4*(i>>2))*32768}")
        A(f"buffer_store_dwordx4 {vr(d,4)}, v11, {WS}, s69 offen {flag}")
    A(f"""
    s_waitcnt vmcnt(0)
    s_mov_b32 exec_hi, 0
    buffer_store_dwordx4 v[20:23], v13, {WS}, s71 offen {flag}
    s_mov_b64 exec, -1
    """)
if OPT['local']:
    A(f"s_cbranch_scc1 L_pvfar")
    pv_store("")
    A("L_pvback:")
else:
    pv_store("sc1")
ST(5)

A("L_red:")
A(f"""
s_lshr_b32 s66, s{sW}, 1
s_lshl_b32 s67, s{sX}, 15
s_lshl_b32 s68, s66, 9
s_add_u32 s67, s67, s68
s_lshl_b32 s69, s{sK}, 5
s_add_u32 s67, s67, s69
s_add_u32 s67, s67, {WS_FLG}
v_and_b32 v9, 15, v{vL}
v_and_b32 v10, 1, v4
v_lshlrev_b32 v11, 11, v9
v_lshl_add_u32 v11, v10, 4, v11
s_lshl_b32 s69, s{sX}, 4
s_add_u32 s69, s69, s{sK}
s_lshl_b32 s69, s69, 15
s_lshl_b32 s70, s{sW}, 8
s_add_u32 s69, s69, s70
s_add_u32 s69, s69, {WS_H3A}
v_lshlrev_b32 v12, 11, v4
v_lshl_add_u32 v12, v9, 4, v12
v_and_b32 v13, 1, v3
v_lshlrev_b32 v13, 4, v13
v_mov_b32 v14, 0xffff
v_lshlrev_b32 v14, v13, v14
v_lshrrev_b32 v13, 1, v3
""")
for d in range(4): A(f"v_cmp_eq_u32 vcc, {d}, v13\nv_cndmask_b32 v{16+d}, 0, v14, vcc")
A(f"""
v_lshrrev_b32 v13, 2, v3
v_lshl_add_u32 v15, v13, 4, v4
v_lshlrev_b32 v15, 2, v15
v_lshlrev_b32 v28, 14, v13
v_lshl_add_u32 v28, v6, 5, v28
v_lshl_add_u32 v28, v4, 3, v28
s_lshl_b32 s70, s{sK}, 15
s_lshl_b32 s71, s{sX}, 11
s_add_u32 s70, s70, s71
s_add_u32 s70, s70, {WS_H3B}
s_lshl_b32 s71, s{sW}, 7
s_add_u32 s71, s71, s70
v_lshlrev_b32 v29, 14, v10
v_lshl_add_u32 v29, v9, 3, v29
s_mov_b32 s77, 0
s_mov_b32 exec_hi, 0
L_rpoll:
buffer_load_dwordx4 v[32:35], v11, {WS}, s67 offen sc1
s_add_u32 s77, s77, 1
s_waitcnt vmcnt(0)
v_xor_b32 v33, s{sT}, v33
v_xor_b32 v35, s{sT}, v35
v_or_b32 v33, v33, v35
v_cmp_ne_u32 vcc, 0, v33
s_cmp_ge_u32 s77, {POLL_MAX}
s_cbranch_scc1 L_rdone
s_cbranch_vccnz L_rpoll
L_rdone:
s_mov_b64 exec, -1
""")
ST(6)
for i in range(4):
    A(f"buffer_load_dwordx4 {vr(48+4*i,4)}, v12, {WS}, s69 offen sc1")
    if i < 3: A("s_add_u32 s69, s69, 8192")
A("v_mov_b32 v36, v32")
for r in (8, 4, 2, 1): A(f"v_max_f32_dpp v36, v36, v36 row_ror:{r} {DPPF}")
A("v_sub_f32 v33, v32, v36\nv_exp_f32 v33, v33\nv_mul_f32 v37, v33, v34")
for i in range(4): A(f"ds_bpermute_b32 v{40+i}, v15, v33 offset:{16*i}")
for r in (8, 4, 2, 1): A(f"v_add_f32_dpp v37, v37, v37 row_ror:{r} {DPPF}")
A(f"v_min_u32 v36, -2, v36\nv_min_u32 v37, -2, v37")
A(f"""
s_cmp_lg_u32 s{sW}, 0
s_cbranch_scc1 L_rnostat
s_mov_b32 exec_hi, 0
buffer_store_dwordx2 v[36:37], v29, {WS}, s70 offen offset:1024 sc1
s_mov_b64 exec, -1
L_rnostat:
v_cmp_gt_u32 vcc, 8, v9
s_waitcnt lgkmcnt(0)
""")
for i in range(4): A(f"v_cvt_pk_bf16_f32 v{44+i}, v{40+i}, v{40+i}")
for i in range(4): A(f"v_and_b32 v{80+i}, 0xffff0000, v{44+i}")
for i in range(4): A(f"v_sub_f32 v{80+i}, v{40+i}, v{80+i}")
for i in range(4): A(f"v_cvt_pk_bf16_f32 v{80+i}, v{80+i}, v{80+i}")
for i in range(4): A(f"v_cndmask_b32 v{44+i}, v{80+i}, v{44+i}, vcc")
for i in range(4):
    for d in range(4): A(f"v_and_b32 v{64+4*i+d}, v{44+i}, v{16+d}")
A(f"""
s_cmp_lg_u32 s{sW}, 0
s_cbranch_scc1 L_rw0
s_waitcnt vmcnt(1)
s_branch L_rgo
L_rw0:
s_waitcnt vmcnt(0)
L_rgo:
""")
for i in range(4): mf16(40, 48+4*i, 64+4*i, i == 0)
for j in range(4): A(f"v_add_f32_dpp v{40+j}, v{40+j}, v{40+j} row_ror:8 {DPPF}")
A(f"""
v_cvt_pk_bf16_f32 v44, v40, v41
v_cvt_pk_bf16_f32 v45, v42, v43
v_min_u32 v44, -2, v44
v_min_u32 v45, -2, v45
s_mov_b32 exec_lo, 0x00ff00ff
s_mov_b32 exec_hi, 0x00ff00ff
buffer_store_dwordx2 v[44:45], v28, {WS}, s71 offen sc1
s_mov_b64 exec, -1
""")
ST(7)
if OPT['local'] and OPT['wb']:
    A(f"""
    s_cmp_lg_u32 s{sK}, 0
    s_cbranch_scc1 L_end
    s_waitcnt vmcnt(0)
    s_barrier
    s_cmp_lg_u32 s{sW}, 0
    s_cbranch_scc1 L_end
    buffer_wbl2 sc1
    """)
if OPT['local']:
    finish()
    A("L_pvfar:")
    A("s_nop 7")
    pv_store("sc1")
    A("s_branch L_pvback")

A("L_end:")
if OPT['stamps']:
    A("s_waitcnt vmcnt(0)")
    ST(8)
    A(f"""
    s_waitcnt lgkmcnt(0)
    s_lshl_b32 s66, s2, 3
    s_add_u32 s66, s66, s{sW}
    s_lshl_b32 s66, s66, 6
    s_add_u32 s66, s66, {WS_ST}
    s_getreg_b32 s67, hwreg(HW_REG_XCC_ID)
    s_mov_b64 exec, 1
    v_mov_b32 v8, 0
    """)
    for i in range(3):
        A("\n".join(f"v_mov_b32 v{12+j}, s{80+2*(3*i+j)}" for j in range(3)))
        A(f"v_mov_b32 v15, {['s67','s77','s98'][i]}")
        A(f"buffer_store_dwordx4 v[12:15], v8, {WS}, s66 offen offset:{16*i}")
if OPT['hs'] >= 0:
    if OPT['hr'] == 1: A("s_cmp_ge_u32 s2, 128\ns_cbranch_scc1 L_exit")
    if OPT['hr'] == 3: A(f"s_cmp_ge_u32 s2, 128\ns_cbranch_scc1 L_exit\ns_cmp_ge_u32 s{sW}, 4\ns_cbranch_scc1 L_exit")
    if OPT['hr'] == 4: A(f"s_cmp_ge_u32 s2, 128\ns_cbranch_scc1 L_exit\ns_cmp_lt_u32 s{sW}, 4\ns_cbranch_scc1 L_exit")
    if OPT['hr'] == 2: A("s_cmp_lt_u32 s2, 128\ns_cbranch_scc1 L_exit")
    A(f"s_cmp_eq_u32 s{80+2*OPT['hs']}, 0\ns_cbranch_scc1 L_exit")
    A(f"L_hold2:\ns_memrealtime s[66:67]\ns_waitcnt lgkmcnt(0)\ns_sub_u32 s68, s66, s{80+2*OPT['hs']}\ns_cmp_lt_u32 s68, 4000\ns_cbranch_scc1 L_hold2")
if OPT['hold']:
    A(f"L_hold:\ns_memrealtime s[66:67]\ns_waitcnt lgkmcnt(0)\ns_sub_u32 s68, s66, s80\ns_cmp_lt_u32 s68, {OPT['hold']}\ns_cbranch_scc1 L_hold")
A("L_exit:\ns_endpgm")
A.raw(f""".section .rodata,"a"
.p2align 6
.amdhsa_kernel {NAME}_kernel
  .amdhsa_next_free_vgpr 256
  .amdhsa_next_free_sgpr 102
  .amdhsa_accum_offset 256
  .amdhsa_group_segment_fixed_size 0
  .amdhsa_kernarg_size 104
  .amdhsa_user_sgpr_count 2
  .amdhsa_user_sgpr_kernarg_segment_ptr 1
  .amdhsa_system_sgpr_workgroup_id_x 1
  .amdhsa_float_denorm_mode_32 3
.end_amdhsa_kernel""")
sys.stdout.write(A.text())
sys.stderr.write(f"instructions {A.count} nops {A.nops}\n")
```

```python
import sys, math, struct
from asmx import Asm, NAME

OPT = dict(stamps=0, local=1, hold=0, pf=1, exp=0, gbar=8, rsleep=2, help=7, fslow=3, tslow=0, wb=1, gap=0, prio=1, ukw=0, wqh=1, adel=0, psl=4, cpq=1, hb=1, noclr=0, nopt=0, hslow=0, gslow=0, Tslow=0, areg=1, pvp=1, ckh=0, hs=-1, hr=0)
for a in sys.argv[1:]:
    k, v = a.split("="); assert k in OPT, k; OPT[k] = int(v)

WS_PF  = 0x010000
WS_FF  = 0x020000
WS_XT  = 0x030000
WS_H1  = 0x040000
WS_H1L = 0x0C0000
WS_H2  = 0x080000
WS_PQ  = 0x0A0000
WS_FLG = 0x100000
WS_H3B = 0x140000
WS_H5  = 0x200000
WS_H3A = 0x400000
WS_ST  = 0x800000
POLL_MAX = 60000 if not OPT['exp'] else 40

P_X, P_CKV, P_WQ, P_WUK, P_WUV, P_WO, P_BX, P_WG, P_WU, P_WD, P_OUT, P_DBG = [16+2*i for i in range(12)]
sSL, sF = 40, 41
sE, sT, sW, sX, sK, sH = 42, 43, 44, 45, 46, 47
WS = "s[48:51]"; RA = "s[52:55]"; RB = "s[56:59]"; RC = "s[60:63]"
sQD, sA_ = 64, 65
A = Asm()
HW = '\ns_waitcnt vmcnt(0)' if OPT['hslow'] else ''
NQPART = [True]

def srd(base, ptr, size):
    A(f"s_mov_b32 s{base}, s{ptr}\ns_mov_b32 s{base+1}, s{ptr+1}\ns_mov_b32 s{base+2}, {size}\ns_mov_b32 s{base+3}, 0x20000")
def ST(i, mode=1):
    if OPT['stamps'] == mode or (OPT['stamps'] and i in (0, 8)): A(f"s_memrealtime s[{80+2*i}:{81+2*i}]")
def vr(a, n): return f"v[{a}:{a+n-1}]"
def dma(voff, rsrc, soff, flags="nt"):
    A(f"buffer_load_dwordx4 v{voff}, {rsrc}, s{soff} offen {flags} lds")
def finish(): A("s_branch L_end")
def get_tag():
    A(f"s_add_u32 s{sE}, s{sE}, 1\ns_mul_i32 s{sT}, s{sE}, 0x9E3779B1\ns_xor_b32 s{sT}, s{sT}, 0x5BD1E995")
def rb16(dst, src):
    A(f"v_cvt_pk_bf16_f32 v{dst}, v{src}, v{src}\nv_lshlrev_b32 v{dst}, 16, v{dst}")
DPPF = "row_mask:0xf bank_mask:0xf"
QP1 = "quad_perm:[1,0,3,2] " + DPPF
def wave_sum_to_sgpr(v, s):
    for r in (8, 4, 2, 1): A(f"v_add_f32_dpp v{v}, v{v}, v{v} row_ror:{r} {DPPF}")
    A(f"v_add_f32_dpp v{v}, v{v}, v{v} row_bcast:15 row_mask:0xa bank_mask:0xf")
    A(f"v_add_f32_dpp v{v}, v{v}, v{v} row_bcast:31 row_mask:0xc bank_mask:0xf")
    A(f"v_readlane_b32 s{s}, v{v}, 63")
def fbits(x): return "0x%08x" % struct.unpack("<I", struct.pack("<f", x))[0]
def mf16(d, a, b, first): A(f"v_mfma_f32_16x16x32_bf16 {vr(d,4)}, {vr(a,4)}, {vr(b,4)}, {'0' if first else vr(d,4)}")
def mf32(d, a, b, first): A(f"v_mfma_f32_32x32x16_bf16 {vr(d,16)}, {vr(a,4)}, {vr(b,4)}, {'0' if first else vr(d,16)}")
def ones(v): A("\n".join(f"v_mov_b32 v{v+j}, -1" for j in range(4)))
LOG2E = 1.4426950408889634

A.raw("; @launch grid=(256,1,1) block=(512,1,1) lds=163840")
A.raw('.amdgcn_target "amdgcn-amd-amdhsa--gfx950"')
A.raw(f".text\n.globl {NAME}_kernel\n.p2align 8\n.type {NAME}_kernel,@function\n{NAME}_kernel:")
vL = 1
ST(0)
A(f"""
s_load_dwordx2 s[48:49], s[0:1], 96
s_load_dwordx2 s[52:53], s[0:1], 0
s_load_dwordx2 s[56:57], s[0:1], 16
s_load_dwordx2 s[60:61], s[0:1], 24
s_load_dwordx16 s[16:31], s[0:1], 0
s_load_dwordx8 s[32:39], s[0:1], 64
s_cmp_ge_u32 s2, 256
s_cbranch_scc1 L_exit
v_lshrrev_b32 v2, 6, v0
v_and_b32 v{vL}, 63, v0
v_readfirstlane_b32 s{sW}, v2
s_and_b32 s{sX}, s2, 7
s_lshr_b32 s{sK}, s2, 3
v_lshlrev_b32 v9, 4, v{vL}
s_mov_b32 s50, 0x10000000
s_mov_b32 s51, 0x20000
s_mov_b32 s55, 0x20000
s_mov_b32 s58, {576*8192}
s_mov_b32 s59, 0x20000
s_mov_b32 s62, {512*8192}
s_mov_b32 s63, 0x20000
s_cmp_lt_u32 s2, 128
s_cbranch_scc1 L_att
""")
def lane_consts():
    A(f"v_lshrrev_b32 v2, 3, v{vL}\nv_and_b32 v3, 7, v{vL}\nv_lshrrev_b32 v4, 4, v{vL}\nv_bfe_u32 v5, v{vL}, 2, 2\nv_and_b32 v6, 3, v{vL}\nv_lshlrev_b32 v7, 4, v0\nv_mov_b32 v8, 0")
    if OPT['stamps']:
        for i in range(82, 102): A(f"s_mov_b32 s{i}, 0")

XN, XNS = 0, 1216
QL, QLS = 5120, 320
HB, HBS = 9728, 192
BIG = 16384
vTR = 13
vD = 28
def common_setup():
    lane_consts()
    A(f"""
    s_and_b32 s67, s{sW}, 1
    s_lshl_b32 s68, s67, 2
    v_and_b32 v11, 2, v2
    v_or_b32 v11, s68, v11
    v_xor_b32 v11, v11, v3
    v_lshlrev_b32 v11, 4, v11
    v_lshl_add_u32 v12, v2, 13, v11
    s_lshr_b32 s68, s{sW}, 1
    s_bfe_u32 s69, s{sW}, 0x10001
    s_lshr_b32 s70, s{sW}, 2
    """)
def common_setup2():
    A(f"""
    s_and_b32 s74, s{sW}, 3
    s_lshl_b32 s74, s74, 1
    v_lshrrev_b32 v{vTR}, 1, v6
    v_or_b32 v{vTR}, s74, v{vTR}
    v_and_b32 v14, 2, v5
    v_xor_b32 v{vTR}, v{vTR}, v14
    v_and_b32 v14, 1, v4
    v_lshlrev_b32 v15, 2, v14
    v_xor_b32 v{vTR}, v{vTR}, v15
    v_lshlrev_b32 v{vTR}, 4, v{vTR}
    v_lshl_add_u32 v{vTR}, v5, 7, v{vTR}
    v_and_b32 v15, 1, v6
    v_lshl_add_u32 v{vTR}, v15, 3, v{vTR}
    s_lshl_b32 s74, s70, 10
    s_add_u32 s74, s74, {BIG}
    v_add_u32 v15, s74, v{vTR}
    v_lshl_add_u32 v16, v4, 11, v15
    v_mul_u32_u24 v18, {XNS}, v6
    v_lshl_add_u32 v18, v4, 4, v18
    s_mov_b32 s78, 0x000f000f
    s_mov_b32 s79, 0x000f000f
    """)
def x_loads():
    A(f"""
    s_mul_i32 s66, s{sW}, 1152
    v_lshlrev_b32 v10, 3, v{vL}
    v_lshlrev_b32 v19, 1, v{vL}
    buffer_load_dwordx2 v[20:21], v10, {RA}, s66 offen
    buffer_load_dwordx2 v[22:23], v10, {RA}, s66 offen offset:512
    buffer_load_ushort v24, v19, {RA}, s66 offen offset:1024
    """)
def layernorm():
    e = list(range(56, 65))
    for i in range(4): A(f"v_lshlrev_b32 v{e[2*i]}, 16, v{20+i}\nv_and_b32 v{e[2*i+1]}, 0xffff0000, v{20+i}")
    A(f"""
    v_lshlrev_b32 v{e[8]}, 16, v24
    v_add_f32 v25, v{e[0]}, v{e[1]}
    v_add_f32 v26, v{e[2]}, v{e[3]}
    v_add_f32 v27, v{e[4]}, v{e[5]}
    v_add_f32 v28, v{e[6]}, v{e[7]}
    v_add_f32 v25, v25, v26
    v_add_f32 v27, v27, v28
    v_add_f32 v25, v25, v{e[8]}
    v_add_f32 v25, v25, v27
    """)
    wave_sum_to_sgpr(25, 74)
    A(f"v_mov_b32 v26, {fbits(1.0/576)}\nv_mul_f32 v26, s74, v26")
    A(f"v_sub_f32 v27, v{e[0]}, v26\nv_mul_f32 v25, v27, v27")
    for i in range(1, 9): A(f"v_sub_f32 v27, v{e[i]}, v26\nv_fmac_f32 v25, v27, v27")
    rb16(26, 26)
    for i in range(9): A(f"v_sub_f32 v{e[i]}, v{e[i]}, v26")
    wave_sum_to_sgpr(25, 74)
    A(f"v_mov_b32 v27, {fbits(1.0/576)}\nv_mul_f32 v27, s74, v27")
    rb16(27, 27)
    A(f"v_add_f32 v27, {fbits(1e-5)}, v27")
    rb16(27, 27)
    A("v_sqrt_f32 v27, v27")
    rb16(27, 27)
    A("v_rcp_f32 v27, v27")
    for i in range(0, 8, 2): A(f"v_cvt_pk_bf16_f32 v{20+i//2}, v{e[i]}, v{e[i+1]}")
    A(f"v_cvt_pk_bf16_f32 v24, v{e[8]}, v{e[8]}")
    for i in range(0, 8, 2): A(f"v_lshlrev_b32 v{e[i]}, 16, v{20+i//2}\nv_and_b32 v{e[i+1]}, 0xffff0000, v{20+i//2}")
    A(f"v_lshlrev_b32 v{e[8]}, 16, v24")
    for i in range(9): A(f"v_mul_f32 v{e[i]}, v{e[i]}, v27")
    for i in range(0, 8, 2): A(f"v_cvt_pk_bf16_f32 v{20+i//2}, v{e[i]}, v{e[i+1]}")
    A(f"v_cvt_pk_bf16_f32 v24, v{e[8]}, v{e[8]}")
    A(f"""
    s_mul_i32 s74, s{sW}, {XNS}
    v_add_u32 v10, s74, v10
    v_add_u32 v19, s74, v19
    ds_write_b64 v10, v[20:21] offset:{XN}
    ds_write_b64 v10, v[22:23] offset:{XN+512}
    ds_write_b16 v19, v24 offset:{XN+1024}
    """)
def clear_tail_inbox(vones):
    A(f"s_lshl_b32 s74, s{sH}, 14\ns_add_u32 s74, s74, {WS_H3B}")
    for i in range(4):
        A(f"buffer_store_dwordx4 {vr(vones,4)}, v9, {WS}, s74 offen sc1\nbuffer_store_dwordx4 {vr(vones,4)}, v9, {WS}, s74 offen offset:2048 sc1")
        if i < 3: A("s_add_u32 s74, s74, 4096")
    A(f"s_sub_u32 s74, s74, {3*4096}\nv_lshlrev_b32 v14, 11, v2\nv_lshl_add_u32 v14, v3, 4, v14")
    A(f"buffer_store_dwordx4 {vr(vones,4)}, v14, {WS}, s74 offen offset:1024 sc1")
def proof(sidx):
    A(f"""
    s_lshl_b32 s74, s{sidx}, 7
    s_add_u32 s74, s74, {WS_PF}
    v_mov_b32 v14, s{sT}
    v_lshlrev_b32 v17, 2, v{vL}
    s_mov_b32 exec_hi, 0
    buffer_store_dword v14, v17, {WS}, s74 offen sc1
    s_mov_b64 exec, -1
    """)
vXN, vG = 32, 104
def xn_frags():
    for kp in range(18):
        A(f"ds_read_b128 {vr(vXN+4*kp,4)}, v18 offset:{XN+kp*64}")
        if kp == 11: A("s_waitcnt lgkmcnt(4)")
def k_half(h, va, vb):
    for kp in range(9):
        a, off = (va, kp*8192) if kp < 8 else (vb, 0)
        A(f"ds_read_b64_tr_b16 {vr(vG+4*kp,2)}, v{a} offset:{off}")
        A(f"ds_read_b64_tr_b16 {vr(vG+4*kp+2,2)}, v{a} offset:{off+512}")
        if kp == 5: A("s_waitcnt lgkmcnt(6)")
    for kp in range(9):
        A(f"s_waitcnt lgkmcnt({min(15,2*(8-kp))})")
        mf16(vD, vG+4*kp, vXN+4*(9*h+kp), h == 0 and kp == 0)

QP, QPS = 5120, 272
WQB = BIG + 108*1024
UKB = BIG
sU = 76
def f_setup():
    A(f"""
    s_lshl_b32 s71, s{sA_}, 1
    s_add_u32 s71, s71, s{sQD}
    s_cmp_eq_u32 s{sA_}, 3
    s_cselect_b32 s72, 1, 2
    s_sub_u32 s71, s71, s72
    s_mul_i32 s{sU}, s{sX}, 9
    s_add_u32 s{sU}, s{sU}, s71
    s_cmp_eq_u32 s69, 0
    s_cselect_b32 s60, s{P_WG}, s{P_WU}
    s_cselect_b32 s61, s{P_WG+1}, s{P_WU+1}
    s_mov_b32 s62, {576*9216}
    s_lshl_b32 s72, s67, 1
    s_lshl_b32 s71, s69, 2
    s_or_b32 s72, s72, s71
    v_bfe_u32 v14, v2, 1, 1
    v_or_b32 v14, s72, v14
    v_xor_b32 v14, v14, v3
    v_lshlrev_b32 v14, 4, v14
    v_mul_u32_u24 v12, 9216, v2
    v_add_u32 v12, v12, v14
    s_lshl_b32 s71, s70, 1
    s_add_u32 s71, s71, s67
    s_mul_i32 s72, s71, {8*9216}
    s_lshl_b32 s74, s{sU}, 7
    s_add_u32 s72, s72, s74
    s_lshl_b32 s71, s71, 1
    s_add_u32 s71, s71, s69
    s_lshl_b32 s71, s71, 10
    s_add_u32 s71, s71, {BIG}
    """)
def gu_dma(i):
    A(f"s_mov_b32 m0, s71\ns_add_u32 s71, s71, 8192")
    dma(12, RC, 72)
    A(f"s_add_u32 s72, s72, {32*9216}")
A(f"""
L_nq:
s_bfe_u32 s{sA_}, s2, 0x20005
s_bfe_u32 s{sQD}, s2, 0x20003
s_lshl_b32 s{sH}, s{sX}, 2
s_add_u32 s{sH}, s{sH}, s{sA_}
s_mov_b32 s54, 4608
v_lshrrev_b32 v2, 3, v{vL}
v_and_b32 v3, 7, v{vL}
s_and_b32 s67, s{sW}, 1
s_lshl_b32 s68, s67, 2
v_and_b32 v11, 2, v2
v_or_b32 v11, s68, v11
v_xor_b32 v11, v11, v3
v_lshlrev_b32 v11, 4, v11
v_lshl_add_u32 v12, v2, 13, v11
s_bfe_u32 s69, s{sW}, 0x10001
s_lshr_b32 s70, s{sW}, 2
s_mul_i32 s71, s70, 10
s_add_u32 s71, s71, s67
s_mul_i32 s72, s{sQD}, 18
s_add_u32 s72, s72, s71
s_lshl_b32 s72, s72, 16
s_lshl_b32 s73, s{sH}, 8
s_lshl_b32 s74, s69, 7
s_add_u32 s73, s73, s74
s_add_u32 s72, s72, s73
s_lshl_b32 s71, s71, 1
s_add_u32 s71, s71, s69
s_lshl_b32 s71, s71, 10
s_add_u32 s71, s71, {WQB}
s_mov_b32 m0, s71
s_cmp_lg_u32 s70, 0
s_waitcnt lgkmcnt(0)
s_cbranch_scc1 L_nq_nox
""")
x_loads()
dma(12, RB, 72)
A(f"s_add_u32 s71, s71, 4096\ns_add_u32 s72, s72, {2*65536}\ns_mov_b32 m0, s71\nL_nq_nox:")
for i in range(4):
    A(f"s_add_u32 s71, s71, 4096")
    dma(12, RB, 72)
    if i < 3: A(f"s_add_u32 s72, s72, {2*65536}\ns_mov_b32 m0, s71")
A(f"s_load_dword s{sE}, s[48:49], 0")
lane_consts()
ST(1, 2)
A(f"s_lshr_b32 s68, s{sW}, 1\ns_cmp_ge_u32 s{sQD}, 2\ns_cbranch_scc1 L_nq_fs")
A(f"""
s_lshl_b32 s71, s70, 3
s_add_u32 s71, s71, s67
s_lshl_b32 s72, s{sQD}, 5
s_add_u32 s72, s72, s71
s_lshl_b32 s72, s72, 16
s_add_u32 s72, s72, s73
s_lshl_b32 s71, s71, 1
s_add_u32 s71, s71, s69
s_lshl_b32 s71, s71, 10
s_add_u32 s71, s71, {UKB}
s_cmp_eq_u32 s70, 0
s_cbranch_scc1 L_nq_ln
""")
ones(24)
A(f"""
s_lshl_b32 s75, s{sW}, 12
s_lshl_b32 s74, s{sH}, 14
s_add_u32 s74, s74, s75
s_add_u32 s74, s74, {WS_H3B-16384}
buffer_store_dwordx4 v[24:27], v9, {WS}, s74 offen sc1
buffer_store_dwordx4 v[24:27], v9, {WS}, s74 offen offset:2048 sc1
s_mov_b64 exec, 0xff
buffer_store_dwordx4 v[24:27], v9, {WS}, s74 offen offset:1024 sc1
buffer_store_dwordx4 v[24:27], v9, {WS}, s74 offen offset:3072 sc1
s_lshl_b32 s75, s{sW}, 15
s_lshl_b32 s74, s{sH}, 10
s_add_u32 s74, s74, s75
s_lshl_b32 s75, s{sQD}, 9
s_add_u32 s74, s74, s75
s_add_u32 s74, s74, {WS_H2-4*32768}
s_mov_b32 exec_lo, -1
buffer_store_dwordx4 v[24:27], v9, {WS}, s74 offen sc1
s_mov_b64 exec, -1
s_branch L_nq_noln
L_nq_fs:
""")
f_setup()
A(f"s_cmp_lg_u32 s70, 0\ns_cbranch_scc1 L_nq_noln\nL_nq_ln:\ns_waitcnt vmcnt(5)")
ST(2, 2)
layernorm()
A("L_nq_noln:")
ST(3, 2)
common_setup2()
A(f"""
v_add_u32 v21, {WQB-BIG}, v16
v_and_b32 v14, 1, v4
v_lshl_add_u32 v17, v14, 11, v15
v_add_u32 v17, {WQB-BIG}, v17
s_mul_i32 s74, s{sQD}, 288
v_add_u32 v19, s74, v18
s_lshl_b32 s66, s{sH}, 13
s_add_u32 s66, s66, {WS_H1L}
s_lshl_b32 s75, s{sQD}, 11
s_add_u32 s75, s75, s66
s_lshl_b32 s77, s{sW}, 8
s_add_u32 s75, s75, s77
v_lshlrev_b32 v20, 6, v6
v_lshl_add_u32 v20, v4, 4, v20
v_cmp_gt_u32 vcc, 2, v4
s_cmp_lt_u32 s{sQD}, 2
s_cbranch_scc1 L_nq_uk
s_waitcnt vmcnt(0)
""")
for i in range(OPT['gap']): gu_dma(i)
A(f"""
s_branch L_nq_a
L_nq_uk:
s_waitcnt vmcnt(5)
s_cmp_lg_u32 s70, 0
s_cbranch_scc1 L_nq_uk2
s_waitcnt vmcnt(0)
L_nq_uk2:
""")
for i in range(4):
    A(f"s_mov_b32 m0, s71\ns_add_u32 s71, s71, 4096")
    dma(12, RC, 72)
    A(f"s_add_u32 s72, s72, {2*65536}")
A("L_nq_a:\ns_waitcnt lgkmcnt(0)")
ST(1); ST(5, 2)
A("s_barrier")
vA, vB = 64, 96
for kp in range(5):
    a = 21 if kp < 4 else 17
    A(f"ds_read_b64_tr_b16 {vr(vA+4*kp,2)}, v{a} offset:{kp*8192}")
    A(f"ds_read_b64_tr_b16 {vr(vA+4*kp+2,2)}, v{a} offset:{kp*8192+512}")
    A(f"ds_read_b128 {vr(vB+4*kp,4)}, v19 offset:{XN+kp*64}")
get_tag()
A(f"v_mov_b32 v25, s{sT}\nv_mov_b32 v27, s{sT}")
for kp in range(5):
    A(f"s_waitcnt lgkmcnt({3*(4-kp)})")
    if kp == 4:
        for j in range(4): A(f"v_cndmask_b32 v{vB+16+j}, 0, v{vB+16+j}, vcc")
    mf16(vD, vA+4*kp, vB+4*kp, kp == 0)
H1D = WS_H1L - WS_H1
def pq_addr():
    if OPT['cpq']:
        return f"""v_lshlrev_b32 v55, 13, v{vL}
        s_lshl_b32 s76, s{sX}, 7
        s_lshl_b32 s74, s{sA_}, 3
        s_add_u32 s76, s76, s74
        s_lshl_b32 s74, s{sQD}, 2
        s_add_u32 s76, s76, s74
        s_add_u32 s76, s76, {WS_PQ}"""
    return f"""v_lshlrev_b32 v55, 13, v2
    v_lshl_add_u32 v55, v3, 4, v55
    s_lshl_b32 s76, s{sH}, 8
    s_lshl_b32 s74, s{sQD}, 7
    s_add_u32 s76, s76, s74
    s_add_u32 s76, s76, {WS_PQ}"""
PQST = f"s_mov_b64 exec, 0xff\nbuffer_store_dword v44, v55, {WS}, s76 offen sc1\ns_mov_b64 exec, -1" if OPT['cpq'] else f"buffer_store_dwordx4 v[44:47], v55, {WS}, s76 offen sc1"
A(f"""
v_and_b32 v52, 1, v2
v_and_b32 v53, 2, v3
v_lshl_or_b32 v53, v52, 2, v53
v_xor_b32 v53, v53, v4
v_lshlrev_b32 v53, 4, v53
v_lshl_add_u32 v53, v3, 7, v53
v_lshl_add_u32 v52, v52, 11, v53
v_cvt_pk_bf16_f32 v24, v{vD}, v{vD+1}
v_cvt_pk_bf16_f32 v26, v{vD+2}, v{vD+3}
s_mov_b64 exec, s[78:79]
buffer_store_dwordx4 v[24:27], v20, {WS}, s75 offen
s_sub_u32 s75, s75, {H1D}
s_cmp_lt_u32 s{sQD}, 2
s_cbranch_scc1 L_nq_b
buffer_store_dwordx4 v[24:27], v20, {WS}, s75 offen sc1
s_mov_b64 exec, -1
""")
ST(2); ST(6, 2)
if OPT['ckh']:
    nb = OPT['ckh']
    lpr = 8*nb
    srd(56, P_CKV, 4*4096*1024)
    A(f"""
    s_lshl_b32 s74, s{sA_}, 1
    s_add_u32 s74, s74, s{sQD}
    s_sub_u32 s74, s74, 2
    s_lshl_b32 s74, s74, 3
    s_add_u32 s74, s74, s{sW}
    s_lshl_b32 s74, s74, 15
    s_lshl_b32 s75, s{sX}, 21
    s_add_u32 s74, s74, s75
    v_lshrrev_b32 v48, {int(math.log2(lpr))}, v{vL}
    v_and_b32 v49, {lpr-1}, v{vL}
    v_lshlrev_b32 v48, 10, v48
    v_lshl_add_u32 v48, v49, 4, v48
    s_barrier
    """)
    for i in range(4*nb):
        A(f"buffer_load_dwordx4 v[248:251], v48, {RB}, s74 offen offset:{1024-128*nb}")
        if i < 4*nb-1: A(f"s_add_u32 s74, s74, {(64//lpr)*1024}")
    A("s_branch L_F")
A(f"s_barrier\ns_branch L_F\nL_nq_b:\ns_mov_b64 exec, -1")
ST(2); ST(6, 2)
A(f"s_barrier\ns_add_u32 s71, s71, 16384\ns_add_u32 s72, s72, {8*65536}")
for i in range(4):
    A(f"s_mov_b32 m0, s71\ns_add_u32 s71, s71, 4096")
    dma(12, RC, 72)
    if i < 3: A(f"s_add_u32 s72, s72, {2*65536}")
A(f"""
s_mul_i32 s74, s68, {4*QPS}
s_lshl_b32 s77, s67, 7
s_add_u32 s74, s74, s77
v_mul_u32_u24 v22, {QPS}, v5
v_lshl_add_u32 v22, v4, 5, v22
v_lshl_add_u32 v22, v6, 3, v22
v_add_u32 v22, s74, v22
s_lshl_b32 s77, s{sW}, 13
s_add_u32 s77, s77, {UKB}
v_add_u32 v52, s77, v52
v_xor_b32 v53, 64, v52
v_and_b32 v23, 15, v{vL}
v_mul_u32_u24 v23, {QPS}, v23
v_lshl_add_u32 v23, v4, 4, v23
s_lshl_b32 s72, s{sH}, 10
s_lshl_b32 s74, s{sQD}, 9
s_add_u32 s72, s72, s74
s_lshl_b32 s74, s{sW}, 6
s_add_u32 s72, s72, s74
s_add_u32 s72, s72, {WS_H2}
v_and_b32 v21, 1, v5
v_lshlrev_b32 v54, 15, v6
{pq_addr()}
v_mov_b32 v44, s{sT}
v_mov_b32 v45, s{sT}
v_mov_b32 v46, s{sT}
v_mov_b32 v47, s{sT}
v_lshl_add_u32 v54, v21, 5, v54
v_lshl_add_u32 v54, v4, 3, v54
s_sub_u32 s71, s66, {H1D}
s_mov_b32 s77, 0
L_h1poll:
s_cmp_lg_u32 s77, 6
s_cbranch_scc1 L_h1ng
s_mov_b64 exec, s[78:79]
buffer_store_dwordx4 v[24:27], v20, {WS}, s75 offen sc1
s_mov_b64 exec, -1
L_h1ng:
s_and_b32 s74, s77, 9
s_cmp_eq_u32 s74, 9
s_cselect_b32 s74, s71, s66
buffer_load_dwordx4 v[48:51], v7, {WS}, s74 offen sc1
s_add_u32 s77, s77, 1
s_waitcnt vmcnt(0)
v_xor_b32 v49, s{sT}, v49
v_xor_b32 v51, s{sT}, v51
v_or_b32 v49, v49, v51
v_cmp_ne_u32 vcc, 0, v49
s_cmp_ge_u32 s77, {POLL_MAX}
s_cbranch_scc1 L_h1done
s_cbranch_vccnz L_h1poll
L_h1done:
v_mov_b32 v49, v50
ds_write_b64 v22, v[48:49] offset:{QP}
s_cmp_gt_u32 s77, 6
s_cbranch_scc1 L_h1sent
s_mov_b64 exec, s[78:79]
buffer_store_dwordx4 v[24:27], v20, {WS}, s75 offen sc1
s_mov_b64 exec, -1
L_h1sent:
""")
A(f"L_h1np:\nv_cmp_ne_u32 vcc, 0, v21\ns_waitcnt lgkmcnt(0)")
ST(3); ST(7, 2)
A(f"s_barrier\ns_cmp_lg_u32 s{sW}, 0\ns_cbranch_scc1 L_nopq\n{PQST}\nL_nopq:")
vUK, vD1 = 64, 56
for kp in range(4):
    A(f"ds_read_b128 {vr(vB+4*kp,4)}, v23 offset:{QP+kp*64}")
    for tl in range(2):
        A(f"ds_read_b128 {vr(vUK+16*tl+4*kp,4)}, v{52+(kp&1)} offset:{tl*4096+(kp>>1)*1024}")
A(f"s_mov_b32 s74, {fbits(LOG2E/math.sqrt(128.0))}")
for kp in range(4):
    A(f"s_waitcnt lgkmcnt({9-3*kp+1})")
    mf16(vD, vUK+4*kp, vB+4*kp, kp == 0)
    A(f"s_waitcnt lgkmcnt({9-3*kp})")
    mf16(vD1, vUK+16+4*kp, vB+4*kp, kp == 0)
for j in range(4): A(f"v_cndmask_b32 v{60+j}, v{vD1+j}, v{vD+j}, vcc")
for j in range(4): A(f"v_cndmask_b32 v{vD+j}, v{vD+j}, v{vD1+j}, vcc")
for j in range(4): A(f"v_add_f32_dpp v{vD+j}, v{60+j}, v{vD+j} row_ror:4 {DPPF}")
for j in range(4): A(f"v_add_f32_dpp v{vD+j}, v{vD+j}, v{vD+j} row_ror:8 {DPPF}")
for j in range(4): A(f"v_mul_f32 v{vD+j}, s74, v{vD+j}")
A(f"""
v_cvt_pk_bf16_f32 v48, v{vD}, v{vD+1}
v_cvt_pk_bf16_f32 v49, v{vD+2}, v{vD+3}
v_min_u32 v48, -2, v48
v_min_u32 v49, -2, v49
s_mov_b32 exec_lo, 0x00ff00ff
s_mov_b32 exec_hi, 0x00ff00ff
buffer_store_dwordx2 v[48:49], v54, {WS}, s72 offen sc1
s_mov_b64 exec, -1
""")
ST(4); ST(9, 2)
A(f"""
s_barrier
s_cmp_lt_u32 s{sA_}, 3
s_cbranch_scc1 L_TH
s_cmp_eq_u32 s{sQD}, 0
s_cbranch_scc1 L_T
""")
f_setup()
for i in range(OPT['gap']): gu_dma(i)
A("s_branch L_F")

def wide_voffset(v):
    A(f"v_mul_u32_u24 v{v}, 1152, v2\nv_add_u32 v{v}, v{v}, v11")
ZR = 15360
def publish_setup(stride):
    A(f"""
    s_mul_i32 s74, s{sW}, {stride}
    s_add_u32 s72, s72, s74
    v_mul_u32_u24 v20, {8*stride}, v5
    v_lshl_add_u32 v20, v4, 5, v20
    v_lshl_add_u32 v20, v6, 3, v20
    v_lshlrev_b32 v232, 2, v{vL}
    ds_write_b32 v232, v8 offset:{ZR}
    """)
def masked_addrs(vreal, base):
    A(f"v_mov_b32 v236, {ZR-base}")
    for i in range(4): A(f"v_cmp_eq_u32 vcc, {i}, v5\nv_cndmask_b32 v{232+i}, v236, v{vreal}, vcc")
def wide_dma(n, rsrc, slow=0):
    for i in range(n):
        A(f"s_mov_b32 m0, s71\ns_add_u32 s74, s72, 512")
        dma(14, rsrc, 72)
        if 2*i < slow: A("s_waitcnt vmcnt(0)")
        A(f"s_add_u32 s75, s71, 4096\ns_mov_b32 m0, s75\ns_add_u32 s72, s72, {16*1152}")
        dma(14, rsrc, 74)
        if 2*i+1 < slow: A("s_waitcnt vmcnt(0)")
        A(f"s_add_u32 s71, s71, 16384")
def wide_frag_addrs(base8, shift):
    A(f"v_lshl_add_u32 v16, v4, 13, v15")
    if shift: A(f"v_add_u32 v16, {shift}, v16")
    A(f"""
    v_add_u32 v17, 0x10000, v16
    v_lshl_add_u32 v18, v4, 10, v{vTR}
    v_add_u32 v18, {base8}, v18
    """)
def wide_frag_reads(vdst, nk):
    n = 0
    for i in range(4):
        for kp in range(nk):
            a = 16 if kp < 2 else 17
            off = (kp & 1)*32768 + i*2048
            d = vdst + (i*nk + kp)*4
            A(f"ds_read_b64_tr_b16 {vr(d,2)}, v{a} offset:{off}")
            A(f"ds_read_b64_tr_b16 {vr(d+2,2)}, v{a} offset:{off+512}")
            n += 2
            if n % 12 == 0: A("s_waitcnt lgkmcnt(4)")
    A("s_waitcnt lgkmcnt(4)")
    for kp in range(nk):
        d = vdst + (4*nk + kp)*4
        A(f"ds_read_b64_tr_b16 {vr(d,2)}, v18 offset:{kp*4096}")
        A(f"ds_read_b64_tr_b16 {vr(d+2,2)}, v18 offset:{kp*4096+512}")
def wide_gemm(vW, nk, vBf, base, stride, lab):
    acc, acc5 = 240, 244
    nb = 8
    order = [(i, kp) for i in range(4) for kp in range(nk)]
    def rd(n):
        i, kp = order[n]
        A(f"ds_read_b128 {vr(vBf+4*(n % nb),4)}, v{232+i} offset:{base+kp*64}")
    for n in range(min(nb, len(order))): rd(n)
    for n, (i, kp) in enumerate(order):
        A(f"s_waitcnt lgkmcnt({min(nb-1, len(order)-1-n)})")
        mf16(acc, vW+(i*nk+kp)*4, vBf+4*(n % nb), n == 0)
        if i == 0: mf16(acc5, vW+(4*nk+kp)*4, vBf+4*(n % nb), kp == 0)
        if n + nb < len(order): rd(n + nb)
    A(f"""
    s_cmp_lg_u32 s70, 0
    s_cbranch_scc1 {lab}_a
    s_add_u32 s74, s72, {32*stride}
    v_cvt_pk_bf16_f32 v{acc5}, v{acc5}, v{acc5+1}
    v_cvt_pk_bf16_f32 v{acc5+1}, v{acc5+2}, v{acc5+3}
    s_mov_b64 exec, s[78:79]
    buffer_store_dwordx2 {vr(acc5,2)}, v20, {WS}, s74 offen sc1
    s_mov_b64 exec, -1
    {lab}_a:
    s_nop 5
    v_cvt_pk_bf16_f32 v{acc}, v{acc}, v{acc+1}
    v_cvt_pk_bf16_f32 v{acc+1}, v{acc+2}, v{acc+3}
    buffer_store_dwordx2 {vr(acc,2)}, v20, {WS}, s72 offen sc1
    """)
def tail_prologue(lab, slot_code):
    common_setup2()
    A(f"s_mul_i32 s{sSL}, s{sX}, 7\n{slot_code}\ns_waitcnt lgkmcnt(0)")
    get_tag()
    A(f"s_cmp_lg_u32 s{sW}, 7\ns_cbranch_scc1 {lab}")
    ones(24)
    clear_tail_inbox(24)
    A("s_waitcnt vmcnt(0)")
    proof(sSL)
    A(f"{lab}:")

XL, CT, CTS = 0, 8192, 320
TS = 128*128
vUV, vWO = 32, 96
def t_setup():
    A(f"""
    v_lshlrev_b32 v21, 11, v3
    v_xor_b32 v22, v3, v4
    v_lshlrev_b32 v22, 4, v22
    v_lshl_add_u32 v22, v2, 11, v22
    v_and_b32 v12, 1, v2
    v_lshl_or_b32 v12, v12, 2, v4
    v_lshrrev_b32 v14, 1, v3
    v_xor_b32 v12, v12, v14
    v_lshlrev_b32 v12, 4, v12
    v_lshl_add_u32 v12, v3, 7, v12
    v_lshlrev_b32 v14, 3, v3
    s_lshl_b32 s66, s{sH}, 14
    s_add_u32 s66, s66, {WS_H3B}
    s_lshl_b32 s73, s{sW}, 7
    s_add_u32 s73, s73, s66
    s_lshl_b32 s72, s{sSL}, 7
    s_add_u32 s72, s72, {WS_H5}
    v_lshrrev_b32 v23, 1, v3
    v_mul_u32_u24 v23, {CTS}, v23
    v_lshl_add_u32 v23, v4, 3, v23
    s_lshl_b32 s74, s{sW}, 5
    v_add_u32 v23, s74, v23
    v_mul_u32_u24 v10, {CTS}, v6
    v_lshl_add_u32 v10, v4, 4, v10
    """)
    publish_setup(TS)
    masked_addrs(10, CT)
def t_tail(nk, lab):
    A(f"""
    s_cmp_lg_u32 s{sW}, 0
    s_cbranch_scc1 {lab}pd
    v_min_u32 v24, 35, v{vL}
    v_lshlrev_b32 v24, 7, v24
    s_mov_b32 s74, {WS_PF}
    s_mov_b32 s77, 0
    {lab}pp:
    buffer_load_dword v25, v24, {WS}, s74 offen sc1
    s_add_u32 s77, s77, 1
    s_waitcnt vmcnt(0)
    v_cmp_ne_u32 vcc, s{sT}, v25
    s_cmp_ge_u32 s77, {POLL_MAX}
    s_cbranch_scc1 {lab}pd
    s_cbranch_vccnz {lab}pp
    {lab}pd:
    """)
    ST(5); ST(7, 3)
    A(f"""
    s_mov_b32 s77, 0
    v_mov_b32 v28, 0
    v_mov_b32 v29, 0
    {lab}poll:
    buffer_load_dwordx4 v[24:27], v22, {WS}, s73 offen sc1
    s_cmp_lg_u32 s{sW}, 7
    s_cbranch_scc1 {lab}ns
    s_mov_b64 exec, 0xff
    buffer_load_dwordx2 v[28:29], v21, {WS}, s66 offen offset:1024 sc1
    s_mov_b64 exec, -1
    {lab}ns:
    s_add_u32 s77, s77, 1
    s_waitcnt vmcnt(0)
    v_max3_u32 v30, v24, v25, v26
    v_max3_u32 v30, v30, v27, v28
    v_max_u32 v30, v30, v29
    v_cmp_eq_u32 vcc, -1, v30
    s_cmp_ge_u32 s77, {POLL_MAX}
    s_cbranch_scc1 {lab}done
    s_cbranch_vccnz {lab}poll
    {lab}done:
    ds_write_b128 v7, v[24:27] offset:{XL}
    s_cmp_lg_u32 s{sW}, 7
    s_cbranch_scc1 {lab}nw
    s_mov_b64 exec, 0xff
    ds_write_b64 v14, v[28:29] offset:{CT+2048}
    s_mov_b64 exec, -1
    {lab}nw:
    s_waitcnt lgkmcnt(0)
    """)
    ST(6)
    A("s_barrier")
    if nk == 2: A(f"s_cmp_lg_u32 s70, 0\ns_cbranch_scc1 {lab}nouv")
    vX = 176
    A(f"ds_read_b64 v[28:29], v14 offset:{CT+2048}")
    for i in range(8): A(f"ds_read_b128 {vr(vX+4*i,4)}, v12 offset:{XL+i*1024}")
    a0, a1 = 24, 208
    for i in range(8):
        A(f"s_waitcnt lgkmcnt({7-i})")
        mf16(a0, vUV+8*i, vX+4*i, i == 0)
        mf16(a1, vUV+8*i+4, vX+4*i, i == 0)
    A(f"""
    v_max_f32_dpp v30, v28, v28 {QP1}
    v_sub_f32 v30, v28, v30
    v_exp_f32 v30, v30
    v_mul_f32 v31, v30, v29
    v_add_f32_dpp v31, v31, v31 {QP1}
    v_rcp_f32 v31, v31
    v_mul_f32 v30, v30, v31
    """)
    for j in range(4): A(f"v_add_f32_dpp v{a0+j}, v{a1+j}, v{a0+j} row_ror:8 {DPPF}")
    for j in range(4): A(f"v_mul_f32 v{a0+j}, v{a0+j}, v30")
    for j in range(4): A(f"v_add_f32_dpp v{a0+j}, v{a0+j}, v{a0+j} {QP1}")
    A(f"""
    v_cvt_pk_bf16_f32 v28, v{a0}, v{a0+1}
    v_cvt_pk_bf16_f32 v29, v{a0+2}, v{a0+3}
    s_mov_b32 exec_lo, 0x00550055
    s_mov_b32 exec_hi, 0x00550055
    ds_write_b64 v23, v[28:29] offset:{CT}
    s_mov_b64 exec, -1
    s_waitcnt lgkmcnt(0)
    {lab}nouv:
    s_barrier
    """)
    wide_gemm(vWO, nk, vX, CT, TS, lab+"g")
    ST(7)
    if nk == 2: fin_role()
    else: finish()

RED = BIG
def fin_setup():
    srd(52, P_X, 4608)
    srd(56, P_OUT, 4608)
    A(f"""
    v_and_b32 v212, 1, v4
    v_lshl_add_u32 v212, v3, 1, v212
    v_and_b32 v213, 3, v212
    v_mul_u32_u24 v213, 1152, v213
    v_lshrrev_b32 v212, 2, v212
    v_lshl_add_u32 v213, v212, 3, v213
    s_min_u32 s75, s{sF}, 35
    s_lshl_b32 s75, s75, 5
    v_add_u32 v213, s75, v213
    buffer_load_dwordx2 v[214:215], v213, {RA}, 0 offen
    v_and_b32 v212, 1, v3
    v_lshlrev_b32 v212, 4, v212
    v_mov_b32 v216, 0x3f80
    v_lshlrev_b32 v216, v212, v216
    v_bfe_u32 v212, v{vL}, 1, 3
    """)
    for d in range(8): A(f"v_cmp_eq_u32 vcc, {d}, v212\nv_cndmask_b32 v{220+d}, 0, v216, vcc")
def fin_role():
    A(f"""
    s_cmp_ge_u32 s{sF}, 36
    s_cbranch_scc1 L_end
    s_cmp_eq_u32 s70, 0
    s_cbranch_scc1 L_fin_b
    s_lshl_b32 s72, s{sF}, 14
    s_lshl_b32 s73, s{sW}, 12
    s_add_u32 s72, s72, s73
    s_add_u32 s72, s72, {WS_H5-16384}
    s_mov_b32 s76, 15
    s_mov_b32 s77, 0
    L_finpoll:
    """)
    for i in range(4):
        A(f"s_bitcmp1_b32 s76, {i}\ns_cbranch_scc0 L_fi{i}\nbuffer_load_dwordx4 {vr(32+4*i,4)}, v9, {WS}, s72 offen offset:{1024*i} sc1\nL_fi{i}:")
    A("s_add_u32 s77, s77, 1\ns_waitcnt vmcnt(0)")
    for i in range(4): A(f"v_max3_u32 v{48+i}, v{32+4*i}, v{33+4*i}, v{34+4*i}")
    for i in range(4): A(f"v_max_u32 v{48+i}, v{48+i}, v{35+4*i}")
    for i in range(4): A(f"v_cmp_eq_u32 vcc, -1, v{48+i}\ns_cbranch_vccnz L_fc{i}\ns_bitset0_b32 s76, {i}\nL_fc{i}:")
    A(f"""
    s_cmp_ge_u32 s77, {POLL_MAX}
    s_cbranch_scc1 L_findone
    s_cmp_lg_u32 s76, 0
    s_cbranch_scc1 L_finpoll
    L_findone:
    s_cmp_ge_u32 s{sW}, 6
    s_cbranch_scc1 L_fin_g
    """)
    for i in range(3): mf16(52, 220, 32+4*i, i == 0)
    A(f"s_cmp_eq_u32 s{sW}, 5\ns_cbranch_scc1 L_fin_g3")
    mf16(52, 220, 44, False)
    A("s_branch L_fin_w\nL_fin_g:")
    for i in range(3): mf16(52, 224, 32+4*i, i == 0)
    A("L_fin_g3:")
    mf16(52, 224, 44, False)
    A(f"L_fin_w:\ns_nop 7\nds_write_b128 v7, v[52:55] offset:{RED-4096}\ns_waitcnt lgkmcnt(0)")
    ST(9)
    A(f"L_fin_b:\ns_barrier\ns_cmp_lg_u32 s{sW}, 0\ns_cbranch_scc1 L_end")
    for i in range(4): A(f"ds_read_b128 {vr(64+4*i,4)}, v9 offset:{RED+i*1024}")
    A(f"s_mov_b32 s76, {fbits(-LOG2E)}")
    A("v_lshlrev_b32 v32, 16, v214\nv_and_b32 v33, 0xffff0000, v214\nv_lshlrev_b32 v34, 16, v215\nv_and_b32 v35, 0xffff0000, v215")
    A("s_waitcnt lgkmcnt(2)")
    for j in range(4): A(f"v_add_f32 v{64+j}, v{64+j}, v{68+j}")
    A("s_waitcnt lgkmcnt(0)")
    for j in range(4): A(f"v_add_f32 v{72+j}, v{72+j}, v{76+j}")
    for j in range(4): A(f"v_add_f32 v{64+j}, v{64+j}, v{72+j}")
    for j in range(4): A(f"v_add_f32_dpp v{64+j}, v{64+j}, v{64+j} row_ror:8 {DPPF}")
    for j in range(4): rb16(64+j, 64+j)
    for j in range(4): A(f"v_mul_f32 v{76+j}, s76, v{64+j}")
    for j in range(4): A(f"v_exp_f32 v{76+j}, v{76+j}")
    for j in range(4): A(f"v_add_f32 v{76+j}, 1.0, v{76+j}")
    for j in range(4): A(f"v_rcp_f32 v{76+j}, v{76+j}")
    for j in range(4): A(f"v_mul_f32 v{76+j}, v{64+j}, v{76+j}")
    A("v_cvt_pk_bf16_f32 v76, v76, v77\nv_cvt_pk_bf16_f32 v77, v78, v79")
    A("v_permlane32_swap_b32 v76, v68\nv_permlane32_swap_b32 v77, v69")
    A("v_lshlrev_b32 v72, 16, v68\nv_and_b32 v73, 0xffff0000, v68\nv_lshlrev_b32 v74, 16, v69\nv_and_b32 v75, 0xffff0000, v69")
    for j in range(4): A(f"v_mul_f32 v{64+j}, v{64+j}, v{72+j}")
    A("v_cvt_pk_bf16_f32 v68, v64, v65\nv_cvt_pk_bf16_f32 v69, v66, v67")
    A("v_lshlrev_b32 v64, 16, v68\nv_and_b32 v65, 0xffff0000, v68\nv_lshlrev_b32 v66, 16, v69\nv_and_b32 v67, 0xffff0000, v69")
    for j in range(4): A(f"v_add_f32 v{64+j}, v{64+j}, v{32+j}")
    A(f"""
    v_cvt_pk_bf16_f32 v64, v64, v65
    v_cvt_pk_bf16_f32 v65, v66, v67
    s_mov_b64 exec, 0x00ff00ff
    buffer_store_dwordx2 v[64:65], v213, {RB}, 0 offen
    s_cmp_lg_u32 s{sF}, 0
    s_cbranch_scc1 L_fin_noep
    s_mov_b64 exec, 1
    v_mov_b32 v66, s{sE}
    buffer_store_dword v66, v8, {WS}, 0 offen sc1
    L_fin_noep:
    s_mov_b64 exec, -1
    """)
    finish()

def hb_code():
    if not OPT['hb']: return ""
    return f"""s_lshr_b32 s71, s66, 1
    s_add_u32 s71, s71, 48
    s_mul_i32 s71, s71, {8*9216}
    s_add_u32 s74, s73, 6
    s_lshl_b32 s74, s74, 7
    s_add_u32 s71, s71, s74
    buffer_load_dwordx4 v[248:251], v14, {RA}, s71 offen"""
A("L_TH:")
SLOT = f"s_lshl_b32 s74, s{sA_}, 1\ns_add_u32 s{sSL}, s{sSL}, s74\ns_add_u32 s{sSL}, s{sSL}, s{sQD}"
A(f"""
s_lshl_b32 s66, s{sA_}, 1
s_add_u32 s66, s66, s{sQD}
s_mov_b32 s{sF}, 99
s_cmp_eq_u32 s66, 3
s_cbranch_scc1 L_f_go
s_cmp_gt_u32 s66, 3
s_subb_u32 s66, s66, 0
s_lshl_b32 s66, s66, 3
s_add_u32 s{sF}, s66, s{sX}
s_add_u32 s66, s66, s{sW}
s_cmp_ge_u32 s{sF}, {36 if not OPT['noclr'] else 0}
s_cbranch_scc1 L_noclr
""")
ones(24)
A(f"s_lshl_b32 s74, s{sF}, 14\ns_lshl_b32 s75, s{sW}, 11\ns_add_u32 s74, s74, s75\ns_add_u32 s74, s74, {WS_H5}")
for i in range(2): A(f"buffer_store_dwordx4 v[24:27], v9, {WS}, s74 offen offset:{i*1024} sc1")
A(f"s_waitcnt vmcnt(0)\ns_barrier\ns_cmp_lg_u32 s{sW}, 0\ns_cbranch_scc1 L_noclr")
proof(sF)
A("L_noclr:")
if OPT['help']:
    A(f"""
    s_cmp_eq_u32 s67, 0
    s_cselect_b32 s52, s{P_WG}, s{P_WU}
    s_cselect_b32 s53, s{P_WG+1}, s{P_WU+1}
    s_mov_b32 s54, {576*9216}
    s_lshr_b32 s71, s66, 1
    s_add_u32 s71, s71, 32
    s_mul_i32 s71, s71, {8*9216}
    s_sub_u32 s72, 3, s{sX}
    s_and_b32 s72, s72, 7
    s_mul_i32 s73, s{sX}, 9
    s_lshl_b32 s73, s73, 7
    s_add_u32 s71, s71, s73
    s_lshl_b32 s74, s72, 7
    s_add_u32 s73, s71, s74
    v_mul_u32_u24 v14, 9216, v2
    v_lshl_add_u32 v14, v3, 4, v14
    s_add_u32 s74, s73, {20*8*9216}
    s_add_u32 s71, s71, {20*8*9216}
    """)
    if OPT['help'] & 1:
        A(f"""
        buffer_load_dwordx4 v[248:251], v14, {RA}, s73 offen{HW}
        buffer_load_dwordx4 v[248:251], v14, {RA}, s74 offen{HW}
        s_cmp_lg_u32 s72, 0
        s_cbranch_scc1 L_noc3b
        buffer_load_dwordx4 v[248:251], v14, {RA}, s73 offen offset:1024{HW}
        buffer_load_dwordx4 v[248:251], v14, {RA}, s74 offen offset:1024{HW}
        L_noc3b:
        """)
    if OPT['help'] & 2: A(f"buffer_load_dwordx4 v[248:251], v14, {RA}, s71 offen offset:768{HW}")
    if OPT['help'] & 4:
        A(f"""
        s_lshl_b32 s66, s66, 10
        s_mov_b32 s52, s{P_WO}
        s_mov_b32 s53, s{P_WO+1}
        s_lshl_b32 s73, s{sX}, 3
        s_add_u32 s73, s73, 7
        s_mul_i32 s73, s73, {64*1152}
        s_add_u32 s54, s73, {64*1152}
        s_add_u32 s73, s73, s66
        s_add_u32 s74, s73, {40*1024}
        buffer_load_dwordx4 v[248:251], v9, {RA}, s73 offen{HW}
        buffer_load_dwordx4 v[248:251], v9, {RA}, s74 offen{HW}
        """)
A("L_f_go:")
A(f"s_mul_i32 s{sSL}, s{sX}, 7\n{SLOT}")
ST(1, 3)
srd(52, P_WUV, 512*8192)
srd(56, P_WO, 4096*1152)
A(f"""
s_lshl_b32 s71, s{sW}, 10
s_add_u32 s71, s71, {BIG}
s_lshl_b32 s72, s68, 2
s_add_u32 s72, s72, s67
s_lshl_b32 s72, s72, 16
s_lshl_b32 s73, s{sH}, 1
s_add_u32 s73, s73, s{sQD}
s_lshl_b32 s74, s73, 7
s_add_u32 s72, s72, s74
""")
for i in range(8):
    cb = 2*(i&1) + 16*(i>>1)
    A(f"s_mov_b32 m0, s71\ns_add_u32 s74, s72, {cb*65536}")
    dma(12, RA, 74)
    A(f"s_add_u32 s71, s71, 8192")
    if i < OPT['tslow']: A("s_waitcnt vmcnt(0)")
wide_voffset(14)
A(f"""
s_mul_i32 s73, s73, {64*1152}
s_lshl_b32 s71, s67, 3
s_add_u32 s71, s71, s68
s_lshl_b32 s71, s71, 10
s_add_u32 s71, s71, {BIG+65536}
s_mul_i32 s72, s67, {8*1152}
s_lshl_b32 s74, s68, 7
s_add_u32 s72, s72, s74
s_add_u32 s72, s72, s73
""")
wide_dma(4, RB)
A(f"""
s_mul_i32 s72, s{sW}, {8*1152}
s_add_u32 s72, s72, s73
s_add_u32 s72, s72, 1024
s_lshl_b32 s71, s{sW}, 10
s_add_u32 s71, s71, {BIG+131072}
s_mov_b32 m0, s71
""")
dma(14, RB, 72)
wide_frag_addrs(BIG+131072, 65536)
A(f"v_lshl_add_u32 v19, v4, 10, v{vTR}\nv_add_u32 v19, {BIG}, v19")
t_setup()
ST(5, 3)
A("s_waitcnt vmcnt(9)\ns_barrier")
for kp in range(16):
    A(f"ds_read_b64_tr_b16 {vr(vUV+4*kp,2)}, v19 offset:{kp*4096}")
    A(f"ds_read_b64_tr_b16 {vr(vUV+4*kp+2,2)}, v19 offset:{kp*4096+512}")
    if kp % 6 == 5: A("s_waitcnt lgkmcnt(4)")
A("s_waitcnt vmcnt(0) lgkmcnt(2)")
ST(6, 3)
A("s_barrier")
wide_frag_reads(vWO, 2)
fin_setup()
t_tail(2, "L_u")

A("L_T:")
A(f"s_mul_i32 s{sSL}, s{sX}, 7\ns_add_u32 s{sSL}, s{sSL}, 6")
ST(1, 3)
srd(52, P_WUV, 512*8192)
srd(56, P_WO, 4096*1152)
A(f"""
s_lshl_b32 s71, s70, 1
s_add_u32 s71, s71, s67
s_lshl_b32 s71, s71, 1
s_add_u32 s71, s71, s69
s_lshl_b32 s71, s71, 10
s_add_u32 s71, s71, {BIG}
s_lshl_b32 s72, s70, 2
s_add_u32 s72, s72, s67
s_lshl_b32 s72, s72, 16
s_lshl_b32 s73, s{sH}, 8
s_lshl_b32 s74, s69, 7
s_add_u32 s73, s73, s74
s_add_u32 s72, s72, s73
""")
for i in range(16):
    cb = 2*((i>>1)&1) + 8*(i&1) + 16*(i>>2)
    A(f"s_mov_b32 m0, s71\ns_add_u32 s74, s72, {cb*65536}")
    dma(12, RA, 74)
    A(f"s_add_u32 s71, s71, 8192")
    if i < OPT['Tslow']: A("s_waitcnt vmcnt(0)")
wide_voffset(14)
A(f"""
s_mul_i32 s66, s{sH}, {128*1152}
s_lshl_b32 s71, s68, 2
s_add_u32 s71, s71, s67
s_mul_i32 s72, s71, {8*1152}
s_add_u32 s72, s72, s66
s_add_u32 s72, s72, 1024
s_lshl_b32 s71, s71, 10
s_add_u32 s71, s71, {BIG+131072}
s_mov_b32 m0, s71
s_add_u32 s71, s71, 2048
""")
dma(14, RB, 72)
A(f"s_add_u32 s72, s72, {16*1152}\ns_mov_b32 m0, s71")
dma(14, RB, 72)
vST = 176
A(f"""
s_mul_i32 s72, s67, {8*1152}
s_lshl_b32 s74, s68, 7
s_add_u32 s72, s72, s74
s_add_u32 s72, s72, s66
s_barrier
""")
for i in range(4):
    A(f"buffer_load_dwordx4 {vr(vST+8*i,4)}, v14, {RB}, s72 offen nt")
    A(f"buffer_load_dwordx4 {vr(vST+8*i+4,4)}, v14, {RB}, s72 offen offset:512 nt")
    A(f"s_add_u32 s72, s72, {16*1152}")
A(f"v_add_u32 v17, 0x10000, v16")
ST(2, 3)
A("s_waitcnt vmcnt(10)")
ST(3, 3)
A("s_barrier")
for kp in range(16):
    a = 16 if kp < 8 else 17
    A(f"ds_read_b64_tr_b16 {vr(vUV+4*kp,2)}, v{a} offset:{(kp&7)*8192}")
    A(f"ds_read_b64_tr_b16 {vr(vUV+4*kp+2,2)}, v{a} offset:{(kp&7)*8192+512}")
    if kp % 6 == 5: A("s_waitcnt lgkmcnt(4)")
A(f"""
s_lshl_b32 s71, s67, 3
s_add_u32 s71, s71, s68
s_lshl_b32 s71, s71, 10
s_add_u32 s71, s71, {BIG}
v_add_u32 v19, s71, v9
s_add_u32 s71, s71, 65536
s_waitcnt lgkmcnt(0)
s_barrier
""")
ST(4, 3)
wide_dma(4, RB)
for i in range(8):
    A(f"s_waitcnt vmcnt({15-i})")
    A(f"ds_write_b128 v19, {vr(vST+4*i,4)} offset:{(i>>1)*16384+(i&1)*4096}")
wide_frag_addrs(BIG+131072, 0)
t_setup()
ST(5, 3)
A("s_waitcnt vmcnt(0) lgkmcnt(0)")
ST(6, 3)
A("s_barrier")
wide_frag_reads(vWO, 4)
t_tail(4, "L_t")

A("L_F:")
ST(1, 3)
DNB = BIG + 72*1024
srd(56, P_WD, 4608*1152)
wide_voffset(14)
A(f"""
s_mov_b32 s40, s71
s_mov_b32 s41, s72
s_mul_i32 s73, s{sU}, {64*1152}
s_lshl_b32 s71, s67, 3
s_add_u32 s71, s71, s68
s_lshl_b32 s71, s71, 10
s_add_u32 s71, s71, {DNB}
s_mul_i32 s72, s67, {8*1152}
s_lshl_b32 s74, s68, 7
s_add_u32 s72, s72, s74
s_add_u32 s72, s72, s73
""")
wide_dma(4, RB, OPT['fslow'])
A(f"""
s_mul_i32 s72, s{sW}, {8*1152}
s_add_u32 s72, s72, s73
s_add_u32 s72, s72, 1024
s_lshl_b32 s71, s{sW}, 10
s_add_u32 s71, s71, {DNB+65536}
s_mov_b32 m0, s71
""")
dma(14, RB, 72)
xn_frags()
A("s_mov_b32 s71, s40\ns_mov_b32 s72, s41\ns_barrier")
for i in range(9):
    gu_dma(i)
    if i < OPT['gslow']: A('s_waitcnt vmcnt(0)')
wide_frag_addrs(DNB+65536, DNB-BIG)
A("s_waitcnt vmcnt(9)\ns_barrier")
vWD = 144
wide_frag_reads(vWD, 2)
A("s_waitcnt lgkmcnt(0)\ns_barrier")
for i in range(9, 15): gu_dma(i)
A(f"""
v_min_u32 v140, 35, v{vL}
v_lshlrev_b32 v140, 7, v140
s_mov_b32 s66, {WS_PF}
s_cmp_lg_u32 s{sW}, 7
s_cbranch_scc1 L_f_np
buffer_load_dword v141, v140, {WS}, s66 offen sc1
L_f_np:
s_barrier
""")
for i in range(15, 18): gu_dma(i)
A(f"""
v_lshrrev_b32 v19, 1, v6
v_lshrrev_b32 v21, 1, v5
v_and_b32 v22, 1, v4
v_lshl_or_b32 v21, v22, 1, v21
v_lshl_or_b32 v21, v19, 2, v21
v_xor_b32 v21, s{sW}, v21
v_lshlrev_b32 v21, 4, v21
v_lshl_add_u32 v21, v5, 7, v21
v_and_b32 v22, 1, v6
v_lshl_add_u32 v21, v22, 3, v21
v_lshl_add_u32 v21, v19, 10, v21
v_lshl_add_u32 v21, v4, 11, v21
v_add_u32 v21, {BIG}, v21
v_add_u32 v22, {8*8192}, v21
v_add_u32 v23, {16*8192}, v21
s_lshl_b32 s72, s{sU}, 7
s_add_u32 s72, s72, {WS_H5+56*128}
""")
publish_setup(TS)
def k_steps(k0, k1):
    D = 6
    def rd(k):
        d = vG + 4*(k % 8)
        A(f"ds_read_b64_tr_b16 {vr(d,2)}, v{21+(k>>3)} offset:{(k&7)*8192}")
        A(f"ds_read_b64_tr_b16 {vr(d+2,2)}, v{21+(k>>3)} offset:{(k&7)*8192+512}")
    for k in range(k0, min(k1, k0+D)): rd(k)
    for k in range(k0, k1):
        A(f"s_waitcnt lgkmcnt({2*min(D-1, k1-1-k)})")
        mf16(vD, vG+4*(k % 8), vXN+4*k, k == 0)
        if k + D < k1: rd(k + D)
ST(2, 3)
A("s_waitcnt vmcnt(3)")
ST(3, 3)
A("s_barrier")
k_steps(0, 15)
A(f"""
s_cmp_lg_u32 s{sW}, 7
s_cbranch_scc1 L_f_pd
s_mov_b32 s77, 0
L_f_pp:
v_cmp_ne_u32 vcc, s{sT}, v141
s_add_u32 s77, s77, 1
s_cbranch_vccz L_f_pd
s_cmp_ge_u32 s77, {POLL_MAX}
s_cbranch_scc1 L_f_pd
buffer_load_dword v141, v140, {WS}, s66 offen sc1
s_waitcnt vmcnt(0)
s_branch L_f_pp
L_f_pd:
v_mul_u32_u24 v17, {HBS}, v6
v_lshl_add_u32 v16, v4, 3, v17
s_lshl_b32 s74, s{sW}, 4
v_add_u32 v16, s74, v16
v_lshl_add_u32 v17, v4, 4, v17
""")
masked_addrs(17, HB)
A("s_waitcnt vmcnt(0)")
ST(1); ST(7, 3)
A("s_barrier")
k_steps(15, 18)
for j in range(4): A(f"v_mov_b32 v{24+j}, v{vD+j}")
for j in range(4): A(f"v_permlane32_swap_b32 v{vD+j}, v{24+j}")
C1 = -2.0*math.sqrt(2.0/math.pi)*LOG2E
A(f"s_mov_b32 s74, {fbits(0.044715)}\ns_mov_b32 s75, {fbits(C1)}")
for j in range(4): rb16(vD+j, vD+j); rb16(24+j, 24+j)
for j in range(4): A(f"v_mul_f32 v{104+j}, v{vD+j}, v{vD+j}")
for j in range(4): A(f"v_fma_f32 v{104+j}, v{104+j}, s74, 1.0")
for j in range(4): A(f"v_mul_f32 v{104+j}, v{104+j}, v{vD+j}")
for j in range(4): A(f"v_mul_f32 v{104+j}, s75, v{104+j}")
for j in range(4): A(f"v_exp_f32 v{104+j}, v{104+j}")
for j in range(4): A(f"v_add_f32 v{104+j}, 1.0, v{104+j}")
for j in range(4): A(f"v_rcp_f32 v{104+j}, v{104+j}")
for j in range(4): A(f"v_mul_f32 v{vD+j}, v{vD+j}, v{104+j}")
for j in range(4): rb16(vD+j, vD+j)
for j in range(4): A(f"v_mul_f32 v{vD+j}, v{vD+j}, v{24+j}")
A(f"""
v_cvt_pk_bf16_f32 v24, v{vD}, v{vD+1}
v_cvt_pk_bf16_f32 v25, v{vD+2}, v{vD+3}
s_mov_b64 exec, 0x000f000f
ds_write_b64 v16, v[24:25] offset:{HB}
s_mov_b64 exec, -1
s_waitcnt lgkmcnt(0)
s_barrier
""")
wide_gemm(vWD, 2, 104, HB, TS, "L_fg")
ST(2)
finish()

QA = 131072
MXO, LSO, LCO = 2048, 8192+2048, 16384+2048
sLOC = 64
A("L_att:")
lane_consts()
if OPT['exp'] == 1: A("s_waitcnt lgkmcnt(0)\ns_branch L_end")
A(f"s_cmp_ge_u32 s{sW}, 4\ns_cbranch_scc1 L_att_hi")
A(f"""
s_lshl_b32 s68, s{sK}, 18
s_lshl_b32 s69, s{sX}, 10
s_add_u32 s68, s68, s69
s_lshl_b32 s69, s{sW}, 16
s_add_u32 s68, s68, s69
s_waitcnt lgkmcnt(0)
s_load_dword s{sE}, s[48:49], 0
""")
if OPT['adel']: A("s_waitcnt lgkmcnt(0)")
for i in range(8):
    A(f"buffer_load_dwordx4 v[248:251], v9, {RC}, s68 offen")
    if i < 7: A("s_add_u32 s68, s68, 8192")
A(f"""
v_and_b32 v11, 2, v2
v_lshlrev_b32 v11, 1, v11
v_lshrrev_b32 v10, 2, v2
v_or_b32 v11, v11, v10
v_xor_b32 v11, v11, v3
v_lshlrev_b32 v11, 4, v11
v_lshl_add_u32 v10, v2, 10, v11
v_xor_b32 v11, 32, v10
s_lshl_b32 s70, s{sX}, 4
s_add_u32 s70, s70, s{sK}
s_lshl_b32 s66, s70, 17
s_lshl_b32 s67, s{sW}, 15
s_add_u32 s66, s66, s67
""")
srd(52, P_CKV, 4*4096*1024)
if OPT['ukw'] < 8: A(f"s_waitcnt vmcnt({OPT['ukw']})")
ST(2, 2)
for lb in range(8):
    if lb in (1, 2, 4, 6): ST({1:3,2:4,4:5,6:6}[lb], 2)
    if lb == OPT['gbar']: A("s_barrier")
    for rbi in range(4):
        A(f"s_add_u32 s68, s67, {(rbi*8+lb)*1024}\ns_mov_b32 m0, s68\ns_add_u32 s69, s66, {rbi*8192+lb*128}")
        dma(10 + (rbi & 1), RA, 69)
if OPT['gbar'] == 8: A("s_barrier")
ST(7, 2)
if OPT['stamps'] in (2, 3):
    A("s_waitcnt vmcnt(0)")
    ST(9, 2); ST(7, 3)
if OPT['exp'] == 2: A("s_branch L_end")
A(f"""
v_and_b32 v11, 2, v{vL}
v_lshlrev_b32 v11, 1, v11
v_or_b32 v11, v11, v5
v_lshrrev_b32 v12, 5, v{vL}
v_xor_b32 v11, v11, v12
v_lshlrev_b32 v11, 4, v11
v_lshl_add_u32 v11, v3, 7, v11
v_and_b32 v13, 3, v2
v_lshl_add_u32 v11, v13, 13, v11
v_add_u32 v16, s67, v11
v_add_u32 v20, {QA}, v11
""")
for t in range(1, 4): A(f"v_xor_b32 v{16+t}, {t<<5}, v16\nv_xor_b32 v{20+t}, {t<<5}, v20")
A(f"""
v_and_b32 v13, 31, v{vL}
v_lshlrev_b32 v13, 5, v13
v_add_u32 v13, {QA}, v13
s_lshl_b32 s68, s{sW}, 3
v_lshl_add_u32 v14, v12, 2, v13
v_add_u32 v14, s68, v14
s_lshl_b32 s68, s{sW}, 13
s_add_u32 s68, s68, {QA}
v_add_u32 v15, s68, v9
s_waitcnt lgkmcnt(0)
""")
get_tag()
A(f"""
s_lshl_b32 s72, s{sX}, 14
s_add_u32 s72, s72, {WS_FLG}
s_lshl_b32 s73, s{sK}, 10
s_add_u32 s73, s73, s72
s_lshl_b32 s68, s{sW}, 7
s_add_u32 s69, s72, s68
s_lshl_b32 s68, s{sK}, 5
s_add_u32 s72, s72, s68
s_lshl_b32 s74, s70, 15
s_lshl_b32 s68, s{sW}, 9
s_add_u32 s74, s74, s68
s_add_u32 s74, s74, {WS_H3A}
s_add_u32 s75, s74, 8192
s_add_u32 s78, s74, 16384
s_add_u32 s79, s74, 24576
s_lshl_b32 s70, s{sK}, 15
s_lshl_b32 s71, s{sX}, 11
s_add_u32 s70, s70, s71
s_add_u32 s70, s70, {WS_H3B}
s_lshl_b32 s71, s{sW}, 8
s_add_u32 s71, s71, s70
v_and_b32 v100, 15, v{vL}
v_and_b32 v101, 1, v4
v_lshlrev_b32 v112, 10, v100
v_lshl_add_u32 v102, v101, 4, v112
v_lshlrev_b32 v103, 11, v4
v_lshl_add_u32 v103, v100, 4, v103
v_and_b32 v104, 1, v3
v_lshlrev_b32 v104, 4, v104
v_mov_b32 v105, 0xffff
v_lshlrev_b32 v105, v104, v105
v_lshrrev_b32 v104, 1, v3
""")
for d in range(4): A(f"v_cmp_eq_u32 vcc, {d}, v104\nv_cndmask_b32 v{108+d}, 0, v105, vcc")
A(f"""
v_lshrrev_b32 v104, 2, v3
v_lshl_add_u32 v105, v104, 4, v4
v_lshlrev_b32 v105, 2, v105
v_lshlrev_b32 v106, 14, v104
v_lshl_add_u32 v106, v6, 5, v106
v_lshl_add_u32 v106, v4, 3, v106
v_and_b32 v104, 1, v2
v_lshl_add_u32 v106, v104, 7, v106
v_lshlrev_b32 v107, 14, v101
v_lshl_add_u32 v107, v100, 3, v107
v_mov_b32 v113, {QA+LCO}
""")
vS = 32; vAf = 128; vBf = 64; DEP = 8
for t in range(32):
    if t & 3 == 0: A(f"s_waitcnt vmcnt({28-t}) lgkmcnt(8)")
    A(f"ds_read_b128 {vr(vAf+4*t,4)}, v{16+(t&3)} offset:{(t>>2)*1024}")
A("s_waitcnt lgkmcnt(0)\ns_setprio 2")
ST(1)
A("s_barrier")
ST(2)
def qk_read(t): A(f"ds_read_b128 {vr(vBf+4*(t % DEP),4)}, v{20+(t&3)} offset:{(t>>2)*1024}")
for t in range(DEP): qk_read(t)
for t in range(32):
    A(f"s_waitcnt lgkmcnt({min(DEP-1, 31-t)})")
    mf32(vS, vAf+4*t, vBf+4*(t % DEP), t == 0)
    if t + DEP < 32: qk_read(t + DEP)
    if t == 13: A("s_barrier")
ST(3)
A(f"v_max3_f32 v24, v{vS}, v{vS+1}, v{vS+2}\nv_max3_f32 v25, v{vS+3}, v{vS+4}, v{vS+5}\nv_max3_f32 v26, v{vS+6}, v{vS+7}, v{vS+8}")
A(f"v_max3_f32 v27, v{vS+9}, v{vS+10}, v{vS+11}\nv_max3_f32 v28, v{vS+12}, v{vS+13}, v{vS+14}")
A(f"v_max3_f32 v24, v24, v25, v26\nv_max3_f32 v27, v27, v28, v{vS+15}\nv_max_f32 v24, v24, v27")
A(f"ds_write_b32 v14, v24 offset:{MXO}\ns_waitcnt lgkmcnt(0)\ns_barrier")
A(f"""
ds_read_b128 v[24:27], v13 offset:{MXO}
ds_read_b128 v[28:31], v13 offset:{MXO+16}
s_waitcnt lgkmcnt(0)
v_max3_f32 v24, v24, v25, v26
v_max3_f32 v28, v28, v29, v30
v_max3_f32 v24, v24, v27, v31
v_max_f32 v24, v24, v28
""")
for hlf in range(2):
    for i in range(8): A(f"v_sub_f32 v{vS+8*hlf+i}, v{vS+8*hlf+i}, v24")
    for i in range(8): A(f"v_exp_f32 v{vS+8*hlf+i}, v{vS+8*hlf+i}")
    for i in range(4): A(f"v_cvt_pk_bf16_f32 v{48+4*hlf+i}, v{vS+8*hlf+2*i}, v{vS+8*hlf+2*i+1}")
    A(f"ds_write_b128 v15, {vr(48+4*hlf,4)} offset:{1024*hlf}")
    if hlf == 0:
        A("s_waitcnt lgkmcnt(0)")
        ST(4)
        A("s_barrier")
for step in (8, 4, 2, 1):
    for i in range(step): A(f"v_add_f32 v{vS+i}, v{vS+i}, v{vS+i+step}")
A(f"ds_write_b32 v14, v{vS} offset:{LSO}\ns_waitcnt lgkmcnt(0)\ns_setprio 0\ns_barrier")
vXr = 144
SO = [74, 75, 78, 79]
A(f"""
s_cmp_lg_u32 s{sW}, 0
s_cbranch_scc1 L_nost
ds_read_b128 v[28:31], v13 offset:{LSO}
ds_read_b128 v[32:35], v13 offset:{LSO+16}
ds_read_b32 v36, v113
v_mov_b32 v25, s{sT}
v_mov_b32 v27, s{sT}
s_waitcnt lgkmcnt(0)
v_add_f32 v28, v28, v29
v_add_f32 v30, v30, v31
v_add_f32 v32, v32, v33
v_add_f32 v34, v34, v35
v_readfirstlane_b32 s{sLOC}, v36
v_add_f32 v28, v28, v30
v_add_f32 v32, v32, v34
v_add_f32 v26, v28, v32
s_mov_b32 exec_hi, 0
s_cmp_lg_u32 s{sLOC}, 0
s_cbranch_scc1 L_stfar
buffer_store_dwordx4 v[24:27], v9, {WS}, s73 offen
s_branch L_stdone
L_stfar:
buffer_store_dwordx4 v[24:27], v9, {WS}, s73 offen sc1
L_stdone:
L_nost:
s_mov_b32 s77, 0
s_mov_b32 exec_hi, 0
L_rpoll:
buffer_load_dwordx4 v[32:35], v102, {WS}, s72 offen sc1
s_add_u32 s77, s77, 1
s_waitcnt vmcnt(0)
v_xor_b32 v33, s{sT}, v33
v_xor_b32 v35, s{sT}, v35
v_or_b32 v33, v33, v35
v_cmp_ne_u32 vcc, 0, v33
s_cmp_ge_u32 s77, {POLL_MAX}
s_cbranch_scc1 L_rdone
s_cbranch_vccnz L_rpoll
L_rdone:
s_mov_b64 exec, -1
""")
ST(5)
A("v_mov_b32 v36, v32")
for r in (8, 4, 2, 1): A(f"v_max_f32_dpp v36, v36, v36 row_ror:{r} {DPPF}")
A("v_sub_f32 v33, v32, v36\nv_exp_f32 v33, v33\nv_mul_f32 v37, v33, v34")
for i in range(4): A(f"ds_bpermute_b32 v{40+i}, v105, v33 offset:{16*i}")
for r in (8, 4, 2, 1): A(f"v_add_f32_dpp v37, v37, v37 row_ror:{r} {DPPF}")
A(f"""
v_cmp_gt_u32 s[66:67], 8, v100
s_waitcnt lgkmcnt(0)
""")
for i in range(4): A(f"v_cvt_pk_bf16_f32 v{44+i}, v{40+i}, v{40+i}")
for i in range(4): A(f"v_and_b32 v{80+i}, 0xffff0000, v{44+i}")
for i in range(4): A(f"v_sub_f32 v{80+i}, v{40+i}, v{80+i}")
for i in range(4): A(f"v_cvt_pk_bf16_f32 v{80+i}, v{80+i}, v{80+i}")
for i in range(4): A(f"v_cndmask_b32 v{44+i}, v{80+i}, v{44+i}, s[66:67]")
for i in range(4):
    for d in range(4): A(f"v_and_b32 v{64+4*i+d}, v{44+i}, v{108+d}")
A(f"""
s_mov_b32 s77, 0
s_mov_b64 exec, 0xffff
L_fpoll:
buffer_load_dword v32, v112, {WS}, s69 offen offset:512 sc1
s_add_u32 s77, s77, 1
s_waitcnt vmcnt(0)
v_cmp_ne_u32 vcc, s{sT}, v32
s_cmp_ge_u32 s77, {POLL_MAX}
s_cbranch_scc1 L_fdone
s_cbranch_vccnz L_fpoll
L_fdone:
s_mov_b64 exec, -1
""")
ST(6)
for i in range(4):
    for h in range(2): A(f"buffer_load_dwordx4 {vr(vXr+8*i+4*h,4)}, v103, {WS}, s{SO[i]} offen offset:{256*h} sc1")
for i in range(4):
    A(f"s_waitcnt vmcnt({7-2*i})")
    mf16(40, vXr+8*i, 64+4*i, i == 0)
    A(f"s_waitcnt vmcnt({6-2*i})")
    mf16(44, vXr+8*i+4, 64+4*i, i == 0)
A(f"""
s_cmp_lg_u32 s{sW}, 1
s_cbranch_scc1 L_rnostat
s_mov_b32 exec_hi, 0
buffer_store_dwordx2 v[36:37], v107, {WS}, s70 offen offset:1024 sc1
s_mov_b64 exec, -1
L_rnostat:
s_nop 5
""")
for j in range(4): A(f"v_cndmask_b32 v{48+j}, v{40+j}, v{44+j}, s[66:67]")
for j in range(4): A(f"v_cndmask_b32 v{40+j}, v{44+j}, v{40+j}, s[66:67]")
for j in range(4): A(f"v_add_f32_dpp v{40+j}, v{48+j}, v{40+j} row_ror:8 {DPPF}")
A(f"""
v_cvt_pk_bf16_f32 v44, v40, v41
v_cvt_pk_bf16_f32 v45, v42, v43
buffer_store_dwordx2 v[44:45], v106, {WS}, s71 offen sc1
""")
ST(7)
if OPT['local'] and OPT['wb']:
    A(f"""
    s_cmp_lg_u32 s{sK}, 0
    s_cbranch_scc1 L_end
    s_waitcnt vmcnt(0)
    s_barrier
    s_cmp_lg_u32 s{sW}, 0
    s_cbranch_scc1 L_end
    buffer_wbl2 sc1
    """)
finish()

A("L_att_hi:")
if OPT['prio']: A("s_setprio 2")
if OPT['pf']:
    A(f"""
    s_getpc_b64 s[66:67]
    L_pc:
    s_sub_u32 s66, s66, L_pc-{NAME}_kernel
    s_subb_u32 s67, s67, 0
    v_subrev_u32 v10, 256, v0
    v_lshlrev_b32 v10, 7, v10
    v_cmp_gt_u32 vcc, L_exit-{NAME}_kernel, v10
    s_and_saveexec_b64 s[68:69], vcc
    s_cbranch_execz L_nopf
    global_load_dword v255, v10, s[66:67]
    L_nopf:
    s_mov_b64 exec, -1
    """)
A(f"""
s_sub_u32 s66, s{sW}, 4
s_lshl_b32 s67, s{sX}, 15
s_lshl_b32 s68, s{sK}, 11
s_add_u32 s68, s68, s67
s_add_u32 s69, s68, {WS_H1L}
s_waitcnt lgkmcnt(0)
s_load_dword s{sE}, s[48:49], 0
s_cmp_lg_u32 s66, 1
s_cbranch_scc1 L_h_b
buffer_load_dwordx4 v[248:251], v9, {WS}, s69 offen
buffer_load_dwordx4 v[248:251], v9, {WS}, s69 offen offset:1024
L_h_b:
""")
if OPT['wqh']:
    A(f"""
    s_cmp_lt_u32 s66, 2
    s_cbranch_scc1 L_h_c
    s_lshr_b32 s68, s{sK}, 2
    s_mul_i32 s68, s68, 144
    s_and_b32 s69, s{sK}, 3
    s_lshl_b32 s69, s69, 2
    s_add_u32 s68, s68, s69
    s_lshl_b32 s69, s66, 1
    s_add_u32 s68, s68, s69
    s_add_u32 s68, s68, 124
    s_lshl_b32 s68, s68, 13
    s_lshl_b32 s69, s{sX}, 10
    s_add_u32 s68, s68, s69
    s_add_u32 s69, s68, 8192
    buffer_load_dwordx4 v[248:251], v9, {RB}, s68 offen
    buffer_load_dwordx4 v[248:251], v9, {RB}, s69 offen
    L_h_c:
    """)
A(f"""
s_lshr_b32 s67, s{sX}, 1
s_lshl_b32 s67, s67, 15
s_lshl_b32 s68, s66, 13
s_add_u32 s67, s67, s68
s_add_u32 s67, s67, {WS_H2}
s_and_b32 s69, s66, 1
s_lshl_b32 s69, s69, 1
v_xor_b32 v10, s69, v3
v_lshlrev_b32 v10, 4, v10
v_lshl_add_u32 v10, v2, 10, v10
s_add_u32 s68, s68, {QA}
v_add_u32 v16, s68, v10
v_xor_b32 v17, 64, v16
v_xor_b32 v18, 16, v16
v_xor_b32 v19, 80, v16
v_lshrrev_b32 v12, 5, v{vL}
v_and_b32 v13, 1, v4
v_lshrrev_b32 v14, 1, v6
v_lshl_or_b32 v13, v13, 1, v14
v_and_b32 v14, 2, v5
v_lshl_or_b32 v14, v14, 1, v12
v_xor_b32 v13, v13, v14
v_lshlrev_b32 v13, 4, v13
v_lshl_add_u32 v13, v5, 7, v13
v_lshl_add_u32 v13, v12, 9, v13
v_and_b32 v14, 1, v6
v_lshl_add_u32 v13, v14, 3, v13
s_lshl_b32 s68, s66, 11
v_add_u32 v20, s68, v13
v_xor_b32 v21, 32, v20
v_xor_b32 v22, 64, v20
v_xor_b32 v23, 96, v20
""")
for j in range(4): A(f"v_add_u32 v{24+j}, 0x10000, v{20+j}")
A(f"s_getreg_b32 s65, hwreg(HW_REG_XCC_ID, 0, 4)\ns_lshl_b32 s72, s{sX}, 11\ns_add_u32 s72, s72, {WS_XT}\ns_waitcnt lgkmcnt(0)")
get_tag()
A(f"""
s_cmp_lg_u32 s66, 0
s_cbranch_scc1 L_noxt
s_lshl_b32 s68, s{sK}, 7
s_add_u32 s68, s68, s72
v_mov_b32 v28, s65
v_mov_b32 v29, s{sT}
v_lshlrev_b32 v30, 3, v{vL}
s_mov_b64 exec, 0xffff
buffer_store_dwordx2 v[28:29], v30, {WS}, s68 offen sc1
s_mov_b64 exec, -1
L_noxt:
""")
A(f"""
s_add_u32 s72, s48, s72
s_addc_u32 s73, s49, 0
s_lshl_b32 s74, s{sX}, 13
s_lshl_b32 s75, s66, {8 if OPT['cpq'] else 11}
s_add_u32 s74, s74, s75
s_add_u32 s74, s74, {WS_PQ}
s_add_u32 s74, s48, s74
s_addc_u32 s75, s49, 0
s_mov_b32 s77, 0
s_sleep 32
""")
if not OPT['local']: A(f"s_mov_b32 s{sLOC}, 1")
if OPT['local']:
    A(f"s_cmp_lg_u32 s66, 0\ns_cbranch_scc1 L_nx\nL_nxp:\ns_mov_b32 s{sLOC}, 0\ns_mov_b32 s76, 0")
    for hlf in range(2):
        for i in range(8): A(f"s_load_dwordx2 s[{16+16*hlf+2*i if hlf == 0 or i < 4 else 52+2*(i-4)}:{17+16*hlf+2*i if hlf == 0 or i < 4 else 53+2*(i-4)}], s[72:73], {(8*hlf+i)*128} glc")
    A("s_waitcnt lgkmcnt(0)")
    for r in list(range(16, 40, 2)) + list(range(52, 60, 2)):
        A(f"s_xor_b32 s{r}, s{r}, s65\ns_or_b32 s{sLOC}, s{sLOC}, s{r}\ns_xor_b32 s{r+1}, s{r+1}, s{sT}\ns_or_b32 s76, s76, s{r+1}")
    A(f"s_or_b32 s{sLOC}, s{sLOC}, s76\ns_add_u32 s77, s77, 1\ns_cmp_ge_u32 s77, 8\ns_cbranch_scc1 L_nx\ns_cmp_lg_u32 s76, 0\ns_cbranch_scc1 L_nxp\nL_nx:")
A(f"""
L_xp:
s_sleep {OPT['psl']}
s_mov_b32 s76, 0
""")
if OPT['cpq']:
    A("s_load_dwordx8 s[16:23], s[74:75], 0 glc\ns_load_dwordx8 s[24:31], s[74:75], 128 glc\ns_waitcnt lgkmcnt(0)")
else:
    for i in range(16): A(f"s_load_dword s{16+i}, s[74:75], {i*128} glc")
    A("s_waitcnt lgkmcnt(0)")
for i in range(16): A(f"s_xor_b32 s{16+i}, s{16+i}, s{sT}\ns_or_b32 s76, s76, s{16+i}")
A(f"""
s_add_u32 s77, s77, 1
s_cmp_ge_u32 s77, {POLL_MAX}
s_cbranch_scc1 L_xd
s_cmp_lg_u32 s76, 0
s_cbranch_scc1 L_xp
L_xd:
""")
ST(6, 2)
if OPT['gbar'] <= 8: A("s_barrier")
if OPT['exp'] == 2: A("s_branch L_end")
ST(9)
vQ = 32
A(f"s_mov_b32 s76, 0xff\ns_mov_b32 s77, 0\ns_add_u32 s69, s67, 4096\nL_h2poll:")
for i in range(8):
    A(f"s_bitcmp1_b32 s76, {i}\ns_cbranch_scc0 L_h2i{i}")
    A(f"buffer_load_dwordx4 {vr(vQ+4*i,4)}, v9, {WS}, s{67 if i < 4 else 69} offen offset:{(i&3)*1024} sc1")
    A(f"L_h2i{i}:")
A(f"s_add_u32 s77, s77, 1\ns_cmp_eq_u32 s77, 1\ns_cbranch_scc1 L_h2first\ns_waitcnt vmcnt(0)\nL_h2first:")
for i in range(8):
    var = ((i >> 1) & 1) + 2*((i >> 2) & 1)
    q = vQ+4*i
    A(f"s_bitcmp1_b32 s76, {i}\ns_cbranch_scc0 L_h2c{i}")
    A(f"s_waitcnt vmcnt({7-i})")
    A(f"v_max3_u32 v28, v{q}, v{q+1}, v{q+2}\nv_max_u32 v28, v28, v{q+3}\nds_write_b128 v{16+var}, {vr(q,4)} offset:{i*128}\nv_cmp_eq_u32 vcc, -1, v28")
    A(f"s_cbranch_vccnz L_h2c{i}\ns_bitset0_b32 s76, {i}\nL_h2c{i}:")
A(f"""
s_waitcnt lgkmcnt(0)
s_cmp_ge_u32 s77, {POLL_MAX}
s_cbranch_scc1 L_h2done
s_cmp_eq_u32 s76, 0
s_cbranch_scc1 L_h2done
s_sleep {OPT['rsleep']}
s_branch L_h2poll
L_h2done:
""")
ST(1)
if OPT['prio']: A("s_setprio 0")
A(f"""
s_lshl_b32 s70, s{sX}, 4
s_add_u32 s70, s70, s{sK}
s_lshl_b32 s76, s70, 15
s_lshl_b32 s71, s66, 13
s_add_u32 s76, s76, s71
s_add_u32 s76, s76, {WS_H3A}
s_add_u32 s78, s76, 4096
s_lshl_b32 s75, s70, 10
s_add_u32 s75, s75, {WS_FLG}
s_barrier
""")
vV = 96; vO = 32
def vfrag(f, tau): return vV + 4*(f*4 + tau)
PR = [224+4*f for f in range(6)] + [16, 252]
def pv_reads(f):
    for tau in range(4):
        for jj in range(2):
            a = (20 if f < 4 else 24) + jj + 2*(tau & 1)
            off = (f & 3)*16384 + jj*8192 + (tau >> 1)*1024
            A(f"ds_read_b64_tr_b16 {vr(vfrag(f,tau)+2*jj,2)}, v{a} offset:{off}")
if OPT['local']:
    A(f"s_cmp_lg_u32 s66, 0\ns_cbranch_scc1 L_npt\nbuffer_load_dwordx4 v[248:251], v9, {WS}, s75 offen\nL_npt:")
    if not OPT['nopt']:
        for i in range(8): A(f"buffer_load_dwordx4 v[248:251], v9, {WS}, s{76 if i < 4 else 78} offen offset:{(i&3)*1024}")
FO = [0, 2, 4, 6, 1, 3, 5, 7]
pv_reads(FO[0])
A("s_barrier")
for n in range(1, 8):
    A("s_waitcnt lgkmcnt(6)")
    if n == 5:
        A(f"""
        v_mov_b32 v15, {QA+LCO}
        s_cmp_lg_u32 s66, 0
        s_cbranch_scc1 L_nl
        v_mov_b32 v28, s{sLOC}
        ds_write_b32 v15, v28
        L_nl:
        s_barrier
        """)
    pv_reads(FO[n])
A(f"""
v_add_u32 v10, {QA}, v9
v_and_b32 v13, 31, v{vL}
v_lshlrev_b32 v13, 4, v13
v_lshl_add_u32 v11, v12, 16, v13
s_lshl_b32 s68, s{sX}, 19
s_lshl_b32 s69, s{sK}, 11
s_add_u32 s68, s68, s69
s_lshl_b32 s70, s66, 9
s_add_u32 s68, s68, s70
s_add_u32 s68, s68, {WS_H3A}
s_lshl_b32 s71, s66, 7
s_add_u32 s71, s71, s75
v_mov_b32 v14, s{sT}
s_waitcnt lgkmcnt(0)
s_barrier
""")
ST(3)
def p_read(f): A(f"ds_read_b128 {vr(PR[f],4)}, v10 offset:{(f>>1)*8192+(f&1)*1024}")
for f in FO[:4]: p_read(f)
for n, f in enumerate(FO):
    if n < 3: A(f"s_waitcnt lgkmcnt({3-n})")
    elif n == 3: pass
    else: A(f"s_waitcnt lgkmcnt({8-n})")
    for tau in range(4): mf32(vO+16*tau, PR[f], vfrag(f,tau), n == 0)
    if n == 2:
        A("s_waitcnt lgkmcnt(0)\ns_barrier")
        for f2 in FO[4:]: p_read(f2)
        A("ds_read_b32 v15, v15")
A(f"s_waitcnt lgkmcnt(0)\nv_readfirstlane_b32 s{sLOC}, v15")
ST(4)
def pv_store(flag):
    for n, i in enumerate(range(0, 16, 2)):
        d = vV + 4*n
        A(f"v_cvt_pk_bf16_f32 v{d}, v{vO+i}, v{vO+16+i}\nv_cvt_pk_bf16_f32 v{d+2}, v{vO+i+1}, v{vO+16+i+1}")
        A(f"s_add_u32 s69, s68, {((i&3)//2 + 4*(i>>2))*32768}")
        A(f"v_cvt_pk_bf16_f32 v{d+1}, v{vO+32+i}, v{vO+48+i}\nv_cvt_pk_bf16_f32 v{d+3}, v{vO+32+i+1}, v{vO+48+i+1}")
        A(f"buffer_store_dwordx4 {vr(d,4)}, v11, {WS}, s69 offen {flag}")
    A(f"""
    s_mov_b64 exec, 1
    s_waitcnt vmcnt(0)
    buffer_store_dword v14, v8, {WS}, s71 offen offset:512 {flag}
    s_mov_b64 exec, -1
    """)
    ST(5)
    finish()
A(f"s_cmp_lg_u32 s{sLOC}, 0\ns_cbranch_scc1 L_pvfar")
pv_store("")
A("L_pvfar:\ns_nop 9")
pv_store("sc1")

A("L_end:")
if OPT['stamps']:
    A("s_waitcnt vmcnt(0)")
    ST(8)
    A(f"""
    s_waitcnt lgkmcnt(0)
    s_lshl_b32 s66, s2, 3
    s_add_u32 s66, s66, s{sW}
    s_lshl_b32 s66, s66, 6
    s_add_u32 s66, s66, {WS_ST}
    s_getreg_b32 s67, hwreg(HW_REG_XCC_ID)
    s_mov_b64 exec, 1
    v_mov_b32 v8, 0
    """)
    for i in range(3):
        A("\n".join(f"v_mov_b32 v{12+j}, s{80+2*(3*i+j)}" for j in range(3)))
        A(f"v_mov_b32 v15, {['s67','s77','s98'][i]}")
        A(f"buffer_store_dwordx4 v[12:15], v8, {WS}, s66 offen offset:{16*i}")
if OPT['hs'] >= 0:
    if OPT['hr'] == 1: A("s_cmp_ge_u32 s2, 128\ns_cbranch_scc1 L_exit")
    if OPT['hr'] == 3: A(f"s_cmp_ge_u32 s2, 128\ns_cbranch_scc1 L_exit\ns_cmp_ge_u32 s{sW}, 4\ns_cbranch_scc1 L_exit")
    if OPT['hr'] == 4: A(f"s_cmp_ge_u32 s2, 128\ns_cbranch_scc1 L_exit\ns_cmp_lt_u32 s{sW}, 4\ns_cbranch_scc1 L_exit")
    if OPT['hr'] == 2: A("s_cmp_lt_u32 s2, 128\ns_cbranch_scc1 L_exit")
    A(f"s_cmp_eq_u32 s{80+2*OPT['hs']}, 0\ns_cbranch_scc1 L_exit")
    A(f"L_hold2:\ns_memrealtime s[66:67]\ns_waitcnt lgkmcnt(0)\ns_sub_u32 s68, s66, s{80+2*OPT['hs']}\ns_cmp_lt_u32 s68, 4000\ns_cbranch_scc1 L_hold2")
if OPT['hold']:
    A(f"L_hold:\ns_memrealtime s[66:67]\ns_waitcnt lgkmcnt(0)\ns_sub_u32 s68, s66, s80\ns_cmp_lt_u32 s68, {OPT['hold']}\ns_cbranch_scc1 L_hold")
A("L_exit:\ns_endpgm")
A.raw(f""".section .rodata,"a"
.p2align 6
.amdhsa_kernel {NAME}_kernel
  .amdhsa_next_free_vgpr 256
  .amdhsa_next_free_sgpr 102
  .amdhsa_accum_offset 256
  .amdhsa_group_segment_fixed_size 0
  .amdhsa_kernarg_size 104
  .amdhsa_user_sgpr_count 2
  .amdhsa_user_sgpr_kernarg_segment_ptr 1
  .amdhsa_system_sgpr_workgroup_id_x 1
  .amdhsa_float_denorm_mode_32 3
.end_amdhsa_kernel""")
sys.stdout.write(A.text())
sys.stderr.write(f"instructions {A.count} nops {A.nops}\n")
```

```python
import sys, math, struct
from asmx import Asm, NAME

OPT = dict(stamps=0, local=1, hold=0, pf=1, exp=0, gbar=8, rsleep=2, help=3, fslow=0, tslow=0, wb=0, gap=0, prio=1, ukw=0, wqh=1, adel=0, psl=4, cpq=1, hb=1, noclr=0, nopt=0, hslow=0, gslow=0, Tslow=0, areg=1, pvp=1, ckh=1, lnt=0, hs=-1, hr=0)
for a in sys.argv[1:]:
    k, v = a.split("="); assert k in OPT, k; OPT[k] = int(v)

WS_PF  = 0x010000
WS_FF  = 0x020000
WS_XT  = 0x030000
WS_H1  = 0x040000
WS_H1L = 0x0C0000
WS_H2  = 0x080000
WS_PQ  = 0x0A0000
WS_FLG = 0x100000
WS_H3B = 0x140000
WS_H5  = 0x200000
WS_H3A = 0x400000
WS_ST  = 0x800000
POLL_MAX = 60000 if not OPT['exp'] else 40

P_X, P_CKV, P_WQ, P_WUK, P_WUV, P_WO, P_BX, P_WG, P_WU, P_WD, P_OUT, P_DBG = [16+2*i for i in range(12)]
sSL, sF = 40, 41
sE, sT, sW, sX, sK, sH = 42, 43, 44, 45, 46, 47
WS = "s[48:51]"; RA = "s[52:55]"; RB = "s[56:59]"; RC = "s[60:63]"
sQD, sA_ = 64, 65
A = Asm()
HW = '\ns_waitcnt vmcnt(0)' if OPT['hslow'] else ''
NQPART = [True]

def srd(base, ptr, size):
    A(f"s_mov_b32 s{base}, s{ptr}\ns_mov_b32 s{base+1}, s{ptr+1}\ns_mov_b32 s{base+2}, {size}\ns_mov_b32 s{base+3}, 0x20000")
def ST(i, mode=1):
    if OPT['stamps'] == mode or (OPT['stamps'] and i in (0, 8)): A(f"s_memrealtime s[{80+2*i}:{81+2*i}]")
def vr(a, n): return f"v[{a}:{a+n-1}]"
def dma(voff, rsrc, soff, flags="nt"):
    A(f"buffer_load_dwordx4 v{voff}, {rsrc}, s{soff} offen {flags} lds")
def finish(): A("s_branch L_end")
def get_tag():
    A(f"s_add_u32 s{sE}, s{sE}, 1\ns_mul_i32 s{sT}, s{sE}, 0x9E3779B1\ns_xor_b32 s{sT}, s{sT}, 0x5BD1E995")
def rb16(dst, src):
    A(f"v_cvt_pk_bf16_f32 v{dst}, v{src}, v{src}\nv_lshlrev_b32 v{dst}, 16, v{dst}")
DPPF = "row_mask:0xf bank_mask:0xf"
QP1 = "quad_perm:[1,0,3,2] " + DPPF
def wave_sum_to_sgpr(v, s):
    for r in (8, 4, 2, 1): A(f"v_add_f32_dpp v{v}, v{v}, v{v} row_ror:{r} {DPPF}")
    A(f"v_add_f32_dpp v{v}, v{v}, v{v} row_bcast:15 row_mask:0xa bank_mask:0xf")
    A(f"v_add_f32_dpp v{v}, v{v}, v{v} row_bcast:31 row_mask:0xc bank_mask:0xf")
    A(f"v_readlane_b32 s{s}, v{v}, 63")
def fbits(x): return "0x%08x" % struct.unpack("<I", struct.pack("<f", x))[0]
def mf16(d, a, b, first): A(f"v_mfma_f32_16x16x32_bf16 {vr(d,4)}, {vr(a,4)}, {vr(b,4)}, {'0' if first else vr(d,4)}")
def mf32(d, a, b, first): A(f"v_mfma_f32_32x32x16_bf16 {vr(d,16)}, {vr(a,4)}, {vr(b,4)}, {'0' if first else vr(d,16)}")
def ones(v): A("\n".join(f"v_mov_b32 v{v+j}, -1" for j in range(4)))
LOG2E = 1.4426950408889634

A.raw("; @launch grid=(256,1,1) block=(512,1,1) lds=163840")
A.raw('.amdgcn_target "amdgcn-amd-amdhsa--gfx950"')
A.raw(f".text\n.globl {NAME}_kernel\n.p2align 8\n.type {NAME}_kernel,@function\n{NAME}_kernel:")
vL = 1
ST(0)
A(f"""
s_load_dwordx2 s[48:49], s[0:1], 96
s_load_dwordx2 s[52:53], s[0:1], 0
s_load_dwordx2 s[56:57], s[0:1], 16
s_load_dwordx2 s[60:61], s[0:1], 24
s_load_dwordx16 s[16:31], s[0:1], 0
s_load_dwordx8 s[32:39], s[0:1], 64
s_cmp_ge_u32 s2, 256
s_cbranch_scc1 L_exit
v_lshrrev_b32 v2, 6, v0
v_and_b32 v{vL}, 63, v0
v_readfirstlane_b32 s{sW}, v2
s_and_b32 s{sX}, s2, 7
s_lshr_b32 s{sK}, s2, 3
v_lshlrev_b32 v9, 4, v{vL}
s_mov_b32 s50, 0x10000000
s_mov_b32 s51, 0x20000
s_mov_b32 s55, 0x20000
s_mov_b32 s58, {576*8192}
s_mov_b32 s59, 0x20000
s_mov_b32 s62, {512*8192}
s_mov_b32 s63, 0x20000
s_cmp_lt_u32 s2, 128
s_cbranch_scc1 L_att
""")
def lane_consts():
    A(f"v_lshrrev_b32 v2, 3, v{vL}\nv_and_b32 v3, 7, v{vL}\nv_lshrrev_b32 v4, 4, v{vL}\nv_bfe_u32 v5, v{vL}, 2, 2\nv_and_b32 v6, 3, v{vL}\nv_lshlrev_b32 v7, 4, v0\nv_mov_b32 v8, 0")
    if OPT['stamps']:
        for i in range(82, 102): A(f"s_mov_b32 s{i}, 0")

XN, XNS = 0, 1216
QL, QLS = 5120, 320
HB, HBS = 9728, 192
BIG = 16384
vTR = 13
vD = 28
def common_setup():
    lane_consts()
    A(f"""
    s_and_b32 s67, s{sW}, 1
    s_lshl_b32 s68, s67, 2
    v_and_b32 v11, 2, v2
    v_or_b32 v11, s68, v11
    v_xor_b32 v11, v11, v3
    v_lshlrev_b32 v11, 4, v11
    v_lshl_add_u32 v12, v2, 13, v11
    s_lshr_b32 s68, s{sW}, 1
    s_bfe_u32 s69, s{sW}, 0x10001
    s_lshr_b32 s70, s{sW}, 2
    """)
def common_setup2():
    A(f"""
    s_and_b32 s74, s{sW}, 3
    s_lshl_b32 s74, s74, 1
    v_lshrrev_b32 v{vTR}, 1, v6
    v_or_b32 v{vTR}, s74, v{vTR}
    v_and_b32 v14, 2, v5
    v_xor_b32 v{vTR}, v{vTR}, v14
    v_and_b32 v14, 1, v4
    v_lshlrev_b32 v15, 2, v14
    v_xor_b32 v{vTR}, v{vTR}, v15
    v_lshlrev_b32 v{vTR}, 4, v{vTR}
    v_lshl_add_u32 v{vTR}, v5, 7, v{vTR}
    v_and_b32 v15, 1, v6
    v_lshl_add_u32 v{vTR}, v15, 3, v{vTR}
    s_lshl_b32 s74, s70, 10
    s_add_u32 s74, s74, {BIG}
    v_add_u32 v15, s74, v{vTR}
    v_lshl_add_u32 v16, v4, 11, v15
    v_mul_u32_u24 v18, {XNS}, v6
    v_lshl_add_u32 v18, v4, 4, v18
    s_mov_b32 s78, 0x000f000f
    s_mov_b32 s79, 0x000f000f
    """)
def x_loads():
    A(f"""
    s_mul_i32 s66, s{sW}, 1152
    v_lshlrev_b32 v10, 3, v{vL}
    v_lshlrev_b32 v19, 1, v{vL}
    buffer_load_dwordx2 v[20:21], v10, {RA}, s66 offen
    buffer_load_dwordx2 v[22:23], v10, {RA}, s66 offen offset:512
    buffer_load_ushort v24, v19, {RA}, s66 offen offset:1024
    """)
def layernorm():
    e = list(range(56, 65))
    for i in range(4): A(f"v_lshlrev_b32 v{e[2*i]}, 16, v{20+i}\nv_and_b32 v{e[2*i+1]}, 0xffff0000, v{20+i}")
    A(f"""
    v_lshlrev_b32 v{e[8]}, 16, v24
    v_add_f32 v25, v{e[0]}, v{e[1]}
    v_add_f32 v26, v{e[2]}, v{e[3]}
    v_add_f32 v27, v{e[4]}, v{e[5]}
    v_add_f32 v28, v{e[6]}, v{e[7]}
    v_add_f32 v25, v25, v26
    v_add_f32 v27, v27, v28
    v_add_f32 v25, v25, v{e[8]}
    v_add_f32 v25, v25, v27
    """)
    wave_sum_to_sgpr(25, 74)
    A(f"v_mov_b32 v26, {fbits(1.0/576)}\nv_mul_f32 v26, s74, v26")
    A(f"v_sub_f32 v27, v{e[0]}, v26\nv_mul_f32 v25, v27, v27")
    for i in range(1, 9): A(f"v_sub_f32 v27, v{e[i]}, v26\nv_fmac_f32 v25, v27, v27")
    rb16(26, 26)
    for i in range(9): A(f"v_sub_f32 v{e[i]}, v{e[i]}, v26")
    wave_sum_to_sgpr(25, 74)
    A(f"v_mov_b32 v27, {fbits(1.0/576)}\nv_mul_f32 v27, s74, v27")
    rb16(27, 27)
    A(f"v_add_f32 v27, {fbits(1e-5)}, v27")
    rb16(27, 27)
    A("v_sqrt_f32 v27, v27")
    rb16(27, 27)
    A("v_rcp_f32 v27, v27")
    for i in range(0, 8, 2): A(f"v_cvt_pk_bf16_f32 v{20+i//2}, v{e[i]}, v{e[i+1]}")
    A(f"v_cvt_pk_bf16_f32 v24, v{e[8]}, v{e[8]}")
    for i in range(0, 8, 2): A(f"v_lshlrev_b32 v{e[i]}, 16, v{20+i//2}\nv_and_b32 v{e[i+1]}, 0xffff0000, v{20+i//2}")
    A(f"v_lshlrev_b32 v{e[8]}, 16, v24")
    for i in range(9): A(f"v_mul_f32 v{e[i]}, v{e[i]}, v27")
    for i in range(0, 8, 2): A(f"v_cvt_pk_bf16_f32 v{20+i//2}, v{e[i]}, v{e[i+1]}")
    A(f"v_cvt_pk_bf16_f32 v24, v{e[8]}, v{e[8]}")
    A(f"""
    s_mul_i32 s74, s{sW}, {XNS}
    v_add_u32 v10, s74, v10
    v_add_u32 v19, s74, v19
    ds_write_b64 v10, v[20:21] offset:{XN}
    ds_write_b64 v10, v[22:23] offset:{XN+512}
    ds_write_b16 v19, v24 offset:{XN+1024}
    """)
def clear_tail_inbox(vones):
    A(f"s_lshl_b32 s74, s{sH}, 14\ns_add_u32 s74, s74, {WS_H3B}")
    for i in range(4):
        A(f"buffer_store_dwordx4 {vr(vones,4)}, v9, {WS}, s74 offen sc1\nbuffer_store_dwordx4 {vr(vones,4)}, v9, {WS}, s74 offen offset:2048 sc1")
        if i < 3: A("s_add_u32 s74, s74, 4096")
    A(f"s_sub_u32 s74, s74, {3*4096}\nv_lshlrev_b32 v14, 11, v2\nv_lshl_add_u32 v14, v3, 4, v14")
    A(f"buffer_store_dwordx4 {vr(vones,4)}, v14, {WS}, s74 offen offset:1024 sc1")
def proof(sidx):
    A(f"""
    s_lshl_b32 s74, s{sidx}, 7
    s_add_u32 s74, s74, {WS_PF}
    v_mov_b32 v14, s{sT}
    v_lshlrev_b32 v17, 2, v{vL}
    s_mov_b32 exec_hi, 0
    buffer_store_dword v14, v17, {WS}, s74 offen sc1
    s_mov_b64 exec, -1
    """)
vXN, vG = 32, 104
def xn_frags():
    for kp in range(18):
        A(f"ds_read_b128 {vr(vXN+4*kp,4)}, v18 offset:{XN+kp*64}")
        if kp == 11: A("s_waitcnt lgkmcnt(4)")
def k_half(h, va, vb):
    for kp in range(9):
        a, off = (va, kp*8192) if kp < 8 else (vb, 0)
        A(f"ds_read_b64_tr_b16 {vr(vG+4*kp,2)}, v{a} offset:{off}")
        A(f"ds_read_b64_tr_b16 {vr(vG+4*kp+2,2)}, v{a} offset:{off+512}")
        if kp == 5: A("s_waitcnt lgkmcnt(6)")
    for kp in range(9):
        A(f"s_waitcnt lgkmcnt({min(15,2*(8-kp))})")
        mf16(vD, vG+4*kp, vXN+4*(9*h+kp), h == 0 and kp == 0)

QP, QPS = 5120, 272
WQB = BIG + 108*1024
UKB = BIG
sU = 76
def f_setup():
    A(f"""
    s_lshl_b32 s71, s{sA_}, 1
    s_add_u32 s71, s71, s{sQD}
    s_lshr_b32 s72, s{sQD}, 1
    s_cmp_eq_u32 s{sA_}, 3
    s_cselect_b32 s72, s72, 2
    s_sub_u32 s71, s71, s72
    s_mul_i32 s{sU}, s{sX}, 9
    s_add_u32 s{sU}, s{sU}, s71
    s_cmp_eq_u32 s69, 0
    s_cselect_b32 s60, s{P_WG}, s{P_WU}
    s_cselect_b32 s61, s{P_WG+1}, s{P_WU+1}
    s_mov_b32 s62, {576*9216}
    s_lshl_b32 s72, s67, 1
    s_lshl_b32 s71, s69, 2
    s_or_b32 s72, s72, s71
    v_bfe_u32 v14, v2, 1, 1
    v_or_b32 v14, s72, v14
    v_xor_b32 v14, v14, v3
    v_lshlrev_b32 v14, 4, v14
    v_mul_u32_u24 v12, 9216, v2
    v_add_u32 v12, v12, v14
    s_lshl_b32 s71, s70, 1
    s_add_u32 s71, s71, s67
    s_mul_i32 s72, s71, {8*9216}
    s_lshl_b32 s74, s{sU}, 7
    s_add_u32 s72, s72, s74
    s_lshl_b32 s71, s71, 1
    s_add_u32 s71, s71, s69
    s_lshl_b32 s71, s71, 10
    s_add_u32 s71, s71, {BIG}
    """)
def gu_dma(i):
    A(f"s_mov_b32 m0, s71\ns_add_u32 s71, s71, 8192")
    dma(12, RC, 72)
    A(f"s_add_u32 s72, s72, {32*9216}")
A(f"""
L_nq:
s_bfe_u32 s{sA_}, s2, 0x20005
s_bfe_u32 s{sQD}, s2, 0x20003
s_lshl_b32 s{sH}, s{sX}, 2
s_add_u32 s{sH}, s{sH}, s{sA_}
s_mov_b32 s54, 4608
v_lshrrev_b32 v2, 3, v{vL}
v_and_b32 v3, 7, v{vL}
s_and_b32 s67, s{sW}, 1
s_lshl_b32 s68, s67, 2
v_and_b32 v11, 2, v2
v_or_b32 v11, s68, v11
v_xor_b32 v11, v11, v3
v_lshlrev_b32 v11, 4, v11
v_lshl_add_u32 v12, v2, 13, v11
s_bfe_u32 s69, s{sW}, 0x10001
s_lshr_b32 s70, s{sW}, 2
s_mul_i32 s71, s70, 10
s_add_u32 s71, s71, s67
s_mul_i32 s72, s{sQD}, 18
s_add_u32 s72, s72, s71
s_lshl_b32 s72, s72, 16
s_lshl_b32 s73, s{sH}, 8
s_lshl_b32 s74, s69, 7
s_add_u32 s73, s73, s74
s_add_u32 s72, s72, s73
s_lshl_b32 s71, s71, 1
s_add_u32 s71, s71, s69
s_lshl_b32 s71, s71, 10
s_add_u32 s71, s71, {WQB}
s_mov_b32 m0, s71
s_cmp_lg_u32 s70, 0
s_waitcnt lgkmcnt(0)
s_cbranch_scc1 L_nq_nox
""")
x_loads()
dma(12, RB, 72)
A(f"s_add_u32 s71, s71, 4096\ns_add_u32 s72, s72, {2*65536}\ns_mov_b32 m0, s71\nL_nq_nox:")
for i in range(4):
    A(f"s_add_u32 s71, s71, 4096")
    dma(12, RB, 72)
    if i < 3: A(f"s_add_u32 s72, s72, {2*65536}\ns_mov_b32 m0, s71")
A(f"s_load_dword s{sE}, s[48:49], 0")
lane_consts()
ST(1, 2)
A(f"s_lshr_b32 s68, s{sW}, 1\ns_cmp_ge_u32 s{sQD}, 2\ns_cbranch_scc1 L_nq_fs")
A(f"""
s_lshl_b32 s71, s70, 3
s_add_u32 s71, s71, s67
s_lshl_b32 s72, s{sQD}, 5
s_add_u32 s72, s72, s71
s_lshl_b32 s72, s72, 16
s_add_u32 s72, s72, s73
s_lshl_b32 s71, s71, 1
s_add_u32 s71, s71, s69
s_lshl_b32 s71, s71, 10
s_add_u32 s71, s71, {UKB}
s_cmp_eq_u32 s70, 0
s_cbranch_scc1 L_nq_ln
""")
ones(24)
A(f"""
s_lshl_b32 s75, s{sW}, 12
s_lshl_b32 s74, s{sH}, 14
s_add_u32 s74, s74, s75
s_add_u32 s74, s74, {WS_H3B-16384}
buffer_store_dwordx4 v[24:27], v9, {WS}, s74 offen sc1
buffer_store_dwordx4 v[24:27], v9, {WS}, s74 offen offset:2048 sc1
s_mov_b64 exec, 0xff
buffer_store_dwordx4 v[24:27], v9, {WS}, s74 offen offset:1024 sc1
buffer_store_dwordx4 v[24:27], v9, {WS}, s74 offen offset:3072 sc1
s_lshl_b32 s75, s{sW}, 15
s_lshl_b32 s74, s{sH}, 10
s_add_u32 s74, s74, s75
s_lshl_b32 s75, s{sQD}, 9
s_add_u32 s74, s74, s75
s_add_u32 s74, s74, {WS_H2-4*32768}
s_mov_b32 exec_lo, -1
buffer_store_dwordx4 v[24:27], v9, {WS}, s74 offen sc1
s_mov_b64 exec, -1
s_branch L_nq_noln
L_nq_fs:
s_cmp_lg_u32 s{sK}, 30
s_cbranch_scc1 L_nq_fs2
s_cmp_eq_u32 s70, 0
s_cbranch_scc1 L_nq_ln
""")
ones(24)
A(f"""
s_lshl_b32 s75, s{sW}, 12
s_lshl_b32 s74, s{sH}, 14
s_add_u32 s74, s74, s75
s_add_u32 s74, s74, {WS_H3B-16384}
buffer_store_dwordx4 v[24:27], v9, {WS}, s74 offen sc1
buffer_store_dwordx4 v[24:27], v9, {WS}, s74 offen offset:2048 sc1
s_mov_b64 exec, 0xff
buffer_store_dwordx4 v[24:27], v9, {WS}, s74 offen offset:1024 sc1
buffer_store_dwordx4 v[24:27], v9, {WS}, s74 offen offset:3072 sc1
s_mov_b64 exec, -1
s_branch L_nq_noln
L_nq_fs2:
""")
f_setup()
A(f"s_cmp_lg_u32 s70, 0\ns_cbranch_scc1 L_nq_noln\nL_nq_ln:\ns_waitcnt vmcnt(5)")
ST(2, 2)
layernorm()
A("L_nq_noln:")
ST(3, 2)
common_setup2()
A(f"""
v_add_u32 v21, {WQB-BIG}, v16
v_and_b32 v14, 1, v4
v_lshl_add_u32 v17, v14, 11, v15
v_add_u32 v17, {WQB-BIG}, v17
s_mul_i32 s74, s{sQD}, 288
v_add_u32 v19, s74, v18
s_lshl_b32 s66, s{sH}, 13
s_add_u32 s66, s66, {WS_H1L}
s_lshl_b32 s75, s{sQD}, 11
s_add_u32 s75, s75, s66
s_lshl_b32 s77, s{sW}, 8
s_add_u32 s75, s75, s77
v_lshlrev_b32 v20, 6, v6
v_lshl_add_u32 v20, v4, 4, v20
v_cmp_gt_u32 vcc, 2, v4
s_cmp_lt_u32 s{sQD}, 2
s_cbranch_scc1 L_nq_uk
s_waitcnt vmcnt(0)
""")
for i in range(OPT['gap']): gu_dma(i)
A(f"""
s_branch L_nq_a
L_nq_uk:
s_waitcnt vmcnt(5)
s_cmp_lg_u32 s70, 0
s_cbranch_scc1 L_nq_uk2
s_waitcnt vmcnt(0)
L_nq_uk2:
""")
for i in range(4):
    A(f"s_mov_b32 m0, s71\ns_add_u32 s71, s71, 4096")
    dma(12, RC, 72)
    A(f"s_add_u32 s72, s72, {2*65536}")
A("L_nq_a:\ns_waitcnt lgkmcnt(0)")
ST(1); ST(5, 2)
A("s_barrier")
vA, vB = 64, 96
for kp in range(5):
    a = 21 if kp < 4 else 17
    A(f"ds_read_b64_tr_b16 {vr(vA+4*kp,2)}, v{a} offset:{kp*8192}")
    A(f"ds_read_b64_tr_b16 {vr(vA+4*kp+2,2)}, v{a} offset:{kp*8192+512}")
    A(f"ds_read_b128 {vr(vB+4*kp,4)}, v19 offset:{XN+kp*64}")
get_tag()
A(f"v_mov_b32 v25, s{sT}\nv_mov_b32 v27, s{sT}")
for kp in range(5):
    A(f"s_waitcnt lgkmcnt({3*(4-kp)})")
    if kp == 4:
        for j in range(4): A(f"v_cndmask_b32 v{vB+16+j}, 0, v{vB+16+j}, vcc")
    mf16(vD, vA+4*kp, vB+4*kp, kp == 0)
H1D = WS_H1L - WS_H1
def pq_addr():
    if OPT['cpq']:
        return f"""v_lshlrev_b32 v55, 13, v{vL}
        s_lshl_b32 s76, s{sX}, 7
        s_lshl_b32 s74, s{sA_}, 3
        s_add_u32 s76, s76, s74
        s_lshl_b32 s74, s{sQD}, 2
        s_add_u32 s76, s76, s74
        s_add_u32 s76, s76, {WS_PQ}"""
    return f"""v_lshlrev_b32 v55, 13, v2
    v_lshl_add_u32 v55, v3, 4, v55
    s_lshl_b32 s76, s{sH}, 8
    s_lshl_b32 s74, s{sQD}, 7
    s_add_u32 s76, s76, s74
    s_add_u32 s76, s76, {WS_PQ}"""
PQST = f"s_mov_b64 exec, 0xff\nbuffer_store_dword v44, v55, {WS}, s76 offen sc1\ns_mov_b64 exec, -1" if OPT['cpq'] else f"buffer_store_dwordx4 v[44:47], v55, {WS}, s76 offen sc1"
A(f"""
v_and_b32 v52, 1, v2
v_and_b32 v53, 2, v3
v_lshl_or_b32 v53, v52, 2, v53
v_xor_b32 v53, v53, v4
v_lshlrev_b32 v53, 4, v53
v_lshl_add_u32 v53, v3, 7, v53
v_lshl_add_u32 v52, v52, 11, v53
v_cvt_pk_bf16_f32 v24, v{vD}, v{vD+1}
v_cvt_pk_bf16_f32 v26, v{vD+2}, v{vD+3}
s_mov_b64 exec, s[78:79]
buffer_store_dwordx4 v[24:27], v20, {WS}, s75 offen
s_sub_u32 s75, s75, {H1D}
s_cmp_lt_u32 s{sQD}, 2
s_cbranch_scc1 L_nq_b
buffer_store_dwordx4 v[24:27], v20, {WS}, s75 offen sc1
s_mov_b64 exec, -1
""")
ST(2); ST(6, 2)
A(f"s_barrier\ns_cmp_eq_u32 s{sK}, 30\ns_cbranch_scc1 L_T")
if OPT['ckh']:
    nb = OPT['ckh']; lpr = 8*nb; rpi = 64//lpr
    A(f"""
    s_mov_b32 s56, s{P_CKV}
    s_mov_b32 s57, s{P_CKV+1}
    s_lshl_b32 s74, s{sA_}, 1
    s_add_u32 s74, s74, s{sQD}
    s_sub_u32 s74, s74, 2
    s_min_u32 s74, s74, 6
    s_lshl_b32 s74, s74, 3
    s_add_u32 s74, s74, s{sW}
    s_mul_i32 s74, s74, {rpi*1024}
    s_lshl_b32 s75, s{sX}, 21
    s_add_u32 s74, s74, s75
    s_add_u32 s58, s75, {1 << 21}
    v_lshrrev_b32 v48, {int(math.log2(lpr))}, v{vL}
    v_and_b32 v49, {lpr-1}, v{vL}
    v_lshlrev_b32 v48, 10, v48
    v_lshl_add_u32 v48, v49, 4, v48
    """)
    n = -(-2048 // (56*rpi))
    for i in range(n):
        A(f"buffer_load_dwordx4 v[248:251], v48, {RB}, s74 offen offset:{1024-128*nb}")
        if i < n-1: A(f"s_add_u32 s74, s74, {56*rpi*1024}")
A(f"s_branch L_F\nL_nq_b:\ns_mov_b64 exec, -1")
ST(2); ST(6, 2)
A(f"s_barrier\ns_add_u32 s71, s71, 16384\ns_add_u32 s72, s72, {8*65536}")
for i in range(4):
    A(f"s_mov_b32 m0, s71\ns_add_u32 s71, s71, 4096")
    dma(12, RC, 72)
    if i < 3: A(f"s_add_u32 s72, s72, {2*65536}")
A(f"""
s_mul_i32 s74, s68, {4*QPS}
s_lshl_b32 s77, s67, 7
s_add_u32 s74, s74, s77
v_mul_u32_u24 v22, {QPS}, v5
v_lshl_add_u32 v22, v4, 5, v22
v_lshl_add_u32 v22, v6, 3, v22
v_add_u32 v22, s74, v22
s_lshl_b32 s77, s{sW}, 13
s_add_u32 s77, s77, {UKB}
v_add_u32 v52, s77, v52
v_xor_b32 v53, 64, v52
v_and_b32 v23, 15, v{vL}
v_mul_u32_u24 v23, {QPS}, v23
v_lshl_add_u32 v23, v4, 4, v23
s_lshl_b32 s72, s{sH}, 10
s_lshl_b32 s74, s{sQD}, 9
s_add_u32 s72, s72, s74
s_lshl_b32 s74, s{sW}, 6
s_add_u32 s72, s72, s74
s_add_u32 s72, s72, {WS_H2}
v_and_b32 v21, 1, v5
v_lshlrev_b32 v54, 15, v6
{pq_addr()}
v_mov_b32 v44, s{sT}
v_mov_b32 v45, s{sT}
v_mov_b32 v46, s{sT}
v_mov_b32 v47, s{sT}
v_lshl_add_u32 v54, v21, 5, v54
v_lshl_add_u32 v54, v4, 3, v54
s_sub_u32 s71, s66, {H1D}
s_mov_b32 s77, 0
L_h1poll:
s_cmp_lg_u32 s77, 6
s_cbranch_scc1 L_h1ng
s_mov_b64 exec, s[78:79]
buffer_store_dwordx4 v[24:27], v20, {WS}, s75 offen sc1
s_mov_b64 exec, -1
L_h1ng:
s_and_b32 s74, s77, 9
s_cmp_eq_u32 s74, 9
s_cselect_b32 s74, s71, s66
buffer_load_dwordx4 v[48:51], v7, {WS}, s74 offen sc1
s_add_u32 s77, s77, 1
s_waitcnt vmcnt(0)
v_xor_b32 v49, s{sT}, v49
v_xor_b32 v51, s{sT}, v51
v_or_b32 v49, v49, v51
v_cmp_ne_u32 vcc, 0, v49
s_cmp_ge_u32 s77, {POLL_MAX}
s_cbranch_scc1 L_h1done
s_cbranch_vccnz L_h1poll
L_h1done:
v_mov_b32 v49, v50
ds_write_b64 v22, v[48:49] offset:{QP}
s_cmp_gt_u32 s77, 6
s_cbranch_scc1 L_h1sent
s_mov_b64 exec, s[78:79]
buffer_store_dwordx4 v[24:27], v20, {WS}, s75 offen sc1
s_mov_b64 exec, -1
L_h1sent:
""")
A(f"L_h1np:\nv_cmp_ne_u32 vcc, 0, v21\ns_waitcnt lgkmcnt(0)")
ST(3); ST(7, 2)
A(f"s_barrier\ns_cmp_lg_u32 s{sW}, 0\ns_cbranch_scc1 L_nopq\n{PQST}\nL_nopq:")
vUK, vD1 = 64, 56
for kp in range(4):
    A(f"ds_read_b128 {vr(vB+4*kp,4)}, v23 offset:{QP+kp*64}")
    for tl in range(2):
        A(f"ds_read_b128 {vr(vUK+16*tl+4*kp,4)}, v{52+(kp&1)} offset:{tl*4096+(kp>>1)*1024}")
A(f"s_mov_b32 s74, {fbits(LOG2E/math.sqrt(128.0))}")
for kp in range(4):
    A(f"s_waitcnt lgkmcnt({9-3*kp+1})")
    mf16(vD, vUK+4*kp, vB+4*kp, kp == 0)
    A(f"s_waitcnt lgkmcnt({9-3*kp})")
    mf16(vD1, vUK+16+4*kp, vB+4*kp, kp == 0)
for j in range(4): A(f"v_cndmask_b32 v{60+j}, v{vD1+j}, v{vD+j}, vcc")
for j in range(4): A(f"v_cndmask_b32 v{vD+j}, v{vD+j}, v{vD1+j}, vcc")
for j in range(4): A(f"v_add_f32_dpp v{vD+j}, v{60+j}, v{vD+j} row_ror:4 {DPPF}")
for j in range(4): A(f"v_add_f32_dpp v{vD+j}, v{vD+j}, v{vD+j} row_ror:8 {DPPF}")
for j in range(4): A(f"v_mul_f32 v{vD+j}, s74, v{vD+j}")
A(f"""
v_cvt_pk_bf16_f32 v48, v{vD}, v{vD+1}
v_cvt_pk_bf16_f32 v49, v{vD+2}, v{vD+3}
v_min_u32 v48, -2, v48
v_min_u32 v49, -2, v49
s_mov_b32 exec_lo, 0x00ff00ff
s_mov_b32 exec_hi, 0x00ff00ff
buffer_store_dwordx2 v[48:49], v54, {WS}, s72 offen sc1
s_mov_b64 exec, -1
""")
ST(4); ST(9, 2)
A(f"""
s_barrier
s_cmp_lt_u32 s{sA_}, 3
s_cbranch_scc1 L_TH
""")
f_setup()
for i in range(OPT['gap']): gu_dma(i)
A("s_branch L_F")

def wide_voffset(v):
    A(f"v_mul_u32_u24 v{v}, 1152, v2\nv_add_u32 v{v}, v{v}, v11")
ZR = 15360
def publish_setup(stride):
    A(f"""
    s_mul_i32 s74, s{sW}, {stride}
    s_add_u32 s72, s72, s74
    v_mul_u32_u24 v20, {8*stride}, v5
    v_lshl_add_u32 v20, v4, 5, v20
    v_lshl_add_u32 v20, v6, 3, v20
    v_lshlrev_b32 v232, 2, v{vL}
    ds_write_b32 v232, v8 offset:{ZR}
    """)
def masked_addrs(vreal, base):
    A(f"v_mov_b32 v236, {ZR-base}")
    for i in range(4): A(f"v_cmp_eq_u32 vcc, {i}, v5\nv_cndmask_b32 v{232+i}, v236, v{vreal}, vcc")
def wide_dma(n, rsrc, slow=0):
    for i in range(n):
        A(f"s_mov_b32 m0, s71\ns_add_u32 s74, s72, 512")
        dma(14, rsrc, 72)
        if 2*i < slow: A("s_waitcnt vmcnt(0)")
        A(f"s_add_u32 s75, s71, 4096\ns_mov_b32 m0, s75\ns_add_u32 s72, s72, {16*1152}")
        dma(14, rsrc, 74)
        if 2*i+1 < slow: A("s_waitcnt vmcnt(0)")
        A(f"s_add_u32 s71, s71, 16384")
def wide_frag_addrs(base8, shift):
    A(f"v_lshl_add_u32 v16, v4, 13, v15")
    if shift: A(f"v_add_u32 v16, {shift}, v16")
    A(f"""
    v_add_u32 v17, 0x10000, v16
    v_lshl_add_u32 v18, v4, 10, v{vTR}
    v_add_u32 v18, {base8}, v18
    """)
def wide_frag_reads(vdst, nk):
    n = 0
    for i in range(4):
        for kp in range(nk):
            a = 16 if kp < 2 else 17
            off = (kp & 1)*32768 + i*2048
            d = vdst + (i*nk + kp)*4
            A(f"ds_read_b64_tr_b16 {vr(d,2)}, v{a} offset:{off}")
            A(f"ds_read_b64_tr_b16 {vr(d+2,2)}, v{a} offset:{off+512}")
            n += 2
            if n % 12 == 0: A("s_waitcnt lgkmcnt(4)")
    A("s_waitcnt lgkmcnt(4)")
    for kp in range(nk):
        d = vdst + (4*nk + kp)*4
        A(f"ds_read_b64_tr_b16 {vr(d,2)}, v18 offset:{kp*4096}")
        A(f"ds_read_b64_tr_b16 {vr(d+2,2)}, v18 offset:{kp*4096+512}")
def wide_gemm(vW, nk, vBf, base, stride, lab):
    acc, acc5 = 240, 244
    nb = 8
    order = [(i, kp) for i in range(4) for kp in range(nk)]
    def rd(n):
        i, kp = order[n]
        A(f"ds_read_b128 {vr(vBf+4*(n % nb),4)}, v{232+i} offset:{base+kp*64}")
    for n in range(min(nb, len(order))): rd(n)
    for n, (i, kp) in enumerate(order):
        A(f"s_waitcnt lgkmcnt({min(nb-1, len(order)-1-n)})")
        mf16(acc, vW+(i*nk+kp)*4, vBf+4*(n % nb), n == 0)
        if i == 0: mf16(acc5, vW+(4*nk+kp)*4, vBf+4*(n % nb), kp == 0)
        if n + nb < len(order): rd(n + nb)
    A(f"""
    s_cmp_lg_u32 s70, 0
    s_cbranch_scc1 {lab}_a
    s_add_u32 s74, s72, {32*stride}
    v_cvt_pk_bf16_f32 v{acc5}, v{acc5}, v{acc5+1}
    v_cvt_pk_bf16_f32 v{acc5+1}, v{acc5+2}, v{acc5+3}
    s_mov_b64 exec, s[78:79]
    buffer_store_dwordx2 {vr(acc5,2)}, v20, {WS}, s74 offen sc1
    s_mov_b64 exec, -1
    {lab}_a:
    s_nop 5
    v_cvt_pk_bf16_f32 v{acc}, v{acc}, v{acc+1}
    v_cvt_pk_bf16_f32 v{acc+1}, v{acc+2}, v{acc+3}
    buffer_store_dwordx2 {vr(acc,2)}, v20, {WS}, s72 offen sc1
    """)
def tail_prologue(lab, slot_code):
    common_setup2()
    A(f"s_mul_i32 s{sSL}, s{sX}, 7\n{slot_code}\ns_waitcnt lgkmcnt(0)")
    get_tag()
    A(f"s_cmp_lg_u32 s{sW}, 7\ns_cbranch_scc1 {lab}")
    ones(24)
    clear_tail_inbox(24)
    A("s_waitcnt vmcnt(0)")
    proof(sSL)
    A(f"{lab}:")

XL, CT, CTS = 0, 8192, 320
TS = 128*128
vUV, vWO = 32, 96
def t_setup():
    A(f"""
    v_lshlrev_b32 v21, 11, v3
    v_xor_b32 v22, v3, v4
    v_lshlrev_b32 v22, 4, v22
    v_lshl_add_u32 v22, v2, 11, v22
    v_and_b32 v12, 1, v2
    v_lshl_or_b32 v12, v12, 2, v4
    v_lshrrev_b32 v14, 1, v3
    v_xor_b32 v12, v12, v14
    v_lshlrev_b32 v12, 4, v12
    v_lshl_add_u32 v12, v3, 7, v12
    v_lshlrev_b32 v14, 3, v3
    s_lshl_b32 s66, s{sH}, 14
    s_add_u32 s66, s66, {WS_H3B}
    s_lshl_b32 s73, s{sW}, 7
    s_add_u32 s73, s73, s66
    s_lshl_b32 s72, s{sSL}, 7
    s_add_u32 s72, s72, {WS_H5}
    v_lshrrev_b32 v23, 1, v3
    v_mul_u32_u24 v23, {CTS}, v23
    v_lshl_add_u32 v23, v4, 3, v23
    s_lshl_b32 s74, s{sW}, 5
    v_add_u32 v23, s74, v23
    v_mul_u32_u24 v10, {CTS}, v6
    v_lshl_add_u32 v10, v4, 4, v10
    """)
    publish_setup(TS)
    masked_addrs(10, CT)
def t_early(lab):
    A(f"""
    v_min_u32 v238, 35, v{vL}
    v_lshlrev_b32 v238, 7, v238
    s_mov_b32 s76, {WS_PF}
    v_mov_b32 v28, 0
    v_mov_b32 v29, 0
    s_cmp_lg_u32 s{sW}, 0
    s_cbranch_scc1 {lab}e1
    buffer_load_dword v239, v238, {WS}, s76 offen sc1
    {lab}e1:
    buffer_load_dwordx4 v[24:27], v22, {WS}, s73 offen sc1
    s_cmp_lg_u32 s{sW}, 7
    s_cbranch_scc1 {lab}e2
    s_mov_b64 exec, 0xff
    buffer_load_dwordx2 v[28:29], v21, {WS}, s66 offen offset:1024 sc1
    s_mov_b64 exec, -1
    {lab}e2:
    """)
def t_tail(nk, lab):
    A(f"""
    s_mov_b32 s77, 0
    s_cmp_lg_u32 s{sW}, 0
    s_cbranch_scc1 {lab}pd
    {lab}pp:
    v_cmp_ne_u32 vcc, s{sT}, v239
    s_add_u32 s77, s77, 1
    s_cbranch_vccz {lab}pd
    s_cmp_ge_u32 s77, {POLL_MAX}
    s_cbranch_scc1 {lab}pd
    buffer_load_dword v239, v238, {WS}, s76 offen sc1
    s_waitcnt vmcnt(0)
    s_branch {lab}pp
    {lab}pd:
    """)
    ST(5); ST(7, 3)
    A(f"""
    s_mov_b32 s77, 0
    s_branch {lab}chk
    {lab}poll:
    buffer_load_dwordx4 v[24:27], v22, {WS}, s73 offen sc1
    s_cmp_lg_u32 s{sW}, 7
    s_cbranch_scc1 {lab}ns
    s_mov_b64 exec, 0xff
    buffer_load_dwordx2 v[28:29], v21, {WS}, s66 offen offset:1024 sc1
    s_mov_b64 exec, -1
    {lab}ns:
    s_add_u32 s77, s77, 1
    s_waitcnt vmcnt(0)
    {lab}chk:
    v_max3_u32 v30, v24, v25, v26
    v_max3_u32 v30, v30, v27, v28
    v_max_u32 v30, v30, v29
    v_cmp_eq_u32 vcc, -1, v30
    s_cmp_ge_u32 s77, {POLL_MAX}
    s_cbranch_scc1 {lab}done
    s_cbranch_vccnz {lab}poll
    {lab}done:
    ds_write_b128 v7, v[24:27] offset:{XL}
    s_cmp_lg_u32 s{sW}, 7
    s_cbranch_scc1 {lab}nw
    s_mov_b64 exec, 0xff
    ds_write_b64 v14, v[28:29] offset:{CT+2048}
    s_mov_b64 exec, -1
    {lab}nw:
    s_waitcnt lgkmcnt(0)
    """)
    ST(6)
    if nk == 4 and OPT['wb'] == 2: A(f"s_cmp_lg_u32 s{sW}, 6\ns_cbranch_scc1 {lab}nwb\nbuffer_wbl2 sc1\n{lab}nwb:")
    A("s_barrier")
    if nk == 2: A(f"s_cmp_lg_u32 s70, 0\ns_cbranch_scc1 {lab}nouv")
    vX = 176
    A(f"ds_read_b64 v[28:29], v14 offset:{CT+2048}")
    for i in range(8): A(f"ds_read_b128 {vr(vX+4*i,4)}, v12 offset:{XL+i*1024}")
    a0, a1 = 24, 208
    for i in range(8):
        A(f"s_waitcnt lgkmcnt({7-i})")
        mf16(a0, vUV+8*i, vX+4*i, i == 0)
        mf16(a1, vUV+8*i+4, vX+4*i, i == 0)
    A(f"""
    v_max_f32_dpp v30, v28, v28 {QP1}
    v_sub_f32 v30, v28, v30
    v_exp_f32 v30, v30
    v_mul_f32 v31, v30, v29
    v_add_f32_dpp v31, v31, v31 {QP1}
    v_rcp_f32 v31, v31
    v_mul_f32 v30, v30, v31
    """)
    for j in range(4): A(f"v_add_f32_dpp v{a0+j}, v{a1+j}, v{a0+j} row_ror:8 {DPPF}")
    for j in range(4): A(f"v_mul_f32 v{a0+j}, v{a0+j}, v30")
    for j in range(4): A(f"v_add_f32_dpp v{a0+j}, v{a0+j}, v{a0+j} {QP1}")
    A(f"""
    v_cvt_pk_bf16_f32 v28, v{a0}, v{a0+1}
    v_cvt_pk_bf16_f32 v29, v{a0+2}, v{a0+3}
    s_mov_b32 exec_lo, 0x00550055
    s_mov_b32 exec_hi, 0x00550055
    ds_write_b64 v23, v[28:29] offset:{CT}
    s_mov_b64 exec, -1
    s_waitcnt lgkmcnt(0)
    {lab}nouv:
    s_barrier
    """)
    wide_gemm(vWO, nk, vX, CT, TS, lab+"g")
    ST(7)
    if nk == 4 and OPT['wb'] == 3: A(f"s_cmp_lg_u32 s{sW}, 6\ns_cbranch_scc1 L_end\nbuffer_wbl2 sc1")
    if nk == 2: fin_role()
    else: finish()

RED = BIG
def fin_setup():
    srd(52, P_X, 4608)
    srd(56, P_OUT, 4608)
    A(f"""
    v_and_b32 v212, 1, v4
    v_lshl_add_u32 v212, v3, 1, v212
    v_and_b32 v213, 3, v212
    v_mul_u32_u24 v213, 1152, v213
    v_lshrrev_b32 v212, 2, v212
    v_lshl_add_u32 v213, v212, 3, v213
    s_min_u32 s75, s{sF}, 35
    s_lshl_b32 s75, s75, 5
    v_add_u32 v213, s75, v213
    buffer_load_dwordx2 v[214:215], v213, {RA}, 0 offen
    v_and_b32 v212, 1, v3
    v_lshlrev_b32 v212, 4, v212
    v_mov_b32 v216, 0x3f80
    v_lshlrev_b32 v216, v212, v216
    v_bfe_u32 v212, v{vL}, 1, 3
    """)
    for d in range(8): A(f"v_cmp_eq_u32 vcc, {d}, v212\nv_cndmask_b32 v{220+d}, 0, v216, vcc")
def fin_role():
    A(f"""
    s_cmp_ge_u32 s{sF}, 36
    s_cbranch_scc1 L_end
    s_cmp_eq_u32 s70, 0
    s_cbranch_scc1 L_fin_b
    s_lshl_b32 s72, s{sF}, 14
    s_lshl_b32 s73, s{sW}, 12
    s_add_u32 s72, s72, s73
    s_add_u32 s72, s72, {WS_H5-16384}
    s_mov_b32 s76, 15
    s_mov_b32 s77, 0
    L_finpoll:
    """)
    for i in range(4):
        A(f"s_bitcmp1_b32 s76, {i}\ns_cbranch_scc0 L_fi{i}\nbuffer_load_dwordx4 {vr(32+4*i,4)}, v9, {WS}, s72 offen offset:{1024*i} sc1\nL_fi{i}:")
    A("s_add_u32 s77, s77, 1\ns_waitcnt vmcnt(0)")
    for i in range(4): A(f"v_max3_u32 v{48+i}, v{32+4*i}, v{33+4*i}, v{34+4*i}")
    for i in range(4): A(f"v_max_u32 v{48+i}, v{48+i}, v{35+4*i}")
    for i in range(4): A(f"v_cmp_eq_u32 vcc, -1, v{48+i}\ns_cbranch_vccnz L_fc{i}\ns_bitset0_b32 s76, {i}\nL_fc{i}:")
    A(f"""
    s_cmp_ge_u32 s77, {POLL_MAX}
    s_cbranch_scc1 L_findone
    s_cmp_lg_u32 s76, 0
    s_cbranch_scc1 L_finpoll
    L_findone:
    s_cmp_ge_u32 s{sW}, 6
    s_cbranch_scc1 L_fin_g
    """)
    for i in range(3): mf16(52, 220, 32+4*i, i == 0)
    A(f"s_cmp_eq_u32 s{sW}, 5\ns_cbranch_scc1 L_fin_g3")
    mf16(52, 220, 44, False)
    A("s_branch L_fin_w\nL_fin_g:")
    for i in range(3): mf16(52, 224, 32+4*i, i == 0)
    A("L_fin_g3:")
    mf16(52, 224, 44, False)
    A(f"L_fin_w:\ns_nop 7\nds_write_b128 v7, v[52:55] offset:{RED-4096}\ns_waitcnt lgkmcnt(0)")
    ST(9)
    A(f"L_fin_b:\ns_barrier\ns_cmp_lg_u32 s{sW}, 0\ns_cbranch_scc1 L_end")
    for i in range(4): A(f"ds_read_b128 {vr(64+4*i,4)}, v9 offset:{RED+i*1024}")
    A(f"s_mov_b32 s76, {fbits(-LOG2E)}")
    A("v_lshlrev_b32 v32, 16, v214\nv_and_b32 v33, 0xffff0000, v214\nv_lshlrev_b32 v34, 16, v215\nv_and_b32 v35, 0xffff0000, v215")
    A("s_waitcnt lgkmcnt(2)")
    for j in range(4): A(f"v_add_f32 v{64+j}, v{64+j}, v{68+j}")
    A("s_waitcnt lgkmcnt(0)")
    for j in range(4): A(f"v_add_f32 v{72+j}, v{72+j}, v{76+j}")
    for j in range(4): A(f"v_add_f32 v{64+j}, v{64+j}, v{72+j}")
    for j in range(4): A(f"v_add_f32_dpp v{64+j}, v{64+j}, v{64+j} row_ror:8 {DPPF}")
    for j in range(4): rb16(64+j, 64+j)
    for j in range(4): A(f"v_mul_f32 v{76+j}, s76, v{64+j}")
    for j in range(4): A(f"v_exp_f32 v{76+j}, v{76+j}")
    for j in range(4): A(f"v_add_f32 v{76+j}, 1.0, v{76+j}")
    for j in range(4): A(f"v_rcp_f32 v{76+j}, v{76+j}")
    for j in range(4): A(f"v_mul_f32 v{76+j}, v{64+j}, v{76+j}")
    A("v_cvt_pk_bf16_f32 v76, v76, v77\nv_cvt_pk_bf16_f32 v77, v78, v79")
    A("v_permlane32_swap_b32 v76, v68\nv_permlane32_swap_b32 v77, v69")
    A("v_lshlrev_b32 v72, 16, v68\nv_and_b32 v73, 0xffff0000, v68\nv_lshlrev_b32 v74, 16, v69\nv_and_b32 v75, 0xffff0000, v69")
    for j in range(4): A(f"v_mul_f32 v{64+j}, v{64+j}, v{72+j}")
    A("v_cvt_pk_bf16_f32 v68, v64, v65\nv_cvt_pk_bf16_f32 v69, v66, v67")
    A("v_lshlrev_b32 v64, 16, v68\nv_and_b32 v65, 0xffff0000, v68\nv_lshlrev_b32 v66, 16, v69\nv_and_b32 v67, 0xffff0000, v69")
    for j in range(4): A(f"v_add_f32 v{64+j}, v{64+j}, v{32+j}")
    A(f"""
    v_cvt_pk_bf16_f32 v64, v64, v65
    v_cvt_pk_bf16_f32 v65, v66, v67
    s_mov_b64 exec, 0x00ff00ff
    buffer_store_dwordx2 v[64:65], v213, {RB}, 0 offen
    s_cmp_lg_u32 s{sF}, 0
    s_cbranch_scc1 L_fin_noep
    s_mov_b64 exec, 1
    v_mov_b32 v66, s{sE}
    buffer_store_dword v66, v8, {WS}, 0 offen sc1
    L_fin_noep:
    s_mov_b64 exec, -1
    """)
    finish()

def hb_code():
    if not OPT['hb']: return ""
    return f"""s_lshr_b32 s71, s66, 1
    s_add_u32 s71, s71, 48
    s_mul_i32 s71, s71, {8*9216}
    s_add_u32 s74, s73, 6
    s_lshl_b32 s74, s74, 7
    s_add_u32 s71, s71, s74
    buffer_load_dwordx4 v[248:251], v14, {RA}, s71 offen"""
A("L_TH:")
SLOT = f"s_lshl_b32 s74, s{sA_}, 1\ns_add_u32 s{sSL}, s{sSL}, s74\ns_add_u32 s{sSL}, s{sSL}, s{sQD}"
A(f"""
s_lshl_b32 s66, s{sA_}, 1
s_add_u32 s66, s66, s{sQD}
s_mov_b32 s{sF}, 99
s_cmp_eq_u32 s66, 3
s_cbranch_scc1 L_f_go
s_cmp_gt_u32 s66, 3
s_subb_u32 s66, s66, 0
s_lshl_b32 s66, s66, 3
s_add_u32 s{sF}, s66, s{sX}
s_add_u32 s66, s66, s{sW}
s_cmp_ge_u32 s{sF}, {36 if not OPT['noclr'] else 0}
s_cbranch_scc1 L_noclr
""")
ones(24)
A(f"s_lshl_b32 s74, s{sF}, 14\ns_lshl_b32 s75, s{sW}, 11\ns_add_u32 s74, s74, s75\ns_add_u32 s74, s74, {WS_H5}")
for i in range(2): A(f"buffer_store_dwordx4 v[24:27], v9, {WS}, s74 offen offset:{i*1024} sc1")
A(f"s_waitcnt vmcnt(0)\ns_barrier\ns_cmp_lg_u32 s{sW}, 0\ns_cbranch_scc1 L_noclr")
proof(sF)
A("L_noclr:")
if OPT['help']:
    A(f"""
    s_cmp_eq_u32 s67, 0
    s_cselect_b32 s52, s{P_WG}, s{P_WU}
    s_cselect_b32 s53, s{P_WG+1}, s{P_WU+1}
    s_mov_b32 s54, {576*9216}
    s_lshr_b32 s71, s66, 1
    s_add_u32 s71, s71, 32
    s_mul_i32 s71, s71, {8*9216}
    s_sub_u32 s72, 3, s{sX}
    s_and_b32 s72, s72, 7
    s_mul_i32 s73, s{sX}, 9
    s_lshl_b32 s73, s73, 7
    s_add_u32 s71, s71, s73
    s_lshl_b32 s74, s72, 7
    s_add_u32 s73, s71, s74
    v_mul_u32_u24 v14, 9216, v2
    v_lshl_add_u32 v14, v3, 4, v14
    s_add_u32 s74, s73, {20*8*9216}
    s_add_u32 s71, s71, {20*8*9216}
    """)
    if OPT['help'] & 1:
        A(f"""
        buffer_load_dwordx4 v[248:251], v14, {RA}, s73 offen{HW}
        buffer_load_dwordx4 v[248:251], v14, {RA}, s74 offen{HW}
        s_cmp_lg_u32 s72, 0
        s_cbranch_scc1 L_noc3b
        buffer_load_dwordx4 v[248:251], v14, {RA}, s73 offen offset:1024{HW}
        buffer_load_dwordx4 v[248:251], v14, {RA}, s74 offen offset:1024{HW}
        L_noc3b:
        """)
    if OPT['help'] & 2: A(f"buffer_load_dwordx4 v[248:251], v14, {RA}, s71 offen offset:768{HW}\nbuffer_load_dwordx4 v[248:251], v14, {RA}, s71 offen offset:896{HW}")
    if OPT['help'] & 4:
        A(f"""
        s_lshl_b32 s66, s66, 10
        s_mov_b32 s52, s{P_WO}
        s_mov_b32 s53, s{P_WO+1}
        s_lshl_b32 s73, s{sX}, 3
        s_add_u32 s73, s73, 7
        s_mul_i32 s73, s73, {64*1152}
        s_add_u32 s54, s73, {64*1152}
        s_add_u32 s73, s73, s66
        s_add_u32 s74, s73, {40*1024}
        buffer_load_dwordx4 v[248:251], v9, {RA}, s73 offen{HW}
        buffer_load_dwordx4 v[248:251], v9, {RA}, s74 offen{HW}
        """)
A("L_f_go:")
A(f"s_mul_i32 s{sSL}, s{sX}, 7\n{SLOT}")
ST(1, 3)
srd(52, P_WUV, 512*8192)
srd(56, P_WO, 4096*1152)
A(f"""
s_lshl_b32 s71, s{sW}, 10
s_add_u32 s71, s71, {BIG}
s_lshl_b32 s72, s68, 2
s_add_u32 s72, s72, s67
s_lshl_b32 s72, s72, 16
s_lshl_b32 s73, s{sH}, 1
s_add_u32 s73, s73, s{sQD}
s_lshl_b32 s74, s73, 7
s_add_u32 s72, s72, s74
""")
for i in range(8):
    cb = 2*(i&1) + 16*(i>>1)
    A(f"s_mov_b32 m0, s71\ns_add_u32 s74, s72, {cb*65536}")
    dma(12, RA, 74)
    A(f"s_add_u32 s71, s71, 8192")
    if i < OPT['tslow']: A("s_waitcnt vmcnt(0)")
wide_voffset(14)
A(f"""
s_mul_i32 s73, s73, {64*1152}
s_lshl_b32 s71, s67, 3
s_add_u32 s71, s71, s68
s_lshl_b32 s71, s71, 10
s_add_u32 s71, s71, {BIG+65536}
s_mul_i32 s72, s67, {8*1152}
s_lshl_b32 s74, s68, 7
s_add_u32 s72, s72, s74
s_add_u32 s72, s72, s73
""")
wide_dma(4, RB)
A(f"""
s_mul_i32 s72, s{sW}, {8*1152}
s_add_u32 s72, s72, s73
s_add_u32 s72, s72, 1024
s_lshl_b32 s71, s{sW}, 10
s_add_u32 s71, s71, {BIG+131072}
s_mov_b32 m0, s71
""")
dma(14, RB, 72)
wide_frag_addrs(BIG+131072, 65536)
A(f"v_lshl_add_u32 v19, v4, 10, v{vTR}\nv_add_u32 v19, {BIG}, v19")
t_setup()
ST(5, 3)
A("s_waitcnt vmcnt(9)\ns_barrier")
for kp in range(16):
    A(f"ds_read_b64_tr_b16 {vr(vUV+4*kp,2)}, v19 offset:{kp*4096}")
    A(f"ds_read_b64_tr_b16 {vr(vUV+4*kp+2,2)}, v19 offset:{kp*4096+512}")
    if kp % 6 == 5: A("s_waitcnt lgkmcnt(4)")
fin_setup()
t_early("L_u")
A("s_waitcnt vmcnt(0) lgkmcnt(2)")
ST(6, 3)
A("s_barrier")
wide_frag_reads(vWO, 2)
t_tail(2, "L_u")

A("L_T:")
A(f"s_mul_i32 s{sSL}, s{sX}, 7\ns_add_u32 s{sSL}, s{sSL}, 6")
ST(1, 3)
srd(52, P_WUV, 512*8192)
srd(56, P_WO, 4096*1152)
A(f"""
s_lshl_b32 s71, s70, 1
s_add_u32 s71, s71, s67
s_lshl_b32 s71, s71, 1
s_add_u32 s71, s71, s69
s_lshl_b32 s71, s71, 10
s_add_u32 s71, s71, {BIG}
s_lshl_b32 s72, s70, 2
s_add_u32 s72, s72, s67
s_lshl_b32 s72, s72, 16
s_lshl_b32 s73, s{sH}, 8
s_lshl_b32 s74, s69, 7
s_add_u32 s73, s73, s74
s_add_u32 s72, s72, s73
""")
for i in range(16):
    cb = 2*((i>>1)&1) + 8*(i&1) + 16*(i>>2)
    A(f"s_mov_b32 m0, s71\ns_add_u32 s74, s72, {cb*65536}")
    dma(12, RA, 74)
    A(f"s_add_u32 s71, s71, 8192")
    if i < OPT['Tslow']: A("s_waitcnt vmcnt(0)")
wide_voffset(14)
A(f"""
s_mul_i32 s66, s{sH}, {128*1152}
s_lshl_b32 s71, s68, 2
s_add_u32 s71, s71, s67
s_mul_i32 s72, s71, {8*1152}
s_add_u32 s72, s72, s66
s_add_u32 s72, s72, 1024
s_lshl_b32 s71, s71, 10
s_add_u32 s71, s71, {BIG+131072}
s_mov_b32 m0, s71
s_add_u32 s71, s71, 2048
""")
dma(14, RB, 72)
A(f"s_add_u32 s72, s72, {16*1152}\ns_mov_b32 m0, s71")
dma(14, RB, 72)
vST = 176
A(f"""
s_mul_i32 s72, s67, {8*1152}
s_lshl_b32 s74, s68, 7
s_add_u32 s72, s72, s74
s_add_u32 s72, s72, s66
s_barrier
""")
for i in range(4):
    A(f"buffer_load_dwordx4 {vr(vST+8*i,4)}, v14, {RB}, s72 offen nt")
    A(f"buffer_load_dwordx4 {vr(vST+8*i+4,4)}, v14, {RB}, s72 offen offset:512 nt")
    A(f"s_add_u32 s72, s72, {16*1152}")
A(f"v_add_u32 v17, 0x10000, v16")
ST(2, 3)
A("s_waitcnt vmcnt(10)")
ST(3, 3)
A("s_barrier")
for kp in range(16):
    a = 16 if kp < 8 else 17
    A(f"ds_read_b64_tr_b16 {vr(vUV+4*kp,2)}, v{a} offset:{(kp&7)*8192}")
    A(f"ds_read_b64_tr_b16 {vr(vUV+4*kp+2,2)}, v{a} offset:{(kp&7)*8192+512}")
    if kp % 6 == 5: A("s_waitcnt lgkmcnt(4)")
A(f"""
s_lshl_b32 s71, s67, 3
s_add_u32 s71, s71, s68
s_lshl_b32 s71, s71, 10
s_add_u32 s71, s71, {BIG}
v_add_u32 v19, s71, v9
s_add_u32 s71, s71, 65536
s_waitcnt lgkmcnt(0)
s_barrier
""")
ST(4, 3)
wide_dma(4, RB)
for i in range(8):
    A(f"s_waitcnt vmcnt({15-i})")
    A(f"ds_write_b128 v19, {vr(vST+4*i,4)} offset:{(i>>1)*16384+(i&1)*4096}")
wide_frag_addrs(BIG+131072, 0)
t_setup()
t_early("L_t")
ST(5, 3)
A("s_waitcnt vmcnt(0) lgkmcnt(0)")
ST(6, 3)
A("s_barrier")
wide_frag_reads(vWO, 4)
t_tail(4, "L_t")

A("L_F:")
ST(1, 3)
DNB = BIG + 72*1024
srd(56, P_WD, 4608*1152)
wide_voffset(14)
A(f"""
s_mov_b32 s40, s71
s_mov_b32 s41, s72
s_mul_i32 s73, s{sU}, {64*1152}
s_lshl_b32 s71, s67, 3
s_add_u32 s71, s71, s68
s_lshl_b32 s71, s71, 10
s_add_u32 s71, s71, {DNB}
s_mul_i32 s72, s67, {8*1152}
s_lshl_b32 s74, s68, 7
s_add_u32 s72, s72, s74
s_add_u32 s72, s72, s73
""")
wide_dma(4, RB, OPT['fslow'])
A(f"""
s_mul_i32 s72, s{sW}, {8*1152}
s_add_u32 s72, s72, s73
s_add_u32 s72, s72, 1024
s_lshl_b32 s71, s{sW}, 10
s_add_u32 s71, s71, {DNB+65536}
s_mov_b32 m0, s71
""")
dma(14, RB, 72)
xn_frags()
A("s_mov_b32 s71, s40\ns_mov_b32 s72, s41\ns_barrier")
for i in range(9):
    gu_dma(i)
    if i < OPT['gslow']: A('s_waitcnt vmcnt(0)')
wide_frag_addrs(DNB+65536, DNB-BIG)
A("s_waitcnt vmcnt(9)\ns_barrier")
vWD = 144
wide_frag_reads(vWD, 2)
A("s_waitcnt lgkmcnt(0)\ns_barrier")
for i in range(9, 15): gu_dma(i)
A(f"""
v_min_u32 v140, 35, v{vL}
v_lshlrev_b32 v140, 7, v140
s_mov_b32 s66, {WS_PF}
s_cmp_lg_u32 s{sW}, 7
s_cbranch_scc1 L_f_np
buffer_load_dword v141, v140, {WS}, s66 offen sc1
L_f_np:
s_barrier
""")
for i in range(15, 18): gu_dma(i)
A(f"""
v_lshrrev_b32 v19, 1, v6
v_lshrrev_b32 v21, 1, v5
v_and_b32 v22, 1, v4
v_lshl_or_b32 v21, v22, 1, v21
v_lshl_or_b32 v21, v19, 2, v21
v_xor_b32 v21, s{sW}, v21
v_lshlrev_b32 v21, 4, v21
v_lshl_add_u32 v21, v5, 7, v21
v_and_b32 v22, 1, v6
v_lshl_add_u32 v21, v22, 3, v21
v_lshl_add_u32 v21, v19, 10, v21
v_lshl_add_u32 v21, v4, 11, v21
v_add_u32 v21, {BIG}, v21
v_add_u32 v22, {8*8192}, v21
v_add_u32 v23, {16*8192}, v21
s_lshl_b32 s72, s{sU}, 7
s_add_u32 s72, s72, {WS_H5+56*128}
""")
publish_setup(TS)
def k_steps(k0, k1):
    D = 6
    def rd(k):
        d = vG + 4*(k % 8)
        A(f"ds_read_b64_tr_b16 {vr(d,2)}, v{21+(k>>3)} offset:{(k&7)*8192}")
        A(f"ds_read_b64_tr_b16 {vr(d+2,2)}, v{21+(k>>3)} offset:{(k&7)*8192+512}")
    for k in range(k0, min(k1, k0+D)): rd(k)
    for k in range(k0, k1):
        A(f"s_waitcnt lgkmcnt({2*min(D-1, k1-1-k)})")
        mf16(vD, vG+4*(k % 8), vXN+4*k, k == 0)
        if k + D < k1: rd(k + D)
ST(2, 3)
A("s_waitcnt vmcnt(3)")
ST(3, 3)
A("s_barrier")
k_steps(0, 15)
A(f"""
s_cmp_lg_u32 s{sW}, 7
s_cbranch_scc1 L_f_pd
s_mov_b32 s77, 0
L_f_pp:
v_cmp_ne_u32 vcc, s{sT}, v141
s_add_u32 s77, s77, 1
s_cbranch_vccz L_f_pd
s_cmp_ge_u32 s77, {POLL_MAX}
s_cbranch_scc1 L_f_pd
buffer_load_dword v141, v140, {WS}, s66 offen sc1
s_waitcnt vmcnt(0)
s_branch L_f_pp
L_f_pd:
v_mul_u32_u24 v17, {HBS}, v6
v_lshl_add_u32 v16, v4, 3, v17
s_lshl_b32 s74, s{sW}, 4
v_add_u32 v16, s74, v16
v_lshl_add_u32 v17, v4, 4, v17
""")
masked_addrs(17, HB)
A("s_waitcnt vmcnt(0)")
ST(1); ST(7, 3)
A("s_barrier")
k_steps(15, 18)
for j in range(4): A(f"v_mov_b32 v{24+j}, v{vD+j}")
for j in range(4): A(f"v_permlane32_swap_b32 v{vD+j}, v{24+j}")
C1 = -2.0*math.sqrt(2.0/math.pi)*LOG2E
A(f"s_mov_b32 s74, {fbits(0.044715)}\ns_mov_b32 s75, {fbits(C1)}")
for j in range(4): rb16(vD+j, vD+j); rb16(24+j, 24+j)
for j in range(4): A(f"v_mul_f32 v{104+j}, v{vD+j}, v{vD+j}")
for j in range(4): A(f"v_fma_f32 v{104+j}, v{104+j}, s74, 1.0")
for j in range(4): A(f"v_mul_f32 v{104+j}, v{104+j}, v{vD+j}")
for j in range(4): A(f"v_mul_f32 v{104+j}, s75, v{104+j}")
for j in range(4): A(f"v_exp_f32 v{104+j}, v{104+j}")
for j in range(4): A(f"v_add_f32 v{104+j}, 1.0, v{104+j}")
for j in range(4): A(f"v_rcp_f32 v{104+j}, v{104+j}")
for j in range(4): A(f"v_mul_f32 v{vD+j}, v{vD+j}, v{104+j}")
for j in range(4): rb16(vD+j, vD+j)
for j in range(4): A(f"v_mul_f32 v{vD+j}, v{vD+j}, v{24+j}")
A(f"""
v_cvt_pk_bf16_f32 v24, v{vD}, v{vD+1}
v_cvt_pk_bf16_f32 v25, v{vD+2}, v{vD+3}
s_mov_b64 exec, 0x000f000f
ds_write_b64 v16, v[24:25] offset:{HB}
s_mov_b64 exec, -1
s_waitcnt lgkmcnt(0)
s_barrier
""")
wide_gemm(vWD, 2, 104, HB, TS, "L_fg")
ST(2)
finish()

QA = 131072
MXO, LSO, LCO = 2048, 8192+2048, 16384+2048
sLOC = 64
A("L_att:")
lane_consts()
if OPT['exp'] == 1: A("s_waitcnt lgkmcnt(0)\ns_branch L_end")
A(f"s_cmp_ge_u32 s{sW}, 4\ns_cbranch_scc1 L_att_hi")
A(f"""
s_lshl_b32 s68, s{sK}, 18
s_lshl_b32 s69, s{sX}, 10
s_add_u32 s68, s68, s69
s_lshl_b32 s69, s{sW}, 16
s_add_u32 s68, s68, s69
s_waitcnt lgkmcnt(0)
s_load_dword s{sE}, s[48:49], 0
""")
if OPT['adel']: A("s_waitcnt lgkmcnt(0)")
for i in range(8):
    A(f"buffer_load_dwordx4 v[248:251], v9, {RC}, s68 offen")
    if i < 7: A("s_add_u32 s68, s68, 8192")
A(f"""
v_and_b32 v11, 2, v2
v_lshlrev_b32 v11, 1, v11
v_lshrrev_b32 v10, 2, v2
v_or_b32 v11, v11, v10
v_xor_b32 v11, v11, v3
v_lshlrev_b32 v11, 4, v11
v_lshl_add_u32 v10, v2, 10, v11
v_xor_b32 v11, 32, v10
s_lshl_b32 s70, s{sX}, 4
s_add_u32 s70, s70, s{sK}
s_lshl_b32 s66, s70, 17
s_lshl_b32 s67, s{sW}, 15
s_add_u32 s66, s66, s67
""")
srd(52, P_CKV, 4*4096*1024)
if OPT['ukw'] < 8: A(f"s_waitcnt vmcnt({OPT['ukw']})")
ST(2, 2)
for lb in range(8):
    if lb in (1, 2, 4, 6): ST({1:3,2:4,4:5,6:6}[lb], 2)
    if lb == OPT['gbar']: A("s_barrier")
    for rbi in range(4):
        A(f"s_add_u32 s68, s67, {(rbi*8+lb)*1024}\ns_mov_b32 m0, s68\ns_add_u32 s69, s66, {rbi*8192+lb*128}")
        dma(10 + (rbi & 1), RA, 69)
if OPT['gbar'] == 8: A("s_barrier")
ST(7, 2)
if OPT['stamps'] in (2, 3):
    A("s_waitcnt vmcnt(0)")
    ST(9, 2); ST(7, 3)
if OPT['exp'] == 2: A("s_branch L_end")
A(f"""
v_and_b32 v11, 2, v{vL}
v_lshlrev_b32 v11, 1, v11
v_or_b32 v11, v11, v5
v_lshrrev_b32 v12, 5, v{vL}
v_xor_b32 v11, v11, v12
v_lshlrev_b32 v11, 4, v11
v_lshl_add_u32 v11, v3, 7, v11
v_and_b32 v13, 3, v2
v_lshl_add_u32 v11, v13, 13, v11
v_add_u32 v16, s67, v11
v_add_u32 v20, {QA}, v11
""")
for t in range(1, 4): A(f"v_xor_b32 v{16+t}, {t<<5}, v16\nv_xor_b32 v{20+t}, {t<<5}, v20")
A(f"""
v_and_b32 v13, 31, v{vL}
v_lshlrev_b32 v13, 5, v13
v_add_u32 v13, {QA}, v13
s_lshl_b32 s68, s{sW}, 3
v_lshl_add_u32 v14, v12, 2, v13
v_add_u32 v14, s68, v14
s_lshl_b32 s68, s{sW}, 13
s_add_u32 s68, s68, {QA}
v_add_u32 v15, s68, v9
s_waitcnt lgkmcnt(0)
""")
get_tag()
A(f"""
s_lshl_b32 s72, s{sX}, 14
s_add_u32 s72, s72, {WS_FLG}
s_lshl_b32 s73, s{sK}, 10
s_add_u32 s73, s73, s72
s_lshl_b32 s68, s{sW}, 7
s_add_u32 s69, s72, s68
s_lshl_b32 s68, s{sK}, 5
s_add_u32 s72, s72, s68
s_lshl_b32 s74, s70, 15
s_lshl_b32 s68, s{sW}, 9
s_add_u32 s74, s74, s68
s_add_u32 s74, s74, {WS_H3A}
s_add_u32 s75, s74, 8192
s_add_u32 s78, s74, 16384
s_add_u32 s79, s74, 24576
s_lshl_b32 s70, s{sK}, 15
s_lshl_b32 s71, s{sX}, 11
s_add_u32 s70, s70, s71
s_add_u32 s70, s70, {WS_H3B}
s_lshl_b32 s71, s{sW}, 8
s_add_u32 s71, s71, s70
v_and_b32 v100, 15, v{vL}
v_and_b32 v101, 1, v4
v_lshlrev_b32 v112, 10, v100
v_lshl_add_u32 v102, v101, 4, v112
v_lshlrev_b32 v103, 11, v4
v_lshl_add_u32 v103, v100, 4, v103
v_and_b32 v104, 1, v3
v_lshlrev_b32 v104, 4, v104
v_mov_b32 v105, 0xffff
v_lshlrev_b32 v105, v104, v105
v_lshrrev_b32 v104, 1, v3
""")
for d in range(4): A(f"v_cmp_eq_u32 vcc, {d}, v104\nv_cndmask_b32 v{108+d}, 0, v105, vcc")
A(f"""
v_lshrrev_b32 v104, 2, v3
v_lshl_add_u32 v105, v104, 4, v4
v_lshlrev_b32 v105, 2, v105
v_lshlrev_b32 v106, 14, v104
v_lshl_add_u32 v106, v6, 5, v106
v_lshl_add_u32 v106, v4, 3, v106
v_and_b32 v104, 1, v2
v_lshl_add_u32 v106, v104, 7, v106
v_lshlrev_b32 v107, 14, v101
v_lshl_add_u32 v107, v100, 3, v107
v_mov_b32 v113, {QA+LCO}
""")
vS = 32; vAf = 128; vBf = 64; DEP = 8
for t in range(32):
    if t & 3 == 0: A(f"s_waitcnt vmcnt({28-t}) lgkmcnt(8)")
    A(f"ds_read_b128 {vr(vAf+4*t,4)}, v{16+(t&3)} offset:{(t>>2)*1024}")
A("s_waitcnt lgkmcnt(0)\ns_setprio 2")
ST(1)
A("s_barrier")
ST(2)
def qk_read(t): A(f"ds_read_b128 {vr(vBf+4*(t % DEP),4)}, v{20+(t&3)} offset:{(t>>2)*1024}")
for t in range(DEP): qk_read(t)
for t in range(32):
    A(f"s_waitcnt lgkmcnt({min(DEP-1, 31-t)})")
    mf32(vS, vAf+4*t, vBf+4*(t % DEP), t == 0)
    if t + DEP < 32: qk_read(t + DEP)
    if t == 13: A("s_barrier")
ST(3)
A(f"v_max3_f32 v24, v{vS}, v{vS+1}, v{vS+2}\nv_max3_f32 v25, v{vS+3}, v{vS+4}, v{vS+5}\nv_max3_f32 v26, v{vS+6}, v{vS+7}, v{vS+8}")
A(f"v_max3_f32 v27, v{vS+9}, v{vS+10}, v{vS+11}\nv_max3_f32 v28, v{vS+12}, v{vS+13}, v{vS+14}")
A(f"v_max3_f32 v24, v24, v25, v26\nv_max3_f32 v27, v27, v28, v{vS+15}\nv_max_f32 v24, v24, v27")
A(f"ds_write_b32 v14, v24 offset:{MXO}\ns_waitcnt lgkmcnt(0)\ns_barrier")
A(f"""
ds_read_b128 v[24:27], v13 offset:{MXO}
ds_read_b128 v[28:31], v13 offset:{MXO+16}
s_waitcnt lgkmcnt(0)
v_max3_f32 v24, v24, v25, v26
v_max3_f32 v28, v28, v29, v30
v_max3_f32 v24, v24, v27, v31
v_max_f32 v24, v24, v28
""")
for hlf in range(2):
    for i in range(8): A(f"v_sub_f32 v{vS+8*hlf+i}, v{vS+8*hlf+i}, v24")
    for i in range(8): A(f"v_exp_f32 v{vS+8*hlf+i}, v{vS+8*hlf+i}")
    for i in range(4): A(f"v_cvt_pk_bf16_f32 v{48+4*hlf+i}, v{vS+8*hlf+2*i}, v{vS+8*hlf+2*i+1}")
    A(f"ds_write_b128 v15, {vr(48+4*hlf,4)} offset:{1024*hlf}")
    if hlf == 0:
        A("s_waitcnt lgkmcnt(0)")
        ST(4)
        A("s_barrier")
for step in (8, 4, 2, 1):
    for i in range(step): A(f"v_add_f32 v{vS+i}, v{vS+i}, v{vS+i+step}")
A(f"ds_write_b32 v14, v{vS} offset:{LSO}\ns_waitcnt lgkmcnt(0)\ns_setprio 0\ns_barrier")
vXr = 144
SO = [74, 75, 78, 79]
A(f"""
s_cmp_lg_u32 s{sW}, 0
s_cbranch_scc1 L_nost
ds_read_b128 v[28:31], v13 offset:{LSO}
ds_read_b128 v[32:35], v13 offset:{LSO+16}
ds_read_b32 v36, v113
v_mov_b32 v25, s{sT}
v_mov_b32 v27, s{sT}
s_waitcnt lgkmcnt(0)
v_add_f32 v28, v28, v29
v_add_f32 v30, v30, v31
v_add_f32 v32, v32, v33
v_add_f32 v34, v34, v35
v_readfirstlane_b32 s{sLOC}, v36
v_add_f32 v28, v28, v30
v_add_f32 v32, v32, v34
v_add_f32 v26, v28, v32
s_mov_b32 exec_hi, 0
s_cmp_lg_u32 s{sLOC}, 0
s_cbranch_scc1 L_stfar
buffer_store_dwordx4 v[24:27], v9, {WS}, s73 offen
s_branch L_stdone
L_stfar:
buffer_store_dwordx4 v[24:27], v9, {WS}, s73 offen sc1
L_stdone:
L_nost:
s_mov_b32 s77, 0
s_mov_b32 exec_hi, 0
L_rpoll:
buffer_load_dwordx4 v[32:35], v102, {WS}, s72 offen sc1
s_add_u32 s77, s77, 1
s_waitcnt vmcnt(0)
v_xor_b32 v33, s{sT}, v33
v_xor_b32 v35, s{sT}, v35
v_or_b32 v33, v33, v35
v_cmp_ne_u32 vcc, 0, v33
s_cmp_ge_u32 s77, {POLL_MAX}
s_cbranch_scc1 L_rdone
s_cbranch_vccnz L_rpoll
L_rdone:
s_mov_b64 exec, -1
""")
ST(5)
A("v_mov_b32 v36, v32")
for r in (8, 4, 2, 1): A(f"v_max_f32_dpp v36, v36, v36 row_ror:{r} {DPPF}")
A("v_sub_f32 v33, v32, v36\nv_exp_f32 v33, v33\nv_mul_f32 v37, v33, v34")
for i in range(4): A(f"ds_bpermute_b32 v{40+i}, v105, v33 offset:{16*i}")
for r in (8, 4, 2, 1): A(f"v_add_f32_dpp v37, v37, v37 row_ror:{r} {DPPF}")
A(f"""
v_cmp_gt_u32 s[66:67], 8, v100
s_waitcnt lgkmcnt(0)
""")
for i in range(4): A(f"v_cvt_pk_bf16_f32 v{44+i}, v{40+i}, v{40+i}")
for i in range(4): A(f"v_and_b32 v{80+i}, 0xffff0000, v{44+i}")
for i in range(4): A(f"v_sub_f32 v{80+i}, v{40+i}, v{80+i}")
for i in range(4): A(f"v_cvt_pk_bf16_f32 v{80+i}, v{80+i}, v{80+i}")
for i in range(4): A(f"v_cndmask_b32 v{44+i}, v{80+i}, v{44+i}, s[66:67]")
for i in range(4):
    for d in range(4): A(f"v_and_b32 v{64+4*i+d}, v{44+i}, v{108+d}")
A(f"""
s_mov_b32 s77, 0
s_mov_b64 exec, 0xffff
L_fpoll:
buffer_load_dword v32, v112, {WS}, s69 offen offset:512 sc1
s_add_u32 s77, s77, 1
s_waitcnt vmcnt(0)
v_cmp_ne_u32 vcc, s{sT}, v32
s_cmp_ge_u32 s77, {POLL_MAX}
s_cbranch_scc1 L_fdone
s_cbranch_vccnz L_fpoll
L_fdone:
s_mov_b64 exec, -1
""")
ST(6)
for i in range(4):
    for h in range(2): A(f"buffer_load_dwordx4 {vr(vXr+8*i+4*h,4)}, v103, {WS}, s{SO[i]} offen offset:{256*h} sc1{' nt' if OPT['lnt'] & 2 else ''}")
for i in range(4):
    A(f"s_waitcnt vmcnt({7-2*i})")
    mf16(40, vXr+8*i, 64+4*i, i == 0)
    A(f"s_waitcnt vmcnt({6-2*i})")
    mf16(44, vXr+8*i+4, 64+4*i, i == 0)
A(f"""
s_cmp_lg_u32 s{sW}, 1
s_cbranch_scc1 L_rnostat
s_mov_b32 exec_hi, 0
buffer_store_dwordx2 v[36:37], v107, {WS}, s70 offen offset:1024 sc1
s_mov_b64 exec, -1
L_rnostat:
s_nop 5
""")
for j in range(4): A(f"v_cndmask_b32 v{48+j}, v{40+j}, v{44+j}, s[66:67]")
for j in range(4): A(f"v_cndmask_b32 v{40+j}, v{44+j}, v{40+j}, s[66:67]")
for j in range(4): A(f"v_add_f32_dpp v{40+j}, v{48+j}, v{40+j} row_ror:8 {DPPF}")
A(f"""
v_cvt_pk_bf16_f32 v44, v40, v41
v_cvt_pk_bf16_f32 v45, v42, v43
buffer_store_dwordx2 v[44:45], v106, {WS}, s71 offen sc1
""")
ST(7)
if OPT['local'] and OPT['wb'] == 1:
    A(f"""
    s_cmp_lg_u32 s{sK}, 0
    s_cbranch_scc1 L_end
    s_waitcnt vmcnt(0)
    s_barrier
    s_cmp_lg_u32 s{sW}, 0
    s_cbranch_scc1 L_end
    buffer_wbl2 sc1
    """)
finish()

A("L_att_hi:")
if OPT['prio']: A("s_setprio 2")
if OPT['pf']:
    A(f"""
    s_getpc_b64 s[66:67]
    L_pc:
    s_sub_u32 s66, s66, L_pc-{NAME}_kernel
    s_subb_u32 s67, s67, 0
    v_subrev_u32 v10, 256, v0
    v_lshlrev_b32 v10, 7, v10
    v_cmp_gt_u32 vcc, L_exit-{NAME}_kernel, v10
    s_and_saveexec_b64 s[68:69], vcc
    s_cbranch_execz L_nopf
    global_load_dword v255, v10, s[66:67]
    L_nopf:
    s_mov_b64 exec, -1
    """)
A(f"""
s_sub_u32 s66, s{sW}, 4
s_lshl_b32 s67, s{sX}, 15
s_lshl_b32 s68, s{sK}, 11
s_add_u32 s68, s68, s67
s_add_u32 s69, s68, {WS_H1L}
s_waitcnt lgkmcnt(0)
s_load_dword s{sE}, s[48:49], 0
s_cmp_lg_u32 s66, 1
s_cbranch_scc1 L_h_b
buffer_load_dwordx4 v[248:251], v9, {WS}, s69 offen
buffer_load_dwordx4 v[248:251], v9, {WS}, s69 offen offset:1024
L_h_b:
""")
if OPT['wqh']:
    A(f"""
    s_cmp_lt_u32 s66, 2
    s_cbranch_scc1 L_h_c
    s_lshr_b32 s68, s{sK}, 2
    s_mul_i32 s68, s68, 144
    s_and_b32 s69, s{sK}, 3
    s_lshl_b32 s69, s69, 2
    s_add_u32 s68, s68, s69
    s_lshl_b32 s69, s66, 1
    s_add_u32 s68, s68, s69
    s_add_u32 s68, s68, 124
    s_lshl_b32 s68, s68, 13
    s_lshl_b32 s69, s{sX}, 10
    s_add_u32 s68, s68, s69
    s_add_u32 s69, s68, 8192
    buffer_load_dwordx4 v[248:251], v9, {RB}, s68 offen
    buffer_load_dwordx4 v[248:251], v9, {RB}, s69 offen
    L_h_c:
    """)
A(f"""
s_lshr_b32 s67, s{sX}, 1
s_lshl_b32 s67, s67, 15
s_lshl_b32 s68, s66, 13
s_add_u32 s67, s67, s68
s_add_u32 s67, s67, {WS_H2}
s_and_b32 s69, s66, 1
s_lshl_b32 s69, s69, 1
v_xor_b32 v10, s69, v3
v_lshlrev_b32 v10, 4, v10
v_lshl_add_u32 v10, v2, 10, v10
s_add_u32 s68, s68, {QA}
v_add_u32 v16, s68, v10
v_xor_b32 v17, 64, v16
v_xor_b32 v18, 16, v16
v_xor_b32 v19, 80, v16
v_lshrrev_b32 v12, 5, v{vL}
v_and_b32 v13, 1, v4
v_lshrrev_b32 v14, 1, v6
v_lshl_or_b32 v13, v13, 1, v14
v_and_b32 v14, 2, v5
v_lshl_or_b32 v14, v14, 1, v12
v_xor_b32 v13, v13, v14
v_lshlrev_b32 v13, 4, v13
v_lshl_add_u32 v13, v5, 7, v13
v_lshl_add_u32 v13, v12, 9, v13
v_and_b32 v14, 1, v6
v_lshl_add_u32 v13, v14, 3, v13
s_lshl_b32 s68, s66, 11
v_add_u32 v20, s68, v13
v_xor_b32 v21, 32, v20
v_xor_b32 v22, 64, v20
v_xor_b32 v23, 96, v20
""")
for j in range(4): A(f"v_add_u32 v{24+j}, 0x10000, v{20+j}")
A(f"s_getreg_b32 s65, hwreg(HW_REG_XCC_ID, 0, 4)\ns_lshl_b32 s72, s{sX}, 11\ns_add_u32 s72, s72, {WS_XT}\ns_waitcnt lgkmcnt(0)")
get_tag()
A(f"""
s_cmp_lg_u32 s66, 0
s_cbranch_scc1 L_noxt
s_lshl_b32 s68, s{sK}, 7
s_add_u32 s68, s68, s72
v_mov_b32 v28, s65
v_mov_b32 v29, s{sT}
v_lshlrev_b32 v30, 3, v{vL}
s_mov_b64 exec, 0xffff
buffer_store_dwordx2 v[28:29], v30, {WS}, s68 offen sc1
s_mov_b64 exec, -1
L_noxt:
""")
A(f"""
s_add_u32 s72, s48, s72
s_addc_u32 s73, s49, 0
s_lshl_b32 s74, s{sX}, 13
s_lshl_b32 s75, s66, {8 if OPT['cpq'] else 11}
s_add_u32 s74, s74, s75
s_add_u32 s74, s74, {WS_PQ}
s_add_u32 s74, s48, s74
s_addc_u32 s75, s49, 0
s_mov_b32 s77, 0
s_sleep 32
""")
if not OPT['local']: A(f"s_mov_b32 s{sLOC}, 1")
if OPT['local']:
    A(f"s_cmp_lg_u32 s66, 0\ns_cbranch_scc1 L_nx\nL_nxp:\ns_mov_b32 s{sLOC}, 0\ns_mov_b32 s76, 0")
    for hlf in range(2):
        for i in range(8): A(f"s_load_dwordx2 s[{16+16*hlf+2*i if hlf == 0 or i < 4 else 52+2*(i-4)}:{17+16*hlf+2*i if hlf == 0 or i < 4 else 53+2*(i-4)}], s[72:73], {(8*hlf+i)*128} glc")
    A("s_waitcnt lgkmcnt(0)")
    for r in list(range(16, 40, 2)) + list(range(52, 60, 2)):
        A(f"s_xor_b32 s{r}, s{r}, s65\ns_or_b32 s{sLOC}, s{sLOC}, s{r}\ns_xor_b32 s{r+1}, s{r+1}, s{sT}\ns_or_b32 s76, s76, s{r+1}")
    A(f"s_or_b32 s{sLOC}, s{sLOC}, s76\ns_add_u32 s77, s77, 1\ns_cmp_ge_u32 s77, 8\ns_cbranch_scc1 L_nx\ns_cmp_lg_u32 s76, 0\ns_cbranch_scc1 L_nxp\nL_nx:")
A(f"""
L_xp:
s_sleep {OPT['psl']}
s_mov_b32 s76, 0
""")
if OPT['cpq']:
    A("s_load_dwordx8 s[16:23], s[74:75], 0 glc\ns_load_dwordx8 s[24:31], s[74:75], 128 glc\ns_waitcnt lgkmcnt(0)")
else:
    for i in range(16): A(f"s_load_dword s{16+i}, s[74:75], {i*128} glc")
    A("s_waitcnt lgkmcnt(0)")
for i in range(16): A(f"s_xor_b32 s{16+i}, s{16+i}, s{sT}\ns_or_b32 s76, s76, s{16+i}")
A(f"""
s_add_u32 s77, s77, 1
s_cmp_ge_u32 s77, {POLL_MAX}
s_cbranch_scc1 L_xd
s_cmp_lg_u32 s76, 0
s_cbranch_scc1 L_xp
L_xd:
""")
ST(6, 2)
if OPT['gbar'] <= 8: A("s_barrier")
if OPT['exp'] == 2: A("s_branch L_end")
ST(9)
vQ = 32
A(f"s_mov_b32 s76, 0xff\ns_mov_b32 s77, 0\ns_add_u32 s69, s67, 4096\nL_h2poll:")
for i in range(8):
    A(f"s_bitcmp1_b32 s76, {i}\ns_cbranch_scc0 L_h2i{i}")
    A(f"buffer_load_dwordx4 {vr(vQ+4*i,4)}, v9, {WS}, s{67 if i < 4 else 69} offen offset:{(i&3)*1024} sc1")
    A(f"L_h2i{i}:")
A(f"s_add_u32 s77, s77, 1\ns_cmp_eq_u32 s77, 1\ns_cbranch_scc1 L_h2first\ns_waitcnt vmcnt(0)\nL_h2first:")
for i in range(8):
    var = ((i >> 1) & 1) + 2*((i >> 2) & 1)
    q = vQ+4*i
    A(f"s_bitcmp1_b32 s76, {i}\ns_cbranch_scc0 L_h2c{i}")
    A(f"s_waitcnt vmcnt({7-i})")
    A(f"v_max3_u32 v28, v{q}, v{q+1}, v{q+2}\nv_max_u32 v28, v28, v{q+3}\nds_write_b128 v{16+var}, {vr(q,4)} offset:{i*128}\nv_cmp_eq_u32 vcc, -1, v28")
    A(f"s_cbranch_vccnz L_h2c{i}\ns_bitset0_b32 s76, {i}\nL_h2c{i}:")
A(f"""
s_waitcnt lgkmcnt(0)
s_cmp_ge_u32 s77, {POLL_MAX}
s_cbranch_scc1 L_h2done
s_cmp_eq_u32 s76, 0
s_cbranch_scc1 L_h2done
s_sleep {OPT['rsleep']}
s_branch L_h2poll
L_h2done:
""")
ST(1)
if OPT['prio']: A("s_setprio 0")
A(f"""
s_lshl_b32 s70, s{sX}, 4
s_add_u32 s70, s70, s{sK}
s_lshl_b32 s76, s70, 15
s_lshl_b32 s71, s66, 13
s_add_u32 s76, s76, s71
s_add_u32 s76, s76, {WS_H3A}
s_add_u32 s78, s76, 4096
s_lshl_b32 s75, s70, 10
s_add_u32 s75, s75, {WS_FLG}
s_barrier
""")
vV = 96; vO = 32
def vfrag(f, tau): return vV + 4*(f*4 + tau)
PR = [224+4*f for f in range(6)] + [16, 252]
def pv_reads(f):
    for tau in range(4):
        for jj in range(2):
            a = (20 if f < 4 else 24) + jj + 2*(tau & 1)
            off = (f & 3)*16384 + jj*8192 + (tau >> 1)*1024
            A(f"ds_read_b64_tr_b16 {vr(vfrag(f,tau)+2*jj,2)}, v{a} offset:{off}")
if OPT['local']:
    A(f"s_cmp_lg_u32 s66, 0\ns_cbranch_scc1 L_npt\nbuffer_load_dwordx4 v[248:251], v9, {WS}, s75 offen\nL_npt:")
    if not OPT['nopt']:
        for i in range(8): A(f"buffer_load_dwordx4 v[248:251], v9, {WS}, s{76 if i < 4 else 78} offen offset:{(i&3)*1024}")
FO = [0, 2, 4, 6, 1, 3, 5, 7]
pv_reads(FO[0])
A("s_barrier")
for n in range(1, 8):
    A("s_waitcnt lgkmcnt(6)")
    if n == 5:
        A(f"""
        v_mov_b32 v15, {QA+LCO}
        s_cmp_lg_u32 s66, 0
        s_cbranch_scc1 L_nl
        v_mov_b32 v28, s{sLOC}
        ds_write_b32 v15, v28
        L_nl:
        s_barrier
        """)
    pv_reads(FO[n])
A(f"""
v_add_u32 v10, {QA}, v9
v_and_b32 v13, 31, v{vL}
v_lshlrev_b32 v13, 4, v13
v_lshl_add_u32 v11, v12, 16, v13
s_lshl_b32 s68, s{sX}, 19
s_lshl_b32 s69, s{sK}, 11
s_add_u32 s68, s68, s69
s_lshl_b32 s70, s66, 9
s_add_u32 s68, s68, s70
s_add_u32 s68, s68, {WS_H3A}
s_lshl_b32 s71, s66, 7
s_add_u32 s71, s71, s75
v_mov_b32 v14, s{sT}
s_waitcnt lgkmcnt(0)
s_barrier
""")
ST(3)
def p_read(f): A(f"ds_read_b128 {vr(PR[f],4)}, v10 offset:{(f>>1)*8192+(f&1)*1024}")
for f in FO[:4]: p_read(f)
for n, f in enumerate(FO):
    if n < 3: A(f"s_waitcnt lgkmcnt({3-n})")
    elif n == 3: pass
    else: A(f"s_waitcnt lgkmcnt({8-n})")
    for tau in range(4): mf32(vO+16*tau, PR[f], vfrag(f,tau), n == 0)
    if n == 2:
        A("s_waitcnt lgkmcnt(0)\ns_barrier")
        for f2 in FO[4:]: p_read(f2)
        A("ds_read_b32 v15, v15")
A(f"s_waitcnt lgkmcnt(0)\nv_readfirstlane_b32 s{sLOC}, v15")
ST(4)
def pv_store(flag):
    for n, i in enumerate(range(0, 16, 2)):
        d = vV + 4*n
        A(f"v_cvt_pk_bf16_f32 v{d}, v{vO+i}, v{vO+16+i}\nv_cvt_pk_bf16_f32 v{d+2}, v{vO+i+1}, v{vO+16+i+1}")
        A(f"s_add_u32 s69, s68, {((i&3)//2 + 4*(i>>2))*32768}")
        A(f"v_cvt_pk_bf16_f32 v{d+1}, v{vO+32+i}, v{vO+48+i}\nv_cvt_pk_bf16_f32 v{d+3}, v{vO+32+i+1}, v{vO+48+i+1}")
        A(f"buffer_store_dwordx4 {vr(d,4)}, v11, {WS}, s69 offen {flag if flag or not OPT['lnt'] & 1 else 'nt'}")
    A(f"""
    s_mov_b64 exec, 1
    s_waitcnt vmcnt(0)
    buffer_store_dword v14, v8, {WS}, s71 offen offset:512 {flag}
    s_mov_b64 exec, -1
    """)
    ST(5)
    finish()
A(f"s_cmp_lg_u32 s{sLOC}, 0\ns_cbranch_scc1 L_pvfar")
pv_store("")
A("L_pvfar:\ns_nop 9")
pv_store("sc1")

A("L_end:")
if OPT['stamps']:
    A("s_waitcnt vmcnt(0)")
    ST(8)
    A(f"""
    s_waitcnt lgkmcnt(0)
    s_lshl_b32 s66, s2, 3
    s_add_u32 s66, s66, s{sW}
    s_lshl_b32 s66, s66, 6
    s_add_u32 s66, s66, {WS_ST}
    s_getreg_b32 s67, hwreg(HW_REG_XCC_ID)
    s_mov_b64 exec, 1
    v_mov_b32 v8, 0
    """)
    for i in range(3):
        A("\n".join(f"v_mov_b32 v{12+j}, s{80+2*(3*i+j)}" for j in range(3)))
        A(f"v_mov_b32 v15, {['s67','s77','s98'][i]}")
        A(f"buffer_store_dwordx4 v[12:15], v8, {WS}, s66 offen offset:{16*i}")
if OPT['hs'] >= 0:
    if OPT['hr'] == 1: A("s_cmp_ge_u32 s2, 128\ns_cbranch_scc1 L_exit")
    if OPT['hr'] == 3: A(f"s_cmp_ge_u32 s2, 128\ns_cbranch_scc1 L_exit\ns_cmp_ge_u32 s{sW}, 4\ns_cbranch_scc1 L_exit")
    if OPT['hr'] == 4: A(f"s_cmp_ge_u32 s2, 128\ns_cbranch_scc1 L_exit\ns_cmp_lt_u32 s{sW}, 4\ns_cbranch_scc1 L_exit")
    if OPT['hr'] == 2: A("s_cmp_lt_u32 s2, 128\ns_cbranch_scc1 L_exit")
    A(f"s_cmp_eq_u32 s{80+2*OPT['hs']}, 0\ns_cbranch_scc1 L_exit")
    A(f"L_hold2:\ns_memrealtime s[66:67]\ns_waitcnt lgkmcnt(0)\ns_sub_u32 s68, s66, s{80+2*OPT['hs']}\ns_cmp_lt_u32 s68, 4000\ns_cbranch_scc1 L_hold2")
if OPT['hold']:
    A(f"L_hold:\ns_memrealtime s[66:67]\ns_waitcnt lgkmcnt(0)\ns_sub_u32 s68, s66, s80\ns_cmp_lt_u32 s68, {OPT['hold']}\ns_cbranch_scc1 L_hold")
A("L_exit:\ns_endpgm")
A.raw(f""".section .rodata,"a"
.p2align 6
.amdhsa_kernel {NAME}_kernel
  .amdhsa_next_free_vgpr 256
  .amdhsa_next_free_sgpr 102
  .amdhsa_accum_offset 256
  .amdhsa_group_segment_fixed_size 0
  .amdhsa_kernarg_size 104
  .amdhsa_user_sgpr_count 2
  .amdhsa_user_sgpr_kernarg_segment_ptr 1
  .amdhsa_system_sgpr_workgroup_id_x 1
  .amdhsa_float_denorm_mode_32 3
.end_amdhsa_kernel""")
sys.stdout.write(A.text())
sys.stderr.write(f"instructions {A.count} nops {A.nops}\n")
```

```python
import sys, math, struct
from asmx import Asm, NAME

OPT = dict(stamps=0, local=1, hold=0, pf=2, exp=0, gbar=8, rsleep=2, help=7, fslow=2, tslow=0, wb=0, gap=0, prio=1, ukw=0, wqh=1, adel=0, psl=4, cpq=1, hb=1, noclr=0, nopt=0, hslow=0, gslow=0, Tslow=0, areg=1, pvp=1, ckh=1, lnt=0, c3l=0, rowm=0, fclr=0, late=0, nl=8, bpre=1, fhelp=0, hs=-1, hr=0)
for a in sys.argv[1:]:
    k, v = a.split("="); assert k in OPT, k; OPT[k] = int(v)

WS_PF  = 0x010000
WS_FF  = 0x020000
WS_XT  = 0x030000
WS_H1  = 0x040000
WS_H1L = 0x0C0000
WS_H2  = 0x080000
WS_PQ  = 0x0A0000
WS_FLG = 0x100000
WS_H3B = 0x140000
WS_H5  = 0x200000
WS_H3A = 0x400000
WS_ST  = 0x800000
POLL_MAX = 60000 if not OPT['exp'] else 40

P_X, P_CKV, P_WQ, P_WUK, P_WUV, P_WO, P_BX, P_WG, P_WU, P_WD, P_OUT, P_DBG = [16+2*i for i in range(12)]
sSL, sF = 40, 41
sE, sT, sW, sX, sK, sH = 42, 43, 44, 45, 46, 47
WS = "s[48:51]"; RA = "s[52:55]"; RB = "s[56:59]"; RC = "s[60:63]"
sQD, sA_ = 64, 65
A = Asm()
HW = '\ns_waitcnt vmcnt(0)' if OPT['hslow'] else ''
NQPART = [True]

def srd(base, ptr, size):
    A(f"s_mov_b32 s{base}, s{ptr}\ns_mov_b32 s{base+1}, s{ptr+1}\ns_mov_b32 s{base+2}, {size}\ns_mov_b32 s{base+3}, 0x20000")
def ST(i, mode=1):
    if OPT['stamps'] == mode or (OPT['stamps'] and i in (0, 8)): A(f"s_memrealtime s[{80+2*i}:{81+2*i}]")
def vr(a, n): return f"v[{a}:{a+n-1}]"
def dma(voff, rsrc, soff, flags="nt"):
    A(f"buffer_load_dwordx4 v{voff}, {rsrc}, s{soff} offen {flags} lds")
def finish(): A("s_branch L_end")
def get_tag():
    A(f"s_add_u32 s{sE}, s{sE}, 1\ns_mul_i32 s{sT}, s{sE}, 0x9E3779B1\ns_xor_b32 s{sT}, s{sT}, 0x5BD1E995")
def rb16(dst, src):
    A(f"v_cvt_pk_bf16_f32 v{dst}, v{src}, v{src}\nv_lshlrev_b32 v{dst}, 16, v{dst}")
DPPF = "row_mask:0xf bank_mask:0xf"
QP1 = "quad_perm:[1,0,3,2] " + DPPF
def wave_sum_to_sgpr(v, s):
    for r in (8, 4, 2, 1): A(f"v_add_f32_dpp v{v}, v{v}, v{v} row_ror:{r} {DPPF}")
    A(f"v_add_f32_dpp v{v}, v{v}, v{v} row_bcast:15 row_mask:0xa bank_mask:0xf")
    A(f"v_add_f32_dpp v{v}, v{v}, v{v} row_bcast:31 row_mask:0xc bank_mask:0xf")
    A(f"v_readlane_b32 s{s}, v{v}, 63")
def fbits(x): return "0x%08x" % struct.unpack("<I", struct.pack("<f", x))[0]
def mf16(d, a, b, first): A(f"v_mfma_f32_16x16x32_bf16 {vr(d,4)}, {vr(a,4)}, {vr(b,4)}, {'0' if first else vr(d,4)}")
def mf32(d, a, b, first): A(f"v_mfma_f32_32x32x16_bf16 {vr(d,16)}, {vr(a,4)}, {vr(b,4)}, {'0' if first else vr(d,16)}")
def ones(v): A("\n".join(f"v_mov_b32 v{v+j}, -1" for j in range(4)))
LOG2E = 1.4426950408889634

A.raw("; @launch grid=(256,1,1) block=(512,1,1) lds=163840")
A.raw('.amdgcn_target "amdgcn-amd-amdhsa--gfx950"')
A.raw(f".text\n.globl {NAME}_kernel\n.p2align 8\n.type {NAME}_kernel,@function\n{NAME}_kernel:")
vL = 1
ST(0)
if OPT['pf'] == 2:
    A(f"""
    s_getpc_b64 s[66:67]
    L_pc:
    s_cmp_ge_u32 s2, 128
    s_cbranch_scc1 L_nopf
    v_lshlrev_b32 v2, 7, v0
    v_cmp_gt_u32 vcc, L_exit-L_pc, v2
    s_and_saveexec_b64 s[68:69], vcc
    s_cbranch_execz L_nopf1
    global_load_dword v247, v2, s[66:67]
    L_nopf1:
    s_mov_b64 exec, -1
    L_nopf:
    """)
A(f"""
s_load_dwordx2 s[48:49], s[0:1], 96
s_load_dwordx2 s[52:53], s[0:1], 0
s_load_dwordx2 s[56:57], s[0:1], 16
s_load_dwordx2 s[60:61], s[0:1], 24
s_load_dwordx16 s[16:31], s[0:1], 0
s_load_dwordx8 s[32:39], s[0:1], 64
s_cmp_ge_u32 s2, 256
s_cbranch_scc1 L_exit
v_lshrrev_b32 v2, 6, v0
v_and_b32 v{vL}, 63, v0
v_readfirstlane_b32 s{sW}, v2
s_and_b32 s{sX}, s2, 7
s_lshr_b32 s{sK}, s2, 3
v_lshlrev_b32 v9, 4, v{vL}
s_mov_b32 s50, 0x10000000
s_mov_b32 s51, 0x20000
s_mov_b32 s55, 0x20000
s_mov_b32 s58, {576*8192}
s_mov_b32 s59, 0x20000
s_mov_b32 s62, {512*8192}
s_mov_b32 s63, 0x20000
s_cmp_lt_u32 s2, 128
s_cbranch_scc1 L_att
""")
def lane_consts():
    A(f"v_lshrrev_b32 v2, 3, v{vL}\nv_and_b32 v3, 7, v{vL}\nv_lshrrev_b32 v4, 4, v{vL}\nv_bfe_u32 v5, v{vL}, 2, 2\nv_and_b32 v6, 3, v{vL}\nv_lshlrev_b32 v7, 4, v0\nv_mov_b32 v8, 0")
    if OPT['stamps']:
        for i in range(82, 102): A(f"s_mov_b32 s{i}, 0")

XN, XNS = 0, 1216
QL, QLS = 5120, 320
HB, HBS = 9728, 192
BIG = 16384
vTR = 13
vD = 28
def common_setup():
    lane_consts()
    A(f"""
    s_and_b32 s67, s{sW}, 1
    s_lshl_b32 s68, s67, 2
    v_and_b32 v11, 2, v2
    v_or_b32 v11, s68, v11
    v_xor_b32 v11, v11, v3
    v_lshlrev_b32 v11, 4, v11
    v_lshl_add_u32 v12, v2, 13, v11
    s_lshr_b32 s68, s{sW}, 1
    s_bfe_u32 s69, s{sW}, 0x10001
    s_lshr_b32 s70, s{sW}, 2
    """)
def common_setup2():
    A(f"""
    s_and_b32 s74, s{sW}, 3
    s_lshl_b32 s74, s74, 1
    v_lshrrev_b32 v{vTR}, 1, v6
    v_or_b32 v{vTR}, s74, v{vTR}
    v_and_b32 v14, 2, v5
    v_xor_b32 v{vTR}, v{vTR}, v14
    v_and_b32 v14, 1, v4
    v_lshlrev_b32 v15, 2, v14
    v_xor_b32 v{vTR}, v{vTR}, v15
    v_lshlrev_b32 v{vTR}, 4, v{vTR}
    v_lshl_add_u32 v{vTR}, v5, 7, v{vTR}
    v_and_b32 v15, 1, v6
    v_lshl_add_u32 v{vTR}, v15, 3, v{vTR}
    s_lshl_b32 s74, s70, 10
    s_add_u32 s74, s74, {BIG}
    v_add_u32 v15, s74, v{vTR}
    v_lshl_add_u32 v16, v4, 11, v15
    v_mul_u32_u24 v18, {XNS}, v6
    v_lshl_add_u32 v18, v4, 4, v18
    s_mov_b32 s78, 0x000f000f
    s_mov_b32 s79, 0x000f000f
    """)
def x_loads():
    A(f"""
    s_mul_i32 s66, s{sW}, 1152
    v_lshlrev_b32 v10, 3, v{vL}
    v_lshlrev_b32 v19, 1, v{vL}
    buffer_load_dwordx2 v[20:21], v10, {RA}, s66 offen
    buffer_load_dwordx2 v[22:23], v10, {RA}, s66 offen offset:512
    buffer_load_ushort v24, v19, {RA}, s66 offen offset:1024
    """)
def layernorm():
    e = list(range(56, 65))
    for i in range(4): A(f"v_lshlrev_b32 v{e[2*i]}, 16, v{20+i}\nv_and_b32 v{e[2*i+1]}, 0xffff0000, v{20+i}")
    A(f"""
    v_lshlrev_b32 v{e[8]}, 16, v24
    v_add_f32 v25, v{e[0]}, v{e[1]}
    v_add_f32 v26, v{e[2]}, v{e[3]}
    v_add_f32 v27, v{e[4]}, v{e[5]}
    v_add_f32 v28, v{e[6]}, v{e[7]}
    v_add_f32 v25, v25, v26
    v_add_f32 v27, v27, v28
    v_add_f32 v25, v25, v{e[8]}
    v_add_f32 v25, v25, v27
    """)
    wave_sum_to_sgpr(25, 74)
    A(f"v_mov_b32 v26, {fbits(1.0/576)}\nv_mul_f32 v26, s74, v26")
    A(f"v_sub_f32 v27, v{e[0]}, v26\nv_mul_f32 v25, v27, v27")
    for i in range(1, 9): A(f"v_sub_f32 v27, v{e[i]}, v26\nv_fmac_f32 v25, v27, v27")
    rb16(26, 26)
    for i in range(9): A(f"v_sub_f32 v{e[i]}, v{e[i]}, v26")
    wave_sum_to_sgpr(25, 74)
    A(f"v_mov_b32 v27, {fbits(1.0/576)}\nv_mul_f32 v27, s74, v27")
    rb16(27, 27)
    A(f"v_add_f32 v27, {fbits(1e-5)}, v27")
    rb16(27, 27)
    A("v_sqrt_f32 v27, v27")
    rb16(27, 27)
    A("v_rcp_f32 v27, v27")
    for i in range(0, 8, 2): A(f"v_cvt_pk_bf16_f32 v{20+i//2}, v{e[i]}, v{e[i+1]}")
    A(f"v_cvt_pk_bf16_f32 v24, v{e[8]}, v{e[8]}")
    for i in range(0, 8, 2): A(f"v_lshlrev_b32 v{e[i]}, 16, v{20+i//2}\nv_and_b32 v{e[i+1]}, 0xffff0000, v{20+i//2}")
    A(f"v_lshlrev_b32 v{e[8]}, 16, v24")
    for i in range(9): A(f"v_mul_f32 v{e[i]}, v{e[i]}, v27")
    for i in range(0, 8, 2): A(f"v_cvt_pk_bf16_f32 v{20+i//2}, v{e[i]}, v{e[i+1]}")
    A(f"v_cvt_pk_bf16_f32 v24, v{e[8]}, v{e[8]}")
    A(f"""
    s_mul_i32 s74, s{sW}, {XNS}
    v_add_u32 v10, s74, v10
    v_add_u32 v19, s74, v19
    ds_write_b64 v10, v[20:21] offset:{XN}
    ds_write_b64 v10, v[22:23] offset:{XN+512}
    ds_write_b16 v19, v24 offset:{XN+1024}
    """)
def clear_tail_inbox(vones):
    A(f"s_lshl_b32 s74, s{sH}, 14\ns_add_u32 s74, s74, {WS_H3B}")
    for i in range(4):
        A(f"buffer_store_dwordx4 {vr(vones,4)}, v9, {WS}, s74 offen sc1\nbuffer_store_dwordx4 {vr(vones,4)}, v9, {WS}, s74 offen offset:2048 sc1")
        if i < 3: A("s_add_u32 s74, s74, 4096")
    A(f"s_sub_u32 s74, s74, {3*4096}\nv_lshlrev_b32 v14, 11, v2\nv_lshl_add_u32 v14, v3, 4, v14")
    A(f"buffer_store_dwordx4 {vr(vones,4)}, v14, {WS}, s74 offen offset:1024 sc1")
def proof(sidx):
    A(f"""
    s_lshl_b32 s74, s{sidx}, 7
    s_add_u32 s74, s74, {WS_PF}
    v_mov_b32 v14, s{sT}
    v_lshlrev_b32 v17, 2, v{vL}
    s_mov_b32 exec_hi, 0
    buffer_store_dword v14, v17, {WS}, s74 offen sc1
    s_mov_b64 exec, -1
    """)
vXN, vG = 32, 104
def xn_frags():
    for kp in range(18):
        A(f"ds_read_b128 {vr(vXN+4*kp,4)}, v18 offset:{XN+kp*64}")
        if kp == 11: A("s_waitcnt lgkmcnt(4)")
def k_half(h, va, vb):
    for kp in range(9):
        a, off = (va, kp*8192) if kp < 8 else (vb, 0)
        A(f"ds_read_b64_tr_b16 {vr(vG+4*kp,2)}, v{a} offset:{off}")
        A(f"ds_read_b64_tr_b16 {vr(vG+4*kp+2,2)}, v{a} offset:{off+512}")
        if kp == 5: A("s_waitcnt lgkmcnt(6)")
    for kp in range(9):
        A(f"s_waitcnt lgkmcnt({min(15,2*(8-kp))})")
        mf16(vD, vG+4*kp, vXN+4*(9*h+kp), h == 0 and kp == 0)

QP, QPS = 5120, 272
WQB = BIG + 108*1024
UKB = BIG
sU = 76
def f_setup():
    A(f"""
    s_lshl_b32 s71, s{sA_}, 1
    s_add_u32 s71, s71, s{sQD}
    s_lshr_b32 s72, s{sQD}, 1
    s_cmp_eq_u32 s{sA_}, 3
    s_cselect_b32 s72, s72, 2
    s_sub_u32 s71, s71, s72
    s_mul_i32 s{sU}, s{sX}, 9
    s_add_u32 s{sU}, s{sU}, s71
    s_cmp_eq_u32 s69, 0
    s_cselect_b32 s60, s{P_WG}, s{P_WU}
    s_cselect_b32 s61, s{P_WG+1}, s{P_WU+1}
    s_mov_b32 s62, {576*9216}
    s_lshl_b32 s72, s67, 1
    s_lshl_b32 s71, s69, 2
    s_or_b32 s72, s72, s71
    v_bfe_u32 v14, v2, 1, 1
    v_or_b32 v14, s72, v14
    v_xor_b32 v14, v14, v3
    v_lshlrev_b32 v14, 4, v14
    v_mul_u32_u24 v12, 9216, v2
    v_add_u32 v12, v12, v14
    s_lshl_b32 s71, s70, 1
    s_add_u32 s71, s71, s67
    s_mul_i32 s72, s71, {8*9216}
    s_lshl_b32 s74, s{sU}, 7
    s_add_u32 s72, s72, s74
    s_lshl_b32 s71, s71, 1
    s_add_u32 s71, s71, s69
    s_lshl_b32 s71, s71, 10
    s_add_u32 s71, s71, {BIG}
    """)
def gu_dma(i):
    A(f"s_mov_b32 m0, s71\ns_add_u32 s71, s71, 8192")
    dma(12, RC, 72)
    A(f"s_add_u32 s72, s72, {32*9216}")
A(f"""
L_nq:
s_bfe_u32 s{sA_}, s2, 0x20005
s_bfe_u32 s{sQD}, s2, 0x20003
s_lshl_b32 s{sH}, s{sX}, 2
s_add_u32 s{sH}, s{sH}, s{sA_}
s_mov_b32 s54, 4608
v_lshrrev_b32 v2, 3, v{vL}
v_and_b32 v3, 7, v{vL}
s_and_b32 s67, s{sW}, 1
s_lshl_b32 s68, s67, 2
v_and_b32 v11, 2, v2
v_or_b32 v11, s68, v11
v_xor_b32 v11, v11, v3
v_lshlrev_b32 v11, 4, v11
v_lshl_add_u32 v12, v2, 13, v11
s_bfe_u32 s69, s{sW}, 0x10001
s_lshr_b32 s70, s{sW}, 2
s_mul_i32 s71, s70, 10
s_add_u32 s71, s71, s67
s_mul_i32 s72, s{sQD}, 18
s_add_u32 s72, s72, s71
s_lshl_b32 s72, s72, 16
s_lshl_b32 s73, s{sH}, 8
s_lshl_b32 s74, s69, 7
s_add_u32 s73, s73, s74
s_add_u32 s72, s72, s73
s_lshl_b32 s71, s71, 1
s_add_u32 s71, s71, s69
s_lshl_b32 s71, s71, 10
s_add_u32 s71, s71, {WQB}
s_mov_b32 m0, s71
s_cmp_lg_u32 s70, 0
s_waitcnt lgkmcnt(0)
s_cbranch_scc1 L_nq_nox
""")
x_loads()
dma(12, RB, 72)
A(f"s_add_u32 s71, s71, 4096\ns_add_u32 s72, s72, {2*65536}\ns_mov_b32 m0, s71\nL_nq_nox:")
for i in range(4):
    A(f"s_add_u32 s71, s71, 4096")
    dma(12, RB, 72)
    if i < 3: A(f"s_add_u32 s72, s72, {2*65536}\ns_mov_b32 m0, s71")
A(f"s_load_dword s{sE}, s[48:49], 0")
lane_consts()
ST(1, 2)
A(f"s_lshr_b32 s68, s{sW}, 1\ns_cmp_ge_u32 s{sQD}, 2\ns_cbranch_scc1 L_nq_fs")
A(f"""
s_lshl_b32 s71, s70, 3
s_add_u32 s71, s71, s67
s_lshl_b32 s72, s{sQD}, 5
s_add_u32 s72, s72, s71
s_lshl_b32 s72, s72, 16
s_add_u32 s72, s72, s73
s_lshl_b32 s71, s71, 1
s_add_u32 s71, s71, s69
s_lshl_b32 s71, s71, 10
s_add_u32 s71, s71, {UKB}
s_cmp_eq_u32 s70, 0
s_cbranch_scc1 L_nq_ln
""")
ones(24)
A(f"""
s_lshl_b32 s75, s{sW}, 12
s_lshl_b32 s74, s{sH}, 14
s_add_u32 s74, s74, s75
s_add_u32 s74, s74, {WS_H3B-16384}
buffer_store_dwordx4 v[24:27], v9, {WS}, s74 offen sc1
buffer_store_dwordx4 v[24:27], v9, {WS}, s74 offen offset:2048 sc1
s_mov_b64 exec, 0xff
buffer_store_dwordx4 v[24:27], v9, {WS}, s74 offen offset:1024 sc1
buffer_store_dwordx4 v[24:27], v9, {WS}, s74 offen offset:3072 sc1
s_lshl_b32 s75, s{sW}, 15
s_lshl_b32 s74, s{sH}, 10
s_add_u32 s74, s74, s75
s_lshl_b32 s75, s{sQD}, 9
s_add_u32 s74, s74, s75
s_add_u32 s74, s74, {WS_H2-4*32768}
s_mov_b32 exec_lo, -1
buffer_store_dwordx4 v[24:27], v9, {WS}, s74 offen sc1
s_mov_b64 exec, -1
s_branch L_nq_noln
L_nq_fs:
s_cmp_lg_u32 s{sK}, 30
s_cbranch_scc1 L_nq_fs2
s_cmp_eq_u32 s70, 0
s_cbranch_scc1 L_nq_ln
""")
ones(24)
A(f"""
s_lshl_b32 s75, s{sW}, 12
s_lshl_b32 s74, s{sH}, 14
s_add_u32 s74, s74, s75
s_add_u32 s74, s74, {WS_H3B-16384}
buffer_store_dwordx4 v[24:27], v9, {WS}, s74 offen sc1
buffer_store_dwordx4 v[24:27], v9, {WS}, s74 offen offset:2048 sc1
s_mov_b64 exec, 0xff
buffer_store_dwordx4 v[24:27], v9, {WS}, s74 offen offset:1024 sc1
buffer_store_dwordx4 v[24:27], v9, {WS}, s74 offen offset:3072 sc1
s_mov_b64 exec, -1
s_branch L_nq_noln
L_nq_fs2:
""")
f_setup()
A(f"s_cmp_lg_u32 s70, 0\ns_cbranch_scc1 L_nq_noln\nL_nq_ln:\ns_waitcnt vmcnt(5)")
ST(2, 2)
layernorm()
A("L_nq_noln:")
ST(3, 2)
common_setup2()
A(f"""
v_add_u32 v21, {WQB-BIG}, v16
v_and_b32 v14, 1, v4
v_lshl_add_u32 v17, v14, 11, v15
v_add_u32 v17, {WQB-BIG}, v17
s_mul_i32 s74, s{sQD}, 288
v_add_u32 v19, s74, v18
s_lshl_b32 s66, s{sH}, 13
s_add_u32 s66, s66, {WS_H1L}
s_lshl_b32 s75, s{sQD}, 11
s_add_u32 s75, s75, s66
s_lshl_b32 s77, s{sW}, 8
s_add_u32 s75, s75, s77
v_lshlrev_b32 v20, 6, v6
v_lshl_add_u32 v20, v4, 4, v20
v_cmp_gt_u32 vcc, 2, v4
s_cmp_lt_u32 s{sQD}, 2
s_cbranch_scc1 L_nq_uk
s_waitcnt vmcnt(0)
""")
for i in range(OPT['gap']): gu_dma(i)
A(f"""
s_branch L_nq_a
L_nq_uk:
s_waitcnt vmcnt(5)
s_cmp_lg_u32 s70, 0
s_cbranch_scc1 L_nq_uk2
s_waitcnt vmcnt(0)
L_nq_uk2:
""")
for i in range(4):
    A(f"s_mov_b32 m0, s71\ns_add_u32 s71, s71, 4096")
    dma(12, RC, 72)
    A(f"s_add_u32 s72, s72, {2*65536}")
A("L_nq_a:\ns_waitcnt lgkmcnt(0)")
ST(1); ST(5, 2)
A("s_barrier")
vA, vB = 64, 96
for kp in range(5):
    a = 21 if kp < 4 else 17
    A(f"ds_read_b64_tr_b16 {vr(vA+4*kp,2)}, v{a} offset:{kp*8192}")
    A(f"ds_read_b64_tr_b16 {vr(vA+4*kp+2,2)}, v{a} offset:{kp*8192+512}")
    A(f"ds_read_b128 {vr(vB+4*kp,4)}, v19 offset:{XN+kp*64}")
get_tag()
A(f"v_mov_b32 v25, s{sT}\nv_mov_b32 v27, s{sT}")
for kp in range(5):
    A(f"s_waitcnt lgkmcnt({3*(4-kp)})")
    if kp == 4:
        for j in range(4): A(f"v_cndmask_b32 v{vB+16+j}, 0, v{vB+16+j}, vcc")
    mf16(vD, vA+4*kp, vB+4*kp, kp == 0)
H1D = WS_H1L - WS_H1
def pq_addr():
    if OPT['cpq']:
        return f"""v_lshlrev_b32 v55, 13, v{vL}
        s_lshl_b32 s76, s{sX}, 7
        s_lshl_b32 s74, s{sA_}, 3
        s_add_u32 s76, s76, s74
        s_lshl_b32 s74, s{sQD}, 2
        s_add_u32 s76, s76, s74
        s_add_u32 s76, s76, {WS_PQ}"""
    return f"""v_lshlrev_b32 v55, 13, v2
    v_lshl_add_u32 v55, v3, 4, v55
    s_lshl_b32 s76, s{sH}, 8
    s_lshl_b32 s74, s{sQD}, 7
    s_add_u32 s76, s76, s74
    s_add_u32 s76, s76, {WS_PQ}"""
PQST = f"s_mov_b64 exec, 0xff\nbuffer_store_dword v44, v55, {WS}, s76 offen sc1\ns_mov_b64 exec, -1" if OPT['cpq'] else f"buffer_store_dwordx4 v[44:47], v55, {WS}, s76 offen sc1"
A(f"""
v_and_b32 v52, 1, v2
v_and_b32 v53, 2, v3
v_lshl_or_b32 v53, v52, 2, v53
v_xor_b32 v53, v53, v4
v_lshlrev_b32 v53, 4, v53
v_lshl_add_u32 v53, v3, 7, v53
v_lshl_add_u32 v52, v52, 11, v53
v_cvt_pk_bf16_f32 v24, v{vD}, v{vD+1}
v_cvt_pk_bf16_f32 v26, v{vD+2}, v{vD+3}
s_mov_b64 exec, s[78:79]
buffer_store_dwordx4 v[24:27], v20, {WS}, s75 offen
s_sub_u32 s75, s75, {H1D}
s_cmp_lt_u32 s{sQD}, 2
s_cbranch_scc1 L_nq_b
buffer_store_dwordx4 v[24:27], v20, {WS}, s75 offen sc1
s_mov_b64 exec, -1
""")
ST(2); ST(6, 2)
A(f"s_barrier\ns_cmp_eq_u32 s{sK}, 30\ns_cbranch_scc1 L_T")
if OPT['ckh']:
    nb = OPT['ckh']; lpr = 8*nb; rpi = 64//lpr
    A(f"""
    s_mov_b32 s56, s{P_CKV}
    s_mov_b32 s57, s{P_CKV+1}
    s_lshl_b32 s74, s{sA_}, 1
    s_add_u32 s74, s74, s{sQD}
    s_sub_u32 s74, s74, 2
    s_min_u32 s74, s74, 6
    s_lshl_b32 s74, s74, 3
    s_add_u32 s74, s74, s{sW}
    s_mul_i32 s74, s74, {rpi*1024}
    s_lshl_b32 s75, s{sX}, 21
    s_add_u32 s74, s74, s75
    s_add_u32 s58, s75, {1 << 21}
    v_lshrrev_b32 v48, {int(math.log2(lpr))}, v{vL}
    v_and_b32 v49, {lpr-1}, v{vL}
    v_lshlrev_b32 v48, 10, v48
    v_lshl_add_u32 v48, v49, 4, v48
    """)
    n = -(-2048 // (56*rpi))
    for i in range(n):
        A(f"buffer_load_dwordx4 v[248:251], v48, {RB}, s74 offen offset:{(1024-128*nb) if not OPT['c3l'] else (384 if nb == 1 else 256)}")
        if i < n-1: A(f"s_add_u32 s74, s74, {56*rpi*1024}")
A(f"s_branch L_F\nL_nq_b:\ns_mov_b64 exec, -1")
ST(2); ST(6, 2)
A(f"s_barrier\ns_add_u32 s71, s71, 16384\ns_add_u32 s72, s72, {8*65536}")
for i in range(4):
    A(f"s_mov_b32 m0, s71\ns_add_u32 s71, s71, 4096")
    dma(12, RC, 72)
    if i < 3: A(f"s_add_u32 s72, s72, {2*65536}")
A(f"""
s_mul_i32 s74, s68, {4*QPS}
s_lshl_b32 s77, s67, 7
s_add_u32 s74, s74, s77
v_mul_u32_u24 v22, {QPS}, v5
v_lshl_add_u32 v22, v4, 5, v22
v_lshl_add_u32 v22, v6, 3, v22
v_add_u32 v22, s74, v22
s_lshl_b32 s77, s{sW}, 13
s_add_u32 s77, s77, {UKB}
v_add_u32 v52, s77, v52
v_xor_b32 v53, 64, v52
v_and_b32 v23, 15, v{vL}
v_mul_u32_u24 v23, {QPS}, v23
v_lshl_add_u32 v23, v4, 4, v23
s_lshl_b32 s72, s{sH}, 10
s_lshl_b32 s74, s{sQD}, 9
s_add_u32 s72, s72, s74
s_lshl_b32 s74, s{sW}, 6
s_add_u32 s72, s72, s74
s_add_u32 s72, s72, {WS_H2}
v_and_b32 v21, 1, v5
v_lshlrev_b32 v54, 15, v6
{pq_addr()}
v_mov_b32 v44, s{sT}
v_mov_b32 v45, s{sT}
v_mov_b32 v46, s{sT}
v_mov_b32 v47, s{sT}
v_lshl_add_u32 v54, v21, 5, v54
v_lshl_add_u32 v54, v4, 3, v54
s_sub_u32 s71, s66, {H1D}
s_mov_b32 s77, 0
L_h1poll:
s_cmp_lg_u32 s77, 6
s_cbranch_scc1 L_h1ng
s_mov_b64 exec, s[78:79]
buffer_store_dwordx4 v[24:27], v20, {WS}, s75 offen sc1
s_mov_b64 exec, -1
L_h1ng:
s_and_b32 s74, s77, 9
s_cmp_eq_u32 s74, 9
s_cselect_b32 s74, s71, s66
buffer_load_dwordx4 v[48:51], v7, {WS}, s74 offen sc1
s_add_u32 s77, s77, 1
s_waitcnt vmcnt(0)
v_xor_b32 v49, s{sT}, v49
v_xor_b32 v51, s{sT}, v51
v_or_b32 v49, v49, v51
v_cmp_ne_u32 vcc, 0, v49
s_cmp_ge_u32 s77, {POLL_MAX}
s_cbranch_scc1 L_h1done
s_cbranch_vccnz L_h1poll
L_h1done:
v_mov_b32 v49, v50
ds_write_b64 v22, v[48:49] offset:{QP}
s_cmp_gt_u32 s77, 6
s_cbranch_scc1 L_h1sent
s_mov_b64 exec, s[78:79]
buffer_store_dwordx4 v[24:27], v20, {WS}, s75 offen sc1
s_mov_b64 exec, -1
L_h1sent:
""")
A(f"L_h1np:\nv_cmp_ne_u32 vcc, 0, v21\ns_waitcnt lgkmcnt(0)")
ST(3); ST(7, 2)
A(f"s_barrier\ns_cmp_lg_u32 s{sW}, 0\ns_cbranch_scc1 L_nopq\n{PQST}\nL_nopq:")
vUK, vD1 = 64, 56
for kp in range(4):
    A(f"ds_read_b128 {vr(vB+4*kp,4)}, v23 offset:{QP+kp*64}")
    for tl in range(2):
        A(f"ds_read_b128 {vr(vUK+16*tl+4*kp,4)}, v{52+(kp&1)} offset:{tl*4096+(kp>>1)*1024}")
A(f"s_mov_b32 s74, {fbits(LOG2E/math.sqrt(128.0))}")
for kp in range(4):
    A(f"s_waitcnt lgkmcnt({9-3*kp+1})")
    mf16(vD, vUK+4*kp, vB+4*kp, kp == 0)
    A(f"s_waitcnt lgkmcnt({9-3*kp})")
    mf16(vD1, vUK+16+4*kp, vB+4*kp, kp == 0)
for j in range(4): A(f"v_cndmask_b32 v{60+j}, v{vD1+j}, v{vD+j}, vcc")
for j in range(4): A(f"v_cndmask_b32 v{vD+j}, v{vD+j}, v{vD1+j}, vcc")
for j in range(4): A(f"v_add_f32_dpp v{vD+j}, v{60+j}, v{vD+j} row_ror:4 {DPPF}")
for j in range(4): A(f"v_add_f32_dpp v{vD+j}, v{vD+j}, v{vD+j} row_ror:8 {DPPF}")
for j in range(4): A(f"v_mul_f32 v{vD+j}, s74, v{vD+j}")
A(f"""
v_cvt_pk_bf16_f32 v48, v{vD}, v{vD+1}
v_cvt_pk_bf16_f32 v49, v{vD+2}, v{vD+3}
v_min_u32 v48, -2, v48
v_min_u32 v49, -2, v49
s_mov_b32 exec_lo, 0x00ff00ff
s_mov_b32 exec_hi, 0x00ff00ff
buffer_store_dwordx2 v[48:49], v54, {WS}, s72 offen sc1
s_mov_b64 exec, -1
""")
ST(4); ST(9, 2)
A(f"""
s_barrier
s_cmp_lt_u32 s{sA_}, 3
s_cbranch_scc1 L_TH
""")
f_setup()
for i in range(OPT['gap']): gu_dma(i)
A("s_branch L_F")

def wide_voffset(v):
    A(f"v_mul_u32_u24 v{v}, 1152, v2\nv_add_u32 v{v}, v{v}, v11")
ZR = 15360
def publish_setup(stride):
    A(f"""
    s_mul_i32 s74, s{sW}, {stride}
    s_add_u32 s72, s72, s74
    v_mul_u32_u24 v20, {8*stride}, v5
    v_lshl_add_u32 v20, v4, 5, v20
    v_lshl_add_u32 v20, v6, 3, v20
    v_lshlrev_b32 v232, 2, v{vL}
    ds_write_b32 v232, v8 offset:{ZR}
    """)
def masked_addrs(vreal, base):
    A(f"v_mov_b32 v236, {ZR-base}")
    for i in range(4): A(f"v_cmp_eq_u32 vcc, {i}, v5\nv_cndmask_b32 v{232+i}, v236, v{vreal}, vcc")
def wide_dma(n, rsrc, slow=0):
    for i in range(n):
        A(f"s_mov_b32 m0, s71\ns_add_u32 s74, s72, 512")
        dma(14, rsrc, 72)
        if 2*i < slow: A("s_waitcnt vmcnt(0)")
        A(f"s_add_u32 s75, s71, 4096\ns_mov_b32 m0, s75\ns_add_u32 s72, s72, {16*1152}")
        dma(14, rsrc, 74)
        if 2*i+1 < slow: A("s_waitcnt vmcnt(0)")
        A(f"s_add_u32 s71, s71, 16384")
def wide_frag_addrs(base8, shift):
    A(f"v_lshl_add_u32 v16, v4, 13, v15")
    if shift: A(f"v_add_u32 v16, {shift}, v16")
    A(f"""
    v_add_u32 v17, 0x10000, v16
    v_lshl_add_u32 v18, v4, 10, v{vTR}
    v_add_u32 v18, {base8}, v18
    """)
def wide_frag_reads(vdst, nk):
    n = 0
    for i in range(4):
        for kp in range(nk):
            a = 16 if kp < 2 else 17
            off = (kp & 1)*32768 + i*2048
            d = vdst + (i*nk + kp)*4
            A(f"ds_read_b64_tr_b16 {vr(d,2)}, v{a} offset:{off}")
            A(f"ds_read_b64_tr_b16 {vr(d+2,2)}, v{a} offset:{off+512}")
            n += 2
            if n % 12 == 0: A("s_waitcnt lgkmcnt(4)")
    A("s_waitcnt lgkmcnt(4)")
    for kp in range(nk):
        d = vdst + (4*nk + kp)*4
        A(f"ds_read_b64_tr_b16 {vr(d,2)}, v18 offset:{kp*4096}")
        A(f"ds_read_b64_tr_b16 {vr(d+2,2)}, v18 offset:{kp*4096+512}")
def wide_gemm(vW, nk, vBf, base, stride, lab):
    acc, acc5 = 240, 244
    nb = 8
    order = [(i, kp) for i in range(4) for kp in range(nk)]
    def rd(n):
        i, kp = order[n]
        A(f"ds_read_b128 {vr(vBf+4*(n % nb),4)}, v{232+i} offset:{base+kp*64}")
    for n in range(min(nb, len(order))): rd(n)
    for n, (i, kp) in enumerate(order):
        A(f"s_waitcnt lgkmcnt({min(nb-1, len(order)-1-n)})")
        mf16(acc, vW+(i*nk+kp)*4, vBf+4*(n % nb), n == 0)
        if i == 0: mf16(acc5, vW+(4*nk+kp)*4, vBf+4*(n % nb), kp == 0)
        if n + nb < len(order): rd(n + nb)
    A(f"""
    s_cmp_lg_u32 s70, 0
    s_cbranch_scc1 {lab}_a
    s_add_u32 s74, s72, {32*stride}
    v_cvt_pk_bf16_f32 v{acc5}, v{acc5}, v{acc5+1}
    v_cvt_pk_bf16_f32 v{acc5+1}, v{acc5+2}, v{acc5+3}
    s_mov_b64 exec, s[78:79]
    buffer_store_dwordx2 {vr(acc5,2)}, v20, {WS}, s74 offen sc1
    s_mov_b64 exec, -1
    {lab}_a:
    s_nop 5
    v_cvt_pk_bf16_f32 v{acc}, v{acc}, v{acc+1}
    v_cvt_pk_bf16_f32 v{acc+1}, v{acc+2}, v{acc+3}
    buffer_store_dwordx2 {vr(acc,2)}, v20, {WS}, s72 offen sc1
    """)
def tail_prologue(lab, slot_code):
    common_setup2()
    A(f"s_mul_i32 s{sSL}, s{sX}, 7\n{slot_code}\ns_waitcnt lgkmcnt(0)")
    get_tag()
    A(f"s_cmp_lg_u32 s{sW}, 7\ns_cbranch_scc1 {lab}")
    ones(24)
    clear_tail_inbox(24)
    A("s_waitcnt vmcnt(0)")
    proof(sSL)
    A(f"{lab}:")

XL, CT, CTS = 0, 8192, 320
TS = 128*128
vUV, vWO = 32, 96
def t_setup():
    A(f"""
    v_lshlrev_b32 v21, 11, v3
    v_xor_b32 v22, v3, v4
    v_lshlrev_b32 v22, 4, v22
    v_lshl_add_u32 v22, v2, 11, v22
    v_and_b32 v12, 1, v2
    v_lshl_or_b32 v12, v12, 2, v4
    v_lshrrev_b32 v14, 1, v3
    v_xor_b32 v12, v12, v14
    v_lshlrev_b32 v12, 4, v12
    v_lshl_add_u32 v12, v3, 7, v12
    v_lshlrev_b32 v14, 3, v3
    s_lshl_b32 s66, s{sH}, 14
    s_add_u32 s66, s66, {WS_H3B}
    s_lshl_b32 s73, s{sW}, 7
    s_add_u32 s73, s73, s66
    s_lshl_b32 s72, s{sSL}, 7
    s_add_u32 s72, s72, {WS_H5}
    v_lshrrev_b32 v23, 1, v3
    v_mul_u32_u24 v23, {CTS}, v23
    v_lshl_add_u32 v23, v4, 3, v23
    s_lshl_b32 s74, s{sW}, 5
    v_add_u32 v23, s74, v23
    v_mul_u32_u24 v10, {CTS}, v6
    v_lshl_add_u32 v10, v4, 4, v10
    """)
    publish_setup(TS)
    masked_addrs(10, CT)
def t_early(lab):
    A(f"""
    v_min_u32 v238, 35, v{vL}
    v_lshlrev_b32 v238, 7, v238
    s_mov_b32 s76, {WS_PF}
    v_mov_b32 v28, 0
    v_mov_b32 v29, 0
    s_cmp_lg_u32 s{sW}, 0
    s_cbranch_scc1 {lab}e1
    buffer_load_dword v239, v238, {WS}, s76 offen sc1
    {lab}e1:
    buffer_load_dwordx4 v[24:27], v22, {WS}, s73 offen sc1
    s_cmp_lg_u32 s{sW}, 7
    s_cbranch_scc1 {lab}e2
    s_mov_b64 exec, 0xff
    buffer_load_dwordx2 v[28:29], v21, {WS}, s66 offen offset:1024 sc1
    s_mov_b64 exec, -1
    {lab}e2:
    """)
def t_tail(nk, lab):
    A(f"""
    s_mov_b32 s77, 0
    s_cmp_lg_u32 s{sW}, 0
    s_cbranch_scc1 {lab}pd
    {lab}pp:
    v_cmp_ne_u32 vcc, s{sT}, v239
    s_add_u32 s77, s77, 1
    s_cbranch_vccz {lab}pd
    s_cmp_ge_u32 s77, {POLL_MAX}
    s_cbranch_scc1 {lab}pd
    buffer_load_dword v239, v238, {WS}, s76 offen sc1
    s_waitcnt vmcnt(0)
    s_branch {lab}pp
    {lab}pd:
    """)
    ST(5); ST(7, 3)
    A(f"""
    s_mov_b32 s77, 0
    s_branch {lab}chk
    {lab}poll:
    buffer_load_dwordx4 v[24:27], v22, {WS}, s73 offen sc1
    s_cmp_lg_u32 s{sW}, 7
    s_cbranch_scc1 {lab}ns
    s_mov_b64 exec, 0xff
    buffer_load_dwordx2 v[28:29], v21, {WS}, s66 offen offset:1024 sc1
    s_mov_b64 exec, -1
    {lab}ns:
    s_add_u32 s77, s77, 1
    s_waitcnt vmcnt(0)
    {lab}chk:
    v_max3_u32 v30, v24, v25, v26
    v_max3_u32 v30, v30, v27, v28
    v_max_u32 v30, v30, v29
    v_cmp_eq_u32 vcc, -1, v30
    s_cmp_ge_u32 s77, {POLL_MAX}
    s_cbranch_scc1 {lab}done
    s_cbranch_vccnz {lab}poll
    {lab}done:
    ds_write_b128 v7, v[24:27] offset:{XL}
    s_cmp_lg_u32 s{sW}, 7
    s_cbranch_scc1 {lab}nw
    s_mov_b64 exec, 0xff
    ds_write_b64 v14, v[28:29] offset:{CT+2048}
    s_mov_b64 exec, -1
    {lab}nw:
    s_waitcnt lgkmcnt(0)
    """)
    ST(6)
    if nk == 4 and OPT['wb'] == 2: A(f"s_cmp_lg_u32 s{sW}, 6\ns_cbranch_scc1 {lab}nwb\nbuffer_wbl2 sc1\n{lab}nwb:")
    A("s_barrier")
    if nk == 2: A(f"s_cmp_lg_u32 s70, 0\ns_cbranch_scc1 {lab}nouv")
    vX = 176
    A(f"ds_read_b64 v[28:29], v14 offset:{CT+2048}")
    for i in range(8): A(f"ds_read_b128 {vr(vX+4*i,4)}, v12 offset:{XL+i*1024}")
    a0, a1 = 24, 208
    for i in range(8):
        A(f"s_waitcnt lgkmcnt({7-i})")
        mf16(a0, vUV+8*i, vX+4*i, i == 0)
        mf16(a1, vUV+8*i+4, vX+4*i, i == 0)
    A(f"""
    v_max_f32_dpp v30, v28, v28 {QP1}
    v_sub_f32 v30, v28, v30
    v_exp_f32 v30, v30
    v_mul_f32 v31, v30, v29
    v_add_f32_dpp v31, v31, v31 {QP1}
    v_rcp_f32 v31, v31
    v_mul_f32 v30, v30, v31
    """)
    for j in range(4): A(f"v_add_f32_dpp v{a0+j}, v{a1+j}, v{a0+j} row_ror:8 {DPPF}")
    for j in range(4): A(f"v_mul_f32 v{a0+j}, v{a0+j}, v30")
    for j in range(4): A(f"v_add_f32_dpp v{a0+j}, v{a0+j}, v{a0+j} {QP1}")
    A(f"""
    v_cvt_pk_bf16_f32 v28, v{a0}, v{a0+1}
    v_cvt_pk_bf16_f32 v29, v{a0+2}, v{a0+3}
    s_mov_b32 exec_lo, 0x00550055
    s_mov_b32 exec_hi, 0x00550055
    ds_write_b64 v23, v[28:29] offset:{CT}
    s_mov_b64 exec, -1
    s_waitcnt lgkmcnt(0)
    {lab}nouv:
    s_barrier
    """)
    wide_gemm(vWO, nk, vX, CT, TS, lab+"g")
    ST(7)
    if nk == 4 and OPT['wb'] == 3: A(f"s_cmp_lg_u32 s{sW}, 6\ns_cbranch_scc1 L_end\nbuffer_wbl2 sc1")
    if nk == 2: fin_role()
    else: finish()

RED = BIG
def fin_setup():
    srd(52, P_X, 4608)
    srd(56, P_OUT, 4608)
    A(f"""
    v_and_b32 v212, 1, v4
    v_lshl_add_u32 v212, v3, 1, v212
    v_and_b32 v213, 3, v212
    v_mul_u32_u24 v213, 1152, v213
    v_lshrrev_b32 v212, 2, v212
    v_lshl_add_u32 v213, v212, 3, v213
    s_min_u32 s75, s{sF}, 35
    s_lshl_b32 s75, s75, 5
    v_add_u32 v213, s75, v213
    buffer_load_dwordx2 v[214:215], v213, {RA}, 0 offen
    v_and_b32 v212, 1, v3
    v_lshlrev_b32 v212, 4, v212
    v_mov_b32 v216, 0x3f80
    v_lshlrev_b32 v216, v212, v216
    v_bfe_u32 v212, v{vL}, 1, 3
    """)
    for d in range(8): A(f"v_cmp_eq_u32 vcc, {d}, v212\nv_cndmask_b32 v{220+d}, 0, v216, vcc")
def fin_role():
    A(f"""
    s_cmp_ge_u32 s{sF}, 36
    s_cbranch_scc1 L_end
    s_cmp_eq_u32 s70, 0
    s_cbranch_scc1 L_fin_b
    s_lshl_b32 s72, s{sF}, 14
    s_lshl_b32 s73, s{sW}, 12
    s_add_u32 s72, s72, s73
    s_add_u32 s72, s72, {WS_H5-16384}
    s_mov_b32 s76, 15
    s_mov_b32 s77, 0
    L_finpoll:
    """)
    for i in range(4):
        A(f"s_bitcmp1_b32 s76, {i}\ns_cbranch_scc0 L_fi{i}\nbuffer_load_dwordx4 {vr(32+4*i,4)}, v9, {WS}, s72 offen offset:{1024*i} sc1\nL_fi{i}:")
    A("s_add_u32 s77, s77, 1\ns_waitcnt vmcnt(0)")
    for i in range(4): A(f"v_max3_u32 v{48+i}, v{32+4*i}, v{33+4*i}, v{34+4*i}")
    for i in range(4): A(f"v_max_u32 v{48+i}, v{48+i}, v{35+4*i}")
    for i in range(4): A(f"v_cmp_eq_u32 vcc, -1, v{48+i}\ns_cbranch_vccnz L_fc{i}\ns_bitset0_b32 s76, {i}\nL_fc{i}:")
    A(f"""
    s_cmp_ge_u32 s77, {POLL_MAX}
    s_cbranch_scc1 L_findone
    s_cmp_lg_u32 s76, 0
    s_cbranch_scc1 L_finpoll
    L_findone:
    s_cmp_ge_u32 s{sW}, 6
    s_cbranch_scc1 L_fin_g
    """)
    for i in range(3): mf16(52, 220, 32+4*i, i == 0)
    A(f"s_cmp_eq_u32 s{sW}, 5\ns_cbranch_scc1 L_fin_g3")
    mf16(52, 220, 44, False)
    A("s_branch L_fin_w\nL_fin_g:")
    for i in range(3): mf16(52, 224, 32+4*i, i == 0)
    A("L_fin_g3:")
    mf16(52, 224, 44, False)
    A(f"L_fin_w:\ns_nop 7\nds_write_b128 v7, v[52:55] offset:{RED-4096}\ns_waitcnt lgkmcnt(0)")
    ST(9)
    A(f"L_fin_b:\ns_barrier\ns_cmp_lg_u32 s{sW}, 0\ns_cbranch_scc1 L_end")
    for i in range(4): A(f"ds_read_b128 {vr(64+4*i,4)}, v9 offset:{RED+i*1024}")
    A(f"s_mov_b32 s76, {fbits(-LOG2E)}")
    A("v_lshlrev_b32 v32, 16, v214\nv_and_b32 v33, 0xffff0000, v214\nv_lshlrev_b32 v34, 16, v215\nv_and_b32 v35, 0xffff0000, v215")
    A("s_waitcnt lgkmcnt(2)")
    for j in range(4): A(f"v_add_f32 v{64+j}, v{64+j}, v{68+j}")
    A("s_waitcnt lgkmcnt(0)")
    for j in range(4): A(f"v_add_f32 v{72+j}, v{72+j}, v{76+j}")
    for j in range(4): A(f"v_add_f32 v{64+j}, v{64+j}, v{72+j}")
    for j in range(4): A(f"v_add_f32_dpp v{64+j}, v{64+j}, v{64+j} row_ror:8 {DPPF}")
    for j in range(4): rb16(64+j, 64+j)
    for j in range(4): A(f"v_mul_f32 v{76+j}, s76, v{64+j}")
    for j in range(4): A(f"v_exp_f32 v{76+j}, v{76+j}")
    for j in range(4): A(f"v_add_f32 v{76+j}, 1.0, v{76+j}")
    for j in range(4): A(f"v_rcp_f32 v{76+j}, v{76+j}")
    for j in range(4): A(f"v_mul_f32 v{76+j}, v{64+j}, v{76+j}")
    A("v_cvt_pk_bf16_f32 v76, v76, v77\nv_cvt_pk_bf16_f32 v77, v78, v79")
    A("v_permlane32_swap_b32 v76, v68\nv_permlane32_swap_b32 v77, v69")
    A("v_lshlrev_b32 v72, 16, v68\nv_and_b32 v73, 0xffff0000, v68\nv_lshlrev_b32 v74, 16, v69\nv_and_b32 v75, 0xffff0000, v69")
    for j in range(4): A(f"v_mul_f32 v{64+j}, v{64+j}, v{72+j}")
    A("v_cvt_pk_bf16_f32 v68, v64, v65\nv_cvt_pk_bf16_f32 v69, v66, v67")
    A("v_lshlrev_b32 v64, 16, v68\nv_and_b32 v65, 0xffff0000, v68\nv_lshlrev_b32 v66, 16, v69\nv_and_b32 v67, 0xffff0000, v69")
    for j in range(4): A(f"v_add_f32 v{64+j}, v{64+j}, v{32+j}")
    A(f"""
    v_cvt_pk_bf16_f32 v64, v64, v65
    v_cvt_pk_bf16_f32 v65, v66, v67
    s_mov_b64 exec, 0x00ff00ff
    buffer_store_dwordx2 v[64:65], v213, {RB}, 0 offen
    s_cmp_lg_u32 s{sF}, 0
    s_cbranch_scc1 L_fin_noep
    s_mov_b64 exec, 1
    v_mov_b32 v66, s{sE}
    buffer_store_dword v66, v8, {WS}, 0 offen sc1
    L_fin_noep:
    s_mov_b64 exec, -1
    """)
    finish()

def hb_code():
    if not OPT['hb']: return ""
    return f"""s_lshr_b32 s71, s66, 1
    s_add_u32 s71, s71, 48
    s_mul_i32 s71, s71, {8*9216}
    s_add_u32 s74, s73, 6
    s_lshl_b32 s74, s74, 7
    s_add_u32 s71, s71, s74
    buffer_load_dwordx4 v[248:251], v14, {RA}, s71 offen"""
A("L_TH:")
SLOT = f"s_lshl_b32 s74, s{sA_}, 1\ns_add_u32 s{sSL}, s{sSL}, s74\ns_add_u32 s{sSL}, s{sSL}, s{sQD}"
A(f"""
s_lshl_b32 s66, s{sA_}, 1
s_add_u32 s66, s66, s{sQD}
s_mov_b32 s{sF}, 99
s_cmp_eq_u32 s66, 3
s_cbranch_scc1 L_f_go
s_cmp_gt_u32 s66, 3
s_subb_u32 s66, s66, 0
s_lshl_b32 s66, s66, 3
s_add_u32 s{sF}, s66, s{sX}
s_add_u32 s66, s66, s{sW}
""")
def h5_clear(lab):
    A(f"s_cmp_ge_u32 s{sF}, 36\ns_cbranch_scc1 {lab}")
    ones(24)
    A(f"s_lshl_b32 s74, s{sF}, 14\ns_lshl_b32 s75, s{sW}, 11\ns_add_u32 s74, s74, s75\ns_add_u32 s74, s74, {WS_H5}")
    for i in range(2): A(f"buffer_store_dwordx4 v[24:27], v9, {WS}, s74 offen offset:{i*1024} sc1")
    A(f"s_waitcnt vmcnt(0)\ns_barrier\ns_cmp_lg_u32 s{sW}, 0\ns_cbranch_scc1 {lab}")
    proof(sF)
    A(f"{lab}:")
if not OPT['fclr']: h5_clear("L_noclr2")
A("L_noclr:")
if OPT['help']:
    A(f"""
    s_cmp_eq_u32 s67, 0
    s_cselect_b32 s52, s{P_WG}, s{P_WU}
    s_cselect_b32 s53, s{P_WG+1}, s{P_WU+1}
    s_mov_b32 s54, {576*9216}
    s_lshr_b32 s71, s66, 1
    s_add_u32 s71, s71, 32
    s_mul_i32 s71, s71, {8*9216}
    s_sub_u32 s72, 3, s{sX}
    s_and_b32 s72, s72, 7
    s_mul_i32 s73, s{sX}, 9
    s_lshl_b32 s73, s73, 7
    s_add_u32 s71, s71, s73
    s_lshl_b32 s74, s72, 7
    s_add_u32 s73, s71, s74
    v_mul_u32_u24 v14, 9216, v2
    v_lshl_add_u32 v14, v3, 4, v14
    s_add_u32 s74, s73, {20*8*9216}
    s_add_u32 s71, s71, {20*8*9216}
    """)
    if OPT['help'] & 1:
        A(f"""
        buffer_load_dwordx4 v[248:251], v14, {RA}, s73 offen{HW}
        buffer_load_dwordx4 v[248:251], v14, {RA}, s74 offen{HW}
        s_cmp_lg_u32 s72, 0
        s_cbranch_scc1 L_noc3b
        buffer_load_dwordx4 v[248:251], v14, {RA}, s73 offen offset:1024{HW}
        buffer_load_dwordx4 v[248:251], v14, {RA}, s74 offen offset:1024{HW}
        L_noc3b:
        """)
    if OPT['help'] & 2: A(f"buffer_load_dwordx4 v[248:251], v14, {RA}, s71 offen offset:768{HW}\nbuffer_load_dwordx4 v[248:251], v14, {RA}, s71 offen offset:896{HW}")
    if OPT['help'] & 4:
        A(f"""
        s_lshl_b32 s66, s66, 10
        s_mov_b32 s52, s{P_WO}
        s_mov_b32 s53, s{P_WO+1}
        s_lshl_b32 s73, s{sX}, 3
        s_add_u32 s73, s73, 7
        s_mul_i32 s73, s73, {64*1152}
        s_add_u32 s54, s73, {64*1152}
        s_add_u32 s73, s73, s66
        s_add_u32 s74, s73, {40*1024}
        buffer_load_dwordx4 v[248:251], v9, {RA}, s73 offen{HW}
        buffer_load_dwordx4 v[248:251], v9, {RA}, s74 offen{HW}
        """)
    if OPT['help'] & 8:
        A(f"s_sub_u32 s73, s73, {40*1024}\nbuffer_load_dwordx4 v[248:251], v9, {RA}, s73 offen")
A("L_f_go:")
A(f"s_mul_i32 s{sSL}, s{sX}, 7\n{SLOT}")
ST(1, 3)
srd(52, P_WUV, 512*8192)
srd(56, P_WO, 4096*1152)
A(f"""
s_lshl_b32 s71, s{sW}, 10
s_add_u32 s71, s71, {BIG}
s_lshl_b32 s72, s68, 2
s_add_u32 s72, s72, s67
s_lshl_b32 s72, s72, 16
s_lshl_b32 s73, s{sH}, 1
s_add_u32 s73, s73, s{sQD}
s_lshl_b32 s74, s73, 7
s_add_u32 s72, s72, s74
""")
for i in range(8):
    cb = 2*(i&1) + 16*(i>>1)
    A(f"s_mov_b32 m0, s71\ns_add_u32 s74, s72, {cb*65536}")
    dma(12, RA, 74)
    A(f"s_add_u32 s71, s71, 8192")
    if i < OPT['tslow']: A("s_waitcnt vmcnt(0)")
wide_voffset(14)
A(f"""
s_mul_i32 s73, s73, {64*1152}
s_lshl_b32 s71, s67, 3
s_add_u32 s71, s71, s68
s_lshl_b32 s71, s71, 10
s_add_u32 s71, s71, {BIG+65536}
s_mul_i32 s72, s67, {8*1152}
s_lshl_b32 s74, s68, 7
s_add_u32 s72, s72, s74
s_add_u32 s72, s72, s73
""")
wide_dma(4, RB)
A(f"""
s_mul_i32 s72, s{sW}, {8*1152}
s_add_u32 s72, s72, s73
s_add_u32 s72, s72, 1024
s_lshl_b32 s71, s{sW}, 10
s_add_u32 s71, s71, {BIG+131072}
s_mov_b32 m0, s71
""")
dma(14, RB, 72)
wide_frag_addrs(BIG+131072, 65536)
A(f"v_lshl_add_u32 v19, v4, 10, v{vTR}\nv_add_u32 v19, {BIG}, v19")
t_setup()
ST(5, 3)
A("s_waitcnt vmcnt(9)\ns_barrier")
for kp in range(16):
    A(f"ds_read_b64_tr_b16 {vr(vUV+4*kp,2)}, v19 offset:{kp*4096}")
    A(f"ds_read_b64_tr_b16 {vr(vUV+4*kp+2,2)}, v19 offset:{kp*4096+512}")
    if kp % 6 == 5: A("s_waitcnt lgkmcnt(4)")
fin_setup()
t_early("L_u")
A("s_waitcnt vmcnt(0) lgkmcnt(2)")
ST(6, 3)
A("s_barrier")
wide_frag_reads(vWO, 2)
t_tail(2, "L_u")

A("L_T:")
A(f"s_mul_i32 s{sSL}, s{sX}, 7\ns_add_u32 s{sSL}, s{sSL}, 6")
ST(1, 3)
srd(52, P_WUV, 512*8192)
srd(56, P_WO, 4096*1152)
A(f"""
s_lshl_b32 s71, s70, 1
s_add_u32 s71, s71, s67
s_lshl_b32 s71, s71, 1
s_add_u32 s71, s71, s69
s_lshl_b32 s71, s71, 10
s_add_u32 s71, s71, {BIG}
s_lshl_b32 s72, s70, 2
s_add_u32 s72, s72, s67
s_lshl_b32 s72, s72, 16
s_lshl_b32 s73, s{sH}, 8
s_lshl_b32 s74, s69, 7
s_add_u32 s73, s73, s74
s_add_u32 s72, s72, s73
""")
for i in range(16):
    cb = 2*((i>>1)&1) + 8*(i&1) + 16*(i>>2)
    A(f"s_mov_b32 m0, s71\ns_add_u32 s74, s72, {cb*65536}")
    dma(12, RA, 74)
    A(f"s_add_u32 s71, s71, 8192")
    if i < OPT['Tslow']: A("s_waitcnt vmcnt(0)")
wide_voffset(14)
A(f"""
s_mul_i32 s66, s{sH}, {128*1152}
s_lshl_b32 s71, s68, 2
s_add_u32 s71, s71, s67
s_mul_i32 s72, s71, {8*1152}
s_add_u32 s72, s72, s66
s_add_u32 s72, s72, 1024
s_lshl_b32 s71, s71, 10
s_add_u32 s71, s71, {BIG+131072}
s_mov_b32 m0, s71
s_add_u32 s71, s71, 2048
""")
dma(14, RB, 72)
A(f"s_add_u32 s72, s72, {16*1152}\ns_mov_b32 m0, s71")
dma(14, RB, 72)
vST = 176
A(f"""
s_mul_i32 s72, s67, {8*1152}
s_lshl_b32 s74, s68, 7
s_add_u32 s72, s72, s74
s_add_u32 s72, s72, s66
s_barrier
""")
for i in range(4):
    A(f"buffer_load_dwordx4 {vr(vST+8*i,4)}, v14, {RB}, s72 offen nt")
    A(f"buffer_load_dwordx4 {vr(vST+8*i+4,4)}, v14, {RB}, s72 offen offset:512 nt")
    A(f"s_add_u32 s72, s72, {16*1152}")
A(f"v_add_u32 v17, 0x10000, v16")
ST(2, 3)
A("s_waitcnt vmcnt(10)")
ST(3, 3)
A("s_barrier")
for kp in range(16):
    a = 16 if kp < 8 else 17
    A(f"ds_read_b64_tr_b16 {vr(vUV+4*kp,2)}, v{a} offset:{(kp&7)*8192}")
    A(f"ds_read_b64_tr_b16 {vr(vUV+4*kp+2,2)}, v{a} offset:{(kp&7)*8192+512}")
    if kp % 6 == 5: A("s_waitcnt lgkmcnt(4)")
A(f"""
s_lshl_b32 s71, s67, 3
s_add_u32 s71, s71, s68
s_lshl_b32 s71, s71, 10
s_add_u32 s71, s71, {BIG}
v_add_u32 v19, s71, v9
s_add_u32 s71, s71, 65536
s_waitcnt lgkmcnt(0)
s_barrier
""")
ST(4, 3)
wide_dma(4, RB)
for i in range(8):
    A(f"s_waitcnt vmcnt({15-i})")
    A(f"ds_write_b128 v19, {vr(vST+4*i,4)} offset:{(i>>1)*16384+(i&1)*4096}")
wide_frag_addrs(BIG+131072, 0)
t_setup()
t_early("L_t")
ST(5, 3)
A("s_waitcnt vmcnt(0) lgkmcnt(0)")
ST(6, 3)
A("s_barrier")
wide_frag_reads(vWO, 4)
t_tail(4, "L_t")

A("L_F:")
if OPT['fclr']:
    A(f"s_mul_i32 s74, s{sX}, 9\ns_sub_u32 s{sF}, s{sU}, s74\ns_lshl_b32 s{sF}, s{sF}, 3\ns_add_u32 s{sF}, s{sF}, s{sX}")
    h5_clear("L_f_clr")
ST(1, 3)
DNB = BIG
for i in range(9):
    gu_dma(i)
    if i < OPT['fslow']: A("s_waitcnt vmcnt(0)")
xn_frags()
A("s_barrier")
for i in range(9, 18): gu_dma(i)
srd(56, P_WD, 4608*1152)
wide_voffset(14)
A(f"""
v_lshrrev_b32 v19, 1, v6
v_lshrrev_b32 v21, 1, v5
v_and_b32 v22, 1, v4
v_lshl_or_b32 v21, v22, 1, v21
v_lshl_or_b32 v21, v19, 2, v21
v_xor_b32 v21, s{sW}, v21
v_lshlrev_b32 v21, 4, v21
v_lshl_add_u32 v21, v5, 7, v21
v_and_b32 v22, 1, v6
v_lshl_add_u32 v21, v22, 3, v21
v_lshl_add_u32 v21, v19, 10, v21
v_lshl_add_u32 v21, v4, 11, v21
v_add_u32 v21, {BIG}, v21
v_add_u32 v22, {8*8192}, v21
v_add_u32 v23, {16*8192}, v21
s_mul_i32 s73, s{sU}, {64*1152}
s_lshl_b32 s71, s67, 3
s_add_u32 s71, s71, s68
s_lshl_b32 s71, s71, 10
s_add_u32 s71, s71, {DNB}
s_mul_i32 s72, s67, {8*1152}
s_lshl_b32 s74, s68, 7
s_add_u32 s72, s72, s74
s_add_u32 s72, s72, s73
v_min_u32 v140, 35, v{vL}
v_lshlrev_b32 v140, 7, v140
s_mov_b32 s66, {WS_PF}
s_waitcnt vmcnt(9) lgkmcnt(0)
s_barrier
""")
def k_steps(k0, k1):
    D = 6
    def rd(k):
        d = vG + 4*(k % 8)
        A(f"ds_read_b64_tr_b16 {vr(d,2)}, v{21+(k>>3)} offset:{(k&7)*8192}")
        A(f"ds_read_b64_tr_b16 {vr(d+2,2)}, v{21+(k>>3)} offset:{(k&7)*8192+512}")
    for k in range(k0, min(k1, k0+D)): rd(k)
    for k in range(k0, k1):
        A(f"s_waitcnt lgkmcnt({2*min(D-1, k1-1-k)})")
        mf16(vD, vG+4*(k % 8), vXN+4*k, k == 0)
        if k + D < k1: rd(k + D)
k_steps(0, 9)
A(f"""
s_barrier
s_cmp_lg_u32 s{sW}, 7
s_cbranch_scc1 L_f_np
buffer_load_dword v141, v140, {WS}, s66 offen sc1
L_f_np:
""")
wide_dma(4, RB)
A(f"""
s_mul_i32 s72, s{sW}, {8*1152}
s_add_u32 s72, s72, s73
s_add_u32 s72, s72, 1024
s_lshl_b32 s71, s{sW}, 10
s_add_u32 s71, s71, {DNB+65536}
s_mov_b32 m0, s71
""")
dma(14, RB, 72)
ST(2, 3)
A("s_waitcnt vmcnt(9)")
ST(3, 3)
A("s_barrier")
k_steps(9, 18)
wide_frag_addrs(DNB+65536, DNB-BIG)
A(f"s_lshl_b32 s72, s{sU}, 7\ns_add_u32 s72, s72, {WS_H5+56*128}")
publish_setup(TS)
A(f"""
v_mul_u32_u24 v22, {HBS}, v6
v_lshl_add_u32 v21, v4, 3, v22
s_lshl_b32 s74, s{sW}, 4
v_add_u32 v21, s74, v21
v_lshl_add_u32 v22, v4, 4, v22
""")
masked_addrs(22, HB)
vWD = 144
for j in range(4): A(f"v_mov_b32 v{24+j}, v{vD+j}")
for j in range(4): A(f"v_permlane32_swap_b32 v{vD+j}, v{24+j}")
C1 = -2.0*math.sqrt(2.0/math.pi)*LOG2E
A(f"s_mov_b32 s74, {fbits(0.044715)}\ns_mov_b32 s75, {fbits(C1)}")
for j in range(4): rb16(vD+j, vD+j); rb16(24+j, 24+j)
for j in range(4): A(f"v_mul_f32 v{104+j}, v{vD+j}, v{vD+j}")
for j in range(4): A(f"v_fma_f32 v{104+j}, v{104+j}, s74, 1.0")
for j in range(4): A(f"v_mul_f32 v{104+j}, v{104+j}, v{vD+j}")
for j in range(4): A(f"v_mul_f32 v{104+j}, s75, v{104+j}")
for j in range(4): A(f"v_exp_f32 v{104+j}, v{104+j}")
for j in range(4): A(f"v_add_f32 v{104+j}, 1.0, v{104+j}")
for j in range(4): A(f"v_rcp_f32 v{104+j}, v{104+j}")
for j in range(4): A(f"v_mul_f32 v{vD+j}, v{vD+j}, v{104+j}")
for j in range(4): rb16(vD+j, vD+j)
for j in range(4): A(f"v_mul_f32 v{vD+j}, v{vD+j}, v{24+j}")
A(f"""
v_cvt_pk_bf16_f32 v24, v{vD}, v{vD+1}
v_cvt_pk_bf16_f32 v25, v{vD+2}, v{vD+3}
s_mov_b64 exec, 0x000f000f
ds_write_b64 v21, v[24:25] offset:{HB}
s_mov_b64 exec, -1
s_cmp_lg_u32 s{sW}, 7
s_cbranch_scc1 L_f_pd
s_mov_b32 s77, 0
L_f_pp:
v_cmp_ne_u32 vcc, s{sT}, v141
s_add_u32 s77, s77, 1
s_cbranch_vccz L_f_pd
s_cmp_ge_u32 s77, {POLL_MAX}
s_cbranch_scc1 L_f_pd
buffer_load_dword v141, v140, {WS}, s66 offen sc1
s_waitcnt vmcnt(0)
s_branch L_f_pp
L_f_pd:
s_waitcnt vmcnt(0) lgkmcnt(0)
""")
ST(1); ST(7, 3)
A("s_barrier")
wide_frag_reads(vWD, 2)
A("s_waitcnt lgkmcnt(6)")
wide_gemm(vWD, 2, 104, HB, TS, "L_fg")
ST(2)
finish()

QA = 131072
MXO, LSO, LCO = 2048, 8192+2048, 16384+2048
sLOC = 64
A("L_att:")
lane_consts()
if OPT['exp'] == 1: A("s_waitcnt lgkmcnt(0)\ns_branch L_end")
A(f"s_cmp_ge_u32 s{sW}, 4\ns_cbranch_scc1 L_att_hi")
A(f"""
s_lshl_b32 s68, s{sK}, 18
s_lshl_b32 s69, s{sX}, 10
s_add_u32 s68, s68, s69
s_lshl_b32 s69, s{sW}, 16
s_add_u32 s68, s68, s69
s_waitcnt lgkmcnt(0)
s_load_dword s{sE}, s[48:49], 0
""")
if OPT['adel']: A("s_waitcnt lgkmcnt(0)")
for i in range(8):
    A(f"buffer_load_dwordx4 v[248:251], v9, {RC}, s68 offen")
    if i < 7: A("s_add_u32 s68, s68, 8192")
A(f"""
v_and_b32 v11, 2, v2
v_lshlrev_b32 v11, 1, v11
v_lshrrev_b32 v10, 2, v2
v_or_b32 v11, v11, v10
v_xor_b32 v11, v11, v3
v_lshlrev_b32 v11, 4, v11
v_lshl_add_u32 v10, v2, 10, v11
v_xor_b32 v11, 32, v10
s_lshl_b32 s70, s{sX}, 4
s_add_u32 s70, s70, s{sK}
s_lshl_b32 s66, s70, 17
s_lshl_b32 s67, s{sW}, 15
s_add_u32 s66, s66, s67
""")
srd(52, P_CKV, 4*4096*1024)
if OPT['ukw'] < 8: A(f"s_waitcnt vmcnt({OPT['ukw']})")
ST(2, 2)
LBO = list(range(8)) if not OPT['c3l'] else [0, 1, 4, 5, 6, 7, 2, 3]
nh = OPT['ckh']
if OPT['rowm']: seq = [(lb, rbi) for rbi in range(4) for lb in LBO[:8-nh]] + [(lb, rbi) for lb in LBO[8-nh:] for rbi in range(4)]
else: seq = [(lb, rbi) for lb in LBO for rbi in range(4)]
for n_, (lb, rbi) in enumerate(seq):
    if n_ in (4, 8, 16, 24): ST({4:3,8:4,16:5,24:6}[n_], 2)
    if n_ == 4*OPT['gbar']: A("s_barrier")
    A(f"s_add_u32 s68, s67, {(rbi*8+lb)*1024}\ns_mov_b32 m0, s68\ns_add_u32 s69, s66, {rbi*8192+lb*128}")
    dma(10 + (rbi & 1), RA, 69)
if OPT['gbar'] == 8: A("s_barrier")
ST(7, 2)
if OPT['stamps'] in (2, 3):
    A("s_waitcnt vmcnt(0)")
    ST(9, 2); ST(7, 3)
if OPT['exp'] == 2: A("s_branch L_end")
A(f"""
v_and_b32 v11, 2, v{vL}
v_lshlrev_b32 v11, 1, v11
v_or_b32 v11, v11, v5
v_lshrrev_b32 v12, 5, v{vL}
v_xor_b32 v11, v11, v12
v_lshlrev_b32 v11, 4, v11
v_lshl_add_u32 v11, v3, 7, v11
v_and_b32 v13, 3, v2
v_lshl_add_u32 v11, v13, 13, v11
v_add_u32 v16, s67, v11
v_add_u32 v20, {QA}, v11
""")
for t in range(1, 4): A(f"v_xor_b32 v{16+t}, {t<<5}, v16\nv_xor_b32 v{20+t}, {t<<5}, v20")
A(f"""
v_and_b32 v13, 31, v{vL}
v_lshlrev_b32 v13, 5, v13
v_add_u32 v13, {QA}, v13
s_lshl_b32 s68, s{sW}, 3
v_lshl_add_u32 v14, v12, 2, v13
v_add_u32 v14, s68, v14
s_lshl_b32 s68, s{sW}, 13
s_add_u32 s68, s68, {QA}
v_add_u32 v15, s68, v9
s_waitcnt lgkmcnt(0)
""")
get_tag()
A(f"""
s_lshl_b32 s72, s{sX}, 14
s_add_u32 s72, s72, {WS_FLG}
s_lshl_b32 s73, s{sK}, 10
s_add_u32 s73, s73, s72
s_lshl_b32 s68, s{sW}, 7
s_add_u32 s69, s72, s68
s_lshl_b32 s68, s{sK}, 5
s_add_u32 s72, s72, s68
s_lshl_b32 s74, s70, 15
s_lshl_b32 s68, s{sW}, 9
s_add_u32 s74, s74, s68
s_add_u32 s74, s74, {WS_H3A}
s_add_u32 s75, s74, 8192
s_add_u32 s78, s74, 16384
s_add_u32 s79, s74, 24576
s_lshl_b32 s70, s{sK}, 15
s_lshl_b32 s71, s{sX}, 11
s_add_u32 s70, s70, s71
s_add_u32 s70, s70, {WS_H3B}
s_lshl_b32 s71, s{sW}, 8
s_add_u32 s71, s71, s70
v_and_b32 v100, 15, v{vL}
v_and_b32 v101, 1, v4
v_lshlrev_b32 v112, 10, v100
v_lshl_add_u32 v102, v101, 4, v112
v_lshlrev_b32 v103, 11, v4
v_lshl_add_u32 v103, v100, 4, v103
v_and_b32 v104, 1, v3
v_lshlrev_b32 v104, 4, v104
v_mov_b32 v105, 0xffff
v_lshlrev_b32 v105, v104, v105
v_lshrrev_b32 v104, 1, v3
""")
for d in range(4): A(f"v_cmp_eq_u32 vcc, {d}, v104\nv_cndmask_b32 v{108+d}, 0, v105, vcc")
A(f"""
v_lshrrev_b32 v104, 2, v3
v_lshl_add_u32 v105, v104, 4, v4
v_lshlrev_b32 v105, 2, v105
v_lshlrev_b32 v106, 14, v104
v_lshl_add_u32 v106, v6, 5, v106
v_lshl_add_u32 v106, v4, 3, v106
v_and_b32 v104, 1, v2
v_lshl_add_u32 v106, v104, 7, v106
v_lshlrev_b32 v107, 14, v101
v_lshl_add_u32 v107, v100, 3, v107
v_mov_b32 v113, {QA+LCO}
""")
vS = 32; vAf = 128; vBf = 64; DEP = 8
for lb in LBO:
    last = max(i for i, (l_, r_) in enumerate(seq) if l_ == lb)
    A(f"s_waitcnt vmcnt({31-last}) lgkmcnt(8)")
    for t in range(4*lb, 4*lb+4): A(f"ds_read_b128 {vr(vAf+4*t,4)}, v{16+(t&3)} offset:{(t>>2)*1024}")
A("s_waitcnt lgkmcnt(0)\ns_setprio 2")
ST(1)
A("s_barrier")
ST(2)
def qk_read(t): A(f"ds_read_b128 {vr(vBf+4*(t % DEP),4)}, v{20+(t&3)} offset:{(t>>2)*1024}")
for t in range(DEP): qk_read(t)
for t in range(32):
    A(f"s_waitcnt lgkmcnt({min(DEP-1, 31-t)})")
    mf32(vS, vAf+4*t, vBf+4*(t % DEP), t == 0)
    if t + DEP < 32: qk_read(t + DEP)
    if t == 13: A("s_barrier")
ST(3)
A(f"v_max3_f32 v24, v{vS}, v{vS+1}, v{vS+2}\nv_max3_f32 v25, v{vS+3}, v{vS+4}, v{vS+5}\nv_max3_f32 v26, v{vS+6}, v{vS+7}, v{vS+8}")
A(f"v_max3_f32 v27, v{vS+9}, v{vS+10}, v{vS+11}\nv_max3_f32 v28, v{vS+12}, v{vS+13}, v{vS+14}")
A(f"v_max3_f32 v24, v24, v25, v26\nv_max3_f32 v27, v27, v28, v{vS+15}\nv_max_f32 v24, v24, v27")
A(f"ds_write_b32 v14, v24 offset:{MXO}\ns_waitcnt lgkmcnt(0)\ns_barrier")
A(f"""
ds_read_b128 v[24:27], v13 offset:{MXO}
ds_read_b128 v[28:31], v13 offset:{MXO+16}
s_waitcnt lgkmcnt(0)
v_max3_f32 v24, v24, v25, v26
v_max3_f32 v28, v28, v29, v30
v_max3_f32 v24, v24, v27, v31
v_max_f32 v24, v24, v28
""")
for hlf in range(2):
    for i in range(8): A(f"v_sub_f32 v{vS+8*hlf+i}, v{vS+8*hlf+i}, v24")
    for i in range(8): A(f"v_exp_f32 v{vS+8*hlf+i}, v{vS+8*hlf+i}")
    for i in range(4): A(f"v_cvt_pk_bf16_f32 v{48+4*hlf+i}, v{vS+8*hlf+2*i}, v{vS+8*hlf+2*i+1}")
    A(f"ds_write_b128 v15, {vr(48+4*hlf,4)} offset:{1024*hlf}")
    if hlf == 0:
        A("s_waitcnt lgkmcnt(0)")
        ST(4)
        A("s_barrier")
for step in (8, 4, 2, 1):
    for i in range(step): A(f"v_add_f32 v{vS+i}, v{vS+i}, v{vS+i+step}")
A(f"ds_write_b32 v14, v{vS} offset:{LSO}\ns_waitcnt lgkmcnt(0)\ns_setprio 0\ns_barrier")
vXr = 144
SO = [74, 75, 78, 79]
A(f"""
s_cmp_lg_u32 s{sW}, 0
s_cbranch_scc1 L_nost
ds_read_b128 v[28:31], v13 offset:{LSO}
ds_read_b128 v[32:35], v13 offset:{LSO+16}
ds_read_b32 v36, v113
v_mov_b32 v25, s{sT}
v_mov_b32 v27, s{sT}
s_waitcnt lgkmcnt(0)
v_add_f32 v28, v28, v29
v_add_f32 v30, v30, v31
v_add_f32 v32, v32, v33
v_add_f32 v34, v34, v35
v_readfirstlane_b32 s{sLOC}, v36
v_add_f32 v28, v28, v30
v_add_f32 v32, v32, v34
v_add_f32 v26, v28, v32
s_mov_b32 exec_hi, 0
s_cmp_lg_u32 s{sLOC}, 0
s_cbranch_scc1 L_stfar
buffer_store_dwordx4 v[24:27], v9, {WS}, s73 offen
s_branch L_stdone
L_stfar:
buffer_store_dwordx4 v[24:27], v9, {WS}, s73 offen sc1
L_stdone:
L_nost:
s_mov_b32 s77, 0
s_mov_b32 exec_hi, 0
L_rpoll:
buffer_load_dwordx4 v[32:35], v102, {WS}, s72 offen sc1
s_add_u32 s77, s77, 1
s_waitcnt vmcnt(0)
v_xor_b32 v33, s{sT}, v33
v_xor_b32 v35, s{sT}, v35
v_or_b32 v33, v33, v35
v_cmp_ne_u32 vcc, 0, v33
s_cmp_ge_u32 s77, {POLL_MAX}
s_cbranch_scc1 L_rdone
s_cbranch_vccnz L_rpoll
L_rdone:
s_mov_b64 exec, -1
""")
ST(5)
A("v_mov_b32 v36, v32")
for r in (8, 4, 2, 1): A(f"v_max_f32_dpp v36, v36, v36 row_ror:{r} {DPPF}")
A("v_sub_f32 v33, v32, v36\nv_exp_f32 v33, v33\nv_mul_f32 v37, v33, v34")
for i in range(4): A(f"ds_bpermute_b32 v{40+i}, v105, v33 offset:{16*i}")
for r in (8, 4, 2, 1): A(f"v_add_f32_dpp v37, v37, v37 row_ror:{r} {DPPF}")
A(f"""
v_cmp_gt_u32 s[66:67], 8, v100
s_waitcnt lgkmcnt(0)
""")
for i in range(4): A(f"v_cvt_pk_bf16_f32 v{44+i}, v{40+i}, v{40+i}")
for i in range(4): A(f"v_and_b32 v{80+i}, 0xffff0000, v{44+i}")
for i in range(4): A(f"v_sub_f32 v{80+i}, v{40+i}, v{80+i}")
for i in range(4): A(f"v_cvt_pk_bf16_f32 v{80+i}, v{80+i}, v{80+i}")
for i in range(4): A(f"v_cndmask_b32 v{44+i}, v{80+i}, v{44+i}, s[66:67]")
for i in range(4):
    for d in range(4): A(f"v_and_b32 v{64+4*i+d}, v{44+i}, v{108+d}")
A(f"""
s_mov_b32 s77, 0
s_mov_b64 exec, 0xffff
L_fpoll:
buffer_load_dword v32, v112, {WS}, s69 offen offset:512 sc1
s_add_u32 s77, s77, 1
s_waitcnt vmcnt(0)
v_cmp_ne_u32 vcc, s{sT}, v32
s_cmp_ge_u32 s77, {POLL_MAX}
s_cbranch_scc1 L_fdone
s_cbranch_vccnz L_fpoll
L_fdone:
s_mov_b64 exec, -1
""")
ST(6)
for i in range(4):
    for h in range(2): A(f"buffer_load_dwordx4 {vr(vXr+8*i+4*h,4)}, v103, {WS}, s{SO[i]} offen offset:{256*h} sc1{' nt' if OPT['lnt'] & 2 else ''}")
for i in range(4):
    A(f"s_waitcnt vmcnt({7-2*i})")
    mf16(40, vXr+8*i, 64+4*i, i == 0)
    A(f"s_waitcnt vmcnt({6-2*i})")
    mf16(44, vXr+8*i+4, 64+4*i, i == 0)
A(f"""
s_cmp_lg_u32 s{sW}, 1
s_cbranch_scc1 L_rnostat
s_mov_b32 exec_hi, 0
buffer_store_dwordx2 v[36:37], v107, {WS}, s70 offen offset:1024 sc1
s_mov_b64 exec, -1
L_rnostat:
s_nop 5
""")
for j in range(4): A(f"v_cndmask_b32 v{48+j}, v{40+j}, v{44+j}, s[66:67]")
for j in range(4): A(f"v_cndmask_b32 v{40+j}, v{44+j}, v{40+j}, s[66:67]")
for j in range(4): A(f"v_add_f32_dpp v{40+j}, v{48+j}, v{40+j} row_ror:8 {DPPF}")
A(f"""
v_cvt_pk_bf16_f32 v44, v40, v41
v_cvt_pk_bf16_f32 v45, v42, v43
buffer_store_dwordx2 v[44:45], v106, {WS}, s71 offen sc1
""")
ST(7)
if OPT['late'] == 1: A("s_barrier")
if OPT['wb'] in (4, 5, 6):
    if OPT['wb'] >= 5: A("s_waitcnt vmcnt(0)")
    for i in range(4):
        for h in range(2):
            A(f"buffer_store_dwordx4 {vr(vXr+8*i+4*h,4)}, v103, {WS}, s{SO[i]} offen offset:{256*h} sc1")
        if OPT['wb'] == 6: A("s_waitcnt vmcnt(0)")
if OPT['local'] and OPT['wb'] == 1:
    A(f"""
    s_cmp_lg_u32 s{sK}, 0
    s_cbranch_scc1 L_end
    s_waitcnt vmcnt(0)
    s_barrier
    s_cmp_lg_u32 s{sW}, 0
    s_cbranch_scc1 L_end
    buffer_wbl2 sc1
    """)
finish()

A("L_att_hi:")
if OPT['prio']: A("s_setprio 2")
if OPT['pf'] == 1:
    A(f"""
    s_getpc_b64 s[66:67]
    L_pc:
    s_sub_u32 s66, s66, L_pc-{NAME}_kernel
    s_subb_u32 s67, s67, 0
    v_subrev_u32 v10, 256, v0
    v_lshlrev_b32 v10, 7, v10
    v_cmp_gt_u32 vcc, L_exit-{NAME}_kernel, v10
    s_and_saveexec_b64 s[68:69], vcc
    s_cbranch_execz L_nopf
    global_load_dword v255, v10, s[66:67]
    L_nopf:
    s_mov_b64 exec, -1
    """)
A(f"""
s_sub_u32 s66, s{sW}, 4
s_lshl_b32 s67, s{sX}, 15
s_lshl_b32 s68, s{sK}, 11
s_add_u32 s68, s68, s67
s_add_u32 s69, s68, {WS_H1L}
s_waitcnt lgkmcnt(0)
s_load_dword s{sE}, s[48:49], 0
s_cmp_lg_u32 s66, 1
s_cbranch_scc1 L_h_b
buffer_load_dwordx4 v[248:251], v9, {WS}, s69 offen
buffer_load_dwordx4 v[248:251], v9, {WS}, s69 offen offset:1024
L_h_b:
""")
if OPT['wqh']:
    A(f"""
    s_cmp_lt_u32 s66, 2
    s_cbranch_scc1 L_h_c
    s_lshr_b32 s68, s{sK}, 2
    s_mul_i32 s68, s68, 144
    s_and_b32 s69, s{sK}, 3
    s_lshl_b32 s69, s69, 2
    s_add_u32 s68, s68, s69
    s_lshl_b32 s69, s66, 1
    s_add_u32 s68, s68, s69
    s_add_u32 s68, s68, 124
    s_lshl_b32 s68, s68, 13
    s_lshl_b32 s69, s{sX}, 10
    s_add_u32 s68, s68, s69
    s_add_u32 s69, s68, 8192
    buffer_load_dwordx4 v[248:251], v9, {RB}, s68 offen
    buffer_load_dwordx4 v[248:251], v9, {RB}, s69 offen
    L_h_c:
    """)
A(f"""
s_lshr_b32 s67, s{sX}, 1
s_lshl_b32 s67, s67, 15
s_lshl_b32 s68, s66, 13
s_add_u32 s67, s67, s68
s_add_u32 s67, s67, {WS_H2}
s_and_b32 s69, s66, 1
s_lshl_b32 s69, s69, 1
v_xor_b32 v10, s69, v3
v_lshlrev_b32 v10, 4, v10
v_lshl_add_u32 v10, v2, 10, v10
s_add_u32 s68, s68, {QA}
v_add_u32 v16, s68, v10
v_xor_b32 v17, 64, v16
v_xor_b32 v18, 16, v16
v_xor_b32 v19, 80, v16
v_lshrrev_b32 v12, 5, v{vL}
v_and_b32 v13, 1, v4
v_lshrrev_b32 v14, 1, v6
v_lshl_or_b32 v13, v13, 1, v14
v_and_b32 v14, 2, v5
v_lshl_or_b32 v14, v14, 1, v12
v_xor_b32 v13, v13, v14
v_lshlrev_b32 v13, 4, v13
v_lshl_add_u32 v13, v5, 7, v13
v_lshl_add_u32 v13, v12, 9, v13
v_and_b32 v14, 1, v6
v_lshl_add_u32 v13, v14, 3, v13
s_lshl_b32 s68, s66, 11
v_add_u32 v20, s68, v13
v_xor_b32 v21, 32, v20
v_xor_b32 v22, 64, v20
v_xor_b32 v23, 96, v20
""")
for j in range(4): A(f"v_add_u32 v{24+j}, 0x10000, v{20+j}")
A(f"s_getreg_b32 s65, hwreg(HW_REG_XCC_ID, 0, 4)\ns_lshl_b32 s72, s{sX}, 11\ns_add_u32 s72, s72, {WS_XT}\ns_waitcnt lgkmcnt(0)")
get_tag()
A(f"""
s_cmp_lg_u32 s66, 0
s_cbranch_scc1 L_noxt
s_lshl_b32 s68, s{sK}, 7
s_add_u32 s68, s68, s72
v_mov_b32 v28, s65
v_mov_b32 v29, s{sT}
v_lshlrev_b32 v30, 3, v{vL}
s_mov_b64 exec, 0xffff
buffer_store_dwordx2 v[28:29], v30, {WS}, s68 offen sc1
s_mov_b64 exec, -1
L_noxt:
""")
A(f"""
s_add_u32 s72, s48, s72
s_addc_u32 s73, s49, 0
s_lshl_b32 s74, s{sX}, 13
s_lshl_b32 s75, s66, {8 if OPT['cpq'] else 11}
s_add_u32 s74, s74, s75
s_add_u32 s74, s74, {WS_PQ}
s_add_u32 s74, s48, s74
s_addc_u32 s75, s49, 0
s_mov_b32 s77, 0
s_sleep 32
""")
if not OPT['local']: A(f"s_mov_b32 s{sLOC}, 1")
if OPT['local']:
    A(f"s_cmp_lg_u32 s66, 0\ns_cbranch_scc1 L_nx\nL_nxp:\ns_mov_b32 s{sLOC}, 0\ns_mov_b32 s76, 0")
    for hlf in range(2):
        for i in range(8): A(f"s_load_dwordx2 s[{16+16*hlf+2*i if hlf == 0 or i < 4 else 52+2*(i-4)}:{17+16*hlf+2*i if hlf == 0 or i < 4 else 53+2*(i-4)}], s[72:73], {(8*hlf+i)*128} glc")
    A("s_waitcnt lgkmcnt(0)")
    for r in list(range(16, 40, 2)) + list(range(52, 60, 2)):
        A(f"s_xor_b32 s{r}, s{r}, s65\ns_or_b32 s{sLOC}, s{sLOC}, s{r}\ns_xor_b32 s{r+1}, s{r+1}, s{sT}\ns_or_b32 s76, s76, s{r+1}")
    A(f"s_or_b32 s{sLOC}, s{sLOC}, s76\ns_add_u32 s77, s77, 1\ns_cmp_ge_u32 s77, 8\ns_cbranch_scc1 L_nx\ns_cmp_lg_u32 s76, 0\ns_cbranch_scc1 L_nxp\nL_nx:")
A(f"""
L_xp:
s_sleep {OPT['psl']}
s_mov_b32 s76, 0
""")
if OPT['cpq']:
    A("s_load_dwordx8 s[16:23], s[74:75], 0 glc\ns_load_dwordx8 s[24:31], s[74:75], 128 glc\ns_waitcnt lgkmcnt(0)")
else:
    for i in range(16): A(f"s_load_dword s{16+i}, s[74:75], {i*128} glc")
    A("s_waitcnt lgkmcnt(0)")
for i in range(16): A(f"s_xor_b32 s{16+i}, s{16+i}, s{sT}\ns_or_b32 s76, s76, s{16+i}")
A(f"""
s_add_u32 s77, s77, 1
s_cmp_ge_u32 s77, {POLL_MAX}
s_cbranch_scc1 L_xd
s_cmp_lg_u32 s76, 0
s_cbranch_scc1 L_xp
L_xd:
""")
ST(6, 2)
if OPT['gbar'] <= 8: A("s_barrier")
if OPT['exp'] == 2: A("s_branch L_end")
ST(9)
vQ = 32
A(f"s_mov_b32 s76, 0xff\ns_mov_b32 s77, 0\ns_add_u32 s69, s67, 4096\nL_h2poll:")
for i in range(8):
    A(f"s_bitcmp1_b32 s76, {i}\ns_cbranch_scc0 L_h2i{i}")
    A(f"buffer_load_dwordx4 {vr(vQ+4*i,4)}, v9, {WS}, s{67 if i < 4 else 69} offen offset:{(i&3)*1024} sc1")
    A(f"L_h2i{i}:")
A(f"s_add_u32 s77, s77, 1\ns_cmp_eq_u32 s77, 1\ns_cbranch_scc1 L_h2first\ns_waitcnt vmcnt(0)\nL_h2first:")
for i in range(8):
    var = ((i >> 1) & 1) + 2*((i >> 2) & 1)
    q = vQ+4*i
    A(f"s_bitcmp1_b32 s76, {i}\ns_cbranch_scc0 L_h2c{i}")
    A(f"s_waitcnt vmcnt({7-i})")
    A(f"v_max3_u32 v28, v{q}, v{q+1}, v{q+2}\nv_max_u32 v28, v28, v{q+3}\nds_write_b128 v{16+var}, {vr(q,4)} offset:{i*128}\nv_cmp_eq_u32 vcc, -1, v28")
    A(f"s_cbranch_vccnz L_h2c{i}\ns_bitset0_b32 s76, {i}\nL_h2c{i}:")
A(f"""
s_waitcnt lgkmcnt(0)
s_cmp_ge_u32 s77, {POLL_MAX}
s_cbranch_scc1 L_h2done
s_cmp_eq_u32 s76, 0
s_cbranch_scc1 L_h2done
s_sleep {OPT['rsleep']}
s_branch L_h2poll
L_h2done:
""")
ST(1)
if OPT['prio']: A("s_setprio 0")
A(f"""
s_lshl_b32 s70, s{sX}, 4
s_add_u32 s70, s70, s{sK}
s_lshl_b32 s76, s70, 15
s_lshl_b32 s71, s66, 13
s_add_u32 s76, s76, s71
s_add_u32 s76, s76, {WS_H3A}
s_add_u32 s78, s76, 4096
s_lshl_b32 s75, s70, 10
s_add_u32 s75, s75, {WS_FLG}
s_barrier
""")
vV = 96; vO = 32
def vfrag(f, tau): return vV + 4*(f*4 + tau)
PR = [224+4*f for f in range(6)] + [16, 252]
def pv_reads(f):
    for tau in range(4):
        for jj in range(2):
            a = (20 if f < 4 else 24) + jj + 2*(tau & 1)
            off = (f & 3)*16384 + jj*8192 + (tau >> 1)*1024
            A(f"ds_read_b64_tr_b16 {vr(vfrag(f,tau)+2*jj,2)}, v{a} offset:{off}")
if OPT['local']:
    A(f"s_cmp_lg_u32 s66, 0\ns_cbranch_scc1 L_npt\nbuffer_load_dwordx4 v[248:251], v9, {WS}, s75 offen\nL_npt:")
    if not OPT['nopt']:
        for i in range(8): A(f"buffer_load_dwordx4 v[248:251], v9, {WS}, s{76 if i < 4 else 78} offen offset:{(i&3)*1024}")
FO = [0, 2, 4, 6, 1, 3, 5, 7]
pv_reads(FO[0])
A("s_barrier")
for n in range(1, 8):
    A("s_waitcnt lgkmcnt(6)")
    if n == 5:
        A(f"""
        v_mov_b32 v15, {QA+LCO}
        s_cmp_lg_u32 s66, 0
        s_cbranch_scc1 L_nl
        v_mov_b32 v28, s{sLOC}
        ds_write_b32 v15, v28
        L_nl:
        s_barrier
        """)
    pv_reads(FO[n])
A(f"""
v_add_u32 v10, {QA}, v9
v_and_b32 v13, 31, v{vL}
v_lshlrev_b32 v13, 4, v13
v_lshl_add_u32 v11, v12, 16, v13
s_lshl_b32 s68, s{sX}, 19
s_lshl_b32 s69, s{sK}, 11
s_add_u32 s68, s68, s69
s_lshl_b32 s70, s66, 9
s_add_u32 s68, s68, s70
s_add_u32 s68, s68, {WS_H3A}
s_lshl_b32 s71, s66, 7
s_add_u32 s71, s71, s75
v_mov_b32 v14, s{sT}
s_waitcnt lgkmcnt(0)
s_barrier
""")
ST(3)
def p_read(f): A(f"ds_read_b128 {vr(PR[f],4)}, v10 offset:{(f>>1)*8192+(f&1)*1024}")
for f in FO[:4]: p_read(f)
for n, f in enumerate(FO):
    if n < 3: A(f"s_waitcnt lgkmcnt({3-n})")
    elif n == 3: pass
    else: A(f"s_waitcnt lgkmcnt({8-n})")
    for tau in range(4): mf32(vO+16*tau, PR[f], vfrag(f,tau), n == 0)
    if n == 2:
        A("s_waitcnt lgkmcnt(0)\ns_barrier")
        for f2 in FO[4:]: p_read(f2)
        A("ds_read_b32 v15, v15")
A(f"s_waitcnt lgkmcnt(0)\nv_readfirstlane_b32 s{sLOC}, v15")
ST(4)
def pv_store(flag):
    for n, i in enumerate(range(0, 16, 2)):
        d = vV + 4*n
        A(f"v_cvt_pk_bf16_f32 v{d}, v{vO+i}, v{vO+16+i}\nv_cvt_pk_bf16_f32 v{d+2}, v{vO+i+1}, v{vO+16+i+1}")
        A(f"s_add_u32 s69, s68, {((i&3)//2 + 4*(i>>2))*32768}")
        A(f"v_cvt_pk_bf16_f32 v{d+1}, v{vO+32+i}, v{vO+48+i}\nv_cvt_pk_bf16_f32 v{d+3}, v{vO+32+i+1}, v{vO+48+i+1}")
        A(f"buffer_store_dwordx4 {vr(d,4)}, v11, {WS}, s69 offen {flag if flag or not OPT['lnt'] & 1 else 'nt'}")
    A(f"""
    s_mov_b64 exec, 1
    s_waitcnt vmcnt(0)
    buffer_store_dword v14, v8, {WS}, s71 offen offset:512 {flag}
    s_mov_b64 exec, -1
    """)
A(f"s_cmp_lg_u32 s{sLOC}, 0\ns_cbranch_scc1 L_pvfar")
pv_store("")
A("L_pvback:")
ST(5)
if OPT['late']:
    NL = OPT['nl']
    A(f"""
    s_load_dwordx4 s[16:19], s[0:1], 56
    s_load_dwordx2 s[20:21], s[0:1], 40
    s_lshr_b32 s68, s{sK}, 2
    s_and_b32 s69, s{sK}, 3
    s_mov_b32 s55, 0x20000
    s_cmp_eq_u32 s{sK}, 14
    s_cbranch_scc1 L_end
    s_cmp_ge_u32 s69, 2
    s_cbranch_scc1 L_lt_f
    s_cmp_eq_u32 s68, 3
    s_cbranch_scc1 L_lt_f
    s_lshl_b32 s70, s{sX}, 3
    s_lshl_b32 s71, s68, 1
    s_add_u32 s70, s70, s71
    s_add_u32 s70, s70, s69
    s_add_u32 s70, s70, 1
    s_mul_i32 s54, s70, {64*1152}
    s_sub_u32 s70, s54, {4*NL*1024}
    s_lshl_b32 s71, s66, 10
    s_add_u32 s70, s70, s71
    s_mov_b32 s71, 4096
    v_mov_b32 v10, v9
    s_waitcnt lgkmcnt(0)
    s_mov_b32 s52, s20
    s_mov_b32 s53, s21
    s_branch L_lt_go
    L_lt_f:
    s_lshl_b32 s70, s68, 1
    s_add_u32 s70, s70, s69
    s_lshr_b32 s71, s69, 1
    s_cmp_eq_u32 s68, 3
    s_cselect_b32 s71, s71, 2
    s_sub_u32 s70, s70, s71
    s_mul_i32 s71, s{sX}, 9
    s_add_u32 s70, s70, s71
    s_lshl_b32 s70, s70, 7
    s_lshr_b32 s71, s66, 1
    s_add_u32 s71, s71, {72-2*NL}
    s_mul_i32 s71, s71, {8*9216}
    s_add_u32 s70, s70, s71
    s_mov_b32 s71, {16*9216}
    s_mov_b32 s54, {576*9216}
    v_mul_u32_u24 v10, 9216, v2
    v_lshl_add_u32 v10, v3, 4, v10
    s_waitcnt lgkmcnt(0)
    s_bitcmp0_b32 s66, 0
    s_cselect_b32 s52, s16, s18
    s_cselect_b32 s53, s17, s19
    L_lt_go:
    """)
    if OPT['late'] == 1: A("s_barrier")
    for i in range(NL):
        A(f"buffer_load_dwordx4 v[248:251], v10, {RA}, s70 offen\ns_add_u32 s70, s70, s71")
finish()
A("L_pvfar:\ns_nop 9")
pv_store("sc1")
A("s_branch L_pvback")

A("L_end:")
if OPT['stamps']:
    A("s_waitcnt vmcnt(0)")
    ST(8)
    A(f"""
    s_waitcnt lgkmcnt(0)
    s_lshl_b32 s66, s2, 3
    s_add_u32 s66, s66, s{sW}
    s_lshl_b32 s66, s66, 6
    s_add_u32 s66, s66, {WS_ST}
    s_getreg_b32 s67, hwreg(HW_REG_XCC_ID)
    s_mov_b64 exec, 1
    v_mov_b32 v8, 0
    """)
    for i in range(3):
        A("\n".join(f"v_mov_b32 v{12+j}, s{80+2*(3*i+j)}" for j in range(3)))
        A(f"v_mov_b32 v15, {['s67','s77','s98'][i]}")
        A(f"buffer_store_dwordx4 v[12:15], v8, {WS}, s66 offen offset:{16*i}")
if OPT['hs'] >= 0:
    if OPT['hr'] == 1: A("s_cmp_ge_u32 s2, 128\ns_cbranch_scc1 L_exit")
    if OPT['hr'] == 3: A(f"s_cmp_ge_u32 s2, 128\ns_cbranch_scc1 L_exit\ns_cmp_ge_u32 s{sW}, 4\ns_cbranch_scc1 L_exit")
    if OPT['hr'] == 4: A(f"s_cmp_ge_u32 s2, 128\ns_cbranch_scc1 L_exit\ns_cmp_lt_u32 s{sW}, 4\ns_cbranch_scc1 L_exit")
    if OPT['hr'] == 2: A("s_cmp_lt_u32 s2, 128\ns_cbranch_scc1 L_exit")
    A(f"s_cmp_eq_u32 s{80+2*OPT['hs']}, 0\ns_cbranch_scc1 L_exit")
    A(f"L_hold2:\ns_memrealtime s[66:67]\ns_waitcnt lgkmcnt(0)\ns_sub_u32 s68, s66, s{80+2*OPT['hs']}\ns_cmp_lt_u32 s68, 4000\ns_cbranch_scc1 L_hold2")
if OPT['hold']:
    A(f"L_hold:\ns_memrealtime s[66:67]\ns_waitcnt lgkmcnt(0)\ns_sub_u32 s68, s66, s80\ns_cmp_lt_u32 s68, {OPT['hold']}\ns_cbranch_scc1 L_hold")
A("L_exit:\ns_endpgm")
A.raw(f""".section .rodata,"a"
.p2align 6
.amdhsa_kernel {NAME}_kernel
  .amdhsa_next_free_vgpr 256
  .amdhsa_next_free_sgpr 102
  .amdhsa_accum_offset 256
  .amdhsa_group_segment_fixed_size 0
  .amdhsa_kernarg_size 104
  .amdhsa_user_sgpr_count 2
  .amdhsa_user_sgpr_kernarg_segment_ptr 1
  .amdhsa_system_sgpr_workgroup_id_x 1
  .amdhsa_float_denorm_mode_32 3
.end_amdhsa_kernel""")
sys.stdout.write(A.text())
sys.stderr.write(f"instructions {A.count} nops {A.nops}\n")
```

```python
import sys, math, struct
from asmx import Asm, NAME

OPT = dict(stamps=0, local=1, hold=0, pf=2, exp=0, gbar=8, rsleep=2, help=5, fslow=2, tslow=0, wb=0, gap=0, prio=1, ukw=0, wqh=1, adel=0, psl=4, cpq=1, hb=1, noclr=0, nopt=0, hslow=0, gslow=0, Tslow=0, areg=1, pvp=1, ckh=1, lnt=0, c3l=0, rowm=0, fclr=0, late=0, nl=8, bpre=1, fhelp=0, pearly=0, pfirst=0, fbar=1, fwin=0, fbx=1, nqal=0, hs=-1, hr=0)
for a in sys.argv[1:]:
    k, v = a.split("="); assert k in OPT, k; OPT[k] = int(v)

WS_PF  = 0x010000
WS_FF  = 0x020000
WS_XT  = 0x030000
WS_H1  = 0x040000
WS_H1L = 0x0C0000
WS_H2  = 0x080000
WS_PQ  = 0x0A0000
WS_FLG = 0x100000
WS_H3B = 0x140000
WS_H5  = 0x200000
WS_H3A = 0x400000
WS_ST  = 0x800000
POLL_MAX = 60000 if not OPT['exp'] else 40

P_X, P_CKV, P_WQ, P_WUK, P_WUV, P_WO, P_BX, P_WG, P_WU, P_WD, P_OUT, P_DBG = [16+2*i for i in range(12)]
sSL, sF = 40, 41
sE, sT, sW, sX, sK, sH = 42, 43, 44, 45, 46, 47
WS = "s[48:51]"; RA = "s[52:55]"; RB = "s[56:59]"; RC = "s[60:63]"
sQD, sA_ = 64, 65
A = Asm()
HW = '\ns_waitcnt vmcnt(0)' if OPT['hslow'] else ''
NQPART = [True]

def srd(base, ptr, size):
    A(f"s_mov_b32 s{base}, s{ptr}\ns_mov_b32 s{base+1}, s{ptr+1}\ns_mov_b32 s{base+2}, {size}\ns_mov_b32 s{base+3}, 0x20000")
def ST(i, mode=1):
    if OPT['stamps'] == mode or (OPT['stamps'] and i in (0, 8)): A(f"s_memrealtime s[{80+2*i}:{81+2*i}]")
def vr(a, n): return f"v[{a}:{a+n-1}]"
def dma(voff, rsrc, soff, flags="nt"):
    A(f"buffer_load_dwordx4 v{voff}, {rsrc}, s{soff} offen {flags} lds")
def finish(): A("s_branch L_end")
def get_tag():
    A(f"s_add_u32 s{sE}, s{sE}, 1\ns_mul_i32 s{sT}, s{sE}, 0x9E3779B1\ns_xor_b32 s{sT}, s{sT}, 0x5BD1E995")
def rb16(dst, src):
    A(f"v_cvt_pk_bf16_f32 v{dst}, v{src}, v{src}\nv_lshlrev_b32 v{dst}, 16, v{dst}")
DPPF = "row_mask:0xf bank_mask:0xf"
QP1 = "quad_perm:[1,0,3,2] " + DPPF
def wave_sum_to_sgpr(v, s):
    for r in (8, 4, 2, 1): A(f"v_add_f32_dpp v{v}, v{v}, v{v} row_ror:{r} {DPPF}")
    A(f"v_add_f32_dpp v{v}, v{v}, v{v} row_bcast:15 row_mask:0xa bank_mask:0xf")
    A(f"v_add_f32_dpp v{v}, v{v}, v{v} row_bcast:31 row_mask:0xc bank_mask:0xf")
    A(f"v_readlane_b32 s{s}, v{v}, 63")
def fbits(x): return "0x%08x" % struct.unpack("<I", struct.pack("<f", x))[0]
def mf16(d, a, b, first): A(f"v_mfma_f32_16x16x32_bf16 {vr(d,4)}, {vr(a,4)}, {vr(b,4)}, {'0' if first else vr(d,4)}")
def mf32(d, a, b, first): A(f"v_mfma_f32_32x32x16_bf16 {vr(d,16)}, {vr(a,4)}, {vr(b,4)}, {'0' if first else vr(d,16)}")
def ones(v): A("\n".join(f"v_mov_b32 v{v+j}, -1" for j in range(4)))
LOG2E = 1.4426950408889634

A.raw("; @launch grid=(256,1,1) block=(512,1,1) lds=163840")
A.raw('.amdgcn_target "amdgcn-amd-amdhsa--gfx950"')
A.raw(f".text\n.globl {NAME}_kernel\n.p2align 8\n.type {NAME}_kernel,@function\n{NAME}_kernel:")
vL = 1
BIG = 16384
WQB = BIG + 108*1024
def late_common():
    A(f"""
    s_load_dwordx2 s[48:49], s[0:1], 96
    s_load_dwordx16 s[16:31], s[0:1], 0
    s_load_dwordx8 s[32:39], s[0:1], 64
    s_mov_b32 s50, 0x10000000
    s_mov_b32 s51, 0x20000
    s_mov_b32 s55, 0x20000
    """)
ST(0)
A(f"""
s_load_dwordx2 s[60:61], s[0:1], 24
s_lshr_b32 s3, s2, 7
s_cbranch_scc1 L_nq
v_lshrrev_b32 v3, 6, v0
v_and_b32 v{vL}, 63, v0
v_lshlrev_b32 v9, 4, v{vL}
v_lshl_add_u32 v2, v3, 13, v9
s_and_b32 s{sX}, s2, 7
s_lshl_b32 s68, s{sX}, 10
s_lshr_b32 s{sK}, s2, 3
s_lshl_b32 s69, s{sK}, 18
s_add_u32 s68, s68, s69
v_add_u32 v2, s68, v2
""")
if OPT['pfirst']:
    A(f"s_getpc_b64 s[66:67]\nv_lshlrev_b32 v4, 1, v0\nglobal_load_dword v247, v4, s[66:67] offset:64")
A("s_waitcnt lgkmcnt(0)")
for i in range(4):
    A("global_load_dwordx4 v[248:251], v2, s[60:61]")
    if i < 3: A("v_add_u32 v2, 0x10000, v2")
PFB = f"""
v_readfirstlane_b32 s{sW}, v3
v_lshlrev_b32 v2, 7, v0
v_cmp_gt_u32 vcc, L_exit-L_pc, v2
s_and_saveexec_b64 s[68:69], vcc
s_cbranch_execz L_att
global_load_dword v247, v2, s[66:67]
s_branch L_att
"""
A("s_getpc_b64 s[66:67]\nL_pc:")
if OPT['nqal']: A("s_branch L_att0")
else: A(PFB)
A(f"""
L_nq:
s_load_dwordx2 s[56:57], s[0:1], 16
s_load_dwordx2 s[52:53], s[0:1], 0
v_lshrrev_b32 v2, 6, v0
s_and_b32 s{sX}, s2, 7
s_mov_b32 s59, 0x20000
v_readfirstlane_b32 s{sW}, v2
s_cmp_ge_u32 s2, 256
s_cbranch_scc1 L_exit
s_movk_i32 s70, 128
v_bfe_u32 v2, v0, 3, 4
v_lshrrev_b32 v3, 8, v0
v_lshl_add_u32 v3, v3, 4, v2
v_lshrrev_b32 v11, 1, v2
v_and_b32 v11, 4, v11
v_and_or_b32 v11, v2, 2, v11
v_xor_b32 v11, v11, v0
v_and_b32 v11, 7, v11
v_lshlrev_b32 v11, 4, v11
v_and_or_b32 v12, v0, s70, v11
v_lshl_add_u32 v12, v3, 13, v12
s_bfe_u32 s{sA_}, s2, 0x20005
s_bfe_u32 s{sQD}, s2, 0x20003
s_lshl2_add_u32 s{sH}, s{sX}, s{sA_}
s_mul_i32 s72, s{sQD}, {18*65536}
s_lshl_b32 s73, s{sH}, 8
s_add_u32 s72, s72, s73
s_mov_b32 s58, {576*8192}
s_and_b32 s67, s{sW}, 1
s_bfe_u32 s69, s{sW}, 0x10001
s_and_b32 s71, s{sW}, 4
s_lshl1_add_u32 s71, s67, s71
s_add_u32 s71, s71, s69
s_lshl_b32 s71, s71, 10
s_add_u32 m0, s71, {WQB}
""")
A(f"""
v_and_b32 v{vL}, 63, v0
s_mul_i32 s66, s{sW}, 1152
v_lshl_add_u32 v13, v{vL}, 3, s66
v_lshl_add_u32 v14, v{vL}, 1, s66
s_lshr_b32 s70, s{sW}, 2
""")
ST(1, 5)
A("s_waitcnt lgkmcnt(0)")
ST(2, 5)
A("""
s_cbranch_scc1 L_nq_nox
global_load_dwordx2 v[20:21], v13, s[52:53]
global_load_dwordx2 v[22:23], v13, s[52:53] offset:512
global_load_ushort v24, v14, s[52:53] offset:1024
L_nq_nox:
""")
for i in range(4):
    dma(12, RB, 72)
    A(f"s_add_u32 s72, s72, {4*65536}\ns_add_u32 m0, s71, {WQB+8192*(i+1)}")
A(f"s_cmp_lg_u32 s70, 0\ns_cbranch_scc1 L_nq_d4")
dma(12, RB, 72)
A("L_nq_d4:")
ST(3, 5)
if OPT['nqal']:
    A("s_branch L_nq2\nL_att0:")
    A(PFB)
    A("L_nq2:")
late_common()
A(f"""
s_lshr_b32 s{sK}, s2, 3
v_lshlrev_b32 v9, 4, v{vL}
s_mov_b32 s62, {512*8192}
s_mov_b32 s63, 0x20000
""")
def lane_consts():
    A(f"v_lshrrev_b32 v2, 3, v{vL}\nv_and_b32 v3, 7, v{vL}\nv_lshrrev_b32 v4, 4, v{vL}\nv_bfe_u32 v5, v{vL}, 2, 2\nv_and_b32 v6, 3, v{vL}\nv_lshlrev_b32 v7, 4, v0\nv_mov_b32 v8, 0")
    if OPT['stamps']:
        for i in range(82 if OPT['stamps'] != 5 else 88, 102): A(f"s_mov_b32 s{i}, 0")

XN, XNS = 0, 1216
QL, QLS = 5120, 320
HB, HBS = 9728, 192
vTR = 13
vD = 28
def common_setup():
    lane_consts()
    A(f"""
    s_and_b32 s67, s{sW}, 1
    s_lshl_b32 s68, s67, 2
    v_and_b32 v11, 2, v2
    v_or_b32 v11, s68, v11
    v_xor_b32 v11, v11, v3
    v_lshlrev_b32 v11, 4, v11
    v_lshl_add_u32 v12, v2, 13, v11
    s_lshr_b32 s68, s{sW}, 1
    s_bfe_u32 s69, s{sW}, 0x10001
    s_lshr_b32 s70, s{sW}, 2
    """)
def common_setup2():
    A(f"""
    s_and_b32 s74, s{sW}, 3
    s_lshl_b32 s74, s74, 1
    v_lshrrev_b32 v{vTR}, 1, v6
    v_or_b32 v{vTR}, s74, v{vTR}
    v_and_b32 v14, 2, v5
    v_xor_b32 v{vTR}, v{vTR}, v14
    v_and_b32 v14, 1, v4
    v_lshlrev_b32 v15, 2, v14
    v_xor_b32 v{vTR}, v{vTR}, v15
    v_lshlrev_b32 v{vTR}, 4, v{vTR}
    v_lshl_add_u32 v{vTR}, v5, 7, v{vTR}
    v_and_b32 v15, 1, v6
    v_lshl_add_u32 v{vTR}, v15, 3, v{vTR}
    s_lshl_b32 s74, s70, 10
    s_add_u32 s74, s74, {BIG}
    v_add_u32 v15, s74, v{vTR}
    v_lshl_add_u32 v16, v4, 11, v15
    v_mul_u32_u24 v18, {XNS}, v6
    v_lshl_add_u32 v18, v4, 4, v18
    s_mov_b32 s78, 0x000f000f
    s_mov_b32 s79, 0x000f000f
    """)
def x_loads():
    A(f"""
    s_mul_i32 s66, s{sW}, 1152
    v_lshlrev_b32 v10, 3, v{vL}
    v_lshlrev_b32 v19, 1, v{vL}
    buffer_load_dwordx2 v[20:21], v10, {RA}, s66 offen
    buffer_load_dwordx2 v[22:23], v10, {RA}, s66 offen offset:512
    buffer_load_ushort v24, v19, {RA}, s66 offen offset:1024
    """)
def layernorm():
    e = list(range(56, 65))
    for i in range(4): A(f"v_lshlrev_b32 v{e[2*i]}, 16, v{20+i}\nv_and_b32 v{e[2*i+1]}, 0xffff0000, v{20+i}")
    A(f"""
    v_lshlrev_b32 v{e[8]}, 16, v24
    v_add_f32 v25, v{e[0]}, v{e[1]}
    v_add_f32 v26, v{e[2]}, v{e[3]}
    v_add_f32 v27, v{e[4]}, v{e[5]}
    v_add_f32 v28, v{e[6]}, v{e[7]}
    v_add_f32 v25, v25, v26
    v_add_f32 v27, v27, v28
    v_add_f32 v25, v25, v{e[8]}
    v_add_f32 v25, v25, v27
    """)
    wave_sum_to_sgpr(25, 74)
    A(f"v_mov_b32 v26, {fbits(1.0/576)}\nv_mul_f32 v26, s74, v26")
    A(f"v_sub_f32 v27, v{e[0]}, v26\nv_mul_f32 v25, v27, v27")
    for i in range(1, 9): A(f"v_sub_f32 v27, v{e[i]}, v26\nv_fmac_f32 v25, v27, v27")
    rb16(26, 26)
    for i in range(9): A(f"v_sub_f32 v{e[i]}, v{e[i]}, v26")
    wave_sum_to_sgpr(25, 74)
    A(f"v_mov_b32 v27, {fbits(1.0/576)}\nv_mul_f32 v27, s74, v27")
    rb16(27, 27)
    A(f"v_add_f32 v27, {fbits(1e-5)}, v27")
    rb16(27, 27)
    A("v_sqrt_f32 v27, v27")
    rb16(27, 27)
    A("v_rcp_f32 v27, v27")
    for i in range(0, 8, 2): A(f"v_cvt_pk_bf16_f32 v{20+i//2}, v{e[i]}, v{e[i+1]}")
    A(f"v_cvt_pk_bf16_f32 v24, v{e[8]}, v{e[8]}")
    for i in range(0, 8, 2): A(f"v_lshlrev_b32 v{e[i]}, 16, v{20+i//2}\nv_and_b32 v{e[i+1]}, 0xffff0000, v{20+i//2}")
    A(f"v_lshlrev_b32 v{e[8]}, 16, v24")
    for i in range(9): A(f"v_mul_f32 v{e[i]}, v{e[i]}, v27")
    for i in range(0, 8, 2): A(f"v_cvt_pk_bf16_f32 v{20+i//2}, v{e[i]}, v{e[i+1]}")
    A(f"v_cvt_pk_bf16_f32 v24, v{e[8]}, v{e[8]}")
    A(f"""
    s_mul_i32 s74, s{sW}, {XNS}
    v_add_u32 v10, s74, v10
    v_add_u32 v19, s74, v19
    ds_write_b64 v10, v[20:21] offset:{XN}
    ds_write_b64 v10, v[22:23] offset:{XN+512}
    ds_write_b16 v19, v24 offset:{XN+1024}
    """)
def clear_tail_inbox(vones):
    A(f"s_lshl_b32 s74, s{sH}, 14\ns_add_u32 s74, s74, {WS_H3B}")
    for i in range(4):
        A(f"buffer_store_dwordx4 {vr(vones,4)}, v9, {WS}, s74 offen sc1\nbuffer_store_dwordx4 {vr(vones,4)}, v9, {WS}, s74 offen offset:2048 sc1")
        if i < 3: A("s_add_u32 s74, s74, 4096")
    A(f"s_sub_u32 s74, s74, {3*4096}\nv_lshlrev_b32 v14, 11, v2\nv_lshl_add_u32 v14, v3, 4, v14")
    A(f"buffer_store_dwordx4 {vr(vones,4)}, v14, {WS}, s74 offen offset:1024 sc1")
def proof(sidx):
    A(f"""
    s_lshl_b32 s74, s{sidx}, 7
    s_add_u32 s74, s74, {WS_PF}
    v_mov_b32 v14, s{sT}
    v_lshlrev_b32 v17, 2, v{vL}
    s_mov_b32 exec_hi, 0
    buffer_store_dword v14, v17, {WS}, s74 offen sc1
    s_mov_b64 exec, -1
    """)
vXN, vG = 32, 104
def xn_frags():
    for kp in range(18):
        A(f"ds_read_b128 {vr(vXN+4*kp,4)}, v18 offset:{XN+kp*64}")
        if kp == 11: A("s_waitcnt lgkmcnt(4)")
def k_half(h, va, vb):
    for kp in range(9):
        a, off = (va, kp*8192) if kp < 8 else (vb, 0)
        A(f"ds_read_b64_tr_b16 {vr(vG+4*kp,2)}, v{a} offset:{off}")
        A(f"ds_read_b64_tr_b16 {vr(vG+4*kp+2,2)}, v{a} offset:{off+512}")
        if kp == 5: A("s_waitcnt lgkmcnt(6)")
    for kp in range(9):
        A(f"s_waitcnt lgkmcnt({min(15,2*(8-kp))})")
        mf16(vD, vG+4*kp, vXN+4*(9*h+kp), h == 0 and kp == 0)

QP, QPS = 5120, 272
UKB = BIG
sU = 76
def f_setup():
    A(f"""
    s_lshl_b32 s71, s{sA_}, 1
    s_add_u32 s71, s71, s{sQD}
    s_lshr_b32 s72, s{sQD}, 1
    s_cmp_eq_u32 s{sA_}, 3
    s_cselect_b32 s72, s72, 2
    s_sub_u32 s71, s71, s72
    s_mul_i32 s{sU}, s{sX}, 9
    s_add_u32 s{sU}, s{sU}, s71
    s_cmp_eq_u32 s69, 0
    s_cselect_b32 s60, s{P_WG}, s{P_WU}
    s_cselect_b32 s61, s{P_WG+1}, s{P_WU+1}
    s_mov_b32 s62, {576*9216}
    s_lshl_b32 s72, s67, 1
    s_lshl_b32 s71, s69, 2
    s_or_b32 s72, s72, s71
    v_bfe_u32 v14, v2, 1, 1
    v_or_b32 v14, s72, v14
    v_xor_b32 v14, v14, v3
    v_lshlrev_b32 v14, 4, v14
    v_mul_u32_u24 v12, 9216, v2
    v_add_u32 v12, v12, v14
    s_lshl_b32 s71, s70, 1
    s_add_u32 s71, s71, s67
    s_mul_i32 s72, s71, {8*9216}
    s_lshl_b32 s74, s{sU}, 7
    s_add_u32 s72, s72, s74
    s_lshl_b32 s71, s71, 1
    s_add_u32 s71, s71, s69
    s_lshl_b32 s71, s71, 10
    s_add_u32 s71, s71, {BIG}
    """)
def gu_dma(i):
    A(f"s_mov_b32 m0, s71\ns_add_u32 s71, s71, 8192")
    dma(12, RC, 72)
    A(f"s_add_u32 s72, s72, {32*9216}")
lane_consts()
A(f"""
v_lshl_add_u32 v12, v2, 13, v11
s_lshl_b32 s74, s69, 7
s_add_u32 s73, s73, s74
s_mov_b32 s54, 4608
v_lshlrev_b32 v10, 3, v{vL}
v_lshlrev_b32 v19, 1, v{vL}
s_waitcnt lgkmcnt(0)
s_load_dword s{sE}, s[48:49], 0
""")
ST(1, 2)
A(f"s_lshr_b32 s68, s{sW}, 1\ns_cmp_ge_u32 s{sQD}, 2\ns_cbranch_scc1 L_nq_fs")
A(f"""
s_lshl_b32 s71, s70, 3
s_add_u32 s71, s71, s67
s_lshl_b32 s72, s{sQD}, 5
s_add_u32 s72, s72, s71
s_lshl_b32 s72, s72, 16
s_add_u32 s72, s72, s73
s_lshl_b32 s71, s71, 1
s_add_u32 s71, s71, s69
s_lshl_b32 s71, s71, 10
s_add_u32 s71, s71, {UKB}
s_cmp_eq_u32 s70, 0
s_cbranch_scc1 L_nq_ln
""")
ones(24)
A(f"""
s_lshl_b32 s75, s{sW}, 12
s_lshl_b32 s74, s{sH}, 14
s_add_u32 s74, s74, s75
s_add_u32 s74, s74, {WS_H3B-16384}
buffer_store_dwordx4 v[24:27], v9, {WS}, s74 offen sc1
buffer_store_dwordx4 v[24:27], v9, {WS}, s74 offen offset:2048 sc1
s_mov_b64 exec, 0xff
buffer_store_dwordx4 v[24:27], v9, {WS}, s74 offen offset:1024 sc1
buffer_store_dwordx4 v[24:27], v9, {WS}, s74 offen offset:3072 sc1
s_lshl_b32 s75, s{sW}, 15
s_lshl_b32 s74, s{sH}, 10
s_add_u32 s74, s74, s75
s_lshl_b32 s75, s{sQD}, 9
s_add_u32 s74, s74, s75
s_add_u32 s74, s74, {WS_H2-4*32768}
s_mov_b32 exec_lo, -1
buffer_store_dwordx4 v[24:27], v9, {WS}, s74 offen sc1
s_mov_b64 exec, -1
s_branch L_nq_noln
L_nq_fs:
s_cmp_lg_u32 s{sK}, 30
s_cbranch_scc1 L_nq_fs2
s_cmp_eq_u32 s70, 0
s_cbranch_scc1 L_nq_ln
""")
ones(24)
A(f"""
s_lshl_b32 s75, s{sW}, 12
s_lshl_b32 s74, s{sH}, 14
s_add_u32 s74, s74, s75
s_add_u32 s74, s74, {WS_H3B-16384}
buffer_store_dwordx4 v[24:27], v9, {WS}, s74 offen sc1
buffer_store_dwordx4 v[24:27], v9, {WS}, s74 offen offset:2048 sc1
s_mov_b64 exec, 0xff
buffer_store_dwordx4 v[24:27], v9, {WS}, s74 offen offset:1024 sc1
buffer_store_dwordx4 v[24:27], v9, {WS}, s74 offen offset:3072 sc1
s_mov_b64 exec, -1
s_branch L_nq_noln
L_nq_fs2:
""")
f_setup()
A(f"s_cmp_lg_u32 s70, 0\ns_cbranch_scc1 L_nq_noln\nL_nq_ln:\ns_waitcnt vmcnt(5)")
ST(2, 2)
layernorm()
A("L_nq_noln:")
ST(3, 2)
common_setup2()
A(f"""
v_add_u32 v21, {WQB-BIG}, v16
v_and_b32 v14, 1, v4
v_lshl_add_u32 v17, v14, 11, v15
v_add_u32 v17, {WQB-BIG}, v17
s_mul_i32 s74, s{sQD}, 288
v_add_u32 v19, s74, v18
s_lshl_b32 s66, s{sH}, 13
s_add_u32 s66, s66, {WS_H1L}
s_lshl_b32 s75, s{sQD}, 11
s_add_u32 s75, s75, s66
s_lshl_b32 s77, s{sW}, 8
s_add_u32 s75, s75, s77
v_lshlrev_b32 v20, 6, v6
v_lshl_add_u32 v20, v4, 4, v20
v_cmp_gt_u32 vcc, 2, v4
s_cmp_lt_u32 s{sQD}, 2
s_cbranch_scc1 L_nq_uk
s_waitcnt vmcnt(0)
""")
for i in range(OPT['gap']): gu_dma(i)
A(f"""
s_branch L_nq_a
L_nq_uk:
s_waitcnt vmcnt(5)
s_cmp_lg_u32 s70, 0
s_cbranch_scc1 L_nq_uk2
s_waitcnt vmcnt(0)
L_nq_uk2:
""")
for i in range(4):
    A(f"s_mov_b32 m0, s71\ns_add_u32 s71, s71, 4096")
    dma(12, RC, 72)
    A(f"s_add_u32 s72, s72, {2*65536}")
A("L_nq_a:\ns_waitcnt lgkmcnt(0)")
ST(1); ST(5, 2)
A("s_barrier")
vA, vB = 64, 96
for kp in range(5):
    a = 21 if kp < 4 else 17
    A(f"ds_read_b64_tr_b16 {vr(vA+4*kp,2)}, v{a} offset:{kp*8192}")
    A(f"ds_read_b64_tr_b16 {vr(vA+4*kp+2,2)}, v{a} offset:{kp*8192+512}")
    A(f"ds_read_b128 {vr(vB+4*kp,4)}, v19 offset:{XN+kp*64}")
get_tag()
A(f"v_mov_b32 v25, s{sT}\nv_mov_b32 v27, s{sT}")
for kp in range(5):
    A(f"s_waitcnt lgkmcnt({3*(4-kp)})")
    if kp == 4:
        for j in range(4): A(f"v_cndmask_b32 v{vB+16+j}, 0, v{vB+16+j}, vcc")
    mf16(vD, vA+4*kp, vB+4*kp, kp == 0)
H1D = WS_H1L - WS_H1
def pq_addr():
    if OPT['cpq']:
        return f"""v_lshlrev_b32 v55, 13, v{vL}
        s_lshl_b32 s76, s{sX}, 7
        s_lshl_b32 s74, s{sA_}, 3
        s_add_u32 s76, s76, s74
        s_lshl_b32 s74, s{sQD}, 2
        s_add_u32 s76, s76, s74
        s_add_u32 s76, s76, {WS_PQ}"""
    return f"""v_lshlrev_b32 v55, 13, v2
    v_lshl_add_u32 v55, v3, 4, v55
    s_lshl_b32 s76, s{sH}, 8
    s_lshl_b32 s74, s{sQD}, 7
    s_add_u32 s76, s76, s74
    s_add_u32 s76, s76, {WS_PQ}"""
PQST = f"s_mov_b64 exec, 0xff\nbuffer_store_dword v44, v55, {WS}, s76 offen sc1\ns_mov_b64 exec, -1" if OPT['cpq'] else f"buffer_store_dwordx4 v[44:47], v55, {WS}, s76 offen sc1"
A(f"""
v_and_b32 v52, 1, v2
v_and_b32 v53, 2, v3
v_lshl_or_b32 v53, v52, 2, v53
v_xor_b32 v53, v53, v4
v_lshlrev_b32 v53, 4, v53
v_lshl_add_u32 v53, v3, 7, v53
v_lshl_add_u32 v52, v52, 11, v53
v_cvt_pk_bf16_f32 v24, v{vD}, v{vD+1}
v_cvt_pk_bf16_f32 v26, v{vD+2}, v{vD+3}
s_mov_b64 exec, s[78:79]
buffer_store_dwordx4 v[24:27], v20, {WS}, s75 offen
s_sub_u32 s75, s75, {H1D}
s_cmp_lt_u32 s{sQD}, 2
s_cbranch_scc1 L_nq_b
buffer_store_dwordx4 v[24:27], v20, {WS}, s75 offen sc1
s_mov_b64 exec, -1
""")
ST(2); ST(6, 2)
A(f"s_barrier\ns_cmp_eq_u32 s{sK}, 30\ns_cbranch_scc1 L_T")
if OPT['ckh']:
    nb = OPT['ckh']; lpr = 8*nb; rpi = 64//lpr
    A(f"""
    s_mov_b32 s56, s{P_CKV}
    s_mov_b32 s57, s{P_CKV+1}
    s_lshl_b32 s74, s{sA_}, 1
    s_add_u32 s74, s74, s{sQD}
    s_sub_u32 s74, s74, 2
    s_min_u32 s74, s74, 6
    s_lshl_b32 s74, s74, 3
    s_add_u32 s74, s74, s{sW}
    s_mul_i32 s74, s74, {rpi*1024}
    s_lshl_b32 s75, s{sX}, 21
    s_add_u32 s74, s74, s75
    s_add_u32 s58, s75, {1 << 21}
    v_lshrrev_b32 v48, {int(math.log2(lpr))}, v{vL}
    v_and_b32 v49, {lpr-1}, v{vL}
    v_lshlrev_b32 v48, 10, v48
    v_lshl_add_u32 v48, v49, 4, v48
    """)
    n = -(-2048 // (56*rpi))
    for i in range(n):
        A(f"buffer_load_dwordx4 v[248:251], v48, {RB}, s74 offen offset:{(1024-128*nb) if not OPT['c3l'] else (384 if nb == 1 else 256)}")
        if i < n-1: A(f"s_add_u32 s74, s74, {56*rpi*1024}")
A(f"s_branch L_F\nL_nq_b:\ns_mov_b64 exec, -1")
ST(2); ST(6, 2)
if OPT['pearly']:
    A(f"s_waitcnt vmcnt(5)\ns_barrier\ns_lshl_b32 s77, s{sQD}, 1\ns_cmp_lg_u32 s{sW}, s77\ns_cbranch_scc1 L_pe\n{pq_addr()}\nv_mov_b32 v44, s{sT}\n{PQST}\nL_pe:")
    A(f"s_add_u32 s71, s71, 16384\ns_add_u32 s72, s72, {8*65536}")
else:
    A(f"s_barrier\ns_add_u32 s71, s71, 16384\ns_add_u32 s72, s72, {8*65536}")
for i in range(4):
    A(f"s_mov_b32 m0, s71\ns_add_u32 s71, s71, 4096")
    dma(12, RC, 72)
    if i < 3: A(f"s_add_u32 s72, s72, {2*65536}")
A(f"""
s_mul_i32 s74, s68, {4*QPS}
s_lshl_b32 s77, s67, 7
s_add_u32 s74, s74, s77
v_mul_u32_u24 v22, {QPS}, v5
v_lshl_add_u32 v22, v4, 5, v22
v_lshl_add_u32 v22, v6, 3, v22
v_add_u32 v22, s74, v22
s_lshl_b32 s77, s{sW}, 13
s_add_u32 s77, s77, {UKB}
v_add_u32 v52, s77, v52
v_xor_b32 v53, 64, v52
v_and_b32 v23, 15, v{vL}
v_mul_u32_u24 v23, {QPS}, v23
v_lshl_add_u32 v23, v4, 4, v23
s_lshl_b32 s72, s{sH}, 10
s_lshl_b32 s74, s{sQD}, 9
s_add_u32 s72, s72, s74
s_lshl_b32 s74, s{sW}, 6
s_add_u32 s72, s72, s74
s_add_u32 s72, s72, {WS_H2}
v_and_b32 v21, 1, v5
v_lshlrev_b32 v54, 15, v6
{pq_addr()}
v_mov_b32 v44, s{sT}
v_mov_b32 v45, s{sT}
v_mov_b32 v46, s{sT}
v_mov_b32 v47, s{sT}
v_lshl_add_u32 v54, v21, 5, v54
v_lshl_add_u32 v54, v4, 3, v54
s_sub_u32 s71, s66, {H1D}
s_mov_b32 s77, 0
L_h1poll:
s_cmp_lg_u32 s77, 6
s_cbranch_scc1 L_h1ng
s_mov_b64 exec, s[78:79]
buffer_store_dwordx4 v[24:27], v20, {WS}, s75 offen sc1
s_mov_b64 exec, -1
L_h1ng:
s_and_b32 s74, s77, 9
s_cmp_eq_u32 s74, 9
s_cselect_b32 s74, s71, s66
buffer_load_dwordx4 v[48:51], v7, {WS}, s74 offen sc1
s_add_u32 s77, s77, 1
s_waitcnt vmcnt(0)
v_xor_b32 v49, s{sT}, v49
v_xor_b32 v51, s{sT}, v51
v_or_b32 v49, v49, v51
v_cmp_ne_u32 vcc, 0, v49
s_cmp_ge_u32 s77, {POLL_MAX}
s_cbranch_scc1 L_h1done
s_cbranch_vccnz L_h1poll
L_h1done:
v_mov_b32 v49, v50
ds_write_b64 v22, v[48:49] offset:{QP}
s_cmp_gt_u32 s77, 6
s_cbranch_scc1 L_h1sent
s_mov_b64 exec, s[78:79]
buffer_store_dwordx4 v[24:27], v20, {WS}, s75 offen sc1
s_mov_b64 exec, -1
L_h1sent:
""")
A(f"L_h1np:\nv_cmp_ne_u32 vcc, 0, v21\ns_waitcnt lgkmcnt(0)")
ST(3); ST(7, 2)
if OPT['pearly']: A("s_barrier")
else: A(f"s_barrier\ns_cmp_lg_u32 s{sW}, 0\ns_cbranch_scc1 L_nopq\n{PQST}\nL_nopq:")
vUK, vD1 = 64, 56
for kp in range(4):
    A(f"ds_read_b128 {vr(vB+4*kp,4)}, v23 offset:{QP+kp*64}")
    for tl in range(2):
        A(f"ds_read_b128 {vr(vUK+16*tl+4*kp,4)}, v{52+(kp&1)} offset:{tl*4096+(kp>>1)*1024}")
A(f"s_mov_b32 s74, {fbits(LOG2E/math.sqrt(128.0))}")
for kp in range(4):
    A(f"s_waitcnt lgkmcnt({9-3*kp+1})")
    mf16(vD, vUK+4*kp, vB+4*kp, kp == 0)
    A(f"s_waitcnt lgkmcnt({9-3*kp})")
    mf16(vD1, vUK+16+4*kp, vB+4*kp, kp == 0)
for j in range(4): A(f"v_cndmask_b32 v{60+j}, v{vD1+j}, v{vD+j}, vcc")
for j in range(4): A(f"v_cndmask_b32 v{vD+j}, v{vD+j}, v{vD1+j}, vcc")
for j in range(4): A(f"v_add_f32_dpp v{vD+j}, v{60+j}, v{vD+j} row_ror:4 {DPPF}")
for j in range(4): A(f"v_add_f32_dpp v{vD+j}, v{vD+j}, v{vD+j} row_ror:8 {DPPF}")
for j in range(4): A(f"v_mul_f32 v{vD+j}, s74, v{vD+j}")
A(f"""
v_cvt_pk_bf16_f32 v48, v{vD}, v{vD+1}
v_cvt_pk_bf16_f32 v49, v{vD+2}, v{vD+3}
v_min_u32 v48, -2, v48
v_min_u32 v49, -2, v49
s_mov_b32 exec_lo, 0x00ff00ff
s_mov_b32 exec_hi, 0x00ff00ff
buffer_store_dwordx2 v[48:49], v54, {WS}, s72 offen sc1
s_mov_b64 exec, -1
""")
ST(4); ST(9, 2)
A(f"""
s_barrier
s_cmp_lt_u32 s{sA_}, 3
s_cbranch_scc1 L_TH
""")
f_setup()
for i in range(OPT['gap']): gu_dma(i)
A("s_branch L_F")

def wide_voffset(v):
    A(f"v_mul_u32_u24 v{v}, 1152, v2\nv_add_u32 v{v}, v{v}, v11")
ZR = 15360
def publish_setup(stride):
    A(f"""
    s_mul_i32 s74, s{sW}, {stride}
    s_add_u32 s72, s72, s74
    v_mul_u32_u24 v20, {8*stride}, v5
    v_lshl_add_u32 v20, v4, 5, v20
    v_lshl_add_u32 v20, v6, 3, v20
    v_lshlrev_b32 v232, 2, v{vL}
    ds_write_b32 v232, v8 offset:{ZR}
    """)
def masked_addrs(vreal, base):
    A(f"v_mov_b32 v236, {ZR-base}")
    for i in range(4): A(f"v_cmp_eq_u32 vcc, {i}, v5\nv_cndmask_b32 v{232+i}, v236, v{vreal}, vcc")
def wide_dma(n, rsrc, slow=0):
    for i in range(n):
        A(f"s_mov_b32 m0, s71\ns_add_u32 s74, s72, 512")
        dma(14, rsrc, 72)
        if 2*i < slow: A("s_waitcnt vmcnt(0)")
        A(f"s_add_u32 s75, s71, 4096\ns_mov_b32 m0, s75\ns_add_u32 s72, s72, {16*1152}")
        dma(14, rsrc, 74)
        if 2*i+1 < slow: A("s_waitcnt vmcnt(0)")
        A(f"s_add_u32 s71, s71, 16384")
def wide_frag_addrs(base8, shift):
    A(f"v_lshl_add_u32 v16, v4, 13, v15")
    if shift: A(f"v_add_u32 v16, {shift}, v16")
    A(f"""
    v_add_u32 v17, 0x10000, v16
    v_lshl_add_u32 v18, v4, 10, v{vTR}
    v_add_u32 v18, {base8}, v18
    """)
def wide_frag_reads(vdst, nk):
    n = 0
    for i in range(4):
        for kp in range(nk):
            a = 16 if kp < 2 else 17
            off = (kp & 1)*32768 + i*2048
            d = vdst + (i*nk + kp)*4
            A(f"ds_read_b64_tr_b16 {vr(d,2)}, v{a} offset:{off}")
            A(f"ds_read_b64_tr_b16 {vr(d+2,2)}, v{a} offset:{off+512}")
            n += 2
            if n % 12 == 0: A("s_waitcnt lgkmcnt(4)")
    A("s_waitcnt lgkmcnt(4)")
    for kp in range(nk):
        d = vdst + (4*nk + kp)*4
        A(f"ds_read_b64_tr_b16 {vr(d,2)}, v18 offset:{kp*4096}")
        A(f"ds_read_b64_tr_b16 {vr(d+2,2)}, v18 offset:{kp*4096+512}")
def wide_gemm(vW, nk, vBf, base, stride, lab):
    acc, acc5 = 240, 244
    nb = 8
    order = [(i, kp) for i in range(4) for kp in range(nk)]
    def rd(n):
        i, kp = order[n]
        A(f"ds_read_b128 {vr(vBf+4*(n % nb),4)}, v{232+i} offset:{base+kp*64}")
    for n in range(min(nb, len(order))): rd(n)
    for n, (i, kp) in enumerate(order):
        A(f"s_waitcnt lgkmcnt({min(nb-1, len(order)-1-n)})")
        mf16(acc, vW+(i*nk+kp)*4, vBf+4*(n % nb), n == 0)
        if i == 0: mf16(acc5, vW+(4*nk+kp)*4, vBf+4*(n % nb), kp == 0)
        if n + nb < len(order): rd(n + nb)
    A(f"""
    s_cmp_lg_u32 s70, 0
    s_cbranch_scc1 {lab}_a
    s_add_u32 s74, s72, {32*stride}
    v_cvt_pk_bf16_f32 v{acc5}, v{acc5}, v{acc5+1}
    v_cvt_pk_bf16_f32 v{acc5+1}, v{acc5+2}, v{acc5+3}
    s_mov_b64 exec, s[78:79]
    buffer_store_dwordx2 {vr(acc5,2)}, v20, {WS}, s74 offen sc1
    s_mov_b64 exec, -1
    {lab}_a:
    s_nop 5
    v_cvt_pk_bf16_f32 v{acc}, v{acc}, v{acc+1}
    v_cvt_pk_bf16_f32 v{acc+1}, v{acc+2}, v{acc+3}
    buffer_store_dwordx2 {vr(acc,2)}, v20, {WS}, s72 offen sc1
    """)
def tail_prologue(lab, slot_code):
    common_setup2()
    A(f"s_mul_i32 s{sSL}, s{sX}, 7\n{slot_code}\ns_waitcnt lgkmcnt(0)")
    get_tag()
    A(f"s_cmp_lg_u32 s{sW}, 7\ns_cbranch_scc1 {lab}")
    ones(24)
    clear_tail_inbox(24)
    A("s_waitcnt vmcnt(0)")
    proof(sSL)
    A(f"{lab}:")

XL, CT, CTS = 0, 8192, 320
TS = 128*128
vUV, vWO = 32, 96
def t_setup():
    A(f"""
    v_lshlrev_b32 v21, 11, v3
    v_xor_b32 v22, v3, v4
    v_lshlrev_b32 v22, 4, v22
    v_lshl_add_u32 v22, v2, 11, v22
    v_and_b32 v12, 1, v2
    v_lshl_or_b32 v12, v12, 2, v4
    v_lshrrev_b32 v14, 1, v3
    v_xor_b32 v12, v12, v14
    v_lshlrev_b32 v12, 4, v12
    v_lshl_add_u32 v12, v3, 7, v12
    v_lshlrev_b32 v14, 3, v3
    s_lshl_b32 s66, s{sH}, 14
    s_add_u32 s66, s66, {WS_H3B}
    s_lshl_b32 s73, s{sW}, 7
    s_add_u32 s73, s73, s66
    s_lshl_b32 s72, s{sSL}, 7
    s_add_u32 s72, s72, {WS_H5}
    v_lshrrev_b32 v23, 1, v3
    v_mul_u32_u24 v23, {CTS}, v23
    v_lshl_add_u32 v23, v4, 3, v23
    s_lshl_b32 s74, s{sW}, 5
    v_add_u32 v23, s74, v23
    v_mul_u32_u24 v10, {CTS}, v6
    v_lshl_add_u32 v10, v4, 4, v10
    """)
    publish_setup(TS)
    masked_addrs(10, CT)
def t_early(lab):
    A(f"""
    v_min_u32 v238, 35, v{vL}
    v_lshlrev_b32 v238, 7, v238
    s_mov_b32 s76, {WS_PF}
    v_mov_b32 v28, 0
    v_mov_b32 v29, 0
    s_cmp_lg_u32 s{sW}, 0
    s_cbranch_scc1 {lab}e1
    buffer_load_dword v239, v238, {WS}, s76 offen sc1
    {lab}e1:
    buffer_load_dwordx4 v[24:27], v22, {WS}, s73 offen sc1
    s_cmp_lg_u32 s{sW}, 7
    s_cbranch_scc1 {lab}e2
    s_mov_b64 exec, 0xff
    buffer_load_dwordx2 v[28:29], v21, {WS}, s66 offen offset:1024 sc1
    s_mov_b64 exec, -1
    {lab}e2:
    """)
def t_tail(nk, lab):
    A(f"""
    s_mov_b32 s77, 0
    s_cmp_lg_u32 s{sW}, 0
    s_cbranch_scc1 {lab}pd
    {lab}pp:
    v_cmp_ne_u32 vcc, s{sT}, v239
    s_add_u32 s77, s77, 1
    s_cbranch_vccz {lab}pd
    s_cmp_ge_u32 s77, {POLL_MAX}
    s_cbranch_scc1 {lab}pd
    buffer_load_dword v239, v238, {WS}, s76 offen sc1
    s_waitcnt vmcnt(0)
    s_branch {lab}pp
    {lab}pd:
    """)
    ST(5); ST(7, 3)
    A(f"""
    s_mov_b32 s77, 0
    s_branch {lab}chk
    {lab}poll:
    buffer_load_dwordx4 v[24:27], v22, {WS}, s73 offen sc1
    s_cmp_lg_u32 s{sW}, 7
    s_cbranch_scc1 {lab}ns
    s_mov_b64 exec, 0xff
    buffer_load_dwordx2 v[28:29], v21, {WS}, s66 offen offset:1024 sc1
    s_mov_b64 exec, -1
    {lab}ns:
    s_add_u32 s77, s77, 1
    s_waitcnt vmcnt(0)
    {lab}chk:
    v_max3_u32 v30, v24, v25, v26
    v_max3_u32 v30, v30, v27, v28
    v_max_u32 v30, v30, v29
    v_cmp_eq_u32 vcc, -1, v30
    s_cmp_ge_u32 s77, {POLL_MAX}
    s_cbranch_scc1 {lab}done
    s_cbranch_vccnz {lab}poll
    {lab}done:
    ds_write_b128 v7, v[24:27] offset:{XL}
    s_cmp_lg_u32 s{sW}, 7
    s_cbranch_scc1 {lab}nw
    s_mov_b64 exec, 0xff
    ds_write_b64 v14, v[28:29] offset:{CT+2048}
    s_mov_b64 exec, -1
    {lab}nw:
    s_waitcnt lgkmcnt(0)
    """)
    ST(6)
    if nk == 4 and OPT['wb'] == 2: A(f"s_cmp_lg_u32 s{sW}, 6\ns_cbranch_scc1 {lab}nwb\nbuffer_wbl2 sc1\n{lab}nwb:")
    A("s_barrier")
    if nk == 2: A(f"s_cmp_lg_u32 s70, 0\ns_cbranch_scc1 {lab}nouv")
    vX = 176
    A(f"ds_read_b64 v[28:29], v14 offset:{CT+2048}")
    for i in range(8): A(f"ds_read_b128 {vr(vX+4*i,4)}, v12 offset:{XL+i*1024}")
    a0, a1 = 24, 208
    for i in range(8):
        A(f"s_waitcnt lgkmcnt({7-i})")
        mf16(a0, vUV+8*i, vX+4*i, i == 0)
        mf16(a1, vUV+8*i+4, vX+4*i, i == 0)
    A(f"""
    v_max_f32_dpp v30, v28, v28 {QP1}
    v_sub_f32 v30, v28, v30
    v_exp_f32 v30, v30
    v_mul_f32 v31, v30, v29
    v_add_f32_dpp v31, v31, v31 {QP1}
    v_rcp_f32 v31, v31
    v_mul_f32 v30, v30, v31
    """)
    for j in range(4): A(f"v_add_f32_dpp v{a0+j}, v{a1+j}, v{a0+j} row_ror:8 {DPPF}")
    for j in range(4): A(f"v_mul_f32 v{a0+j}, v{a0+j}, v30")
    for j in range(4): A(f"v_add_f32_dpp v{a0+j}, v{a0+j}, v{a0+j} {QP1}")
    A(f"""
    v_cvt_pk_bf16_f32 v28, v{a0}, v{a0+1}
    v_cvt_pk_bf16_f32 v29, v{a0+2}, v{a0+3}
    s_mov_b32 exec_lo, 0x00550055
    s_mov_b32 exec_hi, 0x00550055
    ds_write_b64 v23, v[28:29] offset:{CT}
    s_mov_b64 exec, -1
    s_waitcnt lgkmcnt(0)
    {lab}nouv:
    s_barrier
    """)
    wide_gemm(vWO, nk, vX, CT, TS, lab+"g")
    ST(7)
    if nk == 4 and OPT['wb'] == 3: A(f"s_cmp_lg_u32 s{sW}, 6\ns_cbranch_scc1 L_end\nbuffer_wbl2 sc1")
    if nk == 2: fin_role()
    else: finish()

RED = BIG
def fin_setup():
    srd(52, P_X, 4608)
    srd(56, P_OUT, 4608)
    A(f"""
    v_and_b32 v212, 1, v4
    v_lshl_add_u32 v212, v3, 1, v212
    v_and_b32 v213, 3, v212
    v_mul_u32_u24 v213, 1152, v213
    v_lshrrev_b32 v212, 2, v212
    v_lshl_add_u32 v213, v212, 3, v213
    s_min_u32 s75, s{sF}, 35
    s_lshl_b32 s75, s75, 5
    v_add_u32 v213, s75, v213
    buffer_load_dwordx2 v[214:215], v213, {RA}, 0 offen
    v_and_b32 v212, 1, v3
    v_lshlrev_b32 v212, 4, v212
    v_mov_b32 v216, 0x3f80
    v_lshlrev_b32 v216, v212, v216
    v_bfe_u32 v212, v{vL}, 1, 3
    """)
    for d in range(8): A(f"v_cmp_eq_u32 vcc, {d}, v212\nv_cndmask_b32 v{220+d}, 0, v216, vcc")
def fin_role():
    A(f"""
    s_cmp_ge_u32 s{sF}, 36
    s_cbranch_scc1 L_end
    s_cmp_eq_u32 s70, 0
    s_cbranch_scc1 L_fin_b
    s_lshl_b32 s72, s{sF}, 14
    s_lshl_b32 s73, s{sW}, 12
    s_add_u32 s72, s72, s73
    s_add_u32 s72, s72, {WS_H5-16384}
    s_mov_b32 s76, 15
    s_mov_b32 s77, 0
    L_finpoll:
    """)
    for i in range(4):
        A(f"s_bitcmp1_b32 s76, {i}\ns_cbranch_scc0 L_fi{i}\nbuffer_load_dwordx4 {vr(32+4*i,4)}, v9, {WS}, s72 offen offset:{1024*i} sc1\nL_fi{i}:")
    A("s_add_u32 s77, s77, 1\ns_waitcnt vmcnt(0)")
    for i in range(4): A(f"v_max3_u32 v{48+i}, v{32+4*i}, v{33+4*i}, v{34+4*i}")
    for i in range(4): A(f"v_max_u32 v{48+i}, v{48+i}, v{35+4*i}")
    for i in range(4): A(f"v_cmp_eq_u32 vcc, -1, v{48+i}\ns_cbranch_vccnz L_fc{i}\ns_bitset0_b32 s76, {i}\nL_fc{i}:")
    A(f"""
    s_cmp_ge_u32 s77, {POLL_MAX}
    s_cbranch_scc1 L_findone
    s_cmp_lg_u32 s76, 0
    s_cbranch_scc1 L_finpoll
    L_findone:
    s_cmp_ge_u32 s{sW}, 6
    s_cbranch_scc1 L_fin_g
    """)
    for i in range(3): mf16(52, 220, 32+4*i, i == 0)
    A(f"s_cmp_eq_u32 s{sW}, 5\ns_cbranch_scc1 L_fin_g3")
    mf16(52, 220, 44, False)
    A("s_branch L_fin_w\nL_fin_g:")
    for i in range(3): mf16(52, 224, 32+4*i, i == 0)
    A("L_fin_g3:")
    mf16(52, 224, 44, False)
    A(f"L_fin_w:\ns_nop 7\nds_write_b128 v7, v[52:55] offset:{RED-4096}\ns_waitcnt lgkmcnt(0)")
    ST(9)
    A(f"L_fin_b:\ns_barrier\ns_cmp_lg_u32 s{sW}, 0\ns_cbranch_scc1 L_end")
    for i in range(4): A(f"ds_read_b128 {vr(64+4*i,4)}, v9 offset:{RED+i*1024}")
    A(f"s_mov_b32 s76, {fbits(-LOG2E)}")
    A("v_lshlrev_b32 v32, 16, v214\nv_and_b32 v33, 0xffff0000, v214\nv_lshlrev_b32 v34, 16, v215\nv_and_b32 v35, 0xffff0000, v215")
    A("s_waitcnt lgkmcnt(2)")
    for j in range(4): A(f"v_add_f32 v{64+j}, v{64+j}, v{68+j}")
    A("s_waitcnt lgkmcnt(0)")
    for j in range(4): A(f"v_add_f32 v{72+j}, v{72+j}, v{76+j}")
    for j in range(4): A(f"v_add_f32 v{64+j}, v{64+j}, v{72+j}")
    for j in range(4): A(f"v_add_f32_dpp v{64+j}, v{64+j}, v{64+j} row_ror:8 {DPPF}")
    for j in range(4): rb16(64+j, 64+j)
    for j in range(4): A(f"v_mul_f32 v{76+j}, s76, v{64+j}")
    for j in range(4): A(f"v_exp_f32 v{76+j}, v{76+j}")
    for j in range(4): A(f"v_add_f32 v{76+j}, 1.0, v{76+j}")
    for j in range(4): A(f"v_rcp_f32 v{76+j}, v{76+j}")
    for j in range(4): A(f"v_mul_f32 v{76+j}, v{64+j}, v{76+j}")
    A("v_cvt_pk_bf16_f32 v76, v76, v77\nv_cvt_pk_bf16_f32 v77, v78, v79")
    A("v_permlane32_swap_b32 v76, v68\nv_permlane32_swap_b32 v77, v69")
    A("v_lshlrev_b32 v72, 16, v68\nv_and_b32 v73, 0xffff0000, v68\nv_lshlrev_b32 v74, 16, v69\nv_and_b32 v75, 0xffff0000, v69")
    for j in range(4): A(f"v_mul_f32 v{64+j}, v{64+j}, v{72+j}")
    A("v_cvt_pk_bf16_f32 v68, v64, v65\nv_cvt_pk_bf16_f32 v69, v66, v67")
    A("v_lshlrev_b32 v64, 16, v68\nv_and_b32 v65, 0xffff0000, v68\nv_lshlrev_b32 v66, 16, v69\nv_and_b32 v67, 0xffff0000, v69")
    for j in range(4): A(f"v_add_f32 v{64+j}, v{64+j}, v{32+j}")
    A(f"""
    v_cvt_pk_bf16_f32 v64, v64, v65
    v_cvt_pk_bf16_f32 v65, v66, v67
    s_mov_b64 exec, 0x00ff00ff
    buffer_store_dwordx2 v[64:65], v213, {RB}, 0 offen
    s_cmp_lg_u32 s{sF}, 0
    s_cbranch_scc1 L_fin_noep
    s_mov_b64 exec, 1
    v_mov_b32 v66, s{sE}
    buffer_store_dword v66, v8, {WS}, 0 offen sc1
    L_fin_noep:
    s_mov_b64 exec, -1
    """)
    finish()

def hb_code():
    if not OPT['hb']: return ""
    return f"""s_lshr_b32 s71, s66, 1
    s_add_u32 s71, s71, 48
    s_mul_i32 s71, s71, {8*9216}
    s_add_u32 s74, s73, 6
    s_lshl_b32 s74, s74, 7
    s_add_u32 s71, s71, s74
    buffer_load_dwordx4 v[248:251], v14, {RA}, s71 offen"""
A("L_TH:")
SLOT = f"s_lshl_b32 s74, s{sA_}, 1\ns_add_u32 s{sSL}, s{sSL}, s74\ns_add_u32 s{sSL}, s{sSL}, s{sQD}"
A(f"""
s_lshl_b32 s66, s{sA_}, 1
s_add_u32 s66, s66, s{sQD}
s_mov_b32 s{sF}, 99
s_cmp_eq_u32 s66, 3
s_cbranch_scc1 L_f_go
s_cmp_gt_u32 s66, 3
s_subb_u32 s66, s66, 0
s_lshl_b32 s66, s66, 3
s_add_u32 s{sF}, s66, s{sX}
s_add_u32 s66, s66, s{sW}
""")
def h5_clear(lab):
    A(f"s_cmp_ge_u32 s{sF}, 36\ns_cbranch_scc1 {lab}")
    ones(24)
    A(f"s_lshl_b32 s74, s{sF}, 14\ns_lshl_b32 s75, s{sW}, 11\ns_add_u32 s74, s74, s75\ns_add_u32 s74, s74, {WS_H5}")
    for i in range(2): A(f"buffer_store_dwordx4 v[24:27], v9, {WS}, s74 offen offset:{i*1024} sc1")
    A(f"s_waitcnt vmcnt(0)\ns_barrier\ns_cmp_lg_u32 s{sW}, 0\ns_cbranch_scc1 {lab}")
    proof(sF)
    A(f"{lab}:")
if not OPT['fclr']: h5_clear("L_noclr2")
A("L_noclr:")
if OPT['help']:
    A(f"""
    s_cmp_eq_u32 s67, 0
    s_cselect_b32 s52, s{P_WG}, s{P_WU}
    s_cselect_b32 s53, s{P_WG+1}, s{P_WU+1}
    s_mov_b32 s54, {576*9216}
    s_lshr_b32 s71, s66, 1
    s_add_u32 s71, s71, 32
    s_mul_i32 s71, s71, {8*9216}
    s_sub_u32 s72, 3, s{sX}
    s_and_b32 s72, s72, 7
    s_mul_i32 s73, s{sX}, 9
    s_lshl_b32 s73, s73, 7
    s_add_u32 s71, s71, s73
    s_lshl_b32 s74, s72, 7
    s_add_u32 s73, s71, s74
    v_mul_u32_u24 v14, 9216, v2
    v_lshl_add_u32 v14, v3, 4, v14
    s_add_u32 s74, s73, {20*8*9216}
    s_add_u32 s71, s71, {20*8*9216}
    """)
    if OPT['help'] & 1:
        A(f"""
        buffer_load_dwordx4 v[248:251], v14, {RA}, s73 offen{HW}
        buffer_load_dwordx4 v[248:251], v14, {RA}, s74 offen{HW}
        s_cmp_lg_u32 s72, 0
        s_cbranch_scc1 L_noc3b
        buffer_load_dwordx4 v[248:251], v14, {RA}, s73 offen offset:1024{HW}
        buffer_load_dwordx4 v[248:251], v14, {RA}, s74 offen offset:1024{HW}
        L_noc3b:
        """)
    if OPT['help'] & 2: A(f"buffer_load_dwordx4 v[248:251], v14, {RA}, s71 offen offset:768{HW}\nbuffer_load_dwordx4 v[248:251], v14, {RA}, s71 offen offset:896{HW}")
    if OPT['help'] & 4:
        A(f"""
        s_lshl_b32 s66, s66, 10
        s_mov_b32 s52, s{P_WO}
        s_mov_b32 s53, s{P_WO+1}
        s_lshl_b32 s73, s{sX}, 3
        s_add_u32 s73, s73, 7
        s_mul_i32 s73, s73, {64*1152}
        s_add_u32 s54, s73, {64*1152}
        s_add_u32 s73, s73, s66
        s_add_u32 s74, s73, {40*1024}
        buffer_load_dwordx4 v[248:251], v9, {RA}, s73 offen{HW}
        buffer_load_dwordx4 v[248:251], v9, {RA}, s74 offen{HW}
        """)
    if OPT['help'] & 8:
        A(f"s_sub_u32 s73, s73, {40*1024}\nbuffer_load_dwordx4 v[248:251], v9, {RA}, s73 offen")
A("L_f_go:")
A(f"s_mul_i32 s{sSL}, s{sX}, 7\n{SLOT}")
ST(1, 3)
srd(52, P_WUV, 512*8192)
srd(56, P_WO, 4096*1152)
A(f"""
s_lshl_b32 s71, s{sW}, 10
s_add_u32 s71, s71, {BIG}
s_lshl_b32 s72, s68, 2
s_add_u32 s72, s72, s67
s_lshl_b32 s72, s72, 16
s_lshl_b32 s73, s{sH}, 1
s_add_u32 s73, s73, s{sQD}
s_lshl_b32 s74, s73, 7
s_add_u32 s72, s72, s74
""")
for i in range(8):
    cb = 2*(i&1) + 16*(i>>1)
    A(f"s_mov_b32 m0, s71\ns_add_u32 s74, s72, {cb*65536}")
    dma(12, RA, 74)
    A(f"s_add_u32 s71, s71, 8192")
    if i < OPT['tslow']: A("s_waitcnt vmcnt(0)")
wide_voffset(14)
A(f"""
s_mul_i32 s73, s73, {64*1152}
s_lshl_b32 s71, s67, 3
s_add_u32 s71, s71, s68
s_lshl_b32 s71, s71, 10
s_add_u32 s71, s71, {BIG+65536}
s_mul_i32 s72, s67, {8*1152}
s_lshl_b32 s74, s68, 7
s_add_u32 s72, s72, s74
s_add_u32 s72, s72, s73
""")
wide_dma(4, RB)
A(f"""
s_mul_i32 s72, s{sW}, {8*1152}
s_add_u32 s72, s72, s73
s_add_u32 s72, s72, 1024
s_lshl_b32 s71, s{sW}, 10
s_add_u32 s71, s71, {BIG+131072}
s_mov_b32 m0, s71
""")
dma(14, RB, 72)
wide_frag_addrs(BIG+131072, 65536)
A(f"v_lshl_add_u32 v19, v4, 10, v{vTR}\nv_add_u32 v19, {BIG}, v19")
t_setup()
ST(5, 3)
A("s_waitcnt vmcnt(9)\ns_barrier")
for kp in range(16):
    A(f"ds_read_b64_tr_b16 {vr(vUV+4*kp,2)}, v19 offset:{kp*4096}")
    A(f"ds_read_b64_tr_b16 {vr(vUV+4*kp+2,2)}, v19 offset:{kp*4096+512}")
    if kp % 6 == 5: A("s_waitcnt lgkmcnt(4)")
fin_setup()
t_early("L_u")
A("s_waitcnt vmcnt(0) lgkmcnt(2)")
ST(6, 3)
A("s_barrier")
wide_frag_reads(vWO, 2)
t_tail(2, "L_u")

A("L_T:")
A(f"s_mul_i32 s{sSL}, s{sX}, 7\ns_add_u32 s{sSL}, s{sSL}, 6")
ST(1, 3)
srd(52, P_WUV, 512*8192)
srd(56, P_WO, 4096*1152)
A(f"""
s_lshl_b32 s71, s70, 1
s_add_u32 s71, s71, s67
s_lshl_b32 s71, s71, 1
s_add_u32 s71, s71, s69
s_lshl_b32 s71, s71, 10
s_add_u32 s71, s71, {BIG}
s_lshl_b32 s72, s70, 2
s_add_u32 s72, s72, s67
s_lshl_b32 s72, s72, 16
s_lshl_b32 s73, s{sH}, 8
s_lshl_b32 s74, s69, 7
s_add_u32 s73, s73, s74
s_add_u32 s72, s72, s73
""")
for i in range(16):
    cb = 2*((i>>1)&1) + 8*(i&1) + 16*(i>>2)
    A(f"s_mov_b32 m0, s71\ns_add_u32 s74, s72, {cb*65536}")
    dma(12, RA, 74)
    A(f"s_add_u32 s71, s71, 8192")
    if i < OPT['Tslow']: A("s_waitcnt vmcnt(0)")
wide_voffset(14)
A(f"""
s_mul_i32 s66, s{sH}, {128*1152}
s_lshl_b32 s71, s68, 2
s_add_u32 s71, s71, s67
s_mul_i32 s72, s71, {8*1152}
s_add_u32 s72, s72, s66
s_add_u32 s72, s72, 1024
s_lshl_b32 s71, s71, 10
s_add_u32 s71, s71, {BIG+131072}
s_mov_b32 m0, s71
s_add_u32 s71, s71, 2048
""")
dma(14, RB, 72)
A(f"s_add_u32 s72, s72, {16*1152}\ns_mov_b32 m0, s71")
dma(14, RB, 72)
vST = 176
A(f"""
s_mul_i32 s72, s67, {8*1152}
s_lshl_b32 s74, s68, 7
s_add_u32 s72, s72, s74
s_add_u32 s72, s72, s66
s_barrier
""")
for i in range(4):
    A(f"buffer_load_dwordx4 {vr(vST+8*i,4)}, v14, {RB}, s72 offen nt")
    A(f"buffer_load_dwordx4 {vr(vST+8*i+4,4)}, v14, {RB}, s72 offen offset:512 nt")
    A(f"s_add_u32 s72, s72, {16*1152}")
A(f"v_add_u32 v17, 0x10000, v16")
ST(2, 3)
A("s_waitcnt vmcnt(10)")
ST(3, 3)
A("s_barrier")
for kp in range(16):
    a = 16 if kp < 8 else 17
    A(f"ds_read_b64_tr_b16 {vr(vUV+4*kp,2)}, v{a} offset:{(kp&7)*8192}")
    A(f"ds_read_b64_tr_b16 {vr(vUV+4*kp+2,2)}, v{a} offset:{(kp&7)*8192+512}")
    if kp % 6 == 5: A("s_waitcnt lgkmcnt(4)")
A(f"""
s_lshl_b32 s71, s67, 3
s_add_u32 s71, s71, s68
s_lshl_b32 s71, s71, 10
s_add_u32 s71, s71, {BIG}
v_add_u32 v19, s71, v9
s_add_u32 s71, s71, 65536
s_waitcnt lgkmcnt(0)
s_barrier
""")
ST(4, 3)
wide_dma(4, RB)
for i in range(8):
    A(f"s_waitcnt vmcnt({15-i})")
    A(f"ds_write_b128 v19, {vr(vST+4*i,4)} offset:{(i>>1)*16384+(i&1)*4096}")
wide_frag_addrs(BIG+131072, 0)
t_setup()
t_early("L_t")
ST(5, 3)
A("s_waitcnt vmcnt(0) lgkmcnt(0)")
ST(6, 3)
A("s_barrier")
wide_frag_reads(vWO, 4)
t_tail(4, "L_t")

A("L_F:")
if OPT['fclr']:
    A(f"s_mul_i32 s74, s{sX}, 9\ns_sub_u32 s{sF}, s{sU}, s74\ns_lshl_b32 s{sF}, s{sF}, 3\ns_add_u32 s{sF}, s{sF}, s{sX}")
    h5_clear("L_f_clr")
ST(1, 3)
DNB = BIG
if OPT['fslow']: A(f"s_cmp_lt_u32 s{sQD}, {2 if OPT['fbx'] else 0}\ns_cselect_b64 vcc, -1, 0")
for i in range(9):
    gu_dma(i)
    if i < OPT['fslow']: A(f"s_cbranch_vccnz L_fw{i}\ns_waitcnt vmcnt({OPT['fwin']})\nL_fw{i}:")
xn_frags()
if OPT['fbar']: A("s_barrier")
for i in range(9, 18): gu_dma(i)
srd(56, P_WD, 4608*1152)
wide_voffset(14)
A(f"""
v_lshrrev_b32 v19, 1, v6
v_lshrrev_b32 v21, 1, v5
v_and_b32 v22, 1, v4
v_lshl_or_b32 v21, v22, 1, v21
v_lshl_or_b32 v21, v19, 2, v21
v_xor_b32 v21, s{sW}, v21
v_lshlrev_b32 v21, 4, v21
v_lshl_add_u32 v21, v5, 7, v21
v_and_b32 v22, 1, v6
v_lshl_add_u32 v21, v22, 3, v21
v_lshl_add_u32 v21, v19, 10, v21
v_lshl_add_u32 v21, v4, 11, v21
v_add_u32 v21, {BIG}, v21
v_add_u32 v22, {8*8192}, v21
v_add_u32 v23, {16*8192}, v21
s_mul_i32 s73, s{sU}, {64*1152}
s_lshl_b32 s71, s67, 3
s_add_u32 s71, s71, s68
s_lshl_b32 s71, s71, 10
s_add_u32 s71, s71, {DNB}
s_mul_i32 s72, s67, {8*1152}
s_lshl_b32 s74, s68, 7
s_add_u32 s72, s72, s74
s_add_u32 s72, s72, s73
v_min_u32 v140, 35, v{vL}
v_lshlrev_b32 v140, 7, v140
s_mov_b32 s66, {WS_PF}
s_waitcnt vmcnt(9) lgkmcnt(0)
s_barrier
""")
def k_steps(k0, k1):
    D = 6
    def rd(k):
        d = vG + 4*(k % 8)
        A(f"ds_read_b64_tr_b16 {vr(d,2)}, v{21+(k>>3)} offset:{(k&7)*8192}")
        A(f"ds_read_b64_tr_b16 {vr(d+2,2)}, v{21+(k>>3)} offset:{(k&7)*8192+512}")
    for k in range(k0, min(k1, k0+D)): rd(k)
    for k in range(k0, k1):
        A(f"s_waitcnt lgkmcnt({2*min(D-1, k1-1-k)})")
        mf16(vD, vG+4*(k % 8), vXN+4*k, k == 0)
        if k + D < k1: rd(k + D)
k_steps(0, 9)
A(f"""
s_barrier
s_cmp_lg_u32 s{sW}, 7
s_cbranch_scc1 L_f_np
buffer_load_dword v141, v140, {WS}, s66 offen sc1
L_f_np:
""")
wide_dma(4, RB)
A(f"""
s_mul_i32 s72, s{sW}, {8*1152}
s_add_u32 s72, s72, s73
s_add_u32 s72, s72, 1024
s_lshl_b32 s71, s{sW}, 10
s_add_u32 s71, s71, {DNB+65536}
s_mov_b32 m0, s71
""")
dma(14, RB, 72)
ST(2, 3)
A("s_waitcnt vmcnt(9)")
ST(3, 3)
A("s_barrier")
k_steps(9, 18)
wide_frag_addrs(DNB+65536, DNB-BIG)
A(f"s_lshl_b32 s72, s{sU}, 7\ns_add_u32 s72, s72, {WS_H5+56*128}")
publish_setup(TS)
A(f"""
v_mul_u32_u24 v22, {HBS}, v6
v_lshl_add_u32 v21, v4, 3, v22
s_lshl_b32 s74, s{sW}, 4
v_add_u32 v21, s74, v21
v_lshl_add_u32 v22, v4, 4, v22
""")
masked_addrs(22, HB)
vWD = 144
for j in range(4): A(f"v_mov_b32 v{24+j}, v{vD+j}")
for j in range(4): A(f"v_permlane32_swap_b32 v{vD+j}, v{24+j}")
C1 = -2.0*math.sqrt(2.0/math.pi)*LOG2E
A(f"s_mov_b32 s74, {fbits(0.044715)}\ns_mov_b32 s75, {fbits(C1)}")
for j in range(4): rb16(vD+j, vD+j); rb16(24+j, 24+j)
for j in range(4): A(f"v_mul_f32 v{104+j}, v{vD+j}, v{vD+j}")
for j in range(4): A(f"v_fma_f32 v{104+j}, v{104+j}, s74, 1.0")
for j in range(4): A(f"v_mul_f32 v{104+j}, v{104+j}, v{vD+j}")
for j in range(4): A(f"v_mul_f32 v{104+j}, s75, v{104+j}")
for j in range(4): A(f"v_exp_f32 v{104+j}, v{104+j}")
for j in range(4): A(f"v_add_f32 v{104+j}, 1.0, v{104+j}")
for j in range(4): A(f"v_rcp_f32 v{104+j}, v{104+j}")
for j in range(4): A(f"v_mul_f32 v{vD+j}, v{vD+j}, v{104+j}")
for j in range(4): rb16(vD+j, vD+j)
for j in range(4): A(f"v_mul_f32 v{vD+j}, v{vD+j}, v{24+j}")
A(f"""
v_cvt_pk_bf16_f32 v24, v{vD}, v{vD+1}
v_cvt_pk_bf16_f32 v25, v{vD+2}, v{vD+3}
s_mov_b64 exec, 0x000f000f
ds_write_b64 v21, v[24:25] offset:{HB}
s_mov_b64 exec, -1
s_cmp_lg_u32 s{sW}, 7
s_cbranch_scc1 L_f_pd
s_mov_b32 s77, 0
L_f_pp:
v_cmp_ne_u32 vcc, s{sT}, v141
s_add_u32 s77, s77, 1
s_cbranch_vccz L_f_pd
s_cmp_ge_u32 s77, {POLL_MAX}
s_cbranch_scc1 L_f_pd
buffer_load_dword v141, v140, {WS}, s66 offen sc1
s_waitcnt vmcnt(0)
s_branch L_f_pp
L_f_pd:
s_waitcnt vmcnt(0) lgkmcnt(0)
""")
ST(1); ST(7, 3)
A("s_barrier")
wide_frag_reads(vWD, 2)
A("s_waitcnt lgkmcnt(6)")
wide_gemm(vWD, 2, 104, HB, TS, "L_fg")
ST(2)
finish()

QA = 131072
MXO, LSO, LCO = 2048, 8192+2048, 16384+2048
sLOC = 64
A(f"""
L_att:
s_mov_b64 exec, -1
s_cmp_ge_u32 s{sW}, 4
s_cbranch_scc1 L_att_hi
""")
ST(1, 5); ST(2, 5); ST(3, 5)
if OPT['nqal']:
    A("s_branch L_nq2\nL_att0:")
    A(PFB)
    A("L_nq2:")
late_common()
lane_consts()
A(f"""
s_waitcnt lgkmcnt(0)
s_load_dword s{sE}, s[48:49], 0
v_and_b32 v11, 2, v2
v_lshlrev_b32 v11, 1, v11
v_lshrrev_b32 v10, 2, v2
v_or_b32 v11, v11, v10
v_xor_b32 v11, v11, v3
v_lshlrev_b32 v11, 4, v11
v_lshl_add_u32 v10, v2, 10, v11
v_xor_b32 v11, 32, v10
s_lshl_b32 s70, s{sX}, 4
s_add_u32 s70, s70, s{sK}
s_lshl_b32 s66, s70, 17
s_lshl_b32 s67, s{sW}, 15
s_add_u32 s66, s66, s67
""")
srd(52, P_CKV, 4*4096*1024)
if OPT['ukw'] < 8: A(f"s_waitcnt vmcnt({OPT['ukw']})")
ST(2, 2)
LBO = list(range(8)) if not OPT['c3l'] else [0, 1, 4, 5, 6, 7, 2, 3]
nh = OPT['ckh']
if OPT['rowm']: seq = [(lb, rbi) for rbi in range(4) for lb in LBO[:8-nh]] + [(lb, rbi) for lb in LBO[8-nh:] for rbi in range(4)]
else: seq = [(lb, rbi) for lb in LBO for rbi in range(4)]
for n_, (lb, rbi) in enumerate(seq):
    if n_ in (4, 8, 16, 24): ST({4:3,8:4,16:5,24:6}[n_], 2)
    if n_ == 4*OPT['gbar']: A("s_barrier")
    A(f"s_add_u32 s68, s67, {(rbi*8+lb)*1024}\ns_mov_b32 m0, s68\ns_add_u32 s69, s66, {rbi*8192+lb*128}")
    dma(10 + (rbi & 1), RA, 69)
if OPT['gbar'] == 8: A("s_barrier")
ST(7, 2)
if OPT['stamps'] in (2, 3):
    A("s_waitcnt vmcnt(0)")
    ST(9, 2); ST(7, 3)
if OPT['exp'] == 2: A("s_branch L_end")
A(f"""
v_and_b32 v11, 2, v{vL}
v_lshlrev_b32 v11, 1, v11
v_or_b32 v11, v11, v5
v_lshrrev_b32 v12, 5, v{vL}
v_xor_b32 v11, v11, v12
v_lshlrev_b32 v11, 4, v11
v_lshl_add_u32 v11, v3, 7, v11
v_and_b32 v13, 3, v2
v_lshl_add_u32 v11, v13, 13, v11
v_add_u32 v16, s67, v11
v_add_u32 v20, {QA}, v11
""")
for t in range(1, 4): A(f"v_xor_b32 v{16+t}, {t<<5}, v16\nv_xor_b32 v{20+t}, {t<<5}, v20")
A(f"""
v_and_b32 v13, 31, v{vL}
v_lshlrev_b32 v13, 5, v13
v_add_u32 v13, {QA}, v13
s_lshl_b32 s68, s{sW}, 3
v_lshl_add_u32 v14, v12, 2, v13
v_add_u32 v14, s68, v14
s_lshl_b32 s68, s{sW}, 13
s_add_u32 s68, s68, {QA}
v_add_u32 v15, s68, v9
s_waitcnt lgkmcnt(0)
""")
get_tag()
A(f"""
s_lshl_b32 s72, s{sX}, 14
s_add_u32 s72, s72, {WS_FLG}
s_lshl_b32 s73, s{sK}, 10
s_add_u32 s73, s73, s72
s_lshl_b32 s68, s{sW}, 7
s_add_u32 s69, s72, s68
s_lshl_b32 s68, s{sK}, 5
s_add_u32 s72, s72, s68
s_lshl_b32 s74, s70, 15
s_lshl_b32 s68, s{sW}, 9
s_add_u32 s74, s74, s68
s_add_u32 s74, s74, {WS_H3A}
s_add_u32 s75, s74, 8192
s_add_u32 s78, s74, 16384
s_add_u32 s79, s74, 24576
s_lshl_b32 s70, s{sK}, 15
s_lshl_b32 s71, s{sX}, 11
s_add_u32 s70, s70, s71
s_add_u32 s70, s70, {WS_H3B}
s_lshl_b32 s71, s{sW}, 8
s_add_u32 s71, s71, s70
v_and_b32 v100, 15, v{vL}
v_and_b32 v101, 1, v4
v_lshlrev_b32 v112, 10, v100
v_lshl_add_u32 v102, v101, 4, v112
v_lshlrev_b32 v103, 11, v4
v_lshl_add_u32 v103, v100, 4, v103
v_and_b32 v104, 1, v3
v_lshlrev_b32 v104, 4, v104
v_mov_b32 v105, 0xffff
v_lshlrev_b32 v105, v104, v105
v_lshrrev_b32 v104, 1, v3
""")
for d in range(4): A(f"v_cmp_eq_u32 vcc, {d}, v104\nv_cndmask_b32 v{108+d}, 0, v105, vcc")
A(f"""
v_lshrrev_b32 v104, 2, v3
v_lshl_add_u32 v105, v104, 4, v4
v_lshlrev_b32 v105, 2, v105
v_lshlrev_b32 v106, 14, v104
v_lshl_add_u32 v106, v6, 5, v106
v_lshl_add_u32 v106, v4, 3, v106
v_and_b32 v104, 1, v2
v_lshl_add_u32 v106, v104, 7, v106
v_lshlrev_b32 v107, 14, v101
v_lshl_add_u32 v107, v100, 3, v107
v_mov_b32 v113, {QA+LCO}
""")
vS = 32; vAf = 128; vBf = 64; DEP = 8
for lb in LBO:
    last = max(i for i, (l_, r_) in enumerate(seq) if l_ == lb)
    A(f"s_waitcnt vmcnt({31-last}) lgkmcnt(8)")
    for t in range(4*lb, 4*lb+4): A(f"ds_read_b128 {vr(vAf+4*t,4)}, v{16+(t&3)} offset:{(t>>2)*1024}")
A("s_waitcnt lgkmcnt(0)\ns_setprio 2")
ST(1)
A("s_barrier")
ST(2)
def qk_read(t): A(f"ds_read_b128 {vr(vBf+4*(t % DEP),4)}, v{20+(t&3)} offset:{(t>>2)*1024}")
for t in range(DEP): qk_read(t)
for t in range(32):
    A(f"s_waitcnt lgkmcnt({min(DEP-1, 31-t)})")
    mf32(vS, vAf+4*t, vBf+4*(t % DEP), t == 0)
    if t + DEP < 32: qk_read(t + DEP)
    if t == 13: A("s_barrier")
ST(3)
A(f"v_max3_f32 v24, v{vS}, v{vS+1}, v{vS+2}\nv_max3_f32 v25, v{vS+3}, v{vS+4}, v{vS+5}\nv_max3_f32 v26, v{vS+6}, v{vS+7}, v{vS+8}")
A(f"v_max3_f32 v27, v{vS+9}, v{vS+10}, v{vS+11}\nv_max3_f32 v28, v{vS+12}, v{vS+13}, v{vS+14}")
A(f"v_max3_f32 v24, v24, v25, v26\nv_max3_f32 v27, v27, v28, v{vS+15}\nv_max_f32 v24, v24, v27")
A(f"ds_write_b32 v14, v24 offset:{MXO}\ns_waitcnt lgkmcnt(0)\ns_barrier")
A(f"""
ds_read_b128 v[24:27], v13 offset:{MXO}
ds_read_b128 v[28:31], v13 offset:{MXO+16}
s_waitcnt lgkmcnt(0)
v_max3_f32 v24, v24, v25, v26
v_max3_f32 v28, v28, v29, v30
v_max3_f32 v24, v24, v27, v31
v_max_f32 v24, v24, v28
""")
for hlf in range(2):
    for i in range(8): A(f"v_sub_f32 v{vS+8*hlf+i}, v{vS+8*hlf+i}, v24")
    for i in range(8): A(f"v_exp_f32 v{vS+8*hlf+i}, v{vS+8*hlf+i}")
    for i in range(4): A(f"v_cvt_pk_bf16_f32 v{48+4*hlf+i}, v{vS+8*hlf+2*i}, v{vS+8*hlf+2*i+1}")
    A(f"ds_write_b128 v15, {vr(48+4*hlf,4)} offset:{1024*hlf}")
    if hlf == 0:
        A("s_waitcnt lgkmcnt(0)")
        ST(4)
        A("s_barrier")
for step in (8, 4, 2, 1):
    for i in range(step): A(f"v_add_f32 v{vS+i}, v{vS+i}, v{vS+i+step}")
A(f"ds_write_b32 v14, v{vS} offset:{LSO}\ns_waitcnt lgkmcnt(0)\ns_setprio 0\ns_barrier")
vXr = 144
SO = [74, 75, 78, 79]
A(f"""
s_cmp_lg_u32 s{sW}, 0
s_cbranch_scc1 L_nost
ds_read_b128 v[28:31], v13 offset:{LSO}
ds_read_b128 v[32:35], v13 offset:{LSO+16}
ds_read_b32 v36, v113
v_mov_b32 v25, s{sT}
v_mov_b32 v27, s{sT}
s_waitcnt lgkmcnt(0)
v_add_f32 v28, v28, v29
v_add_f32 v30, v30, v31
v_add_f32 v32, v32, v33
v_add_f32 v34, v34, v35
v_readfirstlane_b32 s{sLOC}, v36
v_add_f32 v28, v28, v30
v_add_f32 v32, v32, v34
v_add_f32 v26, v28, v32
s_mov_b32 exec_hi, 0
s_cmp_lg_u32 s{sLOC}, 0
s_cbranch_scc1 L_stfar
buffer_store_dwordx4 v[24:27], v9, {WS}, s73 offen
s_branch L_stdone
L_stfar:
buffer_store_dwordx4 v[24:27], v9, {WS}, s73 offen sc1
L_stdone:
L_nost:
s_mov_b32 s77, 0
s_mov_b32 exec_hi, 0
L_rpoll:
buffer_load_dwordx4 v[32:35], v102, {WS}, s72 offen sc1
s_add_u32 s77, s77, 1
s_waitcnt vmcnt(0)
v_xor_b32 v33, s{sT}, v33
v_xor_b32 v35, s{sT}, v35
v_or_b32 v33, v33, v35
v_cmp_ne_u32 vcc, 0, v33
s_cmp_ge_u32 s77, {POLL_MAX}
s_cbranch_scc1 L_rdone
s_cbranch_vccnz L_rpoll
L_rdone:
s_mov_b64 exec, -1
""")
ST(5)
A("v_mov_b32 v36, v32")
for r in (8, 4, 2, 1): A(f"v_max_f32_dpp v36, v36, v36 row_ror:{r} {DPPF}")
A("v_sub_f32 v33, v32, v36\nv_exp_f32 v33, v33\nv_mul_f32 v37, v33, v34")
for i in range(4): A(f"ds_bpermute_b32 v{40+i}, v105, v33 offset:{16*i}")
for r in (8, 4, 2, 1): A(f"v_add_f32_dpp v37, v37, v37 row_ror:{r} {DPPF}")
A(f"""
v_cmp_gt_u32 s[66:67], 8, v100
s_waitcnt lgkmcnt(0)
""")
for i in range(4): A(f"v_cvt_pk_bf16_f32 v{44+i}, v{40+i}, v{40+i}")
for i in range(4): A(f"v_and_b32 v{80+i}, 0xffff0000, v{44+i}")
for i in range(4): A(f"v_sub_f32 v{80+i}, v{40+i}, v{80+i}")
for i in range(4): A(f"v_cvt_pk_bf16_f32 v{80+i}, v{80+i}, v{80+i}")
for i in range(4): A(f"v_cndmask_b32 v{44+i}, v{80+i}, v{44+i}, s[66:67]")
for i in range(4):
    for d in range(4): A(f"v_and_b32 v{64+4*i+d}, v{44+i}, v{108+d}")
A(f"""
s_mov_b32 s77, 0
s_mov_b64 exec, 0xffff
L_fpoll:
buffer_load_dword v32, v112, {WS}, s69 offen offset:512 sc1
s_add_u32 s77, s77, 1
s_waitcnt vmcnt(0)
v_cmp_ne_u32 vcc, s{sT}, v32
s_cmp_ge_u32 s77, {POLL_MAX}
s_cbranch_scc1 L_fdone
s_cbranch_vccnz L_fpoll
L_fdone:
s_mov_b64 exec, -1
""")
ST(6)
for i in range(4):
    for h in range(2): A(f"buffer_load_dwordx4 {vr(vXr+8*i+4*h,4)}, v103, {WS}, s{SO[i]} offen offset:{256*h} sc1{' nt' if OPT['lnt'] & 2 else ''}")
for i in range(4):
    A(f"s_waitcnt vmcnt({7-2*i})")
    mf16(40, vXr+8*i, 64+4*i, i == 0)
    A(f"s_waitcnt vmcnt({6-2*i})")
    mf16(44, vXr+8*i+4, 64+4*i, i == 0)
A(f"""
s_cmp_lg_u32 s{sW}, 1
s_cbranch_scc1 L_rnostat
s_mov_b32 exec_hi, 0
buffer_store_dwordx2 v[36:37], v107, {WS}, s70 offen offset:1024 sc1
s_mov_b64 exec, -1
L_rnostat:
s_nop 5
""")
for j in range(4): A(f"v_cndmask_b32 v{48+j}, v{40+j}, v{44+j}, s[66:67]")
for j in range(4): A(f"v_cndmask_b32 v{40+j}, v{44+j}, v{40+j}, s[66:67]")
for j in range(4): A(f"v_add_f32_dpp v{40+j}, v{48+j}, v{40+j} row_ror:8 {DPPF}")
A(f"""
v_cvt_pk_bf16_f32 v44, v40, v41
v_cvt_pk_bf16_f32 v45, v42, v43
buffer_store_dwordx2 v[44:45], v106, {WS}, s71 offen sc1
""")
ST(7)
if OPT['late'] == 1: A("s_barrier")
if OPT['wb'] in (4, 5, 6):
    if OPT['wb'] >= 5: A("s_waitcnt vmcnt(0)")
    for i in range(4):
        for h in range(2):
            A(f"buffer_store_dwordx4 {vr(vXr+8*i+4*h,4)}, v103, {WS}, s{SO[i]} offen offset:{256*h} sc1")
        if OPT['wb'] == 6: A("s_waitcnt vmcnt(0)")
if OPT['local'] and OPT['wb'] == 1:
    A(f"""
    s_cmp_lg_u32 s{sK}, 0
    s_cbranch_scc1 L_end
    s_waitcnt vmcnt(0)
    s_barrier
    s_cmp_lg_u32 s{sW}, 0
    s_cbranch_scc1 L_end
    buffer_wbl2 sc1
    """)
finish()

A("L_att_hi:")
late_common()
lane_consts()
A(f"s_load_dwordx2 s[56:57], s[0:1], 16\ns_mov_b32 s58, {576*8192}\ns_mov_b32 s59, 0x20000")
if OPT['prio']: A("s_setprio 2")
if OPT['pf'] == 1:
    A(f"""
    s_getpc_b64 s[66:67]
    L_pc:
    s_sub_u32 s66, s66, L_pc-{NAME}_kernel
    s_subb_u32 s67, s67, 0
    v_subrev_u32 v10, 256, v0
    v_lshlrev_b32 v10, 7, v10
    v_cmp_gt_u32 vcc, L_exit-{NAME}_kernel, v10
    s_and_saveexec_b64 s[68:69], vcc
    s_cbranch_execz L_nopf
    global_load_dword v255, v10, s[66:67]
    L_nopf:
    s_mov_b64 exec, -1
    """)
A(f"""
s_sub_u32 s66, s{sW}, 4
s_lshl_b32 s67, s{sX}, 15
s_lshl_b32 s68, s{sK}, 11
s_add_u32 s68, s68, s67
s_add_u32 s69, s68, {WS_H1L}
s_waitcnt lgkmcnt(0)
s_load_dword s{sE}, s[48:49], 0
s_cmp_lg_u32 s66, 1
s_cbranch_scc1 L_h_b
buffer_load_dwordx4 v[248:251], v9, {WS}, s69 offen
buffer_load_dwordx4 v[248:251], v9, {WS}, s69 offen offset:1024
L_h_b:
""")
if OPT['wqh']:
    A(f"""
    s_cmp_lt_u32 s66, 2
    s_cbranch_scc1 L_h_c
    s_lshr_b32 s68, s{sK}, 2
    s_mul_i32 s68, s68, 144
    s_and_b32 s69, s{sK}, 3
    s_lshl_b32 s69, s69, 2
    s_add_u32 s68, s68, s69
    s_lshl_b32 s69, s66, 1
    s_add_u32 s68, s68, s69
    s_add_u32 s68, s68, 124
    s_lshl_b32 s68, s68, 13
    s_lshl_b32 s69, s{sX}, 10
    s_add_u32 s68, s68, s69
    s_add_u32 s69, s68, 8192
    buffer_load_dwordx4 v[248:251], v9, {RB}, s68 offen
    buffer_load_dwordx4 v[248:251], v9, {RB}, s69 offen
    L_h_c:
    """)
A(f"""
s_lshr_b32 s67, s{sX}, 1
s_lshl_b32 s67, s67, 15
s_lshl_b32 s68, s66, 13
s_add_u32 s67, s67, s68
s_add_u32 s67, s67, {WS_H2}
s_and_b32 s69, s66, 1
s_lshl_b32 s69, s69, 1
v_xor_b32 v10, s69, v3
v_lshlrev_b32 v10, 4, v10
v_lshl_add_u32 v10, v2, 10, v10
s_add_u32 s68, s68, {QA}
v_add_u32 v16, s68, v10
v_xor_b32 v17, 64, v16
v_xor_b32 v18, 16, v16
v_xor_b32 v19, 80, v16
v_lshrrev_b32 v12, 5, v{vL}
v_and_b32 v13, 1, v4
v_lshrrev_b32 v14, 1, v6
v_lshl_or_b32 v13, v13, 1, v14
v_and_b32 v14, 2, v5
v_lshl_or_b32 v14, v14, 1, v12
v_xor_b32 v13, v13, v14
v_lshlrev_b32 v13, 4, v13
v_lshl_add_u32 v13, v5, 7, v13
v_lshl_add_u32 v13, v12, 9, v13
v_and_b32 v14, 1, v6
v_lshl_add_u32 v13, v14, 3, v13
s_lshl_b32 s68, s66, 11
v_add_u32 v20, s68, v13
v_xor_b32 v21, 32, v20
v_xor_b32 v22, 64, v20
v_xor_b32 v23, 96, v20
""")
for j in range(4): A(f"v_add_u32 v{24+j}, 0x10000, v{20+j}")
A(f"s_getreg_b32 s65, hwreg(HW_REG_XCC_ID, 0, 4)\ns_lshl_b32 s72, s{sX}, 11\ns_add_u32 s72, s72, {WS_XT}\ns_waitcnt lgkmcnt(0)")
get_tag()
A(f"""
s_cmp_lg_u32 s66, 0
s_cbranch_scc1 L_noxt
s_lshl_b32 s68, s{sK}, 7
s_add_u32 s68, s68, s72
v_mov_b32 v28, s65
v_mov_b32 v29, s{sT}
v_lshlrev_b32 v30, 3, v{vL}
s_mov_b64 exec, 0xffff
buffer_store_dwordx2 v[28:29], v30, {WS}, s68 offen sc1
s_mov_b64 exec, -1
L_noxt:
""")
A(f"""
s_add_u32 s72, s48, s72
s_addc_u32 s73, s49, 0
s_lshl_b32 s74, s{sX}, 13
s_lshl_b32 s75, s66, {8 if OPT['cpq'] else 11}
s_add_u32 s74, s74, s75
s_add_u32 s74, s74, {WS_PQ}
s_add_u32 s74, s48, s74
s_addc_u32 s75, s49, 0
s_mov_b32 s77, 0
s_sleep 32
""")
if not OPT['local']: A(f"s_mov_b32 s{sLOC}, 1")
if OPT['local']:
    A(f"s_cmp_lg_u32 s66, 0\ns_cbranch_scc1 L_nx\nL_nxp:\ns_mov_b32 s{sLOC}, 0\ns_mov_b32 s76, 0")
    for hlf in range(2):
        for i in range(8): A(f"s_load_dwordx2 s[{16+16*hlf+2*i if hlf == 0 or i < 4 else 52+2*(i-4)}:{17+16*hlf+2*i if hlf == 0 or i < 4 else 53+2*(i-4)}], s[72:73], {(8*hlf+i)*128} glc")
    A("s_waitcnt lgkmcnt(0)")
    for r in list(range(16, 40, 2)) + list(range(52, 60, 2)):
        A(f"s_xor_b32 s{r}, s{r}, s65\ns_or_b32 s{sLOC}, s{sLOC}, s{r}\ns_xor_b32 s{r+1}, s{r+1}, s{sT}\ns_or_b32 s76, s76, s{r+1}")
    A(f"s_or_b32 s{sLOC}, s{sLOC}, s76\ns_add_u32 s77, s77, 1\ns_cmp_ge_u32 s77, 8\ns_cbranch_scc1 L_nx\ns_cmp_lg_u32 s76, 0\ns_cbranch_scc1 L_nxp\nL_nx:")
A(f"""
L_xp:
s_sleep {OPT['psl']}
s_mov_b32 s76, 0
""")
if OPT['cpq']:
    A("s_load_dwordx8 s[16:23], s[74:75], 0 glc\ns_load_dwordx8 s[24:31], s[74:75], 128 glc\ns_waitcnt lgkmcnt(0)")
else:
    for i in range(16): A(f"s_load_dword s{16+i}, s[74:75], {i*128} glc")
    A("s_waitcnt lgkmcnt(0)")
for i in range(16): A(f"s_xor_b32 s{16+i}, s{16+i}, s{sT}\ns_or_b32 s76, s76, s{16+i}")
A(f"""
s_add_u32 s77, s77, 1
s_cmp_ge_u32 s77, {POLL_MAX}
s_cbranch_scc1 L_xd
s_cmp_lg_u32 s76, 0
s_cbranch_scc1 L_xp
L_xd:
""")
ST(6, 2)
if OPT['gbar'] <= 8: A("s_barrier")
if OPT['exp'] == 2: A("s_branch L_end")
ST(9)
vQ = 32
A(f"s_mov_b32 s76, 0xff\ns_mov_b32 s77, 0\ns_add_u32 s69, s67, 4096\nL_h2poll:")
for i in range(8):
    A(f"s_bitcmp1_b32 s76, {i}\ns_cbranch_scc0 L_h2i{i}")
    A(f"buffer_load_dwordx4 {vr(vQ+4*i,4)}, v9, {WS}, s{67 if i < 4 else 69} offen offset:{(i&3)*1024} sc1")
    A(f"L_h2i{i}:")
A(f"s_add_u32 s77, s77, 1\ns_cmp_eq_u32 s77, 1\ns_cbranch_scc1 L_h2first\ns_waitcnt vmcnt(0)\nL_h2first:")
for i in range(8):
    var = ((i >> 1) & 1) + 2*((i >> 2) & 1)
    q = vQ+4*i
    A(f"s_bitcmp1_b32 s76, {i}\ns_cbranch_scc0 L_h2c{i}")
    A(f"s_waitcnt vmcnt({7-i})")
    A(f"v_max3_u32 v28, v{q}, v{q+1}, v{q+2}\nv_max_u32 v28, v28, v{q+3}\nds_write_b128 v{16+var}, {vr(q,4)} offset:{i*128}\nv_cmp_eq_u32 vcc, -1, v28")
    A(f"s_cbranch_vccnz L_h2c{i}\ns_bitset0_b32 s76, {i}\nL_h2c{i}:")
A(f"""
s_waitcnt lgkmcnt(0)
s_cmp_ge_u32 s77, {POLL_MAX}
s_cbranch_scc1 L_h2done
s_cmp_eq_u32 s76, 0
s_cbranch_scc1 L_h2done
s_sleep {OPT['rsleep']}
s_branch L_h2poll
L_h2done:
""")
ST(1)
if OPT['prio']: A("s_setprio 0")
A(f"""
s_lshl_b32 s70, s{sX}, 4
s_add_u32 s70, s70, s{sK}
s_lshl_b32 s76, s70, 15
s_lshl_b32 s71, s66, 13
s_add_u32 s76, s76, s71
s_add_u32 s76, s76, {WS_H3A}
s_add_u32 s78, s76, 4096
s_lshl_b32 s75, s70, 10
s_add_u32 s75, s75, {WS_FLG}
s_barrier
""")
vV = 96; vO = 32
def vfrag(f, tau): return vV + 4*(f*4 + tau)
PR = [224+4*f for f in range(6)] + [16, 252]
def pv_reads(f):
    for tau in range(4):
        for jj in range(2):
            a = (20 if f < 4 else 24) + jj + 2*(tau & 1)
            off = (f & 3)*16384 + jj*8192 + (tau >> 1)*1024
            A(f"ds_read_b64_tr_b16 {vr(vfrag(f,tau)+2*jj,2)}, v{a} offset:{off}")
if OPT['local']:
    A(f"s_cmp_lg_u32 s66, 0\ns_cbranch_scc1 L_npt\nbuffer_load_dwordx4 v[248:251], v9, {WS}, s75 offen\nL_npt:")
    if not OPT['nopt']:
        for i in range(8): A(f"buffer_load_dwordx4 v[248:251], v9, {WS}, s{76 if i < 4 else 78} offen offset:{(i&3)*1024}")
FO = [0, 2, 4, 6, 1, 3, 5, 7]
pv_reads(FO[0])
A("s_barrier")
for n in range(1, 8):
    A("s_waitcnt lgkmcnt(6)")
    if n == 5:
        A(f"""
        v_mov_b32 v15, {QA+LCO}
        s_cmp_lg_u32 s66, 0
        s_cbranch_scc1 L_nl
        v_mov_b32 v28, s{sLOC}
        ds_write_b32 v15, v28
        L_nl:
        s_barrier
        """)
    pv_reads(FO[n])
A(f"""
v_add_u32 v10, {QA}, v9
v_and_b32 v13, 31, v{vL}
v_lshlrev_b32 v13, 4, v13
v_lshl_add_u32 v11, v12, 16, v13
s_lshl_b32 s68, s{sX}, 19
s_lshl_b32 s69, s{sK}, 11
s_add_u32 s68, s68, s69
s_lshl_b32 s70, s66, 9
s_add_u32 s68, s68, s70
s_add_u32 s68, s68, {WS_H3A}
s_lshl_b32 s71, s66, 7
s_add_u32 s71, s71, s75
v_mov_b32 v14, s{sT}
s_waitcnt lgkmcnt(0)
s_barrier
""")
ST(3)
def p_read(f): A(f"ds_read_b128 {vr(PR[f],4)}, v10 offset:{(f>>1)*8192+(f&1)*1024}")
for f in FO[:4]: p_read(f)
for n, f in enumerate(FO):
    if n < 3: A(f"s_waitcnt lgkmcnt({3-n})")
    elif n == 3: pass
    else: A(f"s_waitcnt lgkmcnt({8-n})")
    for tau in range(4): mf32(vO+16*tau, PR[f], vfrag(f,tau), n == 0)
    if n == 2:
        A("s_waitcnt lgkmcnt(0)\ns_barrier")
        for f2 in FO[4:]: p_read(f2)
        A("ds_read_b32 v15, v15")
A(f"s_waitcnt lgkmcnt(0)\nv_readfirstlane_b32 s{sLOC}, v15")
ST(4)
def pv_store(flag):
    for n, i in enumerate(range(0, 16, 2)):
        d = vV + 4*n
        A(f"v_cvt_pk_bf16_f32 v{d}, v{vO+i}, v{vO+16+i}\nv_cvt_pk_bf16_f32 v{d+2}, v{vO+i+1}, v{vO+16+i+1}")
        A(f"s_add_u32 s69, s68, {((i&3)//2 + 4*(i>>2))*32768}")
        A(f"v_cvt_pk_bf16_f32 v{d+1}, v{vO+32+i}, v{vO+48+i}\nv_cvt_pk_bf16_f32 v{d+3}, v{vO+32+i+1}, v{vO+48+i+1}")
        A(f"buffer_store_dwordx4 {vr(d,4)}, v11, {WS}, s69 offen {flag if flag or not OPT['lnt'] & 1 else 'nt'}")
    A(f"""
    s_mov_b64 exec, 1
    s_waitcnt vmcnt(0)
    buffer_store_dword v14, v8, {WS}, s71 offen offset:512 {flag}
    s_mov_b64 exec, -1
    """)
A(f"s_cmp_lg_u32 s{sLOC}, 0\ns_cbranch_scc1 L_pvfar")
pv_store("")
A("L_pvback:")
ST(5)
if OPT['late']:
    NL = OPT['nl']
    A(f"""
    s_load_dwordx4 s[16:19], s[0:1], 56
    s_load_dwordx2 s[20:21], s[0:1], 40
    s_lshr_b32 s68, s{sK}, 2
    s_and_b32 s69, s{sK}, 3
    s_mov_b32 s55, 0x20000
    s_cmp_eq_u32 s{sK}, 14
    s_cbranch_scc1 L_end
    s_cmp_ge_u32 s69, 2
    s_cbranch_scc1 L_lt_f
    s_cmp_eq_u32 s68, 3
    s_cbranch_scc1 L_lt_f
    s_lshl_b32 s70, s{sX}, 3
    s_lshl_b32 s71, s68, 1
    s_add_u32 s70, s70, s71
    s_add_u32 s70, s70, s69
    s_add_u32 s70, s70, 1
    s_mul_i32 s54, s70, {64*1152}
    s_sub_u32 s70, s54, {4*NL*1024}
    s_lshl_b32 s71, s66, 10
    s_add_u32 s70, s70, s71
    s_mov_b32 s71, 4096
    v_mov_b32 v10, v9
    s_waitcnt lgkmcnt(0)
    s_mov_b32 s52, s20
    s_mov_b32 s53, s21
    s_branch L_lt_go
    L_lt_f:
    s_lshl_b32 s70, s68, 1
    s_add_u32 s70, s70, s69
    s_lshr_b32 s71, s69, 1
    s_cmp_eq_u32 s68, 3
    s_cselect_b32 s71, s71, 2
    s_sub_u32 s70, s70, s71
    s_mul_i32 s71, s{sX}, 9
    s_add_u32 s70, s70, s71
    s_lshl_b32 s70, s70, 7
    s_lshr_b32 s71, s66, 1
    s_add_u32 s71, s71, {72-2*NL}
    s_mul_i32 s71, s71, {8*9216}
    s_add_u32 s70, s70, s71
    s_mov_b32 s71, {16*9216}
    s_mov_b32 s54, {576*9216}
    v_mul_u32_u24 v10, 9216, v2
    v_lshl_add_u32 v10, v3, 4, v10
    s_waitcnt lgkmcnt(0)
    s_bitcmp0_b32 s66, 0
    s_cselect_b32 s52, s16, s18
    s_cselect_b32 s53, s17, s19
    L_lt_go:
    """)
    if OPT['late'] == 1: A("s_barrier")
    for i in range(NL):
        A(f"buffer_load_dwordx4 v[248:251], v10, {RA}, s70 offen\ns_add_u32 s70, s70, s71")
finish()
A("L_pvfar:\ns_nop 9")
pv_store("sc1")
A("s_branch L_pvback")

A("L_end:")
if OPT['stamps']:
    A("s_waitcnt vmcnt(0)")
    ST(8)
    A(f"""
    s_waitcnt lgkmcnt(0)
    s_lshl_b32 s66, s2, 3
    s_add_u32 s66, s66, s{sW}
    s_lshl_b32 s66, s66, 6
    s_add_u32 s66, s66, {WS_ST}
    s_getreg_b32 s67, hwreg(HW_REG_XCC_ID)
    s_mov_b64 exec, 1
    v_mov_b32 v8, 0
    """)
    for i in range(3):
        A("\n".join(f"v_mov_b32 v{12+j}, s{80+2*(3*i+j)}" for j in range(3)))
        A(f"v_mov_b32 v15, {['s67','s77','s98'][i]}")
        A(f"buffer_store_dwordx4 v[12:15], v8, {WS}, s66 offen offset:{16*i}")
if OPT['hs'] >= 0:
    if OPT['hr'] == 1: A("s_cmp_ge_u32 s2, 128\ns_cbranch_scc1 L_exit")
    if OPT['hr'] == 3: A(f"s_cmp_ge_u32 s2, 128\ns_cbranch_scc1 L_exit\ns_cmp_ge_u32 s{sW}, 4\ns_cbranch_scc1 L_exit")
    if OPT['hr'] == 4: A(f"s_cmp_ge_u32 s2, 128\ns_cbranch_scc1 L_exit\ns_cmp_lt_u32 s{sW}, 4\ns_cbranch_scc1 L_exit")
    if OPT['hr'] == 2: A("s_cmp_lt_u32 s2, 128\ns_cbranch_scc1 L_exit")
    A(f"s_cmp_eq_u32 s{80+2*OPT['hs']}, 0\ns_cbranch_scc1 L_exit")
    A(f"L_hold2:\ns_memrealtime s[66:67]\ns_waitcnt lgkmcnt(0)\ns_sub_u32 s68, s66, s{80+2*OPT['hs']}\ns_cmp_lt_u32 s68, 4000\ns_cbranch_scc1 L_hold2")
if OPT['hold']:
    A(f"L_hold:\ns_memrealtime s[66:67]\ns_waitcnt lgkmcnt(0)\ns_sub_u32 s68, s66, s80\ns_cmp_lt_u32 s68, {OPT['hold']}\ns_cbranch_scc1 L_hold")
A("L_exit:\ns_endpgm")
A.raw(f""".section .rodata,"a"
.p2align 6
.amdhsa_kernel {NAME}_kernel
  .amdhsa_next_free_vgpr 256
  .amdhsa_next_free_sgpr 102
  .amdhsa_accum_offset 256
  .amdhsa_group_segment_fixed_size 0
  .amdhsa_kernarg_size 104
  .amdhsa_user_sgpr_count 2
  .amdhsa_user_sgpr_kernarg_segment_ptr 1
  .amdhsa_system_sgpr_workgroup_id_x 1
  .amdhsa_float_denorm_mode_32 3
.end_amdhsa_kernel""")
sys.stdout.write(A.text())
sys.stderr.write(f"instructions {A.count} nops {A.nops}\n")
```

```python
import sys, math, struct
from asmx import Asm, NAME

OPT = dict(stamps=0, local=1, hold=0, pf=2, exp=0, gbar=8, rsleep=2, help=5, fslow=2, tslow=0, wb=0, gap=0, prio=1, ukw=0, wqh=1, adel=0, psl=4, cpq=1, hb=1, noclr=0, nopt=0, hslow=0, gslow=0, Tslow=0, areg=1, pvp=1, ckh=1, lnt=0, c3l=0, rowm=0, fclr=0, late=0, nl=8, bpre=1, fhelp=0, pearly=0, pfirst=0, fbar=1, fwin=0, fbx=1, nqal=0, fv=0, pvq=3, ptl=1, bard=0, c2pos=2, hs=-1, hr=0)
for a in sys.argv[1:]:
    k, v = a.split("="); assert k in OPT, k; OPT[k] = int(v)

WS_PF  = 0x010000
WS_FF  = 0x020000
WS_XT  = 0x030000
WS_H1  = 0x040000
WS_H1L = 0x0C0000
WS_H2  = 0x080000
WS_PQ  = 0x0A0000
WS_FLG = 0x100000
WS_H3B = 0x140000
WS_H5  = 0x200000
WS_H3A = 0x400000
WS_ST  = 0x800000
POLL_MAX = 60000 if not OPT['exp'] else 40

P_X, P_CKV, P_WQ, P_WUK, P_WUV, P_WO, P_BX, P_WG, P_WU, P_WD, P_OUT, P_DBG = [16+2*i for i in range(12)]
sSL, sF = 40, 41
sE, sT, sW, sX, sK, sH = 42, 43, 44, 45, 46, 47
WS = "s[48:51]"; RA = "s[52:55]"; RB = "s[56:59]"; RC = "s[60:63]"
sQD, sA_ = 64, 65
A = Asm()
HW = '\ns_waitcnt vmcnt(0)' if OPT['hslow'] else ''
NQPART = [True]

def srd(base, ptr, size):
    A(f"s_mov_b32 s{base}, s{ptr}\ns_mov_b32 s{base+1}, s{ptr+1}\ns_mov_b32 s{base+2}, {size}\ns_mov_b32 s{base+3}, 0x20000")
def ST(i, mode=1):
    if OPT['stamps'] == mode or (OPT['stamps'] and i in (0, 8)): A(f"s_memrealtime s[{80+2*i}:{81+2*i}]")
def vr(a, n): return f"v[{a}:{a+n-1}]"
def dma(voff, rsrc, soff, flags="nt"):
    A(f"buffer_load_dwordx4 v{voff}, {rsrc}, s{soff} offen {flags} lds")
def finish(): A("s_branch L_end")
def get_tag():
    A(f"s_add_u32 s{sE}, s{sE}, 1\ns_mul_i32 s{sT}, s{sE}, 0x9E3779B1\ns_xor_b32 s{sT}, s{sT}, 0x5BD1E995")
def rb16(dst, src):
    A(f"v_cvt_pk_bf16_f32 v{dst}, v{src}, v{src}\nv_lshlrev_b32 v{dst}, 16, v{dst}")
DPPF = "row_mask:0xf bank_mask:0xf"
QP1 = "quad_perm:[1,0,3,2] " + DPPF
def wave_sum_to_sgpr(v, s):
    for r in (8, 4, 2, 1): A(f"v_add_f32_dpp v{v}, v{v}, v{v} row_ror:{r} {DPPF}")
    A(f"v_add_f32_dpp v{v}, v{v}, v{v} row_bcast:15 row_mask:0xa bank_mask:0xf")
    A(f"v_add_f32_dpp v{v}, v{v}, v{v} row_bcast:31 row_mask:0xc bank_mask:0xf")
    A(f"v_readlane_b32 s{s}, v{v}, 63")
def fbits(x): return "0x%08x" % struct.unpack("<I", struct.pack("<f", x))[0]
def mf16(d, a, b, first): A(f"v_mfma_f32_16x16x32_bf16 {vr(d,4)}, {vr(a,4)}, {vr(b,4)}, {'0' if first else vr(d,4)}")
def mf32(d, a, b, first): A(f"v_mfma_f32_32x32x16_bf16 {vr(d,16)}, {vr(a,4)}, {vr(b,4)}, {'0' if first else vr(d,16)}")
def ones(v): A("\n".join(f"v_mov_b32 v{v+j}, -1" for j in range(4)))
LOG2E = 1.4426950408889634

HDR = """; Kernarg layout (104 bytes, pointers only, base s[0:1]):
; Compressed-KV attention in absorbed form:  q_abs = (LN(x) W_q) W_uk^T,  latent = softmax(q_abs c_kv^T) c_kv,
; s = (latent W_uv) W_o;  gate branch y = (gelu(LN(x) W_g) * LN(x) W_u) W_d;  out = x + s * silu(y).
; Hand-offs go through d_ws: words tagged with a per-launch value derived from d_ws[0], or areas cleared in this launch.
; Stores stay in the die's L2 only after a run-time check that all 16 partners report the same die id."""
for l_ in HDR.split("\n"): A.raw(l_)
A.raw("; @launch grid=(256,1,1) block=(512,1,1) lds=163840")
A.raw('.amdgcn_target "amdgcn-amd-amdhsa--gfx950"')
A.raw(f".text\n.globl {NAME}_kernel\n.p2align 8\n.type {NAME}_kernel,@function\n{NAME}_kernel:")
vL = 1
BIG = 16384
WQB = BIG + 108*1024
def late_common():
    A(f"""
    s_load_dwordx2 s[48:49], s[0:1], 96
    s_load_dwordx16 s[16:31], s[0:1], 0
    s_load_dwordx8 s[32:39], s[0:1], 64
    s_mov_b32 s50, 0x10000000
    s_mov_b32 s51, 0x20000
    s_mov_b32 s55, 0x20000
    """)
ST(0)
A(f"""
s_load_dwordx2 s[60:61], s[0:1], 24
s_lshr_b32 s3, s2, 7
s_cbranch_scc1 L_nq
v_lshrrev_b32 v3, 6, v0
v_and_b32 v{vL}, 63, v0
v_lshlrev_b32 v9, 4, v{vL}
v_lshl_add_u32 v2, v3, 13, v9
s_and_b32 s{sX}, s2, 7
s_lshl_b32 s68, s{sX}, 10
s_lshr_b32 s{sK}, s2, 3
s_lshl_b32 s69, s{sK}, 18
s_add_u32 s68, s68, s69
v_add_u32 v2, s68, v2
""")
if OPT['pfirst']:
    A(f"s_getpc_b64 s[66:67]\nv_lshlrev_b32 v4, 1, v0\nglobal_load_dword v247, v4, s[66:67] offset:64")
A("s_waitcnt lgkmcnt(0)")
for i in range(4):
    A("global_load_dwordx4 v[248:251], v2, s[60:61]")
    if i < 3: A("v_add_u32 v2, 0x10000, v2")
PFB = f"""
v_readfirstlane_b32 s{sW}, v3
v_lshlrev_b32 v2, 7, v0
v_cmp_gt_u32 vcc, L_exit-L_pc, v2
s_and_saveexec_b64 s[68:69], vcc
s_cbranch_execz L_att
global_load_dword v247, v2, s[66:67]
s_branch L_att
"""
A("s_getpc_b64 s[66:67]\nL_pc:")
if OPT['nqal']: A("s_branch L_att0")
else: A(PFB)
A(f"""
L_nq:
s_load_dwordx2 s[56:57], s[0:1], 16
s_load_dwordx2 s[52:53], s[0:1], 0
v_lshrrev_b32 v2, 6, v0
s_and_b32 s{sX}, s2, 7
s_mov_b32 s59, 0x20000
v_readfirstlane_b32 s{sW}, v2
s_cmp_ge_u32 s2, 256
s_cbranch_scc1 L_exit
s_movk_i32 s70, 128
v_bfe_u32 v2, v0, 3, 4
v_lshrrev_b32 v3, 8, v0
v_lshl_add_u32 v3, v3, 4, v2
v_lshrrev_b32 v11, 1, v2
v_and_b32 v11, 4, v11
v_and_or_b32 v11, v2, 2, v11
v_xor_b32 v11, v11, v0
v_and_b32 v11, 7, v11
v_lshlrev_b32 v11, 4, v11
v_and_or_b32 v12, v0, s70, v11
v_lshl_add_u32 v12, v3, 13, v12
s_bfe_u32 s{sA_}, s2, 0x20005
s_bfe_u32 s{sQD}, s2, 0x20003
s_lshl2_add_u32 s{sH}, s{sX}, s{sA_}
s_mul_i32 s72, s{sQD}, {18*65536}
s_lshl_b32 s73, s{sH}, 8
s_add_u32 s72, s72, s73
s_mov_b32 s58, {576*8192}
s_and_b32 s67, s{sW}, 1
s_bfe_u32 s69, s{sW}, 0x10001
s_and_b32 s71, s{sW}, 4
s_lshl1_add_u32 s71, s67, s71
s_add_u32 s71, s71, s69
s_lshl_b32 s71, s71, 10
s_add_u32 m0, s71, {WQB}
""")
A(f"""
v_and_b32 v{vL}, 63, v0
s_mul_i32 s66, s{sW}, 1152
v_lshl_add_u32 v13, v{vL}, 3, s66
v_lshl_add_u32 v14, v{vL}, 1, s66
s_lshr_b32 s70, s{sW}, 2
""")
ST(1, 5)
A("s_waitcnt lgkmcnt(0)")
ST(2, 5)
A("""
s_cbranch_scc1 L_nq_nox
global_load_dwordx2 v[20:21], v13, s[52:53]
global_load_dwordx2 v[22:23], v13, s[52:53] offset:512
global_load_ushort v24, v14, s[52:53] offset:1024
L_nq_nox:
""")
for i in range(4):
    dma(12, RB, 72)
    A(f"s_add_u32 s72, s72, {4*65536}\ns_add_u32 m0, s71, {WQB+8192*(i+1)}")
A(f"s_cmp_lg_u32 s70, 0\ns_cbranch_scc1 L_nq_d4")
dma(12, RB, 72)
A("L_nq_d4:")
ST(3, 5)
if OPT['nqal']:
    A("s_branch L_nq2\nL_att0:")
    A(PFB)
    A("L_nq2:")
late_common()
A(f"""
s_lshr_b32 s{sK}, s2, 3
v_lshlrev_b32 v9, 4, v{vL}
s_mov_b32 s62, {512*8192}
s_mov_b32 s63, 0x20000
""")
def lane_consts():
    A(f"v_lshrrev_b32 v2, 3, v{vL}\nv_and_b32 v3, 7, v{vL}\nv_lshrrev_b32 v4, 4, v{vL}\nv_bfe_u32 v5, v{vL}, 2, 2\nv_and_b32 v6, 3, v{vL}\nv_lshlrev_b32 v7, 4, v0\nv_mov_b32 v8, 0")
    if OPT['stamps']:
        for i in range(82 if OPT['stamps'] != 5 else 88, 102): A(f"s_mov_b32 s{i}, 0")

XN, XNS = 0, 1216
QL, QLS = 5120, 320
HB, HBS = 9728, 192
vTR = 13
vD = 28
def common_setup():
    lane_consts()
    A(f"""
    s_and_b32 s67, s{sW}, 1
    s_lshl_b32 s68, s67, 2
    v_and_b32 v11, 2, v2
    v_or_b32 v11, s68, v11
    v_xor_b32 v11, v11, v3
    v_lshlrev_b32 v11, 4, v11
    v_lshl_add_u32 v12, v2, 13, v11
    s_lshr_b32 s68, s{sW}, 1
    s_bfe_u32 s69, s{sW}, 0x10001
    s_lshr_b32 s70, s{sW}, 2
    """)
def common_setup2():
    A(f"""
    s_and_b32 s74, s{sW}, 3
    s_lshl_b32 s74, s74, 1
    v_lshrrev_b32 v{vTR}, 1, v6
    v_or_b32 v{vTR}, s74, v{vTR}
    v_and_b32 v14, 2, v5
    v_xor_b32 v{vTR}, v{vTR}, v14
    v_and_b32 v14, 1, v4
    v_lshlrev_b32 v15, 2, v14
    v_xor_b32 v{vTR}, v{vTR}, v15
    v_lshlrev_b32 v{vTR}, 4, v{vTR}
    v_lshl_add_u32 v{vTR}, v5, 7, v{vTR}
    v_and_b32 v15, 1, v6
    v_lshl_add_u32 v{vTR}, v15, 3, v{vTR}
    s_lshl_b32 s74, s70, 10
    s_add_u32 s74, s74, {BIG}
    v_add_u32 v15, s74, v{vTR}
    v_lshl_add_u32 v16, v4, 11, v15
    v_mul_u32_u24 v18, {XNS}, v6
    v_lshl_add_u32 v18, v4, 4, v18
    s_mov_b32 s78, 0x000f000f
    s_mov_b32 s79, 0x000f000f
    """)
def x_loads():
    A(f"""
    s_mul_i32 s66, s{sW}, 1152
    v_lshlrev_b32 v10, 3, v{vL}
    v_lshlrev_b32 v19, 1, v{vL}
    buffer_load_dwordx2 v[20:21], v10, {RA}, s66 offen
    buffer_load_dwordx2 v[22:23], v10, {RA}, s66 offen offset:512
    buffer_load_ushort v24, v19, {RA}, s66 offen offset:1024
    """)
def layernorm():
    e = list(range(56, 65))
    for i in range(4): A(f"v_lshlrev_b32 v{e[2*i]}, 16, v{20+i}\nv_and_b32 v{e[2*i+1]}, 0xffff0000, v{20+i}")
    A(f"""
    v_lshlrev_b32 v{e[8]}, 16, v24
    v_add_f32 v25, v{e[0]}, v{e[1]}
    v_add_f32 v26, v{e[2]}, v{e[3]}
    v_add_f32 v27, v{e[4]}, v{e[5]}
    v_add_f32 v28, v{e[6]}, v{e[7]}
    v_add_f32 v25, v25, v26
    v_add_f32 v27, v27, v28
    v_add_f32 v25, v25, v{e[8]}
    v_add_f32 v25, v25, v27
    """)
    wave_sum_to_sgpr(25, 74)
    A(f"v_mov_b32 v26, {fbits(1.0/576)}\nv_mul_f32 v26, s74, v26")
    A(f"v_sub_f32 v27, v{e[0]}, v26\nv_mul_f32 v25, v27, v27")
    for i in range(1, 9): A(f"v_sub_f32 v27, v{e[i]}, v26\nv_fmac_f32 v25, v27, v27")
    rb16(26, 26)
    for i in range(9): A(f"v_sub_f32 v{e[i]}, v{e[i]}, v26")
    wave_sum_to_sgpr(25, 74)
    A(f"v_mov_b32 v27, {fbits(1.0/576)}\nv_mul_f32 v27, s74, v27")
    rb16(27, 27)
    A(f"v_add_f32 v27, {fbits(1e-5)}, v27")
    rb16(27, 27)
    A("v_sqrt_f32 v27, v27")
    rb16(27, 27)
    A("v_rcp_f32 v27, v27")
    for i in range(0, 8, 2): A(f"v_cvt_pk_bf16_f32 v{20+i//2}, v{e[i]}, v{e[i+1]}")
    A(f"v_cvt_pk_bf16_f32 v24, v{e[8]}, v{e[8]}")
    for i in range(0, 8, 2): A(f"v_lshlrev_b32 v{e[i]}, 16, v{20+i//2}\nv_and_b32 v{e[i+1]}, 0xffff0000, v{20+i//2}")
    A(f"v_lshlrev_b32 v{e[8]}, 16, v24")
    for i in range(9): A(f"v_mul_f32 v{e[i]}, v{e[i]}, v27")
    for i in range(0, 8, 2): A(f"v_cvt_pk_bf16_f32 v{20+i//2}, v{e[i]}, v{e[i+1]}")
    A(f"v_cvt_pk_bf16_f32 v24, v{e[8]}, v{e[8]}")
    A(f"""
    s_mul_i32 s74, s{sW}, {XNS}
    v_add_u32 v10, s74, v10
    v_add_u32 v19, s74, v19
    ds_write_b64 v10, v[20:21] offset:{XN}
    ds_write_b64 v10, v[22:23] offset:{XN+512}
    ds_write_b16 v19, v24 offset:{XN+1024}
    """)
def clear_tail_inbox(vones):
    A(f"s_lshl_b32 s74, s{sH}, 14\ns_add_u32 s74, s74, {WS_H3B}")
    for i in range(4):
        A(f"buffer_store_dwordx4 {vr(vones,4)}, v9, {WS}, s74 offen sc1\nbuffer_store_dwordx4 {vr(vones,4)}, v9, {WS}, s74 offen offset:2048 sc1")
        if i < 3: A("s_add_u32 s74, s74, 4096")
    A(f"s_sub_u32 s74, s74, {3*4096}\nv_lshlrev_b32 v14, 11, v2\nv_lshl_add_u32 v14, v3, 4, v14")
    A(f"buffer_store_dwordx4 {vr(vones,4)}, v14, {WS}, s74 offen offset:1024 sc1")
def proof(sidx):
    A(f"""
    s_lshl_b32 s74, s{sidx}, 7
    s_add_u32 s74, s74, {WS_PF}
    v_mov_b32 v14, s{sT}
    v_lshlrev_b32 v17, 2, v{vL}
    s_mov_b32 exec_hi, 0
    buffer_store_dword v14, v17, {WS}, s74 offen sc1
    s_mov_b64 exec, -1
    """)
vXN, vG = 32, 104
def xn_frags():
    for kp in range(18):
        A(f"ds_read_b128 {vr(vXN+4*kp,4)}, v18 offset:{XN+kp*64}")
        if kp == 11: A("s_waitcnt lgkmcnt(4)")
def k_half(h, va, vb):
    for kp in range(9):
        a, off = (va, kp*8192) if kp < 8 else (vb, 0)
        A(f"ds_read_b64_tr_b16 {vr(vG+4*kp,2)}, v{a} offset:{off}")
        A(f"ds_read_b64_tr_b16 {vr(vG+4*kp+2,2)}, v{a} offset:{off+512}")
        if kp == 5: A("s_waitcnt lgkmcnt(6)")
    for kp in range(9):
        A(f"s_waitcnt lgkmcnt({min(15,2*(8-kp))})")
        mf16(vD, vG+4*kp, vXN+4*(9*h+kp), h == 0 and kp == 0)

QP, QPS = 5120, 272
UKB = BIG
sU = 76
def f_setup():
    A(f"""
    s_lshl_b32 s71, s{sA_}, 1
    s_add_u32 s71, s71, s{sQD}
    s_lshr_b32 s72, s{sQD}, 1
    s_cmp_eq_u32 s{sA_}, 3
    s_cselect_b32 s72, s72, 2
    s_sub_u32 s71, s71, s72
    s_mul_i32 s{sU}, s{sX}, 9
    s_add_u32 s{sU}, s{sU}, s71
    s_cmp_eq_u32 s69, 0
    s_cselect_b32 s60, s{P_WG}, s{P_WU}
    s_cselect_b32 s61, s{P_WG+1}, s{P_WU+1}
    s_mov_b32 s62, {576*9216}
    s_lshl_b32 s72, s67, 1
    s_lshl_b32 s71, s69, 2
    s_or_b32 s72, s72, s71
    v_bfe_u32 v14, v2, 1, 1
    v_or_b32 v14, s72, v14
    v_xor_b32 v14, v14, v3
    v_lshlrev_b32 v14, 4, v14
    v_mul_u32_u24 v12, 9216, v2
    v_add_u32 v12, v12, v14
    s_lshl_b32 s71, s70, 1
    s_add_u32 s71, s71, s67
    s_mul_i32 s72, s71, {8*9216}
    s_lshl_b32 s74, s{sU}, 7
    s_add_u32 s72, s72, s74
    s_lshl_b32 s71, s71, 1
    s_add_u32 s71, s71, s69
    s_lshl_b32 s71, s71, 10
    s_add_u32 s71, s71, {BIG}
    """)
def gu_dma(i):
    A(f"s_mov_b32 m0, s71\ns_add_u32 s71, s71, 8192")
    dma(12, RC, 72)
    A(f"s_add_u32 s72, s72, {32*9216}")
lane_consts()
A(f"""
v_lshl_add_u32 v12, v2, 13, v11
s_lshl_b32 s74, s69, 7
s_add_u32 s73, s73, s74
s_mov_b32 s54, 4608
v_lshlrev_b32 v10, 3, v{vL}
v_lshlrev_b32 v19, 1, v{vL}
s_waitcnt lgkmcnt(0)
s_load_dword s{sE}, s[48:49], 0
""")
ST(1, 2)
A(f"s_lshr_b32 s68, s{sW}, 1\ns_cmp_ge_u32 s{sQD}, 2\ns_cbranch_scc1 L_nq_fs")
A(f"""
s_lshl_b32 s71, s70, 3
s_add_u32 s71, s71, s67
s_lshl_b32 s72, s{sQD}, 5
s_add_u32 s72, s72, s71
s_lshl_b32 s72, s72, 16
s_add_u32 s72, s72, s73
s_lshl_b32 s71, s71, 1
s_add_u32 s71, s71, s69
s_lshl_b32 s71, s71, 10
s_add_u32 s71, s71, {UKB}
s_cmp_eq_u32 s70, 0
s_cbranch_scc1 L_nq_ln
""")
ones(24)
A(f"""
s_lshl_b32 s75, s{sW}, 12
s_lshl_b32 s74, s{sH}, 14
s_add_u32 s74, s74, s75
s_add_u32 s74, s74, {WS_H3B-16384}
buffer_store_dwordx4 v[24:27], v9, {WS}, s74 offen sc1
buffer_store_dwordx4 v[24:27], v9, {WS}, s74 offen offset:2048 sc1
s_mov_b64 exec, 0xff
buffer_store_dwordx4 v[24:27], v9, {WS}, s74 offen offset:1024 sc1
buffer_store_dwordx4 v[24:27], v9, {WS}, s74 offen offset:3072 sc1
s_lshl_b32 s75, s{sW}, 15
s_lshl_b32 s74, s{sH}, 10
s_add_u32 s74, s74, s75
s_lshl_b32 s75, s{sQD}, 9
s_add_u32 s74, s74, s75
s_add_u32 s74, s74, {WS_H2-4*32768}
s_mov_b32 exec_lo, -1
buffer_store_dwordx4 v[24:27], v9, {WS}, s74 offen sc1
s_mov_b64 exec, -1
s_branch L_nq_noln
L_nq_fs:
s_cmp_lg_u32 s{sK}, 30
s_cbranch_scc1 L_nq_fs2
s_cmp_eq_u32 s70, 0
s_cbranch_scc1 L_nq_ln
""")
ones(24)
A(f"""
s_lshl_b32 s75, s{sW}, 12
s_lshl_b32 s74, s{sH}, 14
s_add_u32 s74, s74, s75
s_add_u32 s74, s74, {WS_H3B-16384}
buffer_store_dwordx4 v[24:27], v9, {WS}, s74 offen sc1
buffer_store_dwordx4 v[24:27], v9, {WS}, s74 offen offset:2048 sc1
s_mov_b64 exec, 0xff
buffer_store_dwordx4 v[24:27], v9, {WS}, s74 offen offset:1024 sc1
buffer_store_dwordx4 v[24:27], v9, {WS}, s74 offen offset:3072 sc1
s_mov_b64 exec, -1
s_branch L_nq_noln
L_nq_fs2:
""")
f_setup()
A(f"s_cmp_lg_u32 s70, 0\ns_cbranch_scc1 L_nq_noln\nL_nq_ln:\ns_waitcnt vmcnt(5)")
ST(2, 2)
layernorm()
A("L_nq_noln:")
ST(3, 2)
common_setup2()
A(f"""
v_add_u32 v21, {WQB-BIG}, v16
v_and_b32 v14, 1, v4
v_lshl_add_u32 v17, v14, 11, v15
v_add_u32 v17, {WQB-BIG}, v17
s_mul_i32 s74, s{sQD}, 288
v_add_u32 v19, s74, v18
s_lshl_b32 s66, s{sH}, 13
s_add_u32 s66, s66, {WS_H1L}
s_lshl_b32 s75, s{sQD}, 11
s_add_u32 s75, s75, s66
s_lshl_b32 s77, s{sW}, 8
s_add_u32 s75, s75, s77
v_lshlrev_b32 v20, 6, v6
v_lshl_add_u32 v20, v4, 4, v20
v_cmp_gt_u32 vcc, 2, v4
s_cmp_lt_u32 s{sQD}, 2
s_cbranch_scc1 L_nq_uk
s_waitcnt vmcnt(0)
""")
for i in range(OPT['gap']): gu_dma(i)
A(f"""
s_branch L_nq_a
L_nq_uk:
s_waitcnt vmcnt(5)
s_cmp_lg_u32 s70, 0
s_cbranch_scc1 L_nq_uk2
s_waitcnt vmcnt(0)
L_nq_uk2:
""")
for i in range(4):
    A(f"s_mov_b32 m0, s71\ns_add_u32 s71, s71, 4096")
    dma(12, RC, 72)
    A(f"s_add_u32 s72, s72, {2*65536}")
A("L_nq_a:\ns_waitcnt lgkmcnt(0)")
ST(1); ST(5, 2)
A("s_barrier")
vA, vB = 64, 96
for kp in range(5):
    a = 21 if kp < 4 else 17
    A(f"ds_read_b64_tr_b16 {vr(vA+4*kp,2)}, v{a} offset:{kp*8192}")
    A(f"ds_read_b64_tr_b16 {vr(vA+4*kp+2,2)}, v{a} offset:{kp*8192+512}")
    A(f"ds_read_b128 {vr(vB+4*kp,4)}, v19 offset:{XN+kp*64}")
get_tag()
A(f"v_mov_b32 v25, s{sT}\nv_mov_b32 v27, s{sT}")
for kp in range(5):
    A(f"s_waitcnt lgkmcnt({3*(4-kp)})")
    if kp == 4:
        for j in range(4): A(f"v_cndmask_b32 v{vB+16+j}, 0, v{vB+16+j}, vcc")
    mf16(vD, vA+4*kp, vB+4*kp, kp == 0)
H1D = WS_H1L - WS_H1
def pq_addr():
    if OPT['cpq']:
        return f"""v_lshlrev_b32 v55, 13, v{vL}
        s_lshl_b32 s76, s{sX}, 7
        s_lshl_b32 s74, s{sA_}, 3
        s_add_u32 s76, s76, s74
        s_lshl_b32 s74, s{sQD}, 2
        s_add_u32 s76, s76, s74
        s_add_u32 s76, s76, {WS_PQ}"""
    return f"""v_lshlrev_b32 v55, 13, v2
    v_lshl_add_u32 v55, v3, 4, v55
    s_lshl_b32 s76, s{sH}, 8
    s_lshl_b32 s74, s{sQD}, 7
    s_add_u32 s76, s76, s74
    s_add_u32 s76, s76, {WS_PQ}"""
PQST = f"s_mov_b64 exec, 0xff\nbuffer_store_dword v44, v55, {WS}, s76 offen sc1\ns_mov_b64 exec, -1" if OPT['cpq'] else f"buffer_store_dwordx4 v[44:47], v55, {WS}, s76 offen sc1"
A(f"""
v_and_b32 v52, 1, v2
v_and_b32 v53, 2, v3
v_lshl_or_b32 v53, v52, 2, v53
v_xor_b32 v53, v53, v4
v_lshlrev_b32 v53, 4, v53
v_lshl_add_u32 v53, v3, 7, v53
v_lshl_add_u32 v52, v52, 11, v53
v_cvt_pk_bf16_f32 v24, v{vD}, v{vD+1}
v_cvt_pk_bf16_f32 v26, v{vD+2}, v{vD+3}
s_mov_b64 exec, s[78:79]
buffer_store_dwordx4 v[24:27], v20, {WS}, s75 offen
s_sub_u32 s75, s75, {H1D}
s_cmp_lt_u32 s{sQD}, 2
s_cbranch_scc1 L_nq_b
buffer_store_dwordx4 v[24:27], v20, {WS}, s75 offen sc1
s_mov_b64 exec, -1
""")
ST(2); ST(6, 2)
A(f"s_barrier\ns_cmp_eq_u32 s{sK}, 30\ns_cbranch_scc1 L_T")
if OPT['ckh']:
    nb = OPT['ckh']; lpr = 8*nb; rpi = 64//lpr
    A(f"""
    s_mov_b32 s56, s{P_CKV}
    s_mov_b32 s57, s{P_CKV+1}
    s_lshl_b32 s74, s{sA_}, 1
    s_add_u32 s74, s74, s{sQD}
    s_sub_u32 s74, s74, 2
    s_min_u32 s74, s74, 6
    s_lshl_b32 s74, s74, 3
    s_add_u32 s74, s74, s{sW}
    s_mul_i32 s74, s74, {rpi*1024}
    s_lshl_b32 s75, s{sX}, 21
    s_add_u32 s74, s74, s75
    s_add_u32 s58, s75, {1 << 21}
    v_lshrrev_b32 v48, {int(math.log2(lpr))}, v{vL}
    v_and_b32 v49, {lpr-1}, v{vL}
    v_lshlrev_b32 v48, 10, v48
    v_lshl_add_u32 v48, v49, 4, v48
    """)
    n = -(-2048 // (56*rpi))
    for i in range(n):
        A(f"buffer_load_dwordx4 v[248:251], v48, {RB}, s74 offen offset:{(1024-128*nb) if not OPT['c3l'] else (384 if nb == 1 else 256)}")
        if i < n-1: A(f"s_add_u32 s74, s74, {56*rpi*1024}")
A(f"s_branch L_F\nL_nq_b:\ns_mov_b64 exec, -1")
ST(2); ST(6, 2)
if OPT['pearly']:
    A(f"s_waitcnt vmcnt(5)\ns_barrier\ns_lshl_b32 s77, s{sQD}, 1\ns_cmp_lg_u32 s{sW}, s77\ns_cbranch_scc1 L_pe\n{pq_addr()}\nv_mov_b32 v44, s{sT}\n{PQST}\nL_pe:")
    A(f"s_add_u32 s71, s71, 16384\ns_add_u32 s72, s72, {8*65536}")
else:
    A(f"s_barrier\ns_add_u32 s71, s71, 16384\ns_add_u32 s72, s72, {8*65536}")
for i in range(4):
    A(f"s_mov_b32 m0, s71\ns_add_u32 s71, s71, 4096")
    dma(12, RC, 72)
    if i < 3: A(f"s_add_u32 s72, s72, {2*65536}")
A(f"""
s_mul_i32 s74, s68, {4*QPS}
s_lshl_b32 s77, s67, 7
s_add_u32 s74, s74, s77
v_mul_u32_u24 v22, {QPS}, v5
v_lshl_add_u32 v22, v4, 5, v22
v_lshl_add_u32 v22, v6, 3, v22
v_add_u32 v22, s74, v22
s_lshl_b32 s77, s{sW}, 13
s_add_u32 s77, s77, {UKB}
v_add_u32 v52, s77, v52
v_xor_b32 v53, 64, v52
v_and_b32 v23, 15, v{vL}
v_mul_u32_u24 v23, {QPS}, v23
v_lshl_add_u32 v23, v4, 4, v23
s_lshl_b32 s72, s{sH}, 10
s_lshl_b32 s74, s{sQD}, 9
s_add_u32 s72, s72, s74
s_lshl_b32 s74, s{sW}, 6
s_add_u32 s72, s72, s74
s_add_u32 s72, s72, {WS_H2}
v_and_b32 v21, 1, v5
v_lshlrev_b32 v54, 15, v6
{pq_addr()}
v_mov_b32 v44, s{sT}
v_mov_b32 v45, s{sT}
v_mov_b32 v46, s{sT}
v_mov_b32 v47, s{sT}
v_lshl_add_u32 v54, v21, 5, v54
v_lshl_add_u32 v54, v4, 3, v54
s_sub_u32 s71, s66, {H1D}
s_mov_b32 s77, 0
L_h1poll:
s_cmp_lg_u32 s77, 6
s_cbranch_scc1 L_h1ng
s_mov_b64 exec, s[78:79]
buffer_store_dwordx4 v[24:27], v20, {WS}, s75 offen sc1
s_mov_b64 exec, -1
L_h1ng:
s_and_b32 s74, s77, 9
s_cmp_eq_u32 s74, 9
s_cselect_b32 s74, s71, s66
buffer_load_dwordx4 v[48:51], v7, {WS}, s74 offen sc1
s_add_u32 s77, s77, 1
s_waitcnt vmcnt(0)
v_xor_b32 v49, s{sT}, v49
v_xor_b32 v51, s{sT}, v51
v_or_b32 v49, v49, v51
v_cmp_ne_u32 vcc, 0, v49
s_cmp_ge_u32 s77, {POLL_MAX}
s_cbranch_scc1 L_h1done
s_cbranch_vccnz L_h1poll
L_h1done:
v_mov_b32 v49, v50
ds_write_b64 v22, v[48:49] offset:{QP}
s_cmp_gt_u32 s77, 6
s_cbranch_scc1 L_h1sent
s_mov_b64 exec, s[78:79]
buffer_store_dwordx4 v[24:27], v20, {WS}, s75 offen sc1
s_mov_b64 exec, -1
L_h1sent:
""")
A(f"L_h1np:\nv_cmp_ne_u32 vcc, 0, v21\ns_waitcnt lgkmcnt(0)")
ST(3); ST(7, 2)
if OPT['pearly']: A("s_barrier")
else: A(f"s_barrier\ns_cmp_lg_u32 s{sW}, 0\ns_cbranch_scc1 L_nopq\n{PQST}\nL_nopq:")
vUK, vD1 = 64, 56
for kp in range(4):
    A(f"ds_read_b128 {vr(vB+4*kp,4)}, v23 offset:{QP+kp*64}")
    for tl in range(2):
        A(f"ds_read_b128 {vr(vUK+16*tl+4*kp,4)}, v{52+(kp&1)} offset:{tl*4096+(kp>>1)*1024}")
A(f"s_mov_b32 s74, {fbits(LOG2E/math.sqrt(128.0))}")
for kp in range(4):
    A(f"s_waitcnt lgkmcnt({9-3*kp+1})")
    mf16(vD, vUK+4*kp, vB+4*kp, kp == 0)
    A(f"s_waitcnt lgkmcnt({9-3*kp})")
    mf16(vD1, vUK+16+4*kp, vB+4*kp, kp == 0)
for j in range(4): A(f"v_cndmask_b32 v{60+j}, v{vD1+j}, v{vD+j}, vcc")
for j in range(4): A(f"v_cndmask_b32 v{vD+j}, v{vD+j}, v{vD1+j}, vcc")
for j in range(4): A(f"v_add_f32_dpp v{vD+j}, v{60+j}, v{vD+j} row_ror:4 {DPPF}")
for j in range(4): A(f"v_add_f32_dpp v{vD+j}, v{vD+j}, v{vD+j} row_ror:8 {DPPF}")
for j in range(4): A(f"v_mul_f32 v{vD+j}, s74, v{vD+j}")
A(f"""
v_cvt_pk_bf16_f32 v48, v{vD}, v{vD+1}
v_cvt_pk_bf16_f32 v49, v{vD+2}, v{vD+3}
v_min_u32 v48, -2, v48
v_min_u32 v49, -2, v49
s_mov_b32 exec_lo, 0x00ff00ff
s_mov_b32 exec_hi, 0x00ff00ff
buffer_store_dwordx2 v[48:49], v54, {WS}, s72 offen sc1
s_mov_b64 exec, -1
""")
ST(4); ST(9, 2)
A(f"""
s_barrier
s_cmp_lt_u32 s{sA_}, 3
s_cbranch_scc1 L_TH
""")
f_setup()
for i in range(OPT['gap']): gu_dma(i)
A("s_branch L_F")

def wide_voffset(v):
    A(f"v_mul_u32_u24 v{v}, 1152, v2\nv_add_u32 v{v}, v{v}, v11")
ZR = 15360
def publish_setup(stride):
    A(f"""
    s_mul_i32 s74, s{sW}, {stride}
    s_add_u32 s72, s72, s74
    v_mul_u32_u24 v20, {8*stride}, v5
    v_lshl_add_u32 v20, v4, 5, v20
    v_lshl_add_u32 v20, v6, 3, v20
    v_lshlrev_b32 v232, 2, v{vL}
    ds_write_b32 v232, v8 offset:{ZR}
    """)
def masked_addrs(vreal, base):
    A(f"v_mov_b32 v236, {ZR-base}")
    for i in range(4): A(f"v_cmp_eq_u32 vcc, {i}, v5\nv_cndmask_b32 v{232+i}, v236, v{vreal}, vcc")
def wide_dma(n, rsrc, slow=0):
    for i in range(n):
        A(f"s_mov_b32 m0, s71\ns_add_u32 s74, s72, 512")
        dma(14, rsrc, 72)
        if 2*i < slow: A("s_waitcnt vmcnt(0)")
        A(f"s_add_u32 s75, s71, 4096\ns_mov_b32 m0, s75\ns_add_u32 s72, s72, {16*1152}")
        dma(14, rsrc, 74)
        if 2*i+1 < slow: A("s_waitcnt vmcnt(0)")
        A(f"s_add_u32 s71, s71, 16384")
def wide_frag_addrs(base8, shift):
    A(f"v_lshl_add_u32 v16, v4, 13, v15")
    if shift: A(f"v_add_u32 v16, {shift}, v16")
    A(f"""
    v_add_u32 v17, 0x10000, v16
    v_lshl_add_u32 v18, v4, 10, v{vTR}
    v_add_u32 v18, {base8}, v18
    """)
def wide_frag_reads(vdst, nk):
    n = 0
    for i in range(4):
        for kp in range(nk):
            a = 16 if kp < 2 else 17
            off = (kp & 1)*32768 + i*2048
            d = vdst + (i*nk + kp)*4
            A(f"ds_read_b64_tr_b16 {vr(d,2)}, v{a} offset:{off}")
            A(f"ds_read_b64_tr_b16 {vr(d+2,2)}, v{a} offset:{off+512}")
            n += 2
            if n % 12 == 0: A("s_waitcnt lgkmcnt(4)")
    A("s_waitcnt lgkmcnt(4)")
    for kp in range(nk):
        d = vdst + (4*nk + kp)*4
        A(f"ds_read_b64_tr_b16 {vr(d,2)}, v18 offset:{kp*4096}")
        A(f"ds_read_b64_tr_b16 {vr(d+2,2)}, v18 offset:{kp*4096+512}")
def wide_gemm(vW, nk, vBf, base, stride, lab):
    acc, acc5 = 240, 244
    nb = 8
    order = [(i, kp) for i in range(4) for kp in range(nk)]
    def rd(n):
        i, kp = order[n]
        A(f"ds_read_b128 {vr(vBf+4*(n % nb),4)}, v{232+i} offset:{base+kp*64}")
    for n in range(min(nb, len(order))): rd(n)
    for n, (i, kp) in enumerate(order):
        A(f"s_waitcnt lgkmcnt({min(nb-1, len(order)-1-n)})")
        mf16(acc, vW+(i*nk+kp)*4, vBf+4*(n % nb), n == 0)
        if i == 0: mf16(acc5, vW+(4*nk+kp)*4, vBf+4*(n % nb), kp == 0)
        if n + nb < len(order): rd(n + nb)
    A(f"""
    s_cmp_lg_u32 s70, 0
    s_cbranch_scc1 {lab}_a
    s_add_u32 s74, s72, {32*stride}
    v_cvt_pk_bf16_f32 v{acc5}, v{acc5}, v{acc5+1}
    v_cvt_pk_bf16_f32 v{acc5+1}, v{acc5+2}, v{acc5+3}
    s_mov_b64 exec, s[78:79]
    buffer_store_dwordx2 {vr(acc5,2)}, v20, {WS}, s74 offen sc1
    s_mov_b64 exec, -1
    {lab}_a:
    s_nop 5
    v_cvt_pk_bf16_f32 v{acc}, v{acc}, v{acc+1}
    v_cvt_pk_bf16_f32 v{acc+1}, v{acc+2}, v{acc+3}
    buffer_store_dwordx2 {vr(acc,2)}, v20, {WS}, s72 offen sc1
    """)
def tail_prologue(lab, slot_code):
    common_setup2()
    A(f"s_mul_i32 s{sSL}, s{sX}, 7\n{slot_code}\ns_waitcnt lgkmcnt(0)")
    get_tag()
    A(f"s_cmp_lg_u32 s{sW}, 7\ns_cbranch_scc1 {lab}")
    ones(24)
    clear_tail_inbox(24)
    A("s_waitcnt vmcnt(0)")
    proof(sSL)
    A(f"{lab}:")

XL, CT, CTS = 0, 8192, 320
TS = 128*128
vUV, vWO = 32, 96
def t_setup():
    A(f"""
    v_lshlrev_b32 v21, 11, v3
    v_xor_b32 v22, v3, v4
    v_lshlrev_b32 v22, 4, v22
    v_lshl_add_u32 v22, v2, 11, v22
    v_and_b32 v12, 1, v2
    v_lshl_or_b32 v12, v12, 2, v4
    v_lshrrev_b32 v14, 1, v3
    v_xor_b32 v12, v12, v14
    v_lshlrev_b32 v12, 4, v12
    v_lshl_add_u32 v12, v3, 7, v12
    v_lshlrev_b32 v14, 3, v3
    s_lshl_b32 s66, s{sH}, 14
    s_add_u32 s66, s66, {WS_H3B}
    s_lshl_b32 s73, s{sW}, 7
    s_add_u32 s73, s73, s66
    s_lshl_b32 s72, s{sSL}, 7
    s_add_u32 s72, s72, {WS_H5}
    v_lshrrev_b32 v23, 1, v3
    v_mul_u32_u24 v23, {CTS}, v23
    v_lshl_add_u32 v23, v4, 3, v23
    s_lshl_b32 s74, s{sW}, 5
    v_add_u32 v23, s74, v23
    v_mul_u32_u24 v10, {CTS}, v6
    v_lshl_add_u32 v10, v4, 4, v10
    """)
    publish_setup(TS)
    masked_addrs(10, CT)
def t_early(lab):
    A(f"""
    v_min_u32 v238, 35, v{vL}
    v_lshlrev_b32 v238, 7, v238
    s_mov_b32 s76, {WS_PF}
    v_mov_b32 v28, 0
    v_mov_b32 v29, 0
    s_cmp_lg_u32 s{sW}, 0
    s_cbranch_scc1 {lab}e1
    buffer_load_dword v239, v238, {WS}, s76 offen sc1
    {lab}e1:
    buffer_load_dwordx4 v[24:27], v22, {WS}, s73 offen sc1
    s_cmp_lg_u32 s{sW}, 7
    s_cbranch_scc1 {lab}e2
    s_mov_b64 exec, 0xff
    buffer_load_dwordx2 v[28:29], v21, {WS}, s66 offen offset:1024 sc1
    s_mov_b64 exec, -1
    {lab}e2:
    """)
def t_tail(nk, lab):
    A(f"""
    s_mov_b32 s77, 0
    s_cmp_lg_u32 s{sW}, 0
    s_cbranch_scc1 {lab}pd
    {lab}pp:
    v_cmp_ne_u32 vcc, s{sT}, v239
    s_add_u32 s77, s77, 1
    s_cbranch_vccz {lab}pd
    s_cmp_ge_u32 s77, {POLL_MAX}
    s_cbranch_scc1 {lab}pd
    buffer_load_dword v239, v238, {WS}, s76 offen sc1
    s_waitcnt vmcnt(0)
    s_branch {lab}pp
    {lab}pd:
    """)
    ST(5); ST(7, 3)
    A(f"""
    s_mov_b32 s77, 0
    s_branch {lab}chk
    {lab}poll:
    buffer_load_dwordx4 v[24:27], v22, {WS}, s73 offen sc1
    s_cmp_lg_u32 s{sW}, 7
    s_cbranch_scc1 {lab}ns
    s_mov_b64 exec, 0xff
    buffer_load_dwordx2 v[28:29], v21, {WS}, s66 offen offset:1024 sc1
    s_mov_b64 exec, -1
    {lab}ns:
    s_add_u32 s77, s77, 1
    s_waitcnt vmcnt(0)
    {lab}chk:
    v_max3_u32 v30, v24, v25, v26
    v_max3_u32 v30, v30, v27, v28
    v_max_u32 v30, v30, v29
    v_cmp_eq_u32 vcc, -1, v30
    s_cmp_ge_u32 s77, {POLL_MAX}
    s_cbranch_scc1 {lab}done
    s_cbranch_vccnz {lab}poll
    {lab}done:
    ds_write_b128 v7, v[24:27] offset:{XL}
    s_cmp_lg_u32 s{sW}, 7
    s_cbranch_scc1 {lab}nw
    s_mov_b64 exec, 0xff
    ds_write_b64 v14, v[28:29] offset:{CT+2048}
    s_mov_b64 exec, -1
    {lab}nw:
    s_waitcnt lgkmcnt(0)
    """)
    ST(6)
    if nk == 4 and OPT['wb'] == 2: A(f"s_cmp_lg_u32 s{sW}, 6\ns_cbranch_scc1 {lab}nwb\nbuffer_wbl2 sc1\n{lab}nwb:")
    A("s_barrier")
    if nk == 2 and OPT['fv'] == 2:
        A(f"""
        s_cmp_eq_u32 s70, 0
        s_cbranch_scc1 {lab}douv
        s_cmp_ge_u32 s{sF}, 36
        s_cbranch_scc1 {lab}nouv
        s_lshl_b32 s74, s{sF}, 14
        s_lshl_b32 s75, s{sW}, 12
        s_add_u32 s74, s74, s75
        s_add_u32 s74, s74, {WS_H5-16384}
        """)
        for i in range(4): A(f"buffer_load_dwordx4 {vr(32+4*i,4)}, v9, {WS}, s74 offen offset:{1024*i} sc1")
        A(f"s_branch {lab}nouv\n{lab}douv:")
    elif nk == 2: A(f"s_cmp_lg_u32 s70, 0\ns_cbranch_scc1 {lab}nouv")
    vX = 176
    A(f"ds_read_b64 v[28:29], v14 offset:{CT+2048}")
    for i in range(8): A(f"ds_read_b128 {vr(vX+4*i,4)}, v12 offset:{XL+i*1024}")
    a0, a1 = 24, 208
    for i in range(8):
        A(f"s_waitcnt lgkmcnt({7-i})")
        mf16(a0, vUV+8*i, vX+4*i, i == 0)
        mf16(a1, vUV+8*i+4, vX+4*i, i == 0)
    A(f"""
    v_max_f32_dpp v30, v28, v28 {QP1}
    v_sub_f32 v30, v28, v30
    v_exp_f32 v30, v30
    v_mul_f32 v31, v30, v29
    v_add_f32_dpp v31, v31, v31 {QP1}
    v_rcp_f32 v31, v31
    v_mul_f32 v30, v30, v31
    """)
    for j in range(4): A(f"v_add_f32_dpp v{a0+j}, v{a1+j}, v{a0+j} row_ror:8 {DPPF}")
    for j in range(4): A(f"v_mul_f32 v{a0+j}, v{a0+j}, v30")
    for j in range(4): A(f"v_add_f32_dpp v{a0+j}, v{a0+j}, v{a0+j} {QP1}")
    A(f"""
    v_cvt_pk_bf16_f32 v28, v{a0}, v{a0+1}
    v_cvt_pk_bf16_f32 v29, v{a0+2}, v{a0+3}
    s_mov_b32 exec_lo, 0x00550055
    s_mov_b32 exec_hi, 0x00550055
    ds_write_b64 v23, v[28:29] offset:{CT}
    s_mov_b64 exec, -1
    s_waitcnt lgkmcnt(0)
    {lab}nouv:
    s_barrier
    """)
    wide_gemm(vWO, nk, vX, CT, TS, lab+"g")
    ST(7)
    if nk == 4 and OPT['wb'] == 3: A(f"s_cmp_lg_u32 s{sW}, 6\ns_cbranch_scc1 L_end\nbuffer_wbl2 sc1")
    if nk == 2: fin_role()
    else: finish()

RED = BIG
def fin_setup():
    srd(52, P_X, 4608)
    srd(56, P_OUT, 4608)
    A(f"""
    v_and_b32 v212, 1, v4
    v_lshl_add_u32 v212, v3, 1, v212
    v_and_b32 v213, 3, v212
    v_mul_u32_u24 v213, 1152, v213
    v_lshrrev_b32 v212, 2, v212
    v_lshl_add_u32 v213, v212, 3, v213
    s_min_u32 s75, s{sF}, 35
    s_lshl_b32 s75, s75, 5
    v_add_u32 v213, s75, v213
    buffer_load_dwordx2 v[214:215], v213, {RA}, 0 offen
    v_and_b32 v212, 1, v3
    v_lshlrev_b32 v212, 4, v212
    v_mov_b32 v216, 0x3f80
    v_lshlrev_b32 v216, v212, v216
    v_bfe_u32 v212, v{vL}, 1, 3
    """)
    for d in range(8): A(f"v_cmp_eq_u32 vcc, {d}, v212\nv_cndmask_b32 v{220+d}, 0, v216, vcc")
def fin_role():
    A(f"""
    s_cmp_ge_u32 s{sF}, 36
    s_cbranch_scc1 L_end
    s_cmp_eq_u32 s70, 0
    s_cbranch_scc1 L_fin_b
    s_lshl_b32 s72, s{sF}, 14
    s_lshl_b32 s73, s{sW}, 12
    s_add_u32 s72, s72, s73
    s_add_u32 s72, s72, {WS_H5-16384}
    s_mov_b32 s76, 15
    s_mov_b32 s77, 0
    {"s_waitcnt vmcnt(0)" if OPT['fv'] == 1 else ""}
    {"s_branch L_finchk" if OPT['fv'] == 2 else ""}
    L_finpoll:
    """)
    for i in range(4):
        A(f"s_bitcmp1_b32 s76, {i}\ns_cbranch_scc0 L_fi{i}\nbuffer_load_dwordx4 {vr(32+4*i,4)}, v9, {WS}, s72 offen offset:{1024*i} sc1\nL_fi{i}:")
    A("s_add_u32 s77, s77, 1\ns_waitcnt vmcnt(0)")
    if OPT['fv'] == 2: A("s_branch L_finchk2\nL_finchk:\ns_waitcnt vmcnt(1)\nL_finchk2:")
    for i in range(4): A(f"v_max3_u32 v{48+i}, v{32+4*i}, v{33+4*i}, v{34+4*i}")
    for i in range(4): A(f"v_max_u32 v{48+i}, v{48+i}, v{35+4*i}")
    for i in range(4): A(f"v_cmp_eq_u32 vcc, -1, v{48+i}\ns_cbranch_vccnz L_fc{i}\ns_bitset0_b32 s76, {i}\nL_fc{i}:")
    A(f"""
    s_cmp_ge_u32 s77, {POLL_MAX}
    s_cbranch_scc1 L_findone
    s_cmp_lg_u32 s76, 0
    s_cbranch_scc1 L_finpoll
    L_findone:
    s_cmp_ge_u32 s{sW}, 6
    s_cbranch_scc1 L_fin_g
    """)
    for i in range(3): mf16(52, 220, 32+4*i, i == 0)
    A(f"s_cmp_eq_u32 s{sW}, 5\ns_cbranch_scc1 L_fin_g3")
    mf16(52, 220, 44, False)
    A("s_branch L_fin_w\nL_fin_g:")
    for i in range(3): mf16(52, 224, 32+4*i, i == 0)
    A("L_fin_g3:")
    mf16(52, 224, 44, False)
    A(f"L_fin_w:\ns_nop 7\nds_write_b128 v7, v[52:55] offset:{RED-4096}\ns_waitcnt lgkmcnt(0)")
    ST(9)
    A(f"L_fin_b:\ns_barrier\ns_cmp_lg_u32 s{sW}, 0\ns_cbranch_scc1 L_end")
    for i in range(4): A(f"ds_read_b128 {vr(64+4*i,4)}, v9 offset:{RED+i*1024}")
    A(f"s_mov_b32 s76, {fbits(-LOG2E)}")
    A("v_lshlrev_b32 v32, 16, v214\nv_and_b32 v33, 0xffff0000, v214\nv_lshlrev_b32 v34, 16, v215\nv_and_b32 v35, 0xffff0000, v215")
    A("s_waitcnt lgkmcnt(2)")
    for j in range(4): A(f"v_add_f32 v{64+j}, v{64+j}, v{68+j}")
    A("s_waitcnt lgkmcnt(0)")
    for j in range(4): A(f"v_add_f32 v{72+j}, v{72+j}, v{76+j}")
    for j in range(4): A(f"v_add_f32 v{64+j}, v{64+j}, v{72+j}")
    for j in range(4): A(f"v_add_f32_dpp v{64+j}, v{64+j}, v{64+j} row_ror:8 {DPPF}")
    for j in range(4): rb16(64+j, 64+j)
    for j in range(4): A(f"v_mul_f32 v{76+j}, s76, v{64+j}")
    for j in range(4): A(f"v_exp_f32 v{76+j}, v{76+j}")
    for j in range(4): A(f"v_add_f32 v{76+j}, 1.0, v{76+j}")
    for j in range(4): A(f"v_rcp_f32 v{76+j}, v{76+j}")
    for j in range(4): A(f"v_mul_f32 v{76+j}, v{64+j}, v{76+j}")
    A("v_cvt_pk_bf16_f32 v76, v76, v77\nv_cvt_pk_bf16_f32 v77, v78, v79")
    A("v_permlane32_swap_b32 v76, v68\nv_permlane32_swap_b32 v77, v69")
    A("v_lshlrev_b32 v72, 16, v68\nv_and_b32 v73, 0xffff0000, v68\nv_lshlrev_b32 v74, 16, v69\nv_and_b32 v75, 0xffff0000, v69")
    for j in range(4): A(f"v_mul_f32 v{64+j}, v{64+j}, v{72+j}")
    A("v_cvt_pk_bf16_f32 v68, v64, v65\nv_cvt_pk_bf16_f32 v69, v66, v67")
    A("v_lshlrev_b32 v64, 16, v68\nv_and_b32 v65, 0xffff0000, v68\nv_lshlrev_b32 v66, 16, v69\nv_and_b32 v67, 0xffff0000, v69")
    for j in range(4): A(f"v_add_f32 v{64+j}, v{64+j}, v{32+j}")
    A(f"""
    v_cvt_pk_bf16_f32 v64, v64, v65
    v_cvt_pk_bf16_f32 v65, v66, v67
    s_mov_b64 exec, 0x00ff00ff
    buffer_store_dwordx2 v[64:65], v213, {RB}, 0 offen
    s_cmp_lg_u32 s{sF}, 0
    s_cbranch_scc1 L_fin_noep
    s_mov_b64 exec, 1
    v_mov_b32 v66, s{sE}
    buffer_store_dword v66, v8, {WS}, 0 offen sc1
    L_fin_noep:
    s_mov_b64 exec, -1
    """)
    finish()

def hb_code():
    if not OPT['hb']: return ""
    return f"""s_lshr_b32 s71, s66, 1
    s_add_u32 s71, s71, 48
    s_mul_i32 s71, s71, {8*9216}
    s_add_u32 s74, s73, 6
    s_lshl_b32 s74, s74, 7
    s_add_u32 s71, s71, s74
    buffer_load_dwordx4 v[248:251], v14, {RA}, s71 offen"""
A("L_TH:")
SLOT = f"s_lshl_b32 s74, s{sA_}, 1\ns_add_u32 s{sSL}, s{sSL}, s74\ns_add_u32 s{sSL}, s{sSL}, s{sQD}"
A(f"""
s_lshl_b32 s66, s{sA_}, 1
s_add_u32 s66, s66, s{sQD}
s_mov_b32 s{sF}, 99
s_cmp_eq_u32 s66, 3
s_cbranch_scc1 L_f_go
s_cmp_gt_u32 s66, 3
s_subb_u32 s66, s66, 0
s_lshl_b32 s66, s66, 3
s_add_u32 s{sF}, s66, s{sX}
s_add_u32 s66, s66, s{sW}
""")
def h5_clear(lab):
    A(f"s_cmp_ge_u32 s{sF}, 36\ns_cbranch_scc1 {lab}")
    ones(24)
    A(f"s_lshl_b32 s74, s{sF}, 14\ns_lshl_b32 s75, s{sW}, 11\ns_add_u32 s74, s74, s75\ns_add_u32 s74, s74, {WS_H5}")
    for i in range(2): A(f"buffer_store_dwordx4 v[24:27], v9, {WS}, s74 offen offset:{i*1024} sc1")
    A(f"s_waitcnt vmcnt(0)\ns_barrier\ns_cmp_lg_u32 s{sW}, 0\ns_cbranch_scc1 {lab}")
    proof(sF)
    A(f"{lab}:")
if not OPT['fclr']: h5_clear("L_noclr2")
A("L_noclr:")
if OPT['help']:
    A(f"""
    s_cmp_eq_u32 s67, 0
    s_cselect_b32 s52, s{P_WG}, s{P_WU}
    s_cselect_b32 s53, s{P_WG+1}, s{P_WU+1}
    s_mov_b32 s54, {576*9216}
    s_lshr_b32 s71, s66, 1
    s_add_u32 s71, s71, 32
    s_mul_i32 s71, s71, {8*9216}
    s_sub_u32 s72, 3, s{sX}
    s_and_b32 s72, s72, 7
    s_mul_i32 s73, s{sX}, 9
    s_lshl_b32 s73, s73, 7
    s_add_u32 s71, s71, s73
    s_lshl_b32 s74, s72, 7
    s_add_u32 s73, s71, s74
    v_mul_u32_u24 v14, 9216, v2
    v_lshl_add_u32 v14, v3, 4, v14
    s_add_u32 s74, s73, {20*8*9216}
    s_add_u32 s71, s71, {20*8*9216}
    """)
    if OPT['help'] & 1:
        A(f"""
        buffer_load_dwordx4 v[248:251], v14, {RA}, s73 offen{HW}
        buffer_load_dwordx4 v[248:251], v14, {RA}, s74 offen{HW}
        s_cmp_lg_u32 s72, 0
        s_cbranch_scc1 L_noc3b
        buffer_load_dwordx4 v[248:251], v14, {RA}, s73 offen offset:1024{HW}
        buffer_load_dwordx4 v[248:251], v14, {RA}, s74 offen offset:1024{HW}
        L_noc3b:
        """)
    if OPT['help'] & 2: A(f"buffer_load_dwordx4 v[248:251], v14, {RA}, s71 offen offset:768{HW}\nbuffer_load_dwordx4 v[248:251], v14, {RA}, s71 offen offset:896{HW}")
    if OPT['help'] & 4:
        A(f"""
        s_lshl_b32 s66, s66, 10
        s_mov_b32 s52, s{P_WO}
        s_mov_b32 s53, s{P_WO+1}
        s_lshl_b32 s73, s{sX}, 3
        s_add_u32 s73, s73, 7
        s_mul_i32 s73, s73, {64*1152}
        s_add_u32 s54, s73, {64*1152}
        s_add_u32 s73, s73, s66
        s_add_u32 s74, s73, {40*1024}
        buffer_load_dwordx4 v[248:251], v9, {RA}, s73 offen{HW}
        buffer_load_dwordx4 v[248:251], v9, {RA}, s74 offen{HW}
        """)
    if OPT['help'] & 8:
        A(f"s_sub_u32 s73, s73, {40*1024}\nbuffer_load_dwordx4 v[248:251], v9, {RA}, s73 offen")
A("L_f_go:")
A(f"s_mul_i32 s{sSL}, s{sX}, 7\n{SLOT}")
ST(1, 3)
srd(52, P_WUV, 512*8192)
srd(56, P_WO, 4096*1152)
A(f"""
s_lshl_b32 s71, s{sW}, 10
s_add_u32 s71, s71, {BIG}
s_lshl_b32 s72, s68, 2
s_add_u32 s72, s72, s67
s_lshl_b32 s72, s72, 16
s_lshl_b32 s73, s{sH}, 1
s_add_u32 s73, s73, s{sQD}
s_lshl_b32 s74, s73, 7
s_add_u32 s72, s72, s74
""")
for i in range(8):
    cb = 2*(i&1) + 16*(i>>1)
    A(f"s_mov_b32 m0, s71\ns_add_u32 s74, s72, {cb*65536}")
    dma(12, RA, 74)
    A(f"s_add_u32 s71, s71, 8192")
    if i < OPT['tslow']: A("s_waitcnt vmcnt(0)")
wide_voffset(14)
A(f"""
s_mul_i32 s73, s73, {64*1152}
s_lshl_b32 s71, s67, 3
s_add_u32 s71, s71, s68
s_lshl_b32 s71, s71, 10
s_add_u32 s71, s71, {BIG+65536}
s_mul_i32 s72, s67, {8*1152}
s_lshl_b32 s74, s68, 7
s_add_u32 s72, s72, s74
s_add_u32 s72, s72, s73
""")
wide_dma(4, RB)
A(f"""
s_mul_i32 s72, s{sW}, {8*1152}
s_add_u32 s72, s72, s73
s_add_u32 s72, s72, 1024
s_lshl_b32 s71, s{sW}, 10
s_add_u32 s71, s71, {BIG+131072}
s_mov_b32 m0, s71
""")
dma(14, RB, 72)
wide_frag_addrs(BIG+131072, 65536)
A(f"v_lshl_add_u32 v19, v4, 10, v{vTR}\nv_add_u32 v19, {BIG}, v19")
t_setup()
ST(5, 3)
A("s_waitcnt vmcnt(9)\ns_barrier")
for kp in range(16):
    A(f"ds_read_b64_tr_b16 {vr(vUV+4*kp,2)}, v19 offset:{kp*4096}")
    A(f"ds_read_b64_tr_b16 {vr(vUV+4*kp+2,2)}, v19 offset:{kp*4096+512}")
    if kp % 6 == 5: A("s_waitcnt lgkmcnt(4)")
fin_setup()
t_early("L_u")
A("s_waitcnt vmcnt(0) lgkmcnt(2)")
ST(6, 3)
A("s_barrier")
wide_frag_reads(vWO, 2)
t_tail(2, "L_u")

A("L_T:")
A(f"s_mul_i32 s{sSL}, s{sX}, 7\ns_add_u32 s{sSL}, s{sSL}, 6")
ST(1, 3)
srd(52, P_WUV, 512*8192)
srd(56, P_WO, 4096*1152)
A(f"""
s_lshl_b32 s71, s70, 1
s_add_u32 s71, s71, s67
s_lshl_b32 s71, s71, 1
s_add_u32 s71, s71, s69
s_lshl_b32 s71, s71, 10
s_add_u32 s71, s71, {BIG}
s_lshl_b32 s72, s70, 2
s_add_u32 s72, s72, s67
s_lshl_b32 s72, s72, 16
s_lshl_b32 s73, s{sH}, 8
s_lshl_b32 s74, s69, 7
s_add_u32 s73, s73, s74
s_add_u32 s72, s72, s73
""")
for i in range(16):
    cb = 2*((i>>1)&1) + 8*(i&1) + 16*(i>>2)
    A(f"s_mov_b32 m0, s71\ns_add_u32 s74, s72, {cb*65536}")
    dma(12, RA, 74)
    A(f"s_add_u32 s71, s71, 8192")
    if i < OPT['Tslow']: A("s_waitcnt vmcnt(0)")
wide_voffset(14)
A(f"""
s_mul_i32 s66, s{sH}, {128*1152}
s_lshl_b32 s71, s68, 2
s_add_u32 s71, s71, s67
s_mul_i32 s72, s71, {8*1152}
s_add_u32 s72, s72, s66
s_add_u32 s72, s72, 1024
s_lshl_b32 s71, s71, 10
s_add_u32 s71, s71, {BIG+131072}
s_mov_b32 m0, s71
s_add_u32 s71, s71, 2048
""")
dma(14, RB, 72)
A(f"s_add_u32 s72, s72, {16*1152}\ns_mov_b32 m0, s71")
dma(14, RB, 72)
vST = 176
A(f"""
s_mul_i32 s72, s67, {8*1152}
s_lshl_b32 s74, s68, 7
s_add_u32 s72, s72, s74
s_add_u32 s72, s72, s66
s_barrier
""")
for i in range(4):
    A(f"buffer_load_dwordx4 {vr(vST+8*i,4)}, v14, {RB}, s72 offen nt")
    A(f"buffer_load_dwordx4 {vr(vST+8*i+4,4)}, v14, {RB}, s72 offen offset:512 nt")
    A(f"s_add_u32 s72, s72, {16*1152}")
A(f"v_add_u32 v17, 0x10000, v16")
ST(2, 3)
A("s_waitcnt vmcnt(10)")
ST(3, 3)
A("s_barrier")
for kp in range(16):
    a = 16 if kp < 8 else 17
    A(f"ds_read_b64_tr_b16 {vr(vUV+4*kp,2)}, v{a} offset:{(kp&7)*8192}")
    A(f"ds_read_b64_tr_b16 {vr(vUV+4*kp+2,2)}, v{a} offset:{(kp&7)*8192+512}")
    if kp % 6 == 5: A("s_waitcnt lgkmcnt(4)")
A(f"""
s_lshl_b32 s71, s67, 3
s_add_u32 s71, s71, s68
s_lshl_b32 s71, s71, 10
s_add_u32 s71, s71, {BIG}
v_add_u32 v19, s71, v9
s_add_u32 s71, s71, 65536
s_waitcnt lgkmcnt(0)
s_barrier
""")
ST(4, 3)
wide_dma(4, RB)
for i in range(8):
    A(f"s_waitcnt vmcnt({15-i})")
    A(f"ds_write_b128 v19, {vr(vST+4*i,4)} offset:{(i>>1)*16384+(i&1)*4096}")
wide_frag_addrs(BIG+131072, 0)
t_setup()
t_early("L_t")
ST(5, 3)
A("s_waitcnt vmcnt(0) lgkmcnt(0)")
ST(6, 3)
A("s_barrier")
wide_frag_reads(vWO, 4)
t_tail(4, "L_t")

A("L_F:")
if OPT['fclr']:
    A(f"s_mul_i32 s74, s{sX}, 9\ns_sub_u32 s{sF}, s{sU}, s74\ns_lshl_b32 s{sF}, s{sF}, 3\ns_add_u32 s{sF}, s{sF}, s{sX}")
    h5_clear("L_f_clr")
ST(1, 3)
DNB = BIG
if OPT['fslow']: A(f"s_cmp_lt_u32 s{sQD}, {2 if OPT['fbx'] else 0}\ns_cselect_b64 vcc, -1, 0")
for i in range(9):
    gu_dma(i)
    if i < OPT['fslow']: A(f"s_cbranch_vccnz L_fw{i}\ns_waitcnt vmcnt({OPT['fwin']})\nL_fw{i}:")
xn_frags()
if OPT['fbar']: A("s_barrier")
for i in range(9, 18): gu_dma(i)
srd(56, P_WD, 4608*1152)
wide_voffset(14)
A(f"""
v_lshrrev_b32 v19, 1, v6
v_lshrrev_b32 v21, 1, v5
v_and_b32 v22, 1, v4
v_lshl_or_b32 v21, v22, 1, v21
v_lshl_or_b32 v21, v19, 2, v21
v_xor_b32 v21, s{sW}, v21
v_lshlrev_b32 v21, 4, v21
v_lshl_add_u32 v21, v5, 7, v21
v_and_b32 v22, 1, v6
v_lshl_add_u32 v21, v22, 3, v21
v_lshl_add_u32 v21, v19, 10, v21
v_lshl_add_u32 v21, v4, 11, v21
v_add_u32 v21, {BIG}, v21
v_add_u32 v22, {8*8192}, v21
v_add_u32 v23, {16*8192}, v21
s_mul_i32 s73, s{sU}, {64*1152}
s_lshl_b32 s71, s67, 3
s_add_u32 s71, s71, s68
s_lshl_b32 s71, s71, 10
s_add_u32 s71, s71, {DNB}
s_mul_i32 s72, s67, {8*1152}
s_lshl_b32 s74, s68, 7
s_add_u32 s72, s72, s74
s_add_u32 s72, s72, s73
v_min_u32 v140, 35, v{vL}
v_lshlrev_b32 v140, 7, v140
s_mov_b32 s66, {WS_PF}
s_waitcnt vmcnt(9) lgkmcnt(0)
s_barrier
""")
def k_steps(k0, k1):
    D = 6
    def rd(k):
        d = vG + 4*(k % 8)
        A(f"ds_read_b64_tr_b16 {vr(d,2)}, v{21+(k>>3)} offset:{(k&7)*8192}")
        A(f"ds_read_b64_tr_b16 {vr(d+2,2)}, v{21+(k>>3)} offset:{(k&7)*8192+512}")
    for k in range(k0, min(k1, k0+D)): rd(k)
    for k in range(k0, k1):
        A(f"s_waitcnt lgkmcnt({2*min(D-1, k1-1-k)})")
        mf16(vD, vG+4*(k % 8), vXN+4*k, k == 0)
        if k + D < k1: rd(k + D)
k_steps(0, 9)
A(f"""
s_barrier
s_cmp_lg_u32 s{sW}, 7
s_cbranch_scc1 L_f_np
buffer_load_dword v141, v140, {WS}, s66 offen sc1
L_f_np:
""")
wide_dma(4, RB)
A(f"""
s_mul_i32 s72, s{sW}, {8*1152}
s_add_u32 s72, s72, s73
s_add_u32 s72, s72, 1024
s_lshl_b32 s71, s{sW}, 10
s_add_u32 s71, s71, {DNB+65536}
s_mov_b32 m0, s71
""")
dma(14, RB, 72)
ST(2, 3)
A("s_waitcnt vmcnt(9)")
ST(3, 3)
A("s_barrier")
k_steps(9, 18)
wide_frag_addrs(DNB+65536, DNB-BIG)
A(f"s_lshl_b32 s72, s{sU}, 7\ns_add_u32 s72, s72, {WS_H5+56*128}")
publish_setup(TS)
A(f"""
v_mul_u32_u24 v22, {HBS}, v6
v_lshl_add_u32 v21, v4, 3, v22
s_lshl_b32 s74, s{sW}, 4
v_add_u32 v21, s74, v21
v_lshl_add_u32 v22, v4, 4, v22
""")
masked_addrs(22, HB)
vWD = 144
for j in range(4): A(f"v_mov_b32 v{24+j}, v{vD+j}")
for j in range(4): A(f"v_permlane32_swap_b32 v{vD+j}, v{24+j}")
C1 = -2.0*math.sqrt(2.0/math.pi)*LOG2E
A(f"s_mov_b32 s74, {fbits(0.044715)}\ns_mov_b32 s75, {fbits(C1)}")
for j in range(4): rb16(vD+j, vD+j); rb16(24+j, 24+j)
for j in range(4): A(f"v_mul_f32 v{104+j}, v{vD+j}, v{vD+j}")
for j in range(4): A(f"v_fma_f32 v{104+j}, v{104+j}, s74, 1.0")
for j in range(4): A(f"v_mul_f32 v{104+j}, v{104+j}, v{vD+j}")
for j in range(4): A(f"v_mul_f32 v{104+j}, s75, v{104+j}")
for j in range(4): A(f"v_exp_f32 v{104+j}, v{104+j}")
for j in range(4): A(f"v_add_f32 v{104+j}, 1.0, v{104+j}")
for j in range(4): A(f"v_rcp_f32 v{104+j}, v{104+j}")
for j in range(4): A(f"v_mul_f32 v{vD+j}, v{vD+j}, v{104+j}")
for j in range(4): rb16(vD+j, vD+j)
for j in range(4): A(f"v_mul_f32 v{vD+j}, v{vD+j}, v{24+j}")
A(f"""
v_cvt_pk_bf16_f32 v24, v{vD}, v{vD+1}
v_cvt_pk_bf16_f32 v25, v{vD+2}, v{vD+3}
s_mov_b64 exec, 0x000f000f
ds_write_b64 v21, v[24:25] offset:{HB}
s_mov_b64 exec, -1
s_cmp_lg_u32 s{sW}, 7
s_cbranch_scc1 L_f_pd
s_mov_b32 s77, 0
L_f_pp:
v_cmp_ne_u32 vcc, s{sT}, v141
s_add_u32 s77, s77, 1
s_cbranch_vccz L_f_pd
s_cmp_ge_u32 s77, {POLL_MAX}
s_cbranch_scc1 L_f_pd
buffer_load_dword v141, v140, {WS}, s66 offen sc1
s_waitcnt vmcnt(0)
s_branch L_f_pp
L_f_pd:
s_waitcnt vmcnt(0) lgkmcnt(0)
""")
ST(1); ST(7, 3)
A("s_barrier")
wide_frag_reads(vWD, 2)
A("s_waitcnt lgkmcnt(6)")
wide_gemm(vWD, 2, 104, HB, TS, "L_fg")
ST(2)
finish()

QA = 131072
MXO, LSO, LCO = 2048, 8192+2048, 16384+2048
sLOC = 64
A(f"""
L_att:
s_mov_b64 exec, -1
s_cmp_ge_u32 s{sW}, 4
s_cbranch_scc1 L_att_hi
""")
ST(1, 5); ST(2, 5); ST(3, 5)
if OPT['nqal']:
    A("s_branch L_nq2\nL_att0:")
    A(PFB)
    A("L_nq2:")
late_common()
lane_consts()
A(f"""
s_waitcnt lgkmcnt(0)
s_load_dword s{sE}, s[48:49], 0
v_and_b32 v11, 2, v2
v_lshlrev_b32 v11, 1, v11
v_lshrrev_b32 v10, 2, v2
v_or_b32 v11, v11, v10
v_xor_b32 v11, v11, v3
v_lshlrev_b32 v11, 4, v11
v_lshl_add_u32 v10, v2, 10, v11
v_xor_b32 v11, 32, v10
s_lshl_b32 s70, s{sX}, 4
s_add_u32 s70, s70, s{sK}
s_lshl_b32 s66, s70, 17
s_lshl_b32 s67, s{sW}, 15
s_add_u32 s66, s66, s67
""")
srd(52, P_CKV, 4*4096*1024)
if OPT['ukw'] < 8: A(f"s_waitcnt vmcnt({OPT['ukw']})")
ST(2, 2)
LBO = list(range(8)) if not OPT['c3l'] else [0, 1, 4, 5, 6, 7, 2, 3]
nh = OPT['ckh']
if OPT['rowm']: seq = [(lb, rbi) for rbi in range(4) for lb in LBO[:8-nh]] + [(lb, rbi) for lb in LBO[8-nh:] for rbi in range(4)]
else: seq = [(lb, rbi) for lb in LBO for rbi in range(4)]
for n_, (lb, rbi) in enumerate(seq):
    if n_ in (4, 8, 16, 24): ST({4:3,8:4,16:5,24:6}[n_], 2)
    if n_ == 4*OPT['gbar']: A("s_barrier")
    A(f"s_add_u32 s68, s67, {(rbi*8+lb)*1024}\ns_mov_b32 m0, s68\ns_add_u32 s69, s66, {rbi*8192+lb*128}")
    dma(10 + (rbi & 1), RA, 69)
if OPT['gbar'] == 8: A("s_barrier")
ST(7, 2)
if OPT['stamps'] in (2, 3):
    A("s_waitcnt vmcnt(0)")
    ST(9, 2); ST(7, 3)
if OPT['exp'] == 2: A("s_branch L_end")
A(f"""
v_and_b32 v11, 2, v{vL}
v_lshlrev_b32 v11, 1, v11
v_or_b32 v11, v11, v5
v_lshrrev_b32 v12, 5, v{vL}
v_xor_b32 v11, v11, v12
v_lshlrev_b32 v11, 4, v11
v_lshl_add_u32 v11, v3, 7, v11
v_and_b32 v13, 3, v2
v_lshl_add_u32 v11, v13, 13, v11
v_add_u32 v16, s67, v11
v_add_u32 v20, {QA}, v11
""")
for t in range(1, 4): A(f"v_xor_b32 v{16+t}, {t<<5}, v16\nv_xor_b32 v{20+t}, {t<<5}, v20")
A(f"""
v_and_b32 v13, 31, v{vL}
v_lshlrev_b32 v13, 5, v13
v_add_u32 v13, {QA}, v13
s_lshl_b32 s68, s{sW}, 3
v_lshl_add_u32 v14, v12, 2, v13
v_add_u32 v14, s68, v14
s_lshl_b32 s68, s{sW}, 13
s_add_u32 s68, s68, {QA}
v_add_u32 v15, s68, v9
s_waitcnt lgkmcnt(0)
""")
get_tag()
A(f"""
s_lshl_b32 s72, s{sX}, 14
s_add_u32 s72, s72, {WS_FLG}
s_lshl_b32 s73, s{sK}, 10
s_add_u32 s73, s73, s72
s_lshl_b32 s68, s{sW}, 7
s_add_u32 s69, s72, s68
s_lshl_b32 s68, s{sK}, 5
s_add_u32 s72, s72, s68
s_lshl_b32 s74, s70, 15
s_lshl_b32 s68, s{sW}, 9
s_add_u32 s74, s74, s68
s_add_u32 s74, s74, {WS_H3A}
s_add_u32 s75, s74, 8192
s_add_u32 s78, s74, 16384
s_add_u32 s79, s74, 24576
s_lshl_b32 s70, s{sK}, 15
s_lshl_b32 s71, s{sX}, 11
s_add_u32 s70, s70, s71
s_add_u32 s70, s70, {WS_H3B}
s_lshl_b32 s71, s{sW}, 8
s_add_u32 s71, s71, s70
v_and_b32 v100, 15, v{vL}
v_and_b32 v101, 1, v4
v_lshlrev_b32 v112, 10, v100
v_lshl_add_u32 v102, v101, 4, v112
v_lshlrev_b32 v103, 11, v4
v_lshl_add_u32 v103, v100, 4, v103
v_and_b32 v104, 1, v3
v_lshlrev_b32 v104, 4, v104
v_mov_b32 v105, 0xffff
v_lshlrev_b32 v105, v104, v105
v_lshrrev_b32 v104, 1, v3
""")
for d in range(4): A(f"v_cmp_eq_u32 vcc, {d}, v104\nv_cndmask_b32 v{108+d}, 0, v105, vcc")
A(f"""
v_lshrrev_b32 v104, 2, v3
v_lshl_add_u32 v105, v104, 4, v4
v_lshlrev_b32 v105, 2, v105
v_lshlrev_b32 v106, 14, v104
v_lshl_add_u32 v106, v6, 5, v106
v_lshl_add_u32 v106, v4, 3, v106
v_and_b32 v104, 1, v2
v_lshl_add_u32 v106, v104, 7, v106
v_lshlrev_b32 v107, 14, v101
v_lshl_add_u32 v107, v100, 3, v107
v_mov_b32 v113, {QA+LCO}
""")
vS = 32; vAf = 128; vBf = 64; DEP = 8
for lb in LBO:
    last = max(i for i, (l_, r_) in enumerate(seq) if l_ == lb)
    A(f"s_waitcnt vmcnt({31-last}) lgkmcnt(8)")
    for t in range(4*lb, 4*lb+4): A(f"ds_read_b128 {vr(vAf+4*t,4)}, v{16+(t&3)} offset:{(t>>2)*1024}")
if OPT['ptl'] and OPT['local']:
    for i in range(4):
        for h in range(2): A(f"buffer_load_dwordx4 v[116:119], v103, {WS}, s{[74,75,78,79][i]} offen offset:{256*h}")
A("s_waitcnt lgkmcnt(0)\ns_setprio 2")
ST(1)
A("s_barrier")
ST(2)
def qk_read(t): A(f"ds_read_b128 {vr(vBf+4*(t % DEP),4)}, v{20+(t&3)} offset:{(t>>2)*1024}")
for t in range(DEP): qk_read(t)
for t in range(32):
    A(f"s_waitcnt lgkmcnt({min(DEP-1, 31-t)})")
    mf32(vS, vAf+4*t, vBf+4*(t % DEP), t == 0)
    if t + DEP < 32: qk_read(t + DEP)
    if t == 13: A("s_barrier")
ST(3)
A(f"v_max3_f32 v24, v{vS}, v{vS+1}, v{vS+2}\nv_max3_f32 v25, v{vS+3}, v{vS+4}, v{vS+5}\nv_max3_f32 v26, v{vS+6}, v{vS+7}, v{vS+8}")
A(f"v_max3_f32 v27, v{vS+9}, v{vS+10}, v{vS+11}\nv_max3_f32 v28, v{vS+12}, v{vS+13}, v{vS+14}")
A(f"v_max3_f32 v24, v24, v25, v26\nv_max3_f32 v27, v27, v28, v{vS+15}\nv_max_f32 v24, v24, v27")
A(f"ds_write_b32 v14, v24 offset:{MXO}\ns_waitcnt lgkmcnt(0)\ns_barrier")
A(f"""
ds_read_b128 v[24:27], v13 offset:{MXO}
ds_read_b128 v[28:31], v13 offset:{MXO+16}
s_waitcnt lgkmcnt(0)
v_max3_f32 v24, v24, v25, v26
v_max3_f32 v28, v28, v29, v30
v_max3_f32 v24, v24, v27, v31
v_max_f32 v24, v24, v28
""")
for hlf in range(2):
    for i in range(8): A(f"v_sub_f32 v{vS+8*hlf+i}, v{vS+8*hlf+i}, v24")
    for i in range(8): A(f"v_exp_f32 v{vS+8*hlf+i}, v{vS+8*hlf+i}")
    for i in range(4): A(f"v_cvt_pk_bf16_f32 v{48+4*hlf+i}, v{vS+8*hlf+2*i}, v{vS+8*hlf+2*i+1}")
    A(f"ds_write_b128 v15, {vr(48+4*hlf,4)} offset:{1024*hlf}")
    if hlf == 0:
        A("s_waitcnt lgkmcnt(0)")
        ST(4)
        A("s_barrier")
for step in (8, 4, 2, 1):
    for i in range(step): A(f"v_add_f32 v{vS+i}, v{vS+i}, v{vS+i+step}")
A(f"ds_write_b32 v14, v{vS} offset:{LSO}\ns_waitcnt lgkmcnt(0)\ns_setprio 0\ns_barrier")
vXr = 144
SO = [74, 75, 78, 79]
A(f"""
s_cmp_lg_u32 s{sW}, 0
s_cbranch_scc1 L_nost
ds_read_b128 v[28:31], v13 offset:{LSO}
ds_read_b128 v[32:35], v13 offset:{LSO+16}
ds_read_b32 v36, v113
v_mov_b32 v25, s{sT}
v_mov_b32 v27, s{sT}
s_waitcnt lgkmcnt(0)
v_add_f32 v28, v28, v29
v_add_f32 v30, v30, v31
v_add_f32 v32, v32, v33
v_add_f32 v34, v34, v35
v_readfirstlane_b32 s{sLOC}, v36
v_add_f32 v28, v28, v30
v_add_f32 v32, v32, v34
v_add_f32 v26, v28, v32
s_mov_b32 exec_hi, 0
s_cmp_lg_u32 s{sLOC}, 0
s_cbranch_scc1 L_stfar
buffer_store_dwordx4 v[24:27], v9, {WS}, s73 offen
s_branch L_stdone
L_stfar:
buffer_store_dwordx4 v[24:27], v9, {WS}, s73 offen sc1
L_stdone:
L_nost:
s_mov_b32 s77, 0
s_mov_b32 exec_hi, 0
L_rpoll:
buffer_load_dwordx4 v[32:35], v102, {WS}, s72 offen sc1
s_add_u32 s77, s77, 1
s_waitcnt vmcnt(0)
v_xor_b32 v33, s{sT}, v33
v_xor_b32 v35, s{sT}, v35
v_or_b32 v33, v33, v35
v_cmp_ne_u32 vcc, 0, v33
s_cmp_ge_u32 s77, {POLL_MAX}
s_cbranch_scc1 L_rdone
s_cbranch_vccnz L_rpoll
L_rdone:
s_mov_b64 exec, -1
""")
ST(5)
A("v_mov_b32 v36, v32")
for r in (8, 4, 2, 1): A(f"v_max_f32_dpp v36, v36, v36 row_ror:{r} {DPPF}")
A("v_sub_f32 v33, v32, v36\nv_exp_f32 v33, v33\nv_mul_f32 v37, v33, v34")
for i in range(4): A(f"ds_bpermute_b32 v{40+i}, v105, v33 offset:{16*i}")
for r in (8, 4, 2, 1): A(f"v_add_f32_dpp v37, v37, v37 row_ror:{r} {DPPF}")
A(f"""
v_cmp_gt_u32 s[66:67], 8, v100
s_waitcnt lgkmcnt(0)
""")
for i in range(4): A(f"v_cvt_pk_bf16_f32 v{44+i}, v{40+i}, v{40+i}")
for i in range(4): A(f"v_and_b32 v{80+i}, 0xffff0000, v{44+i}")
for i in range(4): A(f"v_sub_f32 v{80+i}, v{40+i}, v{80+i}")
for i in range(4): A(f"v_cvt_pk_bf16_f32 v{80+i}, v{80+i}, v{80+i}")
for i in range(4): A(f"v_cndmask_b32 v{44+i}, v{80+i}, v{44+i}, s[66:67]")
for i in range(4):
    for d in range(4): A(f"v_and_b32 v{64+4*i+d}, v{44+i}, v{108+d}")
A(f"""
s_mov_b32 s77, 0
s_mov_b64 exec, 0xffff
{"s_barrier" if OPT['bard'] else ""}
L_fpoll:
buffer_load_dword v32, v112, {WS}, s69 offen offset:512 sc1
s_add_u32 s77, s77, 1
s_waitcnt vmcnt(0)
v_cmp_ne_u32 vcc, s{sT}, v32
s_cmp_ge_u32 s77, {POLL_MAX}
s_cbranch_scc1 L_fdone
s_cbranch_vccnz L_fpoll
L_fdone:
s_mov_b64 exec, -1
""")
ST(6)
for i in range(4):
    for h in range(2): A(f"buffer_load_dwordx4 {vr(vXr+8*i+4*h,4)}, v103, {WS}, s{SO[i]} offen offset:{256*h} sc1{' nt' if OPT['lnt'] & 2 else ''}")
for i in range(4):
    A(f"s_waitcnt vmcnt({7-2*i})")
    mf16(40, vXr+8*i, 64+4*i, i == 0)
    A(f"s_waitcnt vmcnt({6-2*i})")
    mf16(44, vXr+8*i+4, 64+4*i, i == 0)
A(f"""
s_cmp_lg_u32 s{sW}, 1
s_cbranch_scc1 L_rnostat
s_mov_b32 exec_hi, 0
buffer_store_dwordx2 v[36:37], v107, {WS}, s70 offen offset:1024 sc1
s_mov_b64 exec, -1
L_rnostat:
s_nop 5
""")
for j in range(4): A(f"v_cndmask_b32 v{48+j}, v{40+j}, v{44+j}, s[66:67]")
for j in range(4): A(f"v_cndmask_b32 v{40+j}, v{44+j}, v{40+j}, s[66:67]")
for j in range(4): A(f"v_add_f32_dpp v{40+j}, v{48+j}, v{40+j} row_ror:8 {DPPF}")
A(f"""
v_cvt_pk_bf16_f32 v44, v40, v41
v_cvt_pk_bf16_f32 v45, v42, v43
buffer_store_dwordx2 v[44:45], v106, {WS}, s71 offen sc1
""")
ST(7)
if OPT['late'] == 1: A("s_barrier")
if OPT['wb'] in (4, 5, 6):
    if OPT['wb'] >= 5: A("s_waitcnt vmcnt(0)")
    for i in range(4):
        for h in range(2):
            A(f"buffer_store_dwordx4 {vr(vXr+8*i+4*h,4)}, v103, {WS}, s{SO[i]} offen offset:{256*h} sc1")
        if OPT['wb'] == 6: A("s_waitcnt vmcnt(0)")
if OPT['local'] and OPT['wb'] == 1:
    A(f"""
    s_cmp_lg_u32 s{sK}, 0
    s_cbranch_scc1 L_end
    s_waitcnt vmcnt(0)
    s_barrier
    s_cmp_lg_u32 s{sW}, 0
    s_cbranch_scc1 L_end
    buffer_wbl2 sc1
    """)
finish()

A("L_att_hi:")
late_common()
lane_consts()
A(f"s_load_dwordx2 s[56:57], s[0:1], 16\ns_mov_b32 s58, {576*8192}\ns_mov_b32 s59, 0x20000")
if OPT['prio']: A("s_setprio 2")
if OPT['pf'] == 1:
    A(f"""
    s_getpc_b64 s[66:67]
    L_pc:
    s_sub_u32 s66, s66, L_pc-{NAME}_kernel
    s_subb_u32 s67, s67, 0
    v_subrev_u32 v10, 256, v0
    v_lshlrev_b32 v10, 7, v10
    v_cmp_gt_u32 vcc, L_exit-{NAME}_kernel, v10
    s_and_saveexec_b64 s[68:69], vcc
    s_cbranch_execz L_nopf
    global_load_dword v255, v10, s[66:67]
    L_nopf:
    s_mov_b64 exec, -1
    """)
A(f"""
s_sub_u32 s66, s{sW}, 4
s_lshl_b32 s67, s{sX}, 15
s_lshl_b32 s68, s{sK}, 11
s_add_u32 s68, s68, s67
s_add_u32 s69, s68, {WS_H1L}
s_waitcnt lgkmcnt(0)
s_load_dword s{sE}, s[48:49], 0
s_cmp_lg_u32 s66, 1
s_cbranch_scc1 L_h_b
buffer_load_dwordx4 v[248:251], v9, {WS}, s69 offen
buffer_load_dwordx4 v[248:251], v9, {WS}, s69 offen offset:1024
L_h_b:
""")
if OPT['wqh']:
    A(f"""
    s_cmp_lt_u32 s66, 2
    s_cbranch_scc1 L_h_c
    s_lshr_b32 s68, s{sK}, 2
    s_mul_i32 s68, s68, 144
    s_and_b32 s69, s{sK}, 3
    s_lshl_b32 s69, s69, 2
    s_add_u32 s68, s68, s69
    s_lshl_b32 s69, s66, 1
    s_add_u32 s68, s68, s69
    s_add_u32 s68, s68, 124
    s_lshl_b32 s68, s68, 13
    s_lshl_b32 s69, s{sX}, 10
    s_add_u32 s68, s68, s69
    s_add_u32 s69, s68, 8192
    buffer_load_dwordx4 v[248:251], v9, {RB}, s68 offen
    buffer_load_dwordx4 v[248:251], v9, {RB}, s69 offen
    L_h_c:
    """)
A(f"""
s_lshr_b32 s67, s{sX}, 1
s_lshl_b32 s67, s67, 15
s_lshl_b32 s68, s66, 13
s_add_u32 s67, s67, s68
s_add_u32 s67, s67, {WS_H2}
s_and_b32 s69, s66, 1
s_lshl_b32 s69, s69, 1
v_xor_b32 v10, s69, v3
v_lshlrev_b32 v10, 4, v10
v_lshl_add_u32 v10, v2, 10, v10
s_add_u32 s68, s68, {QA}
v_add_u32 v16, s68, v10
v_xor_b32 v17, 64, v16
v_xor_b32 v18, 16, v16
v_xor_b32 v19, 80, v16
v_lshrrev_b32 v12, 5, v{vL}
v_and_b32 v13, 1, v4
v_lshrrev_b32 v14, 1, v6
v_lshl_or_b32 v13, v13, 1, v14
v_and_b32 v14, 2, v5
v_lshl_or_b32 v14, v14, 1, v12
v_xor_b32 v13, v13, v14
v_lshlrev_b32 v13, 4, v13
v_lshl_add_u32 v13, v5, 7, v13
v_lshl_add_u32 v13, v12, 9, v13
v_and_b32 v14, 1, v6
v_lshl_add_u32 v13, v14, 3, v13
s_lshl_b32 s68, s66, 11
v_add_u32 v20, s68, v13
v_xor_b32 v21, 32, v20
v_xor_b32 v22, 64, v20
v_xor_b32 v23, 96, v20
""")
for j in range(4): A(f"v_add_u32 v{24+j}, 0x10000, v{20+j}")
A(f"s_getreg_b32 s65, hwreg(HW_REG_XCC_ID, 0, 4)\ns_lshl_b32 s72, s{sX}, 11\ns_add_u32 s72, s72, {WS_XT}\ns_waitcnt lgkmcnt(0)")
get_tag()
A(f"""
s_cmp_lg_u32 s66, 0
s_cbranch_scc1 L_noxt
s_lshl_b32 s68, s{sK}, 7
s_add_u32 s68, s68, s72
v_mov_b32 v28, s65
v_mov_b32 v29, s{sT}
v_lshlrev_b32 v30, 3, v{vL}
s_mov_b64 exec, 0xffff
buffer_store_dwordx2 v[28:29], v30, {WS}, s68 offen sc1
s_mov_b64 exec, -1
L_noxt:
""")
A(f"""
s_add_u32 s72, s48, s72
s_addc_u32 s73, s49, 0
s_lshl_b32 s74, s{sX}, 13
s_lshl_b32 s75, s66, {8 if OPT['cpq'] else 11}
s_add_u32 s74, s74, s75
s_add_u32 s74, s74, {WS_PQ}
s_add_u32 s74, s48, s74
s_addc_u32 s75, s49, 0
s_mov_b32 s77, 0
s_sleep 32
""")
if not OPT['local']: A(f"s_mov_b32 s{sLOC}, 1")
if OPT['local']:
    A(f"s_cmp_lg_u32 s66, 0\ns_cbranch_scc1 L_nx\nL_nxp:\ns_mov_b32 s{sLOC}, 0\ns_mov_b32 s76, 0")
    for hlf in range(2):
        for i in range(8): A(f"s_load_dwordx2 s[{16+16*hlf+2*i if hlf == 0 or i < 4 else 52+2*(i-4)}:{17+16*hlf+2*i if hlf == 0 or i < 4 else 53+2*(i-4)}], s[72:73], {(8*hlf+i)*128} glc")
    A("s_waitcnt lgkmcnt(0)")
    for r in list(range(16, 40, 2)) + list(range(52, 60, 2)):
        A(f"s_xor_b32 s{r}, s{r}, s65\ns_or_b32 s{sLOC}, s{sLOC}, s{r}\ns_xor_b32 s{r+1}, s{r+1}, s{sT}\ns_or_b32 s76, s76, s{r+1}")
    A(f"s_or_b32 s{sLOC}, s{sLOC}, s76\ns_add_u32 s77, s77, 1\ns_cmp_ge_u32 s77, 8\ns_cbranch_scc1 L_nx\ns_cmp_lg_u32 s76, 0\ns_cbranch_scc1 L_nxp\nL_nx:")
A(f"""
L_xp:
s_sleep {OPT['psl']}
s_mov_b32 s76, 0
""")
if OPT['cpq']:
    A("s_load_dwordx8 s[16:23], s[74:75], 0 glc\ns_load_dwordx8 s[24:31], s[74:75], 128 glc\ns_waitcnt lgkmcnt(0)")
else:
    for i in range(16): A(f"s_load_dword s{16+i}, s[74:75], {i*128} glc")
    A("s_waitcnt lgkmcnt(0)")
for i in range(16): A(f"s_xor_b32 s{16+i}, s{16+i}, s{sT}\ns_or_b32 s76, s76, s{16+i}")
A(f"""
s_add_u32 s77, s77, 1
s_cmp_ge_u32 s77, {POLL_MAX}
s_cbranch_scc1 L_xd
s_cmp_lg_u32 s76, 0
s_cbranch_scc1 L_xp
L_xd:
""")
ST(6, 2)
if OPT['gbar'] <= 8: A("s_barrier")
if OPT['exp'] == 2: A("s_branch L_end")
ST(9)
vQ = 32
A(f"s_mov_b32 s76, 0xff\ns_mov_b32 s77, 0\ns_add_u32 s69, s67, 4096\nL_h2poll:")
for i in range(8):
    A(f"s_bitcmp1_b32 s76, {i}\ns_cbranch_scc0 L_h2i{i}")
    A(f"buffer_load_dwordx4 {vr(vQ+4*i,4)}, v9, {WS}, s{67 if i < 4 else 69} offen offset:{(i&3)*1024} sc1")
    A(f"L_h2i{i}:")
A(f"s_add_u32 s77, s77, 1\ns_cmp_eq_u32 s77, 1\ns_cbranch_scc1 L_h2first\ns_waitcnt vmcnt(0)\nL_h2first:")
for i in range(8):
    var = ((i >> 1) & 1) + 2*((i >> 2) & 1)
    q = vQ+4*i
    A(f"s_bitcmp1_b32 s76, {i}\ns_cbranch_scc0 L_h2c{i}")
    A(f"s_waitcnt vmcnt({7-i})")
    A(f"v_max3_u32 v28, v{q}, v{q+1}, v{q+2}\nv_max_u32 v28, v28, v{q+3}\nds_write_b128 v{16+var}, {vr(q,4)} offset:{i*128}\nv_cmp_eq_u32 vcc, -1, v28")
    A(f"s_cbranch_vccnz L_h2c{i}\ns_bitset0_b32 s76, {i}\nL_h2c{i}:")
A(f"""
s_waitcnt lgkmcnt(0)
s_cmp_ge_u32 s77, {POLL_MAX}
s_cbranch_scc1 L_h2done
s_cmp_eq_u32 s76, 0
s_cbranch_scc1 L_h2done
s_sleep {OPT['rsleep']}
s_branch L_h2poll
L_h2done:
""")
ST(1)
if OPT['prio']: A("s_setprio 0")
A(f"""
s_lshl_b32 s70, s{sX}, 4
s_add_u32 s70, s70, s{sK}
s_lshl_b32 s76, s70, 15
s_lshl_b32 s71, s66, 13
s_add_u32 s76, s76, s71
s_add_u32 s76, s76, {WS_H3A}
s_add_u32 s78, s76, 4096
s_lshl_b32 s75, s70, 10
s_add_u32 s75, s75, {WS_FLG}
s_barrier
""")
vV = 96; vO = 32
def vfrag(f, tau): return vV + 4*(f*4 + tau)
PR = [224+4*f for f in range(6)] + [16, 252]
def pv_reads(f):
    for tau in range(4):
        for jj in range(2):
            a = (20 if f < 4 else 24) + jj + 2*(tau & 1)
            off = (f & 3)*16384 + jj*8192 + (tau >> 1)*1024
            A(f"ds_read_b64_tr_b16 {vr(vfrag(f,tau)+2*jj,2)}, v{a} offset:{off}")
if OPT['local']:
    A(f"s_cmp_lg_u32 s66, 0\ns_cbranch_scc1 L_npt\nbuffer_load_dwordx4 v[248:251], v9, {WS}, s75 offen\nL_npt:")
    if not OPT['nopt'] and not OPT['ptl']:
        for i in range(8): A(f"buffer_load_dwordx4 v[248:251], v9, {WS}, s{76 if i < 4 else 78} offen offset:{(i&3)*1024}")
FO = [0, 2, 4, 6, 1, 3, 5, 7]
pv_reads(FO[0])
A("s_barrier")
for n in range(1, 8):
    A("s_waitcnt lgkmcnt(6)")
    if n == 5:
        A(f"""
        v_mov_b32 v15, {QA+LCO}
        s_cmp_lg_u32 s66, 0
        s_cbranch_scc1 L_nl
        v_mov_b32 v28, s{sLOC}
        ds_write_b32 v15, v28
        L_nl:
        s_barrier
        """)
    pv_reads(FO[n])
A(f"""
v_add_u32 v10, {QA}, v9
v_and_b32 v13, 31, v{vL}
v_lshlrev_b32 v13, 4, v13
v_lshl_add_u32 v11, v12, 16, v13
s_lshl_b32 s68, s{sX}, 19
s_lshl_b32 s69, s{sK}, 11
s_add_u32 s68, s68, s69
s_lshl_b32 s70, s66, 9
s_add_u32 s68, s68, s70
s_add_u32 s68, s68, {WS_H3A}
s_lshl_b32 s71, s66, 7
s_add_u32 s71, s71, s75
v_mov_b32 v14, s{sT}
s_waitcnt lgkmcnt(0)
s_setprio {OPT['pvq']}
s_barrier
""")
ST(3)
def p_read(f): A(f"ds_read_b128 {vr(PR[f],4)}, v10 offset:{(f>>1)*8192+(f&1)*1024}")
for f in FO[:4]: p_read(f)
for n, f in enumerate(FO):
    if n <= OPT['c2pos']: A(f"s_waitcnt lgkmcnt({3-n})")
    elif n <= 3: pass
    else: A(f"s_waitcnt lgkmcnt({8-n})")
    for tau in range(4): mf32(vO+16*tau, PR[f], vfrag(f,tau), n == 0)
    if n == OPT['c2pos']:
        A("s_waitcnt lgkmcnt(0)\ns_barrier")
        for f2 in FO[4:]: p_read(f2)
        A("ds_read_b32 v15, v15")
A(f"s_waitcnt lgkmcnt(0)\nv_readfirstlane_b32 s{sLOC}, v15")
ST(4)
def pv_store(flag):
    for n, i in enumerate(range(0, 16, 2)):
        d = vV + 4*n
        A(f"v_cvt_pk_bf16_f32 v{d}, v{vO+i}, v{vO+16+i}\nv_cvt_pk_bf16_f32 v{d+2}, v{vO+i+1}, v{vO+16+i+1}")
        A(f"s_add_u32 s69, s68, {((i&3)//2 + 4*(i>>2))*32768}")
        A(f"v_cvt_pk_bf16_f32 v{d+1}, v{vO+32+i}, v{vO+48+i}\nv_cvt_pk_bf16_f32 v{d+3}, v{vO+32+i+1}, v{vO+48+i+1}")
        A(f"buffer_store_dwordx4 {vr(d,4)}, v11, {WS}, s69 offen {flag if flag or not OPT['lnt'] & 1 else 'nt'}")
    A(f"""
    s_mov_b64 exec, 1
    s_waitcnt vmcnt(0)
    buffer_store_dword v14, v8, {WS}, s71 offen offset:512 {flag}
    s_mov_b64 exec, -1
    {"s_barrier" if OPT['bard'] else ""}
    """)
A(f"s_cmp_lg_u32 s{sLOC}, 0\ns_cbranch_scc1 L_pvfar")
pv_store("")
A("L_pvback:")
ST(5)
if OPT['late']:
    NL = OPT['nl']
    A(f"""
    s_load_dwordx4 s[16:19], s[0:1], 56
    s_load_dwordx2 s[20:21], s[0:1], 40
    s_lshr_b32 s68, s{sK}, 2
    s_and_b32 s69, s{sK}, 3
    s_mov_b32 s55, 0x20000
    s_cmp_eq_u32 s{sK}, 14
    s_cbranch_scc1 L_end
    s_cmp_ge_u32 s69, 2
    s_cbranch_scc1 L_lt_f
    s_cmp_eq_u32 s68, 3
    s_cbranch_scc1 L_lt_f
    s_lshl_b32 s70, s{sX}, 3
    s_lshl_b32 s71, s68, 1
    s_add_u32 s70, s70, s71
    s_add_u32 s70, s70, s69
    s_add_u32 s70, s70, 1
    s_mul_i32 s54, s70, {64*1152}
    s_sub_u32 s70, s54, {4*NL*1024}
    s_lshl_b32 s71, s66, 10
    s_add_u32 s70, s70, s71
    s_mov_b32 s71, 4096
    v_mov_b32 v10, v9
    s_waitcnt lgkmcnt(0)
    s_mov_b32 s52, s20
    s_mov_b32 s53, s21
    s_branch L_lt_go
    L_lt_f:
    s_lshl_b32 s70, s68, 1
    s_add_u32 s70, s70, s69
    s_lshr_b32 s71, s69, 1
    s_cmp_eq_u32 s68, 3
    s_cselect_b32 s71, s71, 2
    s_sub_u32 s70, s70, s71
    s_mul_i32 s71, s{sX}, 9
    s_add_u32 s70, s70, s71
    s_lshl_b32 s70, s70, 7
    s_lshr_b32 s71, s66, 1
    s_add_u32 s71, s71, {72-2*NL}
    s_mul_i32 s71, s71, {8*9216}
    s_add_u32 s70, s70, s71
    s_mov_b32 s71, {16*9216}
    s_mov_b32 s54, {576*9216}
    v_mul_u32_u24 v10, 9216, v2
    v_lshl_add_u32 v10, v3, 4, v10
    s_waitcnt lgkmcnt(0)
    s_bitcmp0_b32 s66, 0
    s_cselect_b32 s52, s16, s18
    s_cselect_b32 s53, s17, s19
    L_lt_go:
    """)
    if OPT['late'] == 1: A("s_barrier")
    for i in range(NL):
        A(f"buffer_load_dwordx4 v[248:251], v10, {RA}, s70 offen\ns_add_u32 s70, s70, s71")
finish()
A("L_pvfar:\ns_nop 9")
pv_store("sc1")
A("s_branch L_pvback")

A("L_end:")
if OPT['stamps']:
    A("s_waitcnt vmcnt(0)")
    ST(8)
    A(f"""
    s_waitcnt lgkmcnt(0)
    s_lshl_b32 s66, s2, 3
    s_add_u32 s66, s66, s{sW}
    s_lshl_b32 s66, s66, 6
    s_add_u32 s66, s66, {WS_ST}
    s_getreg_b32 s67, hwreg(HW_REG_XCC_ID)
    s_mov_b64 exec, 1
    v_mov_b32 v8, 0
    """)
    for i in range(3):
        A("\n".join(f"v_mov_b32 v{12+j}, s{80+2*(3*i+j)}" for j in range(3)))
        A(f"v_mov_b32 v15, {['s67','s77','s98'][i]}")
        A(f"buffer_store_dwordx4 v[12:15], v8, {WS}, s66 offen offset:{16*i}")
if OPT['hs'] >= 0:
    if OPT['hr'] == 1: A("s_cmp_ge_u32 s2, 128\ns_cbranch_scc1 L_exit")
    if OPT['hr'] == 3: A(f"s_cmp_ge_u32 s2, 128\ns_cbranch_scc1 L_exit\ns_cmp_ge_u32 s{sW}, 4\ns_cbranch_scc1 L_exit")
    if OPT['hr'] == 4: A(f"s_cmp_ge_u32 s2, 128\ns_cbranch_scc1 L_exit\ns_cmp_lt_u32 s{sW}, 4\ns_cbranch_scc1 L_exit")
    if OPT['hr'] == 2: A("s_cmp_lt_u32 s2, 128\ns_cbranch_scc1 L_exit")
    A(f"s_cmp_eq_u32 s{80+2*OPT['hs']}, 0\ns_cbranch_scc1 L_exit")
    A(f"L_hold2:\ns_memrealtime s[66:67]\ns_waitcnt lgkmcnt(0)\ns_sub_u32 s68, s66, s{80+2*OPT['hs']}\ns_cmp_lt_u32 s68, 4000\ns_cbranch_scc1 L_hold2")
if OPT['hold']:
    A(f"L_hold:\ns_memrealtime s[66:67]\ns_waitcnt lgkmcnt(0)\ns_sub_u32 s68, s66, s80\ns_cmp_lt_u32 s68, {OPT['hold']}\ns_cbranch_scc1 L_hold")
A("L_exit:\ns_endpgm")
A.raw(f""".section .rodata,"a"
.p2align 6
.amdhsa_kernel {NAME}_kernel
  .amdhsa_next_free_vgpr 256
  .amdhsa_next_free_sgpr 102
  .amdhsa_accum_offset 256
  .amdhsa_group_segment_fixed_size 0
  .amdhsa_kernarg_size 104
  .amdhsa_user_sgpr_count 2
  .amdhsa_user_sgpr_kernarg_segment_ptr 1
  .amdhsa_system_sgpr_workgroup_id_x 1
  .amdhsa_float_denorm_mode_32 3
.end_amdhsa_kernel""")
sys.stdout.write(A.text())
sys.stderr.write(f"instructions {A.count} nops {A.nops}\n")
```

```python
import sys, math, struct
from asmx import Asm, NAME

OPT = dict(stamps=0, local=1, hold=0, pf=2, exp=0, gbar=8, rsleep=0, help=5, fslow=2, tslow=0, wb=0, gap=0, prio=1, ukw=0, wqh=1, adel=0, psl=0, cpq=1, hb=1, noclr=0, nopt=0, hslow=0, gslow=0, Tslow=0, areg=1, pvp=1, ckh=1, lnt=0, c3l=0, rowm=0, fclr=0, late=0, nl=8, bpre=1, fhelp=0, pearly=0, pfirst=0, fbar=1, fwin=0, fbx=1, nqal=0, fv=0, pvq=3, ptl=3, bard=0, c2pos=2, tg=0, aclr=0, isl=0, rep=2, hs=-1, hr=0)
for a in sys.argv[1:]:
    k, v = a.split("="); assert k in OPT, k; OPT[k] = int(v)

WS_PF  = 0x010000
WS_FF  = 0x020000
WS_TG  = 0x038000
WS_XT  = 0x030000
WS_H1  = 0x040000
WS_H1L = 0x0C0000
WS_H2  = 0x080000
WS_PQ  = 0x0A0000
WS_FLG = 0x100000
WS_H3B = 0x140000
WS_H5  = 0x200000
WS_H3A = 0x400000
WS_ST  = 0x800000
POLL_MAX = 400000 if not OPT['exp'] else 40

P_X, P_CKV, P_WQ, P_WUK, P_WUV, P_WO, P_BX, P_WG, P_WU, P_WD, P_OUT, P_DBG = [16+2*i for i in range(12)]
sSL, sF = 40, 41
sE, sT, sW, sX, sK, sH = 42, 43, 44, 45, 46, 47
WS = "s[48:51]"; RA = "s[52:55]"; RB = "s[56:59]"; RC = "s[60:63]"
sQD, sA_ = 64, 65
A = Asm()
HW = '\ns_waitcnt vmcnt(0)' if OPT['hslow'] else ''
NQPART = [True]

def srd(base, ptr, size):
    A(f"s_mov_b32 s{base}, s{ptr}\ns_mov_b32 s{base+1}, s{ptr+1}\ns_mov_b32 s{base+2}, {size}\ns_mov_b32 s{base+3}, 0x20000")
def ST(i, mode=1):
    if OPT['stamps'] == mode or (OPT['stamps'] and i in (0, 8)): A(f"s_memrealtime s[{80+2*i}:{81+2*i}]")
def vr(a, n): return f"v[{a}:{a+n-1}]"
def dma(voff, rsrc, soff, flags="nt"):
    A(f"buffer_load_dwordx4 v{voff}, {rsrc}, s{soff} offen {flags} lds")
def finish(): A("s_branch L_end")
def get_tag():
    A(f"s_add_u32 s{sE}, s{sE}, 1\ns_mul_i32 s{sT}, s{sE}, 0x9E3779B1\ns_xor_b32 s{sT}, s{sT}, 0x5BD1E995")
def rb16(dst, src):
    A(f"v_cvt_pk_bf16_f32 v{dst}, v{src}, v{src}\nv_lshlrev_b32 v{dst}, 16, v{dst}")
DPPF = "row_mask:0xf bank_mask:0xf"
QP1 = "quad_perm:[1,0,3,2] " + DPPF
def wave_sum_to_sgpr(v, s):
    for r in (8, 4, 2, 1): A(f"v_add_f32_dpp v{v}, v{v}, v{v} row_ror:{r} {DPPF}")
    A(f"v_add_f32_dpp v{v}, v{v}, v{v} row_bcast:15 row_mask:0xa bank_mask:0xf")
    A(f"v_add_f32_dpp v{v}, v{v}, v{v} row_bcast:31 row_mask:0xc bank_mask:0xf")
    A(f"v_readlane_b32 s{s}, v{v}, 63")
def fbits(x): return "0x%08x" % struct.unpack("<I", struct.pack("<f", x))[0]
def mf16(d, a, b, first): A(f"v_mfma_f32_16x16x32_bf16 {vr(d,4)}, {vr(a,4)}, {vr(b,4)}, {'0' if first else vr(d,4)}")
def mf32(d, a, b, first): A(f"v_mfma_f32_32x32x16_bf16 {vr(d,16)}, {vr(a,4)}, {vr(b,4)}, {'0' if first else vr(d,16)}")
def ones(v): A("\n".join(f"v_mov_b32 v{v+j}, -1" for j in range(4)))
LOG2E = 1.4426950408889634

HDR = """; Kernarg layout (104 bytes, pointers only, base s[0:1]):
; Compressed-KV attention in absorbed form:  q_abs = (LN(x) W_q) W_uk^T,  latent = softmax(q_abs c_kv^T) c_kv,
; s = (latent W_uv) W_o;  gate branch y = (gelu(LN(x) W_g) * LN(x) W_u) W_d;  out = x + s * silu(y).
; Hand-offs go through d_ws: words tagged with a per-launch value derived from d_ws[0], or areas cleared in this launch.
; Stores stay in the die's L2 only after a run-time check that all 16 partners report the same die id."""
for l_ in HDR.split("\n"): A.raw(l_)
A.raw("; @launch grid=(256,1,1) block=(512,1,1) lds=163840")
A.raw('.amdgcn_target "amdgcn-amd-amdhsa--gfx950"')
A.raw(f".text\n.globl {NAME}_kernel\n.p2align 8\n.type {NAME}_kernel,@function\n{NAME}_kernel:")
vL = 1
BIG = 16384
WQB = BIG + 108*1024
def late_common():
    A(f"""
    s_load_dwordx2 s[48:49], s[0:1], 96
    s_load_dwordx16 s[16:31], s[0:1], 0
    s_load_dwordx8 s[32:39], s[0:1], 64
    s_mov_b32 s50, 0x10000000
    s_mov_b32 s51, 0x20000
    s_mov_b32 s55, 0x20000
    """)
ST(0)
A(f"""
s_load_dwordx2 s[60:61], s[0:1], 24
s_lshr_b32 s3, s2, 7
s_cbranch_scc1 L_nq
v_lshrrev_b32 v3, 6, v0
v_and_b32 v{vL}, 63, v0
v_lshlrev_b32 v9, 4, v{vL}
v_lshl_add_u32 v2, v3, 13, v9
s_and_b32 s{sX}, s2, 7
s_lshl_b32 s68, s{sX}, 10
s_lshr_b32 s{sK}, s2, 3
s_lshl_b32 s69, s{sK}, 18
s_add_u32 s68, s68, s69
v_add_u32 v2, s68, v2
""")
if OPT['pfirst']:
    A(f"s_getpc_b64 s[66:67]\nv_lshlrev_b32 v4, 1, v0\nglobal_load_dword v247, v4, s[66:67] offset:64")
A("s_waitcnt lgkmcnt(0)")
for i in range(4):
    A("global_load_dwordx4 v[248:251], v2, s[60:61]")
    if i < 3: A("v_add_u32 v2, 0x10000, v2")
PFB = f"""
v_readfirstlane_b32 s{sW}, v3
v_lshlrev_b32 v2, 7, v0
v_cmp_gt_u32 vcc, L_exit-L_pc, v2
s_and_saveexec_b64 s[68:69], vcc
s_cbranch_execz L_att
global_load_dword v247, v2, s[66:67]
s_branch L_att
"""
A("s_getpc_b64 s[66:67]\nL_pc:")
if OPT['nqal']: A("s_branch L_att0")
else: A(PFB)
A(f"""
L_nq:
s_load_dwordx2 s[56:57], s[0:1], 16
s_load_dwordx2 s[52:53], s[0:1], 0
v_lshrrev_b32 v2, 6, v0
s_and_b32 s{sX}, s2, 7
s_mov_b32 s59, 0x20000
v_readfirstlane_b32 s{sW}, v2
s_cmp_ge_u32 s2, 256
s_cbranch_scc1 L_exit
s_movk_i32 s70, 128
v_bfe_u32 v2, v0, 3, 4
v_lshrrev_b32 v3, 8, v0
v_lshl_add_u32 v3, v3, 4, v2
v_lshrrev_b32 v11, 1, v2
v_and_b32 v11, 4, v11
v_and_or_b32 v11, v2, 2, v11
v_xor_b32 v11, v11, v0
v_and_b32 v11, 7, v11
v_lshlrev_b32 v11, 4, v11
v_and_or_b32 v12, v0, s70, v11
v_lshl_add_u32 v12, v3, 13, v12
s_bfe_u32 s{sA_}, s2, 0x20005
s_bfe_u32 s{sQD}, s2, 0x20003
s_lshl2_add_u32 s{sH}, s{sX}, s{sA_}
s_mul_i32 s72, s{sQD}, {18*65536}
s_lshl_b32 s73, s{sH}, 8
s_add_u32 s72, s72, s73
s_mov_b32 s58, {576*8192}
s_and_b32 s67, s{sW}, 1
s_bfe_u32 s69, s{sW}, 0x10001
s_and_b32 s71, s{sW}, 4
s_lshl1_add_u32 s71, s67, s71
s_add_u32 s71, s71, s69
s_lshl_b32 s71, s71, 10
s_add_u32 m0, s71, {WQB}
""")
A(f"""
v_and_b32 v{vL}, 63, v0
s_mul_i32 s66, s{sW}, 1152
v_lshl_add_u32 v13, v{vL}, 3, s66
v_lshl_add_u32 v14, v{vL}, 1, s66
s_lshr_b32 s70, s{sW}, 2
""")
ST(1, 5)
A("s_waitcnt lgkmcnt(0)")
ST(2, 5)
A("""
s_cbranch_scc1 L_nq_nox
global_load_dwordx2 v[20:21], v13, s[52:53]
global_load_dwordx2 v[22:23], v13, s[52:53] offset:512
global_load_ushort v24, v14, s[52:53] offset:1024
L_nq_nox:
""")
for i in range(4):
    dma(12, RB, 72)
    A(f"s_add_u32 s72, s72, {4*65536}\ns_add_u32 m0, s71, {WQB+8192*(i+1)}")
A(f"s_cmp_lg_u32 s70, 0\ns_cbranch_scc1 L_nq_d4")
dma(12, RB, 72)
A("L_nq_d4:")
ST(3, 5)
if OPT['nqal']:
    A("s_branch L_nq2\nL_att0:")
    A(PFB)
    A("L_nq2:")
late_common()
A(f"""
s_lshr_b32 s{sK}, s2, 3
v_lshlrev_b32 v9, 4, v{vL}
s_mov_b32 s62, {512*8192}
s_mov_b32 s63, 0x20000
""")
def lane_consts():
    A(f"v_lshrrev_b32 v2, 3, v{vL}\nv_and_b32 v3, 7, v{vL}\nv_lshrrev_b32 v4, 4, v{vL}\nv_bfe_u32 v5, v{vL}, 2, 2\nv_and_b32 v6, 3, v{vL}\nv_lshlrev_b32 v7, 4, v0\nv_mov_b32 v8, 0")
    if OPT['stamps']:
        for i in range(82 if OPT['stamps'] != 5 else 88, 102): A(f"s_mov_b32 s{i}, 0")

XN, XNS = 0, 1216
QL, QLS = 5120, 320
HB, HBS = 9728, 192
vTR = 13
vD = 28
def common_setup():
    lane_consts()
    A(f"""
    s_and_b32 s67, s{sW}, 1
    s_lshl_b32 s68, s67, 2
    v_and_b32 v11, 2, v2
    v_or_b32 v11, s68, v11
    v_xor_b32 v11, v11, v3
    v_lshlrev_b32 v11, 4, v11
    v_lshl_add_u32 v12, v2, 13, v11
    s_lshr_b32 s68, s{sW}, 1
    s_bfe_u32 s69, s{sW}, 0x10001
    s_lshr_b32 s70, s{sW}, 2
    """)
def common_setup2():
    A(f"""
    s_and_b32 s74, s{sW}, 3
    s_lshl_b32 s74, s74, 1
    v_lshrrev_b32 v{vTR}, 1, v6
    v_or_b32 v{vTR}, s74, v{vTR}
    v_and_b32 v14, 2, v5
    v_xor_b32 v{vTR}, v{vTR}, v14
    v_and_b32 v14, 1, v4
    v_lshlrev_b32 v15, 2, v14
    v_xor_b32 v{vTR}, v{vTR}, v15
    v_lshlrev_b32 v{vTR}, 4, v{vTR}
    v_lshl_add_u32 v{vTR}, v5, 7, v{vTR}
    v_and_b32 v15, 1, v6
    v_lshl_add_u32 v{vTR}, v15, 3, v{vTR}
    s_lshl_b32 s74, s70, 10
    s_add_u32 s74, s74, {BIG}
    v_add_u32 v15, s74, v{vTR}
    v_lshl_add_u32 v16, v4, 11, v15
    v_mul_u32_u24 v18, {XNS}, v6
    v_lshl_add_u32 v18, v4, 4, v18
    s_mov_b32 s78, 0x000f000f
    s_mov_b32 s79, 0x000f000f
    """)
def x_loads():
    A(f"""
    s_mul_i32 s66, s{sW}, 1152
    v_lshlrev_b32 v10, 3, v{vL}
    v_lshlrev_b32 v19, 1, v{vL}
    buffer_load_dwordx2 v[20:21], v10, {RA}, s66 offen
    buffer_load_dwordx2 v[22:23], v10, {RA}, s66 offen offset:512
    buffer_load_ushort v24, v19, {RA}, s66 offen offset:1024
    """)
def layernorm():
    e = list(range(56, 65))
    for i in range(4): A(f"v_lshlrev_b32 v{e[2*i]}, 16, v{20+i}\nv_and_b32 v{e[2*i+1]}, 0xffff0000, v{20+i}")
    A(f"""
    v_lshlrev_b32 v{e[8]}, 16, v24
    v_add_f32 v25, v{e[0]}, v{e[1]}
    v_add_f32 v26, v{e[2]}, v{e[3]}
    v_add_f32 v27, v{e[4]}, v{e[5]}
    v_add_f32 v28, v{e[6]}, v{e[7]}
    v_add_f32 v25, v25, v26
    v_add_f32 v27, v27, v28
    v_add_f32 v25, v25, v{e[8]}
    v_add_f32 v25, v25, v27
    """)
    wave_sum_to_sgpr(25, 74)
    A(f"v_mov_b32 v26, {fbits(1.0/576)}\nv_mul_f32 v26, s74, v26")
    A(f"v_sub_f32 v27, v{e[0]}, v26\nv_mul_f32 v25, v27, v27")
    for i in range(1, 9): A(f"v_sub_f32 v27, v{e[i]}, v26\nv_fmac_f32 v25, v27, v27")
    rb16(26, 26)
    for i in range(9): A(f"v_sub_f32 v{e[i]}, v{e[i]}, v26")
    wave_sum_to_sgpr(25, 74)
    A(f"v_mov_b32 v27, {fbits(1.0/576)}\nv_mul_f32 v27, s74, v27")
    rb16(27, 27)
    A(f"v_add_f32 v27, {fbits(1e-5)}, v27")
    rb16(27, 27)
    A("v_sqrt_f32 v27, v27")
    rb16(27, 27)
    A("v_rcp_f32 v27, v27")
    for i in range(0, 8, 2): A(f"v_cvt_pk_bf16_f32 v{20+i//2}, v{e[i]}, v{e[i+1]}")
    A(f"v_cvt_pk_bf16_f32 v24, v{e[8]}, v{e[8]}")
    for i in range(0, 8, 2): A(f"v_lshlrev_b32 v{e[i]}, 16, v{20+i//2}\nv_and_b32 v{e[i+1]}, 0xffff0000, v{20+i//2}")
    A(f"v_lshlrev_b32 v{e[8]}, 16, v24")
    for i in range(9): A(f"v_mul_f32 v{e[i]}, v{e[i]}, v27")
    for i in range(0, 8, 2): A(f"v_cvt_pk_bf16_f32 v{20+i//2}, v{e[i]}, v{e[i+1]}")
    A(f"v_cvt_pk_bf16_f32 v24, v{e[8]}, v{e[8]}")
    A(f"""
    s_mul_i32 s74, s{sW}, {XNS}
    v_add_u32 v10, s74, v10
    v_add_u32 v19, s74, v19
    ds_write_b64 v10, v[20:21] offset:{XN}
    ds_write_b64 v10, v[22:23] offset:{XN+512}
    ds_write_b16 v19, v24 offset:{XN+1024}
    """)
def clear_tail_inbox(vones):
    A(f"s_lshl_b32 s74, s{sH}, 14\ns_add_u32 s74, s74, {WS_H3B}")
    for i in range(4):
        A(f"buffer_store_dwordx4 {vr(vones,4)}, v9, {WS}, s74 offen sc1\nbuffer_store_dwordx4 {vr(vones,4)}, v9, {WS}, s74 offen offset:2048 sc1")
        if i < 3: A("s_add_u32 s74, s74, 4096")
    A(f"s_sub_u32 s74, s74, {3*4096}\nv_lshlrev_b32 v14, 11, v2\nv_lshl_add_u32 v14, v3, 4, v14")
    A(f"buffer_store_dwordx4 {vr(vones,4)}, v14, {WS}, s74 offen offset:1024 sc1")
def proof(sidx):
    A(f"""
    s_lshl_b32 s74, s{sidx}, 7
    s_add_u32 s74, s74, {WS_PF}
    v_mov_b32 v14, s{sT}
    v_lshlrev_b32 v17, 2, v{vL}
    s_mov_b32 exec_hi, 0
    buffer_store_dword v14, v17, {WS}, s74 offen sc1
    s_mov_b64 exec, -1
    """)
vXN, vG = 32, 104
def xn_frags():
    for kp in range(18):
        A(f"ds_read_b128 {vr(vXN+4*kp,4)}, v18 offset:{XN+kp*64}")
        if kp == 11: A("s_waitcnt lgkmcnt(4)")
def k_half(h, va, vb):
    for kp in range(9):
        a, off = (va, kp*8192) if kp < 8 else (vb, 0)
        A(f"ds_read_b64_tr_b16 {vr(vG+4*kp,2)}, v{a} offset:{off}")
        A(f"ds_read_b64_tr_b16 {vr(vG+4*kp+2,2)}, v{a} offset:{off+512}")
        if kp == 5: A("s_waitcnt lgkmcnt(6)")
    for kp in range(9):
        A(f"s_waitcnt lgkmcnt({min(15,2*(8-kp))})")
        mf16(vD, vG+4*kp, vXN+4*(9*h+kp), h == 0 and kp == 0)

QP, QPS = 5120, 272
UKB = BIG
sU = 76
def f_setup():
    A(f"""
    s_lshl_b32 s71, s{sA_}, 1
    s_add_u32 s71, s71, s{sQD}
    s_lshr_b32 s72, s{sQD}, 1
    s_cmp_eq_u32 s{sA_}, 3
    s_cselect_b32 s72, s72, 2
    s_sub_u32 s71, s71, s72
    s_mul_i32 s{sU}, s{sX}, 9
    s_add_u32 s{sU}, s{sU}, s71
    s_cmp_eq_u32 s69, 0
    s_cselect_b32 s60, s{P_WG}, s{P_WU}
    s_cselect_b32 s61, s{P_WG+1}, s{P_WU+1}
    s_mov_b32 s62, {576*9216}
    s_lshl_b32 s72, s67, 1
    s_lshl_b32 s71, s69, 2
    s_or_b32 s72, s72, s71
    v_bfe_u32 v14, v2, 1, 1
    v_or_b32 v14, s72, v14
    v_xor_b32 v14, v14, v3
    v_lshlrev_b32 v14, 4, v14
    v_mul_u32_u24 v12, 9216, v2
    v_add_u32 v12, v12, v14
    s_lshl_b32 s71, s70, 1
    s_add_u32 s71, s71, s67
    s_mul_i32 s72, s71, {8*9216}
    s_lshl_b32 s74, s{sU}, 7
    s_add_u32 s72, s72, s74
    s_lshl_b32 s71, s71, 1
    s_add_u32 s71, s71, s69
    s_lshl_b32 s71, s71, 10
    s_add_u32 s71, s71, {BIG}
    """)
def gu_dma(i):
    A(f"s_mov_b32 m0, s71\ns_add_u32 s71, s71, 8192")
    dma(12, RC, 72)
    A(f"s_add_u32 s72, s72, {32*9216}")
lane_consts()
A(f"""
v_lshl_add_u32 v12, v2, 13, v11
s_lshl_b32 s74, s69, 7
s_add_u32 s73, s73, s74
s_mov_b32 s54, 4608
v_lshlrev_b32 v10, 3, v{vL}
v_lshlrev_b32 v19, 1, v{vL}
s_waitcnt lgkmcnt(0)
s_load_dword s{sE}, s[48:49], 0
""")
ST(1, 2)
A(f"s_lshr_b32 s68, s{sW}, 1\ns_cmp_ge_u32 s{sQD}, 2\ns_cbranch_scc1 L_nq_fs")
A(f"""
s_lshl_b32 s71, s70, 3
s_add_u32 s71, s71, s67
s_lshl_b32 s72, s{sQD}, 5
s_add_u32 s72, s72, s71
s_lshl_b32 s72, s72, 16
s_add_u32 s72, s72, s73
s_lshl_b32 s71, s71, 1
s_add_u32 s71, s71, s69
s_lshl_b32 s71, s71, 10
s_add_u32 s71, s71, {UKB}
s_cmp_eq_u32 s70, 0
s_cbranch_scc1 L_nq_ln
""")
ones(24)
A(f"""
s_lshl_b32 s75, s{sW}, 12
s_lshl_b32 s74, s{sH}, 14
s_add_u32 s74, s74, s75
s_add_u32 s74, s74, {WS_H3B-16384}
buffer_store_dwordx4 v[24:27], v9, {WS}, s74 offen sc1
buffer_store_dwordx4 v[24:27], v9, {WS}, s74 offen offset:2048 sc1
s_mov_b64 exec, 0xff
buffer_store_dwordx4 v[24:27], v9, {WS}, s74 offen offset:1024 sc1
buffer_store_dwordx4 v[24:27], v9, {WS}, s74 offen offset:3072 sc1
s_lshl_b32 s75, s{sW}, 15
s_lshl_b32 s74, s{sH}, 10
s_add_u32 s74, s74, s75
s_lshl_b32 s75, s{sQD}, 9
s_add_u32 s74, s74, s75
s_add_u32 s74, s74, {WS_H2-4*32768}
s_mov_b32 exec_lo, -1
buffer_store_dwordx4 v[24:27], v9, {WS}, s74 offen sc1
s_mov_b64 exec, -1
s_branch L_nq_noln
L_nq_fs:
s_cmp_lg_u32 s{sK}, 30
s_cbranch_scc1 L_nq_fs2
s_cmp_eq_u32 s70, 0
s_cbranch_scc1 L_nq_ln
""")
ones(24)
A(f"""
s_lshl_b32 s75, s{sW}, 12
s_lshl_b32 s74, s{sH}, 14
s_add_u32 s74, s74, s75
s_add_u32 s74, s74, {WS_H3B-16384}
buffer_store_dwordx4 v[24:27], v9, {WS}, s74 offen sc1
buffer_store_dwordx4 v[24:27], v9, {WS}, s74 offen offset:2048 sc1
s_mov_b64 exec, 0xff
buffer_store_dwordx4 v[24:27], v9, {WS}, s74 offen offset:1024 sc1
buffer_store_dwordx4 v[24:27], v9, {WS}, s74 offen offset:3072 sc1
s_mov_b64 exec, -1
s_branch L_nq_noln
L_nq_fs2:
""")
f_setup()
A(f"s_cmp_lg_u32 s70, 0\ns_cbranch_scc1 L_nq_noln\nL_nq_ln:\ns_waitcnt vmcnt(5)")
ST(2, 2)
layernorm()
A("L_nq_noln:")
ST(3, 2)
common_setup2()
A(f"""
v_add_u32 v21, {WQB-BIG}, v16
v_and_b32 v14, 1, v4
v_lshl_add_u32 v17, v14, 11, v15
v_add_u32 v17, {WQB-BIG}, v17
s_mul_i32 s74, s{sQD}, 288
v_add_u32 v19, s74, v18
s_lshl_b32 s66, s{sH}, 13
s_add_u32 s66, s66, {WS_H1L}
s_lshl_b32 s75, s{sQD}, 11
s_add_u32 s75, s75, s66
s_lshl_b32 s77, s{sW}, 8
s_add_u32 s75, s75, s77
v_lshlrev_b32 v20, 6, v6
v_lshl_add_u32 v20, v4, 4, v20
v_cmp_gt_u32 vcc, 2, v4
s_cmp_lt_u32 s{sQD}, 2
s_cbranch_scc1 L_nq_uk
s_waitcnt vmcnt(0)
""")
for i in range(OPT['gap']): gu_dma(i)
A(f"""
s_branch L_nq_a
L_nq_uk:
s_waitcnt vmcnt(5)
s_cmp_lg_u32 s70, 0
s_cbranch_scc1 L_nq_uk2
s_waitcnt vmcnt(0)
L_nq_uk2:
""")
for i in range(4):
    A(f"s_mov_b32 m0, s71\ns_add_u32 s71, s71, 4096")
    dma(12, RC, 72)
    A(f"s_add_u32 s72, s72, {2*65536}")
A("L_nq_a:\ns_waitcnt lgkmcnt(0)")
ST(1); ST(5, 2)
A("s_barrier")
vA, vB = 64, 96
for kp in range(5):
    a = 21 if kp < 4 else 17
    A(f"ds_read_b64_tr_b16 {vr(vA+4*kp,2)}, v{a} offset:{kp*8192}")
    A(f"ds_read_b64_tr_b16 {vr(vA+4*kp+2,2)}, v{a} offset:{kp*8192+512}")
    A(f"ds_read_b128 {vr(vB+4*kp,4)}, v19 offset:{XN+kp*64}")
get_tag()
A(f"v_mov_b32 v25, s{sT}\nv_mov_b32 v27, s{sT}")
for kp in range(5):
    A(f"s_waitcnt lgkmcnt({3*(4-kp)})")
    if kp == 4:
        for j in range(4): A(f"v_cndmask_b32 v{vB+16+j}, 0, v{vB+16+j}, vcc")
    mf16(vD, vA+4*kp, vB+4*kp, kp == 0)
H1D = WS_H1L - WS_H1
def pq_addr():
    if OPT['cpq']:
        return f"""v_lshlrev_b32 v55, 10, v{vL}
        s_lshl_b32 s76, s{sX}, 7
        s_lshl_b32 s74, s{sA_}, 3
        s_add_u32 s76, s76, s74
        s_lshl_b32 s74, s{sQD}, 2
        s_add_u32 s76, s76, s74
        s_add_u32 s76, s76, {WS_PQ}"""
    return f"""v_lshlrev_b32 v55, 13, v2
    v_lshl_add_u32 v55, v3, 4, v55
    s_lshl_b32 s76, s{sH}, 8
    s_lshl_b32 s74, s{sQD}, 7
    s_add_u32 s76, s76, s74
    s_add_u32 s76, s76, {WS_PQ}"""
PQX = {1: "s_mov_b64 exec, 0xff", 2: "s_mov_b64 exec, 0xffff", 4: "s_mov_b32 exec_hi, 0", 8: "s_nop 0"}[OPT["rep"]]
PQST = f"{PQX}\nbuffer_store_dword v44, v55, {WS}, s76 offen sc1\ns_mov_b64 exec, -1" if OPT['cpq'] else f"buffer_store_dwordx4 v[44:47], v55, {WS}, s76 offen sc1"
A(f"""
v_and_b32 v52, 1, v2
v_and_b32 v53, 2, v3
v_lshl_or_b32 v53, v52, 2, v53
v_xor_b32 v53, v53, v4
v_lshlrev_b32 v53, 4, v53
v_lshl_add_u32 v53, v3, 7, v53
v_lshl_add_u32 v52, v52, 11, v53
v_cvt_pk_bf16_f32 v24, v{vD}, v{vD+1}
v_cvt_pk_bf16_f32 v26, v{vD+2}, v{vD+3}
s_mov_b64 exec, s[78:79]
buffer_store_dwordx4 v[24:27], v20, {WS}, s75 offen
s_sub_u32 s75, s75, {H1D}
s_cmp_lt_u32 s{sQD}, 2
s_cbranch_scc1 L_nq_b
buffer_store_dwordx4 v[24:27], v20, {WS}, s75 offen sc1
s_mov_b64 exec, -1
""")
ST(2); ST(6, 2)
A(f"s_barrier\ns_cmp_eq_u32 s{sK}, 30\ns_cbranch_scc1 L_T")
if OPT['ckh']:
    nb = OPT['ckh']; lpr = 8*nb; rpi = 64//lpr
    A(f"""
    s_mov_b32 s56, s{P_CKV}
    s_mov_b32 s57, s{P_CKV+1}
    s_lshl_b32 s74, s{sA_}, 1
    s_add_u32 s74, s74, s{sQD}
    s_sub_u32 s74, s74, 2
    s_min_u32 s74, s74, 6
    s_lshl_b32 s74, s74, 3
    s_add_u32 s74, s74, s{sW}
    s_mul_i32 s74, s74, {rpi*1024}
    s_lshl_b32 s75, s{sX}, 21
    s_add_u32 s74, s74, s75
    s_add_u32 s58, s75, {1 << 21}
    v_lshrrev_b32 v48, {int(math.log2(lpr))}, v{vL}
    v_and_b32 v49, {lpr-1}, v{vL}
    v_lshlrev_b32 v48, 10, v48
    v_lshl_add_u32 v48, v49, 4, v48
    """)
    n = -(-2048 // (56*rpi))
    for i in range(n):
        A(f"buffer_load_dwordx4 v[248:251], v48, {RB}, s74 offen offset:{(1024-128*nb) if not OPT['c3l'] else (384 if nb == 1 else 256)}")
        if i < n-1: A(f"s_add_u32 s74, s74, {56*rpi*1024}")
A(f"s_branch L_F\nL_nq_b:\ns_mov_b64 exec, -1")
ST(2); ST(6, 2)
if OPT['pearly']:
    A(f"s_waitcnt vmcnt(5)\ns_barrier\ns_lshl_b32 s77, s{sQD}, 1\ns_cmp_lg_u32 s{sW}, s77\ns_cbranch_scc1 L_pe\n{pq_addr()}\nv_mov_b32 v44, s{sT}\n{PQST}\nL_pe:")
    A(f"s_add_u32 s71, s71, 16384\ns_add_u32 s72, s72, {8*65536}")
else:
    A(f"s_barrier\ns_add_u32 s71, s71, 16384\ns_add_u32 s72, s72, {8*65536}")
for i in range(4):
    A(f"s_mov_b32 m0, s71\ns_add_u32 s71, s71, 4096")
    dma(12, RC, 72)
    if i < 3: A(f"s_add_u32 s72, s72, {2*65536}")
A(f"""
s_mul_i32 s74, s68, {4*QPS}
s_lshl_b32 s77, s67, 7
s_add_u32 s74, s74, s77
v_mul_u32_u24 v22, {QPS}, v5
v_lshl_add_u32 v22, v4, 5, v22
v_lshl_add_u32 v22, v6, 3, v22
v_add_u32 v22, s74, v22
s_lshl_b32 s77, s{sW}, 13
s_add_u32 s77, s77, {UKB}
v_add_u32 v52, s77, v52
v_xor_b32 v53, 64, v52
v_and_b32 v23, 15, v{vL}
v_mul_u32_u24 v23, {QPS}, v23
v_lshl_add_u32 v23, v4, 4, v23
s_lshl_b32 s72, s{sH}, 10
s_lshl_b32 s74, s{sQD}, 9
s_add_u32 s72, s72, s74
s_lshl_b32 s74, s{sW}, 6
s_add_u32 s72, s72, s74
s_add_u32 s72, s72, {WS_H2}
v_and_b32 v21, 1, v5
v_lshlrev_b32 v54, 15, v6
{pq_addr()}
v_mov_b32 v44, s{sT}
v_mov_b32 v45, s{sT}
v_mov_b32 v46, s{sT}
v_mov_b32 v47, s{sT}
v_lshl_add_u32 v54, v21, 5, v54
v_lshl_add_u32 v54, v4, 3, v54
s_sub_u32 s71, s66, {H1D}
s_mov_b32 s77, 0
L_h1poll:
s_cmp_lg_u32 s77, 6
s_cbranch_scc1 L_h1ng
s_mov_b64 exec, s[78:79]
buffer_store_dwordx4 v[24:27], v20, {WS}, s75 offen sc1
s_mov_b64 exec, -1
L_h1ng:
s_and_b32 s74, s77, 9
s_cmp_eq_u32 s74, 9
s_cselect_b32 s74, s71, s66
buffer_load_dwordx4 v[48:51], v7, {WS}, s74 offen sc1
s_add_u32 s77, s77, 1
s_waitcnt vmcnt(0)
v_xor_b32 v49, s{sT}, v49
v_xor_b32 v51, s{sT}, v51
v_or_b32 v49, v49, v51
v_cmp_ne_u32 vcc, 0, v49
s_cmp_ge_u32 s77, {POLL_MAX}
s_cbranch_scc1 L_h1done
s_cbranch_vccnz L_h1poll
L_h1done:
v_mov_b32 v49, v50
ds_write_b64 v22, v[48:49] offset:{QP}
s_cmp_gt_u32 s77, 6
s_cbranch_scc1 L_h1sent
s_mov_b64 exec, s[78:79]
buffer_store_dwordx4 v[24:27], v20, {WS}, s75 offen sc1
s_mov_b64 exec, -1
L_h1sent:
""")
A(f"L_h1np:\nv_cmp_ne_u32 vcc, 0, v21\ns_waitcnt lgkmcnt(0)")
ST(3); ST(7, 2)
if OPT['pearly']: A("s_barrier")
else: A(f"s_barrier\ns_cmp_lg_u32 s{sW}, 0\ns_cbranch_scc1 L_nopq\n{PQST}\nL_nopq:")
vUK, vD1 = 64, 56
for kp in range(4):
    A(f"ds_read_b128 {vr(vB+4*kp,4)}, v23 offset:{QP+kp*64}")
    for tl in range(2):
        A(f"ds_read_b128 {vr(vUK+16*tl+4*kp,4)}, v{52+(kp&1)} offset:{tl*4096+(kp>>1)*1024}")
A(f"s_mov_b32 s74, {fbits(LOG2E/math.sqrt(128.0))}")
for kp in range(4):
    A(f"s_waitcnt lgkmcnt({9-3*kp+1})")
    mf16(vD, vUK+4*kp, vB+4*kp, kp == 0)
    A(f"s_waitcnt lgkmcnt({9-3*kp})")
    mf16(vD1, vUK+16+4*kp, vB+4*kp, kp == 0)
for j in range(4): A(f"v_cndmask_b32 v{60+j}, v{vD1+j}, v{vD+j}, vcc")
for j in range(4): A(f"v_cndmask_b32 v{vD+j}, v{vD+j}, v{vD1+j}, vcc")
for j in range(4): A(f"v_add_f32_dpp v{vD+j}, v{60+j}, v{vD+j} row_ror:4 {DPPF}")
for j in range(4): A(f"v_add_f32_dpp v{vD+j}, v{vD+j}, v{vD+j} row_ror:8 {DPPF}")
for j in range(4): A(f"v_mul_f32 v{vD+j}, s74, v{vD+j}")
A(f"""
v_cvt_pk_bf16_f32 v48, v{vD}, v{vD+1}
v_cvt_pk_bf16_f32 v49, v{vD+2}, v{vD+3}
v_min_u32 v48, -2, v48
v_min_u32 v49, -2, v49
s_mov_b32 exec_lo, 0x00ff00ff
s_mov_b32 exec_hi, 0x00ff00ff
buffer_store_dwordx2 v[48:49], v54, {WS}, s72 offen sc1
s_mov_b64 exec, -1
""")
ST(4); ST(9, 2)
A(f"""
s_barrier
s_cmp_lt_u32 s{sA_}, 3
s_cbranch_scc1 L_TH
""")
f_setup()
for i in range(OPT['gap']): gu_dma(i)
A("s_branch L_F")

def wide_voffset(v):
    A(f"v_mul_u32_u24 v{v}, 1152, v2\nv_add_u32 v{v}, v{v}, v11")
ZR = 15360
def publish_setup(stride):
    A(f"""
    s_mul_i32 s74, s{sW}, {stride}
    s_add_u32 s72, s72, s74
    v_mul_u32_u24 v20, {8*stride}, v5
    v_lshl_add_u32 v20, v4, 5, v20
    v_lshl_add_u32 v20, v6, 3, v20
    v_lshlrev_b32 v232, 2, v{vL}
    ds_write_b32 v232, v8 offset:{ZR}
    """)
def masked_addrs(vreal, base):
    A(f"v_mov_b32 v236, {ZR-base}")
    for i in range(4): A(f"v_cmp_eq_u32 vcc, {i}, v5\nv_cndmask_b32 v{232+i}, v236, v{vreal}, vcc")
def wide_dma(n, rsrc, slow=0):
    for i in range(n):
        A(f"s_mov_b32 m0, s71\ns_add_u32 s74, s72, 512")
        dma(14, rsrc, 72)
        if 2*i < slow: A("s_waitcnt vmcnt(0)")
        A(f"s_add_u32 s75, s71, 4096\ns_mov_b32 m0, s75\ns_add_u32 s72, s72, {16*1152}")
        dma(14, rsrc, 74)
        if 2*i+1 < slow: A("s_waitcnt vmcnt(0)")
        A(f"s_add_u32 s71, s71, 16384")
def wide_frag_addrs(base8, shift):
    A(f"v_lshl_add_u32 v16, v4, 13, v15")
    if shift: A(f"v_add_u32 v16, {shift}, v16")
    A(f"""
    v_add_u32 v17, 0x10000, v16
    v_lshl_add_u32 v18, v4, 10, v{vTR}
    v_add_u32 v18, {base8}, v18
    """)
def wide_frag_reads(vdst, nk):
    n = 0
    for i in range(4):
        for kp in range(nk):
            a = 16 if kp < 2 else 17
            off = (kp & 1)*32768 + i*2048
            d = vdst + (i*nk + kp)*4
            A(f"ds_read_b64_tr_b16 {vr(d,2)}, v{a} offset:{off}")
            A(f"ds_read_b64_tr_b16 {vr(d+2,2)}, v{a} offset:{off+512}")
            n += 2
            if n % 12 == 0: A("s_waitcnt lgkmcnt(4)")
    A("s_waitcnt lgkmcnt(4)")
    for kp in range(nk):
        d = vdst + (4*nk + kp)*4
        A(f"ds_read_b64_tr_b16 {vr(d,2)}, v18 offset:{kp*4096}")
        A(f"ds_read_b64_tr_b16 {vr(d+2,2)}, v18 offset:{kp*4096+512}")
def wide_gemm(vW, nk, vBf, base, stride, lab):
    acc, acc5 = 240, 244
    nb = 8
    order = [(i, kp) for i in (1, 2, 3, 0) for kp in range(nk)]
    def rd(n):
        i, kp = order[n]
        A(f"ds_read_b128 {vr(vBf+4*(n % nb),4)}, v{232+i} offset:{base+kp*64}")
    for n in range(min(nb, len(order))): rd(n)
    A(f"s_add_u32 s74, s72, {32*stride}\ns_cmp_lg_u32 s70, 0")
    for n, (i, kp) in enumerate(order):
        A(f"s_waitcnt lgkmcnt({min(nb-1, len(order)-1-n)})")
        mf16(acc, vW+(i*nk+kp)*4, vBf+4*(n % nb), n == 0)
        if n + nb < len(order): rd(n + nb)
    A(f"s_cbranch_scc1 {lab}_a")
    for kp in range(nk): mf16(acc5, vW+(4*nk+kp)*4, vBf+4*((3*nk+kp) % nb), kp == 0)
    A(f"""
    v_cvt_pk_bf16_f32 v{acc}, v{acc}, v{acc+1}
    v_cvt_pk_bf16_f32 v{acc+1}, v{acc+2}, v{acc+3}
    buffer_store_dwordx2 {vr(acc,2)}, v20, {WS}, s72 offen sc1
    v_cvt_pk_bf16_f32 v{acc5}, v{acc5}, v{acc5+1}
    v_cvt_pk_bf16_f32 v{acc5+1}, v{acc5+2}, v{acc5+3}
    s_mov_b64 exec, s[78:79]
    buffer_store_dwordx2 {vr(acc5,2)}, v20, {WS}, s74 offen sc1
    s_mov_b64 exec, -1
    s_branch {lab}_b
    {lab}_a:
    s_nop 6
    v_cvt_pk_bf16_f32 v{acc}, v{acc}, v{acc+1}
    v_cvt_pk_bf16_f32 v{acc+1}, v{acc+2}, v{acc+3}
    buffer_store_dwordx2 {vr(acc,2)}, v20, {WS}, s72 offen sc1
    {lab}_b:
    """)
def tail_prologue(lab, slot_code):
    common_setup2()
    A(f"s_mul_i32 s{sSL}, s{sX}, 7\n{slot_code}\ns_waitcnt lgkmcnt(0)")
    get_tag()
    A(f"s_cmp_lg_u32 s{sW}, 7\ns_cbranch_scc1 {lab}")
    ones(24)
    clear_tail_inbox(24)
    A("s_waitcnt vmcnt(0)")
    proof(sSL)
    A(f"{lab}:")

XL, CT, CTS = 0, 8192, 320
TS = 128*128
vUV, vWO = 32, 96
def t_setup():
    A(f"""
    v_lshlrev_b32 v21, 11, v3
    v_xor_b32 v22, v3, v4
    v_lshlrev_b32 v22, 4, v22
    v_lshl_add_u32 v22, v2, 11, v22
    v_and_b32 v12, 1, v2
    v_lshl_or_b32 v12, v12, 2, v4
    v_lshrrev_b32 v14, 1, v3
    v_xor_b32 v12, v12, v14
    v_lshlrev_b32 v12, 4, v12
    v_lshl_add_u32 v12, v3, 7, v12
    v_lshlrev_b32 v14, 3, v3
    s_lshl_b32 s66, s{sH}, 14
    s_add_u32 s66, s66, {WS_H3B}
    s_lshl_b32 s73, s{sW}, 7
    s_add_u32 s73, s73, s66
    s_lshl_b32 s72, s{sSL}, 7
    s_add_u32 s72, s72, {WS_H5}
    v_lshrrev_b32 v23, 1, v3
    v_mul_u32_u24 v23, {CTS}, v23
    v_lshl_add_u32 v23, v4, 3, v23
    s_lshl_b32 s74, s{sW}, 5
    v_add_u32 v23, s74, v23
    v_mul_u32_u24 v10, {CTS}, v6
    v_lshl_add_u32 v10, v4, 4, v10
    """)
    publish_setup(TS)
    masked_addrs(10, CT)
def tg_check(lab, early):
    if not OPT['tg']: return ""
    ev = "\n".join(f"s_xor_b32 s{60+i if i < 4 else 12+i}, s{60+i if i < 4 else 12+i}, s{sT}" for i in range(0))
    body = "s_load_dwordx8 s[4:11], s[12:13], 0 glc\ns_waitcnt lgkmcnt(0)\n" + \
           "\n".join(f"s_xor_b32 s{4+i}, s{4+i}, s{sT}" for i in range(8)) + \
           "\ns_or_b64 s[4:5], s[4:5], s[6:7]\ns_or_b64 s[8:9], s[8:9], s[10:11]\ns_or_b64 s[4:5], s[4:5], s[8:9]\n"
    if early:
        return f"""s_lshr_b32 s14, s{sH}, 1
        s_lshl_b32 s14, s14, 9
        s_lshl_b32 s15, s68, 7
        s_add_u32 s14, s14, s15
        s_add_u32 s14, s14, {WS_TG}
        s_add_u32 s12, s48, s14
        s_addc_u32 s13, s49, 0
        v_mov_b32 v24, -1
        {body}
        s_cselect_b32 s14, 1, 0
        s_cbranch_scc1 {lab}e2"""
    return f"""s_cmp_eq_u32 s14, 0
        s_cbranch_scc1 {lab}chk
        {lab}tp:
        s_add_u32 s77, s77, 1
        s_cmp_ge_u32 s77, {POLL_MAX}
        s_cbranch_scc1 {lab}poll
        {body}
        s_cbranch_scc1 {lab}tp
        s_branch {lab}poll"""
def t_early(lab):
    A(f"""
    v_min_u32 v238, 35, v{vL}
    v_lshlrev_b32 v238, 7, v238
    s_mov_b32 s76, {WS_PF}
    v_mov_b32 v28, 0
    v_mov_b32 v29, 0
    s_cmp_lg_u32 s{sW}, 0
    s_cbranch_scc1 {lab}e1
    buffer_load_dword v239, v238, {WS}, s76 offen sc1
    {lab}e1:
    {tg_check(lab, True)}
    buffer_load_dwordx4 v[24:27], v22, {WS}, s73 offen sc1
    s_cmp_lg_u32 s{sW}, 7
    s_cbranch_scc1 {lab}e2
    s_mov_b64 exec, 0xff
    buffer_load_dwordx2 v[28:29], v21, {WS}, s66 offen offset:1024 sc1
    s_mov_b64 exec, -1
    {lab}e2:
    """)
def t_tail(nk, lab):
    A(f"""
    s_mov_b32 s77, 0
    s_cmp_lg_u32 s{sW}, 0
    s_cbranch_scc1 {lab}pd
    {lab}pp:
    v_cmp_ne_u32 vcc, s{sT}, v239
    s_add_u32 s77, s77, 1
    s_cbranch_vccz {lab}pd
    s_cmp_ge_u32 s77, {POLL_MAX}
    s_cbranch_scc1 {lab}pd
    buffer_load_dword v239, v238, {WS}, s76 offen sc1
    s_waitcnt vmcnt(0)
    s_branch {lab}pp
    {lab}pd:
    """)
    ST(5); ST(7, 3)
    A(f"""
    s_mov_b32 s77, 0
    {tg_check(lab, False)}
    s_branch {lab}chk
    {lab}poll:
    buffer_load_dwordx4 v[24:27], v22, {WS}, s73 offen sc1
    s_cmp_lg_u32 s{sW}, 7
    s_cbranch_scc1 {lab}ns
    s_mov_b64 exec, 0xff
    buffer_load_dwordx2 v[28:29], v21, {WS}, s66 offen offset:1024 sc1
    s_mov_b64 exec, -1
    {lab}ns:
    s_add_u32 s77, s77, 1
    s_waitcnt vmcnt(0)
    {lab}chk:
    v_max3_u32 v30, v24, v25, v26
    v_max3_u32 v30, v30, v27, v28
    v_max_u32 v30, v30, v29
    v_cmp_eq_u32 vcc, -1, v30
    s_cmp_ge_u32 s77, {POLL_MAX}
    s_cbranch_scc1 {lab}done
    s_cbranch_vccnz {lab}poll
    {lab}done:
    ds_write_b128 v7, v[24:27] offset:{XL}
    s_cmp_lg_u32 s{sW}, 7
    s_cbranch_scc1 {lab}nw
    s_mov_b64 exec, 0xff
    ds_write_b64 v14, v[28:29] offset:{CT+2048}
    s_mov_b64 exec, -1
    {lab}nw:
    s_waitcnt lgkmcnt(0)
    """)
    ST(6)
    if nk == 4 and OPT['wb'] == 2: A(f"s_cmp_lg_u32 s{sW}, 6\ns_cbranch_scc1 {lab}nwb\nbuffer_wbl2 sc1\n{lab}nwb:")
    A("s_barrier")
    if nk == 2 and OPT['fv'] == 2:
        A(f"""
        s_cmp_eq_u32 s70, 0
        s_cbranch_scc1 {lab}douv
        s_cmp_ge_u32 s{sF}, 36
        s_cbranch_scc1 {lab}nouv
        s_lshl_b32 s74, s{sF}, 14
        s_lshl_b32 s75, s{sW}, 12
        s_add_u32 s74, s74, s75
        s_add_u32 s74, s74, {WS_H5-16384}
        """)
        for i in range(4): A(f"buffer_load_dwordx4 {vr(32+4*i,4)}, v9, {WS}, s74 offen offset:{1024*i} sc1")
        A(f"s_branch {lab}nouv\n{lab}douv:")
    elif nk == 2: A(f"s_cmp_lg_u32 s70, 0\ns_cbranch_scc1 {lab}nouv")
    vX = 176
    A(f"ds_read_b64 v[28:29], v14 offset:{CT+2048}")
    for i in range(8): A(f"ds_read_b128 {vr(vX+4*i,4)}, v12 offset:{XL+i*1024}")
    a0, a1 = 24, 208
    for i in range(8):
        A(f"s_waitcnt lgkmcnt({7-i})")
        mf16(a0, vUV+8*i, vX+4*i, i == 0)
        mf16(a1, vUV+8*i+4, vX+4*i, i == 0)
        OM = [f"v_max_f32_dpp v30, v28, v28 {QP1}", "v_sub_f32 v30, v28, v30", "v_exp_f32 v30, v30", "v_mul_f32 v31, v30, v29",
              f"v_add_f32_dpp v31, v31, v31 {QP1}", "v_rcp_f32 v31, v31", "v_mul_f32 v30, v30, v31"]
        if i < 7: A(OM[i])
    for j in range(4): A(f"v_add_f32_dpp v{a0+j}, v{a1+j}, v{a0+j} row_ror:8 {DPPF}")
    for j in range(4): A(f"v_mul_f32 v{a0+j}, v{a0+j}, v30")
    for j in range(4): A(f"v_add_f32_dpp v{a0+j}, v{a0+j}, v{a0+j} {QP1}")
    A(f"""
    v_cvt_pk_bf16_f32 v28, v{a0}, v{a0+1}
    v_cvt_pk_bf16_f32 v29, v{a0+2}, v{a0+3}
    s_mov_b32 exec_lo, 0x00550055
    s_mov_b32 exec_hi, 0x00550055
    ds_write_b64 v23, v[28:29] offset:{CT}
    s_mov_b64 exec, -1
    s_waitcnt lgkmcnt(0)
    {lab}nouv:
    s_barrier
    """)
    wide_gemm(vWO, nk, vX, CT, TS, lab+"g")
    ST(7)
    if nk == 4 and OPT['wb'] == 3: A(f"s_cmp_lg_u32 s{sW}, 6\ns_cbranch_scc1 L_end\nbuffer_wbl2 sc1")
    if nk == 2: fin_role()
    else: finish()

RED = BIG
def fin_setup():
    srd(52, P_X, 4608)
    srd(56, P_OUT, 4608)
    A(f"""
    v_and_b32 v212, 1, v4
    v_lshl_add_u32 v212, v3, 1, v212
    v_and_b32 v213, 3, v212
    v_mul_u32_u24 v213, 1152, v213
    v_lshrrev_b32 v212, 2, v212
    v_lshl_add_u32 v213, v212, 3, v213
    s_min_u32 s75, s{sF}, 35
    s_lshl_b32 s75, s75, 5
    v_add_u32 v213, s75, v213
    buffer_load_dwordx2 v[214:215], v213, {RA}, 0 offen
    v_and_b32 v212, 1, v3
    v_lshlrev_b32 v212, 4, v212
    v_mov_b32 v216, 0x3f80
    v_lshlrev_b32 v216, v212, v216
    v_bfe_u32 v212, v{vL}, 1, 3
    """)
    for d in range(8): A(f"v_cmp_eq_u32 vcc, {d}, v212\nv_cndmask_b32 v{220+d}, 0, v216, vcc")
def fin_role():
    A(f"""
    s_cmp_ge_u32 s{sF}, 36
    s_cbranch_scc1 L_end
    s_cmp_eq_u32 s70, 0
    s_cbranch_scc1 L_fin_b
    s_lshl_b32 s72, s{sF}, 14
    s_lshl_b32 s73, s{sW}, 12
    s_add_u32 s72, s72, s73
    s_add_u32 s72, s72, {WS_H5-16384}
    s_mov_b32 s76, 15
    s_mov_b32 s77, 0
    {"s_waitcnt vmcnt(0)" if OPT['fv'] == 1 else ""}
    {"s_branch L_finchk" if OPT['fv'] == 2 else ""}
    L_finpoll:
    """)
    for i in range(4):
        A(f"s_bitcmp1_b32 s76, {i}\ns_cbranch_scc0 L_fi{i}\nbuffer_load_dwordx4 {vr(32+4*i,4)}, v9, {WS}, s72 offen offset:{1024*i} sc1\nL_fi{i}:")
    A("s_add_u32 s77, s77, 1\ns_waitcnt vmcnt(0)")
    if OPT['fv'] == 2: A("s_branch L_finchk2\nL_finchk:\ns_waitcnt vmcnt(1)\nL_finchk2:")
    for i in range(4): A(f"v_max3_u32 v{48+i}, v{32+4*i}, v{33+4*i}, v{34+4*i}")
    for i in range(4): A(f"v_max_u32 v{48+i}, v{48+i}, v{35+4*i}")
    for i in range(4): A(f"v_cmp_eq_u32 vcc, -1, v{48+i}\ns_cbranch_vccnz L_fc{i}\ns_bitset0_b32 s76, {i}\nL_fc{i}:")
    A(f"""
    s_cmp_ge_u32 s77, {POLL_MAX}
    s_cbranch_scc1 L_findone
    s_cmp_lg_u32 s76, 0
    s_cbranch_scc1 L_finpoll
    L_findone:
    s_cmp_ge_u32 s{sW}, 6
    s_cbranch_scc1 L_fin_g
    """)
    for i in range(3): mf16(52, 220, 32+4*i, i == 0)
    A(f"s_cmp_eq_u32 s{sW}, 5\ns_cbranch_scc1 L_fin_g3")
    mf16(52, 220, 44, False)
    A("s_branch L_fin_w\nL_fin_g:")
    for i in range(3): mf16(52, 224, 32+4*i, i == 0)
    A("L_fin_g3:")
    mf16(52, 224, 44, False)
    A(f"L_fin_w:\ns_nop 7\nds_write_b128 v7, v[52:55] offset:{RED-4096}\ns_waitcnt lgkmcnt(0)")
    ST(9)
    A(f"L_fin_b:\ns_barrier\ns_cmp_lg_u32 s{sW}, 0\ns_cbranch_scc1 L_end")
    for i in range(4): A(f"ds_read_b128 {vr(64+4*i,4)}, v9 offset:{RED+i*1024}")
    A(f"s_mov_b32 s76, {fbits(-LOG2E)}")
    A("v_lshlrev_b32 v32, 16, v214\nv_and_b32 v33, 0xffff0000, v214\nv_lshlrev_b32 v34, 16, v215\nv_and_b32 v35, 0xffff0000, v215")
    A("s_waitcnt lgkmcnt(2)")
    for j in range(4): A(f"v_add_f32 v{64+j}, v{64+j}, v{68+j}")
    A("s_waitcnt lgkmcnt(0)")
    for j in range(4): A(f"v_add_f32 v{72+j}, v{72+j}, v{76+j}")
    for j in range(4): A(f"v_add_f32 v{64+j}, v{64+j}, v{72+j}")
    for j in range(4): A(f"v_add_f32_dpp v{64+j}, v{64+j}, v{64+j} row_ror:8 {DPPF}")
    for j in range(4): rb16(64+j, 64+j)
    for j in range(4): A(f"v_mul_f32 v{76+j}, s76, v{64+j}")
    for j in range(4): A(f"v_exp_f32 v{76+j}, v{76+j}")
    for j in range(4): A(f"v_add_f32 v{76+j}, 1.0, v{76+j}")
    for j in range(4): A(f"v_rcp_f32 v{76+j}, v{76+j}")
    for j in range(4): A(f"v_mul_f32 v{76+j}, v{64+j}, v{76+j}")
    A("v_cvt_pk_bf16_f32 v76, v76, v77\nv_cvt_pk_bf16_f32 v77, v78, v79")
    A("v_permlane32_swap_b32 v76, v68\nv_permlane32_swap_b32 v77, v69")
    A("v_lshlrev_b32 v72, 16, v68\nv_and_b32 v73, 0xffff0000, v68\nv_lshlrev_b32 v74, 16, v69\nv_and_b32 v75, 0xffff0000, v69")
    for j in range(4): A(f"v_mul_f32 v{64+j}, v{64+j}, v{72+j}")
    A("v_cvt_pk_bf16_f32 v68, v64, v65\nv_cvt_pk_bf16_f32 v69, v66, v67")
    A("v_lshlrev_b32 v64, 16, v68\nv_and_b32 v65, 0xffff0000, v68\nv_lshlrev_b32 v66, 16, v69\nv_and_b32 v67, 0xffff0000, v69")
    for j in range(4): A(f"v_add_f32 v{64+j}, v{64+j}, v{32+j}")
    A(f"""
    v_cvt_pk_bf16_f32 v64, v64, v65
    v_cvt_pk_bf16_f32 v65, v66, v67
    s_mov_b64 exec, 0x00ff00ff
    buffer_store_dwordx2 v[64:65], v213, {RB}, 0 offen
    s_cmp_lg_u32 s{sF}, 0
    s_cbranch_scc1 L_fin_noep
    s_mov_b64 exec, 1
    v_mov_b32 v66, s{sE}
    buffer_store_dword v66, v8, {WS}, 0 offen sc1
    L_fin_noep:
    s_mov_b64 exec, -1
    """)
    finish()

def hb_code():
    if not OPT['hb']: return ""
    return f"""s_lshr_b32 s71, s66, 1
    s_add_u32 s71, s71, 48
    s_mul_i32 s71, s71, {8*9216}
    s_add_u32 s74, s73, 6
    s_lshl_b32 s74, s74, 7
    s_add_u32 s71, s71, s74
    buffer_load_dwordx4 v[248:251], v14, {RA}, s71 offen"""
A("L_TH:")
SLOT = f"s_lshl_b32 s74, s{sA_}, 1\ns_add_u32 s{sSL}, s{sSL}, s74\ns_add_u32 s{sSL}, s{sSL}, s{sQD}"
A(f"""
s_lshl_b32 s66, s{sA_}, 1
s_add_u32 s66, s66, s{sQD}
s_mov_b32 s{sF}, 99
s_cmp_eq_u32 s66, 3
s_cbranch_scc1 L_f_go
s_cmp_gt_u32 s66, 3
s_subb_u32 s66, s66, 0
s_lshl_b32 s66, s66, 3
s_add_u32 s{sF}, s66, s{sX}
s_add_u32 s66, s66, s{sW}
""")
def h5_clear(lab):
    A(f"s_cmp_ge_u32 s{sF}, 36\ns_cbranch_scc1 {lab}")
    ones(24)
    A(f"s_lshl_b32 s74, s{sF}, 14\ns_lshl_b32 s75, s{sW}, 11\ns_add_u32 s74, s74, s75\ns_add_u32 s74, s74, {WS_H5}")
    for i in range(2): A(f"buffer_store_dwordx4 v[24:27], v9, {WS}, s74 offen offset:{i*1024} sc1")
    if not OPT['aclr']:
        A(f"s_waitcnt vmcnt(0)\ns_barrier\ns_cmp_lg_u32 s{sW}, 0\ns_cbranch_scc1 {lab}")
        proof(sF)
    A(f"{lab}:")
if not OPT['fclr']: h5_clear("L_noclr2")
A("L_noclr:")
if OPT['help']:
    A(f"""
    s_cmp_eq_u32 s67, 0
    s_cselect_b32 s52, s{P_WG}, s{P_WU}
    s_cselect_b32 s53, s{P_WG+1}, s{P_WU+1}
    s_mov_b32 s54, {576*9216}
    s_lshr_b32 s71, s66, 1
    s_add_u32 s71, s71, 32
    s_mul_i32 s71, s71, {8*9216}
    s_sub_u32 s72, 3, s{sX}
    s_and_b32 s72, s72, 7
    s_mul_i32 s73, s{sX}, 9
    s_lshl_b32 s73, s73, 7
    s_add_u32 s71, s71, s73
    s_lshl_b32 s74, s72, 7
    s_add_u32 s73, s71, s74
    v_mul_u32_u24 v14, 9216, v2
    v_lshl_add_u32 v14, v3, 4, v14
    s_add_u32 s74, s73, {20*8*9216}
    s_add_u32 s71, s71, {20*8*9216}
    """)
    if OPT['help'] & 1:
        A(f"""
        buffer_load_dwordx4 v[248:251], v14, {RA}, s73 offen{HW}
        buffer_load_dwordx4 v[248:251], v14, {RA}, s74 offen{HW}
        s_cmp_lg_u32 s72, 0
        s_cbranch_scc1 L_noc3b
        buffer_load_dwordx4 v[248:251], v14, {RA}, s73 offen offset:1024{HW}
        buffer_load_dwordx4 v[248:251], v14, {RA}, s74 offen offset:1024{HW}
        L_noc3b:
        """)
    if OPT['help'] & 2: A(f"buffer_load_dwordx4 v[248:251], v14, {RA}, s71 offen offset:768{HW}\nbuffer_load_dwordx4 v[248:251], v14, {RA}, s71 offen offset:896{HW}")
    if OPT['help'] & 4:
        A(f"""
        s_lshl_b32 s66, s66, 10
        s_mov_b32 s52, s{P_WO}
        s_mov_b32 s53, s{P_WO+1}
        s_lshl_b32 s73, s{sX}, 3
        s_add_u32 s73, s73, 7
        s_mul_i32 s73, s73, {64*1152}
        s_add_u32 s54, s73, {64*1152}
        s_add_u32 s73, s73, s66
        s_add_u32 s74, s73, {40*1024}
        buffer_load_dwordx4 v[248:251], v9, {RA}, s73 offen{HW}
        buffer_load_dwordx4 v[248:251], v9, {RA}, s74 offen{HW}
        """)
    if OPT['help'] & 8:
        A(f"s_sub_u32 s73, s73, {40*1024}\nbuffer_load_dwordx4 v[248:251], v9, {RA}, s73 offen")
A("L_f_go:")
A(f"s_mul_i32 s{sSL}, s{sX}, 7\n{SLOT}")
ST(1, 3)
srd(52, P_WUV, 512*8192)
srd(56, P_WO, 4096*1152)
A(f"""
s_lshl_b32 s71, s{sW}, 10
s_add_u32 s71, s71, {BIG}
s_lshl_b32 s72, s68, 2
s_add_u32 s72, s72, s67
s_lshl_b32 s72, s72, 16
s_lshl_b32 s73, s{sH}, 1
s_add_u32 s73, s73, s{sQD}
s_lshl_b32 s74, s73, 7
s_add_u32 s72, s72, s74
""")
for i in range(8):
    cb = 2*(i&1) + 16*(i>>1)
    A(f"s_mov_b32 m0, s71\ns_add_u32 s74, s72, {cb*65536}")
    dma(12, RA, 74)
    A(f"s_add_u32 s71, s71, 8192")
    if i < OPT['tslow']: A("s_waitcnt vmcnt(0)")
if OPT['aclr']:
    A(f"s_cmp_ge_u32 s{sF}, 36\ns_cbranch_scc1 L_ac\ns_waitcnt vmcnt(8)\ns_barrier\ns_cmp_lg_u32 s{sW}, 0\ns_cbranch_scc1 L_ac")
    proof(sF)
    A("L_ac:")
wide_voffset(14)
A(f"""
s_mul_i32 s73, s73, {64*1152}
s_lshl_b32 s71, s67, 3
s_add_u32 s71, s71, s68
s_lshl_b32 s71, s71, 10
s_add_u32 s71, s71, {BIG+65536}
s_mul_i32 s72, s67, {8*1152}
s_lshl_b32 s74, s68, 7
s_add_u32 s72, s72, s74
s_add_u32 s72, s72, s73
""")
wide_dma(4, RB)
A(f"""
s_mul_i32 s72, s{sW}, {8*1152}
s_add_u32 s72, s72, s73
s_add_u32 s72, s72, 1024
s_lshl_b32 s71, s{sW}, 10
s_add_u32 s71, s71, {BIG+131072}
s_mov_b32 m0, s71
""")
dma(14, RB, 72)
wide_frag_addrs(BIG+131072, 65536)
A(f"v_lshl_add_u32 v19, v4, 10, v{vTR}\nv_add_u32 v19, {BIG}, v19")
t_setup()
ST(5, 3)
A("s_waitcnt vmcnt(9)\ns_barrier")
for kp in range(16):
    A(f"ds_read_b64_tr_b16 {vr(vUV+4*kp,2)}, v19 offset:{kp*4096}")
    A(f"ds_read_b64_tr_b16 {vr(vUV+4*kp+2,2)}, v19 offset:{kp*4096+512}")
    if kp % 6 == 5: A("s_waitcnt lgkmcnt(4)")
fin_setup()
t_early("L_u")
A("s_waitcnt vmcnt(0) lgkmcnt(2)")
ST(6, 3)
A("s_barrier")
wide_frag_reads(vWO, 2)
t_tail(2, "L_u")

A("L_T:")
A(f"s_mul_i32 s{sSL}, s{sX}, 7\ns_add_u32 s{sSL}, s{sSL}, 6")
ST(1, 3)
srd(52, P_WUV, 512*8192)
srd(56, P_WO, 4096*1152)
A(f"""
s_lshl_b32 s71, s70, 1
s_add_u32 s71, s71, s67
s_lshl_b32 s71, s71, 1
s_add_u32 s71, s71, s69
s_lshl_b32 s71, s71, 10
s_add_u32 s71, s71, {BIG}
s_lshl_b32 s72, s70, 2
s_add_u32 s72, s72, s67
s_lshl_b32 s72, s72, 16
s_lshl_b32 s73, s{sH}, 8
s_lshl_b32 s74, s69, 7
s_add_u32 s73, s73, s74
s_add_u32 s72, s72, s73
""")
for i in range(16):
    cb = 2*((i>>1)&1) + 8*(i&1) + 16*(i>>2)
    A(f"s_mov_b32 m0, s71\ns_add_u32 s74, s72, {cb*65536}")
    dma(12, RA, 74)
    A(f"s_add_u32 s71, s71, 8192")
    if i < OPT['Tslow']: A("s_waitcnt vmcnt(0)")
wide_voffset(14)
A(f"""
s_mul_i32 s66, s{sH}, {128*1152}
s_lshl_b32 s71, s68, 2
s_add_u32 s71, s71, s67
s_mul_i32 s72, s71, {8*1152}
s_add_u32 s72, s72, s66
s_add_u32 s72, s72, 1024
s_lshl_b32 s71, s71, 10
s_add_u32 s71, s71, {BIG+131072}
s_mov_b32 m0, s71
s_add_u32 s71, s71, 2048
""")
dma(14, RB, 72)
A(f"s_add_u32 s72, s72, {16*1152}\ns_mov_b32 m0, s71")
dma(14, RB, 72)
vST = 176
A(f"""
s_mul_i32 s72, s67, {8*1152}
s_lshl_b32 s74, s68, 7
s_add_u32 s72, s72, s74
s_add_u32 s72, s72, s66
s_barrier
""")
for i in range(4):
    A(f"buffer_load_dwordx4 {vr(vST+8*i,4)}, v14, {RB}, s72 offen nt")
    A(f"buffer_load_dwordx4 {vr(vST+8*i+4,4)}, v14, {RB}, s72 offen offset:512 nt")
    A(f"s_add_u32 s72, s72, {16*1152}")
A(f"v_add_u32 v17, 0x10000, v16")
ST(2, 3)
A("s_waitcnt vmcnt(10)")
ST(3, 3)
A("s_barrier")
for kp in range(16):
    a = 16 if kp < 8 else 17
    A(f"ds_read_b64_tr_b16 {vr(vUV+4*kp,2)}, v{a} offset:{(kp&7)*8192}")
    A(f"ds_read_b64_tr_b16 {vr(vUV+4*kp+2,2)}, v{a} offset:{(kp&7)*8192+512}")
    if kp % 6 == 5: A("s_waitcnt lgkmcnt(4)")
A(f"""
s_lshl_b32 s71, s67, 3
s_add_u32 s71, s71, s68
s_lshl_b32 s71, s71, 10
s_add_u32 s71, s71, {BIG}
v_add_u32 v19, s71, v9
s_add_u32 s71, s71, 65536
s_waitcnt lgkmcnt(0)
s_barrier
""")
ST(4, 3)
wide_dma(4, RB)
for i in range(8):
    A(f"s_waitcnt vmcnt({15-i})")
    A(f"ds_write_b128 v19, {vr(vST+4*i,4)} offset:{(i>>1)*16384+(i&1)*4096}")
wide_frag_addrs(BIG+131072, 0)
t_setup()
t_early("L_t")
ST(5, 3)
A("s_waitcnt vmcnt(0) lgkmcnt(0)")
ST(6, 3)
A("s_barrier")
wide_frag_reads(vWO, 4)
t_tail(4, "L_t")

A("L_F:")
if OPT['fclr']:
    A(f"s_mul_i32 s74, s{sX}, 9\ns_sub_u32 s{sF}, s{sU}, s74\ns_lshl_b32 s{sF}, s{sF}, 3\ns_add_u32 s{sF}, s{sF}, s{sX}")
    h5_clear("L_f_clr")
ST(1, 3)
DNB = BIG
if OPT['fslow']: A(f"s_cmp_lt_u32 s{sQD}, {2 if OPT['fbx'] else 0}\ns_cselect_b64 vcc, -1, 0")
for i in range(9):
    gu_dma(i)
    if i < OPT['fslow']: A(f"s_cbranch_vccnz L_fw{i}\ns_waitcnt vmcnt({OPT['fwin']})\nL_fw{i}:")
xn_frags()
if OPT['fbar']: A("s_barrier")
for i in range(9, 18): gu_dma(i)
srd(56, P_WD, 4608*1152)
wide_voffset(14)
A(f"""
v_lshrrev_b32 v19, 1, v6
v_lshrrev_b32 v21, 1, v5
v_and_b32 v22, 1, v4
v_lshl_or_b32 v21, v22, 1, v21
v_lshl_or_b32 v21, v19, 2, v21
v_xor_b32 v21, s{sW}, v21
v_lshlrev_b32 v21, 4, v21
v_lshl_add_u32 v21, v5, 7, v21
v_and_b32 v22, 1, v6
v_lshl_add_u32 v21, v22, 3, v21
v_lshl_add_u32 v21, v19, 10, v21
v_lshl_add_u32 v21, v4, 11, v21
v_add_u32 v21, {BIG}, v21
v_add_u32 v22, {8*8192}, v21
v_add_u32 v23, {16*8192}, v21
s_mul_i32 s73, s{sU}, {64*1152}
s_lshl_b32 s71, s67, 3
s_add_u32 s71, s71, s68
s_lshl_b32 s71, s71, 10
s_add_u32 s71, s71, {DNB}
s_mul_i32 s72, s67, {8*1152}
s_lshl_b32 s74, s68, 7
s_add_u32 s72, s72, s74
s_add_u32 s72, s72, s73
v_min_u32 v140, 35, v{vL}
v_lshlrev_b32 v140, 7, v140
s_mov_b32 s66, {WS_PF}
s_waitcnt vmcnt(9) lgkmcnt(0)
s_barrier
""")
def k_steps(k0, k1):
    D = 6
    def rd(k):
        d = vG + 4*(k % 8)
        A(f"ds_read_b64_tr_b16 {vr(d,2)}, v{21+(k>>3)} offset:{(k&7)*8192}")
        A(f"ds_read_b64_tr_b16 {vr(d+2,2)}, v{21+(k>>3)} offset:{(k&7)*8192+512}")
    for k in range(k0, min(k1, k0+D)): rd(k)
    for k in range(k0, k1):
        A(f"s_waitcnt lgkmcnt({2*min(D-1, k1-1-k)})")
        mf16(vD, vG+4*(k % 8), vXN+4*k, k == 0)
        if k + D < k1: rd(k + D)
k_steps(0, 9)
A(f"""
s_barrier
s_cmp_lg_u32 s{sW}, 7
s_cbranch_scc1 L_f_np
buffer_load_dword v141, v140, {WS}, s66 offen sc1
L_f_np:
""")
wide_dma(4, RB)
A(f"""
s_mul_i32 s72, s{sW}, {8*1152}
s_add_u32 s72, s72, s73
s_add_u32 s72, s72, 1024
s_lshl_b32 s71, s{sW}, 10
s_add_u32 s71, s71, {DNB+65536}
s_mov_b32 m0, s71
""")
dma(14, RB, 72)
ST(2, 3)
A("s_waitcnt vmcnt(9)")
ST(3, 3)
A("s_barrier")
k_steps(9, 18)
wide_frag_addrs(DNB+65536, DNB-BIG)
A(f"s_lshl_b32 s72, s{sU}, 7\ns_add_u32 s72, s72, {WS_H5+56*128}")
publish_setup(TS)
A(f"""
v_mul_u32_u24 v22, {HBS}, v6
v_lshl_add_u32 v21, v4, 3, v22
s_lshl_b32 s74, s{sW}, 4
v_add_u32 v21, s74, v21
v_lshl_add_u32 v22, v4, 4, v22
""")
masked_addrs(22, HB)
vWD = 144
for j in range(4): A(f"v_mov_b32 v{24+j}, v{vD+j}")
for j in range(4): A(f"v_permlane32_swap_b32 v{vD+j}, v{24+j}")
C1 = -2.0*math.sqrt(2.0/math.pi)*LOG2E
A(f"s_mov_b32 s74, {fbits(0.044715)}\ns_mov_b32 s75, {fbits(C1)}")
for j in range(4): rb16(vD+j, vD+j); rb16(24+j, 24+j)
for j in range(4): A(f"v_mul_f32 v{104+j}, v{vD+j}, v{vD+j}")
for j in range(4): A(f"v_fma_f32 v{104+j}, v{104+j}, s74, 1.0")
for j in range(4): A(f"v_mul_f32 v{104+j}, v{104+j}, v{vD+j}")
for j in range(4): A(f"v_mul_f32 v{104+j}, s75, v{104+j}")
for j in range(4): A(f"v_exp_f32 v{104+j}, v{104+j}")
for j in range(4): A(f"v_add_f32 v{104+j}, 1.0, v{104+j}")
for j in range(4): A(f"v_rcp_f32 v{104+j}, v{104+j}")
for j in range(4): A(f"v_mul_f32 v{vD+j}, v{vD+j}, v{104+j}")
for j in range(4): rb16(vD+j, vD+j)
for j in range(4): A(f"v_mul_f32 v{vD+j}, v{vD+j}, v{24+j}")
A(f"""
v_cvt_pk_bf16_f32 v24, v{vD}, v{vD+1}
v_cvt_pk_bf16_f32 v25, v{vD+2}, v{vD+3}
s_mov_b64 exec, 0x000f000f
ds_write_b64 v21, v[24:25] offset:{HB}
s_mov_b64 exec, -1
s_cmp_lg_u32 s{sW}, 7
s_cbranch_scc1 L_f_pd
s_mov_b32 s77, 0
L_f_pp:
v_cmp_ne_u32 vcc, s{sT}, v141
s_add_u32 s77, s77, 1
s_cbranch_vccz L_f_pd
s_cmp_ge_u32 s77, {POLL_MAX}
s_cbranch_scc1 L_f_pd
buffer_load_dword v141, v140, {WS}, s66 offen sc1
s_waitcnt vmcnt(0)
s_branch L_f_pp
L_f_pd:
s_waitcnt vmcnt(0) lgkmcnt(0)
""")
ST(1); ST(7, 3)
A("s_barrier")
wide_frag_reads(vWD, 2)
A("s_waitcnt lgkmcnt(6)")
wide_gemm(vWD, 2, 104, HB, TS, "L_fg")
ST(2)
finish()

QA = 131072
MXO, LSO, LCO = 2048, 8192+2048, 16384+2048
sLOC = 64
A(f"""
L_att:
s_mov_b64 exec, -1
s_cmp_ge_u32 s{sW}, 4
s_cbranch_scc1 L_att_hi
""")
ST(1, 5); ST(2, 5); ST(3, 5)
if OPT['nqal']:
    A("s_branch L_nq2\nL_att0:")
    A(PFB)
    A("L_nq2:")
late_common()
lane_consts()
A(f"""
s_waitcnt lgkmcnt(0)
s_load_dword s{sE}, s[48:49], 0
v_and_b32 v11, 2, v2
v_lshlrev_b32 v11, 1, v11
v_lshrrev_b32 v10, 2, v2
v_or_b32 v11, v11, v10
v_xor_b32 v11, v11, v3
v_lshlrev_b32 v11, 4, v11
v_lshl_add_u32 v10, v2, 10, v11
v_xor_b32 v11, 32, v10
s_lshl_b32 s70, s{sX}, 4
s_add_u32 s70, s70, s{sK}
s_lshl_b32 s66, s70, 17
s_lshl_b32 s67, s{sW}, 15
s_add_u32 s66, s66, s67
""")
srd(52, P_CKV, 4*4096*1024)
if OPT['ukw'] < 8: A(f"s_waitcnt vmcnt({OPT['ukw']})")
ST(2, 2)
LBO = list(range(8)) if not OPT['c3l'] else [0, 1, 4, 5, 6, 7, 2, 3]
nh = OPT['ckh']
if OPT['rowm']: seq = [(lb, rbi) for rbi in range(4) for lb in LBO[:8-nh]] + [(lb, rbi) for lb in LBO[8-nh:] for rbi in range(4)]
else: seq = [(lb, rbi) for lb in LBO for rbi in range(4)]
for n_, (lb, rbi) in enumerate(seq):
    if n_ in (4, 8, 16, 24): ST({4:3,8:4,16:5,24:6}[n_], 2)
    if n_ == 4*OPT['gbar']: A("s_barrier")
    A(f"s_add_u32 s68, s67, {(rbi*8+lb)*1024}\ns_mov_b32 m0, s68\ns_add_u32 s69, s66, {rbi*8192+lb*128}")
    dma(10 + (rbi & 1), RA, 69)
if OPT['gbar'] == 8: A("s_barrier")
ST(7, 2)
if OPT['stamps'] in (2, 3):
    A("s_waitcnt vmcnt(0)")
    ST(9, 2); ST(7, 3)
if OPT['exp'] == 2: A("s_branch L_end")
A(f"""
v_and_b32 v11, 2, v{vL}
v_lshlrev_b32 v11, 1, v11
v_or_b32 v11, v11, v5
v_lshrrev_b32 v12, 5, v{vL}
v_xor_b32 v11, v11, v12
v_lshlrev_b32 v11, 4, v11
v_lshl_add_u32 v11, v3, 7, v11
v_and_b32 v13, 3, v2
v_lshl_add_u32 v11, v13, 13, v11
v_add_u32 v16, s67, v11
v_add_u32 v20, {QA}, v11
""")
for t in range(1, 4): A(f"v_xor_b32 v{16+t}, {t<<5}, v16\nv_xor_b32 v{20+t}, {t<<5}, v20")
A(f"""
v_and_b32 v13, 31, v{vL}
v_lshlrev_b32 v13, 5, v13
v_add_u32 v13, {QA}, v13
s_lshl_b32 s68, s{sW}, 3
v_lshl_add_u32 v14, v12, 2, v13
v_add_u32 v14, s68, v14
s_lshl_b32 s68, s{sW}, 13
s_add_u32 s68, s68, {QA}
v_add_u32 v15, s68, v9
s_waitcnt lgkmcnt(0)
""")
get_tag()
A(f"""
s_lshl_b32 s72, s{sX}, 14
s_add_u32 s72, s72, {WS_FLG}
s_lshl_b32 s73, s{sK}, 10
s_add_u32 s73, s73, s72
s_lshl_b32 s68, s{sW}, 7
s_add_u32 s69, s72, s68
s_lshl_b32 s68, s{sK}, 5
s_add_u32 s72, s72, s68
s_lshl_b32 s74, s70, 15
s_lshl_b32 s68, s{sW}, 9
s_add_u32 s74, s74, s68
s_add_u32 s74, s74, {WS_H3A}
s_add_u32 s75, s74, 8192
s_add_u32 s78, s74, 16384
s_add_u32 s79, s74, 24576
s_lshl_b32 s70, s{sK}, 15
s_lshl_b32 s71, s{sX}, 11
s_add_u32 s70, s70, s71
s_add_u32 s70, s70, {WS_H3B}
s_lshl_b32 s71, s{sW}, 8
s_add_u32 s71, s71, s70
v_and_b32 v100, 15, v{vL}
v_and_b32 v101, 1, v4
v_lshlrev_b32 v112, 10, v100
v_lshl_add_u32 v102, v101, 4, v112
v_lshlrev_b32 v103, 11, v4
v_lshl_add_u32 v103, v100, 4, v103
v_and_b32 v104, 1, v3
v_lshlrev_b32 v104, 4, v104
v_mov_b32 v105, 0xffff
v_lshlrev_b32 v105, v104, v105
v_lshrrev_b32 v104, 1, v3
""")
for d in range(4): A(f"v_cmp_eq_u32 vcc, {d}, v104\nv_cndmask_b32 v{108+d}, 0, v105, vcc")
A(f"""
v_lshrrev_b32 v104, 2, v3
v_lshl_add_u32 v105, v104, 4, v4
v_lshlrev_b32 v105, 2, v105
v_lshlrev_b32 v106, 14, v104
v_lshl_add_u32 v106, v6, 5, v106
v_lshl_add_u32 v106, v4, 3, v106
v_and_b32 v104, 1, v2
v_lshl_add_u32 v106, v104, 7, v106
v_lshlrev_b32 v107, 14, v101
v_lshl_add_u32 v107, v100, 3, v107
v_mov_b32 v113, {QA+LCO}
""")
vS = 32; vAf = 128; vBf = 64; DEP = 8
for lb in LBO:
    last = max(i for i, (l_, r_) in enumerate(seq) if l_ == lb)
    A(f"s_waitcnt vmcnt({31-last}) lgkmcnt(8)")
    for t in range(4*lb, 4*lb+4): A(f"ds_read_b128 {vr(vAf+4*t,4)}, v{16+(t&3)} offset:{(t>>2)*1024}")
PT = [f"buffer_load_dwordx4 v[116:119], v103, {WS}, s{[74,75,78,79][i]} offen offset:{256*h}" for i in range(4) for h in range(2)]
if OPT['ptl'] == 1 and OPT['local']:
    for l_ in PT: A(l_)
A("s_waitcnt lgkmcnt(0)\ns_setprio 2")
ST(1)
A("s_barrier")
ST(2)
def qk_read(t): A(f"ds_read_b128 {vr(vBf+4*(t % DEP),4)}, v{20+(t&3)} offset:{(t>>2)*1024}")
for t in range(DEP): qk_read(t)
for t in range(32):
    A(f"s_waitcnt lgkmcnt({min(DEP-1, 31-t)})")
    mf32(vS, vAf+4*t, vBf+4*(t % DEP), t == 0)
    if t + DEP < 32: qk_read(t + DEP)
    if OPT['ptl'] == 2 and t >= 24: A(PT[t-24])
    if OPT['ptl'] == 3 and t % 4 == 3: A(PT[t//4])
    if t == 13: A("s_barrier")
ST(3)
A(f"v_max3_f32 v24, v{vS}, v{vS+1}, v{vS+2}\nv_max3_f32 v25, v{vS+3}, v{vS+4}, v{vS+5}\nv_max3_f32 v26, v{vS+6}, v{vS+7}, v{vS+8}")
A(f"v_max3_f32 v27, v{vS+9}, v{vS+10}, v{vS+11}\nv_max3_f32 v28, v{vS+12}, v{vS+13}, v{vS+14}")
A(f"v_max3_f32 v24, v24, v25, v26\nv_max3_f32 v27, v27, v28, v{vS+15}\nv_max_f32 v24, v24, v27")
A(f"ds_write_b32 v14, v24 offset:{MXO}\ns_waitcnt lgkmcnt(0)\ns_barrier")
A(f"""
ds_read_b128 v[24:27], v13 offset:{MXO}
ds_read_b128 v[28:31], v13 offset:{MXO+16}
s_waitcnt lgkmcnt(0)
v_max3_f32 v24, v24, v25, v26
v_max3_f32 v28, v28, v29, v30
v_max3_f32 v24, v24, v27, v31
v_max_f32 v24, v24, v28
""")
for hlf in range(2):
    for i in range(8): A(f"v_sub_f32 v{vS+8*hlf+i}, v{vS+8*hlf+i}, v24")
    for i in range(8): A(f"v_exp_f32 v{vS+8*hlf+i}, v{vS+8*hlf+i}")
    for i in range(4): A(f"v_cvt_pk_bf16_f32 v{48+4*hlf+i}, v{vS+8*hlf+2*i}, v{vS+8*hlf+2*i+1}")
    A(f"ds_write_b128 v15, {vr(48+4*hlf,4)} offset:{1024*hlf}")
    if hlf == 0:
        A("s_waitcnt lgkmcnt(0)")
        ST(4)
        A("s_barrier")
for step in (8, 4, 2, 1):
    for i in range(step): A(f"v_add_f32 v{vS+i}, v{vS+i}, v{vS+i+step}")
A(f"ds_write_b32 v14, v{vS} offset:{LSO}\ns_waitcnt lgkmcnt(0)\ns_setprio 0\ns_barrier")
vXr = 144
SO = [74, 75, 78, 79]
A(f"""
s_cmp_lg_u32 s{sW}, 0
s_cbranch_scc1 L_nost
ds_read_b128 v[28:31], v13 offset:{LSO}
ds_read_b128 v[32:35], v13 offset:{LSO+16}
ds_read_b32 v36, v113
v_mov_b32 v25, s{sT}
v_mov_b32 v27, s{sT}
s_waitcnt lgkmcnt(0)
v_add_f32 v28, v28, v29
v_add_f32 v30, v30, v31
v_add_f32 v32, v32, v33
v_add_f32 v34, v34, v35
v_readfirstlane_b32 s{sLOC}, v36
v_add_f32 v28, v28, v30
v_add_f32 v32, v32, v34
v_add_f32 v26, v28, v32
s_mov_b32 exec_hi, 0
s_cmp_lg_u32 s{sLOC}, 0
s_cbranch_scc1 L_stfar
buffer_store_dwordx4 v[24:27], v9, {WS}, s73 offen
s_branch L_stdone
L_stfar:
buffer_store_dwordx4 v[24:27], v9, {WS}, s73 offen sc1
L_stdone:
s_mov_b64 exec, -1
L_nost:
{chr(10).join(PT) if OPT['ptl'] == 5 else ""}
s_mov_b32 s77, 0
s_mov_b32 exec_hi, 0
L_rpoll:
buffer_load_dwordx4 v[32:35], v102, {WS}, s72 offen sc1
s_add_u32 s77, s77, 1
s_waitcnt vmcnt(0)
v_xor_b32 v33, s{sT}, v33
v_xor_b32 v35, s{sT}, v35
v_or_b32 v33, v33, v35
v_cmp_ne_u32 vcc, 0, v33
s_cmp_ge_u32 s77, {POLL_MAX}
s_cbranch_scc1 L_rdone
s_cbranch_vccnz L_rpoll
L_rdone:
s_mov_b64 exec, -1
""")
ST(5)
if OPT['ptl'] == 4:
    for l_ in PT: A(l_)
A("v_mov_b32 v36, v32")
for r in (8, 4, 2, 1): A(f"v_max_f32_dpp v36, v36, v36 row_ror:{r} {DPPF}")
A("v_sub_f32 v33, v32, v36\nv_exp_f32 v33, v33\nv_mul_f32 v37, v33, v34")
for i in range(4): A(f"ds_bpermute_b32 v{40+i}, v105, v33 offset:{16*i}")
for r in (8, 4, 2, 1): A(f"v_add_f32_dpp v37, v37, v37 row_ror:{r} {DPPF}")
if OPT['tg']:
    A(f"""
    s_lshl_b32 s68, s{sK}, 9
    s_lshl_b32 s76, s{sW}, 7
    s_add_u32 s68, s68, s76
    s_lshl_b32 s76, s{sX}, 2
    s_add_u32 s68, s68, s76
    s_add_u32 s68, s68, {WS_TG}
    v_mov_b32 v38, s{sT}
    """)
A(f"""
v_cmp_gt_u32 s[66:67], 8, v100
s_waitcnt lgkmcnt(0)
""")
for i in range(4): A(f"v_cvt_pk_bf16_f32 v{44+i}, v{40+i}, v{40+i}")
for i in range(4): A(f"v_and_b32 v{80+i}, 0xffff0000, v{44+i}")
for i in range(4): A(f"v_sub_f32 v{80+i}, v{40+i}, v{80+i}")
for i in range(4): A(f"v_cvt_pk_bf16_f32 v{80+i}, v{80+i}, v{80+i}")
for i in range(4): A(f"v_cndmask_b32 v{44+i}, v{80+i}, v{44+i}, s[66:67]")
for i in range(4):
    for d in range(4): A(f"v_and_b32 v{64+4*i+d}, v{44+i}, v{108+d}")
A(f"""
s_mov_b32 s77, 0
s_mov_b64 exec, 0xffff
{"s_barrier" if OPT['bard'] else ""}
L_fpoll:
buffer_load_dword v32, v112, {WS}, s69 offen offset:512 sc1
s_add_u32 s77, s77, 1
s_waitcnt vmcnt(0)
v_cmp_ne_u32 vcc, s{sT}, v32
s_cmp_ge_u32 s77, {POLL_MAX}
s_cbranch_scc1 L_fdone
s_cbranch_vccnz L_fpoll
L_fdone:
s_mov_b64 exec, -1
""")
ST(6)
for i in range(4):
    for h in range(2): A(f"buffer_load_dwordx4 {vr(vXr+8*i+4*h,4)}, v103, {WS}, s{SO[i]} offen offset:{256*h} sc1{' nt' if OPT['lnt'] & 2 else ''}")
ex = 0
if OPT['tg']:
    A(f"s_mov_b64 exec, 1\nbuffer_store_dword v38, v8, {WS}, s68 offen sc1\ns_mov_b64 exec, -1")
    ex = 1
for i in range(4):
    A(f"s_waitcnt vmcnt({7-2*i+ex})")
    mf16(40, vXr+8*i, 64+4*i, i == 0)
    A(f"s_waitcnt vmcnt({6-2*i+ex})")
    mf16(44, vXr+8*i+4, 64+4*i, i == 0)
A(f"""
s_cmp_lg_u32 s{sW}, 1
s_cbranch_scc1 L_rnostat
s_mov_b32 exec_hi, 0
buffer_store_dwordx2 v[36:37], v107, {WS}, s70 offen offset:1024 sc1
s_mov_b64 exec, -1
L_rnostat:
s_nop 5
""")
for j in range(4): A(f"v_cndmask_b32 v{48+j}, v{40+j}, v{44+j}, s[66:67]")
for j in range(4): A(f"v_cndmask_b32 v{40+j}, v{44+j}, v{40+j}, s[66:67]")
for j in range(4): A(f"v_add_f32_dpp v{40+j}, v{48+j}, v{40+j} row_ror:8 {DPPF}")
A(f"""
v_cvt_pk_bf16_f32 v44, v40, v41
v_cvt_pk_bf16_f32 v45, v42, v43
buffer_store_dwordx2 v[44:45], v106, {WS}, s71 offen sc1
""")
ST(7)
if OPT['late'] == 1: A("s_barrier")
if OPT['wb'] in (4, 5, 6):
    if OPT['wb'] >= 5: A("s_waitcnt vmcnt(0)")
    for i in range(4):
        for h in range(2):
            A(f"buffer_store_dwordx4 {vr(vXr+8*i+4*h,4)}, v103, {WS}, s{SO[i]} offen offset:{256*h} sc1")
        if OPT['wb'] == 6: A("s_waitcnt vmcnt(0)")
if OPT['local'] and OPT['wb'] == 1:
    A(f"""
    s_cmp_lg_u32 s{sK}, 0
    s_cbranch_scc1 L_end
    s_waitcnt vmcnt(0)
    s_barrier
    s_cmp_lg_u32 s{sW}, 0
    s_cbranch_scc1 L_end
    buffer_wbl2 sc1
    """)
finish()

A("L_att_hi:")
late_common()
lane_consts()
A(f"s_load_dwordx2 s[56:57], s[0:1], 16\ns_mov_b32 s58, {576*8192}\ns_mov_b32 s59, 0x20000")
if OPT['prio']: A("s_setprio 2")
if OPT['pf'] == 1:
    A(f"""
    s_getpc_b64 s[66:67]
    L_pc:
    s_sub_u32 s66, s66, L_pc-{NAME}_kernel
    s_subb_u32 s67, s67, 0
    v_subrev_u32 v10, 256, v0
    v_lshlrev_b32 v10, 7, v10
    v_cmp_gt_u32 vcc, L_exit-{NAME}_kernel, v10
    s_and_saveexec_b64 s[68:69], vcc
    s_cbranch_execz L_nopf
    global_load_dword v255, v10, s[66:67]
    L_nopf:
    s_mov_b64 exec, -1
    """)
A(f"""
s_sub_u32 s66, s{sW}, 4
s_lshl_b32 s67, s{sX}, 15
s_lshl_b32 s68, s{sK}, 11
s_add_u32 s68, s68, s67
s_add_u32 s69, s68, {WS_H1L}
s_waitcnt lgkmcnt(0)
s_load_dword s{sE}, s[48:49], 0
s_cmp_lg_u32 s66, 1
s_cbranch_scc1 L_h_b
buffer_load_dwordx4 v[248:251], v9, {WS}, s69 offen
buffer_load_dwordx4 v[248:251], v9, {WS}, s69 offen offset:1024
L_h_b:
""")
if OPT['wqh']:
    A(f"""
    s_cmp_lt_u32 s66, 2
    s_cbranch_scc1 L_h_c
    s_lshr_b32 s68, s{sK}, 2
    s_mul_i32 s68, s68, 144
    s_and_b32 s69, s{sK}, 3
    s_lshl_b32 s69, s69, 2
    s_add_u32 s68, s68, s69
    s_lshl_b32 s69, s66, 1
    s_add_u32 s68, s68, s69
    s_add_u32 s68, s68, 124
    s_lshl_b32 s68, s68, 13
    s_lshl_b32 s69, s{sX}, 10
    s_add_u32 s68, s68, s69
    s_add_u32 s69, s68, 8192
    buffer_load_dwordx4 v[248:251], v9, {RB}, s68 offen
    buffer_load_dwordx4 v[248:251], v9, {RB}, s69 offen
    L_h_c:
    """)
A(f"""
s_lshr_b32 s67, s{sX}, 1
s_lshl_b32 s67, s67, 15
s_lshl_b32 s68, s66, 13
s_add_u32 s67, s67, s68
s_add_u32 s67, s67, {WS_H2}
s_and_b32 s69, s66, 1
s_lshl_b32 s69, s69, 1
v_xor_b32 v10, s69, v3
v_lshlrev_b32 v10, 4, v10
v_lshl_add_u32 v10, v2, 10, v10
s_add_u32 s68, s68, {QA}
v_add_u32 v16, s68, v10
v_xor_b32 v17, 64, v16
v_xor_b32 v18, 16, v16
v_xor_b32 v19, 80, v16
v_lshrrev_b32 v12, 5, v{vL}
v_and_b32 v13, 1, v4
v_lshrrev_b32 v14, 1, v6
v_lshl_or_b32 v13, v13, 1, v14
v_and_b32 v14, 2, v5
v_lshl_or_b32 v14, v14, 1, v12
v_xor_b32 v13, v13, v14
v_lshlrev_b32 v13, 4, v13
v_lshl_add_u32 v13, v5, 7, v13
v_lshl_add_u32 v13, v12, 9, v13
v_and_b32 v14, 1, v6
v_lshl_add_u32 v13, v14, 3, v13
s_lshl_b32 s68, s66, 11
v_add_u32 v20, s68, v13
v_xor_b32 v21, 32, v20
v_xor_b32 v22, 64, v20
v_xor_b32 v23, 96, v20
""")
for j in range(4): A(f"v_add_u32 v{24+j}, 0x10000, v{20+j}")
A(f"s_getreg_b32 s65, hwreg(HW_REG_XCC_ID, 0, 4)\ns_lshl_b32 s72, s{sX}, 11\ns_add_u32 s72, s72, {WS_XT}\ns_waitcnt lgkmcnt(0)")
get_tag()
A(f"""
s_cmp_lg_u32 s66, 0
s_cbranch_scc1 L_noxt
s_lshl_b32 s68, s{sK}, 7
s_add_u32 s68, s68, s72
v_mov_b32 v28, s65
v_mov_b32 v29, s{sT}
v_lshlrev_b32 v30, 3, v{vL}
s_mov_b64 exec, 0xffff
buffer_store_dwordx2 v[28:29], v30, {WS}, s68 offen sc1
s_mov_b64 exec, -1
L_noxt:
""")
A(f"""
s_add_u32 s72, s48, s72
s_addc_u32 s73, s49, 0
s_and_b32 s74, s2, {8*OPT['rep']-1}
s_lshl_b32 s74, s74, 10
s_lshl_b32 s75, s66, 8
s_add_u32 s74, s74, s75
s_add_u32 s74, s74, {WS_PQ}
s_add_u32 s74, s48, s74
s_addc_u32 s75, s49, 0
s_mov_b32 s77, 0
{'s_sleep %d' % OPT['isl'] if OPT['isl'] else ''}
""")
if not OPT['local']: A(f"s_mov_b32 s{sLOC}, 1")
if OPT['local']:
    A(f"s_cmp_lg_u32 s66, 0\ns_cbranch_scc1 L_nx\nL_nxp:\ns_mov_b32 s{sLOC}, 0\ns_mov_b32 s76, 0")
    for hlf in range(2):
        for i in range(8): A(f"s_load_dwordx2 s[{16+16*hlf+2*i if hlf == 0 or i < 4 else 52+2*(i-4)}:{17+16*hlf+2*i if hlf == 0 or i < 4 else 53+2*(i-4)}], s[72:73], {(8*hlf+i)*128} glc")
    A("s_waitcnt lgkmcnt(0)")
    for r in list(range(16, 40, 2)) + list(range(52, 60, 2)):
        A(f"s_xor_b32 s{r}, s{r}, s65\ns_or_b32 s{sLOC}, s{sLOC}, s{r}\ns_xor_b32 s{r+1}, s{r+1}, s{sT}\ns_or_b32 s76, s76, s{r+1}")
    A(f"s_or_b32 s{sLOC}, s{sLOC}, s76\ns_add_u32 s77, s77, 1\ns_cmp_ge_u32 s77, 12\ns_cbranch_scc1 L_nx\ns_cmp_lg_u32 s76, 0\ns_cbranch_scc1 L_nxp\nL_nx:")
A(f"""
L_xp:
{'s_sleep %d' % OPT['psl'] if OPT['psl'] else ''}
s_mov_b32 s76, 0
""")
if OPT['cpq']:
    A("s_load_dwordx8 s[16:23], s[74:75], 0 glc\ns_load_dwordx8 s[24:31], s[74:75], 128 glc\ns_waitcnt lgkmcnt(0)")
else:
    for i in range(16): A(f"s_load_dword s{16+i}, s[74:75], {i*128} glc")
    A("s_waitcnt lgkmcnt(0)")
for i in range(16): A(f"s_xor_b32 s{16+i}, s{16+i}, s{sT}\ns_or_b32 s76, s76, s{16+i}")
A(f"""
s_add_u32 s77, s77, 1
s_cmp_ge_u32 s77, {POLL_MAX}
s_cbranch_scc1 L_xd
s_cmp_lg_u32 s76, 0
s_cbranch_scc1 L_xp
L_xd:
""")
ST(6, 2)
if OPT['gbar'] <= 8: A("s_barrier")
if OPT['exp'] == 2: A("s_branch L_end")
ST(9)
vQ = 32
A(f"s_mov_b32 s76, 0xff\ns_mov_b32 s77, 0\ns_add_u32 s69, s67, 4096\nL_h2poll:")
for i in range(8):
    A(f"s_bitcmp1_b32 s76, {i}\ns_cbranch_scc0 L_h2i{i}")
    A(f"buffer_load_dwordx4 {vr(vQ+4*i,4)}, v9, {WS}, s{67 if i < 4 else 69} offen offset:{(i&3)*1024} sc1")
    A(f"L_h2i{i}:")
A(f"s_add_u32 s77, s77, 1\ns_cmp_eq_u32 s77, 1\ns_cbranch_scc1 L_h2first\ns_waitcnt vmcnt(0)\nL_h2first:")
for i in range(8):
    var = ((i >> 1) & 1) + 2*((i >> 2) & 1)
    q = vQ+4*i
    A(f"s_bitcmp1_b32 s76, {i}\ns_cbranch_scc0 L_h2c{i}")
    A(f"s_waitcnt vmcnt({7-i})")
    A(f"v_max3_u32 v28, v{q}, v{q+1}, v{q+2}\nv_max_u32 v28, v28, v{q+3}\nds_write_b128 v{16+var}, {vr(q,4)} offset:{i*128}\nv_cmp_eq_u32 vcc, -1, v28")
    A(f"s_cbranch_vccnz L_h2c{i}\ns_bitset0_b32 s76, {i}\nL_h2c{i}:")
A(f"""
s_waitcnt lgkmcnt(0)
s_cmp_ge_u32 s77, {POLL_MAX}
s_cbranch_scc1 L_h2done
s_cmp_eq_u32 s76, 0
s_cbranch_scc1 L_h2done
{'s_sleep %d' % OPT['rsleep'] if OPT['rsleep'] else ''}
s_branch L_h2poll
L_h2done:
""")
ST(1)
if OPT['prio']: A("s_setprio 0")
A(f"""
s_lshl_b32 s70, s{sX}, 4
s_add_u32 s70, s70, s{sK}
s_lshl_b32 s76, s70, 15
s_lshl_b32 s71, s66, 13
s_add_u32 s76, s76, s71
s_add_u32 s76, s76, {WS_H3A}
s_add_u32 s78, s76, 4096
s_lshl_b32 s75, s70, 10
s_add_u32 s75, s75, {WS_FLG}
s_barrier
""")
vV = 96; vO = 32
def vfrag(f, tau): return vV + 4*(f*4 + tau)
PR = [224+4*f for f in range(6)] + [16, 252]
def pv_reads(f):
    for tau in range(4):
        for jj in range(2):
            a = (20 if f < 4 else 24) + jj + 2*(tau & 1)
            off = (f & 3)*16384 + jj*8192 + (tau >> 1)*1024
            A(f"ds_read_b64_tr_b16 {vr(vfrag(f,tau)+2*jj,2)}, v{a} offset:{off}")
if OPT['local']:
    A(f"s_cmp_lg_u32 s66, 0\ns_cbranch_scc1 L_npt\nbuffer_load_dwordx4 v[248:251], v9, {WS}, s75 offen\nL_npt:")
    if not OPT['nopt'] and not OPT['ptl']:
        for i in range(8): A(f"buffer_load_dwordx4 v[248:251], v9, {WS}, s{76 if i < 4 else 78} offen offset:{(i&3)*1024}")
def late_help():
    NL = OPT['nl']
    A(f"""
    s_load_dwordx2 s[16:17], s[0:1], 72
    s_load_dwordx2 s[20:21], s[0:1], 40
    s_lshr_b32 s68, s{sK}, 2
    s_and_b32 s69, s{sK}, 3
    s_mov_b32 s55, 0x20000
    s_cmp_eq_u32 s{sK}, 14
    s_cbranch_scc1 L_lt_x
    s_cmp_ge_u32 s69, 2
    s_cbranch_scc1 L_lt_f
    s_cmp_eq_u32 s68, 3
    s_cbranch_scc1 L_lt_f
    s_lshl_b32 s70, s{sX}, 3
    s_lshl_b32 s71, s68, 1
    s_add_u32 s70, s70, s71
    s_add_u32 s70, s70, s69
    s_add_u32 s70, s70, 1
    s_mul_i32 s54, s70, {64*1152}
    s_sub_u32 s70, s54, {4*NL*1024}
    s_lshl_b32 s71, s66, 10
    s_add_u32 s70, s70, s71
    s_mov_b32 s71, 4096
    v_mov_b32 v10, v9
    s_waitcnt lgkmcnt(0)
    s_mov_b32 s52, s20
    s_mov_b32 s53, s21
    s_branch L_lt_go
    L_lt_f:
    s_lshl_b32 s70, s68, 1
    s_add_u32 s70, s70, s69
    s_lshr_b32 s71, s69, 1
    s_cmp_eq_u32 s68, 3
    s_cselect_b32 s71, s71, 2
    s_sub_u32 s70, s70, s71
    s_mul_i32 s71, s{sX}, 9
    s_add_u32 s70, s70, s71
    s_add_u32 s70, s70, 1
    s_mul_i32 s54, s70, {64*1152}
    s_sub_u32 s70, s54, {4*NL*1024}
    s_lshl_b32 s71, s66, 10
    s_add_u32 s70, s70, s71
    s_mov_b32 s71, 4096
    v_mov_b32 v10, v9
    s_waitcnt lgkmcnt(0)
    s_mov_b32 s52, s16
    s_mov_b32 s53, s17
    L_lt_go:
    """)
    if OPT['late'] == 1: A("s_barrier")
    for i in range(NL):
        A(f"buffer_load_dwordx4 v[248:251], v10, {RA}, s70 offen\ns_add_u32 s70, s70, s71")
    A("L_lt_x:\ns_waitcnt lgkmcnt(0)")
if OPT['late'] == 3: late_help()
FO = [0, 2, 4, 6, 1, 3, 5, 7]
pv_reads(FO[0])
A("s_barrier")
for n in range(1, 8):
    A("s_waitcnt lgkmcnt(6)")
    if n == 5:
        A(f"""
        v_mov_b32 v15, {QA+LCO}
        s_cmp_lg_u32 s66, 0
        s_cbranch_scc1 L_nl
        v_mov_b32 v28, s{sLOC}
        ds_write_b32 v15, v28
        L_nl:
        s_barrier
        """)
    pv_reads(FO[n])
A(f"""
v_add_u32 v10, {QA}, v9
v_and_b32 v13, 31, v{vL}
v_lshlrev_b32 v13, 4, v13
v_lshl_add_u32 v11, v12, 16, v13
s_lshl_b32 s68, s{sX}, 19
s_lshl_b32 s69, s{sK}, 11
s_add_u32 s68, s68, s69
s_lshl_b32 s70, s66, 9
s_add_u32 s68, s68, s70
s_add_u32 s68, s68, {WS_H3A}
s_lshl_b32 s71, s66, 7
s_add_u32 s71, s71, s75
v_mov_b32 v14, s{sT}
s_waitcnt lgkmcnt(0)
s_setprio {OPT['pvq']}
s_barrier
""")
ST(3)
def p_read(f): A(f"ds_read_b128 {vr(PR[f],4)}, v10 offset:{(f>>1)*8192+(f&1)*1024}")
for f in FO[:4]: p_read(f)
for n, f in enumerate(FO):
    if n <= OPT['c2pos']: A(f"s_waitcnt lgkmcnt({3-n})")
    elif n <= 3: pass
    else: A(f"s_waitcnt lgkmcnt({8-n})")
    for tau in range(4): mf32(vO+16*tau, PR[f], vfrag(f,tau), n == 0)
    if n == OPT['c2pos']:
        A("s_waitcnt lgkmcnt(0)\ns_barrier")
        for f2 in FO[4:]: p_read(f2)
        A("ds_read_b32 v15, v15")
A(f"s_waitcnt lgkmcnt(0)\nv_readfirstlane_b32 s{sLOC}, v15")
ST(4)
def pv_store(flag):
    for n, i in enumerate(range(0, 16, 2)):
        d = vV + 4*n
        A(f"v_cvt_pk_bf16_f32 v{d}, v{vO+i}, v{vO+16+i}\nv_cvt_pk_bf16_f32 v{d+2}, v{vO+i+1}, v{vO+16+i+1}")
        A(f"s_add_u32 s69, s68, {((i&3)//2 + 4*(i>>2))*32768}")
        A(f"v_cvt_pk_bf16_f32 v{d+1}, v{vO+32+i}, v{vO+48+i}\nv_cvt_pk_bf16_f32 v{d+3}, v{vO+32+i+1}, v{vO+48+i+1}")
        A(f"buffer_store_dwordx4 {vr(d,4)}, v11, {WS}, s69 offen {flag if flag or not OPT['lnt'] & 1 else 'nt'}")
    A(f"""
    s_mov_b64 exec, 1
    s_waitcnt vmcnt(0)
    buffer_store_dword v14, v8, {WS}, s71 offen offset:512 {flag}
    s_mov_b64 exec, -1
    {"s_barrier" if OPT['bard'] else ""}
    """)
A(f"s_cmp_lg_u32 s{sLOC}, 0\ns_cbranch_scc1 L_pvfar")
pv_store("")
A("L_pvback:")
ST(5)
if OPT['late'] in (1, 2): late_help()
finish()
A("L_pvfar:\ns_nop 9")
pv_store("sc1")
A("s_branch L_pvback")

A("L_end:")
if OPT['stamps']:
    A("s_waitcnt vmcnt(0)")
    ST(8)
    A(f"""
    s_waitcnt lgkmcnt(0)
    s_lshl_b32 s66, s2, 3
    s_add_u32 s66, s66, s{sW}
    s_lshl_b32 s66, s66, 6
    s_add_u32 s66, s66, {WS_ST}
    s_getreg_b32 s67, hwreg(HW_REG_XCC_ID)
    s_mov_b64 exec, 1
    v_mov_b32 v8, 0
    """)
    for i in range(3):
        A("\n".join(f"v_mov_b32 v{12+j}, s{80+2*(3*i+j)}" for j in range(3)))
        A(f"v_mov_b32 v15, {['s67','s77','s98'][i]}")
        A(f"buffer_store_dwordx4 v[12:15], v8, {WS}, s66 offen offset:{16*i}")
if OPT['hs'] >= 0:
    if OPT['hr'] == 1: A("s_cmp_ge_u32 s2, 128\ns_cbranch_scc1 L_exit")
    if OPT['hr'] == 3: A(f"s_cmp_ge_u32 s2, 128\ns_cbranch_scc1 L_exit\ns_cmp_ge_u32 s{sW}, 4\ns_cbranch_scc1 L_exit")
    if OPT['hr'] == 4: A(f"s_cmp_ge_u32 s2, 128\ns_cbranch_scc1 L_exit\ns_cmp_lt_u32 s{sW}, 4\ns_cbranch_scc1 L_exit")
    if OPT['hr'] == 2: A("s_cmp_lt_u32 s2, 128\ns_cbranch_scc1 L_exit")
    A(f"s_cmp_eq_u32 s{80+2*OPT['hs']}, 0\ns_cbranch_scc1 L_exit")
    A(f"L_hold2:\ns_memrealtime s[66:67]\ns_waitcnt lgkmcnt(0)\ns_sub_u32 s68, s66, s{80+2*OPT['hs']}\ns_cmp_lt_u32 s68, 4000\ns_cbranch_scc1 L_hold2")
if OPT['hold']:
    A(f"L_hold:\ns_memrealtime s[66:67]\ns_waitcnt lgkmcnt(0)\ns_sub_u32 s68, s66, s80\ns_cmp_lt_u32 s68, {OPT['hold']}\ns_cbranch_scc1 L_hold")
A("L_exit:\ns_endpgm")
A.raw(f""".section .rodata,"a"
.p2align 6
.amdhsa_kernel {NAME}_kernel
  .amdhsa_next_free_vgpr 256
  .amdhsa_next_free_sgpr 102
  .amdhsa_accum_offset 256
  .amdhsa_group_segment_fixed_size 0
  .amdhsa_kernarg_size 104
  .amdhsa_user_sgpr_count 2
  .amdhsa_user_sgpr_kernarg_segment_ptr 1
  .amdhsa_system_sgpr_workgroup_id_x 1
  .amdhsa_float_denorm_mode_32 3
.end_amdhsa_kernel""")
sys.stdout.write(A.text())
sys.stderr.write(f"instructions {A.count} nops {A.nops}\n")
```

```python
import sys, math, struct
from asmx import Asm, NAME

OPT = dict(stamps=0, local=1, hold=0, pf=2, exp=0, gbar=8, rsleep=0, help=5, fslow=6, tslow=0, wb=12, gap=0, prio=1, ukw=0, wqh=1, adel=0, psl=0, cpq=1, hb=1, noclr=0, nopt=0, hslow=0, gslow=0, Tslow=0, areg=1, pvp=1, ckh=1, lnt=0, c3l=0, rowm=1, fclr=0, late=0, nl=8, bpre=1, fhelp=0, pearly=0, pfirst=0, fbar=1, fwin=2, fbx=1, nqal=0, fv=0, pvq=3, ptl=3, bard=0, c2pos=2, tg=0, aclr=0, isl=0, rep=2, wn=0, wa=0, wt=0, hs=-1, hr=0)
for a in sys.argv[1:]:
    k, v = a.split("="); assert k in OPT, k; OPT[k] = int(v)

WS_PF  = 0x010000
WS_FF  = 0x020000
WS_TG  = 0x038000
WS_XT  = 0x030000
WS_H1  = 0x040000
WS_H1L = 0x0C0000
WS_H2  = 0x080000
WS_PQ  = 0x0A0000
WS_FLG = 0x100000
WS_H3B = 0x140000
WS_H5  = 0x200000
WS_H3A = 0x400000
WS_ST  = 0x800000
POLL_MAX = 400000 if not OPT['exp'] else 40

P_X, P_CKV, P_WQ, P_WUK, P_WUV, P_WO, P_BX, P_WG, P_WU, P_WD, P_OUT, P_DBG = [16+2*i for i in range(12)]
sSL, sF = 40, 41
sE, sT, sW, sX, sK, sH = 42, 43, 44, 45, 46, 47
WS = "s[48:51]"; RA = "s[52:55]"; RB = "s[56:59]"; RC = "s[60:63]"
sQD, sA_ = 64, 65
A = Asm()
NFX = OPT.get('nfx', 3)
HW = '\ns_waitcnt vmcnt(0)' if OPT['hslow'] else ''
NQPART = [True]

def srd(base, ptr, size):
    A(f"s_mov_b32 s{base}, s{ptr}\ns_mov_b32 s{base+1}, s{ptr+1}\ns_mov_b32 s{base+2}, {size}\ns_mov_b32 s{base+3}, 0x20000")
def ST(i, mode=1):
    if OPT['stamps'] == mode or (OPT['stamps'] and i in (0, 8)): A(f"s_memrealtime s[{80+2*i}:{81+2*i}]")
def vr(a, n): return f"v[{a}:{a+n-1}]"
WIN = [0]
def dma(voff, rsrc, soff, flags="nt"):
    if WIN[0]: A(f"s_waitcnt vmcnt({WIN[0]-1})")
    A(f"buffer_load_dwordx4 v{voff}, {rsrc}, s{soff} offen {flags} lds")
def finish(): A("s_branch L_end")
def get_tag():
    A(f"s_add_u32 s{sE}, s{sE}, 1\ns_mul_i32 s{sT}, s{sE}, 0x9E3779B1\ns_xor_b32 s{sT}, s{sT}, 0x5BD1E995")
def rb16(dst, src):
    A(f"v_cvt_pk_bf16_f32 v{dst}, v{src}, v{src}\nv_lshlrev_b32 v{dst}, 16, v{dst}")
DPPF = "row_mask:0xf bank_mask:0xf"
QP1 = "quad_perm:[1,0,3,2] " + DPPF
def wave_sum_to_sgpr(v, s):
    for r in (8, 4, 2, 1): A(f"v_add_f32_dpp v{v}, v{v}, v{v} row_ror:{r} {DPPF}")
    A(f"v_add_f32_dpp v{v}, v{v}, v{v} row_bcast:15 row_mask:0xa bank_mask:0xf")
    A(f"v_add_f32_dpp v{v}, v{v}, v{v} row_bcast:31 row_mask:0xc bank_mask:0xf")
    A(f"v_readlane_b32 s{s}, v{v}, 63")
def fbits(x): return "0x%08x" % struct.unpack("<I", struct.pack("<f", x))[0]
def mf16(d, a, b, first): A(f"v_mfma_f32_16x16x32_bf16 {vr(d,4)}, {vr(a,4)}, {vr(b,4)}, {'0' if first else vr(d,4)}")
def mf32(d, a, b, first): A(f"v_mfma_f32_32x32x16_bf16 {vr(d,16)}, {vr(a,4)}, {vr(b,4)}, {'0' if first else vr(d,16)}")
def ones(v): A("\n".join(f"v_mov_b32 v{v+j}, -1" for j in range(4)))
LOG2E = 1.4426950408889634

HDR = """; Kernarg layout (104 bytes, pointers only, base s[0:1]):
; Compressed-KV attention in absorbed form:  q_abs = (LN(x) W_q) W_uk^T,  latent = softmax(q_abs c_kv^T) c_kv,
; s = (latent W_uv) W_o;  gate branch y = (gelu(LN(x) W_g) * LN(x) W_u) W_d;  out = x + s * silu(y).
; Hand-offs go through d_ws: words tagged with a per-launch value derived from d_ws[0], or areas cleared in this launch.
; Stores stay in the die's L2 only after a run-time check that all 16 partners report the same die id."""
for l_ in HDR.split("\n"): A.raw(l_)
A.raw("; @launch grid=(256,1,1) block=(512,1,1) lds=163840")
A.raw('.amdgcn_target "amdgcn-amd-amdhsa--gfx950"')
A.raw(f".text\n.globl {NAME}_kernel\n.p2align 8\n.type {NAME}_kernel,@function\n{NAME}_kernel:")
vL = 1
BIG = 16384
WQB = BIG + 108*1024
def late_common():
    A(f"""
    s_load_dwordx2 s[48:49], s[0:1], 96
    s_load_dwordx16 s[16:31], s[0:1], 0
    s_load_dwordx8 s[32:39], s[0:1], 64
    s_mov_b32 s50, 0x10000000
    s_mov_b32 s51, 0x20000
    s_mov_b32 s55, 0x20000
    """)
ST(0)
A(f"""
s_load_dwordx2 s[60:61], s[0:1], 24
s_lshr_b32 s3, s2, 7
s_cbranch_scc1 L_nq
v_lshrrev_b32 v3, 6, v0
v_and_b32 v{vL}, 63, v0
v_lshlrev_b32 v9, 4, v{vL}
v_lshl_add_u32 v2, v3, 13, v9
s_and_b32 s{sX}, s2, 7
s_lshl_b32 s68, s{sX}, 10
s_lshr_b32 s{sK}, s2, 3
s_lshl_b32 s69, s{sK}, 18
s_add_u32 s68, s68, s69
v_add_u32 v2, s68, v2
""")
if OPT['pfirst'] == 2:
    A(f"""
    s_getpc_b64 s[66:67]
    L_pc:
    v_lshl_add_u32 v4, v0, 4, s{sK}
    v_lshlrev_b32 v4, 7, v4
    v_cmp_gt_u32 vcc, L_exit-L_pc, v4
    s_and_saveexec_b64 s[68:69], vcc
    s_cbranch_execz L_pf1
    global_load_dword v247, v4, s[66:67]
    L_pf1:
    s_mov_b64 exec, -1
    """)
if OPT['pfirst'] == 1:
    A(f"s_getpc_b64 s[66:67]\nv_lshlrev_b32 v4, 1, v0\nglobal_load_dword v247, v4, s[66:67] offset:64")
A("s_waitcnt lgkmcnt(0)")
for i in range(4):
    A("global_load_dwordx4 v[248:251], v2, s[60:61]")
    if i < 3: A("v_add_u32 v2, 0x10000, v2")
PFB = f"""
v_readfirstlane_b32 s{sW}, v3
v_lshlrev_b32 v2, 7, v0
v_cmp_gt_u32 vcc, L_exit-L_pc, v2
s_and_saveexec_b64 s[68:69], vcc
s_cbranch_execz L_att
global_load_dword v247, v2, s[66:67]
s_branch L_att
"""
if OPT['pfirst'] == 2: A(f"v_readfirstlane_b32 s{sW}, v3\ns_branch L_att")
else:
    A("s_getpc_b64 s[66:67]\nL_pc:")
    A(PFB)
A(f"""
L_nq:
s_load_dwordx2 s[56:57], s[0:1], 16
s_load_dwordx2 s[52:53], s[0:1], 0
v_lshrrev_b32 v2, 6, v0
s_and_b32 s{sX}, s2, 7
s_mov_b32 s59, 0x20000
v_readfirstlane_b32 s{sW}, v2
s_cmp_ge_u32 s2, 256
s_cbranch_scc1 L_exit
s_movk_i32 s70, 128
v_bfe_u32 v2, v0, 3, 4
v_lshrrev_b32 v3, 8, v0
v_lshl_add_u32 v3, v3, 4, v2
v_lshrrev_b32 v11, 1, v2
v_and_b32 v11, 4, v11
v_and_or_b32 v11, v2, 2, v11
v_xor_b32 v11, v11, v0
v_and_b32 v11, 7, v11
v_lshlrev_b32 v11, 4, v11
v_and_or_b32 v12, v0, s70, v11
v_lshl_add_u32 v12, v3, 13, v12
s_bfe_u32 s{sA_}, s2, 0x20005
s_bfe_u32 s{sQD}, s2, 0x20003
s_lshl2_add_u32 s{sH}, s{sX}, s{sA_}
s_mul_i32 s72, s{sQD}, {18*65536}
s_lshl_b32 s73, s{sH}, 8
s_add_u32 s72, s72, s73
s_mov_b32 s58, {576*8192}
s_and_b32 s67, s{sW}, 1
s_bfe_u32 s69, s{sW}, 0x10001
s_and_b32 s71, s{sW}, 4
s_lshl1_add_u32 s71, s67, s71
s_add_u32 s71, s71, s69
s_lshl_b32 s71, s71, 10
s_add_u32 m0, s71, {WQB}
""")
A(f"""
v_and_b32 v{vL}, 63, v0
s_mul_i32 s66, s{sW}, 1152
v_lshl_add_u32 v13, v{vL}, 3, s66
v_lshl_add_u32 v14, v{vL}, 1, s66
s_lshr_b32 s70, s{sW}, 2
""")
ST(1, 5)
A("s_waitcnt lgkmcnt(0)")
ST(2, 5)
A("""
s_cbranch_scc1 L_nq_nox
global_load_dwordx2 v[20:21], v13, s[52:53]
global_load_dwordx2 v[22:23], v13, s[52:53] offset:512
global_load_ushort v24, v14, s[52:53] offset:1024
L_nq_nox:
""")
for i in range(4):
    dma(12, RB, 72)
    A(f"s_add_u32 s72, s72, {4*65536}\ns_add_u32 m0, s71, {WQB+8192*(i+1)}")
A(f"s_cmp_lg_u32 s70, 0\ns_cbranch_scc1 L_nq_d4")
dma(12, RB, 72)
A("L_nq_d4:")
ST(3, 5)
if OPT['nqal']:
    A("s_branch L_nq2\nL_att0:")
    A(PFB)
    A("L_nq2:")
late_common()
A(f"""
s_lshr_b32 s{sK}, s2, 3
v_lshlrev_b32 v9, 4, v{vL}
s_mov_b32 s62, {512*8192}
s_mov_b32 s63, 0x20000
""")
def lane_consts():
    A(f"v_lshrrev_b32 v2, 3, v{vL}\nv_and_b32 v3, 7, v{vL}\nv_lshrrev_b32 v4, 4, v{vL}\nv_bfe_u32 v5, v{vL}, 2, 2\nv_and_b32 v6, 3, v{vL}\nv_lshlrev_b32 v7, 4, v0\nv_mov_b32 v8, 0")
    if OPT['stamps']:
        for i in range(82 if OPT['stamps'] != 5 else 88, 102): A(f"s_mov_b32 s{i}, 0")

XN, XNS = 0, 1216
QL, QLS = 5120, 320
HB, HBS = 9728, 192
vTR = 13
vD = 28
def common_setup():
    lane_consts()
    A(f"""
    s_and_b32 s67, s{sW}, 1
    s_lshl_b32 s68, s67, 2
    v_and_b32 v11, 2, v2
    v_or_b32 v11, s68, v11
    v_xor_b32 v11, v11, v3
    v_lshlrev_b32 v11, 4, v11
    v_lshl_add_u32 v12, v2, 13, v11
    s_lshr_b32 s68, s{sW}, 1
    s_bfe_u32 s69, s{sW}, 0x10001
    s_lshr_b32 s70, s{sW}, 2
    """)
def common_setup2():
    A(f"""
    s_and_b32 s74, s{sW}, 3
    s_lshl_b32 s74, s74, 1
    v_lshrrev_b32 v{vTR}, 1, v6
    v_or_b32 v{vTR}, s74, v{vTR}
    v_and_b32 v14, 2, v5
    v_xor_b32 v{vTR}, v{vTR}, v14
    v_and_b32 v14, 1, v4
    v_lshlrev_b32 v15, 2, v14
    v_xor_b32 v{vTR}, v{vTR}, v15
    v_lshlrev_b32 v{vTR}, 4, v{vTR}
    v_lshl_add_u32 v{vTR}, v5, 7, v{vTR}
    v_and_b32 v15, 1, v6
    v_lshl_add_u32 v{vTR}, v15, 3, v{vTR}
    s_lshl_b32 s74, s70, 10
    s_add_u32 s74, s74, {BIG}
    v_add_u32 v15, s74, v{vTR}
    v_lshl_add_u32 v16, v4, 11, v15
    v_mul_u32_u24 v18, {XNS}, v6
    v_lshl_add_u32 v18, v4, 4, v18
    s_mov_b32 s78, 0x000f000f
    s_mov_b32 s79, 0x000f000f
    """)
def x_loads():
    A(f"""
    s_mul_i32 s66, s{sW}, 1152
    v_lshlrev_b32 v10, 3, v{vL}
    v_lshlrev_b32 v19, 1, v{vL}
    buffer_load_dwordx2 v[20:21], v10, {RA}, s66 offen
    buffer_load_dwordx2 v[22:23], v10, {RA}, s66 offen offset:512
    buffer_load_ushort v24, v19, {RA}, s66 offen offset:1024
    """)
def layernorm():
    e = list(range(56, 65))
    for i in range(4): A(f"v_lshlrev_b32 v{e[2*i]}, 16, v{20+i}\nv_and_b32 v{e[2*i+1]}, 0xffff0000, v{20+i}")
    A(f"""
    v_lshlrev_b32 v{e[8]}, 16, v24
    v_add_f32 v25, v{e[0]}, v{e[1]}
    v_add_f32 v26, v{e[2]}, v{e[3]}
    v_add_f32 v27, v{e[4]}, v{e[5]}
    v_add_f32 v28, v{e[6]}, v{e[7]}
    v_add_f32 v25, v25, v26
    v_add_f32 v27, v27, v28
    v_add_f32 v25, v25, v{e[8]}
    v_add_f32 v25, v25, v27
    """)
    wave_sum_to_sgpr(25, 74)
    A(f"v_mov_b32 v26, {fbits(1.0/576)}\nv_mul_f32 v26, s74, v26")
    A(f"v_sub_f32 v27, v{e[0]}, v26\nv_mul_f32 v25, v27, v27")
    for i in range(1, 9): A(f"v_sub_f32 v27, v{e[i]}, v26\nv_fmac_f32 v25, v27, v27")
    rb16(26, 26)
    for i in range(9): A(f"v_sub_f32 v{e[i]}, v{e[i]}, v26")
    wave_sum_to_sgpr(25, 74)
    A(f"v_mov_b32 v27, {fbits(1.0/576)}\nv_mul_f32 v27, s74, v27")
    rb16(27, 27)
    A(f"v_add_f32 v27, {fbits(1e-5)}, v27")
    rb16(27, 27)
    A("v_sqrt_f32 v27, v27")
    rb16(27, 27)
    A("v_rcp_f32 v27, v27")
    for i in range(0, 8, 2): A(f"v_cvt_pk_bf16_f32 v{20+i//2}, v{e[i]}, v{e[i+1]}")
    A(f"v_cvt_pk_bf16_f32 v24, v{e[8]}, v{e[8]}")
    for i in range(0, 8, 2): A(f"v_lshlrev_b32 v{e[i]}, 16, v{20+i//2}\nv_and_b32 v{e[i+1]}, 0xffff0000, v{20+i//2}")
    A(f"v_lshlrev_b32 v{e[8]}, 16, v24")
    for i in range(9): A(f"v_mul_f32 v{e[i]}, v{e[i]}, v27")
    for i in range(0, 8, 2): A(f"v_cvt_pk_bf16_f32 v{20+i//2}, v{e[i]}, v{e[i+1]}")
    A(f"v_cvt_pk_bf16_f32 v24, v{e[8]}, v{e[8]}")
    A(f"""
    s_mul_i32 s74, s{sW}, {XNS}
    v_add_u32 v10, s74, v10
    v_add_u32 v19, s74, v19
    ds_write_b64 v10, v[20:21] offset:{XN}
    ds_write_b64 v10, v[22:23] offset:{XN+512}
    ds_write_b16 v19, v24 offset:{XN+1024}
    """)
def clear_tail_inbox(vones):
    A(f"s_lshl_b32 s74, s{sH}, 14\ns_add_u32 s74, s74, {WS_H3B}")
    for i in range(4):
        A(f"buffer_store_dwordx4 {vr(vones,4)}, v9, {WS}, s74 offen sc1\nbuffer_store_dwordx4 {vr(vones,4)}, v9, {WS}, s74 offen offset:2048 sc1")
        if i < 3: A("s_add_u32 s74, s74, 4096")
    A(f"s_sub_u32 s74, s74, {3*4096}\nv_lshlrev_b32 v14, 11, v2\nv_lshl_add_u32 v14, v3, 4, v14")
    A(f"buffer_store_dwordx4 {vr(vones,4)}, v14, {WS}, s74 offen offset:1024 sc1")
def proof(sidx):
    A(f"""
    s_lshl_b32 s74, s{sidx}, 7
    s_add_u32 s74, s74, {WS_PF}
    v_mov_b32 v14, s{sT}
    v_lshlrev_b32 v17, 2, v{vL}
    s_mov_b32 exec_hi, 0
    buffer_store_dword v14, v17, {WS}, s74 offen sc1
    s_mov_b64 exec, -1
    """)
vXN, vG = 32, 104
def xn_frags():
    for kp in range(18):
        A(f"ds_read_b128 {vr(vXN+4*kp,4)}, v18 offset:{XN+kp*64}")
        if kp == 11: A("s_waitcnt lgkmcnt(4)")
def k_half(h, va, vb):
    for kp in range(9):
        a, off = (va, kp*8192) if kp < 8 else (vb, 0)
        A(f"ds_read_b64_tr_b16 {vr(vG+4*kp,2)}, v{a} offset:{off}")
        A(f"ds_read_b64_tr_b16 {vr(vG+4*kp+2,2)}, v{a} offset:{off+512}")
        if kp == 5: A("s_waitcnt lgkmcnt(6)")
    for kp in range(9):
        A(f"s_waitcnt lgkmcnt({min(15,2*(8-kp))})")
        mf16(vD, vG+4*kp, vXN+4*(9*h+kp), h == 0 and kp == 0)

QP, QPS = 5120, 272
UKB = BIG
sU = 76
def f_setup():
    A(f"""
    s_lshl_b32 s71, s{sA_}, 1
    s_add_u32 s71, s71, s{sQD}
    s_lshr_b32 s72, s{sQD}, 1
    s_cmp_eq_u32 s{sA_}, 3
    s_cselect_b32 s72, s72, 2
    s_sub_u32 s71, s71, s72
    s_mul_i32 s{sU}, s{sX}, 9
    s_add_u32 s{sU}, s{sU}, s71
    s_cmp_eq_u32 s69, 0
    s_cselect_b32 s60, s{P_WG}, s{P_WU}
    s_cselect_b32 s61, s{P_WG+1}, s{P_WU+1}
    s_mov_b32 s62, {576*9216}
    s_lshl_b32 s72, s67, 1
    s_lshl_b32 s71, s69, 2
    s_or_b32 s72, s72, s71
    v_bfe_u32 v14, v2, 1, 1
    v_or_b32 v14, s72, v14
    v_xor_b32 v14, v14, v3
    v_lshlrev_b32 v14, 4, v14
    v_mul_u32_u24 v12, 9216, v2
    v_add_u32 v12, v12, v14
    s_lshl_b32 s71, s70, 1
    s_add_u32 s71, s71, s67
    s_mul_i32 s72, s71, {8*9216}
    s_lshl_b32 s74, s{sU}, 7
    s_add_u32 s72, s72, s74
    s_lshl_b32 s71, s71, 1
    s_add_u32 s71, s71, s69
    s_lshl_b32 s71, s71, 10
    s_add_u32 s71, s71, {BIG}
    """)
def gu_dma(i):
    A(f"s_mov_b32 m0, s71\ns_add_u32 s71, s71, 8192")
    dma(12, RC, 72)
    A(f"s_add_u32 s72, s72, {32*9216}")
lane_consts()
A(f"""
v_lshl_add_u32 v12, v2, 13, v11
s_lshl_b32 s74, s69, 7
s_add_u32 s73, s73, s74
s_mov_b32 s54, 4608
v_lshlrev_b32 v10, 3, v{vL}
v_lshlrev_b32 v19, 1, v{vL}
s_waitcnt lgkmcnt(0)
s_load_dword s{sE}, s[48:49], 0
""")
ST(1, 2)
A(f"s_lshr_b32 s68, s{sW}, 1\ns_cmp_ge_u32 s{sQD}, 2\ns_cbranch_scc1 L_nq_fs")
A(f"""
s_lshl_b32 s71, s70, 3
s_add_u32 s71, s71, s67
s_lshl_b32 s72, s{sQD}, 5
s_add_u32 s72, s72, s71
s_lshl_b32 s72, s72, 16
s_add_u32 s72, s72, s73
s_lshl_b32 s71, s71, 1
s_add_u32 s71, s71, s69
s_lshl_b32 s71, s71, 10
s_add_u32 s71, s71, {UKB}
s_cmp_eq_u32 s70, 0
s_cbranch_scc1 L_nq_ln
""")
ones(24)
A(f"""
s_lshl_b32 s75, s{sW}, 12
s_lshl_b32 s74, s{sH}, 14
s_add_u32 s74, s74, s75
s_add_u32 s74, s74, {WS_H3B-16384}
buffer_store_dwordx4 v[24:27], v9, {WS}, s74 offen sc1
buffer_store_dwordx4 v[24:27], v9, {WS}, s74 offen offset:2048 sc1
s_mov_b64 exec, 0xff
buffer_store_dwordx4 v[24:27], v9, {WS}, s74 offen offset:1024 sc1
buffer_store_dwordx4 v[24:27], v9, {WS}, s74 offen offset:3072 sc1
s_lshl_b32 s75, s{sW}, 15
s_lshl_b32 s74, s{sH}, 10
s_add_u32 s74, s74, s75
s_lshl_b32 s75, s{sQD}, 9
s_add_u32 s74, s74, s75
s_add_u32 s74, s74, {WS_H2-4*32768}
s_mov_b32 exec_lo, -1
buffer_store_dwordx4 v[24:27], v9, {WS}, s74 offen sc1
s_mov_b64 exec, -1
s_branch L_nq_noln
L_nq_fs:
s_cmp_lg_u32 s{sK}, 30
s_cbranch_scc1 L_nq_fs2
s_cmp_eq_u32 s70, 0
s_cbranch_scc1 L_nq_ln
""")
ones(24)
A(f"""
s_lshl_b32 s75, s{sW}, 12
s_lshl_b32 s74, s{sH}, 14
s_add_u32 s74, s74, s75
s_add_u32 s74, s74, {WS_H3B-16384}
buffer_store_dwordx4 v[24:27], v9, {WS}, s74 offen sc1
buffer_store_dwordx4 v[24:27], v9, {WS}, s74 offen offset:2048 sc1
s_mov_b64 exec, 0xff
buffer_store_dwordx4 v[24:27], v9, {WS}, s74 offen offset:1024 sc1
buffer_store_dwordx4 v[24:27], v9, {WS}, s74 offen offset:3072 sc1
s_mov_b64 exec, -1
s_branch L_nq_noln
L_nq_fs2:
""")
f_setup()
A(f"s_cmp_lg_u32 s70, 0\ns_cbranch_scc1 L_nq_noln\nL_nq_ln:\ns_waitcnt vmcnt(5)")
ST(2, 2)
layernorm()
A("L_nq_noln:")
ST(3, 2)
common_setup2()
A(f"""
v_add_u32 v21, {WQB-BIG}, v16
v_and_b32 v14, 1, v4
v_lshl_add_u32 v17, v14, 11, v15
v_add_u32 v17, {WQB-BIG}, v17
s_mul_i32 s74, s{sQD}, 288
v_add_u32 v19, s74, v18
s_lshl_b32 s66, s{sH}, 13
s_add_u32 s66, s66, {WS_H1L}
s_lshl_b32 s75, s{sQD}, 11
s_add_u32 s75, s75, s66
s_lshl_b32 s77, s{sW}, 8
s_add_u32 s75, s75, s77
v_lshlrev_b32 v20, 6, v6
v_lshl_add_u32 v20, v4, 4, v20
v_cmp_gt_u32 vcc, 2, v4
s_cmp_lt_u32 s{sQD}, 2
s_cbranch_scc1 L_nq_uk
s_waitcnt vmcnt(0)
""")
for i in range(OPT['gap']): gu_dma(i)
A(f"""
s_branch L_nq_a
L_nq_uk:
s_waitcnt vmcnt(5)
s_cmp_lg_u32 s70, 0
s_cbranch_scc1 L_nq_uk2
s_waitcnt vmcnt(0)
L_nq_uk2:
""")
for i in range(4):
    A(f"s_mov_b32 m0, s71\ns_add_u32 s71, s71, 4096")
    dma(12, RC, 72)
    A(f"s_add_u32 s72, s72, {2*65536}")
A("L_nq_a:\ns_waitcnt lgkmcnt(0)")
ST(1); ST(5, 2)
A("s_barrier")
vA, vB = 64, 96
for kp in range(5):
    a = 21 if kp < 4 else 17
    A(f"ds_read_b64_tr_b16 {vr(vA+4*kp,2)}, v{a} offset:{kp*8192}")
    A(f"ds_read_b64_tr_b16 {vr(vA+4*kp+2,2)}, v{a} offset:{kp*8192+512}")
    A(f"ds_read_b128 {vr(vB+4*kp,4)}, v19 offset:{XN+kp*64}")
get_tag()
A(f"v_mov_b32 v25, s{sT}\nv_mov_b32 v27, s{sT}")
for kp in range(5):
    A(f"s_waitcnt lgkmcnt({3*(4-kp)})")
    if kp == 4:
        for j in range(4): A(f"v_cndmask_b32 v{vB+16+j}, 0, v{vB+16+j}, vcc")
    mf16(vD, vA+4*kp, vB+4*kp, kp == 0)
H1D = WS_H1L - WS_H1
def pq_addr():
    if OPT['cpq']:
        return f"""v_lshlrev_b32 v55, 10, v{vL}
        s_lshl_b32 s76, s{sX}, 7
        s_lshl_b32 s74, s{sA_}, 3
        s_add_u32 s76, s76, s74
        s_lshl_b32 s74, s{sQD}, 2
        s_add_u32 s76, s76, s74
        s_add_u32 s76, s76, {WS_PQ}"""
    return f"""v_lshlrev_b32 v55, 13, v2
    v_lshl_add_u32 v55, v3, 4, v55
    s_lshl_b32 s76, s{sH}, 8
    s_lshl_b32 s74, s{sQD}, 7
    s_add_u32 s76, s76, s74
    s_add_u32 s76, s76, {WS_PQ}"""
PQX = {1: "s_mov_b64 exec, 0xff", 2: "s_mov_b64 exec, 0xffff", 4: "s_mov_b32 exec_hi, 0", 8: "s_nop 0"}[OPT["rep"]]
PQST = f"{PQX}\nbuffer_store_dword v44, v55, {WS}, s76 offen sc1\ns_mov_b64 exec, -1" if OPT['cpq'] else f"buffer_store_dwordx4 v[44:47], v55, {WS}, s76 offen sc1"
A(f"""
v_and_b32 v52, 1, v2
v_and_b32 v53, 2, v3
v_lshl_or_b32 v53, v52, 2, v53
v_xor_b32 v53, v53, v4
v_lshlrev_b32 v53, 4, v53
v_lshl_add_u32 v53, v3, 7, v53
v_lshl_add_u32 v52, v52, 11, v53
v_cvt_pk_bf16_f32 v24, v{vD}, v{vD+1}
v_cvt_pk_bf16_f32 v26, v{vD+2}, v{vD+3}
s_mov_b64 exec, s[78:79]
buffer_store_dwordx4 v[24:27], v20, {WS}, s75 offen
s_sub_u32 s75, s75, {H1D}
s_cmp_lt_u32 s{sQD}, 2
s_cbranch_scc1 L_nq_b
buffer_store_dwordx4 v[24:27], v20, {WS}, s75 offen sc1
s_mov_b64 exec, -1
""")
ST(2); ST(6, 2)
A(f"s_barrier\ns_cmp_eq_u32 s{sK}, 30\ns_cbranch_scc1 L_T")
if OPT['ckh']:
    nb = OPT['ckh']; lpr = 8*nb; rpi = 64//lpr
    A(f"""
    s_mov_b32 s56, s{P_CKV}
    s_mov_b32 s57, s{P_CKV+1}
    s_lshl_b32 s74, s{sA_}, 1
    s_add_u32 s74, s74, s{sQD}
    s_sub_u32 s74, s74, 2
    s_min_u32 s74, s74, 6
    s_lshl_b32 s74, s74, 3
    s_add_u32 s74, s74, s{sW}
    s_mul_i32 s74, s74, {rpi*1024}
    s_lshl_b32 s75, s{sX}, 21
    s_add_u32 s74, s74, s75
    s_add_u32 s58, s75, {1 << 21}
    v_lshrrev_b32 v48, {int(math.log2(lpr))}, v{vL}
    v_and_b32 v49, {lpr-1}, v{vL}
    v_lshlrev_b32 v48, 10, v48
    v_lshl_add_u32 v48, v49, 4, v48
    """)
    n = -(-2048 // (56*rpi))
    for i in range(n):
        A(f"buffer_load_dwordx4 v[248:251], v48, {RB}, s74 offen offset:{(1024-128*nb) if not OPT['c3l'] else (384 if nb == 1 else 256)}")
        if i < n-1: A(f"s_add_u32 s74, s74, {56*rpi*1024}")
A(f"s_branch L_F\nL_nq_b:\ns_mov_b64 exec, -1")
ST(2); ST(6, 2)
if OPT['pearly']:
    A(f"s_waitcnt vmcnt(5)\ns_barrier\ns_lshl_b32 s77, s{sQD}, 1\ns_cmp_lg_u32 s{sW}, s77\ns_cbranch_scc1 L_pe\n{pq_addr()}\nv_mov_b32 v44, s{sT}\n{PQST}\nL_pe:")
    A(f"s_add_u32 s71, s71, 16384\ns_add_u32 s72, s72, {8*65536}")
else:
    A(f"s_barrier\ns_add_u32 s71, s71, 16384\ns_add_u32 s72, s72, {8*65536}")
for i in range(4):
    A(f"s_mov_b32 m0, s71\ns_add_u32 s71, s71, 4096")
    dma(12, RC, 72)
    if i < 3: A(f"s_add_u32 s72, s72, {2*65536}")
A(f"""
s_mul_i32 s74, s68, {4*QPS}
s_lshl_b32 s77, s67, 7
s_add_u32 s74, s74, s77
v_mul_u32_u24 v22, {QPS}, v5
v_lshl_add_u32 v22, v4, 5, v22
v_lshl_add_u32 v22, v6, 3, v22
v_add_u32 v22, s74, v22
s_lshl_b32 s77, s{sW}, 13
s_add_u32 s77, s77, {UKB}
v_add_u32 v52, s77, v52
v_xor_b32 v53, 64, v52
v_and_b32 v23, 15, v{vL}
v_mul_u32_u24 v23, {QPS}, v23
v_lshl_add_u32 v23, v4, 4, v23
s_lshl_b32 s72, s{sH}, 10
s_lshl_b32 s74, s{sQD}, 9
s_add_u32 s72, s72, s74
s_lshl_b32 s74, s{sW}, 6
s_add_u32 s72, s72, s74
s_add_u32 s72, s72, {WS_H2}
v_and_b32 v21, 1, v5
v_lshlrev_b32 v54, 15, v6
{pq_addr()}
v_mov_b32 v44, s{sT}
v_mov_b32 v45, s{sT}
v_mov_b32 v46, s{sT}
v_mov_b32 v47, s{sT}
v_lshl_add_u32 v54, v21, 5, v54
v_lshl_add_u32 v54, v4, 3, v54
s_sub_u32 s71, s66, {H1D}
s_mov_b32 s77, 0
L_h1poll:
s_cmp_lg_u32 s77, 6
s_cbranch_scc1 L_h1ng
s_mov_b64 exec, s[78:79]
buffer_store_dwordx4 v[24:27], v20, {WS}, s75 offen sc1
s_mov_b64 exec, -1
L_h1ng:
s_and_b32 s74, s77, 9
s_cmp_eq_u32 s74, 9
s_cselect_b32 s74, s71, s66
buffer_load_dwordx4 v[48:51], v7, {WS}, s74 offen sc1
s_add_u32 s77, s77, 1
s_waitcnt vmcnt(0)
v_xor_b32 v49, s{sT}, v49
v_xor_b32 v51, s{sT}, v51
v_or_b32 v49, v49, v51
v_cmp_ne_u32 vcc, 0, v49
s_cmp_ge_u32 s77, {POLL_MAX}
s_cbranch_scc1 L_h1done
s_cbranch_vccnz L_h1poll
L_h1done:
v_mov_b32 v49, v50
ds_write_b64 v22, v[48:49] offset:{QP}
s_cmp_gt_u32 s77, 6
s_cbranch_scc1 L_h1sent
s_mov_b64 exec, s[78:79]
buffer_store_dwordx4 v[24:27], v20, {WS}, s75 offen sc1
s_mov_b64 exec, -1
L_h1sent:
""")
A(f"L_h1np:\nv_cmp_ne_u32 vcc, 0, v21\ns_waitcnt lgkmcnt(0)")
ST(3); ST(7, 2)
if OPT['pearly']: A("s_barrier")
else: A(f"s_barrier\ns_cmp_lg_u32 s{sW}, 0\ns_cbranch_scc1 L_nopq\n{PQST}\nL_nopq:")
vUK, vD1 = 64, 56
for kp in range(4):
    A(f"ds_read_b128 {vr(vB+4*kp,4)}, v23 offset:{QP+kp*64}")
    for tl in range(2):
        A(f"ds_read_b128 {vr(vUK+16*tl+4*kp,4)}, v{52+(kp&1)} offset:{tl*4096+(kp>>1)*1024}")
A(f"s_mov_b32 s74, {fbits(LOG2E/math.sqrt(128.0))}")
for kp in range(4):
    A(f"s_waitcnt lgkmcnt({9-3*kp+1})")
    mf16(vD, vUK+4*kp, vB+4*kp, kp == 0)
    A(f"s_waitcnt lgkmcnt({9-3*kp})")
    mf16(vD1, vUK+16+4*kp, vB+4*kp, kp == 0)
for j in range(4): A(f"v_cndmask_b32 v{60+j}, v{vD1+j}, v{vD+j}, vcc")
for j in range(4): A(f"v_cndmask_b32 v{vD+j}, v{vD+j}, v{vD1+j}, vcc")
for j in range(4): A(f"v_add_f32_dpp v{vD+j}, v{60+j}, v{vD+j} row_ror:4 {DPPF}")
for j in range(4): A(f"v_add_f32_dpp v{vD+j}, v{vD+j}, v{vD+j} row_ror:8 {DPPF}")
for j in range(4): A(f"v_mul_f32 v{vD+j}, s74, v{vD+j}")
A(f"""
v_cvt_pk_bf16_f32 v48, v{vD}, v{vD+1}
v_cvt_pk_bf16_f32 v49, v{vD+2}, v{vD+3}
v_min_u32 v48, -2, v48
v_min_u32 v49, -2, v49
s_mov_b32 exec_lo, 0x00ff00ff
s_mov_b32 exec_hi, 0x00ff00ff
buffer_store_dwordx2 v[48:49], v54, {WS}, s72 offen sc1
s_mov_b64 exec, -1
""")
ST(4); ST(9, 2)
A(f"""
s_barrier
s_cmp_lt_u32 s{sA_}, 3
s_cbranch_scc1 L_TH
""")
f_setup()
for i in range(OPT['gap']): gu_dma(i)
A("s_branch L_F")

def wide_voffset(v):
    A(f"v_mul_u32_u24 v{v}, 1152, v2\nv_add_u32 v{v}, v{v}, v11")
ZR = 15360
def publish_setup(stride):
    A(f"""
    s_mul_i32 s74, s{sW}, {stride}
    s_add_u32 s72, s72, s74
    v_mul_u32_u24 v20, {8*stride}, v5
    v_lshl_add_u32 v20, v4, 5, v20
    v_lshl_add_u32 v20, v6, 3, v20
    v_lshlrev_b32 v232, 2, v{vL}
    ds_write_b32 v232, v8 offset:{ZR}
    """)
def masked_addrs(vreal, base):
    A(f"v_mov_b32 v236, {ZR-base}")
    for i in range(4): A(f"v_cmp_eq_u32 vcc, {i}, v5\nv_cndmask_b32 v{232+i}, v236, v{vreal}, vcc")
def wide_dma(n, rsrc, slow=0):
    for i in range(n):
        A(f"s_mov_b32 m0, s71\ns_add_u32 s74, s72, 512")
        dma(14, rsrc, 72)
        if 2*i < slow: A("s_waitcnt vmcnt(0)")
        A(f"s_add_u32 s75, s71, 4096\ns_mov_b32 m0, s75\ns_add_u32 s72, s72, {16*1152}")
        dma(14, rsrc, 74)
        if 2*i+1 < slow: A("s_waitcnt vmcnt(0)")
        A(f"s_add_u32 s71, s71, 16384")
def wide_frag_addrs(base8, shift):
    A(f"v_lshl_add_u32 v16, v4, 13, v15")
    if shift: A(f"v_add_u32 v16, {shift}, v16")
    A(f"""
    v_add_u32 v17, 0x10000, v16
    v_lshl_add_u32 v18, v4, 10, v{vTR}
    v_add_u32 v18, {base8}, v18
    """)
def wide_frag_reads(vdst, nk):
    n = 0
    for i in range(4):
        for kp in range(nk):
            a = 16 if kp < 2 else 17
            off = (kp & 1)*32768 + i*2048
            d = vdst + (i*nk + kp)*4
            A(f"ds_read_b64_tr_b16 {vr(d,2)}, v{a} offset:{off}")
            A(f"ds_read_b64_tr_b16 {vr(d+2,2)}, v{a} offset:{off+512}")
            n += 2
            if n % 12 == 0: A("s_waitcnt lgkmcnt(4)")
    A("s_waitcnt lgkmcnt(4)")
    for kp in range(nk):
        d = vdst + (4*nk + kp)*4
        A(f"ds_read_b64_tr_b16 {vr(d,2)}, v18 offset:{kp*4096}")
        A(f"ds_read_b64_tr_b16 {vr(d+2,2)}, v18 offset:{kp*4096+512}")
def wide_gemm(vW, nk, vBf, base, stride, lab):
    acc, acc5 = 240, 244
    nb = 8
    order = [(i, kp) for i in (1, 2, 3, 0) for kp in range(nk)]
    def rd(n):
        i, kp = order[n]
        A(f"ds_read_b128 {vr(vBf+4*(n % nb),4)}, v{232+i} offset:{base+kp*64}")
    for n in range(min(nb, len(order))): rd(n)
    A(f"s_add_u32 s74, s72, {32*stride}\ns_cmp_lg_u32 s70, 0")
    for n, (i, kp) in enumerate(order):
        A(f"s_waitcnt lgkmcnt({min(nb-1, len(order)-1-n)})")
        mf16(acc, vW+(i*nk+kp)*4, vBf+4*(n % nb), n == 0)
        if n + nb < len(order): rd(n + nb)
    A(f"s_cbranch_scc1 {lab}_a")
    for kp in range(nk): mf16(acc5, vW+(4*nk+kp)*4, vBf+4*((3*nk+kp) % nb), kp == 0)
    A(f"""
    v_cvt_pk_bf16_f32 v{acc}, v{acc}, v{acc+1}
    v_cvt_pk_bf16_f32 v{acc+1}, v{acc+2}, v{acc+3}
    buffer_store_dwordx2 {vr(acc,2)}, v20, {WS}, s72 offen sc1
    v_cvt_pk_bf16_f32 v{acc5}, v{acc5}, v{acc5+1}
    v_cvt_pk_bf16_f32 v{acc5+1}, v{acc5+2}, v{acc5+3}
    s_mov_b64 exec, s[78:79]
    buffer_store_dwordx2 {vr(acc5,2)}, v20, {WS}, s74 offen sc1
    s_mov_b64 exec, -1
    s_branch {lab}_b
    {lab}_a:
    s_nop 6
    v_cvt_pk_bf16_f32 v{acc}, v{acc}, v{acc+1}
    v_cvt_pk_bf16_f32 v{acc+1}, v{acc+2}, v{acc+3}
    buffer_store_dwordx2 {vr(acc,2)}, v20, {WS}, s72 offen sc1
    {lab}_b:
    """)
def tail_prologue(lab, slot_code):
    common_setup2()
    A(f"s_mul_i32 s{sSL}, s{sX}, 7\n{slot_code}\ns_waitcnt lgkmcnt(0)")
    get_tag()
    A(f"s_cmp_lg_u32 s{sW}, 7\ns_cbranch_scc1 {lab}")
    ones(24)
    clear_tail_inbox(24)
    A("s_waitcnt vmcnt(0)")
    proof(sSL)
    A(f"{lab}:")

XL, CT, CTS = 0, 8192, 320
TS = 128*128
vUV, vWO = 32, 96
def t_setup():
    A(f"""
    v_lshlrev_b32 v21, 11, v3
    v_xor_b32 v22, v3, v4
    v_lshlrev_b32 v22, 4, v22
    v_lshl_add_u32 v22, v2, 11, v22
    v_and_b32 v12, 1, v2
    v_lshl_or_b32 v12, v12, 2, v4
    v_lshrrev_b32 v14, 1, v3
    v_xor_b32 v12, v12, v14
    v_lshlrev_b32 v12, 4, v12
    v_lshl_add_u32 v12, v3, 7, v12
    v_lshlrev_b32 v14, 3, v3
    s_lshl_b32 s66, s{sH}, 14
    s_add_u32 s66, s66, {WS_H3B}
    s_lshl_b32 s73, s{sW}, 7
    s_add_u32 s73, s73, s66
    s_lshl_b32 s72, s{sSL}, 7
    s_add_u32 s72, s72, {WS_H5}
    v_lshrrev_b32 v23, 1, v3
    v_mul_u32_u24 v23, {CTS}, v23
    v_lshl_add_u32 v23, v4, 3, v23
    s_lshl_b32 s74, s{sW}, 5
    v_add_u32 v23, s74, v23
    v_mul_u32_u24 v10, {CTS}, v6
    v_lshl_add_u32 v10, v4, 4, v10
    """)
    publish_setup(TS)
    masked_addrs(10, CT)
def tg_check(lab, early):
    if not OPT['tg']: return ""
    ev = "\n".join(f"s_xor_b32 s{60+i if i < 4 else 12+i}, s{60+i if i < 4 else 12+i}, s{sT}" for i in range(0))
    body = "s_load_dwordx8 s[4:11], s[12:13], 0 glc\ns_waitcnt lgkmcnt(0)\n" + \
           "\n".join(f"s_xor_b32 s{4+i}, s{4+i}, s{sT}" for i in range(8)) + \
           "\ns_or_b64 s[4:5], s[4:5], s[6:7]\ns_or_b64 s[8:9], s[8:9], s[10:11]\ns_or_b64 s[4:5], s[4:5], s[8:9]\n"
    if early:
        return f"""s_lshr_b32 s14, s{sH}, 1
        s_lshl_b32 s14, s14, 9
        s_lshl_b32 s15, s68, 7
        s_add_u32 s14, s14, s15
        s_add_u32 s14, s14, {WS_TG}
        s_add_u32 s12, s48, s14
        s_addc_u32 s13, s49, 0
        v_mov_b32 v24, -1
        {body}
        s_cselect_b32 s14, 1, 0
        s_cbranch_scc1 {lab}e2"""
    return f"""s_cmp_eq_u32 s14, 0
        s_cbranch_scc1 {lab}chk
        {lab}tp:
        s_add_u32 s77, s77, 1
        s_cmp_ge_u32 s77, {POLL_MAX}
        s_cbranch_scc1 {lab}poll
        {body}
        s_cbranch_scc1 {lab}tp
        s_branch {lab}poll"""
def t_early(lab):
    A(f"""
    v_min_u32 v238, 35, v{vL}
    v_lshlrev_b32 v238, 7, v238
    s_mov_b32 s76, {WS_PF}
    v_mov_b32 v28, 0
    v_mov_b32 v29, 0
    s_cmp_lg_u32 s{sW}, 0
    s_cbranch_scc1 {lab}e1
    buffer_load_dword v239, v238, {WS}, s76 offen sc1
    {lab}e1:
    {tg_check(lab, True)}
    buffer_load_dwordx4 v[24:27], v22, {WS}, s73 offen sc1
    s_cmp_lg_u32 s{sW}, 7
    s_cbranch_scc1 {lab}e2
    s_mov_b64 exec, 0xff
    buffer_load_dwordx2 v[28:29], v21, {WS}, s66 offen offset:1024 sc1
    s_mov_b64 exec, -1
    {lab}e2:
    """)
def t_tail(nk, lab):
    A(f"""
    s_mov_b32 s77, 0
    s_cmp_lg_u32 s{sW}, 0
    s_cbranch_scc1 {lab}pd
    {lab}pp:
    v_cmp_ne_u32 vcc, s{sT}, v239
    s_add_u32 s77, s77, 1
    s_cbranch_vccz {lab}pd
    s_cmp_ge_u32 s77, {POLL_MAX}
    s_cbranch_scc1 {lab}pd
    buffer_load_dword v239, v238, {WS}, s76 offen sc1
    s_waitcnt vmcnt(0)
    s_branch {lab}pp
    {lab}pd:
    """)
    ST(5); ST(7, 3)
    A(f"""
    s_mov_b32 s77, 0
    {tg_check(lab, False)}
    s_branch {lab}chk
    {lab}poll:
    buffer_load_dwordx4 v[24:27], v22, {WS}, s73 offen sc1
    s_cmp_lg_u32 s{sW}, 7
    s_cbranch_scc1 {lab}ns
    s_mov_b64 exec, 0xff
    buffer_load_dwordx2 v[28:29], v21, {WS}, s66 offen offset:1024 sc1
    s_mov_b64 exec, -1
    {lab}ns:
    s_add_u32 s77, s77, 1
    s_waitcnt vmcnt(0)
    {lab}chk:
    v_max3_u32 v30, v24, v25, v26
    v_max3_u32 v30, v30, v27, v28
    v_max_u32 v30, v30, v29
    v_cmp_eq_u32 vcc, -1, v30
    s_cmp_ge_u32 s77, {POLL_MAX}
    s_cbranch_scc1 {lab}done
    s_cbranch_vccnz {lab}poll
    {lab}done:
    ds_write_b128 v7, v[24:27] offset:{XL}
    s_cmp_lg_u32 s{sW}, 7
    s_cbranch_scc1 {lab}nw
    s_mov_b64 exec, 0xff
    ds_write_b64 v14, v[28:29] offset:{CT+2048}
    s_mov_b64 exec, -1
    {lab}nw:
    s_waitcnt lgkmcnt(0)
    """)
    ST(6)
    if nk == 4 and OPT['wb'] == 12: A(f"s_cmp_ge_u32 s{sX}, {NFX}\ns_cbranch_scc1 {lab}nwb\ns_cmp_lg_u32 s{sW}, 6\ns_cbranch_scc1 {lab}nwb\nbuffer_wbl2 sc1\n{lab}nwb:")
    if nk == 4 and OPT['wb'] == 2: A(f"s_cmp_lg_u32 s{sW}, 6\ns_cbranch_scc1 {lab}nwb\nbuffer_wbl2 sc1\n{lab}nwb:")
    A("s_barrier")
    if nk == 2 and OPT['fv'] == 2:
        A(f"""
        s_cmp_eq_u32 s70, 0
        s_cbranch_scc1 {lab}douv
        s_cmp_ge_u32 s{sF}, 36
        s_cbranch_scc1 {lab}nouv
        s_lshl_b32 s74, s{sF}, 14
        s_lshl_b32 s75, s{sW}, 12
        s_add_u32 s74, s74, s75
        s_add_u32 s74, s74, {WS_H5-16384}
        """)
        for i in range(4): A(f"buffer_load_dwordx4 {vr(32+4*i,4)}, v9, {WS}, s74 offen offset:{1024*i} sc1")
        A(f"s_branch {lab}nouv\n{lab}douv:")
    elif nk == 2: A(f"s_cmp_lg_u32 s70, 0\ns_cbranch_scc1 {lab}nouv")
    vX = 176
    A(f"ds_read_b64 v[28:29], v14 offset:{CT+2048}")
    for i in range(8): A(f"ds_read_b128 {vr(vX+4*i,4)}, v12 offset:{XL+i*1024}")
    a0, a1 = 24, 208
    for i in range(8):
        A(f"s_waitcnt lgkmcnt({7-i})")
        mf16(a0, vUV+8*i, vX+4*i, i == 0)
        mf16(a1, vUV+8*i+4, vX+4*i, i == 0)
        OM = [f"v_max_f32_dpp v30, v28, v28 {QP1}", "v_sub_f32 v30, v28, v30", "v_exp_f32 v30, v30", "v_mul_f32 v31, v30, v29",
              f"v_add_f32_dpp v31, v31, v31 {QP1}", "v_rcp_f32 v31, v31", "v_mul_f32 v30, v30, v31"]
        if i < 7: A(OM[i])
    for j in range(4): A(f"v_add_f32_dpp v{a0+j}, v{a1+j}, v{a0+j} row_ror:8 {DPPF}")
    for j in range(4): A(f"v_mul_f32 v{a0+j}, v{a0+j}, v30")
    for j in range(4): A(f"v_add_f32_dpp v{a0+j}, v{a0+j}, v{a0+j} {QP1}")
    A(f"""
    v_cvt_pk_bf16_f32 v28, v{a0}, v{a0+1}
    v_cvt_pk_bf16_f32 v29, v{a0+2}, v{a0+3}
    s_mov_b32 exec_lo, 0x00550055
    s_mov_b32 exec_hi, 0x00550055
    ds_write_b64 v23, v[28:29] offset:{CT}
    s_mov_b64 exec, -1
    s_waitcnt lgkmcnt(0)
    {lab}nouv:
    s_barrier
    """)
    wide_gemm(vWO, nk, vX, CT, TS, lab+"g")
    ST(7)
    if nk == 4 and OPT['wb'] == 3: A(f"s_cmp_lg_u32 s{sW}, 6\ns_cbranch_scc1 L_end\nbuffer_wbl2 sc1")
    if nk == 2: fin_role()
    else: finish()

RED = BIG
def fin_setup():
    A(f"s_sub_u32 s{sF}, s{sSL}, s{sX}\ns_lshl1_add_u32 s{sF}, s{sF}, s70")
    srd(52, P_X, 4608)
    srd(56, P_OUT, 4608)
    A(f"""
    v_and_b32 v212, 1, v4
    v_lshl_add_u32 v212, v3, 1, v212
    v_and_b32 v213, 3, v212
    v_mul_u32_u24 v213, 1152, v213
    v_lshrrev_b32 v212, 2, v212
    v_lshl_add_u32 v213, v212, 3, v213
    s_min_u32 s75, s{sF}, 35
    s_lshl_b32 s75, s75, 5
    v_add_u32 v213, s75, v213
    buffer_load_dwordx2 v[214:215], v213, {RA}, 0 offen
    v_and_b32 v212, 1, v3
    v_lshlrev_b32 v212, 4, v212
    v_mov_b32 v216, 0x3f80
    v_lshlrev_b32 v216, v212, v216
    v_bfe_u32 v212, v{vL}, 1, 3
    """)
    for d in range(8): A(f"v_cmp_eq_u32 vcc, {d}, v212\nv_cndmask_b32 v{220+d}, 0, v216, vcc")
def fin_role():
    A(f"""
    s_cmp_ge_u32 s{sF}, 36
    s_cbranch_scc1 L_end
    s_and_b32 s66, s{sW}, 3
    s_lshl_b32 s72, s{sF}, 14
    s_lshl_b32 s73, s66, 12
    s_add_u32 s72, s72, s73
    s_add_u32 s72, s72, {WS_H5}
    s_mov_b32 s76, 15
    s_mov_b32 s77, 0
    {"s_waitcnt vmcnt(0)" if OPT['fv'] == 1 else ""}
    {"s_branch L_finchk" if OPT['fv'] == 2 else ""}
    L_finpoll:
    """)
    for i in range(4):
        A(f"s_bitcmp1_b32 s76, {i}\ns_cbranch_scc0 L_fi{i}\nbuffer_load_dwordx4 {vr(32+4*i,4)}, v9, {WS}, s72 offen offset:{1024*i} sc1\nL_fi{i}:")
    A("s_add_u32 s77, s77, 1\ns_waitcnt vmcnt(0)")
    if OPT['fv'] == 2: A("s_branch L_finchk2\nL_finchk:\ns_waitcnt vmcnt(1)\nL_finchk2:")
    for i in range(4): A(f"v_max3_u32 v{48+i}, v{32+4*i}, v{33+4*i}, v{34+4*i}")
    for i in range(4): A(f"v_max_u32 v{48+i}, v{48+i}, v{35+4*i}")
    for i in range(4): A(f"v_cmp_eq_u32 vcc, -1, v{48+i}\ns_cbranch_vccnz L_fc{i}\ns_bitset0_b32 s76, {i}\nL_fc{i}:")
    A(f"""
    s_cmp_ge_u32 s77, {POLL_MAX}
    s_cbranch_scc1 L_findone
    s_cmp_lg_u32 s76, 0
    s_cbranch_scc1 L_finpoll
    L_findone:
    s_cmp_ge_u32 s66, 2
    s_cbranch_scc1 L_fin_g
    """)
    for i in range(3): mf16(52, 220, 32+4*i, i == 0)
    A(f"s_cmp_eq_u32 s66, 1\ns_cbranch_scc1 L_fin_g3")
    mf16(52, 220, 44, False)
    A("s_branch L_fin_w\nL_fin_g:")
    for i in range(3): mf16(52, 224, 32+4*i, i == 0)
    A("L_fin_g3:")
    mf16(52, 224, 44, False)
    A(f"L_fin_w:\ns_nop 7\nds_write_b128 v7, v[52:55] offset:{RED}\ns_waitcnt lgkmcnt(0)")
    ST(9)
    A(f"s_barrier\ns_cmp_lg_u32 s66, 0\ns_cbranch_scc1 L_end")
    for i in range(4): A(f"ds_read_b128 {vr(64+4*i,4)}, v7 offset:{RED+i*1024}")
    A(f"s_mov_b32 s76, {fbits(-LOG2E)}")
    A("v_lshlrev_b32 v32, 16, v214\nv_and_b32 v33, 0xffff0000, v214\nv_lshlrev_b32 v34, 16, v215\nv_and_b32 v35, 0xffff0000, v215")
    A("s_waitcnt lgkmcnt(2)")
    for j in range(4): A(f"v_add_f32 v{64+j}, v{64+j}, v{68+j}")
    A("s_waitcnt lgkmcnt(0)")
    for j in range(4): A(f"v_add_f32 v{72+j}, v{72+j}, v{76+j}")
    for j in range(4): A(f"v_add_f32 v{64+j}, v{64+j}, v{72+j}")
    for j in range(4): A(f"v_add_f32_dpp v{64+j}, v{64+j}, v{64+j} row_ror:8 {DPPF}")
    for j in range(4): rb16(64+j, 64+j)
    for j in range(4): A(f"v_mul_f32 v{76+j}, s76, v{64+j}")
    for j in range(4): A(f"v_exp_f32 v{76+j}, v{76+j}")
    for j in range(4): A(f"v_add_f32 v{76+j}, 1.0, v{76+j}")
    for j in range(4): A(f"v_rcp_f32 v{76+j}, v{76+j}")
    for j in range(4): A(f"v_mul_f32 v{76+j}, v{64+j}, v{76+j}")
    A("v_cvt_pk_bf16_f32 v76, v76, v77\nv_cvt_pk_bf16_f32 v77, v78, v79")
    A("v_permlane32_swap_b32 v76, v68\nv_permlane32_swap_b32 v77, v69")
    A("v_lshlrev_b32 v72, 16, v68\nv_and_b32 v73, 0xffff0000, v68\nv_lshlrev_b32 v74, 16, v69\nv_and_b32 v75, 0xffff0000, v69")
    for j in range(4): A(f"v_mul_f32 v{64+j}, v{64+j}, v{72+j}")
    A("v_cvt_pk_bf16_f32 v68, v64, v65\nv_cvt_pk_bf16_f32 v69, v66, v67")
    A("v_lshlrev_b32 v64, 16, v68\nv_and_b32 v65, 0xffff0000, v68\nv_lshlrev_b32 v66, 16, v69\nv_and_b32 v67, 0xffff0000, v69")
    for j in range(4): A(f"v_add_f32 v{64+j}, v{64+j}, v{32+j}")
    A(f"""
    v_cvt_pk_bf16_f32 v64, v64, v65
    v_cvt_pk_bf16_f32 v65, v66, v67
    s_mov_b64 exec, 0x00ff00ff
    buffer_store_dwordx2 v[64:65], v213, {RB}, 0 offen
    s_cmp_lg_u32 s{sF}, 0
    s_cbranch_scc1 L_fin_noep
    s_mov_b64 exec, 1
    v_mov_b32 v66, s{sE}
    buffer_store_dword v66, v8, {WS}, 0 offen sc1
    L_fin_noep:
    s_mov_b64 exec, -1
    """)
    finish()

def hb_code():
    if not OPT['hb']: return ""
    return f"""s_lshr_b32 s71, s66, 1
    s_add_u32 s71, s71, 48
    s_mul_i32 s71, s71, {8*9216}
    s_add_u32 s74, s73, 6
    s_lshl_b32 s74, s74, 7
    s_add_u32 s71, s71, s74
    buffer_load_dwordx4 v[248:251], v14, {RA}, s71 offen"""
WIN[0] = OPT["wt"]
A("L_TH:")
SLOT = f"s_lshl_b32 s74, s{sA_}, 1\ns_add_u32 s{sSL}, s{sSL}, s74\ns_add_u32 s{sSL}, s{sSL}, s{sQD}"
A(f"""
s_lshl_b32 s66, s{sA_}, 1
s_add_u32 s66, s66, s{sQD}
s_mov_b32 s{sF}, 99
s_cmp_eq_u32 s66, 3
s_cbranch_scc1 L_f_go
s_cmp_gt_u32 s66, 3
s_subb_u32 s66, s66, 0
s_lshl_b32 s66, s66, 3
s_add_u32 s{sF}, s66, s{sX}
s_add_u32 s66, s66, s{sW}
""")
def h5_clear(lab):
    A(f"s_cmp_ge_u32 s{sF}, 36\ns_cbranch_scc1 {lab}")
    ones(24)
    A(f"s_lshl_b32 s74, s{sF}, 14\ns_lshl_b32 s75, s{sW}, 11\ns_add_u32 s74, s74, s75\ns_add_u32 s74, s74, {WS_H5}")
    for i in range(2): A(f"buffer_store_dwordx4 v[24:27], v9, {WS}, s74 offen offset:{i*1024} sc1")
    if not OPT['aclr']:
        A(f"s_waitcnt vmcnt(0)\ns_barrier\ns_cmp_lg_u32 s{sW}, 0\ns_cbranch_scc1 {lab}")
        proof(sF)
    A(f"{lab}:")
if not OPT['fclr']: h5_clear("L_noclr2")
A("L_noclr:")
if OPT['help']:
    A(f"""
    s_cmp_eq_u32 s67, 0
    s_cselect_b32 s52, s{P_WG}, s{P_WU}
    s_cselect_b32 s53, s{P_WG+1}, s{P_WU+1}
    s_mov_b32 s54, {576*9216}
    s_lshr_b32 s71, s66, 1
    s_add_u32 s71, s71, 32
    s_mul_i32 s71, s71, {8*9216}
    s_sub_u32 s72, 3, s{sX}
    s_and_b32 s72, s72, 7
    s_mul_i32 s73, s{sX}, 9
    s_lshl_b32 s73, s73, 7
    s_add_u32 s71, s71, s73
    s_lshl_b32 s74, s72, 7
    s_add_u32 s73, s71, s74
    v_mul_u32_u24 v14, 9216, v2
    v_lshl_add_u32 v14, v3, 4, v14
    s_add_u32 s74, s73, {20*8*9216}
    s_add_u32 s71, s71, {20*8*9216}
    """)
    if OPT['help'] & 1:
        A(f"""
        buffer_load_dwordx4 v[248:251], v14, {RA}, s73 offen{HW}
        buffer_load_dwordx4 v[248:251], v14, {RA}, s74 offen{HW}
        s_cmp_lg_u32 s72, 0
        s_cbranch_scc1 L_noc3b
        buffer_load_dwordx4 v[248:251], v14, {RA}, s73 offen offset:1024{HW}
        buffer_load_dwordx4 v[248:251], v14, {RA}, s74 offen offset:1024{HW}
        L_noc3b:
        """)
    if OPT['help'] & 2: A(f"buffer_load_dwordx4 v[248:251], v14, {RA}, s71 offen offset:768{HW}\nbuffer_load_dwordx4 v[248:251], v14, {RA}, s71 offen offset:896{HW}")
    if OPT['help'] & 4:
        A(f"""
        s_lshl_b32 s66, s66, 10
        s_mov_b32 s52, s{P_WO}
        s_mov_b32 s53, s{P_WO+1}
        s_lshl_b32 s73, s{sX}, 3
        s_add_u32 s73, s73, 7
        s_mul_i32 s73, s73, {64*1152}
        s_add_u32 s54, s73, {64*1152}
        s_add_u32 s73, s73, s66
        s_add_u32 s74, s73, {40*1024}
        buffer_load_dwordx4 v[248:251], v9, {RA}, s73 offen{HW}
        buffer_load_dwordx4 v[248:251], v9, {RA}, s74 offen{HW}
        """)
    if OPT['help'] & 8:
        A(f"s_sub_u32 s73, s73, {40*1024}\nbuffer_load_dwordx4 v[248:251], v9, {RA}, s73 offen")
A("L_f_go:")
A(f"s_mul_i32 s{sSL}, s{sX}, 7\n{SLOT}")
ST(1, 3)
srd(52, P_WUV, 512*8192)
srd(56, P_WO, 4096*1152)
A(f"""
s_lshl_b32 s71, s{sW}, 10
s_add_u32 s71, s71, {BIG}
s_lshl_b32 s72, s68, 2
s_add_u32 s72, s72, s67
s_lshl_b32 s72, s72, 16
s_lshl_b32 s73, s{sH}, 1
s_add_u32 s73, s73, s{sQD}
s_lshl_b32 s74, s73, 7
s_add_u32 s72, s72, s74
""")
for i in range(8):
    cb = 2*(i&1) + 16*(i>>1)
    A(f"s_mov_b32 m0, s71\ns_add_u32 s74, s72, {cb*65536}")
    dma(12, RA, 74)
    A(f"s_add_u32 s71, s71, 8192")
    if i < OPT['tslow']: A("s_waitcnt vmcnt(0)")
if OPT['aclr']:
    A(f"s_cmp_ge_u32 s{sF}, 36\ns_cbranch_scc1 L_ac\ns_waitcnt vmcnt(8)\ns_barrier\ns_cmp_lg_u32 s{sW}, 0\ns_cbranch_scc1 L_ac")
    proof(sF)
    A("L_ac:")
wide_voffset(14)
A(f"""
s_mul_i32 s73, s73, {64*1152}
s_lshl_b32 s71, s67, 3
s_add_u32 s71, s71, s68
s_lshl_b32 s71, s71, 10
s_add_u32 s71, s71, {BIG+65536}
s_mul_i32 s72, s67, {8*1152}
s_lshl_b32 s74, s68, 7
s_add_u32 s72, s72, s74
s_add_u32 s72, s72, s73
""")
wide_dma(4, RB)
A(f"""
s_mul_i32 s72, s{sW}, {8*1152}
s_add_u32 s72, s72, s73
s_add_u32 s72, s72, 1024
s_lshl_b32 s71, s{sW}, 10
s_add_u32 s71, s71, {BIG+131072}
s_mov_b32 m0, s71
""")
dma(14, RB, 72)
wide_frag_addrs(BIG+131072, 65536)
A(f"v_lshl_add_u32 v19, v4, 10, v{vTR}\nv_add_u32 v19, {BIG}, v19")
t_setup()
ST(5, 3)
A("s_waitcnt vmcnt(9)\ns_barrier")
for kp in range(16):
    A(f"ds_read_b64_tr_b16 {vr(vUV+4*kp,2)}, v19 offset:{kp*4096}")
    A(f"ds_read_b64_tr_b16 {vr(vUV+4*kp+2,2)}, v19 offset:{kp*4096+512}")
    if kp % 6 == 5: A("s_waitcnt lgkmcnt(4)")
fin_setup()
t_early("L_u")
A("s_waitcnt vmcnt(0) lgkmcnt(2)")
ST(6, 3)
A("s_barrier")
wide_frag_reads(vWO, 2)
t_tail(2, "L_u")

A("L_T:")
A(f"s_mul_i32 s{sSL}, s{sX}, 7\ns_add_u32 s{sSL}, s{sSL}, 6")
ST(1, 3)
srd(52, P_WUV, 512*8192)
srd(56, P_WO, 4096*1152)
A(f"""
s_lshl_b32 s71, s70, 1
s_add_u32 s71, s71, s67
s_lshl_b32 s71, s71, 1
s_add_u32 s71, s71, s69
s_lshl_b32 s71, s71, 10
s_add_u32 s71, s71, {BIG}
s_lshl_b32 s72, s70, 2
s_add_u32 s72, s72, s67
s_lshl_b32 s72, s72, 16
s_lshl_b32 s73, s{sH}, 8
s_lshl_b32 s74, s69, 7
s_add_u32 s73, s73, s74
s_add_u32 s72, s72, s73
""")
for i in range(16):
    cb = 2*((i>>1)&1) + 8*(i&1) + 16*(i>>2)
    A(f"s_mov_b32 m0, s71\ns_add_u32 s74, s72, {cb*65536}")
    dma(12, RA, 74)
    A(f"s_add_u32 s71, s71, 8192")
    if i < OPT['Tslow']: A("s_waitcnt vmcnt(0)")
wide_voffset(14)
A(f"""
s_mul_i32 s66, s{sH}, {128*1152}
s_lshl_b32 s71, s68, 2
s_add_u32 s71, s71, s67
s_mul_i32 s72, s71, {8*1152}
s_add_u32 s72, s72, s66
s_add_u32 s72, s72, 1024
s_lshl_b32 s71, s71, 10
s_add_u32 s71, s71, {BIG+131072}
s_mov_b32 m0, s71
s_add_u32 s71, s71, 2048
""")
dma(14, RB, 72)
A(f"s_add_u32 s72, s72, {16*1152}\ns_mov_b32 m0, s71")
dma(14, RB, 72)
vST = 176
A(f"""
s_mul_i32 s72, s67, {8*1152}
s_lshl_b32 s74, s68, 7
s_add_u32 s72, s72, s74
s_add_u32 s72, s72, s66
s_barrier
""")
for i in range(4):
    A(f"buffer_load_dwordx4 {vr(vST+8*i,4)}, v14, {RB}, s72 offen nt")
    A(f"buffer_load_dwordx4 {vr(vST+8*i+4,4)}, v14, {RB}, s72 offen offset:512 nt")
    A(f"s_add_u32 s72, s72, {16*1152}")
A(f"v_add_u32 v17, 0x10000, v16")
ST(2, 3)
A("s_waitcnt vmcnt(10)")
ST(3, 3)
A("s_barrier")
for kp in range(16):
    a = 16 if kp < 8 else 17
    A(f"ds_read_b64_tr_b16 {vr(vUV+4*kp,2)}, v{a} offset:{(kp&7)*8192}")
    A(f"ds_read_b64_tr_b16 {vr(vUV+4*kp+2,2)}, v{a} offset:{(kp&7)*8192+512}")
    if kp % 6 == 5: A("s_waitcnt lgkmcnt(4)")
A(f"""
s_lshl_b32 s71, s67, 3
s_add_u32 s71, s71, s68
s_lshl_b32 s71, s71, 10
s_add_u32 s71, s71, {BIG}
v_add_u32 v19, s71, v9
s_add_u32 s71, s71, 65536
s_waitcnt lgkmcnt(0)
s_barrier
""")
ST(4, 3)
wide_dma(4, RB)
for i in range(8):
    A(f"s_waitcnt vmcnt({15-i})")
    A(f"ds_write_b128 v19, {vr(vST+4*i,4)} offset:{(i>>1)*16384+(i&1)*4096}")
wide_frag_addrs(BIG+131072, 0)
t_setup()
t_early("L_t")
ST(5, 3)
A("s_waitcnt vmcnt(0) lgkmcnt(0)")
ST(6, 3)
A("s_barrier")
wide_frag_reads(vWO, 4)
t_tail(4, "L_t")

WIN[0] = OPT["wn"]
A("L_F:")
if OPT['fclr']:
    A(f"s_mul_i32 s74, s{sX}, 9\ns_sub_u32 s{sF}, s{sU}, s74\ns_lshl_b32 s{sF}, s{sF}, 3\ns_add_u32 s{sF}, s{sF}, s{sX}")
    h5_clear("L_f_clr")
ST(1, 3)
DNB = BIG
if OPT['fslow']: A(f"s_cmp_lt_u32 s{sQD}, {2 if OPT['fbx'] else 0}\ns_cselect_b64 vcc, -1, 0")
for i in range(9):
    gu_dma(i)
    if i < OPT['fslow']: A(f"s_cbranch_vccnz L_fw{i}\ns_waitcnt vmcnt({OPT['fwin']})\nL_fw{i}:")
xn_frags()
if OPT['fbar']: A("s_barrier")
for i in range(9, 18): gu_dma(i)
srd(56, P_WD, 4608*1152)
wide_voffset(14)
A(f"""
v_lshrrev_b32 v19, 1, v6
v_lshrrev_b32 v21, 1, v5
v_and_b32 v22, 1, v4
v_lshl_or_b32 v21, v22, 1, v21
v_lshl_or_b32 v21, v19, 2, v21
v_xor_b32 v21, s{sW}, v21
v_lshlrev_b32 v21, 4, v21
v_lshl_add_u32 v21, v5, 7, v21
v_and_b32 v22, 1, v6
v_lshl_add_u32 v21, v22, 3, v21
v_lshl_add_u32 v21, v19, 10, v21
v_lshl_add_u32 v21, v4, 11, v21
v_add_u32 v21, {BIG}, v21
v_add_u32 v22, {8*8192}, v21
v_add_u32 v23, {16*8192}, v21
s_mul_i32 s73, s{sU}, {64*1152}
s_lshl_b32 s71, s67, 3
s_add_u32 s71, s71, s68
s_lshl_b32 s71, s71, 10
s_add_u32 s71, s71, {DNB}
s_mul_i32 s72, s67, {8*1152}
s_lshl_b32 s74, s68, 7
s_add_u32 s72, s72, s74
s_add_u32 s72, s72, s73
v_min_u32 v140, 35, v{vL}
v_lshlrev_b32 v140, 7, v140
s_mov_b32 s66, {WS_PF}
s_waitcnt vmcnt(9) lgkmcnt(0)
s_barrier
""")
def k_steps(k0, k1):
    D = 6
    def rd(k):
        d = vG + 4*(k % 8)
        A(f"ds_read_b64_tr_b16 {vr(d,2)}, v{21+(k>>3)} offset:{(k&7)*8192}")
        A(f"ds_read_b64_tr_b16 {vr(d+2,2)}, v{21+(k>>3)} offset:{(k&7)*8192+512}")
    for k in range(k0, min(k1, k0+D)): rd(k)
    for k in range(k0, k1):
        A(f"s_waitcnt lgkmcnt({2*min(D-1, k1-1-k)})")
        mf16(vD, vG+4*(k % 8), vXN+4*k, k == 0)
        if k + D < k1: rd(k + D)
k_steps(0, 9)
A(f"""
s_barrier
s_cmp_lg_u32 s{sW}, 7
s_cbranch_scc1 L_f_np
buffer_load_dword v141, v140, {WS}, s66 offen sc1
L_f_np:
""")
wide_dma(4, RB)
A(f"""
s_mul_i32 s72, s{sW}, {8*1152}
s_add_u32 s72, s72, s73
s_add_u32 s72, s72, 1024
s_lshl_b32 s71, s{sW}, 10
s_add_u32 s71, s71, {DNB+65536}
s_mov_b32 m0, s71
""")
dma(14, RB, 72)
ST(2, 3)
A("s_waitcnt vmcnt(9)")
ST(3, 3)
A("s_barrier")
k_steps(9, 18)
wide_frag_addrs(DNB+65536, DNB-BIG)
A(f"s_lshl_b32 s72, s{sU}, 7\ns_add_u32 s72, s72, {WS_H5+56*128}")
publish_setup(TS)
A(f"""
v_mul_u32_u24 v22, {HBS}, v6
v_lshl_add_u32 v21, v4, 3, v22
s_lshl_b32 s74, s{sW}, 4
v_add_u32 v21, s74, v21
v_lshl_add_u32 v22, v4, 4, v22
""")
masked_addrs(22, HB)
vWD = 144
for j in range(4): A(f"v_mov_b32 v{24+j}, v{vD+j}")
for j in range(4): A(f"v_permlane32_swap_b32 v{vD+j}, v{24+j}")
C1 = -2.0*math.sqrt(2.0/math.pi)*LOG2E
A(f"s_mov_b32 s74, {fbits(0.044715)}\ns_mov_b32 s75, {fbits(C1)}")
for j in range(4): rb16(vD+j, vD+j); rb16(24+j, 24+j)
for j in range(4): A(f"v_mul_f32 v{104+j}, v{vD+j}, v{vD+j}")
for j in range(4): A(f"v_fma_f32 v{104+j}, v{104+j}, s74, 1.0")
for j in range(4): A(f"v_mul_f32 v{104+j}, v{104+j}, v{vD+j}")
for j in range(4): A(f"v_mul_f32 v{104+j}, s75, v{104+j}")
for j in range(4): A(f"v_exp_f32 v{104+j}, v{104+j}")
for j in range(4): A(f"v_add_f32 v{104+j}, 1.0, v{104+j}")
for j in range(4): A(f"v_rcp_f32 v{104+j}, v{104+j}")
for j in range(4): A(f"v_mul_f32 v{vD+j}, v{vD+j}, v{104+j}")
for j in range(4): rb16(vD+j, vD+j)
for j in range(4): A(f"v_mul_f32 v{vD+j}, v{vD+j}, v{24+j}")
A(f"""
v_cvt_pk_bf16_f32 v24, v{vD}, v{vD+1}
v_cvt_pk_bf16_f32 v25, v{vD+2}, v{vD+3}
s_mov_b64 exec, 0x000f000f
ds_write_b64 v21, v[24:25] offset:{HB}
s_mov_b64 exec, -1
s_cmp_lg_u32 s{sW}, 7
s_cbranch_scc1 L_f_pd
s_mov_b32 s77, 0
L_f_pp:
v_cmp_ne_u32 vcc, s{sT}, v141
s_add_u32 s77, s77, 1
s_cbranch_vccz L_f_pd
s_cmp_ge_u32 s77, {POLL_MAX}
s_cbranch_scc1 L_f_pd
buffer_load_dword v141, v140, {WS}, s66 offen sc1
s_waitcnt vmcnt(0)
s_branch L_f_pp
L_f_pd:
s_waitcnt vmcnt(0) lgkmcnt(0)
""")
ST(1); ST(7, 3)
A("s_barrier")
wide_frag_reads(vWD, 2)
A("s_waitcnt lgkmcnt(6)")
wide_gemm(vWD, 2, 104, HB, TS, "L_fg")
ST(2)
finish()

QA = 131072
MXO, LSO, LCO = 2048, 8192+2048, 16384+2048
sLOC = 64
A(f"""
L_att:
s_mov_b64 exec, -1
s_cmp_ge_u32 s{sW}, 4
s_cbranch_scc1 L_att_hi
""")
ST(1, 5); ST(2, 5); ST(3, 5)
if OPT['nqal']:
    A("s_branch L_nq2\nL_att0:")
    A(PFB)
    A("L_nq2:")
late_common()
lane_consts()
A(f"""
s_waitcnt lgkmcnt(0)
s_load_dword s{sE}, s[48:49], 0
v_and_b32 v11, 2, v2
v_lshlrev_b32 v11, 1, v11
v_lshrrev_b32 v10, 2, v2
v_or_b32 v11, v11, v10
v_xor_b32 v11, v11, v3
v_lshlrev_b32 v11, 4, v11
v_lshl_add_u32 v10, v2, 10, v11
v_xor_b32 v11, 32, v10
s_lshl_b32 s70, s{sX}, 4
s_add_u32 s70, s70, s{sK}
s_lshl_b32 s66, s70, 17
s_lshl_b32 s67, s{sW}, 15
s_add_u32 s66, s66, s67
""")
srd(52, P_CKV, 4*4096*1024)
if OPT['ukw'] < 8: A(f"s_waitcnt vmcnt({OPT['ukw']})")
ST(2, 2)
WIN[0] = OPT["wa"]
LBO = list(range(8)) if not OPT['c3l'] else [0, 1, 4, 5, 6, 7, 2, 3]
nh = OPT['ckh']
if OPT['rowm']: seq = [(lb, rbi) for rbi in range(4) for lb in LBO[:8-nh]] + [(lb, rbi) for lb in LBO[8-nh:] for rbi in range(4)]
else: seq = [(lb, rbi) for lb in LBO for rbi in range(4)]
for n_, (lb, rbi) in enumerate(seq):
    if n_ in (4, 8, 16, 24): ST({4:3,8:4,16:5,24:6}[n_], 2)
    if n_ == 4*OPT['gbar']: A("s_barrier")
    A(f"s_add_u32 s68, s67, {(rbi*8+lb)*1024}\ns_mov_b32 m0, s68\ns_add_u32 s69, s66, {rbi*8192+lb*128}")
    dma(10 + (rbi & 1), RA, 69)
if OPT['gbar'] == 8: A("s_barrier")
ST(7, 2)
if OPT['stamps'] in (2, 3):
    A("s_waitcnt vmcnt(0)")
    ST(9, 2); ST(7, 3)
if OPT['exp'] == 2: A("s_branch L_end")
A(f"""
v_and_b32 v11, 2, v{vL}
v_lshlrev_b32 v11, 1, v11
v_or_b32 v11, v11, v5
v_lshrrev_b32 v12, 5, v{vL}
v_xor_b32 v11, v11, v12
v_lshlrev_b32 v11, 4, v11
v_lshl_add_u32 v11, v3, 7, v11
v_and_b32 v13, 3, v2
v_lshl_add_u32 v11, v13, 13, v11
v_add_u32 v16, s67, v11
v_add_u32 v20, {QA}, v11
""")
for t in range(1, 4): A(f"v_xor_b32 v{16+t}, {t<<5}, v16\nv_xor_b32 v{20+t}, {t<<5}, v20")
A(f"""
v_and_b32 v13, 31, v{vL}
v_lshlrev_b32 v13, 5, v13
v_add_u32 v13, {QA}, v13
s_lshl_b32 s68, s{sW}, 3
v_lshl_add_u32 v14, v12, 2, v13
v_add_u32 v14, s68, v14
s_lshl_b32 s68, s{sW}, 13
s_add_u32 s68, s68, {QA}
v_add_u32 v15, s68, v9
s_waitcnt lgkmcnt(0)
""")
get_tag()
A(f"""
s_lshl_b32 s72, s{sX}, 14
s_add_u32 s72, s72, {WS_FLG}
s_lshl_b32 s73, s{sK}, 10
s_add_u32 s73, s73, s72
s_lshl_b32 s68, s{sW}, 7
s_add_u32 s69, s72, s68
s_lshl_b32 s68, s{sK}, 5
s_add_u32 s72, s72, s68
s_lshl_b32 s74, s70, 15
s_lshl_b32 s68, s{sW}, 9
s_add_u32 s74, s74, s68
s_add_u32 s74, s74, {WS_H3A}
s_add_u32 s75, s74, 8192
s_add_u32 s78, s74, 16384
s_add_u32 s79, s74, 24576
s_lshl_b32 s70, s{sK}, 15
s_lshl_b32 s71, s{sX}, 11
s_add_u32 s70, s70, s71
s_add_u32 s70, s70, {WS_H3B}
s_lshl_b32 s71, s{sW}, 8
s_add_u32 s71, s71, s70
v_and_b32 v100, 15, v{vL}
v_and_b32 v101, 1, v4
v_lshlrev_b32 v112, 10, v100
v_lshl_add_u32 v102, v101, 4, v112
v_lshlrev_b32 v103, 11, v4
v_lshl_add_u32 v103, v100, 4, v103
v_and_b32 v104, 1, v3
v_lshlrev_b32 v104, 4, v104
v_mov_b32 v105, 0xffff
v_lshlrev_b32 v105, v104, v105
v_lshrrev_b32 v104, 1, v3
""")
for d in range(4): A(f"v_cmp_eq_u32 vcc, {d}, v104\nv_cndmask_b32 v{108+d}, 0, v105, vcc")
A(f"""
v_lshrrev_b32 v104, 2, v3
v_lshl_add_u32 v105, v104, 4, v4
v_lshlrev_b32 v105, 2, v105
v_lshlrev_b32 v106, 14, v104
v_lshl_add_u32 v106, v6, 5, v106
v_lshl_add_u32 v106, v4, 3, v106
v_and_b32 v104, 1, v2
v_lshl_add_u32 v106, v104, 7, v106
v_lshlrev_b32 v107, 14, v101
v_lshl_add_u32 v107, v100, 3, v107
v_mov_b32 v113, {QA+LCO}
""")
vS = 32; vAf = 128; vBf = 64; DEP = 8
for lb in LBO:
    last = max(i for i, (l_, r_) in enumerate(seq) if l_ == lb)
    A(f"s_waitcnt vmcnt({31-last}) lgkmcnt(8)")
    for t in range(4*lb, 4*lb+4): A(f"ds_read_b128 {vr(vAf+4*t,4)}, v{16+(t&3)} offset:{(t>>2)*1024}")
PT = [f"buffer_load_dwordx4 v[116:119], v103, {WS}, s{[74,75,78,79][i]} offen offset:{256*h}" for i in range(4) for h in range(2)]
if OPT['ptl'] == 1 and OPT['local']:
    for l_ in PT: A(l_)
A("s_waitcnt lgkmcnt(0)\ns_setprio 2")
ST(1)
A("s_barrier")
ST(2)
def qk_read(t): A(f"ds_read_b128 {vr(vBf+4*(t % DEP),4)}, v{20+(t&3)} offset:{(t>>2)*1024}")
for t in range(DEP): qk_read(t)
for t in range(32):
    A(f"s_waitcnt lgkmcnt({min(DEP-1, 31-t)})")
    mf32(vS, vAf+4*t, vBf+4*(t % DEP), t == 0)
    if t + DEP < 32: qk_read(t + DEP)
    if OPT['ptl'] == 2 and t >= 24: A(PT[t-24])
    if OPT['ptl'] == 3 and t % 4 == 3: A(PT[t//4])
    if t == 13: A("s_barrier")
ST(3)
A(f"v_max3_f32 v24, v{vS}, v{vS+1}, v{vS+2}\nv_max3_f32 v25, v{vS+3}, v{vS+4}, v{vS+5}\nv_max3_f32 v26, v{vS+6}, v{vS+7}, v{vS+8}")
A(f"v_max3_f32 v27, v{vS+9}, v{vS+10}, v{vS+11}\nv_max3_f32 v28, v{vS+12}, v{vS+13}, v{vS+14}")
A(f"v_max3_f32 v24, v24, v25, v26\nv_max3_f32 v27, v27, v28, v{vS+15}\nv_max_f32 v24, v24, v27")
A(f"ds_write_b32 v14, v24 offset:{MXO}\ns_waitcnt lgkmcnt(0)\ns_barrier")
A(f"""
ds_read_b128 v[24:27], v13 offset:{MXO}
ds_read_b128 v[28:31], v13 offset:{MXO+16}
s_waitcnt lgkmcnt(0)
v_max3_f32 v24, v24, v25, v26
v_max3_f32 v28, v28, v29, v30
v_max3_f32 v24, v24, v27, v31
v_max_f32 v24, v24, v28
""")
for hlf in range(2):
    for i in range(8): A(f"v_sub_f32 v{vS+8*hlf+i}, v{vS+8*hlf+i}, v24")
    for i in range(8): A(f"v_exp_f32 v{vS+8*hlf+i}, v{vS+8*hlf+i}")
    for i in range(4): A(f"v_cvt_pk_bf16_f32 v{48+4*hlf+i}, v{vS+8*hlf+2*i}, v{vS+8*hlf+2*i+1}")
    A(f"ds_write_b128 v15, {vr(48+4*hlf,4)} offset:{1024*hlf}")
    if hlf == 0:
        A("s_waitcnt lgkmcnt(0)")
        ST(4)
        A("s_barrier")
for step in (8, 4, 2, 1):
    for i in range(step): A(f"v_add_f32 v{vS+i}, v{vS+i}, v{vS+i+step}")
A(f"ds_write_b32 v14, v{vS} offset:{LSO}\ns_waitcnt lgkmcnt(0)\ns_setprio 0\ns_barrier")
vXr = 144
SO = [74, 75, 78, 79]
A(f"""
s_cmp_lg_u32 s{sW}, 0
s_cbranch_scc1 L_nost
ds_read_b128 v[28:31], v13 offset:{LSO}
ds_read_b128 v[32:35], v13 offset:{LSO+16}
ds_read_b32 v36, v113
v_mov_b32 v25, s{sT}
v_mov_b32 v27, s{sT}
s_waitcnt lgkmcnt(0)
v_add_f32 v28, v28, v29
v_add_f32 v30, v30, v31
v_add_f32 v32, v32, v33
v_add_f32 v34, v34, v35
v_readfirstlane_b32 s{sLOC}, v36
v_add_f32 v28, v28, v30
v_add_f32 v32, v32, v34
v_add_f32 v26, v28, v32
s_mov_b32 exec_hi, 0
s_cmp_lg_u32 s{sLOC}, 0
s_cbranch_scc1 L_stfar
buffer_store_dwordx4 v[24:27], v9, {WS}, s73 offen
s_branch L_stdone
L_stfar:
buffer_store_dwordx4 v[24:27], v9, {WS}, s73 offen sc1
L_stdone:
s_mov_b64 exec, -1
L_nost:
{chr(10).join(PT) if OPT['ptl'] == 5 else ""}
s_mov_b32 s77, 0
s_mov_b32 exec_hi, 0
L_rpoll:
buffer_load_dwordx4 v[32:35], v102, {WS}, s72 offen sc1
s_add_u32 s77, s77, 1
s_waitcnt vmcnt(0)
v_xor_b32 v33, s{sT}, v33
v_xor_b32 v35, s{sT}, v35
v_or_b32 v33, v33, v35
v_cmp_ne_u32 vcc, 0, v33
s_cmp_ge_u32 s77, {POLL_MAX}
s_cbranch_scc1 L_rdone
s_cbranch_vccnz L_rpoll
L_rdone:
s_mov_b64 exec, -1
""")
ST(5)
if OPT['ptl'] == 4:
    for l_ in PT: A(l_)
A("v_mov_b32 v36, v32")
for r in (8, 4, 2, 1): A(f"v_max_f32_dpp v36, v36, v36 row_ror:{r} {DPPF}")
A("v_sub_f32 v33, v32, v36\nv_exp_f32 v33, v33\nv_mul_f32 v37, v33, v34")
for i in range(4): A(f"ds_bpermute_b32 v{40+i}, v105, v33 offset:{16*i}")
for r in (8, 4, 2, 1): A(f"v_add_f32_dpp v37, v37, v37 row_ror:{r} {DPPF}")
if OPT['tg']:
    A(f"""
    s_lshl_b32 s68, s{sK}, 9
    s_lshl_b32 s76, s{sW}, 7
    s_add_u32 s68, s68, s76
    s_lshl_b32 s76, s{sX}, 2
    s_add_u32 s68, s68, s76
    s_add_u32 s68, s68, {WS_TG}
    v_mov_b32 v38, s{sT}
    """)
A(f"""
v_cmp_gt_u32 s[66:67], 8, v100
s_waitcnt lgkmcnt(0)
""")
for i in range(4): A(f"v_cvt_pk_bf16_f32 v{44+i}, v{40+i}, v{40+i}")
for i in range(4): A(f"v_and_b32 v{80+i}, 0xffff0000, v{44+i}")
for i in range(4): A(f"v_sub_f32 v{80+i}, v{40+i}, v{80+i}")
for i in range(4): A(f"v_cvt_pk_bf16_f32 v{80+i}, v{80+i}, v{80+i}")
for i in range(4): A(f"v_cndmask_b32 v{44+i}, v{80+i}, v{44+i}, s[66:67]")
for i in range(4):
    for d in range(4): A(f"v_and_b32 v{64+4*i+d}, v{44+i}, v{108+d}")
A(f"""
s_mov_b32 s77, 0
s_mov_b64 exec, 0xffff
{"s_barrier" if OPT['bard'] else ""}
L_fpoll:
buffer_load_dword v32, v112, {WS}, s69 offen offset:512 sc1
s_add_u32 s77, s77, 1
s_waitcnt vmcnt(0)
v_cmp_ne_u32 vcc, s{sT}, v32
s_cmp_ge_u32 s77, {POLL_MAX}
s_cbranch_scc1 L_fdone
s_cbranch_vccnz L_fpoll
L_fdone:
s_mov_b64 exec, -1
""")
ST(6)
for i in range(4):
    for h in range(2): A(f"buffer_load_dwordx4 {vr(vXr+8*i+4*h,4)}, v103, {WS}, s{SO[i]} offen offset:{256*h} sc1{' nt' if OPT['lnt'] & 2 else ''}")
ex = 0
if OPT['tg']:
    A(f"s_mov_b64 exec, 1\nbuffer_store_dword v38, v8, {WS}, s68 offen sc1\ns_mov_b64 exec, -1")
    ex = 1
for i in range(4):
    A(f"s_waitcnt vmcnt({7-2*i+ex})")
    mf16(40, vXr+8*i, 64+4*i, i == 0)
    A(f"s_waitcnt vmcnt({6-2*i+ex})")
    mf16(44, vXr+8*i+4, 64+4*i, i == 0)
A(f"""
s_cmp_lg_u32 s{sW}, 1
s_cbranch_scc1 L_rnostat
s_mov_b32 exec_hi, 0
buffer_store_dwordx2 v[36:37], v107, {WS}, s70 offen offset:1024 sc1
s_mov_b64 exec, -1
L_rnostat:
s_nop 5
""")
for j in range(4): A(f"v_cndmask_b32 v{48+j}, v{40+j}, v{44+j}, s[66:67]")
for j in range(4): A(f"v_cndmask_b32 v{40+j}, v{44+j}, v{40+j}, s[66:67]")
for j in range(4): A(f"v_add_f32_dpp v{40+j}, v{48+j}, v{40+j} row_ror:8 {DPPF}")
A(f"""
v_cvt_pk_bf16_f32 v44, v40, v41
v_cvt_pk_bf16_f32 v45, v42, v43
buffer_store_dwordx2 v[44:45], v106, {WS}, s71 offen sc1
""")
ST(7)
if OPT['late'] == 1: A("s_barrier")
if OPT['wb'] in (4, 5, 6):
    if OPT['wb'] >= 5: A("s_waitcnt vmcnt(0)")
    for i in range(4):
        for h in range(2):
            A(f"buffer_store_dwordx4 {vr(vXr+8*i+4*h,4)}, v103, {WS}, s{SO[i]} offen offset:{256*h} sc1")
        if OPT['wb'] == 6: A("s_waitcnt vmcnt(0)")
if OPT['local'] and OPT['wb'] in (1, 11):
    A(f"""
    s_cmp_ge_u32 s2, {8 if OPT['wb'] == 1 else NFX}
    s_cbranch_scc1 L_end
    s_waitcnt vmcnt(0)
    s_barrier
    s_cmp_lg_u32 s{sW}, 0
    s_cbranch_scc1 L_end
    buffer_wbl2 sc1
    """)
finish()

A("L_att_hi:")
late_common()
lane_consts()
A(f"s_load_dwordx2 s[56:57], s[0:1], 16\ns_mov_b32 s58, {576*8192}\ns_mov_b32 s59, 0x20000")
if OPT['prio']: A("s_setprio 2")
if OPT['pf'] == 1:
    A(f"""
    s_getpc_b64 s[66:67]
    L_pc:
    s_sub_u32 s66, s66, L_pc-{NAME}_kernel
    s_subb_u32 s67, s67, 0
    v_subrev_u32 v10, 256, v0
    v_lshlrev_b32 v10, 7, v10
    v_cmp_gt_u32 vcc, L_exit-{NAME}_kernel, v10
    s_and_saveexec_b64 s[68:69], vcc
    s_cbranch_execz L_nopf
    global_load_dword v255, v10, s[66:67]
    L_nopf:
    s_mov_b64 exec, -1
    """)
A(f"""
s_sub_u32 s66, s{sW}, 4
s_lshl_b32 s67, s{sX}, 15
s_lshl_b32 s68, s{sK}, 11
s_add_u32 s68, s68, s67
s_add_u32 s69, s68, {WS_H1L}
s_waitcnt lgkmcnt(0)
s_load_dword s{sE}, s[48:49], 0
s_cmp_lg_u32 s66, 1
s_cbranch_scc1 L_h_b
buffer_load_dwordx4 v[248:251], v9, {WS}, s69 offen
buffer_load_dwordx4 v[248:251], v9, {WS}, s69 offen offset:1024
L_h_b:
""")
if OPT['wqh']:
    A(f"""
    s_cmp_lt_u32 s66, 2
    s_cbranch_scc1 L_h_c
    s_lshr_b32 s68, s{sK}, 2
    s_mul_i32 s68, s68, 144
    s_and_b32 s69, s{sK}, 3
    s_lshl_b32 s69, s69, 2
    s_add_u32 s68, s68, s69
    s_lshl_b32 s69, s66, 1
    s_add_u32 s68, s68, s69
    s_add_u32 s68, s68, 124
    s_lshl_b32 s68, s68, 13
    s_lshl_b32 s69, s{sX}, 10
    s_add_u32 s68, s68, s69
    s_add_u32 s69, s68, 8192
    buffer_load_dwordx4 v[248:251], v9, {RB}, s68 offen
    buffer_load_dwordx4 v[248:251], v9, {RB}, s69 offen
    L_h_c:
    """)
A(f"""
s_lshr_b32 s67, s{sX}, 1
s_lshl_b32 s67, s67, 15
s_lshl_b32 s68, s66, 13
s_add_u32 s67, s67, s68
s_add_u32 s67, s67, {WS_H2}
s_and_b32 s69, s66, 1
s_lshl_b32 s69, s69, 1
v_xor_b32 v10, s69, v3
v_lshlrev_b32 v10, 4, v10
v_lshl_add_u32 v10, v2, 10, v10
s_add_u32 s68, s68, {QA}
v_add_u32 v16, s68, v10
v_xor_b32 v17, 64, v16
v_xor_b32 v18, 16, v16
v_xor_b32 v19, 80, v16
v_lshrrev_b32 v12, 5, v{vL}
v_and_b32 v13, 1, v4
v_lshrrev_b32 v14, 1, v6
v_lshl_or_b32 v13, v13, 1, v14
v_and_b32 v14, 2, v5
v_lshl_or_b32 v14, v14, 1, v12
v_xor_b32 v13, v13, v14
v_lshlrev_b32 v13, 4, v13
v_lshl_add_u32 v13, v5, 7, v13
v_lshl_add_u32 v13, v12, 9, v13
v_and_b32 v14, 1, v6
v_lshl_add_u32 v13, v14, 3, v13
s_lshl_b32 s68, s66, 11
v_add_u32 v20, s68, v13
v_xor_b32 v21, 32, v20
v_xor_b32 v22, 64, v20
v_xor_b32 v23, 96, v20
""")
for j in range(4): A(f"v_add_u32 v{24+j}, 0x10000, v{20+j}")
A(f"s_getreg_b32 s65, hwreg(HW_REG_XCC_ID, 0, 4)\ns_lshl_b32 s72, s{sX}, 11\ns_add_u32 s72, s72, {WS_XT}\ns_waitcnt lgkmcnt(0)")
get_tag()
A(f"""
s_cmp_lg_u32 s66, 0
s_cbranch_scc1 L_noxt
s_lshl_b32 s68, s{sK}, 7
s_add_u32 s68, s68, s72
v_mov_b32 v28, s65
v_mov_b32 v29, s{sT}
v_lshlrev_b32 v30, 3, v{vL}
s_mov_b64 exec, 0xffff
buffer_store_dwordx2 v[28:29], v30, {WS}, s68 offen sc1
s_mov_b64 exec, -1
L_noxt:
""")
A(f"""
s_add_u32 s72, s48, s72
s_addc_u32 s73, s49, 0
s_and_b32 s74, s2, {8*OPT['rep']-1}
s_lshl_b32 s74, s74, 10
s_lshl_b32 s75, s66, 8
s_add_u32 s74, s74, s75
s_add_u32 s74, s74, {WS_PQ}
s_add_u32 s74, s48, s74
s_addc_u32 s75, s49, 0
s_mov_b32 s77, 0
{'s_sleep %d' % OPT['isl'] if OPT['isl'] else ''}
""")
if not OPT['local']: A(f"s_mov_b32 s{sLOC}, 1")
if OPT['local']:
    A(f"s_cmp_lg_u32 s66, 0\ns_cbranch_scc1 L_nx\nL_nxp:\ns_mov_b32 s{sLOC}, 0\ns_mov_b32 s76, 0")
    for hlf in range(2):
        for i in range(8): A(f"s_load_dwordx2 s[{16+16*hlf+2*i if hlf == 0 or i < 4 else 52+2*(i-4)}:{17+16*hlf+2*i if hlf == 0 or i < 4 else 53+2*(i-4)}], s[72:73], {(8*hlf+i)*128} glc")
    A("s_waitcnt lgkmcnt(0)")
    for r in list(range(16, 40, 2)) + list(range(52, 60, 2)):
        A(f"s_xor_b32 s{r}, s{r}, s65\ns_or_b32 s{sLOC}, s{sLOC}, s{r}\ns_xor_b32 s{r+1}, s{r+1}, s{sT}\ns_or_b32 s76, s76, s{r+1}")
    A(f"s_or_b32 s{sLOC}, s{sLOC}, s76\ns_add_u32 s77, s77, 1\ns_cmp_ge_u32 s77, 12\ns_cbranch_scc1 L_nx\ns_cmp_lg_u32 s76, 0\ns_cbranch_scc1 L_nxp\nL_nx:")
A(f"""
L_xp:
{'s_sleep %d' % OPT['psl'] if OPT['psl'] else ''}
s_mov_b32 s76, 0
""")
if OPT['cpq']:
    A("s_load_dwordx8 s[16:23], s[74:75], 0 glc\ns_load_dwordx8 s[24:31], s[74:75], 128 glc\ns_waitcnt lgkmcnt(0)")
else:
    for i in range(16): A(f"s_load_dword s{16+i}, s[74:75], {i*128} glc")
    A("s_waitcnt lgkmcnt(0)")
for i in range(16): A(f"s_xor_b32 s{16+i}, s{16+i}, s{sT}\ns_or_b32 s76, s76, s{16+i}")
A(f"""
s_add_u32 s77, s77, 1
s_cmp_ge_u32 s77, {POLL_MAX}
s_cbranch_scc1 L_xd
s_cmp_lg_u32 s76, 0
s_cbranch_scc1 L_xp
L_xd:
""")
ST(6, 2)
if OPT['gbar'] <= 8: A("s_barrier")
if OPT['exp'] == 2: A("s_branch L_end")
ST(9)
vQ = 32
A(f"s_mov_b32 s76, 0xff\ns_mov_b32 s77, 0\ns_add_u32 s69, s67, 4096\nL_h2poll:")
for i in range(8):
    A(f"s_bitcmp1_b32 s76, {i}\ns_cbranch_scc0 L_h2i{i}")
    A(f"buffer_load_dwordx4 {vr(vQ+4*i,4)}, v9, {WS}, s{67 if i < 4 else 69} offen offset:{(i&3)*1024} sc1")
    A(f"L_h2i{i}:")
A(f"s_add_u32 s77, s77, 1\ns_cmp_eq_u32 s77, 1\ns_cbranch_scc1 L_h2first\ns_waitcnt vmcnt(0)\nL_h2first:")
for i in range(8):
    var = ((i >> 1) & 1) + 2*((i >> 2) & 1)
    q = vQ+4*i
    A(f"s_bitcmp1_b32 s76, {i}\ns_cbranch_scc0 L_h2c{i}")
    A(f"s_waitcnt vmcnt({7-i})")
    A(f"v_max3_u32 v28, v{q}, v{q+1}, v{q+2}\nv_max_u32 v28, v28, v{q+3}\nds_write_b128 v{16+var}, {vr(q,4)} offset:{i*128}\nv_cmp_eq_u32 vcc, -1, v28")
    A(f"s_cbranch_vccnz L_h2c{i}\ns_bitset0_b32 s76, {i}\nL_h2c{i}:")
A(f"""
s_waitcnt lgkmcnt(0)
s_cmp_ge_u32 s77, {POLL_MAX}
s_cbranch_scc1 L_h2done
s_cmp_eq_u32 s76, 0
s_cbranch_scc1 L_h2done
{'s_sleep %d' % OPT['rsleep'] if OPT['rsleep'] else ''}
s_branch L_h2poll
L_h2done:
""")
ST(1)
if OPT['prio']: A("s_setprio 0")
A(f"""
s_lshl_b32 s70, s{sX}, 4
s_add_u32 s70, s70, s{sK}
s_lshl_b32 s76, s70, 15
s_lshl_b32 s71, s66, 13
s_add_u32 s76, s76, s71
s_add_u32 s76, s76, {WS_H3A}
s_add_u32 s78, s76, 4096
s_lshl_b32 s75, s70, 10
s_add_u32 s75, s75, {WS_FLG}
s_barrier
""")
vV = 96; vO = 32
def vfrag(f, tau): return vV + 4*(f*4 + tau)
PR = [224+4*f for f in range(6)] + [16, 252]
def pv_reads(f):
    for tau in range(4):
        for jj in range(2):
            a = (20 if f < 4 else 24) + jj + 2*(tau & 1)
            off = (f & 3)*16384 + jj*8192 + (tau >> 1)*1024
            A(f"ds_read_b64_tr_b16 {vr(vfrag(f,tau)+2*jj,2)}, v{a} offset:{off}")
if OPT['local']:
    A(f"s_cmp_lg_u32 s66, 0\ns_cbranch_scc1 L_npt\nbuffer_load_dwordx4 v[248:251], v9, {WS}, s75 offen\nL_npt:")
    if not OPT['nopt'] and not OPT['ptl']:
        for i in range(8): A(f"buffer_load_dwordx4 v[248:251], v9, {WS}, s{76 if i < 4 else 78} offen offset:{(i&3)*1024}")
def late_help():
    NL = OPT['nl']
    A(f"""
    s_load_dwordx2 s[16:17], s[0:1], 72
    s_load_dwordx2 s[20:21], s[0:1], 40
    s_lshr_b32 s68, s{sK}, 2
    s_and_b32 s69, s{sK}, 3
    s_mov_b32 s55, 0x20000
    s_cmp_eq_u32 s{sK}, 14
    s_cbranch_scc1 L_lt_x
    s_cmp_ge_u32 s69, 2
    s_cbranch_scc1 L_lt_f
    s_cmp_eq_u32 s68, 3
    s_cbranch_scc1 L_lt_f
    s_lshl_b32 s70, s{sX}, 3
    s_lshl_b32 s71, s68, 1
    s_add_u32 s70, s70, s71
    s_add_u32 s70, s70, s69
    s_add_u32 s70, s70, 1
    s_mul_i32 s54, s70, {64*1152}
    s_sub_u32 s70, s54, {4*NL*1024}
    s_lshl_b32 s71, s66, 10
    s_add_u32 s70, s70, s71
    s_mov_b32 s71, 4096
    v_mov_b32 v10, v9
    s_waitcnt lgkmcnt(0)
    s_mov_b32 s52, s20
    s_mov_b32 s53, s21
    s_branch L_lt_go
    L_lt_f:
    s_lshl_b32 s70, s68, 1
    s_add_u32 s70, s70, s69
    s_lshr_b32 s71, s69, 1
    s_cmp_eq_u32 s68, 3
    s_cselect_b32 s71, s71, 2
    s_sub_u32 s70, s70, s71
    s_mul_i32 s71, s{sX}, 9
    s_add_u32 s70, s70, s71
    s_add_u32 s70, s70, 1
    s_mul_i32 s54, s70, {64*1152}
    s_sub_u32 s70, s54, {4*NL*1024}
    s_lshl_b32 s71, s66, 10
    s_add_u32 s70, s70, s71
    s_mov_b32 s71, 4096
    v_mov_b32 v10, v9
    s_waitcnt lgkmcnt(0)
    s_mov_b32 s52, s16
    s_mov_b32 s53, s17
    L_lt_go:
    """)
    if OPT['late'] == 1: A("s_barrier")
    for i in range(NL):
        A(f"buffer_load_dwordx4 v[248:251], v10, {RA}, s70 offen\ns_add_u32 s70, s70, s71")
    A("L_lt_x:\ns_waitcnt lgkmcnt(0)")
if OPT['late'] == 3: late_help()
FO = [0, 2, 4, 6, 1, 3, 5, 7]
pv_reads(FO[0])
A("s_barrier")
for n in range(1, 8):
    A("s_waitcnt lgkmcnt(6)")
    if n == 5:
        A(f"""
        v_mov_b32 v15, {QA+LCO}
        s_cmp_lg_u32 s66, 0
        s_cbranch_scc1 L_nl
        v_mov_b32 v28, s{sLOC}
        ds_write_b32 v15, v28
        L_nl:
        s_barrier
        """)
    pv_reads(FO[n])
A(f"""
v_add_u32 v10, {QA}, v9
v_and_b32 v13, 31, v{vL}
v_lshlrev_b32 v13, 4, v13
v_lshl_add_u32 v11, v12, 16, v13
s_lshl_b32 s68, s{sX}, 19
s_lshl_b32 s69, s{sK}, 11
s_add_u32 s68, s68, s69
s_lshl_b32 s70, s66, 9
s_add_u32 s68, s68, s70
s_add_u32 s68, s68, {WS_H3A}
s_lshl_b32 s71, s66, 7
s_add_u32 s71, s71, s75
v_mov_b32 v14, s{sT}
s_waitcnt lgkmcnt(0)
s_setprio {OPT['pvq']}
s_barrier
""")
ST(3)
def p_read(f): A(f"ds_read_b128 {vr(PR[f],4)}, v10 offset:{(f>>1)*8192+(f&1)*1024}")
for f in FO[:4]: p_read(f)
for n, f in enumerate(FO):
    if n <= OPT['c2pos']: A(f"s_waitcnt lgkmcnt({3-n})")
    elif n <= 3: pass
    else: A(f"s_waitcnt lgkmcnt({8-n})")
    for tau in range(4): mf32(vO+16*tau, PR[f], vfrag(f,tau), n == 0)
    if n == OPT['c2pos']:
        A("s_waitcnt lgkmcnt(0)\ns_barrier")
        for f2 in FO[4:]: p_read(f2)
        A("ds_read_b32 v15, v15")
A(f"s_waitcnt lgkmcnt(0)\nv_readfirstlane_b32 s{sLOC}, v15")
ST(4)
def pv_store(flag):
    for n, i in enumerate(range(0, 16, 2)):
        d = vV + 4*n
        A(f"v_cvt_pk_bf16_f32 v{d}, v{vO+i}, v{vO+16+i}\nv_cvt_pk_bf16_f32 v{d+2}, v{vO+i+1}, v{vO+16+i+1}")
        A(f"s_add_u32 s69, s68, {((i&3)//2 + 4*(i>>2))*32768}")
        A(f"v_cvt_pk_bf16_f32 v{d+1}, v{vO+32+i}, v{vO+48+i}\nv_cvt_pk_bf16_f32 v{d+3}, v{vO+32+i+1}, v{vO+48+i+1}")
        A(f"buffer_store_dwordx4 {vr(d,4)}, v11, {WS}, s69 offen {flag if flag or not OPT['lnt'] & 1 else 'nt'}")
    A(f"""
    s_mov_b64 exec, 1
    s_waitcnt vmcnt(0)
    buffer_store_dword v14, v8, {WS}, s71 offen offset:512 {flag}
    s_mov_b64 exec, -1
    {"s_barrier" if OPT['bard'] else ""}
    """)
A(f"s_cmp_lg_u32 s{sLOC}, 0\ns_cbranch_scc1 L_pvfar")
pv_store("")
A("L_pvback:")
ST(5)
if OPT['late'] in (1, 2): late_help()
finish()
A("L_pvfar:\ns_nop 9")
pv_store("sc1")
A("s_branch L_pvback")

A("L_end:")
if OPT['stamps']:
    A("s_waitcnt vmcnt(0)")
    ST(8)
    A(f"""
    s_waitcnt lgkmcnt(0)
    s_lshl_b32 s66, s2, 3
    s_add_u32 s66, s66, s{sW}
    s_lshl_b32 s66, s66, 6
    s_add_u32 s66, s66, {WS_ST}
    s_getreg_b32 s67, hwreg(HW_REG_XCC_ID)
    s_mov_b64 exec, 1
    v_mov_b32 v8, 0
    """)
    for i in range(3):
        A("\n".join(f"v_mov_b32 v{12+j}, s{80+2*(3*i+j)}" for j in range(3)))
        A(f"v_mov_b32 v15, {['s67','s77','s98'][i]}")
        A(f"buffer_store_dwordx4 v[12:15], v8, {WS}, s66 offen offset:{16*i}")
if OPT['hs'] >= 0:
    if OPT['hr'] == 1: A("s_cmp_ge_u32 s2, 128\ns_cbranch_scc1 L_exit")
    if OPT['hr'] == 3: A(f"s_cmp_ge_u32 s2, 128\ns_cbranch_scc1 L_exit\ns_cmp_ge_u32 s{sW}, 4\ns_cbranch_scc1 L_exit")
    if OPT['hr'] == 4: A(f"s_cmp_ge_u32 s2, 128\ns_cbranch_scc1 L_exit\ns_cmp_lt_u32 s{sW}, 4\ns_cbranch_scc1 L_exit")
    if OPT['hr'] == 2: A("s_cmp_lt_u32 s2, 128\ns_cbranch_scc1 L_exit")
    A(f"s_cmp_eq_u32 s{80+2*OPT['hs']}, 0\ns_cbranch_scc1 L_exit")
    A(f"L_hold2:\ns_memrealtime s[66:67]\ns_waitcnt lgkmcnt(0)\ns_sub_u32 s68, s66, s{80+2*OPT['hs']}\ns_cmp_lt_u32 s68, 4000\ns_cbranch_scc1 L_hold2")
if OPT['hold']:
    A(f"L_hold:\ns_memrealtime s[66:67]\ns_waitcnt lgkmcnt(0)\ns_sub_u32 s68, s66, s80\ns_cmp_lt_u32 s68, {OPT['hold']}\ns_cbranch_scc1 L_hold")
A("L_exit:\ns_endpgm")
A.raw(f""".section .rodata,"a"
.p2align 6
.amdhsa_kernel {NAME}_kernel
  .amdhsa_next_free_vgpr 256
  .amdhsa_next_free_sgpr 102
  .amdhsa_accum_offset 256
  .amdhsa_group_segment_fixed_size 0
  .amdhsa_kernarg_size 104
  .amdhsa_user_sgpr_count 2
  .amdhsa_user_sgpr_kernarg_segment_ptr 1
  .amdhsa_system_sgpr_workgroup_id_x 1
  .amdhsa_float_denorm_mode_32 3
.end_amdhsa_kernel""")
sys.stdout.write(A.text())
sys.stderr.write(f"instructions {A.count} nops {A.nops}\n")
```

```python
import sys, math, struct
from asmx import Asm, NAME

OPT = dict(stamps=0, local=1, hold=0, pf=2, exp=0, gbar=8, rsleep=0, help=5, fslow=6, tslow=0, wb=12, gap=0, prio=1, ukw=0, wqh=0, adel=0, psl=0, cpq=1, hb=1, noclr=0, nopt=0, hslow=0, gslow=0, Tslow=0, areg=1, pvp=1, ckh=1, lnt=0, c3l=0, rowm=1, fclr=0, late=0, nl=8, bpre=1, fhelp=0, pearly=0, pfirst=0, fbar=1, fwin=2, fbx=1, nqal=0, fv=0, pvq=3, ptl=3, bard=0, c2pos=2, tg=0, aclr=0, isl=0, rep=2, wn=0, wa=0, wt=0, rbo=7, c3x=1, hc=2, ht=2, hs=-1, hr=0)
for a in sys.argv[1:]:
    k, v = a.split("="); assert k in OPT, k; OPT[k] = int(v)

WS_PF  = 0x010000
WS_FF  = 0x020000
WS_TG  = 0x038000
WS_XT  = 0x030000
WS_H1  = 0x040000
WS_H1L = 0x0C0000
WS_H2  = 0x080000
WS_PQ  = 0x0A0000
WS_FLG = 0x100000
WS_H3B = 0x140000
WS_H5  = 0x200000
WS_H3A = 0x400000
WS_ST  = 0x800000
POLL_MAX = 400000 if not OPT['exp'] else 40

P_X, P_CKV, P_WQ, P_WUK, P_WUV, P_WO, P_BX, P_WG, P_WU, P_WD, P_OUT, P_DBG = [16+2*i for i in range(12)]
sSL, sF = 40, 41
sE, sT, sW, sX, sK, sH = 42, 43, 44, 45, 46, 47
WS = "s[48:51]"; RA = "s[52:55]"; RB = "s[56:59]"; RC = "s[60:63]"
sQD, sA_ = 64, 65
A = Asm()
NFX = OPT.get('nfx', 3)
HW = '\ns_waitcnt vmcnt(0)' if OPT['hslow'] else ''
NQPART = [True]

def srd(base, ptr, size):
    A(f"s_mov_b32 s{base}, s{ptr}\ns_mov_b32 s{base+1}, s{ptr+1}\ns_mov_b32 s{base+2}, {size}\ns_mov_b32 s{base+3}, 0x20000")
def ST(i, mode=1):
    if OPT['stamps'] == mode or (OPT['stamps'] and i in (0, 8)): A(f"s_memrealtime s[{80+2*i}:{81+2*i}]")
def vr(a, n): return f"v[{a}:{a+n-1}]"
WIN = [0]
def dma(voff, rsrc, soff, flags="nt"):
    if WIN[0]: A(f"s_waitcnt vmcnt({WIN[0]-1})")
    A(f"buffer_load_dwordx4 v{voff}, {rsrc}, s{soff} offen {flags} lds")
def finish(): A("s_branch L_end")
def get_tag():
    A(f"s_add_u32 s{sE}, s{sE}, 1\ns_mul_i32 s{sT}, s{sE}, 0x9E3779B1\ns_xor_b32 s{sT}, s{sT}, 0x5BD1E995")
def rb16(dst, src):
    A(f"v_cvt_pk_bf16_f32 v{dst}, v{src}, v{src}\nv_lshlrev_b32 v{dst}, 16, v{dst}")
DPPF = "row_mask:0xf bank_mask:0xf"
QP1 = "quad_perm:[1,0,3,2] " + DPPF
def wave_sum_to_sgpr(v, s):
    for r in (8, 4, 2, 1): A(f"v_add_f32_dpp v{v}, v{v}, v{v} row_ror:{r} {DPPF}")
    A(f"v_add_f32_dpp v{v}, v{v}, v{v} row_bcast:15 row_mask:0xa bank_mask:0xf")
    A(f"v_add_f32_dpp v{v}, v{v}, v{v} row_bcast:31 row_mask:0xc bank_mask:0xf")
    A(f"v_readlane_b32 s{s}, v{v}, 63")
def fbits(x): return "0x%08x" % struct.unpack("<I", struct.pack("<f", x))[0]
def mf16(d, a, b, first): A(f"v_mfma_f32_16x16x32_bf16 {vr(d,4)}, {vr(a,4)}, {vr(b,4)}, {'0' if first else vr(d,4)}")
def mf32(d, a, b, first): A(f"v_mfma_f32_32x32x16_bf16 {vr(d,16)}, {vr(a,4)}, {vr(b,4)}, {'0' if first else vr(d,16)}")
def ones(v): A("\n".join(f"v_mov_b32 v{v+j}, -1" for j in range(4)))
LOG2E = 1.4426950408889634

HDR = """; Kernarg layout (104 bytes, pointers only, base s[0:1]):
; Compressed-KV attention in absorbed form:  q_abs = (LN(x) W_q) W_uk^T,  latent = softmax(q_abs c_kv^T) c_kv,
; s = (latent W_uv) W_o;  gate branch y = (gelu(LN(x) W_g) * LN(x) W_u) W_d;  out = x + s * silu(y).
; Hand-offs go through d_ws: words tagged with a per-launch value derived from d_ws[0], or areas cleared in this launch.
; Stores stay in the die's L2 only after a run-time check that all 16 partners report the same die id."""
for l_ in HDR.split("\n"): A.raw(l_)
A.raw("; @launch grid=(256,1,1) block=(512,1,1) lds=163840")
A.raw('.amdgcn_target "amdgcn-amd-amdhsa--gfx950"')
A.raw(f".text\n.globl {NAME}_kernel\n.p2align 8\n.type {NAME}_kernel,@function\n{NAME}_kernel:")
vL = 1
BIG = 16384
WQB = BIG + 108*1024
def late_common():
    A(f"""
    s_load_dwordx2 s[48:49], s[0:1], 96
    s_load_dwordx16 s[16:31], s[0:1], 0
    s_load_dwordx8 s[32:39], s[0:1], 64
    s_mov_b32 s50, 0x10000000
    s_mov_b32 s51, 0x20000
    s_mov_b32 s55, 0x20000
    """)
ST(0)
A(f"""
s_load_dwordx2 s[60:61], s[0:1], 24
s_lshr_b32 s3, s2, 7
s_cbranch_scc1 L_nq
v_lshrrev_b32 v3, 6, v0
v_and_b32 v{vL}, 63, v0
v_lshlrev_b32 v9, 4, v{vL}
v_lshl_add_u32 v2, v3, 13, v9
s_and_b32 s{sX}, s2, 7
s_lshl_b32 s68, s{sX}, 10
s_lshr_b32 s{sK}, s2, 3
s_lshl_b32 s69, s{sK}, 18
s_add_u32 s68, s68, s69
v_add_u32 v2, s68, v2
""")
if OPT['pfirst'] == 2:
    A(f"""
    s_getpc_b64 s[66:67]
    L_pc:
    v_lshl_add_u32 v4, v0, 4, s{sK}
    v_lshlrev_b32 v4, 7, v4
    v_cmp_gt_u32 vcc, L_exit-L_pc, v4
    s_and_saveexec_b64 s[68:69], vcc
    s_cbranch_execz L_pf1
    global_load_dword v247, v4, s[66:67]
    L_pf1:
    s_mov_b64 exec, -1
    """)
if OPT['pfirst'] == 1:
    A(f"s_getpc_b64 s[66:67]\nv_lshlrev_b32 v4, 1, v0\nglobal_load_dword v247, v4, s[66:67] offset:64")
A("s_waitcnt lgkmcnt(0)")
for i in range(4):
    A("global_load_dwordx4 v[248:251], v2, s[60:61]")
    if i < 3: A("v_add_u32 v2, 0x10000, v2")
PFB = f"""
v_readfirstlane_b32 s{sW}, v3
v_lshlrev_b32 v2, 7, v0
v_cmp_gt_u32 vcc, L_exit-L_pc, v2
s_and_saveexec_b64 s[68:69], vcc
s_cbranch_execz L_att
global_load_dword v247, v2, s[66:67]
s_branch L_att
"""
if OPT['pfirst'] == 2: A(f"v_readfirstlane_b32 s{sW}, v3\ns_branch L_att")
else:
    A("s_getpc_b64 s[66:67]\nL_pc:")
    A(PFB)
A(f"""
L_nq:
s_load_dwordx2 s[56:57], s[0:1], 16
s_load_dwordx2 s[52:53], s[0:1], 0
v_lshrrev_b32 v2, 6, v0
s_and_b32 s{sX}, s2, 7
s_mov_b32 s59, 0x20000
v_readfirstlane_b32 s{sW}, v2
s_cmp_ge_u32 s2, 256
s_cbranch_scc1 L_exit
s_movk_i32 s70, 128
v_bfe_u32 v2, v0, 3, 4
v_lshrrev_b32 v3, 8, v0
v_lshl_add_u32 v3, v3, 4, v2
v_lshrrev_b32 v11, 1, v2
v_and_b32 v11, 4, v11
v_and_or_b32 v11, v2, 2, v11
v_xor_b32 v11, v11, v0
v_and_b32 v11, 7, v11
v_lshlrev_b32 v11, 4, v11
v_and_or_b32 v12, v0, s70, v11
v_lshl_add_u32 v12, v3, 13, v12
s_bfe_u32 s{sA_}, s2, 0x20005
s_bfe_u32 s{sQD}, s2, 0x20003
s_lshl2_add_u32 s{sH}, s{sX}, s{sA_}
s_mul_i32 s72, s{sQD}, {18*65536}
s_lshl_b32 s73, s{sH}, 8
s_add_u32 s72, s72, s73
s_mov_b32 s58, {576*8192}
s_and_b32 s67, s{sW}, 1
s_bfe_u32 s69, s{sW}, 0x10001
s_and_b32 s71, s{sW}, 4
s_lshl1_add_u32 s71, s67, s71
s_add_u32 s71, s71, s69
s_lshl_b32 s71, s71, 10
s_add_u32 m0, s71, {WQB}
""")
A(f"""
v_and_b32 v{vL}, 63, v0
s_mul_i32 s66, s{sW}, 1152
v_lshl_add_u32 v13, v{vL}, 3, s66
v_lshl_add_u32 v14, v{vL}, 1, s66
s_lshr_b32 s70, s{sW}, 2
""")
ST(1, 5)
A("s_waitcnt lgkmcnt(0)")
ST(2, 5)
A("""
s_cbranch_scc1 L_nq_nox
global_load_dwordx2 v[20:21], v13, s[52:53]
global_load_dwordx2 v[22:23], v13, s[52:53] offset:512
global_load_ushort v24, v14, s[52:53] offset:1024
L_nq_nox:
""")
for i in range(4):
    dma(12, RB, 72)
    A(f"s_add_u32 s72, s72, {4*65536}\ns_add_u32 m0, s71, {WQB+8192*(i+1)}")
A(f"s_cmp_lg_u32 s70, 0\ns_cbranch_scc1 L_nq_d4")
dma(12, RB, 72)
A("L_nq_d4:")
ST(3, 5)
if OPT['nqal']:
    A("s_branch L_nq2\nL_att0:")
    A(PFB)
    A("L_nq2:")
late_common()
A(f"""
s_lshr_b32 s{sK}, s2, 3
v_lshlrev_b32 v9, 4, v{vL}
s_mov_b32 s62, {512*8192}
s_mov_b32 s63, 0x20000
""")
def lane_consts():
    A(f"v_lshrrev_b32 v2, 3, v{vL}\nv_and_b32 v3, 7, v{vL}\nv_lshrrev_b32 v4, 4, v{vL}\nv_bfe_u32 v5, v{vL}, 2, 2\nv_and_b32 v6, 3, v{vL}\nv_lshlrev_b32 v7, 4, v0\nv_mov_b32 v8, 0")
    if OPT['stamps']:
        for i in range(82 if OPT['stamps'] != 5 else 88, 102): A(f"s_mov_b32 s{i}, 0")

XN, XNS = 0, 1216
QL, QLS = 5120, 320
HB, HBS = 9728, 192
vTR = 13
vD = 28
def common_setup():
    lane_consts()
    A(f"""
    s_and_b32 s67, s{sW}, 1
    s_lshl_b32 s68, s67, 2
    v_and_b32 v11, 2, v2
    v_or_b32 v11, s68, v11
    v_xor_b32 v11, v11, v3
    v_lshlrev_b32 v11, 4, v11
    v_lshl_add_u32 v12, v2, 13, v11
    s_lshr_b32 s68, s{sW}, 1
    s_bfe_u32 s69, s{sW}, 0x10001
    s_lshr_b32 s70, s{sW}, 2
    """)
def common_setup2():
    A(f"""
    s_and_b32 s74, s{sW}, 3
    s_lshl_b32 s74, s74, 1
    v_lshrrev_b32 v{vTR}, 1, v6
    v_or_b32 v{vTR}, s74, v{vTR}
    v_and_b32 v14, 2, v5
    v_xor_b32 v{vTR}, v{vTR}, v14
    v_and_b32 v14, 1, v4
    v_lshlrev_b32 v15, 2, v14
    v_xor_b32 v{vTR}, v{vTR}, v15
    v_lshlrev_b32 v{vTR}, 4, v{vTR}
    v_lshl_add_u32 v{vTR}, v5, 7, v{vTR}
    v_and_b32 v15, 1, v6
    v_lshl_add_u32 v{vTR}, v15, 3, v{vTR}
    s_lshl_b32 s74, s70, 10
    s_add_u32 s74, s74, {BIG}
    v_add_u32 v15, s74, v{vTR}
    v_lshl_add_u32 v16, v4, 11, v15
    v_mul_u32_u24 v18, {XNS}, v6
    v_lshl_add_u32 v18, v4, 4, v18
    s_mov_b32 s78, 0x000f000f
    s_mov_b32 s79, 0x000f000f
    """)
def x_loads():
    A(f"""
    s_mul_i32 s66, s{sW}, 1152
    v_lshlrev_b32 v10, 3, v{vL}
    v_lshlrev_b32 v19, 1, v{vL}
    buffer_load_dwordx2 v[20:21], v10, {RA}, s66 offen
    buffer_load_dwordx2 v[22:23], v10, {RA}, s66 offen offset:512
    buffer_load_ushort v24, v19, {RA}, s66 offen offset:1024
    """)
def layernorm():
    e = list(range(56, 65))
    for i in range(4): A(f"v_lshlrev_b32 v{e[2*i]}, 16, v{20+i}\nv_and_b32 v{e[2*i+1]}, 0xffff0000, v{20+i}")
    A(f"""
    v_lshlrev_b32 v{e[8]}, 16, v24
    v_add_f32 v25, v{e[0]}, v{e[1]}
    v_add_f32 v26, v{e[2]}, v{e[3]}
    v_add_f32 v27, v{e[4]}, v{e[5]}
    v_add_f32 v28, v{e[6]}, v{e[7]}
    v_add_f32 v25, v25, v26
    v_add_f32 v27, v27, v28
    v_add_f32 v25, v25, v{e[8]}
    v_add_f32 v25, v25, v27
    """)
    wave_sum_to_sgpr(25, 74)
    A(f"v_mov_b32 v26, {fbits(1.0/576)}\nv_mul_f32 v26, s74, v26")
    A(f"v_sub_f32 v27, v{e[0]}, v26\nv_mul_f32 v25, v27, v27")
    for i in range(1, 9): A(f"v_sub_f32 v27, v{e[i]}, v26\nv_fmac_f32 v25, v27, v27")
    rb16(26, 26)
    for i in range(9): A(f"v_sub_f32 v{e[i]}, v{e[i]}, v26")
    wave_sum_to_sgpr(25, 74)
    A(f"v_mov_b32 v27, {fbits(1.0/576)}\nv_mul_f32 v27, s74, v27")
    rb16(27, 27)
    A(f"v_add_f32 v27, {fbits(1e-5)}, v27")
    rb16(27, 27)
    A("v_sqrt_f32 v27, v27")
    rb16(27, 27)
    A("v_rcp_f32 v27, v27")
    for i in range(0, 8, 2): A(f"v_cvt_pk_bf16_f32 v{20+i//2}, v{e[i]}, v{e[i+1]}")
    A(f"v_cvt_pk_bf16_f32 v24, v{e[8]}, v{e[8]}")
    for i in range(0, 8, 2): A(f"v_lshlrev_b32 v{e[i]}, 16, v{20+i//2}\nv_and_b32 v{e[i+1]}, 0xffff0000, v{20+i//2}")
    A(f"v_lshlrev_b32 v{e[8]}, 16, v24")
    for i in range(9): A(f"v_mul_f32 v{e[i]}, v{e[i]}, v27")
    for i in range(0, 8, 2): A(f"v_cvt_pk_bf16_f32 v{20+i//2}, v{e[i]}, v{e[i+1]}")
    A(f"v_cvt_pk_bf16_f32 v24, v{e[8]}, v{e[8]}")
    A(f"""
    s_mul_i32 s74, s{sW}, {XNS}
    v_add_u32 v10, s74, v10
    v_add_u32 v19, s74, v19
    ds_write_b64 v10, v[20:21] offset:{XN}
    ds_write_b64 v10, v[22:23] offset:{XN+512}
    ds_write_b16 v19, v24 offset:{XN+1024}
    """)
def clear_tail_inbox(vones):
    A(f"s_lshl_b32 s74, s{sH}, 14\ns_add_u32 s74, s74, {WS_H3B}")
    for i in range(4):
        A(f"buffer_store_dwordx4 {vr(vones,4)}, v9, {WS}, s74 offen sc1\nbuffer_store_dwordx4 {vr(vones,4)}, v9, {WS}, s74 offen offset:2048 sc1")
        if i < 3: A("s_add_u32 s74, s74, 4096")
    A(f"s_sub_u32 s74, s74, {3*4096}\nv_lshlrev_b32 v14, 11, v2\nv_lshl_add_u32 v14, v3, 4, v14")
    A(f"buffer_store_dwordx4 {vr(vones,4)}, v14, {WS}, s74 offen offset:1024 sc1")
def proof(sidx):
    A(f"""
    s_lshl_b32 s74, s{sidx}, 7
    s_add_u32 s74, s74, {WS_PF}
    v_mov_b32 v14, s{sT}
    v_lshlrev_b32 v17, 2, v{vL}
    s_mov_b32 exec_hi, 0
    buffer_store_dword v14, v17, {WS}, s74 offen sc1
    s_mov_b64 exec, -1
    """)
vXN, vG = 32, 104
def xn_frags():
    for kp in range(18):
        A(f"ds_read_b128 {vr(vXN+4*kp,4)}, v18 offset:{XN+kp*64}")
        if kp == 11: A("s_waitcnt lgkmcnt(4)")
def k_half(h, va, vb):
    for kp in range(9):
        a, off = (va, kp*8192) if kp < 8 else (vb, 0)
        A(f"ds_read_b64_tr_b16 {vr(vG+4*kp,2)}, v{a} offset:{off}")
        A(f"ds_read_b64_tr_b16 {vr(vG+4*kp+2,2)}, v{a} offset:{off+512}")
        if kp == 5: A("s_waitcnt lgkmcnt(6)")
    for kp in range(9):
        A(f"s_waitcnt lgkmcnt({min(15,2*(8-kp))})")
        mf16(vD, vG+4*kp, vXN+4*(9*h+kp), h == 0 and kp == 0)

QP, QPS = 5120, 272
UKB = BIG
sU = 76
def f_setup():
    A(f"""
    s_lshl_b32 s71, s{sA_}, 1
    s_add_u32 s71, s71, s{sQD}
    s_lshr_b32 s72, s{sQD}, 1
    s_cmp_eq_u32 s{sA_}, 3
    s_cselect_b32 s72, s72, 2
    s_sub_u32 s71, s71, s72
    s_mul_i32 s{sU}, s{sX}, 9
    s_add_u32 s{sU}, s{sU}, s71
    s_cmp_eq_u32 s69, 0
    s_cselect_b32 s60, s{P_WG}, s{P_WU}
    s_cselect_b32 s61, s{P_WG+1}, s{P_WU+1}
    s_mov_b32 s62, {576*9216}
    s_lshl_b32 s72, s67, 1
    s_lshl_b32 s71, s69, 2
    s_or_b32 s72, s72, s71
    v_bfe_u32 v14, v2, 1, 1
    v_or_b32 v14, s72, v14
    v_xor_b32 v14, v14, v3
    v_lshlrev_b32 v14, 4, v14
    v_mul_u32_u24 v12, 9216, v2
    v_add_u32 v12, v12, v14
    s_lshl_b32 s71, s70, 1
    s_add_u32 s71, s71, s67
    s_mul_i32 s72, s71, {8*9216}
    s_lshl_b32 s74, s{sU}, 7
    s_add_u32 s72, s72, s74
    s_lshl_b32 s71, s71, 1
    s_add_u32 s71, s71, s69
    s_lshl_b32 s71, s71, 10
    s_add_u32 s71, s71, {BIG}
    """)
def gu_dma(i):
    A(f"s_mov_b32 m0, s71\ns_add_u32 s71, s71, 8192")
    dma(12, RC, 72)
    A(f"s_add_u32 s72, s72, {32*9216}")
lane_consts()
A(f"""
v_lshl_add_u32 v12, v2, 13, v11
s_lshl_b32 s74, s69, 7
s_add_u32 s73, s73, s74
s_mov_b32 s54, 4608
v_lshlrev_b32 v10, 3, v{vL}
v_lshlrev_b32 v19, 1, v{vL}
s_waitcnt lgkmcnt(0)
s_load_dword s{sE}, s[48:49], 0
""")
ST(1, 2)
A(f"s_lshr_b32 s68, s{sW}, 1\ns_cmp_ge_u32 s{sQD}, 2\ns_cbranch_scc1 L_nq_fs")
A(f"""
s_lshl_b32 s71, s70, 3
s_add_u32 s71, s71, s67
s_lshl_b32 s72, s{sQD}, 5
s_add_u32 s72, s72, s71
s_lshl_b32 s72, s72, 16
s_add_u32 s72, s72, s73
s_lshl_b32 s71, s71, 1
s_add_u32 s71, s71, s69
s_lshl_b32 s71, s71, 10
s_add_u32 s71, s71, {UKB}
s_cmp_eq_u32 s70, 0
s_cbranch_scc1 L_nq_ln
""")
ones(24)
A(f"""
s_lshl_b32 s75, s{sW}, 12
s_lshl_b32 s74, s{sH}, 14
s_add_u32 s74, s74, s75
s_add_u32 s74, s74, {WS_H3B-16384}
buffer_store_dwordx4 v[24:27], v9, {WS}, s74 offen sc1
buffer_store_dwordx4 v[24:27], v9, {WS}, s74 offen offset:2048 sc1
s_mov_b64 exec, 0xff
buffer_store_dwordx4 v[24:27], v9, {WS}, s74 offen offset:1024 sc1
buffer_store_dwordx4 v[24:27], v9, {WS}, s74 offen offset:3072 sc1
s_lshl_b32 s75, s{sW}, 15
s_lshl_b32 s74, s{sH}, 10
s_add_u32 s74, s74, s75
s_lshl_b32 s75, s{sQD}, 9
s_add_u32 s74, s74, s75
s_add_u32 s74, s74, {WS_H2-4*32768}
s_mov_b32 exec_lo, -1
buffer_store_dwordx4 v[24:27], v9, {WS}, s74 offen sc1
s_mov_b64 exec, -1
s_branch L_nq_noln
L_nq_fs:
s_cmp_lg_u32 s{sK}, 30
s_cbranch_scc1 L_nq_fs2
s_cmp_eq_u32 s70, 0
s_cbranch_scc1 L_nq_ln
""")
ones(24)
A(f"""
s_lshl_b32 s75, s{sW}, 12
s_lshl_b32 s74, s{sH}, 14
s_add_u32 s74, s74, s75
s_add_u32 s74, s74, {WS_H3B-16384}
buffer_store_dwordx4 v[24:27], v9, {WS}, s74 offen sc1
buffer_store_dwordx4 v[24:27], v9, {WS}, s74 offen offset:2048 sc1
s_mov_b64 exec, 0xff
buffer_store_dwordx4 v[24:27], v9, {WS}, s74 offen offset:1024 sc1
buffer_store_dwordx4 v[24:27], v9, {WS}, s74 offen offset:3072 sc1
s_mov_b64 exec, -1
s_branch L_nq_noln
L_nq_fs2:
""")
f_setup()
A(f"s_cmp_lg_u32 s70, 0\ns_cbranch_scc1 L_nq_noln\nL_nq_ln:\ns_waitcnt vmcnt(5)")
ST(2, 2)
layernorm()
A("L_nq_noln:")
ST(3, 2)
common_setup2()
A(f"""
v_add_u32 v21, {WQB-BIG}, v16
v_and_b32 v14, 1, v4
v_lshl_add_u32 v17, v14, 11, v15
v_add_u32 v17, {WQB-BIG}, v17
s_mul_i32 s74, s{sQD}, 288
v_add_u32 v19, s74, v18
s_lshl_b32 s66, s{sH}, 13
s_add_u32 s66, s66, {WS_H1L}
s_lshl_b32 s75, s{sQD}, 11
s_add_u32 s75, s75, s66
s_lshl_b32 s77, s{sW}, 8
s_add_u32 s75, s75, s77
v_lshlrev_b32 v20, 6, v6
v_lshl_add_u32 v20, v4, 4, v20
v_cmp_gt_u32 vcc, 2, v4
s_cmp_lt_u32 s{sQD}, 2
s_cbranch_scc1 L_nq_uk
s_waitcnt vmcnt(0)
""")
for i in range(OPT['gap']): gu_dma(i)
A(f"""
s_branch L_nq_a
L_nq_uk:
s_waitcnt vmcnt(5)
s_cmp_lg_u32 s70, 0
s_cbranch_scc1 L_nq_uk2
s_waitcnt vmcnt(0)
L_nq_uk2:
""")
for i in range(4):
    A(f"s_mov_b32 m0, s71\ns_add_u32 s71, s71, 4096")
    dma(12, RC, 72)
    A(f"s_add_u32 s72, s72, {2*65536}")
A("L_nq_a:\ns_waitcnt lgkmcnt(0)")
ST(1); ST(5, 2)
A("s_barrier")
vA, vB = 64, 96
for kp in range(5):
    a = 21 if kp < 4 else 17
    A(f"ds_read_b64_tr_b16 {vr(vA+4*kp,2)}, v{a} offset:{kp*8192}")
    A(f"ds_read_b64_tr_b16 {vr(vA+4*kp+2,2)}, v{a} offset:{kp*8192+512}")
    A(f"ds_read_b128 {vr(vB+4*kp,4)}, v19 offset:{XN+kp*64}")
get_tag()
A(f"v_mov_b32 v25, s{sT}\nv_mov_b32 v27, s{sT}")
for kp in range(5):
    A(f"s_waitcnt lgkmcnt({3*(4-kp)})")
    if kp == 4:
        for j in range(4): A(f"v_cndmask_b32 v{vB+16+j}, 0, v{vB+16+j}, vcc")
    mf16(vD, vA+4*kp, vB+4*kp, kp == 0)
H1D = WS_H1L - WS_H1
def pq_addr():
    if OPT['cpq']:
        return f"""v_lshlrev_b32 v55, 10, v{vL}
        s_lshl_b32 s76, s{sX}, 7
        s_lshl_b32 s74, s{sA_}, 3
        s_add_u32 s76, s76, s74
        s_lshl_b32 s74, s{sQD}, 2
        s_add_u32 s76, s76, s74
        s_add_u32 s76, s76, {WS_PQ}"""
    return f"""v_lshlrev_b32 v55, 13, v2
    v_lshl_add_u32 v55, v3, 4, v55
    s_lshl_b32 s76, s{sH}, 8
    s_lshl_b32 s74, s{sQD}, 7
    s_add_u32 s76, s76, s74
    s_add_u32 s76, s76, {WS_PQ}"""
PQX = {1: "s_mov_b64 exec, 0xff", 2: "s_mov_b64 exec, 0xffff", 4: "s_mov_b32 exec_hi, 0", 8: "s_nop 0"}[OPT["rep"]]
PQST = f"{PQX}\nbuffer_store_dword v44, v55, {WS}, s76 offen sc1\ns_mov_b64 exec, -1" if OPT['cpq'] else f"buffer_store_dwordx4 v[44:47], v55, {WS}, s76 offen sc1"
A(f"""
v_and_b32 v52, 1, v2
v_and_b32 v53, 2, v3
v_lshl_or_b32 v53, v52, 2, v53
v_xor_b32 v53, v53, v4
v_lshlrev_b32 v53, 4, v53
v_lshl_add_u32 v53, v3, 7, v53
v_lshl_add_u32 v52, v52, 11, v53
v_cvt_pk_bf16_f32 v24, v{vD}, v{vD+1}
v_cvt_pk_bf16_f32 v26, v{vD+2}, v{vD+3}
s_mov_b64 exec, s[78:79]
buffer_store_dwordx4 v[24:27], v20, {WS}, s75 offen
s_sub_u32 s75, s75, {H1D}
s_cmp_lt_u32 s{sQD}, 2
s_cbranch_scc1 L_nq_b
buffer_store_dwordx4 v[24:27], v20, {WS}, s75 offen sc1
s_mov_b64 exec, -1
""")
ST(2); ST(6, 2)
A(f"s_barrier\ns_cmp_eq_u32 s{sK}, 30\ns_cbranch_scc1 L_T")
if OPT['ckh']:
    if OPT['c3x'] & 2: A(f"s_and_b32 s74, s{sU}, 7\ns_cmp_eq_u32 s74, 3\ns_cbranch_scc1 L_F")
    nr = 4*OPT['ckh']
    sh = int(math.log2(nr))
    A(f"""
    s_mov_b32 s56, s{P_CKV}
    s_mov_b32 s57, s{P_CKV+1}
    s_lshl_b32 s74, s{sA_}, 1
    s_add_u32 s74, s74, s{sQD}
    s_sub_u32 s74, s74, 2
    s_min_u32 s74, s74, 6
    s_lshl_b32 s74, s74, 3
    s_add_u32 s74, s74, s{sW}
    s_lshr_b32 s77, s74, {sh}
    s_lshl_b32 s77, s77, 15
    s_and_b32 s74, s74, {nr-1}
    s_lshl_b32 s74, s74, 10
    s_add_u32 s74, s74, s77
    s_lshl_b32 s75, s{sX}, 21
    s_add_u32 s74, s74, s75
    s_add_u32 s74, s74, {(32-nr)*1024}
    s_add_u32 s58, s75, {1 << 21}
    """)
    n = -(-64*nr // 56)
    for i in range(n):
        A(f"buffer_load_dwordx4 v[248:251], v9, {RB}, s74 offen")
        if i < n-1: A(f"s_add_u32 s74, s74, {(56//nr)*32768}")
A(f"s_branch L_F\nL_nq_b:\ns_mov_b64 exec, -1")
ST(2); ST(6, 2)
if OPT['pearly']:
    A(f"s_waitcnt vmcnt(5)\ns_barrier\ns_lshl_b32 s77, s{sQD}, 1\ns_cmp_lg_u32 s{sW}, s77\ns_cbranch_scc1 L_pe\n{pq_addr()}\nv_mov_b32 v44, s{sT}\n{PQST}\nL_pe:")
    A(f"s_add_u32 s71, s71, 16384\ns_add_u32 s72, s72, {8*65536}")
else:
    A(f"s_barrier\ns_add_u32 s71, s71, 16384\ns_add_u32 s72, s72, {8*65536}")
for i in range(4):
    A(f"s_mov_b32 m0, s71\ns_add_u32 s71, s71, 4096")
    dma(12, RC, 72)
    if i < 3: A(f"s_add_u32 s72, s72, {2*65536}")
A(f"""
s_mul_i32 s74, s68, {4*QPS}
s_lshl_b32 s77, s67, 7
s_add_u32 s74, s74, s77
v_mul_u32_u24 v22, {QPS}, v5
v_lshl_add_u32 v22, v4, 5, v22
v_lshl_add_u32 v22, v6, 3, v22
v_add_u32 v22, s74, v22
s_lshl_b32 s77, s{sW}, 13
s_add_u32 s77, s77, {UKB}
v_add_u32 v52, s77, v52
v_xor_b32 v53, 64, v52
v_and_b32 v23, 15, v{vL}
v_mul_u32_u24 v23, {QPS}, v23
v_lshl_add_u32 v23, v4, 4, v23
s_lshl_b32 s72, s{sH}, 10
s_lshl_b32 s74, s{sQD}, 9
s_add_u32 s72, s72, s74
s_lshl_b32 s74, s{sW}, 6
s_add_u32 s72, s72, s74
s_add_u32 s72, s72, {WS_H2}
v_and_b32 v21, 1, v5
v_lshlrev_b32 v54, 15, v6
{pq_addr()}
v_mov_b32 v44, s{sT}
v_mov_b32 v45, s{sT}
v_mov_b32 v46, s{sT}
v_mov_b32 v47, s{sT}
v_lshl_add_u32 v54, v21, 5, v54
v_lshl_add_u32 v54, v4, 3, v54
s_sub_u32 s71, s66, {H1D}
s_mov_b32 s77, 0
L_h1poll:
s_cmp_lg_u32 s77, 6
s_cbranch_scc1 L_h1ng
s_mov_b64 exec, s[78:79]
buffer_store_dwordx4 v[24:27], v20, {WS}, s75 offen sc1
s_mov_b64 exec, -1
L_h1ng:
s_and_b32 s74, s77, 9
s_cmp_eq_u32 s74, 9
s_cselect_b32 s74, s71, s66
buffer_load_dwordx4 v[48:51], v7, {WS}, s74 offen sc1
s_add_u32 s77, s77, 1
s_waitcnt vmcnt(0)
v_xor_b32 v49, s{sT}, v49
v_xor_b32 v51, s{sT}, v51
v_or_b32 v49, v49, v51
v_cmp_ne_u32 vcc, 0, v49
s_cmp_ge_u32 s77, {POLL_MAX}
s_cbranch_scc1 L_h1done
s_cbranch_vccnz L_h1poll
L_h1done:
v_mov_b32 v49, v50
ds_write_b64 v22, v[48:49] offset:{QP}
s_cmp_gt_u32 s77, 6
s_cbranch_scc1 L_h1sent
s_mov_b64 exec, s[78:79]
buffer_store_dwordx4 v[24:27], v20, {WS}, s75 offen sc1
s_mov_b64 exec, -1
L_h1sent:
""")
A(f"L_h1np:\nv_cmp_ne_u32 vcc, 0, v21\ns_waitcnt lgkmcnt(0)")
ST(3); ST(7, 2)
if OPT['pearly']: A("s_barrier")
else: A(f"s_barrier\ns_cmp_lg_u32 s{sW}, 0\ns_cbranch_scc1 L_nopq\n{PQST}\nL_nopq:")
vUK, vD1 = 64, 56
for kp in range(4):
    A(f"ds_read_b128 {vr(vB+4*kp,4)}, v23 offset:{QP+kp*64}")
    for tl in range(2):
        A(f"ds_read_b128 {vr(vUK+16*tl+4*kp,4)}, v{52+(kp&1)} offset:{tl*4096+(kp>>1)*1024}")
A(f"s_mov_b32 s74, {fbits(LOG2E/math.sqrt(128.0))}")
for kp in range(4):
    A(f"s_waitcnt lgkmcnt({9-3*kp+1})")
    mf16(vD, vUK+4*kp, vB+4*kp, kp == 0)
    A(f"s_waitcnt lgkmcnt({9-3*kp})")
    mf16(vD1, vUK+16+4*kp, vB+4*kp, kp == 0)
for j in range(4): A(f"v_cndmask_b32 v{60+j}, v{vD1+j}, v{vD+j}, vcc")
for j in range(4): A(f"v_cndmask_b32 v{vD+j}, v{vD+j}, v{vD1+j}, vcc")
for j in range(4): A(f"v_add_f32_dpp v{vD+j}, v{60+j}, v{vD+j} row_ror:4 {DPPF}")
for j in range(4): A(f"v_add_f32_dpp v{vD+j}, v{vD+j}, v{vD+j} row_ror:8 {DPPF}")
for j in range(4): A(f"v_mul_f32 v{vD+j}, s74, v{vD+j}")
A(f"""
v_cvt_pk_bf16_f32 v48, v{vD}, v{vD+1}
v_cvt_pk_bf16_f32 v49, v{vD+2}, v{vD+3}
v_min_u32 v48, -2, v48
v_min_u32 v49, -2, v49
s_mov_b32 exec_lo, 0x00ff00ff
s_mov_b32 exec_hi, 0x00ff00ff
buffer_store_dwordx2 v[48:49], v54, {WS}, s72 offen sc1
s_mov_b64 exec, -1
""")
ST(4); ST(9, 2)
A(f"""
s_barrier
s_cmp_lt_u32 s{sA_}, 3
s_cbranch_scc1 L_TH
""")
f_setup()
for i in range(OPT['gap']): gu_dma(i)
A("s_branch L_F")

def wide_voffset(v):
    A(f"v_mul_u32_u24 v{v}, 1152, v2\nv_add_u32 v{v}, v{v}, v11")
ZR = 15360
def publish_setup(stride):
    A(f"""
    s_mul_i32 s74, s{sW}, {stride}
    s_add_u32 s72, s72, s74
    v_mul_u32_u24 v20, {8*stride}, v5
    v_lshl_add_u32 v20, v4, 5, v20
    v_lshl_add_u32 v20, v6, 3, v20
    v_lshlrev_b32 v232, 2, v{vL}
    ds_write_b32 v232, v8 offset:{ZR}
    """)
def masked_addrs(vreal, base):
    A(f"v_mov_b32 v236, {ZR-base}")
    for i in range(4): A(f"v_cmp_eq_u32 vcc, {i}, v5\nv_cndmask_b32 v{232+i}, v236, v{vreal}, vcc")
def wide_dma(n, rsrc, slow=0):
    for i in range(n):
        A(f"s_mov_b32 m0, s71\ns_add_u32 s74, s72, 512")
        dma(14, rsrc, 72)
        if 2*i < slow: A("s_waitcnt vmcnt(0)")
        A(f"s_add_u32 s75, s71, 4096\ns_mov_b32 m0, s75\ns_add_u32 s72, s72, {16*1152}")
        dma(14, rsrc, 74)
        if 2*i+1 < slow: A("s_waitcnt vmcnt(0)")
        A(f"s_add_u32 s71, s71, 16384")
def rb_dma(base, rsrc, slab):
    A(f"s_mul_i32 s72, s{sW}, {8*1152}\ns_add_u32 s72, s72, s{slab}\ns_lshl_b32 s71, s{sW}, 13\ns_add_u32 s71, s71, {base}")
    for l in range(8):
        A(f"s_add_u32 m0, s71, {l*1024}\ns_add_u32 s74, s72, {l*128}")
        dma(14, rsrc, 74)
def wide_frag_addrs(base8, shift):
    A(f"v_lshl_add_u32 v16, v4, 13, v15")
    if shift: A(f"v_add_u32 v16, {shift}, v16")
    A(f"""
    v_add_u32 v17, 0x10000, v16
    v_lshl_add_u32 v18, v4, 10, v{vTR}
    v_add_u32 v18, {base8}, v18
    """)
def wide_frag_reads(vdst, nk):
    n = 0
    for i in range(4):
        for kp in range(nk):
            a = 16 if kp < 2 else 17
            off = (kp & 1)*32768 + i*2048
            d = vdst + (i*nk + kp)*4
            A(f"ds_read_b64_tr_b16 {vr(d,2)}, v{a} offset:{off}")
            A(f"ds_read_b64_tr_b16 {vr(d+2,2)}, v{a} offset:{off+512}")
            n += 2
            if n % 12 == 0: A("s_waitcnt lgkmcnt(4)")
    A("s_waitcnt lgkmcnt(4)")
    for kp in range(nk):
        d = vdst + (4*nk + kp)*4
        A(f"ds_read_b64_tr_b16 {vr(d,2)}, v18 offset:{kp*4096}")
        A(f"ds_read_b64_tr_b16 {vr(d+2,2)}, v18 offset:{kp*4096+512}")
def wide_gemm(vW, nk, vBf, base, stride, lab):
    acc, acc5 = 240, 244
    nb = 8
    order = [(i, kp) for i in (1, 2, 3, 0) for kp in range(nk)]
    def rd(n):
        i, kp = order[n]
        A(f"ds_read_b128 {vr(vBf+4*(n % nb),4)}, v{232+i} offset:{base+kp*64}")
    for n in range(min(nb, len(order))): rd(n)
    A(f"s_add_u32 s74, s72, {32*stride}\ns_cmp_lg_u32 s70, 0")
    for n, (i, kp) in enumerate(order):
        A(f"s_waitcnt lgkmcnt({min(nb-1, len(order)-1-n)})")
        mf16(acc, vW+(i*nk+kp)*4, vBf+4*(n % nb), n == 0)
        if n + nb < len(order): rd(n + nb)
    A(f"s_cbranch_scc1 {lab}_a")
    for kp in range(nk): mf16(acc5, vW+(4*nk+kp)*4, vBf+4*((3*nk+kp) % nb), kp == 0)
    A(f"""
    v_cvt_pk_bf16_f32 v{acc}, v{acc}, v{acc+1}
    v_cvt_pk_bf16_f32 v{acc+1}, v{acc+2}, v{acc+3}
    buffer_store_dwordx2 {vr(acc,2)}, v20, {WS}, s72 offen sc1
    v_cvt_pk_bf16_f32 v{acc5}, v{acc5}, v{acc5+1}
    v_cvt_pk_bf16_f32 v{acc5+1}, v{acc5+2}, v{acc5+3}
    s_mov_b64 exec, s[78:79]
    buffer_store_dwordx2 {vr(acc5,2)}, v20, {WS}, s74 offen sc1
    s_mov_b64 exec, -1
    s_branch {lab}_b
    {lab}_a:
    s_nop 6
    v_cvt_pk_bf16_f32 v{acc}, v{acc}, v{acc+1}
    v_cvt_pk_bf16_f32 v{acc+1}, v{acc+2}, v{acc+3}
    buffer_store_dwordx2 {vr(acc,2)}, v20, {WS}, s72 offen sc1
    {lab}_b:
    """)
def tail_prologue(lab, slot_code):
    common_setup2()
    A(f"s_mul_i32 s{sSL}, s{sX}, 7\n{slot_code}\ns_waitcnt lgkmcnt(0)")
    get_tag()
    A(f"s_cmp_lg_u32 s{sW}, 7\ns_cbranch_scc1 {lab}")
    ones(24)
    clear_tail_inbox(24)
    A("s_waitcnt vmcnt(0)")
    proof(sSL)
    A(f"{lab}:")

XL, CT, CTS = 0, 8192, 320
TS = 128*128
vUV, vWO = 32, 96
def t_setup():
    A(f"""
    v_lshlrev_b32 v21, 11, v3
    v_xor_b32 v22, v3, v4
    v_lshlrev_b32 v22, 4, v22
    v_lshl_add_u32 v22, v2, 11, v22
    v_and_b32 v12, 1, v2
    v_lshl_or_b32 v12, v12, 2, v4
    v_lshrrev_b32 v14, 1, v3
    v_xor_b32 v12, v12, v14
    v_lshlrev_b32 v12, 4, v12
    v_lshl_add_u32 v12, v3, 7, v12
    v_lshlrev_b32 v14, 3, v3
    s_lshl_b32 s66, s{sH}, 14
    s_add_u32 s66, s66, {WS_H3B}
    s_lshl_b32 s73, s{sW}, 7
    s_add_u32 s73, s73, s66
    s_lshl_b32 s72, s{sSL}, 7
    s_add_u32 s72, s72, {WS_H5}
    v_lshrrev_b32 v23, 1, v3
    v_mul_u32_u24 v23, {CTS}, v23
    v_lshl_add_u32 v23, v4, 3, v23
    s_lshl_b32 s74, s{sW}, 5
    v_add_u32 v23, s74, v23
    v_mul_u32_u24 v10, {CTS}, v6
    v_lshl_add_u32 v10, v4, 4, v10
    """)
    publish_setup(TS)
    masked_addrs(10, CT)
def tg_check(lab, early):
    if not OPT['tg']: return ""
    ev = "\n".join(f"s_xor_b32 s{60+i if i < 4 else 12+i}, s{60+i if i < 4 else 12+i}, s{sT}" for i in range(0))
    body = "s_load_dwordx8 s[4:11], s[12:13], 0 glc\ns_waitcnt lgkmcnt(0)\n" + \
           "\n".join(f"s_xor_b32 s{4+i}, s{4+i}, s{sT}" for i in range(8)) + \
           "\ns_or_b64 s[4:5], s[4:5], s[6:7]\ns_or_b64 s[8:9], s[8:9], s[10:11]\ns_or_b64 s[4:5], s[4:5], s[8:9]\n"
    if early:
        return f"""s_lshr_b32 s14, s{sH}, 1
        s_lshl_b32 s14, s14, 9
        s_lshl_b32 s15, s68, 7
        s_add_u32 s14, s14, s15
        s_add_u32 s14, s14, {WS_TG}
        s_add_u32 s12, s48, s14
        s_addc_u32 s13, s49, 0
        v_mov_b32 v24, -1
        {body}
        s_cselect_b32 s14, 1, 0
        s_cbranch_scc1 {lab}e2"""
    return f"""s_cmp_eq_u32 s14, 0
        s_cbranch_scc1 {lab}chk
        {lab}tp:
        s_add_u32 s77, s77, 1
        s_cmp_ge_u32 s77, {POLL_MAX}
        s_cbranch_scc1 {lab}poll
        {body}
        s_cbranch_scc1 {lab}tp
        s_branch {lab}poll"""
def t_early(lab):
    A(f"""
    v_min_u32 v238, 35, v{vL}
    v_lshlrev_b32 v238, 7, v238
    s_mov_b32 s76, {WS_PF}
    v_mov_b32 v28, 0
    v_mov_b32 v29, 0
    s_cmp_lg_u32 s{sW}, 0
    s_cbranch_scc1 {lab}e1
    buffer_load_dword v239, v238, {WS}, s76 offen sc1
    {lab}e1:
    {tg_check(lab, True)}
    buffer_load_dwordx4 v[24:27], v22, {WS}, s73 offen sc1
    s_cmp_lg_u32 s{sW}, 7
    s_cbranch_scc1 {lab}e2
    s_mov_b64 exec, 0xff
    buffer_load_dwordx2 v[28:29], v21, {WS}, s66 offen offset:1024 sc1
    s_mov_b64 exec, -1
    {lab}e2:
    """)
def t_tail(nk, lab):
    A(f"""
    s_mov_b32 s77, 0
    s_cmp_lg_u32 s{sW}, 0
    s_cbranch_scc1 {lab}pd
    {lab}pp:
    v_cmp_ne_u32 vcc, s{sT}, v239
    s_add_u32 s77, s77, 1
    s_cbranch_vccz {lab}pd
    s_cmp_ge_u32 s77, {POLL_MAX}
    s_cbranch_scc1 {lab}pd
    buffer_load_dword v239, v238, {WS}, s76 offen sc1
    s_waitcnt vmcnt(0)
    s_branch {lab}pp
    {lab}pd:
    """)
    ST(5); ST(7, 3)
    A(f"""
    s_mov_b32 s77, 0
    {tg_check(lab, False)}
    s_branch {lab}chk
    {lab}poll:
    buffer_load_dwordx4 v[24:27], v22, {WS}, s73 offen sc1
    s_cmp_lg_u32 s{sW}, 7
    s_cbranch_scc1 {lab}ns
    s_mov_b64 exec, 0xff
    buffer_load_dwordx2 v[28:29], v21, {WS}, s66 offen offset:1024 sc1
    s_mov_b64 exec, -1
    {lab}ns:
    s_add_u32 s77, s77, 1
    s_waitcnt vmcnt(0)
    {lab}chk:
    v_max3_u32 v30, v24, v25, v26
    v_max3_u32 v30, v30, v27, v28
    v_max_u32 v30, v30, v29
    v_cmp_eq_u32 vcc, -1, v30
    s_cmp_ge_u32 s77, {POLL_MAX}
    s_cbranch_scc1 {lab}done
    s_cbranch_vccnz {lab}poll
    {lab}done:
    ds_write_b128 v7, v[24:27] offset:{XL}
    s_cmp_lg_u32 s{sW}, 7
    s_cbranch_scc1 {lab}nw
    s_mov_b64 exec, 0xff
    ds_write_b64 v14, v[28:29] offset:{CT+2048}
    s_mov_b64 exec, -1
    {lab}nw:
    s_waitcnt lgkmcnt(0)
    """)
    ST(6)
    if nk == 4 and OPT['wb'] == 12: A(f"s_cmp_ge_u32 s{sX}, {NFX}\ns_cbranch_scc1 {lab}nwb\ns_cmp_lg_u32 s{sW}, 6\ns_cbranch_scc1 {lab}nwb\nbuffer_wbl2 sc1\n{lab}nwb:")
    if nk == 4 and OPT['wb'] == 2: A(f"s_cmp_lg_u32 s{sW}, 6\ns_cbranch_scc1 {lab}nwb\nbuffer_wbl2 sc1\n{lab}nwb:")
    A("s_barrier")
    if nk == 2 and OPT['fv'] == 2:
        A(f"""
        s_cmp_eq_u32 s70, 0
        s_cbranch_scc1 {lab}douv
        s_cmp_ge_u32 s{sF}, 36
        s_cbranch_scc1 {lab}nouv
        s_lshl_b32 s74, s{sF}, 14
        s_lshl_b32 s75, s{sW}, 12
        s_add_u32 s74, s74, s75
        s_add_u32 s74, s74, {WS_H5-16384}
        """)
        for i in range(4): A(f"buffer_load_dwordx4 {vr(32+4*i,4)}, v9, {WS}, s74 offen offset:{1024*i} sc1")
        A(f"s_branch {lab}nouv\n{lab}douv:")
    elif nk == 2: A(f"s_cmp_lg_u32 s70, 0\ns_cbranch_scc1 {lab}nouv")
    vX = 176
    A(f"ds_read_b64 v[28:29], v14 offset:{CT+2048}")
    for i in range(8): A(f"ds_read_b128 {vr(vX+4*i,4)}, v12 offset:{XL+i*1024}")
    a0, a1 = 24, 208
    for i in range(8):
        A(f"s_waitcnt lgkmcnt({7-i})")
        mf16(a0, vUV+8*i, vX+4*i, i == 0)
        mf16(a1, vUV+8*i+4, vX+4*i, i == 0)
        OM = [f"v_max_f32_dpp v30, v28, v28 {QP1}", "v_sub_f32 v30, v28, v30", "v_exp_f32 v30, v30", "v_mul_f32 v31, v30, v29",
              f"v_add_f32_dpp v31, v31, v31 {QP1}", "v_rcp_f32 v31, v31", "v_mul_f32 v30, v30, v31"]
        if i < 7: A(OM[i])
    for j in range(4): A(f"v_add_f32_dpp v{a0+j}, v{a1+j}, v{a0+j} row_ror:8 {DPPF}")
    for j in range(4): A(f"v_mul_f32 v{a0+j}, v{a0+j}, v30")
    for j in range(4): A(f"v_add_f32_dpp v{a0+j}, v{a0+j}, v{a0+j} {QP1}")
    A(f"""
    v_cvt_pk_bf16_f32 v28, v{a0}, v{a0+1}
    v_cvt_pk_bf16_f32 v29, v{a0+2}, v{a0+3}
    s_mov_b32 exec_lo, 0x00550055
    s_mov_b32 exec_hi, 0x00550055
    ds_write_b64 v23, v[28:29] offset:{CT}
    s_mov_b64 exec, -1
    s_waitcnt lgkmcnt(0)
    {lab}nouv:
    s_barrier
    """)
    wide_gemm(vWO, nk, vX, CT, TS, lab+"g")
    ST(7)
    if nk == 4 and OPT['wb'] == 3: A(f"s_cmp_lg_u32 s{sW}, 6\ns_cbranch_scc1 L_end\nbuffer_wbl2 sc1")
    if nk == 2: fin_role()
    else: finish()

RED = BIG
def fin_setup():
    A(f"s_sub_u32 s{sF}, s{sSL}, s{sX}\ns_lshl1_add_u32 s{sF}, s{sF}, s70")
    srd(52, P_X, 4608)
    srd(56, P_OUT, 4608)
    A(f"""
    v_and_b32 v212, 1, v4
    v_lshl_add_u32 v212, v3, 1, v212
    v_and_b32 v213, 3, v212
    v_mul_u32_u24 v213, 1152, v213
    v_lshrrev_b32 v212, 2, v212
    v_lshl_add_u32 v213, v212, 3, v213
    s_min_u32 s75, s{sF}, 35
    s_lshl_b32 s75, s75, 5
    v_add_u32 v213, s75, v213
    buffer_load_dwordx2 v[214:215], v213, {RA}, 0 offen
    v_and_b32 v212, 1, v3
    v_lshlrev_b32 v212, 4, v212
    v_mov_b32 v216, 0x3f80
    v_lshlrev_b32 v216, v212, v216
    v_bfe_u32 v212, v{vL}, 1, 3
    """)
    for d in range(8): A(f"v_cmp_eq_u32 vcc, {d}, v212\nv_cndmask_b32 v{220+d}, 0, v216, vcc")
def fin_role():
    A(f"""
    s_cmp_ge_u32 s{sF}, 36
    s_cbranch_scc1 L_end
    s_and_b32 s66, s{sW}, 3
    s_lshl_b32 s72, s{sF}, 14
    s_lshl_b32 s73, s66, 12
    s_add_u32 s72, s72, s73
    s_add_u32 s72, s72, {WS_H5}
    s_mov_b32 s76, 15
    s_mov_b32 s77, 0
    {"s_waitcnt vmcnt(0)" if OPT['fv'] == 1 else ""}
    {"s_branch L_finchk" if OPT['fv'] == 2 else ""}
    L_finpoll:
    """)
    for i in range(4):
        A(f"s_bitcmp1_b32 s76, {i}\ns_cbranch_scc0 L_fi{i}\nbuffer_load_dwordx4 {vr(32+4*i,4)}, v9, {WS}, s72 offen offset:{1024*i} sc1\nL_fi{i}:")
    A("s_add_u32 s77, s77, 1\ns_waitcnt vmcnt(0)")
    if OPT['fv'] == 2: A("s_branch L_finchk2\nL_finchk:\ns_waitcnt vmcnt(1)\nL_finchk2:")
    for i in range(4): A(f"v_max3_u32 v{48+i}, v{32+4*i}, v{33+4*i}, v{34+4*i}")
    for i in range(4): A(f"v_max_u32 v{48+i}, v{48+i}, v{35+4*i}")
    for i in range(4): A(f"v_cmp_eq_u32 vcc, -1, v{48+i}\ns_cbranch_vccnz L_fc{i}\ns_bitset0_b32 s76, {i}\nL_fc{i}:")
    A(f"""
    s_cmp_ge_u32 s77, {POLL_MAX}
    s_cbranch_scc1 L_findone
    s_cmp_lg_u32 s76, 0
    s_cbranch_scc1 L_finpoll
    L_findone:
    s_cmp_ge_u32 s66, 2
    s_cbranch_scc1 L_fin_g
    """)
    for i in range(3): mf16(52, 220, 32+4*i, i == 0)
    A(f"s_cmp_eq_u32 s66, 1\ns_cbranch_scc1 L_fin_g3")
    mf16(52, 220, 44, False)
    A("s_branch L_fin_w\nL_fin_g:")
    for i in range(3): mf16(52, 224, 32+4*i, i == 0)
    A("L_fin_g3:")
    mf16(52, 224, 44, False)
    A(f"L_fin_w:\ns_nop 7\nds_write_b128 v7, v[52:55] offset:{RED}\ns_waitcnt lgkmcnt(0)")
    ST(9)
    A(f"s_barrier\ns_cmp_lg_u32 s66, 0\ns_cbranch_scc1 L_end")
    for i in range(4): A(f"ds_read_b128 {vr(64+4*i,4)}, v7 offset:{RED+i*1024}")
    A(f"s_mov_b32 s76, {fbits(-LOG2E)}")
    A("v_lshlrev_b32 v32, 16, v214\nv_and_b32 v33, 0xffff0000, v214\nv_lshlrev_b32 v34, 16, v215\nv_and_b32 v35, 0xffff0000, v215")
    A("s_waitcnt lgkmcnt(2)")
    for j in range(4): A(f"v_add_f32 v{64+j}, v{64+j}, v{68+j}")
    A("s_waitcnt lgkmcnt(0)")
    for j in range(4): A(f"v_add_f32 v{72+j}, v{72+j}, v{76+j}")
    for j in range(4): A(f"v_add_f32 v{64+j}, v{64+j}, v{72+j}")
    for j in range(4): A(f"v_add_f32_dpp v{64+j}, v{64+j}, v{64+j} row_ror:8 {DPPF}")
    for j in range(4): rb16(64+j, 64+j)
    for j in range(4): A(f"v_mul_f32 v{76+j}, s76, v{64+j}")
    for j in range(4): A(f"v_exp_f32 v{76+j}, v{76+j}")
    for j in range(4): A(f"v_add_f32 v{76+j}, 1.0, v{76+j}")
    for j in range(4): A(f"v_rcp_f32 v{76+j}, v{76+j}")
    for j in range(4): A(f"v_mul_f32 v{76+j}, v{64+j}, v{76+j}")
    A("v_cvt_pk_bf16_f32 v76, v76, v77\nv_cvt_pk_bf16_f32 v77, v78, v79")
    A("v_permlane32_swap_b32 v76, v68\nv_permlane32_swap_b32 v77, v69")
    A("v_lshlrev_b32 v72, 16, v68\nv_and_b32 v73, 0xffff0000, v68\nv_lshlrev_b32 v74, 16, v69\nv_and_b32 v75, 0xffff0000, v69")
    for j in range(4): A(f"v_mul_f32 v{64+j}, v{64+j}, v{72+j}")
    A("v_cvt_pk_bf16_f32 v68, v64, v65\nv_cvt_pk_bf16_f32 v69, v66, v67")
    A("v_lshlrev_b32 v64, 16, v68\nv_and_b32 v65, 0xffff0000, v68\nv_lshlrev_b32 v66, 16, v69\nv_and_b32 v67, 0xffff0000, v69")
    for j in range(4): A(f"v_add_f32 v{64+j}, v{64+j}, v{32+j}")
    A(f"""
    v_cvt_pk_bf16_f32 v64, v64, v65
    v_cvt_pk_bf16_f32 v65, v66, v67
    s_mov_b64 exec, 0x00ff00ff
    buffer_store_dwordx2 v[64:65], v213, {RB}, 0 offen
    s_cmp_lg_u32 s{sF}, 0
    s_cbranch_scc1 L_fin_noep
    s_mov_b64 exec, 1
    v_mov_b32 v66, s{sE}
    buffer_store_dword v66, v8, {WS}, 0 offen sc1
    L_fin_noep:
    s_mov_b64 exec, -1
    """)
    finish()

def hb_code():
    if not OPT['hb']: return ""
    return f"""s_lshr_b32 s71, s66, 1
    s_add_u32 s71, s71, 48
    s_mul_i32 s71, s71, {8*9216}
    s_add_u32 s74, s73, 6
    s_lshl_b32 s74, s74, 7
    s_add_u32 s71, s71, s74
    buffer_load_dwordx4 v[248:251], v14, {RA}, s71 offen"""
WIN[0] = OPT["wt"]
A("L_TH:")
SLOT = f"s_lshl_b32 s74, s{sA_}, 1\ns_add_u32 s{sSL}, s{sSL}, s74\ns_add_u32 s{sSL}, s{sSL}, s{sQD}"
A(f"""
s_lshl_b32 s66, s{sA_}, 1
s_add_u32 s66, s66, s{sQD}
s_mov_b32 s{sF}, 99
s_cmp_eq_u32 s66, 3
s_cbranch_scc1 L_f_go
s_cmp_gt_u32 s66, 3
s_subb_u32 s66, s66, 0
s_lshl_b32 s66, s66, 3
s_add_u32 s{sF}, s66, s{sX}
s_add_u32 s66, s66, s{sW}
""")
def h5_clear(lab):
    A(f"s_cmp_ge_u32 s{sF}, 36\ns_cbranch_scc1 {lab}")
    ones(24)
    A(f"s_lshl_b32 s74, s{sF}, 14\ns_lshl_b32 s75, s{sW}, 11\ns_add_u32 s74, s74, s75\ns_add_u32 s74, s74, {WS_H5}")
    for i in range(2): A(f"buffer_store_dwordx4 v[24:27], v9, {WS}, s74 offen offset:{i*1024} sc1")
    if not OPT['aclr']:
        A(f"s_waitcnt vmcnt(0)\ns_barrier\ns_cmp_lg_u32 s{sW}, 0\ns_cbranch_scc1 {lab}")
        proof(sF)
    A(f"{lab}:")
if not OPT['fclr']: h5_clear("L_noclr2")
A("L_noclr:")
if OPT['help']:
    A(f"""
    s_cmp_eq_u32 s67, 0
    s_cselect_b32 s52, s{P_WG}, s{P_WU}
    s_cselect_b32 s53, s{P_WG+1}, s{P_WU+1}
    s_mov_b32 s54, {576*9216}
    s_lshr_b32 s71, s66, 1
    s_add_u32 s71, s71, 32
    s_mul_i32 s71, s71, {8*9216}
    s_sub_u32 s72, 3, s{sX}
    s_and_b32 s72, s72, 7
    s_mul_i32 s73, s{sX}, 9
    s_lshl_b32 s73, s73, 7
    s_add_u32 s71, s71, s73
    s_lshl_b32 s74, s72, 7
    s_add_u32 s73, s71, s74
    v_mul_u32_u24 v14, 9216, v2
    v_lshl_add_u32 v14, v3, 4, v14
    s_add_u32 s74, s73, {20*8*9216}
    s_add_u32 s71, s71, {20*8*9216}
    """)
    if OPT['help'] & 1:
        A(f"""
        {"" if OPT['hc'] < 2 else f"buffer_load_dwordx4 v[248:251], v14, {RA}, s73 offen"}
        buffer_load_dwordx4 v[248:251], v14, {RA}, s74 offen{HW}
        s_cmp_lg_u32 s72, 0
        s_cbranch_scc1 L_noc3b
        {"" if OPT['hc'] < 2 else f"buffer_load_dwordx4 v[248:251], v14, {RA}, s73 offen offset:1024"}
        buffer_load_dwordx4 v[248:251], v14, {RA}, s74 offen offset:1024{HW}
        L_noc3b:
        """)
    if OPT['help'] & 2: A(f"buffer_load_dwordx4 v[248:251], v14, {RA}, s71 offen offset:768{HW}\nbuffer_load_dwordx4 v[248:251], v14, {RA}, s71 offen offset:896{HW}")
    if OPT['hc'] >= 3:
        A(f"""
        s_mov_b32 s52, s{P_WD}
        s_mov_b32 s53, s{P_WD+1}
        s_mul_i32 s73, s{sX}, 9
        s_add_u32 s73, s73, s72
        s_add_u32 s73, s73, 1
        s_mul_i32 s54, s73, {64*1152}
        s_lshl_b32 s74, s66, 10
        s_add_u32 s73, s54, s74
        s_sub_u32 s73, s73, {40*1024}
        buffer_load_dwordx4 v[248:251], v9, {RA}, s73 offen
        """)
    if OPT['help'] & 4:
        A(f"""
        s_lshl_b32 s66, s66, 10
        s_mov_b32 s52, s{P_WO}
        s_mov_b32 s53, s{P_WO+1}
        s_lshl_b32 s73, s{sX}, 3
        s_add_u32 s73, s73, 7
        s_mul_i32 s73, s73, {64*1152}
        s_add_u32 s54, s73, {64*1152}
        s_add_u32 s73, s73, s66
        s_add_u32 s74, s73, {40*1024}
        {"" if OPT['ht'] < 2 else f"buffer_load_dwordx4 v[248:251], v9, {RA}, s73 offen"}
        buffer_load_dwordx4 v[248:251], v9, {RA}, s74 offen{HW}
        """)
    if OPT['help'] & 8:
        A(f"s_sub_u32 s73, s73, {40*1024}\nbuffer_load_dwordx4 v[248:251], v9, {RA}, s73 offen")
A("L_f_go:")
A(f"s_mul_i32 s{sSL}, s{sX}, 7\n{SLOT}")
ST(1, 3)
srd(52, P_WUV, 512*8192)
srd(56, P_WO, 4096*1152)
A(f"""
s_lshl_b32 s71, s{sW}, 10
s_add_u32 s71, s71, {BIG}
s_lshl_b32 s72, s68, 2
s_add_u32 s72, s72, s67
s_lshl_b32 s72, s72, 16
s_lshl_b32 s73, s{sH}, 1
s_add_u32 s73, s73, s{sQD}
s_lshl_b32 s74, s73, 7
s_add_u32 s72, s72, s74
""")
for i in range(8):
    cb = 2*(i&1) + 16*(i>>1)
    A(f"s_mov_b32 m0, s71\ns_add_u32 s74, s72, {cb*65536}")
    dma(12, RA, 74)
    A(f"s_add_u32 s71, s71, 8192")
    if i < OPT['tslow']: A("s_waitcnt vmcnt(0)")
if OPT['aclr']:
    A(f"s_cmp_ge_u32 s{sF}, 36\ns_cbranch_scc1 L_ac\ns_waitcnt vmcnt(8)\ns_barrier\ns_cmp_lg_u32 s{sW}, 0\ns_cbranch_scc1 L_ac")
    proof(sF)
    A("L_ac:")
wide_voffset(14)
A(f"""
s_mul_i32 s73, s73, {64*1152}
s_lshl_b32 s71, s67, 3
s_add_u32 s71, s71, s68
s_lshl_b32 s71, s71, 10
s_add_u32 s71, s71, {BIG+65536}
s_mul_i32 s72, s67, {8*1152}
s_lshl_b32 s74, s68, 7
s_add_u32 s72, s72, s74
s_add_u32 s72, s72, s73
""")
if OPT['rbo'] & 1: rb_dma(BIG+65536, RB, 73)
else: wide_dma(4, RB)
A(f"""
s_mul_i32 s72, s{sW}, {8*1152}
s_add_u32 s72, s72, s73
s_add_u32 s72, s72, 1024
s_lshl_b32 s71, s{sW}, 10
s_add_u32 s71, s71, {BIG+131072}
s_mov_b32 m0, s71
""")
dma(14, RB, 72)
wide_frag_addrs(BIG+131072, 65536)
A(f"v_lshl_add_u32 v19, v4, 10, v{vTR}\nv_add_u32 v19, {BIG}, v19")
t_setup()
ST(5, 3)
A("s_waitcnt vmcnt(9)\ns_barrier")
for kp in range(16):
    A(f"ds_read_b64_tr_b16 {vr(vUV+4*kp,2)}, v19 offset:{kp*4096}")
    A(f"ds_read_b64_tr_b16 {vr(vUV+4*kp+2,2)}, v19 offset:{kp*4096+512}")
    if kp % 6 == 5: A("s_waitcnt lgkmcnt(4)")
fin_setup()
t_early("L_u")
A("s_waitcnt vmcnt(0) lgkmcnt(2)")
ST(6, 3)
A("s_barrier")
wide_frag_reads(vWO, 2)
t_tail(2, "L_u")

A("L_T:")
A(f"s_mul_i32 s{sSL}, s{sX}, 7\ns_add_u32 s{sSL}, s{sSL}, 6")
ST(1, 3)
srd(52, P_WUV, 512*8192)
srd(56, P_WO, 4096*1152)
A(f"""
s_lshl_b32 s71, s70, 1
s_add_u32 s71, s71, s67
s_lshl_b32 s71, s71, 1
s_add_u32 s71, s71, s69
s_lshl_b32 s71, s71, 10
s_add_u32 s71, s71, {BIG}
s_lshl_b32 s72, s70, 2
s_add_u32 s72, s72, s67
s_lshl_b32 s72, s72, 16
s_lshl_b32 s73, s{sH}, 8
s_lshl_b32 s74, s69, 7
s_add_u32 s73, s73, s74
s_add_u32 s72, s72, s73
""")
for i in range(16):
    cb = 2*((i>>1)&1) + 8*(i&1) + 16*(i>>2)
    A(f"s_mov_b32 m0, s71\ns_add_u32 s74, s72, {cb*65536}")
    dma(12, RA, 74)
    A(f"s_add_u32 s71, s71, 8192")
    if i < OPT['Tslow']: A("s_waitcnt vmcnt(0)")
wide_voffset(14)
A(f"""
s_mul_i32 s66, s{sH}, {128*1152}
s_lshl_b32 s71, s68, 2
s_add_u32 s71, s71, s67
s_mul_i32 s72, s71, {8*1152}
s_add_u32 s72, s72, s66
s_add_u32 s72, s72, 1024
s_lshl_b32 s71, s71, 10
s_add_u32 s71, s71, {BIG+131072}
s_mov_b32 m0, s71
s_add_u32 s71, s71, 2048
""")
dma(14, RB, 72)
A(f"s_add_u32 s72, s72, {16*1152}\ns_mov_b32 m0, s71")
dma(14, RB, 72)
vST = 176
if OPT['rbo'] & 4:
    A(f"s_mul_i32 s72, s{sW}, {8*1152}\ns_add_u32 s72, s72, s66\ns_barrier")
    for i in range(8): A(f"buffer_load_dwordx4 {vr(vST+4*i,4)}, v14, {RB}, s72 offen offset:{128*i} nt")
else:
  A(f"""
s_mul_i32 s72, s67, {8*1152}
s_lshl_b32 s74, s68, 7
s_add_u32 s72, s72, s74
s_add_u32 s72, s72, s66
s_barrier
""")
  for i in range(4):
    A(f"buffer_load_dwordx4 {vr(vST+8*i,4)}, v14, {RB}, s72 offen nt")
    A(f"buffer_load_dwordx4 {vr(vST+8*i+4,4)}, v14, {RB}, s72 offen offset:512 nt")
    A(f"s_add_u32 s72, s72, {16*1152}")
A(f"v_add_u32 v17, 0x10000, v16")
ST(2, 3)
A("s_waitcnt vmcnt(10)")
ST(3, 3)
A("s_barrier")
for kp in range(16):
    a = 16 if kp < 8 else 17
    A(f"ds_read_b64_tr_b16 {vr(vUV+4*kp,2)}, v{a} offset:{(kp&7)*8192}")
    A(f"ds_read_b64_tr_b16 {vr(vUV+4*kp+2,2)}, v{a} offset:{(kp&7)*8192+512}")
    if kp % 6 == 5: A("s_waitcnt lgkmcnt(4)")
A(f"""
s_lshl_b32 s71, s67, 3
s_add_u32 s71, s71, s68
s_lshl_b32 s71, s71, 10
s_add_u32 s71, s71, {BIG}
v_add_u32 v19, s71, v9
s_add_u32 s71, s71, 65536
s_waitcnt lgkmcnt(0)
s_barrier
""")
ST(4, 3)
if OPT['rbo'] & 4:
    A(f"s_add_u32 s73, s66, {64*1152}\ns_lshl_b32 s71, s{sW}, 13\ns_add_u32 s71, s71, {BIG}\nv_add_u32 v19, s71, v9")
    rb_dma(BIG+65536, RB, 73)
else: wide_dma(4, RB)
for i in range(8):
    A(f"s_waitcnt vmcnt({15-i})")
    A(f"ds_write_b128 v19, {vr(vST+4*i,4)} offset:{(i>>1)*16384+(i&1)*4096 if not OPT['rbo'] & 4 else i*1024}")
wide_frag_addrs(BIG+131072, 0)
t_setup()
t_early("L_t")
ST(5, 3)
A("s_waitcnt vmcnt(0) lgkmcnt(0)")
ST(6, 3)
A("s_barrier")
wide_frag_reads(vWO, 4)
t_tail(4, "L_t")

WIN[0] = OPT["wn"]
A("L_F:")
if OPT['fclr']:
    A(f"s_mul_i32 s74, s{sX}, 9\ns_sub_u32 s{sF}, s{sU}, s74\ns_lshl_b32 s{sF}, s{sF}, 3\ns_add_u32 s{sF}, s{sF}, s{sX}")
    h5_clear("L_f_clr")
ST(1, 3)
DNB = BIG
if OPT['fslow']:
    A(f"s_cmp_lt_u32 s{sQD}, {2 if OPT['fbx'] else 0}\ns_cselect_b64 vcc, -1, 0")
    if OPT['c3x'] & 1: A(f"s_and_b32 s74, s{sU}, 7\ns_cmp_eq_u32 s74, 3\ns_cselect_b64 vcc, -1, vcc")
for i in range(9):
    gu_dma(i)
    if i < OPT['fslow']: A(f"s_cbranch_vccnz L_fw{i}\ns_waitcnt vmcnt({OPT['fwin']})\nL_fw{i}:")
xn_frags()
if OPT['fbar']: A("s_barrier")
for i in range(9, 18): gu_dma(i)
srd(56, P_WD, 4608*1152)
wide_voffset(14)
A(f"""
v_lshrrev_b32 v19, 1, v6
v_lshrrev_b32 v21, 1, v5
v_and_b32 v22, 1, v4
v_lshl_or_b32 v21, v22, 1, v21
v_lshl_or_b32 v21, v19, 2, v21
v_xor_b32 v21, s{sW}, v21
v_lshlrev_b32 v21, 4, v21
v_lshl_add_u32 v21, v5, 7, v21
v_and_b32 v22, 1, v6
v_lshl_add_u32 v21, v22, 3, v21
v_lshl_add_u32 v21, v19, 10, v21
v_lshl_add_u32 v21, v4, 11, v21
v_add_u32 v21, {BIG}, v21
v_add_u32 v22, {8*8192}, v21
v_add_u32 v23, {16*8192}, v21
s_mul_i32 s73, s{sU}, {64*1152}
s_lshl_b32 s71, s67, 3
s_add_u32 s71, s71, s68
s_lshl_b32 s71, s71, 10
s_add_u32 s71, s71, {DNB}
s_mul_i32 s72, s67, {8*1152}
s_lshl_b32 s74, s68, 7
s_add_u32 s72, s72, s74
s_add_u32 s72, s72, s73
v_min_u32 v140, 35, v{vL}
v_lshlrev_b32 v140, 7, v140
s_mov_b32 s66, {WS_PF}
s_waitcnt vmcnt(9) lgkmcnt(0)
s_barrier
""")
def k_steps(k0, k1):
    D = 6
    def rd(k):
        d = vG + 4*(k % 8)
        A(f"ds_read_b64_tr_b16 {vr(d,2)}, v{21+(k>>3)} offset:{(k&7)*8192}")
        A(f"ds_read_b64_tr_b16 {vr(d+2,2)}, v{21+(k>>3)} offset:{(k&7)*8192+512}")
    for k in range(k0, min(k1, k0+D)): rd(k)
    for k in range(k0, k1):
        A(f"s_waitcnt lgkmcnt({2*min(D-1, k1-1-k)})")
        mf16(vD, vG+4*(k % 8), vXN+4*k, k == 0)
        if k + D < k1: rd(k + D)
k_steps(0, 9)
A(f"""
s_barrier
s_cmp_lg_u32 s{sW}, 7
s_cbranch_scc1 L_f_np
buffer_load_dword v141, v140, {WS}, s66 offen sc1
L_f_np:
""")
if OPT['rbo'] & 2: rb_dma(DNB, RB, 73)
else: wide_dma(4, RB)
A(f"""
s_mul_i32 s72, s{sW}, {8*1152}
s_add_u32 s72, s72, s73
s_add_u32 s72, s72, 1024
s_lshl_b32 s71, s{sW}, 10
s_add_u32 s71, s71, {DNB+65536}
s_mov_b32 m0, s71
""")
dma(14, RB, 72)
ST(2, 3)
A("s_waitcnt vmcnt(9)")
ST(3, 3)
A("s_barrier")
k_steps(9, 18)
wide_frag_addrs(DNB+65536, DNB-BIG)
A(f"s_lshl_b32 s72, s{sU}, 7\ns_add_u32 s72, s72, {WS_H5+56*128}")
publish_setup(TS)
A(f"""
v_mul_u32_u24 v22, {HBS}, v6
v_lshl_add_u32 v21, v4, 3, v22
s_lshl_b32 s74, s{sW}, 4
v_add_u32 v21, s74, v21
v_lshl_add_u32 v22, v4, 4, v22
""")
masked_addrs(22, HB)
vWD = 144
for j in range(4): A(f"v_mov_b32 v{24+j}, v{vD+j}")
for j in range(4): A(f"v_permlane32_swap_b32 v{vD+j}, v{24+j}")
C1 = -2.0*math.sqrt(2.0/math.pi)*LOG2E
A(f"s_mov_b32 s74, {fbits(0.044715)}\ns_mov_b32 s75, {fbits(C1)}")
for j in range(4): rb16(vD+j, vD+j); rb16(24+j, 24+j)
for j in range(4): A(f"v_mul_f32 v{104+j}, v{vD+j}, v{vD+j}")
for j in range(4): A(f"v_fma_f32 v{104+j}, v{104+j}, s74, 1.0")
for j in range(4): A(f"v_mul_f32 v{104+j}, v{104+j}, v{vD+j}")
for j in range(4): A(f"v_mul_f32 v{104+j}, s75, v{104+j}")
for j in range(4): A(f"v_exp_f32 v{104+j}, v{104+j}")
for j in range(4): A(f"v_add_f32 v{104+j}, 1.0, v{104+j}")
for j in range(4): A(f"v_rcp_f32 v{104+j}, v{104+j}")
for j in range(4): A(f"v_mul_f32 v{vD+j}, v{vD+j}, v{104+j}")
for j in range(4): rb16(vD+j, vD+j)
for j in range(4): A(f"v_mul_f32 v{vD+j}, v{vD+j}, v{24+j}")
A(f"""
v_cvt_pk_bf16_f32 v24, v{vD}, v{vD+1}
v_cvt_pk_bf16_f32 v25, v{vD+2}, v{vD+3}
s_mov_b64 exec, 0x000f000f
ds_write_b64 v21, v[24:25] offset:{HB}
s_mov_b64 exec, -1
s_cmp_lg_u32 s{sW}, 7
s_cbranch_scc1 L_f_pd
s_mov_b32 s77, 0
L_f_pp:
v_cmp_ne_u32 vcc, s{sT}, v141
s_add_u32 s77, s77, 1
s_cbranch_vccz L_f_pd
s_cmp_ge_u32 s77, {POLL_MAX}
s_cbranch_scc1 L_f_pd
buffer_load_dword v141, v140, {WS}, s66 offen sc1
s_waitcnt vmcnt(0)
s_branch L_f_pp
L_f_pd:
s_waitcnt vmcnt(0) lgkmcnt(0)
""")
ST(1); ST(7, 3)
A("s_barrier")
wide_frag_reads(vWD, 2)
A("s_waitcnt lgkmcnt(6)")
wide_gemm(vWD, 2, 104, HB, TS, "L_fg")
ST(2)
finish()

QA = 131072
MXO, LSO, LCO = 2048, 8192+2048, 16384+2048
sLOC = 64
A(f"""
L_att:
s_mov_b64 exec, -1
s_cmp_ge_u32 s{sW}, 4
s_cbranch_scc1 L_att_hi
""")
ST(1, 5); ST(2, 5); ST(3, 5)
if OPT['nqal']:
    A("s_branch L_nq2\nL_att0:")
    A(PFB)
    A("L_nq2:")
late_common()
lane_consts()
A(f"""
s_waitcnt lgkmcnt(0)
s_load_dword s{sE}, s[48:49], 0
s_lshl_b32 s70, s{sX}, 4
s_add_u32 s70, s70, s{sK}
s_lshl_b32 s66, s70, 17
s_lshl_b32 s67, s{sW}, 15
s_add_u32 s66, s66, s67
""")
srd(52, P_CKV, 4*4096*1024)
if OPT['ukw'] < 8: A(f"s_waitcnt vmcnt({OPT['ukw']})")
ST(2, 2)
WIN[0] = OPT["wa"]
def fsw(r): return ((r & 3) << 2) | ((r >> 2) & 3)
for r in range(32):
    if r in (4, 8, 16, 24): ST({4:3,8:4,16:5,24:6}[r], 2)
    if r == 4*OPT['gbar']: A("s_barrier")
    if r & 3 == 0: A(f"s_add_u32 m0, s67, {r*1024}\ns_add_u32 s69, s66, {r*1024}")
    A(f"v_xor_b32 v10, {fsw(r) << 4}, v9")
    A(f"buffer_load_dwordx4 v10, {RA}, s69 offen offset:{(r & 3)*1024} nt lds")
if OPT['gbar'] == 8: A("s_barrier")
ST(7, 2)
if OPT['stamps'] in (2, 3):
    A("s_waitcnt vmcnt(0)")
    ST(9, 2); ST(7, 3)
if OPT['exp'] == 2: A("s_branch L_end")
A(f"""
v_and_b32 v11, 2, v{vL}
v_lshlrev_b32 v11, 1, v11
v_or_b32 v11, v11, v5
v_lshrrev_b32 v12, 5, v{vL}
v_xor_b32 v11, v11, v12
v_lshlrev_b32 v11, 4, v11
v_lshl_add_u32 v11, v3, 7, v11
v_and_b32 v13, 3, v2
v_lshl_add_u32 v11, v13, 13, v11
v_add_u32 v20, {QA}, v11
v_lshl_or_b32 v11, v6, 2, v5
v_xor_b32 v11, v11, v12
v_lshlrev_b32 v11, 4, v11
v_and_b32 v13, 31, v{vL}
v_lshl_add_u32 v11, v13, 10, v11
v_add_u32 v120, s67, v11
""")
for t in range(1, 4): A(f"v_xor_b32 v{20+t}, {t<<5}, v20")
for t in range(1, 8): A(f"v_xor_b32 v{120+t}, {t<<5}, v120")
A(f"""
v_and_b32 v13, 31, v{vL}
v_lshlrev_b32 v13, 5, v13
v_add_u32 v13, {QA}, v13
s_lshl_b32 s68, s{sW}, 3
v_lshl_add_u32 v14, v12, 2, v13
v_add_u32 v14, s68, v14
s_lshl_b32 s68, s{sW}, 13
s_add_u32 s68, s68, {QA}
v_add_u32 v15, s68, v9
s_waitcnt lgkmcnt(0)
""")
get_tag()
A(f"""
s_lshl_b32 s72, s{sX}, 14
s_add_u32 s72, s72, {WS_FLG}
s_lshl_b32 s73, s{sK}, 10
s_add_u32 s73, s73, s72
s_lshl_b32 s68, s{sW}, 7
s_add_u32 s69, s72, s68
s_lshl_b32 s68, s{sK}, 5
s_add_u32 s72, s72, s68
s_lshl_b32 s74, s70, 15
s_lshl_b32 s68, s{sW}, 9
s_add_u32 s74, s74, s68
s_add_u32 s74, s74, {WS_H3A}
s_add_u32 s75, s74, 8192
s_add_u32 s78, s74, 16384
s_add_u32 s79, s74, 24576
s_lshl_b32 s70, s{sK}, 15
s_lshl_b32 s71, s{sX}, 11
s_add_u32 s70, s70, s71
s_add_u32 s70, s70, {WS_H3B}
s_lshl_b32 s71, s{sW}, 8
s_add_u32 s71, s71, s70
v_and_b32 v100, 15, v{vL}
v_and_b32 v101, 1, v4
v_lshlrev_b32 v112, 10, v100
v_lshl_add_u32 v102, v101, 4, v112
v_lshlrev_b32 v103, 11, v4
v_lshl_add_u32 v103, v100, 4, v103
v_and_b32 v104, 1, v3
v_lshlrev_b32 v104, 4, v104
v_mov_b32 v105, 0xffff
v_lshlrev_b32 v105, v104, v105
v_lshrrev_b32 v104, 1, v3
""")
for d in range(4): A(f"v_cmp_eq_u32 vcc, {d}, v104\nv_cndmask_b32 v{108+d}, 0, v105, vcc")
A(f"""
v_lshrrev_b32 v104, 2, v3
v_lshl_add_u32 v105, v104, 4, v4
v_lshlrev_b32 v105, 2, v105
v_lshlrev_b32 v106, 14, v104
v_lshl_add_u32 v106, v6, 5, v106
v_lshl_add_u32 v106, v4, 3, v106
v_and_b32 v104, 1, v2
v_lshl_add_u32 v106, v104, 7, v106
v_lshlrev_b32 v107, 14, v101
v_lshl_add_u32 v107, v100, 3, v107
v_mov_b32 v113, {QA+LCO}
""")
vS = 32; vAf = 128; vBf = 64; DEP = 8
A("s_waitcnt vmcnt(0)")
for t in range(32):
    if t and t & 3 == 0 and t >= 12: A("s_waitcnt lgkmcnt(8)")
    A(f"ds_read_b128 {vr(vAf+4*t,4)}, v{120+(t&7)} offset:{(t>>3)*256}")
PT = [f"buffer_load_dwordx4 v[116:119], v103, {WS}, s{[74,75,78,79][i]} offen offset:{256*h}" for i in range(4) for h in range(2)]
if OPT['ptl'] == 1 and OPT['local']:
    for l_ in PT: A(l_)
A("s_waitcnt lgkmcnt(0)\ns_setprio 2")
ST(1)
A("s_barrier")
ST(2)
def qk_read(t): A(f"ds_read_b128 {vr(vBf+4*(t % DEP),4)}, v{20+(t&3)} offset:{(t>>2)*1024}")
for t in range(DEP): qk_read(t)
for t in range(32):
    A(f"s_waitcnt lgkmcnt({min(DEP-1, 31-t)})")
    mf32(vS, vAf+4*t, vBf+4*(t % DEP), t == 0)
    if t + DEP < 32: qk_read(t + DEP)
    if OPT['ptl'] == 2 and t >= 24: A(PT[t-24])
    if OPT['ptl'] == 3 and t % 4 == 3: A(PT[t//4])
    if t == 13: A("s_barrier")
ST(3)
A(f"v_max3_f32 v24, v{vS}, v{vS+1}, v{vS+2}\nv_max3_f32 v25, v{vS+3}, v{vS+4}, v{vS+5}\nv_max3_f32 v26, v{vS+6}, v{vS+7}, v{vS+8}")
A(f"v_max3_f32 v27, v{vS+9}, v{vS+10}, v{vS+11}\nv_max3_f32 v28, v{vS+12}, v{vS+13}, v{vS+14}")
A(f"v_max3_f32 v24, v24, v25, v26\nv_max3_f32 v27, v27, v28, v{vS+15}\nv_max_f32 v24, v24, v27")
A(f"ds_write_b32 v14, v24 offset:{MXO}\ns_waitcnt lgkmcnt(0)\ns_barrier")
A(f"""
ds_read_b128 v[24:27], v13 offset:{MXO}
ds_read_b128 v[28:31], v13 offset:{MXO+16}
s_waitcnt lgkmcnt(0)
v_max3_f32 v24, v24, v25, v26
v_max3_f32 v28, v28, v29, v30
v_max3_f32 v24, v24, v27, v31
v_max_f32 v24, v24, v28
""")
for hlf in range(2):
    for i in range(8): A(f"v_sub_f32 v{vS+8*hlf+i}, v{vS+8*hlf+i}, v24")
    for i in range(8): A(f"v_exp_f32 v{vS+8*hlf+i}, v{vS+8*hlf+i}")
    for i in range(4): A(f"v_cvt_pk_bf16_f32 v{48+4*hlf+i}, v{vS+8*hlf+2*i}, v{vS+8*hlf+2*i+1}")
    A(f"ds_write_b128 v15, {vr(48+4*hlf,4)} offset:{1024*hlf}")
    if hlf == 0:
        A("s_waitcnt lgkmcnt(0)")
        ST(4)
        A("s_barrier")
for step in (8, 4, 2, 1):
    for i in range(step): A(f"v_add_f32 v{vS+i}, v{vS+i}, v{vS+i+step}")
A(f"ds_write_b32 v14, v{vS} offset:{LSO}\ns_waitcnt lgkmcnt(0)\ns_setprio 0\ns_barrier")
vXr = 144
SO = [74, 75, 78, 79]
A(f"""
s_cmp_lg_u32 s{sW}, 0
s_cbranch_scc1 L_nost
ds_read_b128 v[28:31], v13 offset:{LSO}
ds_read_b128 v[32:35], v13 offset:{LSO+16}
ds_read_b32 v36, v113
v_mov_b32 v25, s{sT}
v_mov_b32 v27, s{sT}
s_waitcnt lgkmcnt(0)
v_add_f32 v28, v28, v29
v_add_f32 v30, v30, v31
v_add_f32 v32, v32, v33
v_add_f32 v34, v34, v35
v_readfirstlane_b32 s{sLOC}, v36
v_add_f32 v28, v28, v30
v_add_f32 v32, v32, v34
v_add_f32 v26, v28, v32
s_mov_b32 exec_hi, 0
s_cmp_lg_u32 s{sLOC}, 0
s_cbranch_scc1 L_stfar
buffer_store_dwordx4 v[24:27], v9, {WS}, s73 offen
s_branch L_stdone
L_stfar:
buffer_store_dwordx4 v[24:27], v9, {WS}, s73 offen sc1
L_stdone:
s_mov_b64 exec, -1
L_nost:
{chr(10).join(PT) if OPT['ptl'] == 5 else ""}
s_mov_b32 s77, 0
s_mov_b32 exec_hi, 0
L_rpoll:
buffer_load_dwordx4 v[32:35], v102, {WS}, s72 offen sc1
s_add_u32 s77, s77, 1
s_waitcnt vmcnt(0)
v_xor_b32 v33, s{sT}, v33
v_xor_b32 v35, s{sT}, v35
v_or_b32 v33, v33, v35
v_cmp_ne_u32 vcc, 0, v33
s_cmp_ge_u32 s77, {POLL_MAX}
s_cbranch_scc1 L_rdone
s_cbranch_vccnz L_rpoll
L_rdone:
s_mov_b64 exec, -1
""")
ST(5)
if OPT['ptl'] == 4:
    for l_ in PT: A(l_)
A("v_mov_b32 v36, v32")
for r in (8, 4, 2, 1): A(f"v_max_f32_dpp v36, v36, v36 row_ror:{r} {DPPF}")
A("v_sub_f32 v33, v32, v36\nv_exp_f32 v33, v33\nv_mul_f32 v37, v33, v34")
for i in range(4): A(f"ds_bpermute_b32 v{40+i}, v105, v33 offset:{16*i}")
for r in (8, 4, 2, 1): A(f"v_add_f32_dpp v37, v37, v37 row_ror:{r} {DPPF}")
if OPT['tg']:
    A(f"""
    s_lshl_b32 s68, s{sK}, 9
    s_lshl_b32 s76, s{sW}, 7
    s_add_u32 s68, s68, s76
    s_lshl_b32 s76, s{sX}, 2
    s_add_u32 s68, s68, s76
    s_add_u32 s68, s68, {WS_TG}
    v_mov_b32 v38, s{sT}
    """)
A(f"""
v_cmp_gt_u32 s[66:67], 8, v100
s_waitcnt lgkmcnt(0)
""")
for i in range(4): A(f"v_cvt_pk_bf16_f32 v{44+i}, v{40+i}, v{40+i}")
for i in range(4): A(f"v_and_b32 v{80+i}, 0xffff0000, v{44+i}")
for i in range(4): A(f"v_sub_f32 v{80+i}, v{40+i}, v{80+i}")
for i in range(4): A(f"v_cvt_pk_bf16_f32 v{80+i}, v{80+i}, v{80+i}")
for i in range(4): A(f"v_cndmask_b32 v{44+i}, v{80+i}, v{44+i}, s[66:67]")
for i in range(4):
    for d in range(4): A(f"v_and_b32 v{64+4*i+d}, v{44+i}, v{108+d}")
A(f"""
s_mov_b32 s77, 0
s_mov_b64 exec, 0xffff
{"s_barrier" if OPT['bard'] else ""}
L_fpoll:
buffer_load_dword v32, v112, {WS}, s69 offen offset:512 sc1
s_add_u32 s77, s77, 1
s_waitcnt vmcnt(0)
v_cmp_ne_u32 vcc, s{sT}, v32
s_cmp_ge_u32 s77, {POLL_MAX}
s_cbranch_scc1 L_fdone
s_cbranch_vccnz L_fpoll
L_fdone:
s_mov_b64 exec, -1
""")
ST(6)
for i in range(4):
    for h in range(2): A(f"buffer_load_dwordx4 {vr(vXr+8*i+4*h,4)}, v103, {WS}, s{SO[i]} offen offset:{256*h} sc1{' nt' if OPT['lnt'] & 2 else ''}")
ex = 0
if OPT['tg']:
    A(f"s_mov_b64 exec, 1\nbuffer_store_dword v38, v8, {WS}, s68 offen sc1\ns_mov_b64 exec, -1")
    ex = 1
for i in range(4):
    A(f"s_waitcnt vmcnt({7-2*i+ex})")
    mf16(40, vXr+8*i, 64+4*i, i == 0)
    A(f"s_waitcnt vmcnt({6-2*i+ex})")
    mf16(44, vXr+8*i+4, 64+4*i, i == 0)
A(f"""
s_cmp_lg_u32 s{sW}, 1
s_cbranch_scc1 L_rnostat
s_mov_b32 exec_hi, 0
buffer_store_dwordx2 v[36:37], v107, {WS}, s70 offen offset:1024 sc1
s_mov_b64 exec, -1
L_rnostat:
s_nop 5
""")
for j in range(4): A(f"v_cndmask_b32 v{48+j}, v{40+j}, v{44+j}, s[66:67]")
for j in range(4): A(f"v_cndmask_b32 v{40+j}, v{44+j}, v{40+j}, s[66:67]")
for j in range(4): A(f"v_add_f32_dpp v{40+j}, v{48+j}, v{40+j} row_ror:8 {DPPF}")
A(f"""
v_cvt_pk_bf16_f32 v44, v40, v41
v_cvt_pk_bf16_f32 v45, v42, v43
buffer_store_dwordx2 v[44:45], v106, {WS}, s71 offen sc1
""")
ST(7)
if OPT['late'] == 1: A("s_barrier")
if OPT['wb'] in (4, 5, 6):
    if OPT['wb'] >= 5: A("s_waitcnt vmcnt(0)")
    for i in range(4):
        for h in range(2):
            A(f"buffer_store_dwordx4 {vr(vXr+8*i+4*h,4)}, v103, {WS}, s{SO[i]} offen offset:{256*h} sc1")
        if OPT['wb'] == 6: A("s_waitcnt vmcnt(0)")
if OPT['local'] and OPT['wb'] in (1, 11):
    A(f"""
    s_cmp_ge_u32 s2, {8 if OPT['wb'] == 1 else NFX}
    s_cbranch_scc1 L_end
    s_waitcnt vmcnt(0)
    s_barrier
    s_cmp_lg_u32 s{sW}, 0
    s_cbranch_scc1 L_end
    buffer_wbl2 sc1
    """)
finish()

A("L_att_hi:")
late_common()
lane_consts()
A(f"s_load_dwordx2 s[56:57], s[0:1], 16\ns_mov_b32 s58, {576*8192}\ns_mov_b32 s59, 0x20000")
if OPT['prio']: A("s_setprio 2")
if OPT['pf'] == 1:
    A(f"""
    s_getpc_b64 s[66:67]
    L_pc:
    s_sub_u32 s66, s66, L_pc-{NAME}_kernel
    s_subb_u32 s67, s67, 0
    v_subrev_u32 v10, 256, v0
    v_lshlrev_b32 v10, 7, v10
    v_cmp_gt_u32 vcc, L_exit-{NAME}_kernel, v10
    s_and_saveexec_b64 s[68:69], vcc
    s_cbranch_execz L_nopf
    global_load_dword v255, v10, s[66:67]
    L_nopf:
    s_mov_b64 exec, -1
    """)
A(f"""
s_sub_u32 s66, s{sW}, 4
s_lshl_b32 s67, s{sX}, 15
s_lshl_b32 s68, s{sK}, 11
s_add_u32 s68, s68, s67
s_add_u32 s69, s68, {WS_H1L}
s_waitcnt lgkmcnt(0)
s_load_dword s{sE}, s[48:49], 0
s_cmp_lg_u32 s66, 1
s_cbranch_scc1 L_h_b
buffer_load_dwordx4 v[248:251], v9, {WS}, s69 offen
buffer_load_dwordx4 v[248:251], v9, {WS}, s69 offen offset:1024
L_h_b:
""")
if OPT['wqh']:
    A(f"""
    s_cmp_lt_u32 s66, 2
    s_cbranch_scc1 L_h_c
    s_lshr_b32 s68, s{sK}, 2
    s_mul_i32 s68, s68, 144
    s_and_b32 s69, s{sK}, 3
    s_lshl_b32 s69, s69, 2
    s_add_u32 s68, s68, s69
    s_lshl_b32 s69, s66, 1
    s_add_u32 s68, s68, s69
    s_add_u32 s68, s68, 124
    s_lshl_b32 s68, s68, 13
    s_lshl_b32 s69, s{sX}, 10
    s_add_u32 s68, s68, s69
    s_add_u32 s69, s68, 8192
    buffer_load_dwordx4 v[248:251], v9, {RB}, s68 offen
    buffer_load_dwordx4 v[248:251], v9, {RB}, s69 offen
    L_h_c:
    """)
A(f"""
s_lshr_b32 s67, s{sX}, 1
s_lshl_b32 s67, s67, 15
s_lshl_b32 s68, s66, 13
s_add_u32 s67, s67, s68
s_add_u32 s67, s67, {WS_H2}
s_and_b32 s69, s66, 1
s_lshl_b32 s69, s69, 1
v_xor_b32 v10, s69, v3
v_lshlrev_b32 v10, 4, v10
v_lshl_add_u32 v10, v2, 10, v10
s_add_u32 s68, s68, {QA}
v_add_u32 v16, s68, v10
v_xor_b32 v17, 64, v16
v_xor_b32 v18, 16, v16
v_xor_b32 v19, 80, v16
v_lshrrev_b32 v12, 5, v{vL}
v_and_b32 v13, 1, v4
v_lshrrev_b32 v14, 1, v6
v_lshl_or_b32 v13, v13, 1, v14
v_lshl_or_b32 v14, v5, 2, v12
v_xor_b32 v13, v13, v14
v_lshlrev_b32 v13, 4, v13
v_lshl_add_u32 v13, v5, 10, v13
v_lshl_add_u32 v13, v12, 12, v13
v_and_b32 v14, 1, v6
v_lshl_add_u32 v13, v14, 3, v13
s_lshl_b32 s68, s66, 8
v_add_u32 v20, s68, v13
""")
for j in range(1, 8): A(f"v_xor_b32 v{20+j}, {j << 5}, v20")
A(f"s_getreg_b32 s65, hwreg(HW_REG_XCC_ID, 0, 4)\ns_lshl_b32 s72, s{sX}, 11\ns_add_u32 s72, s72, {WS_XT}\ns_waitcnt lgkmcnt(0)")
get_tag()
A(f"""
s_cmp_lg_u32 s66, 0
s_cbranch_scc1 L_noxt
s_lshl_b32 s68, s{sK}, 7
s_add_u32 s68, s68, s72
v_mov_b32 v28, s65
v_mov_b32 v29, s{sT}
v_lshlrev_b32 v30, 3, v{vL}
s_mov_b64 exec, 0xffff
buffer_store_dwordx2 v[28:29], v30, {WS}, s68 offen sc1
s_mov_b64 exec, -1
L_noxt:
""")
A(f"""
s_add_u32 s72, s48, s72
s_addc_u32 s73, s49, 0
s_and_b32 s74, s2, {8*OPT['rep']-1}
s_lshl_b32 s74, s74, 10
s_lshl_b32 s75, s66, 8
s_add_u32 s74, s74, s75
s_add_u32 s74, s74, {WS_PQ}
s_add_u32 s74, s48, s74
s_addc_u32 s75, s49, 0
s_mov_b32 s77, 0
{'s_sleep %d' % OPT['isl'] if OPT['isl'] else ''}
""")
if not OPT['local']: A(f"s_mov_b32 s{sLOC}, 1")
if OPT['local']:
    A(f"s_cmp_lg_u32 s66, 0\ns_cbranch_scc1 L_nx\nL_nxp:\ns_mov_b32 s{sLOC}, 0\ns_mov_b32 s76, 0")
    for hlf in range(2):
        for i in range(8): A(f"s_load_dwordx2 s[{16+16*hlf+2*i if hlf == 0 or i < 4 else 52+2*(i-4)}:{17+16*hlf+2*i if hlf == 0 or i < 4 else 53+2*(i-4)}], s[72:73], {(8*hlf+i)*128} glc")
    A("s_waitcnt lgkmcnt(0)")
    for r in list(range(16, 40, 2)) + list(range(52, 60, 2)):
        A(f"s_xor_b32 s{r}, s{r}, s65\ns_or_b32 s{sLOC}, s{sLOC}, s{r}\ns_xor_b32 s{r+1}, s{r+1}, s{sT}\ns_or_b32 s76, s76, s{r+1}")
    A(f"s_or_b32 s{sLOC}, s{sLOC}, s76\ns_add_u32 s77, s77, 1\ns_cmp_ge_u32 s77, 12\ns_cbranch_scc1 L_nx\ns_cmp_lg_u32 s76, 0\ns_cbranch_scc1 L_nxp\nL_nx:")
A(f"""
L_xp:
{'s_sleep %d' % OPT['psl'] if OPT['psl'] else ''}
s_mov_b32 s76, 0
""")
if OPT['cpq']:
    A("s_load_dwordx8 s[16:23], s[74:75], 0 glc\ns_load_dwordx8 s[24:31], s[74:75], 128 glc\ns_waitcnt lgkmcnt(0)")
else:
    for i in range(16): A(f"s_load_dword s{16+i}, s[74:75], {i*128} glc")
    A("s_waitcnt lgkmcnt(0)")
for i in range(16): A(f"s_xor_b32 s{16+i}, s{16+i}, s{sT}\ns_or_b32 s76, s76, s{16+i}")
A(f"""
s_add_u32 s77, s77, 1
s_cmp_ge_u32 s77, {POLL_MAX}
s_cbranch_scc1 L_xd
s_cmp_lg_u32 s76, 0
s_cbranch_scc1 L_xp
L_xd:
""")
ST(6, 2)
if OPT['gbar'] <= 8: A("s_barrier")
if OPT['exp'] == 2: A("s_branch L_end")
ST(9)
vQ = 32
A(f"s_mov_b32 s76, 0xff\ns_mov_b32 s77, 0\ns_add_u32 s69, s67, 4096\nL_h2poll:")
for i in range(8):
    A(f"s_bitcmp1_b32 s76, {i}\ns_cbranch_scc0 L_h2i{i}")
    A(f"buffer_load_dwordx4 {vr(vQ+4*i,4)}, v9, {WS}, s{67 if i < 4 else 69} offen offset:{(i&3)*1024} sc1")
    A(f"L_h2i{i}:")
A(f"s_add_u32 s77, s77, 1\ns_cmp_eq_u32 s77, 1\ns_cbranch_scc1 L_h2first\ns_waitcnt vmcnt(0)\nL_h2first:")
for i in range(8):
    var = ((i >> 1) & 1) + 2*((i >> 2) & 1)
    q = vQ+4*i
    A(f"s_bitcmp1_b32 s76, {i}\ns_cbranch_scc0 L_h2c{i}")
    A(f"s_waitcnt vmcnt({7-i})")
    A(f"v_max3_u32 v28, v{q}, v{q+1}, v{q+2}\nv_max_u32 v28, v28, v{q+3}\nds_write_b128 v{16+var}, {vr(q,4)} offset:{i*128}\nv_cmp_eq_u32 vcc, -1, v28")
    A(f"s_cbranch_vccnz L_h2c{i}\ns_bitset0_b32 s76, {i}\nL_h2c{i}:")
A(f"""
s_waitcnt lgkmcnt(0)
s_cmp_ge_u32 s77, {POLL_MAX}
s_cbranch_scc1 L_h2done
s_cmp_eq_u32 s76, 0
s_cbranch_scc1 L_h2done
{'s_sleep %d' % OPT['rsleep'] if OPT['rsleep'] else ''}
s_branch L_h2poll
L_h2done:
""")
ST(1)
if OPT['prio']: A("s_setprio 0")
A(f"""
s_lshl_b32 s70, s{sX}, 4
s_add_u32 s70, s70, s{sK}
s_lshl_b32 s76, s70, 15
s_lshl_b32 s71, s66, 13
s_add_u32 s76, s76, s71
s_add_u32 s76, s76, {WS_H3A}
s_add_u32 s78, s76, 4096
s_lshl_b32 s75, s70, 10
s_add_u32 s75, s75, {WS_FLG}
s_barrier
""")
vV = 96; vO = 32
def vfrag(f, tau): return vV + 4*(f*4 + tau)
PR = [224+4*f for f in range(6)] + [16, 252]
def pv_reads(f):
    for tau in range(4):
        for jj in range(2):
            a = 20 + jj + 2*tau
            off = (f & 3)*16384 + jj*8192
            A(f"ds_read_b64_tr_b16 {vr(vfrag(f,tau)+2*jj,2)}, v{a} offset:{off}")
if OPT['local']:
    A(f"s_cmp_lg_u32 s66, 0\ns_cbranch_scc1 L_npt\nbuffer_load_dwordx4 v[248:251], v9, {WS}, s75 offen\nL_npt:")
    if not OPT['nopt'] and not OPT['ptl']:
        for i in range(8): A(f"buffer_load_dwordx4 v[248:251], v9, {WS}, s{76 if i < 4 else 78} offen offset:{(i&3)*1024}")
def late_help():
    NL = OPT['nl']
    A(f"""
    s_load_dwordx2 s[16:17], s[0:1], 72
    s_load_dwordx2 s[20:21], s[0:1], 40
    s_lshr_b32 s68, s{sK}, 2
    s_and_b32 s69, s{sK}, 3
    s_mov_b32 s55, 0x20000
    s_cmp_eq_u32 s{sK}, 14
    s_cbranch_scc1 L_lt_x
    s_cmp_ge_u32 s69, 2
    s_cbranch_scc1 L_lt_f
    s_cmp_eq_u32 s68, 3
    s_cbranch_scc1 L_lt_f
    s_lshl_b32 s70, s{sX}, 3
    s_lshl_b32 s71, s68, 1
    s_add_u32 s70, s70, s71
    s_add_u32 s70, s70, s69
    s_add_u32 s70, s70, 1
    s_mul_i32 s54, s70, {64*1152}
    s_sub_u32 s70, s54, {4*NL*1024}
    s_lshl_b32 s71, s66, 10
    s_add_u32 s70, s70, s71
    s_mov_b32 s71, 4096
    v_mov_b32 v10, v9
    s_waitcnt lgkmcnt(0)
    s_mov_b32 s52, s20
    s_mov_b32 s53, s21
    s_branch L_lt_go
    L_lt_f:
    s_lshl_b32 s70, s68, 1
    s_add_u32 s70, s70, s69
    s_lshr_b32 s71, s69, 1
    s_cmp_eq_u32 s68, 3
    s_cselect_b32 s71, s71, 2
    s_sub_u32 s70, s70, s71
    s_mul_i32 s71, s{sX}, 9
    s_add_u32 s70, s70, s71
    s_add_u32 s70, s70, 1
    s_mul_i32 s54, s70, {64*1152}
    s_sub_u32 s70, s54, {4*NL*1024}
    s_lshl_b32 s71, s66, 10
    s_add_u32 s70, s70, s71
    s_mov_b32 s71, 4096
    v_mov_b32 v10, v9
    s_waitcnt lgkmcnt(0)
    s_mov_b32 s52, s16
    s_mov_b32 s53, s17
    L_lt_go:
    """)
    if OPT['late'] == 1: A("s_barrier")
    for i in range(NL):
        A(f"buffer_load_dwordx4 v[248:251], v10, {RA}, s70 offen\ns_add_u32 s70, s70, s71")
    A("L_lt_x:\ns_waitcnt lgkmcnt(0)")
if OPT['late'] == 3: late_help()
FO = [0, 2, 4, 6, 1, 3, 5, 7]
pv_reads(0)
A("s_barrier")
for n in range(1, 8):
    A("s_waitcnt lgkmcnt(6)")
    if n == 5:
        A(f"""
        v_mov_b32 v15, {QA+LCO}
        s_cmp_lg_u32 s66, 0
        s_cbranch_scc1 L_nl
        v_mov_b32 v28, s{sLOC}
        ds_write_b32 v15, v28
        L_nl:
        s_barrier
        """)
    if n == 4:
        for j in range(8): A(f"v_add_u32 v{20+j}, 0x10000, v{20+j}")
    pv_reads(n)
A(f"""
v_add_u32 v10, {QA}, v9
v_and_b32 v13, 31, v{vL}
v_lshlrev_b32 v13, 4, v13
v_lshl_add_u32 v11, v12, 16, v13
s_lshl_b32 s68, s{sX}, 19
s_lshl_b32 s69, s{sK}, 11
s_add_u32 s68, s68, s69
s_lshl_b32 s70, s66, 9
s_add_u32 s68, s68, s70
s_add_u32 s68, s68, {WS_H3A}
s_lshl_b32 s71, s66, 7
s_add_u32 s71, s71, s75
v_mov_b32 v14, s{sT}
s_waitcnt lgkmcnt(0)
s_setprio {OPT['pvq']}
s_barrier
""")
ST(3)
def p_read(f): A(f"ds_read_b128 {vr(PR[f],4)}, v10 offset:{(f>>1)*8192+(f&1)*1024}")
for f in FO[:4]: p_read(f)
for n, f in enumerate(FO):
    if n <= OPT['c2pos']: A(f"s_waitcnt lgkmcnt({3-n})")
    elif n <= 3: pass
    else: A(f"s_waitcnt lgkmcnt({8-n})")
    for tau in range(4): mf32(vO+16*tau, PR[f], vfrag(f,tau), n == 0)
    if n == OPT['c2pos']:
        A("s_waitcnt lgkmcnt(0)\ns_barrier")
        for f2 in FO[4:]: p_read(f2)
        A("ds_read_b32 v15, v15")
A(f"s_waitcnt lgkmcnt(0)\nv_readfirstlane_b32 s{sLOC}, v15")
ST(4)
def pv_store(flag):
    for n, i in enumerate(range(0, 16, 2)):
        d = vV + 4*n
        A(f"v_cvt_pk_bf16_f32 v{d}, v{vO+i}, v{vO+16+i}\nv_cvt_pk_bf16_f32 v{d+2}, v{vO+i+1}, v{vO+16+i+1}")
        A(f"s_add_u32 s69, s68, {((i&3)//2 + 4*(i>>2))*32768}")
        A(f"v_cvt_pk_bf16_f32 v{d+1}, v{vO+32+i}, v{vO+48+i}\nv_cvt_pk_bf16_f32 v{d+3}, v{vO+32+i+1}, v{vO+48+i+1}")
        A(f"buffer_store_dwordx4 {vr(d,4)}, v11, {WS}, s69 offen {flag if flag or not OPT['lnt'] & 1 else 'nt'}")
    A(f"""
    s_mov_b64 exec, 1
    s_waitcnt vmcnt(0)
    buffer_store_dword v14, v8, {WS}, s71 offen offset:512 {flag}
    s_mov_b64 exec, -1
    {"s_barrier" if OPT['bard'] else ""}
    """)
A(f"s_cmp_lg_u32 s{sLOC}, 0\ns_cbranch_scc1 L_pvfar")
pv_store("")
A("L_pvback:")
ST(5)
if OPT['late'] in (1, 2): late_help()
finish()
A("L_pvfar:\ns_nop 9")
pv_store("sc1")
A("s_branch L_pvback")

A("L_end:")
if OPT['stamps']:
    A("s_waitcnt vmcnt(0)")
    ST(8)
    A(f"""
    s_waitcnt lgkmcnt(0)
    s_lshl_b32 s66, s2, 3
    s_add_u32 s66, s66, s{sW}
    s_lshl_b32 s66, s66, 6
    s_add_u32 s66, s66, {WS_ST}
    s_getreg_b32 s67, hwreg(HW_REG_XCC_ID)
    s_mov_b64 exec, 1
    v_mov_b32 v8, 0
    """)
    for i in range(3):
        A("\n".join(f"v_mov_b32 v{12+j}, s{80+2*(3*i+j)}" for j in range(3)))
        A(f"v_mov_b32 v15, {['s67','s77','s98'][i]}")
        A(f"buffer_store_dwordx4 v[12:15], v8, {WS}, s66 offen offset:{16*i}")
if OPT['hs'] >= 0:
    if OPT['hr'] == 1: A("s_cmp_ge_u32 s2, 128\ns_cbranch_scc1 L_exit")
    if OPT['hr'] == 3: A(f"s_cmp_ge_u32 s2, 128\ns_cbranch_scc1 L_exit\ns_cmp_ge_u32 s{sW}, 4\ns_cbranch_scc1 L_exit")
    if OPT['hr'] == 4: A(f"s_cmp_ge_u32 s2, 128\ns_cbranch_scc1 L_exit\ns_cmp_lt_u32 s{sW}, 4\ns_cbranch_scc1 L_exit")
    if OPT['hr'] == 2: A("s_cmp_lt_u32 s2, 128\ns_cbranch_scc1 L_exit")
    A(f"s_cmp_eq_u32 s{80+2*OPT['hs']}, 0\ns_cbranch_scc1 L_exit")
    A(f"L_hold2:\ns_memrealtime s[66:67]\ns_waitcnt lgkmcnt(0)\ns_sub_u32 s68, s66, s{80+2*OPT['hs']}\ns_cmp_lt_u32 s68, 4000\ns_cbranch_scc1 L_hold2")
if OPT['hold']:
    A(f"L_hold:\ns_memrealtime s[66:67]\ns_waitcnt lgkmcnt(0)\ns_sub_u32 s68, s66, s80\ns_cmp_lt_u32 s68, {OPT['hold']}\ns_cbranch_scc1 L_hold")
A("L_exit:\ns_endpgm")
A.raw(f""".section .rodata,"a"
.p2align 6
.amdhsa_kernel {NAME}_kernel
  .amdhsa_next_free_vgpr 256
  .amdhsa_next_free_sgpr 102
  .amdhsa_accum_offset 256
  .amdhsa_group_segment_fixed_size 0
  .amdhsa_kernarg_size 104
  .amdhsa_user_sgpr_count 2
  .amdhsa_user_sgpr_kernarg_segment_ptr 1
  .amdhsa_system_sgpr_workgroup_id_x 1
  .amdhsa_float_denorm_mode_32 3
.end_amdhsa_kernel""")
sys.stdout.write(A.text())
sys.stderr.write(f"instructions {A.count} nops {A.nops}\n")
```

```python
import sys, math, struct
from asmx import Asm, NAME

OPT = dict(stamps=0, local=1, hold=0, pf=2, exp=0, gbar=8, rsleep=0, help=5, fslow=6, tslow=0, wb=12, gap=0, prio=1, ukw=0, wqh=1, adel=0, psl=0, cpq=1, hb=1, noclr=0, nopt=0, hslow=0, gslow=0, Tslow=0, areg=1, pvp=1, ckh=1, lnt=0, c3l=0, rowm=1, fclr=0, late=0, nl=8, bpre=1, fhelp=0, pearly=0, pfirst=0, fbar=1, fwin=2, fbx=1, nqal=0, fv=0, pvq=3, ptl=3, bard=0, c2pos=2, tg=0, aclr=0, isl=0, rep=2, wn=0, wa=0, wt=0, rbo=7, c3x=1, hc=2, ht=2, epe=0, osc=0, hs=-1, hr=0)
for a in sys.argv[1:]:
    k, v = a.split("="); assert k in OPT, k; OPT[k] = int(v)

WS_PF  = 0x010000
WS_FF  = 0x020000
WS_TG  = 0x038000
WS_XT  = 0x030000
WS_H1  = 0x040000
WS_H1L = 0x0C0000
WS_H2  = 0x080000
WS_PQ  = 0x0A0000
WS_FLG = 0x100000
WS_H3B = 0x140000
WS_H5  = 0x200000
WS_H3A = 0x400000
WS_ST  = 0x800000
POLL_MAX = 400000 if not OPT['exp'] else 40

P_X, P_CKV, P_WQ, P_WUK, P_WUV, P_WO, P_BX, P_WG, P_WU, P_WD, P_OUT, P_DBG = [16+2*i for i in range(12)]
sSL, sF = 40, 41
sE, sT, sW, sX, sK, sH = 42, 43, 44, 45, 46, 47
WS = "s[48:51]"; RA = "s[52:55]"; RB = "s[56:59]"; RC = "s[60:63]"
sQD, sA_ = 64, 65
A = Asm()
NFX = OPT.get('nfx', 3)
HW = '\ns_waitcnt vmcnt(0)' if OPT['hslow'] else ''
NQPART = [True]

def srd(base, ptr, size):
    A(f"s_mov_b32 s{base}, s{ptr}\ns_mov_b32 s{base+1}, s{ptr+1}\ns_mov_b32 s{base+2}, {size}\ns_mov_b32 s{base+3}, 0x20000")
def ST(i, mode=1):
    if OPT['stamps'] == mode or (OPT['stamps'] and i in (0, 8)): A(f"s_memrealtime s[{80+2*i}:{81+2*i}]")
def vr(a, n): return f"v[{a}:{a+n-1}]"
WIN = [0]
def dma(voff, rsrc, soff, flags="nt"):
    if WIN[0]: A(f"s_waitcnt vmcnt({WIN[0]-1})")
    A(f"buffer_load_dwordx4 v{voff}, {rsrc}, s{soff} offen {flags} lds")
def finish(): A("s_branch L_end")
def get_tag():
    A(f"s_add_u32 s{sE}, s{sE}, 1\ns_mul_i32 s{sT}, s{sE}, 0x9E3779B1\ns_xor_b32 s{sT}, s{sT}, 0x5BD1E995")
def rb16(dst, src):
    A(f"v_cvt_pk_bf16_f32 v{dst}, v{src}, v{src}\nv_lshlrev_b32 v{dst}, 16, v{dst}")
DPPF = "row_mask:0xf bank_mask:0xf"
QP1 = "quad_perm:[1,0,3,2] " + DPPF
def wave_sum_to_sgpr(v, s):
    for r in (8, 4, 2, 1): A(f"v_add_f32_dpp v{v}, v{v}, v{v} row_ror:{r} {DPPF}")
    A(f"v_add_f32_dpp v{v}, v{v}, v{v} row_bcast:15 row_mask:0xa bank_mask:0xf")
    A(f"v_add_f32_dpp v{v}, v{v}, v{v} row_bcast:31 row_mask:0xc bank_mask:0xf")
    A(f"v_readlane_b32 s{s}, v{v}, 63")
def fbits(x): return "0x%08x" % struct.unpack("<I", struct.pack("<f", x))[0]
def mf16(d, a, b, first): A(f"v_mfma_f32_16x16x32_bf16 {vr(d,4)}, {vr(a,4)}, {vr(b,4)}, {'0' if first else vr(d,4)}")
def mf32(d, a, b, first): A(f"v_mfma_f32_32x32x16_bf16 {vr(d,16)}, {vr(a,4)}, {vr(b,4)}, {'0' if first else vr(d,16)}")
def ones(v): A("\n".join(f"v_mov_b32 v{v+j}, -1" for j in range(4)))
LOG2E = 1.4426950408889634

HDR = """; Kernarg layout (104 bytes, pointers only, base s[0:1]):
; Compressed-KV attention in absorbed form:  q_abs = (LN(x) W_q) W_uk^T,  latent = softmax(q_abs c_kv^T) c_kv,
; s = (latent W_uv) W_o;  gate branch y = (gelu(LN(x) W_g) * LN(x) W_u) W_d;  out = x + s * silu(y).
; Hand-offs go through d_ws: words tagged with a per-launch value derived from d_ws[0], or areas cleared in this launch.
; Stores stay in the die's L2 only after a run-time check that all 16 partners report the same die id."""
for l_ in HDR.split("\n"): A.raw(l_)
A.raw("; @launch grid=(256,1,1) block=(512,1,1) lds=163840")
A.raw('.amdgcn_target "amdgcn-amd-amdhsa--gfx950"')
A.raw(f".text\n.globl {NAME}_kernel\n.p2align 8\n.type {NAME}_kernel,@function\n{NAME}_kernel:")
vL = 1
BIG = 16384
WQB = BIG + 108*1024
def late_common():
    A(f"""
    s_load_dwordx2 s[48:49], s[0:1], 96
    s_load_dwordx16 s[16:31], s[0:1], 0
    s_load_dwordx8 s[32:39], s[0:1], 64
    s_mov_b32 s50, 0x10000000
    s_mov_b32 s51, 0x20000
    s_mov_b32 s55, 0x20000
    """)
ST(0)
A(f"""
s_load_dwordx2 s[60:61], s[0:1], 24
s_lshr_b32 s3, s2, 7
s_cbranch_scc1 L_nq
v_lshrrev_b32 v3, 6, v0
v_and_b32 v{vL}, 63, v0
v_lshlrev_b32 v9, 4, v{vL}
v_lshl_add_u32 v2, v3, 13, v9
s_and_b32 s{sX}, s2, 7
s_lshl_b32 s68, s{sX}, 10
s_lshr_b32 s{sK}, s2, 3
s_lshl_b32 s69, s{sK}, 18
s_add_u32 s68, s68, s69
v_add_u32 v2, s68, v2
""")
if OPT['pfirst'] == 2:
    A(f"""
    s_getpc_b64 s[66:67]
    L_pc:
    v_lshl_add_u32 v4, v0, 4, s{sK}
    v_lshlrev_b32 v4, 7, v4
    v_cmp_gt_u32 vcc, L_exit-L_pc, v4
    s_and_saveexec_b64 s[68:69], vcc
    s_cbranch_execz L_pf1
    global_load_dword v247, v4, s[66:67]
    L_pf1:
    s_mov_b64 exec, -1
    """)
if OPT['pfirst'] == 1:
    A(f"s_getpc_b64 s[66:67]\nv_lshlrev_b32 v4, 1, v0\nglobal_load_dword v247, v4, s[66:67] offset:64")
A("s_waitcnt lgkmcnt(0)")
for i in range(4):
    A("global_load_dwordx4 v[248:251], v2, s[60:61]")
    if i < 3: A("v_add_u32 v2, 0x10000, v2")
PFB = f"""
v_readfirstlane_b32 s{sW}, v3
v_lshlrev_b32 v2, 7, v0
v_cmp_gt_u32 vcc, L_exit-L_pc, v2
s_and_saveexec_b64 s[68:69], vcc
s_cbranch_execz L_att
global_load_dword v247, v2, s[66:67]
s_branch L_att
"""
if OPT['pfirst'] == 2: A(f"v_readfirstlane_b32 s{sW}, v3\ns_branch L_att")
else:
    A("s_getpc_b64 s[66:67]\nL_pc:")
    A(PFB)
A(f"""
L_nq:
s_load_dwordx2 s[56:57], s[0:1], 16
s_load_dwordx2 s[52:53], s[0:1], 0
v_lshrrev_b32 v2, 6, v0
s_and_b32 s{sX}, s2, 7
s_mov_b32 s59, 0x20000
v_readfirstlane_b32 s{sW}, v2
s_cmp_ge_u32 s2, 256
s_cbranch_scc1 L_exit
s_movk_i32 s70, 128
v_bfe_u32 v2, v0, 3, 4
v_lshrrev_b32 v3, 8, v0
v_lshl_add_u32 v3, v3, 4, v2
v_lshrrev_b32 v11, 1, v2
v_and_b32 v11, 4, v11
v_and_or_b32 v11, v2, 2, v11
v_xor_b32 v11, v11, v0
v_and_b32 v11, 7, v11
v_lshlrev_b32 v11, 4, v11
v_and_or_b32 v12, v0, s70, v11
v_lshl_add_u32 v12, v3, 13, v12
s_bfe_u32 s{sA_}, s2, 0x20005
s_bfe_u32 s{sQD}, s2, 0x20003
s_lshl2_add_u32 s{sH}, s{sX}, s{sA_}
s_mul_i32 s72, s{sQD}, {18*65536}
s_lshl_b32 s73, s{sH}, 8
s_add_u32 s72, s72, s73
s_mov_b32 s58, {576*8192}
s_and_b32 s67, s{sW}, 1
s_bfe_u32 s69, s{sW}, 0x10001
s_and_b32 s71, s{sW}, 4
s_lshl1_add_u32 s71, s67, s71
s_add_u32 s71, s71, s69
s_lshl_b32 s71, s71, 10
s_add_u32 m0, s71, {WQB}
""")
A(f"""
v_and_b32 v{vL}, 63, v0
s_mul_i32 s66, s{sW}, 1152
v_lshl_add_u32 v13, v{vL}, 3, s66
v_lshl_add_u32 v14, v{vL}, 1, s66
s_lshr_b32 s70, s{sW}, 2
""")
ST(1, 5)
A("s_waitcnt lgkmcnt(0)")
ST(2, 5)
A("""
s_cbranch_scc1 L_nq_nox
global_load_dwordx2 v[20:21], v13, s[52:53]
global_load_dwordx2 v[22:23], v13, s[52:53] offset:512
global_load_ushort v24, v14, s[52:53] offset:1024
L_nq_nox:
""")
for i in range(4):
    dma(12, RB, 72)
    A(f"s_add_u32 s72, s72, {4*65536}\ns_add_u32 m0, s71, {WQB+8192*(i+1)}")
A(f"s_cmp_lg_u32 s70, 0\ns_cbranch_scc1 L_nq_d4")
dma(12, RB, 72)
A("L_nq_d4:")
ST(3, 5)
if OPT['nqal']:
    A("s_branch L_nq2\nL_att0:")
    A(PFB)
    A("L_nq2:")
late_common()
A(f"""
s_lshr_b32 s{sK}, s2, 3
v_lshlrev_b32 v9, 4, v{vL}
s_mov_b32 s62, {512*8192}
s_mov_b32 s63, 0x20000
""")
def lane_consts():
    A(f"v_lshrrev_b32 v2, 3, v{vL}\nv_and_b32 v3, 7, v{vL}\nv_lshrrev_b32 v4, 4, v{vL}\nv_bfe_u32 v5, v{vL}, 2, 2\nv_and_b32 v6, 3, v{vL}\nv_lshlrev_b32 v7, 4, v0\nv_mov_b32 v8, 0")
    if OPT['stamps']:
        for i in range(82 if OPT['stamps'] != 5 else 88, 102): A(f"s_mov_b32 s{i}, 0")

XN, XNS = 0, 1216
QL, QLS = 5120, 320
HB, HBS = 9728, 192
vTR = 13
vD = 28
def common_setup():
    lane_consts()
    A(f"""
    s_and_b32 s67, s{sW}, 1
    s_lshl_b32 s68, s67, 2
    v_and_b32 v11, 2, v2
    v_or_b32 v11, s68, v11
    v_xor_b32 v11, v11, v3
    v_lshlrev_b32 v11, 4, v11
    v_lshl_add_u32 v12, v2, 13, v11
    s_lshr_b32 s68, s{sW}, 1
    s_bfe_u32 s69, s{sW}, 0x10001
    s_lshr_b32 s70, s{sW}, 2
    """)
def common_setup2():
    A(f"""
    s_and_b32 s74, s{sW}, 3
    s_lshl_b32 s74, s74, 1
    v_lshrrev_b32 v{vTR}, 1, v6
    v_or_b32 v{vTR}, s74, v{vTR}
    v_and_b32 v14, 2, v5
    v_xor_b32 v{vTR}, v{vTR}, v14
    v_and_b32 v14, 1, v4
    v_lshlrev_b32 v15, 2, v14
    v_xor_b32 v{vTR}, v{vTR}, v15
    v_lshlrev_b32 v{vTR}, 4, v{vTR}
    v_lshl_add_u32 v{vTR}, v5, 7, v{vTR}
    v_and_b32 v15, 1, v6
    v_lshl_add_u32 v{vTR}, v15, 3, v{vTR}
    s_lshl_b32 s74, s70, 10
    s_add_u32 s74, s74, {BIG}
    v_add_u32 v15, s74, v{vTR}
    v_lshl_add_u32 v16, v4, 11, v15
    v_mul_u32_u24 v18, {XNS}, v6
    v_lshl_add_u32 v18, v4, 4, v18
    s_mov_b32 s78, 0x000f000f
    s_mov_b32 s79, 0x000f000f
    """)
def x_loads():
    A(f"""
    s_mul_i32 s66, s{sW}, 1152
    v_lshlrev_b32 v10, 3, v{vL}
    v_lshlrev_b32 v19, 1, v{vL}
    buffer_load_dwordx2 v[20:21], v10, {RA}, s66 offen
    buffer_load_dwordx2 v[22:23], v10, {RA}, s66 offen offset:512
    buffer_load_ushort v24, v19, {RA}, s66 offen offset:1024
    """)
def layernorm():
    e = list(range(56, 65))
    for i in range(4): A(f"v_lshlrev_b32 v{e[2*i]}, 16, v{20+i}\nv_and_b32 v{e[2*i+1]}, 0xffff0000, v{20+i}")
    A(f"""
    v_lshlrev_b32 v{e[8]}, 16, v24
    v_add_f32 v25, v{e[0]}, v{e[1]}
    v_add_f32 v26, v{e[2]}, v{e[3]}
    v_add_f32 v27, v{e[4]}, v{e[5]}
    v_add_f32 v28, v{e[6]}, v{e[7]}
    v_add_f32 v25, v25, v26
    v_add_f32 v27, v27, v28
    v_add_f32 v25, v25, v{e[8]}
    v_add_f32 v25, v25, v27
    """)
    wave_sum_to_sgpr(25, 74)
    A(f"v_mov_b32 v26, {fbits(1.0/576)}\nv_mul_f32 v26, s74, v26")
    A(f"v_sub_f32 v27, v{e[0]}, v26\nv_mul_f32 v25, v27, v27")
    for i in range(1, 9): A(f"v_sub_f32 v27, v{e[i]}, v26\nv_fmac_f32 v25, v27, v27")
    rb16(26, 26)
    for i in range(9): A(f"v_sub_f32 v{e[i]}, v{e[i]}, v26")
    wave_sum_to_sgpr(25, 74)
    A(f"v_mov_b32 v27, {fbits(1.0/576)}\nv_mul_f32 v27, s74, v27")
    rb16(27, 27)
    A(f"v_add_f32 v27, {fbits(1e-5)}, v27")
    rb16(27, 27)
    A("v_sqrt_f32 v27, v27")
    rb16(27, 27)
    A("v_rcp_f32 v27, v27")
    for i in range(0, 8, 2): A(f"v_cvt_pk_bf16_f32 v{20+i//2}, v{e[i]}, v{e[i+1]}")
    A(f"v_cvt_pk_bf16_f32 v24, v{e[8]}, v{e[8]}")
    for i in range(0, 8, 2): A(f"v_lshlrev_b32 v{e[i]}, 16, v{20+i//2}\nv_and_b32 v{e[i+1]}, 0xffff0000, v{20+i//2}")
    A(f"v_lshlrev_b32 v{e[8]}, 16, v24")
    for i in range(9): A(f"v_mul_f32 v{e[i]}, v{e[i]}, v27")
    for i in range(0, 8, 2): A(f"v_cvt_pk_bf16_f32 v{20+i//2}, v{e[i]}, v{e[i+1]}")
    A(f"v_cvt_pk_bf16_f32 v24, v{e[8]}, v{e[8]}")
    A(f"""
    s_mul_i32 s74, s{sW}, {XNS}
    v_add_u32 v10, s74, v10
    v_add_u32 v19, s74, v19
    ds_write_b64 v10, v[20:21] offset:{XN}
    ds_write_b64 v10, v[22:23] offset:{XN+512}
    ds_write_b16 v19, v24 offset:{XN+1024}
    """)
def clear_tail_inbox(vones):
    A(f"s_lshl_b32 s74, s{sH}, 14\ns_add_u32 s74, s74, {WS_H3B}")
    for i in range(4):
        A(f"buffer_store_dwordx4 {vr(vones,4)}, v9, {WS}, s74 offen sc1\nbuffer_store_dwordx4 {vr(vones,4)}, v9, {WS}, s74 offen offset:2048 sc1")
        if i < 3: A("s_add_u32 s74, s74, 4096")
    A(f"s_sub_u32 s74, s74, {3*4096}\nv_lshlrev_b32 v14, 11, v2\nv_lshl_add_u32 v14, v3, 4, v14")
    A(f"buffer_store_dwordx4 {vr(vones,4)}, v14, {WS}, s74 offen offset:1024 sc1")
def proof(sidx):
    A(f"""
    s_lshl_b32 s74, s{sidx}, 7
    s_add_u32 s74, s74, {WS_PF}
    v_mov_b32 v14, s{sT}
    v_lshlrev_b32 v17, 2, v{vL}
    s_mov_b32 exec_hi, 0
    buffer_store_dword v14, v17, {WS}, s74 offen sc1
    s_mov_b64 exec, -1
    """)
vXN, vG = 32, 104
def xn_frags():
    for kp in range(18):
        A(f"ds_read_b128 {vr(vXN+4*kp,4)}, v18 offset:{XN+kp*64}")
        if kp == 11: A("s_waitcnt lgkmcnt(4)")
def k_half(h, va, vb):
    for kp in range(9):
        a, off = (va, kp*8192) if kp < 8 else (vb, 0)
        A(f"ds_read_b64_tr_b16 {vr(vG+4*kp,2)}, v{a} offset:{off}")
        A(f"ds_read_b64_tr_b16 {vr(vG+4*kp+2,2)}, v{a} offset:{off+512}")
        if kp == 5: A("s_waitcnt lgkmcnt(6)")
    for kp in range(9):
        A(f"s_waitcnt lgkmcnt({min(15,2*(8-kp))})")
        mf16(vD, vG+4*kp, vXN+4*(9*h+kp), h == 0 and kp == 0)

QP, QPS = 5120, 272
UKB = BIG
sU = 76
def f_setup():
    A(f"""
    s_lshl_b32 s71, s{sA_}, 1
    s_add_u32 s71, s71, s{sQD}
    s_lshr_b32 s72, s{sQD}, 1
    s_cmp_eq_u32 s{sA_}, 3
    s_cselect_b32 s72, s72, 2
    s_sub_u32 s71, s71, s72
    s_mul_i32 s{sU}, s{sX}, 9
    s_add_u32 s{sU}, s{sU}, s71
    s_cmp_eq_u32 s69, 0
    s_cselect_b32 s60, s{P_WG}, s{P_WU}
    s_cselect_b32 s61, s{P_WG+1}, s{P_WU+1}
    s_mov_b32 s62, {576*9216}
    s_lshl_b32 s72, s67, 1
    s_lshl_b32 s71, s69, 2
    s_or_b32 s72, s72, s71
    v_bfe_u32 v14, v2, 1, 1
    v_or_b32 v14, s72, v14
    v_xor_b32 v14, v14, v3
    v_lshlrev_b32 v14, 4, v14
    v_mul_u32_u24 v12, 9216, v2
    v_add_u32 v12, v12, v14
    s_lshl_b32 s71, s70, 1
    s_add_u32 s71, s71, s67
    s_mul_i32 s72, s71, {8*9216}
    s_lshl_b32 s74, s{sU}, 7
    s_add_u32 s72, s72, s74
    s_lshl_b32 s71, s71, 1
    s_add_u32 s71, s71, s69
    s_lshl_b32 s71, s71, 10
    s_add_u32 s71, s71, {BIG}
    """)
def gu_dma(i):
    A(f"s_mov_b32 m0, s71\ns_add_u32 s71, s71, 8192")
    dma(12, RC, 72)
    A(f"s_add_u32 s72, s72, {32*9216}")
lane_consts()
A(f"""
v_lshl_add_u32 v12, v2, 13, v11
s_lshl_b32 s74, s69, 7
s_add_u32 s73, s73, s74
s_mov_b32 s54, 4608
v_lshlrev_b32 v10, 3, v{vL}
v_lshlrev_b32 v19, 1, v{vL}
s_waitcnt lgkmcnt(0)
s_load_dword s{sE}, s[48:49], 0
""")
ST(1, 2)
A(f"s_lshr_b32 s68, s{sW}, 1\ns_cmp_ge_u32 s{sQD}, 2\ns_cbranch_scc1 L_nq_fs")
A(f"""
s_lshl_b32 s71, s70, 3
s_add_u32 s71, s71, s67
s_lshl_b32 s72, s{sQD}, 5
s_add_u32 s72, s72, s71
s_lshl_b32 s72, s72, 16
s_add_u32 s72, s72, s73
s_lshl_b32 s71, s71, 1
s_add_u32 s71, s71, s69
s_lshl_b32 s71, s71, 10
s_add_u32 s71, s71, {UKB}
s_cmp_eq_u32 s70, 0
s_cbranch_scc1 L_nq_ln
""")
ones(24)
A(f"""
s_lshl_b32 s75, s{sW}, 12
s_lshl_b32 s74, s{sH}, 14
s_add_u32 s74, s74, s75
s_add_u32 s74, s74, {WS_H3B-16384}
buffer_store_dwordx4 v[24:27], v9, {WS}, s74 offen sc1
buffer_store_dwordx4 v[24:27], v9, {WS}, s74 offen offset:2048 sc1
s_mov_b64 exec, 0xff
buffer_store_dwordx4 v[24:27], v9, {WS}, s74 offen offset:1024 sc1
buffer_store_dwordx4 v[24:27], v9, {WS}, s74 offen offset:3072 sc1
s_lshl_b32 s75, s{sW}, 15
s_lshl_b32 s74, s{sH}, 10
s_add_u32 s74, s74, s75
s_lshl_b32 s75, s{sQD}, 9
s_add_u32 s74, s74, s75
s_add_u32 s74, s74, {WS_H2-4*32768}
s_mov_b32 exec_lo, -1
buffer_store_dwordx4 v[24:27], v9, {WS}, s74 offen sc1
s_mov_b64 exec, -1
s_branch L_nq_noln
L_nq_fs:
s_cmp_lg_u32 s{sK}, 30
s_cbranch_scc1 L_nq_fs2
s_cmp_eq_u32 s70, 0
s_cbranch_scc1 L_nq_ln
""")
ones(24)
A(f"""
s_lshl_b32 s75, s{sW}, 12
s_lshl_b32 s74, s{sH}, 14
s_add_u32 s74, s74, s75
s_add_u32 s74, s74, {WS_H3B-16384}
buffer_store_dwordx4 v[24:27], v9, {WS}, s74 offen sc1
buffer_store_dwordx4 v[24:27], v9, {WS}, s74 offen offset:2048 sc1
s_mov_b64 exec, 0xff
buffer_store_dwordx4 v[24:27], v9, {WS}, s74 offen offset:1024 sc1
buffer_store_dwordx4 v[24:27], v9, {WS}, s74 offen offset:3072 sc1
s_mov_b64 exec, -1
s_branch L_nq_noln
L_nq_fs2:
""")
f_setup()
A(f"s_cmp_lg_u32 s70, 0\ns_cbranch_scc1 L_nq_noln\nL_nq_ln:\ns_waitcnt vmcnt(5)")
ST(2, 2)
layernorm()
A("L_nq_noln:")
ST(3, 2)
common_setup2()
A(f"""
v_add_u32 v21, {WQB-BIG}, v16
v_and_b32 v14, 1, v4
v_lshl_add_u32 v17, v14, 11, v15
v_add_u32 v17, {WQB-BIG}, v17
s_mul_i32 s74, s{sQD}, 288
v_add_u32 v19, s74, v18
s_lshl_b32 s66, s{sH}, 13
s_add_u32 s66, s66, {WS_H1L}
s_lshl_b32 s75, s{sQD}, 11
s_add_u32 s75, s75, s66
s_lshl_b32 s77, s{sW}, 8
s_add_u32 s75, s75, s77
v_lshlrev_b32 v20, 6, v6
v_lshl_add_u32 v20, v4, 4, v20
v_cmp_gt_u32 vcc, 2, v4
s_cmp_lt_u32 s{sQD}, 2
s_cbranch_scc1 L_nq_uk
s_waitcnt vmcnt(0)
""")
for i in range(OPT['gap']): gu_dma(i)
A(f"""
s_branch L_nq_a
L_nq_uk:
s_waitcnt vmcnt(5)
s_cmp_lg_u32 s70, 0
s_cbranch_scc1 L_nq_uk2
s_waitcnt vmcnt(0)
L_nq_uk2:
""")
for i in range(4):
    A(f"s_mov_b32 m0, s71\ns_add_u32 s71, s71, 4096")
    dma(12, RC, 72)
    A(f"s_add_u32 s72, s72, {2*65536}")
A("L_nq_a:\ns_waitcnt lgkmcnt(0)")
ST(1); ST(5, 2)
A("s_barrier")
vA, vB = 64, 96
for kp in range(5):
    a = 21 if kp < 4 else 17
    A(f"ds_read_b64_tr_b16 {vr(vA+4*kp,2)}, v{a} offset:{kp*8192}")
    A(f"ds_read_b64_tr_b16 {vr(vA+4*kp+2,2)}, v{a} offset:{kp*8192+512}")
    A(f"ds_read_b128 {vr(vB+4*kp,4)}, v19 offset:{XN+kp*64}")
get_tag()
A(f"v_mov_b32 v25, s{sT}\nv_mov_b32 v27, s{sT}")
for kp in range(5):
    A(f"s_waitcnt lgkmcnt({3*(4-kp)})")
    if kp == 4:
        for j in range(4): A(f"v_cndmask_b32 v{vB+16+j}, 0, v{vB+16+j}, vcc")
    mf16(vD, vA+4*kp, vB+4*kp, kp == 0)
H1D = WS_H1L - WS_H1
def pq_addr():
    if OPT['cpq']:
        return f"""v_lshlrev_b32 v55, 10, v{vL}
        s_lshl_b32 s76, s{sX}, 7
        s_lshl_b32 s74, s{sA_}, 3
        s_add_u32 s76, s76, s74
        s_lshl_b32 s74, s{sQD}, 2
        s_add_u32 s76, s76, s74
        s_add_u32 s76, s76, {WS_PQ}"""
    return f"""v_lshlrev_b32 v55, 13, v2
    v_lshl_add_u32 v55, v3, 4, v55
    s_lshl_b32 s76, s{sH}, 8
    s_lshl_b32 s74, s{sQD}, 7
    s_add_u32 s76, s76, s74
    s_add_u32 s76, s76, {WS_PQ}"""
PQX = {1: "s_mov_b64 exec, 0xff", 2: "s_mov_b64 exec, 0xffff", 4: "s_mov_b32 exec_hi, 0", 8: "s_nop 0"}[OPT["rep"]]
PQST = f"{PQX}\nbuffer_store_dword v44, v55, {WS}, s76 offen sc1\ns_mov_b64 exec, -1" if OPT['cpq'] else f"buffer_store_dwordx4 v[44:47], v55, {WS}, s76 offen sc1"
A(f"""
v_and_b32 v52, 1, v2
v_and_b32 v53, 2, v3
v_lshl_or_b32 v53, v52, 2, v53
v_xor_b32 v53, v53, v4
v_lshlrev_b32 v53, 4, v53
v_lshl_add_u32 v53, v3, 7, v53
v_lshl_add_u32 v52, v52, 11, v53
v_cvt_pk_bf16_f32 v24, v{vD}, v{vD+1}
v_cvt_pk_bf16_f32 v26, v{vD+2}, v{vD+3}
s_mov_b64 exec, s[78:79]
buffer_store_dwordx4 v[24:27], v20, {WS}, s75 offen
s_sub_u32 s75, s75, {H1D}
s_cmp_lt_u32 s{sQD}, 2
s_cbranch_scc1 L_nq_b
buffer_store_dwordx4 v[24:27], v20, {WS}, s75 offen sc1
s_mov_b64 exec, -1
""")
ST(2); ST(6, 2)
A(f"s_barrier\ns_cmp_eq_u32 s{sK}, 30\ns_cbranch_scc1 L_T")
if OPT['ckh']:
    if OPT['c3x'] & 2: A(f"s_and_b32 s74, s{sU}, 7\ns_cmp_eq_u32 s74, 3\ns_cbranch_scc1 L_F")
    nr = 4*OPT['ckh']
    sh = int(math.log2(nr))
    A(f"""
    s_mov_b32 s56, s{P_CKV}
    s_mov_b32 s57, s{P_CKV+1}
    s_lshl_b32 s74, s{sA_}, 1
    s_add_u32 s74, s74, s{sQD}
    s_sub_u32 s74, s74, 2
    s_min_u32 s74, s74, 6
    s_lshl_b32 s74, s74, 3
    s_add_u32 s74, s74, s{sW}
    s_lshr_b32 s77, s74, {sh}
    s_lshl_b32 s77, s77, 15
    s_and_b32 s74, s74, {nr-1}
    s_lshl_b32 s74, s74, 10
    s_add_u32 s74, s74, s77
    s_lshl_b32 s75, s{sX}, 21
    s_add_u32 s74, s74, s75
    s_add_u32 s74, s74, {(32-nr)*1024}
    s_add_u32 s58, s75, {1 << 21}
    """)
    n = -(-64*nr // 56)
    for i in range(n):
        A(f"buffer_load_dwordx4 v[248:251], v9, {RB}, s74 offen")
        if i < n-1: A(f"s_add_u32 s74, s74, {(56//nr)*32768}")
A(f"s_branch L_F\nL_nq_b:\ns_mov_b64 exec, -1")
ST(2); ST(6, 2)
if OPT['pearly']:
    A(f"s_waitcnt vmcnt(5)\ns_barrier\ns_lshl_b32 s77, s{sQD}, 1\ns_cmp_lg_u32 s{sW}, s77\ns_cbranch_scc1 L_pe\n{pq_addr()}\nv_mov_b32 v44, s{sT}\n{PQST}\nL_pe:")
    A(f"s_add_u32 s71, s71, 16384\ns_add_u32 s72, s72, {8*65536}")
else:
    A(f"s_barrier\ns_add_u32 s71, s71, 16384\ns_add_u32 s72, s72, {8*65536}")
for i in range(4):
    A(f"s_mov_b32 m0, s71\ns_add_u32 s71, s71, 4096")
    dma(12, RC, 72)
    if i < 3: A(f"s_add_u32 s72, s72, {2*65536}")
A(f"""
s_mul_i32 s74, s68, {4*QPS}
s_lshl_b32 s77, s67, 7
s_add_u32 s74, s74, s77
v_mul_u32_u24 v22, {QPS}, v5
v_lshl_add_u32 v22, v4, 5, v22
v_lshl_add_u32 v22, v6, 3, v22
v_add_u32 v22, s74, v22
s_lshl_b32 s77, s{sW}, 13
s_add_u32 s77, s77, {UKB}
v_add_u32 v52, s77, v52
v_xor_b32 v53, 64, v52
v_and_b32 v23, 15, v{vL}
v_mul_u32_u24 v23, {QPS}, v23
v_lshl_add_u32 v23, v4, 4, v23
s_lshl_b32 s72, s{sH}, 10
s_lshl_b32 s74, s{sQD}, 9
s_add_u32 s72, s72, s74
s_lshl_b32 s74, s{sW}, 6
s_add_u32 s72, s72, s74
s_add_u32 s72, s72, {WS_H2}
v_and_b32 v21, 1, v5
v_lshlrev_b32 v54, 15, v6
{pq_addr()}
v_mov_b32 v44, s{sT}
v_mov_b32 v45, s{sT}
v_mov_b32 v46, s{sT}
v_mov_b32 v47, s{sT}
v_lshl_add_u32 v54, v21, 5, v54
v_lshl_add_u32 v54, v4, 3, v54
s_sub_u32 s71, s66, {H1D}
s_mov_b32 s77, 0
L_h1poll:
s_cmp_lg_u32 s77, 6
s_cbranch_scc1 L_h1ng
s_mov_b64 exec, s[78:79]
buffer_store_dwordx4 v[24:27], v20, {WS}, s75 offen sc1
s_mov_b64 exec, -1
L_h1ng:
s_and_b32 s74, s77, 9
s_cmp_eq_u32 s74, 9
s_cselect_b32 s74, s71, s66
buffer_load_dwordx4 v[48:51], v7, {WS}, s74 offen sc1
s_add_u32 s77, s77, 1
s_waitcnt vmcnt(0)
v_xor_b32 v49, s{sT}, v49
v_xor_b32 v51, s{sT}, v51
v_or_b32 v49, v49, v51
v_cmp_ne_u32 vcc, 0, v49
s_cmp_ge_u32 s77, {POLL_MAX}
s_cbranch_scc1 L_h1done
s_cbranch_vccnz L_h1poll
L_h1done:
v_mov_b32 v49, v50
ds_write_b64 v22, v[48:49] offset:{QP}
s_cmp_gt_u32 s77, 6
s_cbranch_scc1 L_h1sent
s_mov_b64 exec, s[78:79]
buffer_store_dwordx4 v[24:27], v20, {WS}, s75 offen sc1
s_mov_b64 exec, -1
L_h1sent:
""")
A(f"L_h1np:\nv_cmp_ne_u32 vcc, 0, v21\ns_waitcnt lgkmcnt(0)")
ST(3); ST(7, 2)
if OPT['pearly']: A("s_barrier")
else: A(f"s_barrier\ns_cmp_lg_u32 s{sW}, 0\ns_cbranch_scc1 L_nopq\n{PQST}\nL_nopq:")
vUK, vD1 = 64, 56
for kp in range(4):
    A(f"ds_read_b128 {vr(vB+4*kp,4)}, v23 offset:{QP+kp*64}")
    for tl in range(2):
        A(f"ds_read_b128 {vr(vUK+16*tl+4*kp,4)}, v{52+(kp&1)} offset:{tl*4096+(kp>>1)*1024}")
A(f"s_mov_b32 s74, {fbits(LOG2E/math.sqrt(128.0))}")
for kp in range(4):
    A(f"s_waitcnt lgkmcnt({9-3*kp+1})")
    mf16(vD, vUK+4*kp, vB+4*kp, kp == 0)
    A(f"s_waitcnt lgkmcnt({9-3*kp})")
    mf16(vD1, vUK+16+4*kp, vB+4*kp, kp == 0)
for j in range(4): A(f"v_cndmask_b32 v{60+j}, v{vD1+j}, v{vD+j}, vcc")
for j in range(4): A(f"v_cndmask_b32 v{vD+j}, v{vD+j}, v{vD1+j}, vcc")
for j in range(4): A(f"v_add_f32_dpp v{vD+j}, v{60+j}, v{vD+j} row_ror:4 {DPPF}")
for j in range(4): A(f"v_add_f32_dpp v{vD+j}, v{vD+j}, v{vD+j} row_ror:8 {DPPF}")
for j in range(4): A(f"v_mul_f32 v{vD+j}, s74, v{vD+j}")
A(f"""
v_cvt_pk_bf16_f32 v48, v{vD}, v{vD+1}
v_cvt_pk_bf16_f32 v49, v{vD+2}, v{vD+3}
v_min_u32 v48, -2, v48
v_min_u32 v49, -2, v49
s_mov_b32 exec_lo, 0x00ff00ff
s_mov_b32 exec_hi, 0x00ff00ff
buffer_store_dwordx2 v[48:49], v54, {WS}, s72 offen sc1
s_mov_b64 exec, -1
""")
ST(4); ST(9, 2)
A(f"""
s_barrier
s_cmp_lt_u32 s{sA_}, 3
s_cbranch_scc1 L_TH
""")
f_setup()
for i in range(OPT['gap']): gu_dma(i)
A("s_branch L_F")

def wide_voffset(v):
    A(f"v_mul_u32_u24 v{v}, 1152, v2\nv_add_u32 v{v}, v{v}, v11")
ZR = 15360
def publish_setup(stride):
    A(f"""
    s_mul_i32 s74, s{sW}, {stride}
    s_add_u32 s72, s72, s74
    v_mul_u32_u24 v20, {8*stride}, v5
    v_lshl_add_u32 v20, v4, 5, v20
    v_lshl_add_u32 v20, v6, 3, v20
    v_lshlrev_b32 v232, 2, v{vL}
    ds_write_b32 v232, v8 offset:{ZR}
    """)
def masked_addrs(vreal, base):
    A(f"v_mov_b32 v236, {ZR-base}")
    for i in range(4): A(f"v_cmp_eq_u32 vcc, {i}, v5\nv_cndmask_b32 v{232+i}, v236, v{vreal}, vcc")
def wide_dma(n, rsrc, slow=0):
    for i in range(n):
        A(f"s_mov_b32 m0, s71\ns_add_u32 s74, s72, 512")
        dma(14, rsrc, 72)
        if 2*i < slow: A("s_waitcnt vmcnt(0)")
        A(f"s_add_u32 s75, s71, 4096\ns_mov_b32 m0, s75\ns_add_u32 s72, s72, {16*1152}")
        dma(14, rsrc, 74)
        if 2*i+1 < slow: A("s_waitcnt vmcnt(0)")
        A(f"s_add_u32 s71, s71, 16384")
def rb_dma(base, rsrc, slab):
    A(f"s_mul_i32 s72, s{sW}, {8*1152}\ns_add_u32 s72, s72, s{slab}\ns_lshl_b32 s71, s{sW}, 13\ns_add_u32 s71, s71, {base}")
    for l in range(8):
        A(f"s_add_u32 m0, s71, {l*1024}\ns_add_u32 s74, s72, {l*128}")
        dma(14, rsrc, 74)
def wide_frag_addrs(base8, shift):
    A(f"v_lshl_add_u32 v16, v4, 13, v15")
    if shift: A(f"v_add_u32 v16, {shift}, v16")
    A(f"""
    v_add_u32 v17, 0x10000, v16
    v_lshl_add_u32 v18, v4, 10, v{vTR}
    v_add_u32 v18, {base8}, v18
    """)
def wide_frag_reads(vdst, nk):
    n = 0
    for i in range(4):
        for kp in range(nk):
            a = 16 if kp < 2 else 17
            off = (kp & 1)*32768 + i*2048
            d = vdst + (i*nk + kp)*4
            A(f"ds_read_b64_tr_b16 {vr(d,2)}, v{a} offset:{off}")
            A(f"ds_read_b64_tr_b16 {vr(d+2,2)}, v{a} offset:{off+512}")
            n += 2
            if n % 12 == 0: A("s_waitcnt lgkmcnt(4)")
    A("s_waitcnt lgkmcnt(4)")
    for kp in range(nk):
        d = vdst + (4*nk + kp)*4
        A(f"ds_read_b64_tr_b16 {vr(d,2)}, v18 offset:{kp*4096}")
        A(f"ds_read_b64_tr_b16 {vr(d+2,2)}, v18 offset:{kp*4096+512}")
def wide_gemm(vW, nk, vBf, base, stride, lab):
    acc, acc5 = 240, 244
    nb = 8
    order = [(i, kp) for i in (1, 2, 3, 0) for kp in range(nk)]
    def rd(n):
        i, kp = order[n]
        A(f"ds_read_b128 {vr(vBf+4*(n % nb),4)}, v{232+i} offset:{base+kp*64}")
    for n in range(min(nb, len(order))): rd(n)
    A(f"s_add_u32 s74, s72, {32*stride}\ns_cmp_lg_u32 s70, 0")
    for n, (i, kp) in enumerate(order):
        A(f"s_waitcnt lgkmcnt({min(nb-1, len(order)-1-n)})")
        mf16(acc, vW+(i*nk+kp)*4, vBf+4*(n % nb), n == 0)
        if n + nb < len(order): rd(n + nb)
    A(f"s_cbranch_scc1 {lab}_a")
    for kp in range(nk): mf16(acc5, vW+(4*nk+kp)*4, vBf+4*((3*nk+kp) % nb), kp == 0)
    A(f"""
    v_cvt_pk_bf16_f32 v{acc}, v{acc}, v{acc+1}
    v_cvt_pk_bf16_f32 v{acc+1}, v{acc+2}, v{acc+3}
    buffer_store_dwordx2 {vr(acc,2)}, v20, {WS}, s72 offen sc1
    v_cvt_pk_bf16_f32 v{acc5}, v{acc5}, v{acc5+1}
    v_cvt_pk_bf16_f32 v{acc5+1}, v{acc5+2}, v{acc5+3}
    s_mov_b64 exec, s[78:79]
    buffer_store_dwordx2 {vr(acc5,2)}, v20, {WS}, s74 offen sc1
    s_mov_b64 exec, -1
    s_branch {lab}_b
    {lab}_a:
    s_nop 6
    v_cvt_pk_bf16_f32 v{acc}, v{acc}, v{acc+1}
    v_cvt_pk_bf16_f32 v{acc+1}, v{acc+2}, v{acc+3}
    buffer_store_dwordx2 {vr(acc,2)}, v20, {WS}, s72 offen sc1
    {lab}_b:
    """)
def tail_prologue(lab, slot_code):
    common_setup2()
    A(f"s_mul_i32 s{sSL}, s{sX}, 7\n{slot_code}\ns_waitcnt lgkmcnt(0)")
    get_tag()
    A(f"s_cmp_lg_u32 s{sW}, 7\ns_cbranch_scc1 {lab}")
    ones(24)
    clear_tail_inbox(24)
    A("s_waitcnt vmcnt(0)")
    proof(sSL)
    A(f"{lab}:")

XL, CT, CTS = 0, 8192, 320
TS = 128*128
vUV, vWO = 32, 96
def t_setup():
    A(f"""
    v_lshlrev_b32 v21, 11, v3
    v_xor_b32 v22, v3, v4
    v_lshlrev_b32 v22, 4, v22
    v_lshl_add_u32 v22, v2, 11, v22
    v_and_b32 v12, 1, v2
    v_lshl_or_b32 v12, v12, 2, v4
    v_lshrrev_b32 v14, 1, v3
    v_xor_b32 v12, v12, v14
    v_lshlrev_b32 v12, 4, v12
    v_lshl_add_u32 v12, v3, 7, v12
    v_lshlrev_b32 v14, 3, v3
    s_lshl_b32 s66, s{sH}, 14
    s_add_u32 s66, s66, {WS_H3B}
    s_lshl_b32 s73, s{sW}, 7
    s_add_u32 s73, s73, s66
    s_lshl_b32 s72, s{sSL}, 7
    s_add_u32 s72, s72, {WS_H5}
    v_lshrrev_b32 v23, 1, v3
    v_mul_u32_u24 v23, {CTS}, v23
    v_lshl_add_u32 v23, v4, 3, v23
    s_lshl_b32 s74, s{sW}, 5
    v_add_u32 v23, s74, v23
    v_mul_u32_u24 v10, {CTS}, v6
    v_lshl_add_u32 v10, v4, 4, v10
    """)
    publish_setup(TS)
    masked_addrs(10, CT)
def tg_check(lab, early):
    if not OPT['tg']: return ""
    ev = "\n".join(f"s_xor_b32 s{60+i if i < 4 else 12+i}, s{60+i if i < 4 else 12+i}, s{sT}" for i in range(0))
    body = "s_load_dwordx8 s[4:11], s[12:13], 0 glc\ns_waitcnt lgkmcnt(0)\n" + \
           "\n".join(f"s_xor_b32 s{4+i}, s{4+i}, s{sT}" for i in range(8)) + \
           "\ns_or_b64 s[4:5], s[4:5], s[6:7]\ns_or_b64 s[8:9], s[8:9], s[10:11]\ns_or_b64 s[4:5], s[4:5], s[8:9]\n"
    if early:
        return f"""s_lshr_b32 s14, s{sH}, 1
        s_lshl_b32 s14, s14, 9
        s_lshl_b32 s15, s68, 7
        s_add_u32 s14, s14, s15
        s_add_u32 s14, s14, {WS_TG}
        s_add_u32 s12, s48, s14
        s_addc_u32 s13, s49, 0
        v_mov_b32 v24, -1
        {body}
        s_cselect_b32 s14, 1, 0
        s_cbranch_scc1 {lab}e2"""
    return f"""s_cmp_eq_u32 s14, 0
        s_cbranch_scc1 {lab}chk
        {lab}tp:
        s_add_u32 s77, s77, 1
        s_cmp_ge_u32 s77, {POLL_MAX}
        s_cbranch_scc1 {lab}poll
        {body}
        s_cbranch_scc1 {lab}tp
        s_branch {lab}poll"""
def t_early(lab):
    A(f"""
    v_min_u32 v238, 35, v{vL}
    v_lshlrev_b32 v238, 7, v238
    s_mov_b32 s76, {WS_PF}
    v_mov_b32 v28, 0
    v_mov_b32 v29, 0
    s_cmp_lg_u32 s{sW}, 0
    s_cbranch_scc1 {lab}e1
    buffer_load_dword v239, v238, {WS}, s76 offen sc1
    {lab}e1:
    {tg_check(lab, True)}
    buffer_load_dwordx4 v[24:27], v22, {WS}, s73 offen sc1
    s_cmp_lg_u32 s{sW}, 7
    s_cbranch_scc1 {lab}e2
    s_mov_b64 exec, 0xff
    buffer_load_dwordx2 v[28:29], v21, {WS}, s66 offen offset:1024 sc1
    s_mov_b64 exec, -1
    {lab}e2:
    """)
def t_tail(nk, lab):
    A(f"""
    s_mov_b32 s77, 0
    s_cmp_lg_u32 s{sW}, 0
    s_cbranch_scc1 {lab}pd
    {lab}pp:
    v_cmp_ne_u32 vcc, s{sT}, v239
    s_add_u32 s77, s77, 1
    s_cbranch_vccz {lab}pd
    s_cmp_ge_u32 s77, {POLL_MAX}
    s_cbranch_scc1 {lab}pd
    buffer_load_dword v239, v238, {WS}, s76 offen sc1
    s_waitcnt vmcnt(0)
    s_branch {lab}pp
    {lab}pd:
    """)
    ST(5); ST(7, 3)
    A(f"""
    s_mov_b32 s77, 0
    {tg_check(lab, False)}
    s_branch {lab}chk
    {lab}poll:
    buffer_load_dwordx4 v[24:27], v22, {WS}, s73 offen sc1
    s_cmp_lg_u32 s{sW}, 7
    s_cbranch_scc1 {lab}ns
    s_mov_b64 exec, 0xff
    buffer_load_dwordx2 v[28:29], v21, {WS}, s66 offen offset:1024 sc1
    s_mov_b64 exec, -1
    {lab}ns:
    s_add_u32 s77, s77, 1
    s_waitcnt vmcnt(0)
    {lab}chk:
    v_max3_u32 v30, v24, v25, v26
    v_max3_u32 v30, v30, v27, v28
    v_max_u32 v30, v30, v29
    v_cmp_eq_u32 vcc, -1, v30
    s_cmp_ge_u32 s77, {POLL_MAX}
    s_cbranch_scc1 {lab}done
    s_cbranch_vccnz {lab}poll
    {lab}done:
    ds_write_b128 v7, v[24:27] offset:{XL}
    s_cmp_lg_u32 s{sW}, 7
    s_cbranch_scc1 {lab}nw
    s_mov_b64 exec, 0xff
    ds_write_b64 v14, v[28:29] offset:{CT+2048}
    s_mov_b64 exec, -1
    {lab}nw:
    s_waitcnt lgkmcnt(0)
    """)
    ST(6)
    if nk == 4 and OPT['wb'] == 12: A(f"s_cmp_ge_u32 s{sX}, {NFX}\ns_cbranch_scc1 {lab}nwb\ns_cmp_lg_u32 s{sW}, 6\ns_cbranch_scc1 {lab}nwb\nbuffer_wbl2 sc1\n{lab}nwb:")
    if nk == 4 and OPT['wb'] == 2: A(f"s_cmp_lg_u32 s{sW}, 6\ns_cbranch_scc1 {lab}nwb\nbuffer_wbl2 sc1\n{lab}nwb:")
    A("s_barrier")
    if nk == 2 and OPT['fv'] == 2:
        A(f"""
        s_cmp_eq_u32 s70, 0
        s_cbranch_scc1 {lab}douv
        s_cmp_ge_u32 s{sF}, 36
        s_cbranch_scc1 {lab}nouv
        s_lshl_b32 s74, s{sF}, 14
        s_lshl_b32 s75, s{sW}, 12
        s_add_u32 s74, s74, s75
        s_add_u32 s74, s74, {WS_H5-16384}
        """)
        for i in range(4): A(f"buffer_load_dwordx4 {vr(32+4*i,4)}, v9, {WS}, s74 offen offset:{1024*i} sc1")
        A(f"s_branch {lab}nouv\n{lab}douv:")
    elif nk == 2: A(f"s_cmp_lg_u32 s70, 0\ns_cbranch_scc1 {lab}nouv")
    vX = 176
    A(f"ds_read_b64 v[28:29], v14 offset:{CT+2048}")
    for i in range(8): A(f"ds_read_b128 {vr(vX+4*i,4)}, v12 offset:{XL+i*1024}")
    a0, a1 = 24, 208
    for i in range(8):
        A(f"s_waitcnt lgkmcnt({7-i})")
        mf16(a0, vUV+8*i, vX+4*i, i == 0)
        mf16(a1, vUV+8*i+4, vX+4*i, i == 0)
        OM = [f"v_max_f32_dpp v30, v28, v28 {QP1}", "v_sub_f32 v30, v28, v30", "v_exp_f32 v30, v30", "v_mul_f32 v31, v30, v29",
              f"v_add_f32_dpp v31, v31, v31 {QP1}", "v_rcp_f32 v31, v31", "v_mul_f32 v30, v30, v31"]
        if i < 7: A(OM[i])
    for j in range(4): A(f"v_add_f32_dpp v{a0+j}, v{a1+j}, v{a0+j} row_ror:8 {DPPF}")
    for j in range(4): A(f"v_mul_f32 v{a0+j}, v{a0+j}, v30")
    for j in range(4): A(f"v_add_f32_dpp v{a0+j}, v{a0+j}, v{a0+j} {QP1}")
    A(f"""
    v_cvt_pk_bf16_f32 v28, v{a0}, v{a0+1}
    v_cvt_pk_bf16_f32 v29, v{a0+2}, v{a0+3}
    s_mov_b32 exec_lo, 0x00550055
    s_mov_b32 exec_hi, 0x00550055
    ds_write_b64 v23, v[28:29] offset:{CT}
    s_mov_b64 exec, -1
    s_waitcnt lgkmcnt(0)
    {lab}nouv:
    s_barrier
    """)
    wide_gemm(vWO, nk, vX, CT, TS, lab+"g")
    ST(7)
    if nk == 4 and OPT['epe']:
        A(f"s_lshl_b32 s74, s{sX}, 3\ns_add_u32 s74, s74, s{sW}\ns_cmp_lg_u32 s74, 63\ns_cbranch_scc1 L_end\ns_mov_b64 exec, 1\nv_mov_b32 v66, s{sE}\nbuffer_store_dword v66, v8, {WS}, 0 offen sc1\ns_mov_b64 exec, -1")
    if nk == 4 and OPT['wb'] == 3: A(f"s_cmp_lg_u32 s{sW}, 6\ns_cbranch_scc1 L_end\nbuffer_wbl2 sc1")
    if nk == 2: fin_role()
    else: finish()

RED = BIG
def fin_setup():
    A(f"s_sub_u32 s{sF}, s{sSL}, s{sX}\ns_lshl1_add_u32 s{sF}, s{sF}, s70")
    srd(52, P_X, 4608)
    srd(56, P_OUT, 4608)
    A(f"""
    v_and_b32 v212, 1, v4
    v_lshl_add_u32 v212, v3, 1, v212
    v_and_b32 v213, 3, v212
    v_mul_u32_u24 v213, 1152, v213
    v_lshrrev_b32 v212, 2, v212
    v_lshl_add_u32 v213, v212, 3, v213
    s_min_u32 s75, s{sF}, 35
    s_lshl_b32 s75, s75, 5
    v_add_u32 v213, s75, v213
    buffer_load_dwordx2 v[214:215], v213, {RA}, 0 offen
    v_and_b32 v212, 1, v3
    v_lshlrev_b32 v212, 4, v212
    v_mov_b32 v216, 0x3f80
    v_lshlrev_b32 v216, v212, v216
    v_bfe_u32 v212, v{vL}, 1, 3
    """)
    for d in range(8): A(f"v_cmp_eq_u32 vcc, {d}, v212\nv_cndmask_b32 v{220+d}, 0, v216, vcc")
def fin_role():
    A(f"""
    s_cmp_ge_u32 s{sF}, 36
    s_cbranch_scc1 L_end
    s_and_b32 s66, s{sW}, 3
    s_lshl_b32 s72, s{sF}, 14
    s_lshl_b32 s73, s66, 12
    s_add_u32 s72, s72, s73
    s_add_u32 s72, s72, {WS_H5}
    s_mov_b32 s76, 15
    s_mov_b32 s77, 0
    {"s_waitcnt vmcnt(0)" if OPT['fv'] == 1 else ""}
    {"s_branch L_finchk" if OPT['fv'] == 2 else ""}
    L_finpoll:
    """)
    for i in range(4):
        A(f"s_bitcmp1_b32 s76, {i}\ns_cbranch_scc0 L_fi{i}\nbuffer_load_dwordx4 {vr(32+4*i,4)}, v9, {WS}, s72 offen offset:{1024*i} sc1\nL_fi{i}:")
    A("s_add_u32 s77, s77, 1\ns_waitcnt vmcnt(0)")
    if OPT['fv'] == 2: A("s_branch L_finchk2\nL_finchk:\ns_waitcnt vmcnt(1)\nL_finchk2:")
    for i in range(4): A(f"v_max3_u32 v{48+i}, v{32+4*i}, v{33+4*i}, v{34+4*i}")
    for i in range(4): A(f"v_max_u32 v{48+i}, v{48+i}, v{35+4*i}")
    for i in range(4): A(f"v_cmp_eq_u32 vcc, -1, v{48+i}\ns_cbranch_vccnz L_fc{i}\ns_bitset0_b32 s76, {i}\nL_fc{i}:")
    A(f"""
    s_cmp_ge_u32 s77, {POLL_MAX}
    s_cbranch_scc1 L_findone
    s_cmp_lg_u32 s76, 0
    s_cbranch_scc1 L_finpoll
    L_findone:
    s_cmp_ge_u32 s66, 2
    s_cbranch_scc1 L_fin_g
    """)
    for i in range(3): mf16(52, 220, 32+4*i, i == 0)
    A(f"s_cmp_eq_u32 s66, 1\ns_cbranch_scc1 L_fin_g3")
    mf16(52, 220, 44, False)
    A("s_branch L_fin_w\nL_fin_g:")
    for i in range(3): mf16(52, 224, 32+4*i, i == 0)
    A("L_fin_g3:")
    mf16(52, 224, 44, False)
    A(f"L_fin_w:\ns_nop 7\nds_write_b128 v7, v[52:55] offset:{RED}\ns_waitcnt lgkmcnt(0)")
    ST(9)
    A(f"s_barrier\ns_cmp_lg_u32 s66, 0\ns_cbranch_scc1 L_end")
    for i in range(4): A(f"ds_read_b128 {vr(64+4*i,4)}, v7 offset:{RED+i*1024}")
    A(f"s_mov_b32 s76, {fbits(-LOG2E)}")
    A("v_lshlrev_b32 v32, 16, v214\nv_and_b32 v33, 0xffff0000, v214\nv_lshlrev_b32 v34, 16, v215\nv_and_b32 v35, 0xffff0000, v215")
    A("s_waitcnt lgkmcnt(2)")
    for j in range(4): A(f"v_add_f32 v{64+j}, v{64+j}, v{68+j}")
    A("s_waitcnt lgkmcnt(0)")
    for j in range(4): A(f"v_add_f32 v{72+j}, v{72+j}, v{76+j}")
    for j in range(4): A(f"v_add_f32 v{64+j}, v{64+j}, v{72+j}")
    for j in range(4): A(f"v_add_f32_dpp v{64+j}, v{64+j}, v{64+j} row_ror:8 {DPPF}")
    for j in range(4): rb16(64+j, 64+j)
    for j in range(4): A(f"v_mul_f32 v{76+j}, s76, v{64+j}")
    for j in range(4): A(f"v_exp_f32 v{76+j}, v{76+j}")
    for j in range(4): A(f"v_add_f32 v{76+j}, 1.0, v{76+j}")
    for j in range(4): A(f"v_rcp_f32 v{76+j}, v{76+j}")
    for j in range(4): A(f"v_mul_f32 v{76+j}, v{64+j}, v{76+j}")
    A("v_cvt_pk_bf16_f32 v76, v76, v77\nv_cvt_pk_bf16_f32 v77, v78, v79")
    A("v_permlane32_swap_b32 v76, v68\nv_permlane32_swap_b32 v77, v69")
    A("v_lshlrev_b32 v72, 16, v68\nv_and_b32 v73, 0xffff0000, v68\nv_lshlrev_b32 v74, 16, v69\nv_and_b32 v75, 0xffff0000, v69")
    for j in range(4): A(f"v_mul_f32 v{64+j}, v{64+j}, v{72+j}")
    A("v_cvt_pk_bf16_f32 v68, v64, v65\nv_cvt_pk_bf16_f32 v69, v66, v67")
    A("v_lshlrev_b32 v64, 16, v68\nv_and_b32 v65, 0xffff0000, v68\nv_lshlrev_b32 v66, 16, v69\nv_and_b32 v67, 0xffff0000, v69")
    for j in range(4): A(f"v_add_f32 v{64+j}, v{64+j}, v{32+j}")
    A(f"""
    v_cvt_pk_bf16_f32 v64, v64, v65
    v_cvt_pk_bf16_f32 v65, v66, v67
    s_mov_b64 exec, 0x00ff00ff
    buffer_store_dwordx2 v[64:65], v213, {RB}, 0 offen {["", "sc1", "nt"][OPT['osc']]}
    s_cmp_lg_u32 s{sF}, {0 if not OPT['epe'] else 77}
    s_cbranch_scc1 L_fin_noep
    s_mov_b64 exec, 1
    v_mov_b32 v66, s{sE}
    buffer_store_dword v66, v8, {WS}, 0 offen sc1
    L_fin_noep:
    s_mov_b64 exec, -1
    """)
    finish()

def hb_code():
    if not OPT['hb']: return ""
    return f"""s_lshr_b32 s71, s66, 1
    s_add_u32 s71, s71, 48
    s_mul_i32 s71, s71, {8*9216}
    s_add_u32 s74, s73, 6
    s_lshl_b32 s74, s74, 7
    s_add_u32 s71, s71, s74
    buffer_load_dwordx4 v[248:251], v14, {RA}, s71 offen"""
WIN[0] = OPT["wt"]
A("L_TH:")
SLOT = f"s_lshl_b32 s74, s{sA_}, 1\ns_add_u32 s{sSL}, s{sSL}, s74\ns_add_u32 s{sSL}, s{sSL}, s{sQD}"
A(f"""
s_lshl_b32 s66, s{sA_}, 1
s_add_u32 s66, s66, s{sQD}
s_mov_b32 s{sF}, 99
s_cmp_eq_u32 s66, 3
s_cbranch_scc1 L_f_go
s_cmp_gt_u32 s66, 3
s_subb_u32 s66, s66, 0
s_lshl_b32 s66, s66, 3
s_add_u32 s{sF}, s66, s{sX}
s_add_u32 s66, s66, s{sW}
""")
def h5_clear(lab):
    A(f"s_cmp_ge_u32 s{sF}, 36\ns_cbranch_scc1 {lab}")
    ones(24)
    A(f"s_lshl_b32 s74, s{sF}, 14\ns_lshl_b32 s75, s{sW}, 11\ns_add_u32 s74, s74, s75\ns_add_u32 s74, s74, {WS_H5}")
    for i in range(2): A(f"buffer_store_dwordx4 v[24:27], v9, {WS}, s74 offen offset:{i*1024} sc1")
    if not OPT['aclr']:
        A(f"s_waitcnt vmcnt(0)\ns_barrier\ns_cmp_lg_u32 s{sW}, 0\ns_cbranch_scc1 {lab}")
        proof(sF)
    A(f"{lab}:")
if not OPT['fclr']: h5_clear("L_noclr2")
A("L_noclr:")
if OPT['help']:
    A(f"""
    s_cmp_eq_u32 s67, 0
    s_cselect_b32 s52, s{P_WG}, s{P_WU}
    s_cselect_b32 s53, s{P_WG+1}, s{P_WU+1}
    s_mov_b32 s54, {576*9216}
    s_lshr_b32 s71, s66, 1
    s_add_u32 s71, s71, 32
    s_mul_i32 s71, s71, {8*9216}
    s_sub_u32 s72, 3, s{sX}
    s_and_b32 s72, s72, 7
    s_mul_i32 s73, s{sX}, 9
    s_lshl_b32 s73, s73, 7
    s_add_u32 s71, s71, s73
    s_lshl_b32 s74, s72, 7
    s_add_u32 s73, s71, s74
    v_mul_u32_u24 v14, 9216, v2
    v_lshl_add_u32 v14, v3, 4, v14
    s_add_u32 s74, s73, {20*8*9216}
    s_add_u32 s71, s71, {20*8*9216}
    """)
    if OPT['help'] & 1:
        A(f"""
        {"" if OPT['hc'] < 2 else f"buffer_load_dwordx4 v[248:251], v14, {RA}, s73 offen"}
        buffer_load_dwordx4 v[248:251], v14, {RA}, s74 offen{HW}
        s_cmp_lg_u32 s72, 0
        s_cbranch_scc1 L_noc3b
        {"" if OPT['hc'] < 2 else f"buffer_load_dwordx4 v[248:251], v14, {RA}, s73 offen offset:1024"}
        buffer_load_dwordx4 v[248:251], v14, {RA}, s74 offen offset:1024{HW}
        L_noc3b:
        """)
    if OPT['help'] & 2: A(f"buffer_load_dwordx4 v[248:251], v14, {RA}, s71 offen offset:768{HW}\nbuffer_load_dwordx4 v[248:251], v14, {RA}, s71 offen offset:896{HW}")
    if OPT['hc'] >= 3:
        A(f"""
        s_mov_b32 s52, s{P_WD}
        s_mov_b32 s53, s{P_WD+1}
        s_mul_i32 s73, s{sX}, 9
        s_add_u32 s73, s73, s72
        s_add_u32 s73, s73, 1
        s_mul_i32 s54, s73, {64*1152}
        s_lshl_b32 s74, s66, 10
        s_add_u32 s73, s54, s74
        s_sub_u32 s73, s73, {40*1024}
        buffer_load_dwordx4 v[248:251], v9, {RA}, s73 offen
        """)
    if OPT['help'] & 4:
        A(f"""
        s_lshl_b32 s66, s66, 10
        s_mov_b32 s52, s{P_WO}
        s_mov_b32 s53, s{P_WO+1}
        s_lshl_b32 s73, s{sX}, 3
        s_add_u32 s73, s73, 7
        s_mul_i32 s73, s73, {64*1152}
        s_add_u32 s54, s73, {64*1152}
        s_add_u32 s73, s73, s66
        s_add_u32 s74, s73, {40*1024}
        {"" if OPT['ht'] < 2 else f"buffer_load_dwordx4 v[248:251], v9, {RA}, s73 offen"}
        buffer_load_dwordx4 v[248:251], v9, {RA}, s74 offen{HW}
        """)
    if OPT['help'] & 8:
        A(f"s_sub_u32 s73, s73, {40*1024}\nbuffer_load_dwordx4 v[248:251], v9, {RA}, s73 offen")
A("L_f_go:")
A(f"s_mul_i32 s{sSL}, s{sX}, 7\n{SLOT}")
ST(1, 3)
srd(52, P_WUV, 512*8192)
srd(56, P_WO, 4096*1152)
A(f"""
s_lshl_b32 s71, s{sW}, 10
s_add_u32 s71, s71, {BIG}
s_lshl_b32 s72, s68, 2
s_add_u32 s72, s72, s67
s_lshl_b32 s72, s72, 16
s_lshl_b32 s73, s{sH}, 1
s_add_u32 s73, s73, s{sQD}
s_lshl_b32 s74, s73, 7
s_add_u32 s72, s72, s74
""")
for i in range(8):
    cb = 2*(i&1) + 16*(i>>1)
    A(f"s_mov_b32 m0, s71\ns_add_u32 s74, s72, {cb*65536}")
    dma(12, RA, 74)
    A(f"s_add_u32 s71, s71, 8192")
    if i < OPT['tslow']: A("s_waitcnt vmcnt(0)")
if OPT['aclr']:
    A(f"s_cmp_ge_u32 s{sF}, 36\ns_cbranch_scc1 L_ac\ns_waitcnt vmcnt(8)\ns_barrier\ns_cmp_lg_u32 s{sW}, 0\ns_cbranch_scc1 L_ac")
    proof(sF)
    A("L_ac:")
wide_voffset(14)
A(f"""
s_mul_i32 s73, s73, {64*1152}
s_lshl_b32 s71, s67, 3
s_add_u32 s71, s71, s68
s_lshl_b32 s71, s71, 10
s_add_u32 s71, s71, {BIG+65536}
s_mul_i32 s72, s67, {8*1152}
s_lshl_b32 s74, s68, 7
s_add_u32 s72, s72, s74
s_add_u32 s72, s72, s73
""")
if OPT['rbo'] & 1: rb_dma(BIG+65536, RB, 73)
else: wide_dma(4, RB)
A(f"""
s_mul_i32 s72, s{sW}, {8*1152}
s_add_u32 s72, s72, s73
s_add_u32 s72, s72, 1024
s_lshl_b32 s71, s{sW}, 10
s_add_u32 s71, s71, {BIG+131072}
s_mov_b32 m0, s71
""")
dma(14, RB, 72)
wide_frag_addrs(BIG+131072, 65536)
A(f"v_lshl_add_u32 v19, v4, 10, v{vTR}\nv_add_u32 v19, {BIG}, v19")
t_setup()
ST(5, 3)
A("s_waitcnt vmcnt(9)\ns_barrier")
for kp in range(16):
    A(f"ds_read_b64_tr_b16 {vr(vUV+4*kp,2)}, v19 offset:{kp*4096}")
    A(f"ds_read_b64_tr_b16 {vr(vUV+4*kp+2,2)}, v19 offset:{kp*4096+512}")
    if kp % 6 == 5: A("s_waitcnt lgkmcnt(4)")
fin_setup()
t_early("L_u")
A("s_waitcnt vmcnt(0) lgkmcnt(2)")
ST(6, 3)
A("s_barrier")
wide_frag_reads(vWO, 2)
t_tail(2, "L_u")

A("L_T:")
A(f"s_mul_i32 s{sSL}, s{sX}, 7\ns_add_u32 s{sSL}, s{sSL}, 6")
ST(1, 3)
srd(52, P_WUV, 512*8192)
srd(56, P_WO, 4096*1152)
A(f"""
s_lshl_b32 s71, s70, 1
s_add_u32 s71, s71, s67
s_lshl_b32 s71, s71, 1
s_add_u32 s71, s71, s69
s_lshl_b32 s71, s71, 10
s_add_u32 s71, s71, {BIG}
s_lshl_b32 s72, s70, 2
s_add_u32 s72, s72, s67
s_lshl_b32 s72, s72, 16
s_lshl_b32 s73, s{sH}, 8
s_lshl_b32 s74, s69, 7
s_add_u32 s73, s73, s74
s_add_u32 s72, s72, s73
""")
for i in range(16):
    cb = 2*((i>>1)&1) + 8*(i&1) + 16*(i>>2)
    A(f"s_mov_b32 m0, s71\ns_add_u32 s74, s72, {cb*65536}")
    dma(12, RA, 74)
    A(f"s_add_u32 s71, s71, 8192")
    if i < OPT['Tslow']: A("s_waitcnt vmcnt(0)")
wide_voffset(14)
A(f"""
s_mul_i32 s66, s{sH}, {128*1152}
s_lshl_b32 s71, s68, 2
s_add_u32 s71, s71, s67
s_mul_i32 s72, s71, {8*1152}
s_add_u32 s72, s72, s66
s_add_u32 s72, s72, 1024
s_lshl_b32 s71, s71, 10
s_add_u32 s71, s71, {BIG+131072}
s_mov_b32 m0, s71
s_add_u32 s71, s71, 2048
""")
dma(14, RB, 72)
A(f"s_add_u32 s72, s72, {16*1152}\ns_mov_b32 m0, s71")
dma(14, RB, 72)
vST = 176
if OPT['rbo'] & 4:
    A(f"s_mul_i32 s72, s{sW}, {8*1152}\ns_add_u32 s72, s72, s66\ns_barrier")
    for i in range(8): A(f"buffer_load_dwordx4 {vr(vST+4*i,4)}, v14, {RB}, s72 offen offset:{128*i} nt")
else:
  A(f"""
s_mul_i32 s72, s67, {8*1152}
s_lshl_b32 s74, s68, 7
s_add_u32 s72, s72, s74
s_add_u32 s72, s72, s66
s_barrier
""")
  for i in range(4):
    A(f"buffer_load_dwordx4 {vr(vST+8*i,4)}, v14, {RB}, s72 offen nt")
    A(f"buffer_load_dwordx4 {vr(vST+8*i+4,4)}, v14, {RB}, s72 offen offset:512 nt")
    A(f"s_add_u32 s72, s72, {16*1152}")
A(f"v_add_u32 v17, 0x10000, v16")
ST(2, 3)
A("s_waitcnt vmcnt(10)")
ST(3, 3)
A("s_barrier")
for kp in range(16):
    a = 16 if kp < 8 else 17
    A(f"ds_read_b64_tr_b16 {vr(vUV+4*kp,2)}, v{a} offset:{(kp&7)*8192}")
    A(f"ds_read_b64_tr_b16 {vr(vUV+4*kp+2,2)}, v{a} offset:{(kp&7)*8192+512}")
    if kp % 6 == 5: A("s_waitcnt lgkmcnt(4)")
A(f"""
s_lshl_b32 s71, s67, 3
s_add_u32 s71, s71, s68
s_lshl_b32 s71, s71, 10
s_add_u32 s71, s71, {BIG}
v_add_u32 v19, s71, v9
s_add_u32 s71, s71, 65536
s_waitcnt lgkmcnt(0)
s_barrier
""")
ST(4, 3)
if OPT['rbo'] & 4:
    A(f"s_add_u32 s73, s66, {64*1152}\ns_lshl_b32 s71, s{sW}, 13\ns_add_u32 s71, s71, {BIG}\nv_add_u32 v19, s71, v9")
    rb_dma(BIG+65536, RB, 73)
else: wide_dma(4, RB)
for i in range(8):
    A(f"s_waitcnt vmcnt({15-i})")
    A(f"ds_write_b128 v19, {vr(vST+4*i,4)} offset:{(i>>1)*16384+(i&1)*4096 if not OPT['rbo'] & 4 else i*1024}")
wide_frag_addrs(BIG+131072, 0)
t_setup()
t_early("L_t")
ST(5, 3)
A("s_waitcnt vmcnt(0) lgkmcnt(0)")
ST(6, 3)
A("s_barrier")
wide_frag_reads(vWO, 4)
t_tail(4, "L_t")

WIN[0] = OPT["wn"]
A("L_F:")
if OPT['fclr']:
    A(f"s_mul_i32 s74, s{sX}, 9\ns_sub_u32 s{sF}, s{sU}, s74\ns_lshl_b32 s{sF}, s{sF}, 3\ns_add_u32 s{sF}, s{sF}, s{sX}")
    h5_clear("L_f_clr")
ST(1, 3)
DNB = BIG
if OPT['fslow']:
    A(f"s_cmp_lt_u32 s{sQD}, {2 if OPT['fbx'] else 0}\ns_cselect_b64 vcc, -1, 0")
    if OPT['c3x'] & 1: A(f"s_and_b32 s74, s{sU}, 7\ns_cmp_eq_u32 s74, 3\ns_cselect_b64 vcc, -1, vcc")
for i in range(9):
    gu_dma(i)
    if i < OPT['fslow']: A(f"s_cbranch_vccnz L_fw{i}\ns_waitcnt vmcnt({OPT['fwin']})\nL_fw{i}:")
xn_frags()
if OPT['fbar']: A("s_barrier")
for i in range(9, 18): gu_dma(i)
srd(56, P_WD, 4608*1152)
wide_voffset(14)
A(f"""
v_lshrrev_b32 v19, 1, v6
v_lshrrev_b32 v21, 1, v5
v_and_b32 v22, 1, v4
v_lshl_or_b32 v21, v22, 1, v21
v_lshl_or_b32 v21, v19, 2, v21
v_xor_b32 v21, s{sW}, v21
v_lshlrev_b32 v21, 4, v21
v_lshl_add_u32 v21, v5, 7, v21
v_and_b32 v22, 1, v6
v_lshl_add_u32 v21, v22, 3, v21
v_lshl_add_u32 v21, v19, 10, v21
v_lshl_add_u32 v21, v4, 11, v21
v_add_u32 v21, {BIG}, v21
v_add_u32 v22, {8*8192}, v21
v_add_u32 v23, {16*8192}, v21
s_mul_i32 s73, s{sU}, {64*1152}
s_lshl_b32 s71, s67, 3
s_add_u32 s71, s71, s68
s_lshl_b32 s71, s71, 10
s_add_u32 s71, s71, {DNB}
s_mul_i32 s72, s67, {8*1152}
s_lshl_b32 s74, s68, 7
s_add_u32 s72, s72, s74
s_add_u32 s72, s72, s73
v_min_u32 v140, 35, v{vL}
v_lshlrev_b32 v140, 7, v140
s_mov_b32 s66, {WS_PF}
s_waitcnt vmcnt(9) lgkmcnt(0)
s_barrier
""")
def k_steps(k0, k1):
    D = 6
    def rd(k):
        d = vG + 4*(k % 8)
        A(f"ds_read_b64_tr_b16 {vr(d,2)}, v{21+(k>>3)} offset:{(k&7)*8192}")
        A(f"ds_read_b64_tr_b16 {vr(d+2,2)}, v{21+(k>>3)} offset:{(k&7)*8192+512}")
    for k in range(k0, min(k1, k0+D)): rd(k)
    for k in range(k0, k1):
        A(f"s_waitcnt lgkmcnt({2*min(D-1, k1-1-k)})")
        mf16(vD, vG+4*(k % 8), vXN+4*k, k == 0)
        if k + D < k1: rd(k + D)
k_steps(0, 9)
A(f"""
s_barrier
s_cmp_lg_u32 s{sW}, 7
s_cbranch_scc1 L_f_np
buffer_load_dword v141, v140, {WS}, s66 offen sc1
L_f_np:
""")
if OPT['rbo'] & 2: rb_dma(DNB, RB, 73)
else: wide_dma(4, RB)
A(f"""
s_mul_i32 s72, s{sW}, {8*1152}
s_add_u32 s72, s72, s73
s_add_u32 s72, s72, 1024
s_lshl_b32 s71, s{sW}, 10
s_add_u32 s71, s71, {DNB+65536}
s_mov_b32 m0, s71
""")
dma(14, RB, 72)
ST(2, 3)
A("s_waitcnt vmcnt(9)")
ST(3, 3)
A("s_barrier")
k_steps(9, 18)
wide_frag_addrs(DNB+65536, DNB-BIG)
A(f"s_lshl_b32 s72, s{sU}, 7\ns_add_u32 s72, s72, {WS_H5+56*128}")
publish_setup(TS)
A(f"""
v_mul_u32_u24 v22, {HBS}, v6
v_lshl_add_u32 v21, v4, 3, v22
s_lshl_b32 s74, s{sW}, 4
v_add_u32 v21, s74, v21
v_lshl_add_u32 v22, v4, 4, v22
""")
masked_addrs(22, HB)
vWD = 144
for j in range(4): A(f"v_mov_b32 v{24+j}, v{vD+j}")
for j in range(4): A(f"v_permlane32_swap_b32 v{vD+j}, v{24+j}")
C1 = -2.0*math.sqrt(2.0/math.pi)*LOG2E
A(f"s_mov_b32 s74, {fbits(0.044715)}\ns_mov_b32 s75, {fbits(C1)}")
for j in range(4): rb16(vD+j, vD+j); rb16(24+j, 24+j)
for j in range(4): A(f"v_mul_f32 v{104+j}, v{vD+j}, v{vD+j}")
for j in range(4): A(f"v_fma_f32 v{104+j}, v{104+j}, s74, 1.0")
for j in range(4): A(f"v_mul_f32 v{104+j}, v{104+j}, v{vD+j}")
for j in range(4): A(f"v_mul_f32 v{104+j}, s75, v{104+j}")
for j in range(4): A(f"v_exp_f32 v{104+j}, v{104+j}")
for j in range(4): A(f"v_add_f32 v{104+j}, 1.0, v{104+j}")
for j in range(4): A(f"v_rcp_f32 v{104+j}, v{104+j}")
for j in range(4): A(f"v_mul_f32 v{vD+j}, v{vD+j}, v{104+j}")
for j in range(4): rb16(vD+j, vD+j)
for j in range(4): A(f"v_mul_f32 v{vD+j}, v{vD+j}, v{24+j}")
A(f"""
v_cvt_pk_bf16_f32 v24, v{vD}, v{vD+1}
v_cvt_pk_bf16_f32 v25, v{vD+2}, v{vD+3}
s_mov_b64 exec, 0x000f000f
ds_write_b64 v21, v[24:25] offset:{HB}
s_mov_b64 exec, -1
s_cmp_lg_u32 s{sW}, 7
s_cbranch_scc1 L_f_pd
s_mov_b32 s77, 0
L_f_pp:
v_cmp_ne_u32 vcc, s{sT}, v141
s_add_u32 s77, s77, 1
s_cbranch_vccz L_f_pd
s_cmp_ge_u32 s77, {POLL_MAX}
s_cbranch_scc1 L_f_pd
buffer_load_dword v141, v140, {WS}, s66 offen sc1
s_waitcnt vmcnt(0)
s_branch L_f_pp
L_f_pd:
s_waitcnt vmcnt(0) lgkmcnt(0)
""")
ST(1); ST(7, 3)
A("s_barrier")
wide_frag_reads(vWD, 2)
A("s_waitcnt lgkmcnt(6)")
wide_gemm(vWD, 2, 104, HB, TS, "L_fg")
ST(2)
finish()

QA = 131072
MXO, LSO, LCO = 2048, 8192+2048, 16384+2048
sLOC = 64
A(f"""
L_att:
s_mov_b64 exec, -1
s_cmp_ge_u32 s{sW}, 4
s_cbranch_scc1 L_att_hi
""")
ST(1, 5); ST(2, 5); ST(3, 5)
if OPT['nqal']:
    A("s_branch L_nq2\nL_att0:")
    A(PFB)
    A("L_nq2:")
late_common()
lane_consts()
A(f"""
s_waitcnt lgkmcnt(0)
s_load_dword s{sE}, s[48:49], 0
s_lshl_b32 s70, s{sX}, 4
s_add_u32 s70, s70, s{sK}
s_lshl_b32 s66, s70, 17
s_lshl_b32 s67, s{sW}, 15
s_add_u32 s66, s66, s67
""")
srd(52, P_CKV, 4*4096*1024)
if OPT['ukw'] < 8: A(f"s_waitcnt vmcnt({OPT['ukw']})")
ST(2, 2)
WIN[0] = OPT["wa"]
def fsw(r): return ((r & 3) << 2) | ((r >> 2) & 3)
for r in range(32):
    if r in (4, 8, 16, 24): ST({4:3,8:4,16:5,24:6}[r], 2)
    if r == 4*OPT['gbar']: A("s_barrier")
    if r & 3 == 0: A(f"s_add_u32 m0, s67, {r*1024}\ns_add_u32 s69, s66, {r*1024}")
    A(f"v_xor_b32 v10, {fsw(r) << 4}, v9")
    A(f"buffer_load_dwordx4 v10, {RA}, s69 offen offset:{(r & 3)*1024} nt lds")
if OPT['gbar'] == 8: A("s_barrier")
ST(7, 2)
if OPT['stamps'] in (2, 3):
    A("s_waitcnt vmcnt(0)")
    ST(9, 2); ST(7, 3)
if OPT['exp'] == 2: A("s_branch L_end")
A(f"""
v_and_b32 v11, 2, v{vL}
v_lshlrev_b32 v11, 1, v11
v_or_b32 v11, v11, v5
v_lshrrev_b32 v12, 5, v{vL}
v_xor_b32 v11, v11, v12
v_lshlrev_b32 v11, 4, v11
v_lshl_add_u32 v11, v3, 7, v11
v_and_b32 v13, 3, v2
v_lshl_add_u32 v11, v13, 13, v11
v_add_u32 v20, {QA}, v11
v_lshl_or_b32 v11, v6, 2, v5
v_xor_b32 v11, v11, v12
v_lshlrev_b32 v11, 4, v11
v_and_b32 v13, 31, v{vL}
v_lshl_add_u32 v11, v13, 10, v11
v_add_u32 v120, s67, v11
""")
for t in range(1, 4): A(f"v_xor_b32 v{20+t}, {t<<5}, v20")
for t in range(1, 8): A(f"v_xor_b32 v{120+t}, {t<<5}, v120")
A(f"""
v_and_b32 v13, 31, v{vL}
v_lshlrev_b32 v13, 5, v13
v_add_u32 v13, {QA}, v13
s_lshl_b32 s68, s{sW}, 3
v_lshl_add_u32 v14, v12, 2, v13
v_add_u32 v14, s68, v14
s_lshl_b32 s68, s{sW}, 13
s_add_u32 s68, s68, {QA}
v_add_u32 v15, s68, v9
s_waitcnt lgkmcnt(0)
""")
get_tag()
A(f"""
s_lshl_b32 s72, s{sX}, 14
s_add_u32 s72, s72, {WS_FLG}
s_lshl_b32 s73, s{sK}, 10
s_add_u32 s73, s73, s72
s_lshl_b32 s68, s{sW}, 7
s_add_u32 s69, s72, s68
s_lshl_b32 s68, s{sK}, 5
s_add_u32 s72, s72, s68
s_lshl_b32 s74, s70, 15
s_lshl_b32 s68, s{sW}, 9
s_add_u32 s74, s74, s68
s_add_u32 s74, s74, {WS_H3A}
s_add_u32 s75, s74, 8192
s_add_u32 s78, s74, 16384
s_add_u32 s79, s74, 24576
s_lshl_b32 s70, s{sK}, 15
s_lshl_b32 s71, s{sX}, 11
s_add_u32 s70, s70, s71
s_add_u32 s70, s70, {WS_H3B}
s_lshl_b32 s71, s{sW}, 8
s_add_u32 s71, s71, s70
v_and_b32 v100, 15, v{vL}
v_and_b32 v101, 1, v4
v_lshlrev_b32 v112, 10, v100
v_lshl_add_u32 v102, v101, 4, v112
v_lshlrev_b32 v103, 11, v4
v_lshl_add_u32 v103, v100, 4, v103
v_and_b32 v104, 1, v3
v_lshlrev_b32 v104, 4, v104
v_mov_b32 v105, 0xffff
v_lshlrev_b32 v105, v104, v105
v_lshrrev_b32 v104, 1, v3
""")
for d in range(4): A(f"v_cmp_eq_u32 vcc, {d}, v104\nv_cndmask_b32 v{108+d}, 0, v105, vcc")
A(f"""
v_lshrrev_b32 v104, 2, v3
v_lshl_add_u32 v105, v104, 4, v4
v_lshlrev_b32 v105, 2, v105
v_lshlrev_b32 v106, 14, v104
v_lshl_add_u32 v106, v6, 5, v106
v_lshl_add_u32 v106, v4, 3, v106
v_and_b32 v104, 1, v2
v_lshl_add_u32 v106, v104, 7, v106
v_lshlrev_b32 v107, 14, v101
v_lshl_add_u32 v107, v100, 3, v107
v_mov_b32 v113, {QA+LCO}
""")
vS = 32; vAf = 128; vBf = 64; DEP = 8
A("s_waitcnt vmcnt(0)")
for t in range(32):
    if t and t & 3 == 0 and t >= 12: A("s_waitcnt lgkmcnt(8)")
    A(f"ds_read_b128 {vr(vAf+4*t,4)}, v{120+(t&7)} offset:{(t>>3)*256}")
PT = [f"buffer_load_dwordx4 v[116:119], v103, {WS}, s{[74,75,78,79][i]} offen offset:{256*h}" for i in range(4) for h in range(2)]
if OPT['ptl'] == 1 and OPT['local']:
    for l_ in PT: A(l_)
A("s_waitcnt lgkmcnt(0)\ns_setprio 2")
ST(1)
A("s_barrier")
ST(2)
def qk_read(t): A(f"ds_read_b128 {vr(vBf+4*(t % DEP),4)}, v{20+(t&3)} offset:{(t>>2)*1024}")
for t in range(DEP): qk_read(t)
for t in range(32):
    A(f"s_waitcnt lgkmcnt({min(DEP-1, 31-t)})")
    mf32(vS, vAf+4*t, vBf+4*(t % DEP), t == 0)
    if t + DEP < 32: qk_read(t + DEP)
    if OPT['ptl'] == 2 and t >= 24: A(PT[t-24])
    if OPT['ptl'] == 3 and t % 4 == 3: A(PT[t//4])
    if t == 13: A("s_barrier")
ST(3)
A(f"v_max3_f32 v24, v{vS}, v{vS+1}, v{vS+2}\nv_max3_f32 v25, v{vS+3}, v{vS+4}, v{vS+5}\nv_max3_f32 v26, v{vS+6}, v{vS+7}, v{vS+8}")
A(f"v_max3_f32 v27, v{vS+9}, v{vS+10}, v{vS+11}\nv_max3_f32 v28, v{vS+12}, v{vS+13}, v{vS+14}")
A(f"v_max3_f32 v24, v24, v25, v26\nv_max3_f32 v27, v27, v28, v{vS+15}\nv_max_f32 v24, v24, v27")
A(f"ds_write_b32 v14, v24 offset:{MXO}\ns_waitcnt lgkmcnt(0)\ns_barrier")
A(f"""
ds_read_b128 v[24:27], v13 offset:{MXO}
ds_read_b128 v[28:31], v13 offset:{MXO+16}
s_waitcnt lgkmcnt(0)
v_max3_f32 v24, v24, v25, v26
v_max3_f32 v28, v28, v29, v30
v_max3_f32 v24, v24, v27, v31
v_max_f32 v24, v24, v28
""")
for hlf in range(2):
    for i in range(8): A(f"v_sub_f32 v{vS+8*hlf+i}, v{vS+8*hlf+i}, v24")
    for i in range(8): A(f"v_exp_f32 v{vS+8*hlf+i}, v{vS+8*hlf+i}")
    for i in range(4): A(f"v_cvt_pk_bf16_f32 v{48+4*hlf+i}, v{vS+8*hlf+2*i}, v{vS+8*hlf+2*i+1}")
    A(f"ds_write_b128 v15, {vr(48+4*hlf,4)} offset:{1024*hlf}")
    if hlf == 0:
        A("s_waitcnt lgkmcnt(0)")
        ST(4)
        A("s_barrier")
for step in (8, 4, 2, 1):
    for i in range(step): A(f"v_add_f32 v{vS+i}, v{vS+i}, v{vS+i+step}")
A(f"ds_write_b32 v14, v{vS} offset:{LSO}\ns_waitcnt lgkmcnt(0)\ns_setprio 0\ns_barrier")
vXr = 144
SO = [74, 75, 78, 79]
A(f"""
s_cmp_lg_u32 s{sW}, 0
s_cbranch_scc1 L_nost
ds_read_b128 v[28:31], v13 offset:{LSO}
ds_read_b128 v[32:35], v13 offset:{LSO+16}
ds_read_b32 v36, v113
v_mov_b32 v25, s{sT}
v_mov_b32 v27, s{sT}
s_waitcnt lgkmcnt(0)
v_add_f32 v28, v28, v29
v_add_f32 v30, v30, v31
v_add_f32 v32, v32, v33
v_add_f32 v34, v34, v35
v_readfirstlane_b32 s{sLOC}, v36
v_add_f32 v28, v28, v30
v_add_f32 v32, v32, v34
v_add_f32 v26, v28, v32
s_mov_b32 exec_hi, 0
s_cmp_lg_u32 s{sLOC}, 0
s_cbranch_scc1 L_stfar
buffer_store_dwordx4 v[24:27], v9, {WS}, s73 offen
s_branch L_stdone
L_stfar:
buffer_store_dwordx4 v[24:27], v9, {WS}, s73 offen sc1
L_stdone:
s_mov_b64 exec, -1
L_nost:
{chr(10).join(PT) if OPT['ptl'] == 5 else ""}
s_mov_b32 s77, 0
s_mov_b32 exec_hi, 0
L_rpoll:
buffer_load_dwordx4 v[32:35], v102, {WS}, s72 offen sc1
s_add_u32 s77, s77, 1
s_waitcnt vmcnt(0)
v_xor_b32 v33, s{sT}, v33
v_xor_b32 v35, s{sT}, v35
v_or_b32 v33, v33, v35
v_cmp_ne_u32 vcc, 0, v33
s_cmp_ge_u32 s77, {POLL_MAX}
s_cbranch_scc1 L_rdone
s_cbranch_vccnz L_rpoll
L_rdone:
s_mov_b64 exec, -1
""")
ST(5)
if OPT['ptl'] == 4:
    for l_ in PT: A(l_)
A("v_mov_b32 v36, v32")
for r in (8, 4, 2, 1): A(f"v_max_f32_dpp v36, v36, v36 row_ror:{r} {DPPF}")
A("v_sub_f32 v33, v32, v36\nv_exp_f32 v33, v33\nv_mul_f32 v37, v33, v34")
for i in range(4): A(f"ds_bpermute_b32 v{40+i}, v105, v33 offset:{16*i}")
for r in (8, 4, 2, 1): A(f"v_add_f32_dpp v37, v37, v37 row_ror:{r} {DPPF}")
if OPT['tg']:
    A(f"""
    s_lshl_b32 s68, s{sK}, 9
    s_lshl_b32 s76, s{sW}, 7
    s_add_u32 s68, s68, s76
    s_lshl_b32 s76, s{sX}, 2
    s_add_u32 s68, s68, s76
    s_add_u32 s68, s68, {WS_TG}
    v_mov_b32 v38, s{sT}
    """)
A(f"""
v_cmp_gt_u32 s[66:67], 8, v100
s_waitcnt lgkmcnt(0)
""")
for i in range(4): A(f"v_cvt_pk_bf16_f32 v{44+i}, v{40+i}, v{40+i}")
for i in range(4): A(f"v_and_b32 v{80+i}, 0xffff0000, v{44+i}")
for i in range(4): A(f"v_sub_f32 v{80+i}, v{40+i}, v{80+i}")
for i in range(4): A(f"v_cvt_pk_bf16_f32 v{80+i}, v{80+i}, v{80+i}")
for i in range(4): A(f"v_cndmask_b32 v{44+i}, v{80+i}, v{44+i}, s[66:67]")
for i in range(4):
    for d in range(4): A(f"v_and_b32 v{64+4*i+d}, v{44+i}, v{108+d}")
A(f"""
s_mov_b32 s77, 0
s_mov_b64 exec, 0xffff
{"s_barrier" if OPT['bard'] else ""}
L_fpoll:
buffer_load_dword v32, v112, {WS}, s69 offen offset:512 sc1
s_add_u32 s77, s77, 1
s_waitcnt vmcnt(0)
v_cmp_ne_u32 vcc, s{sT}, v32
s_cmp_ge_u32 s77, {POLL_MAX}
s_cbranch_scc1 L_fdone
s_cbranch_vccnz L_fpoll
L_fdone:
s_mov_b64 exec, -1
""")
ST(6)
for i in range(4):
    for h in range(2): A(f"buffer_load_dwordx4 {vr(vXr+8*i+4*h,4)}, v103, {WS}, s{SO[i]} offen offset:{256*h} sc1{' nt' if OPT['lnt'] & 2 else ''}")
ex = 0
if OPT['tg']:
    A(f"s_mov_b64 exec, 1\nbuffer_store_dword v38, v8, {WS}, s68 offen sc1\ns_mov_b64 exec, -1")
    ex = 1
for i in range(4):
    A(f"s_waitcnt vmcnt({7-2*i+ex})")
    mf16(40, vXr+8*i, 64+4*i, i == 0)
    A(f"s_waitcnt vmcnt({6-2*i+ex})")
    mf16(44, vXr+8*i+4, 64+4*i, i == 0)
A(f"""
s_cmp_lg_u32 s{sW}, 1
s_cbranch_scc1 L_rnostat
s_mov_b32 exec_hi, 0
buffer_store_dwordx2 v[36:37], v107, {WS}, s70 offen offset:1024 sc1
s_mov_b64 exec, -1
L_rnostat:
s_nop 5
""")
for j in range(4): A(f"v_cndmask_b32 v{48+j}, v{40+j}, v{44+j}, s[66:67]")
for j in range(4): A(f"v_cndmask_b32 v{40+j}, v{44+j}, v{40+j}, s[66:67]")
for j in range(4): A(f"v_add_f32_dpp v{40+j}, v{48+j}, v{40+j} row_ror:8 {DPPF}")
A(f"""
v_cvt_pk_bf16_f32 v44, v40, v41
v_cvt_pk_bf16_f32 v45, v42, v43
buffer_store_dwordx2 v[44:45], v106, {WS}, s71 offen sc1
""")
ST(7)
if OPT['late'] == 1: A("s_barrier")
if OPT['wb'] in (4, 5, 6):
    if OPT['wb'] >= 5: A("s_waitcnt vmcnt(0)")
    for i in range(4):
        for h in range(2):
            A(f"buffer_store_dwordx4 {vr(vXr+8*i+4*h,4)}, v103, {WS}, s{SO[i]} offen offset:{256*h} sc1")
        if OPT['wb'] == 6: A("s_waitcnt vmcnt(0)")
if OPT['local'] and OPT['wb'] in (1, 11):
    A(f"""
    s_cmp_ge_u32 s2, {8 if OPT['wb'] == 1 else NFX}
    s_cbranch_scc1 L_end
    s_waitcnt vmcnt(0)
    s_barrier
    s_cmp_lg_u32 s{sW}, 0
    s_cbranch_scc1 L_end
    buffer_wbl2 sc1
    """)
finish()

A("L_att_hi:")
late_common()
lane_consts()
A(f"s_load_dwordx2 s[56:57], s[0:1], 16\ns_mov_b32 s58, {576*8192}\ns_mov_b32 s59, 0x20000")
if OPT['prio']: A("s_setprio 2")
if OPT['pf'] == 1:
    A(f"""
    s_getpc_b64 s[66:67]
    L_pc:
    s_sub_u32 s66, s66, L_pc-{NAME}_kernel
    s_subb_u32 s67, s67, 0
    v_subrev_u32 v10, 256, v0
    v_lshlrev_b32 v10, 7, v10
    v_cmp_gt_u32 vcc, L_exit-{NAME}_kernel, v10
    s_and_saveexec_b64 s[68:69], vcc
    s_cbranch_execz L_nopf
    global_load_dword v255, v10, s[66:67]
    L_nopf:
    s_mov_b64 exec, -1
    """)
A(f"""
s_sub_u32 s66, s{sW}, 4
s_lshl_b32 s67, s{sX}, 15
s_lshl_b32 s68, s{sK}, 11
s_add_u32 s68, s68, s67
s_add_u32 s69, s68, {WS_H1L}
s_waitcnt lgkmcnt(0)
s_load_dword s{sE}, s[48:49], 0
s_cmp_lg_u32 s66, 1
s_cbranch_scc1 L_h_b
buffer_load_dwordx4 v[248:251], v9, {WS}, s69 offen
buffer_load_dwordx4 v[248:251], v9, {WS}, s69 offen offset:1024
L_h_b:
""")
if OPT['wqh']:
    A(f"""
    s_cmp_lt_u32 s66, 2
    s_cbranch_scc1 L_h_c
    s_lshr_b32 s68, s{sK}, 2
    s_mul_i32 s68, s68, 144
    s_and_b32 s69, s{sK}, 3
    s_lshl_b32 s69, s69, 2
    s_add_u32 s68, s68, s69
    s_lshl_b32 s69, s66, 1
    s_add_u32 s68, s68, s69
    s_add_u32 s68, s68, 124
    s_lshl_b32 s68, s68, 13
    s_lshl_b32 s69, s{sX}, 10
    s_add_u32 s68, s68, s69
    s_add_u32 s69, s68, 8192
    buffer_load_dwordx4 v[248:251], v9, {RB}, s68 offen
    buffer_load_dwordx4 v[248:251], v9, {RB}, s69 offen
    L_h_c:
    """)
A(f"""
s_lshr_b32 s67, s{sX}, 1
s_lshl_b32 s67, s67, 15
s_lshl_b32 s68, s66, 13
s_add_u32 s67, s67, s68
s_add_u32 s67, s67, {WS_H2}
s_and_b32 s69, s66, 1
s_lshl_b32 s69, s69, 1
v_xor_b32 v10, s69, v3
v_lshlrev_b32 v10, 4, v10
v_lshl_add_u32 v10, v2, 10, v10
s_add_u32 s68, s68, {QA}
v_add_u32 v16, s68, v10
v_xor_b32 v17, 64, v16
v_xor_b32 v18, 16, v16
v_xor_b32 v19, 80, v16
v_lshrrev_b32 v12, 5, v{vL}
v_and_b32 v13, 1, v4
v_lshrrev_b32 v14, 1, v6
v_lshl_or_b32 v13, v13, 1, v14
v_lshl_or_b32 v14, v5, 2, v12
v_xor_b32 v13, v13, v14
v_lshlrev_b32 v13, 4, v13
v_lshl_add_u32 v13, v5, 10, v13
v_lshl_add_u32 v13, v12, 12, v13
v_and_b32 v14, 1, v6
v_lshl_add_u32 v13, v14, 3, v13
s_lshl_b32 s68, s66, 8
v_add_u32 v20, s68, v13
""")
for j in range(1, 8): A(f"v_xor_b32 v{20+j}, {j << 5}, v20")
A(f"s_getreg_b32 s65, hwreg(HW_REG_XCC_ID, 0, 4)\ns_lshl_b32 s72, s{sX}, 11\ns_add_u32 s72, s72, {WS_XT}\ns_waitcnt lgkmcnt(0)")
get_tag()
A(f"""
s_cmp_lg_u32 s66, 0
s_cbranch_scc1 L_noxt
s_lshl_b32 s68, s{sK}, 7
s_add_u32 s68, s68, s72
v_mov_b32 v28, s65
v_mov_b32 v29, s{sT}
v_lshlrev_b32 v30, 3, v{vL}
s_mov_b64 exec, 0xffff
buffer_store_dwordx2 v[28:29], v30, {WS}, s68 offen sc1
s_mov_b64 exec, -1
L_noxt:
""")
A(f"""
s_add_u32 s72, s48, s72
s_addc_u32 s73, s49, 0
s_and_b32 s74, s2, {8*OPT['rep']-1}
s_lshl_b32 s74, s74, 10
s_lshl_b32 s75, s66, 8
s_add_u32 s74, s74, s75
s_add_u32 s74, s74, {WS_PQ}
s_add_u32 s74, s48, s74
s_addc_u32 s75, s49, 0
s_mov_b32 s77, 0
{'s_sleep %d' % OPT['isl'] if OPT['isl'] else ''}
""")
if not OPT['local']: A(f"s_mov_b32 s{sLOC}, 1")
if OPT['local']:
    A(f"s_cmp_lg_u32 s66, 0\ns_cbranch_scc1 L_nx\nL_nxp:\ns_mov_b32 s{sLOC}, 0\ns_mov_b32 s76, 0")
    for hlf in range(2):
        for i in range(8): A(f"s_load_dwordx2 s[{16+16*hlf+2*i if hlf == 0 or i < 4 else 52+2*(i-4)}:{17+16*hlf+2*i if hlf == 0 or i < 4 else 53+2*(i-4)}], s[72:73], {(8*hlf+i)*128} glc")
    A("s_waitcnt lgkmcnt(0)")
    for r in list(range(16, 40, 2)) + list(range(52, 60, 2)):
        A(f"s_xor_b32 s{r}, s{r}, s65\ns_or_b32 s{sLOC}, s{sLOC}, s{r}\ns_xor_b32 s{r+1}, s{r+1}, s{sT}\ns_or_b32 s76, s76, s{r+1}")
    A(f"s_or_b32 s{sLOC}, s{sLOC}, s76\ns_add_u32 s77, s77, 1\ns_cmp_ge_u32 s77, 12\ns_cbranch_scc1 L_nx\ns_cmp_lg_u32 s76, 0\ns_cbranch_scc1 L_nxp\nL_nx:")
A(f"""
L_xp:
{'s_sleep %d' % OPT['psl'] if OPT['psl'] else ''}
s_mov_b32 s76, 0
""")
if OPT['cpq']:
    A("s_load_dwordx8 s[16:23], s[74:75], 0 glc\ns_load_dwordx8 s[24:31], s[74:75], 128 glc\ns_waitcnt lgkmcnt(0)")
else:
    for i in range(16): A(f"s_load_dword s{16+i}, s[74:75], {i*128} glc")
    A("s_waitcnt lgkmcnt(0)")
for i in range(16): A(f"s_xor_b32 s{16+i}, s{16+i}, s{sT}\ns_or_b32 s76, s76, s{16+i}")
A(f"""
s_add_u32 s77, s77, 1
s_cmp_ge_u32 s77, {POLL_MAX}
s_cbranch_scc1 L_xd
s_cmp_lg_u32 s76, 0
s_cbranch_scc1 L_xp
L_xd:
""")
ST(6, 2)
if OPT['gbar'] <= 8: A("s_barrier")
if OPT['exp'] == 2: A("s_branch L_end")
ST(9)
vQ = 32
A(f"s_mov_b32 s76, 0xff\ns_mov_b32 s77, 0\ns_add_u32 s69, s67, 4096\nL_h2poll:")
for i in range(8):
    A(f"s_bitcmp1_b32 s76, {i}\ns_cbranch_scc0 L_h2i{i}")
    A(f"buffer_load_dwordx4 {vr(vQ+4*i,4)}, v9, {WS}, s{67 if i < 4 else 69} offen offset:{(i&3)*1024} sc1")
    A(f"L_h2i{i}:")
A(f"s_add_u32 s77, s77, 1\ns_cmp_eq_u32 s77, 1\ns_cbranch_scc1 L_h2first\ns_waitcnt vmcnt(0)\nL_h2first:")
for i in range(8):
    var = ((i >> 1) & 1) + 2*((i >> 2) & 1)
    q = vQ+4*i
    A(f"s_bitcmp1_b32 s76, {i}\ns_cbranch_scc0 L_h2c{i}")
    A(f"s_waitcnt vmcnt({7-i})")
    A(f"v_max3_u32 v28, v{q}, v{q+1}, v{q+2}\nv_max_u32 v28, v28, v{q+3}\nds_write_b128 v{16+var}, {vr(q,4)} offset:{i*128}\nv_cmp_eq_u32 vcc, -1, v28")
    A(f"s_cbranch_vccnz L_h2c{i}\ns_bitset0_b32 s76, {i}\nL_h2c{i}:")
A(f"""
s_waitcnt lgkmcnt(0)
s_cmp_ge_u32 s77, {POLL_MAX}
s_cbranch_scc1 L_h2done
s_cmp_eq_u32 s76, 0
s_cbranch_scc1 L_h2done
{'s_sleep %d' % OPT['rsleep'] if OPT['rsleep'] else ''}
s_branch L_h2poll
L_h2done:
""")
ST(1)
if OPT['prio']: A("s_setprio 0")
A(f"""
s_lshl_b32 s70, s{sX}, 4
s_add_u32 s70, s70, s{sK}
s_lshl_b32 s76, s70, 15
s_lshl_b32 s71, s66, 13
s_add_u32 s76, s76, s71
s_add_u32 s76, s76, {WS_H3A}
s_add_u32 s78, s76, 4096
s_lshl_b32 s75, s70, 10
s_add_u32 s75, s75, {WS_FLG}
s_barrier
""")
vV = 96; vO = 32
def vfrag(f, tau): return vV + 4*(f*4 + tau)
PR = [224+4*f for f in range(6)] + [16, 252]
def pv_reads(f):
    for tau in range(4):
        for jj in range(2):
            a = 20 + jj + 2*tau
            off = (f & 3)*16384 + jj*8192
            A(f"ds_read_b64_tr_b16 {vr(vfrag(f,tau)+2*jj,2)}, v{a} offset:{off}")
if OPT['local']:
    A(f"s_cmp_lg_u32 s66, 0\ns_cbranch_scc1 L_npt\nbuffer_load_dwordx4 v[248:251], v9, {WS}, s75 offen\nL_npt:")
    if not OPT['nopt'] and not OPT['ptl']:
        for i in range(8): A(f"buffer_load_dwordx4 v[248:251], v9, {WS}, s{76 if i < 4 else 78} offen offset:{(i&3)*1024}")
def late_help():
    NL = OPT['nl']
    A(f"""
    s_load_dwordx2 s[16:17], s[0:1], 72
    s_load_dwordx2 s[20:21], s[0:1], 40
    s_lshr_b32 s68, s{sK}, 2
    s_and_b32 s69, s{sK}, 3
    s_mov_b32 s55, 0x20000
    s_cmp_eq_u32 s{sK}, 14
    s_cbranch_scc1 L_lt_x
    s_cmp_ge_u32 s69, 2
    s_cbranch_scc1 L_lt_f
    s_cmp_eq_u32 s68, 3
    s_cbranch_scc1 L_lt_f
    s_lshl_b32 s70, s{sX}, 3
    s_lshl_b32 s71, s68, 1
    s_add_u32 s70, s70, s71
    s_add_u32 s70, s70, s69
    s_add_u32 s70, s70, 1
    s_mul_i32 s54, s70, {64*1152}
    s_sub_u32 s70, s54, {4*NL*1024}
    s_lshl_b32 s71, s66, 10
    s_add_u32 s70, s70, s71
    s_mov_b32 s71, 4096
    v_mov_b32 v10, v9
    s_waitcnt lgkmcnt(0)
    s_mov_b32 s52, s20
    s_mov_b32 s53, s21
    s_branch L_lt_go
    L_lt_f:
    s_lshl_b32 s70, s68, 1
    s_add_u32 s70, s70, s69
    s_lshr_b32 s71, s69, 1
    s_cmp_eq_u32 s68, 3
    s_cselect_b32 s71, s71, 2
    s_sub_u32 s70, s70, s71
    s_mul_i32 s71, s{sX}, 9
    s_add_u32 s70, s70, s71
    s_add_u32 s70, s70, 1
    s_mul_i32 s54, s70, {64*1152}
    s_sub_u32 s70, s54, {4*NL*1024}
    s_lshl_b32 s71, s66, 10
    s_add_u32 s70, s70, s71
    s_mov_b32 s71, 4096
    v_mov_b32 v10, v9
    s_waitcnt lgkmcnt(0)
    s_mov_b32 s52, s16
    s_mov_b32 s53, s17
    L_lt_go:
    """)
    if OPT['late'] == 1: A("s_barrier")
    for i in range(NL):
        A(f"buffer_load_dwordx4 v[248:251], v10, {RA}, s70 offen\ns_add_u32 s70, s70, s71")
    A("L_lt_x:\ns_waitcnt lgkmcnt(0)")
if OPT['late'] == 3: late_help()
FO = [0, 2, 4, 6, 1, 3, 5, 7]
pv_reads(0)
A("s_barrier")
for n in range(1, 8):
    A("s_waitcnt lgkmcnt(6)")
    if n == 5:
        A(f"""
        v_mov_b32 v15, {QA+LCO}
        s_cmp_lg_u32 s66, 0
        s_cbranch_scc1 L_nl
        v_mov_b32 v28, s{sLOC}
        ds_write_b32 v15, v28
        L_nl:
        s_barrier
        """)
    if n == 4:
        for j in range(8): A(f"v_add_u32 v{20+j}, 0x10000, v{20+j}")
    pv_reads(n)
A(f"""
v_add_u32 v10, {QA}, v9
v_and_b32 v13, 31, v{vL}
v_lshlrev_b32 v13, 4, v13
v_lshl_add_u32 v11, v12, 16, v13
s_lshl_b32 s68, s{sX}, 19
s_lshl_b32 s69, s{sK}, 11
s_add_u32 s68, s68, s69
s_lshl_b32 s70, s66, 9
s_add_u32 s68, s68, s70
s_add_u32 s68, s68, {WS_H3A}
s_lshl_b32 s71, s66, 7
s_add_u32 s71, s71, s75
v_mov_b32 v14, s{sT}
s_waitcnt lgkmcnt(0)
s_setprio {OPT['pvq']}
s_barrier
""")
ST(3)
def p_read(f): A(f"ds_read_b128 {vr(PR[f],4)}, v10 offset:{(f>>1)*8192+(f&1)*1024}")
for f in FO[:4]: p_read(f)
for n, f in enumerate(FO):
    if n <= OPT['c2pos']: A(f"s_waitcnt lgkmcnt({3-n})")
    elif n <= 3: pass
    else: A(f"s_waitcnt lgkmcnt({8-n})")
    for tau in range(4): mf32(vO+16*tau, PR[f], vfrag(f,tau), n == 0)
    if n == OPT['c2pos']:
        A("s_waitcnt lgkmcnt(0)\ns_barrier")
        for f2 in FO[4:]: p_read(f2)
        A("ds_read_b32 v15, v15")
A(f"s_waitcnt lgkmcnt(0)\nv_readfirstlane_b32 s{sLOC}, v15")
ST(4)
def pv_store(flag):
    for n, i in enumerate(range(0, 16, 2)):
        d = vV + 4*n
        A(f"v_cvt_pk_bf16_f32 v{d}, v{vO+i}, v{vO+16+i}\nv_cvt_pk_bf16_f32 v{d+2}, v{vO+i+1}, v{vO+16+i+1}")
        A(f"s_add_u32 s69, s68, {((i&3)//2 + 4*(i>>2))*32768}")
        A(f"v_cvt_pk_bf16_f32 v{d+1}, v{vO+32+i}, v{vO+48+i}\nv_cvt_pk_bf16_f32 v{d+3}, v{vO+32+i+1}, v{vO+48+i+1}")
        A(f"buffer_store_dwordx4 {vr(d,4)}, v11, {WS}, s69 offen {flag if flag or not OPT['lnt'] & 1 else 'nt'}")
    A(f"""
    s_mov_b64 exec, 1
    s_waitcnt vmcnt(0)
    buffer_store_dword v14, v8, {WS}, s71 offen offset:512 {flag}
    s_mov_b64 exec, -1
    {"s_barrier" if OPT['bard'] else ""}
    """)
A(f"s_cmp_lg_u32 s{sLOC}, 0\ns_cbranch_scc1 L_pvfar")
pv_store("")
A("L_pvback:")
ST(5)
if OPT['late'] in (1, 2): late_help()
finish()
A("L_pvfar:\ns_nop 9")
pv_store("sc1")
A("s_branch L_pvback")

A("L_end:")
if OPT['stamps']:
    A("s_waitcnt vmcnt(0)")
    ST(8)
    A(f"""
    s_waitcnt lgkmcnt(0)
    s_lshl_b32 s66, s2, 3
    s_add_u32 s66, s66, s{sW}
    s_lshl_b32 s66, s66, 6
    s_add_u32 s66, s66, {WS_ST}
    s_getreg_b32 s67, hwreg(HW_REG_XCC_ID)
    s_mov_b64 exec, 1
    v_mov_b32 v8, 0
    """)
    for i in range(3):
        A("\n".join(f"v_mov_b32 v{12+j}, s{80+2*(3*i+j)}" for j in range(3)))
        A(f"v_mov_b32 v15, {['s67','s77','s98'][i]}")
        A(f"buffer_store_dwordx4 v[12:15], v8, {WS}, s66 offen offset:{16*i}")
if OPT['hs'] >= 0:
    if OPT['hr'] == 1: A("s_cmp_ge_u32 s2, 128\ns_cbranch_scc1 L_exit")
    if OPT['hr'] == 3: A(f"s_cmp_ge_u32 s2, 128\ns_cbranch_scc1 L_exit\ns_cmp_ge_u32 s{sW}, 4\ns_cbranch_scc1 L_exit")
    if OPT['hr'] == 4: A(f"s_cmp_ge_u32 s2, 128\ns_cbranch_scc1 L_exit\ns_cmp_lt_u32 s{sW}, 4\ns_cbranch_scc1 L_exit")
    if OPT['hr'] == 2: A("s_cmp_lt_u32 s2, 128\ns_cbranch_scc1 L_exit")
    A(f"s_cmp_eq_u32 s{80+2*OPT['hs']}, 0\ns_cbranch_scc1 L_exit")
    A(f"L_hold2:\ns_memrealtime s[66:67]\ns_waitcnt lgkmcnt(0)\ns_sub_u32 s68, s66, s{80+2*OPT['hs']}\ns_cmp_lt_u32 s68, 4000\ns_cbranch_scc1 L_hold2")
if OPT['hold']:
    A(f"L_hold:\ns_memrealtime s[66:67]\ns_waitcnt lgkmcnt(0)\ns_sub_u32 s68, s66, s80\ns_cmp_lt_u32 s68, {OPT['hold']}\ns_cbranch_scc1 L_hold")
A("L_exit:\ns_endpgm")
A.raw(f""".section .rodata,"a"
.p2align 6
.amdhsa_kernel {NAME}_kernel
  .amdhsa_next_free_vgpr 256
  .amdhsa_next_free_sgpr 102
  .amdhsa_accum_offset 256
  .amdhsa_group_segment_fixed_size 0
  .amdhsa_kernarg_size 104
  .amdhsa_user_sgpr_count 2
  .amdhsa_user_sgpr_kernarg_segment_ptr 1
  .amdhsa_system_sgpr_workgroup_id_x 1
  .amdhsa_float_denorm_mode_32 3
.end_amdhsa_kernel""")
sys.stdout.write(A.text())
sys.stderr.write(f"instructions {A.count} nops {A.nops}\n")
```
